```python
import torch

def _softmax(x, axis=-1):
    return torch.softmax(x, dim=axis)
def _gelu(x):
    return torch.nn.functional.gelu(x, approximate="tanh")
def _silu(x):
    return torch.nn.functional.silu(x)
def _sigmoid(x):
    return torch.sigmoid(x)
def _layernorm(x, axis=-1, eps=1e-5):
    m = x.mean(dim=axis, keepdim=True)
    v = x.var(dim=axis, keepdim=True, unbiased=False)
    return (x - m) / torch.sqrt(v + eps)
def _scatter_add(tgt, idx, src, axis=0):
    return tgt.clone().index_add_(axis, idx, src)
def _segment_sum(src, seg, n):
    out = torch.zeros((n,) + src.shape[1:], dtype=src.dtype)
    return out.index_add_(0, seg, src)
def _pad(x, pw):
    flat = tuple(v for pair in reversed(pw) for v in pair)
    return torch.nn.functional.pad(x, flat)

kernel_name = 'gather_scatter__molecular_angular_gemnet__graph'

def setup_inputs():

    _w = (lambda a: (lambda t: t.to(torch.bfloat16) if t.is_floating_point() else t)(torch.as_tensor(a)))
    N, deg, De, L = 50000, 16, 16, 3
    E = N * deg
    T = E * deg
    NR = 8
    dist = torch.rand(E).to(float)
    angle = (torch.rand(T) * torch.pi).to(float)
    centers = torch.linspace(0.0, 1.0, NR).to(float)
    ang_freq = torch.arange(1, L + 1).to(float)
    return {
        "m": _w((lambda *s: torch.randn(*s, dtype=torch.bfloat16) * 0.05)(E, De)),
        "idx_in": _w((lambda lo, hi, *s: torch.randint(lo, hi, s))(0, E, T).to(torch.int64)),
        "idx_out": _w((lambda lo, hi, *s: torch.randint(lo, hi, s))(0, E, T).to(torch.int64)),
        "dist": _w(dist),
        "angle": _w(angle),
        "centers": _w(centers),
        "ang_freq": _w(ang_freq),
        "w_rbf": _w((lambda *s: torch.randn(*s, dtype=torch.bfloat16) * 0.2)(NR, De)),
        "w_sbf": _w((lambda *s: torch.randn(*s, dtype=torch.bfloat16) * 0.2)(NR * L, De)),
        "w_down": _w((lambda *s: torch.randn(*s, dtype=torch.bfloat16) * 0.2)(De, De)),
        "w_up": _w((lambda *s: torch.randn(*s, dtype=torch.bfloat16) * 0.2)(De, De)),
    }

def reference(m, idx_in, idx_out, dist, angle, centers, ang_freq, w_rbf, w_sbf, w_down, w_up):
    E, De = m.shape[0], m.shape[1]
    NR = centers.shape[0]
    L = ang_freq.shape[0]
    rbf = torch.exp(-10.0 * (dist[:, None] - centers[None, :]) ** 2)
    cbf = torch.cos(ang_freq[None, :] * angle[:, None])
    rbf_t = rbf[idx_out]
    sbf = torch.reshape(rbf_t[:, :, None] * cbf[:, None, :], (-1, NR * L))
    x = (m[idx_in] @ w_down) * (sbf @ w_sbf)
    agg = _segment_sum(x, idx_out, E)
    return m + (agg @ w_up) * (rbf @ w_rbf)
```

```python
import re

REG = re.compile(r'(?<![\w.])([vsa])(?:(\d+)|\[(\d+):(\d+)\])(?![\w])')
TRANS = ('v_exp_', 'v_log_', 'v_rcp_', 'v_rsq_', 'v_sqrt_', 'v_sin_', 'v_cos_')


def regs_of(tok):
    out = set()
    for m in REG.finditer(tok):
        k = m.group(1)
        if m.group(2) is not None:
            out.add((k, int(m.group(2))))
        else:
            for i in range(int(m.group(3)), int(m.group(4)) + 1):
                out.add((k, i))
    if re.search(r'\bvcc\b', tok):
        out.add(('s', 'vcc'))
    return out


def split_ops(s):
    ops, depth, cur = [], 0, ''
    for ch in s:
        if ch in '[(':
            depth += 1
        if ch in '])':
            depth -= 1
        if ch == ',' and depth == 0:
            ops.append(cur.strip())
            cur = ''
        else:
            cur += ch
    if cur.strip():
        ops.append(cur.strip())
    return ops


class Ins:
    def __init__(self, text):
        self.text = text
        t = text.split(';')[0].strip()
        p = t.split(None, 1)
        self.op = p[0]
        ops = split_ops(p[1]) if len(p) > 1 else []
        self.ops = ops
        op = self.op
        self.valu = op.startswith('v_') and not op.startswith('v_mfma')
        self.mfma = op.startswith('v_mfma')
        self.vmem = op.startswith(('buffer_', 'global_'))
        self.ds = op.startswith('ds_')
        self.trans = op.startswith(TRANS)
        self.dpp = '_dpp' in op or 'row_' in t or 'quad_perm' in t
        self.perml = op.startswith('v_permlane')
        self.rdlane = op.startswith(('v_readlane', 'v_readfirstlane'))
        self.dot = op.startswith('v_dot')
        self.w, self.r = set(), set()
        self.srcc = set()
        self.lanesel = set()
        self.sdata = set()
        self.sdwa_dst = ('dst_sel:' in t and 'dst_sel:DWORD' not in t) or op.startswith(('v_fma_mixhi', 'v_fma_mixlo'))
        R = [regs_of(o) for o in ops]
        if self.valu or self.mfma:
            nd = 1
            if op.startswith(('v_add_co', 'v_sub_co', 'v_addc_co', 'v_subb_co', 'v_subrev_co')):
                nd = 2
            if op == 'v_nop':
                nd = 0
            for x in R[:nd]:
                self.w |= x
            for x in R[nd:]:
                self.r |= x
            if self.perml:
                self.w |= R[1]
                self.r |= R[0]
            if self.dpp or op.startswith(('v_fmac', 'v_dot2c', 'v_writelane')) or self.sdwa_dst:
                self.r |= R[0]
            if self.mfma:
                self.srcc = R[3]
            if op.startswith(('v_readlane', 'v_writelane')):
                self.lanesel = R[2]
        elif self.vmem:
            if 'store' in op or ('atomic' in op):
                for x in R:
                    self.r |= x
                if op.endswith(('x3', 'x4')):
                    self.sdata = R[0] if op.startswith('buffer_') else R[1]
            else:
                self.w |= R[0]
                for x in R[1:]:
                    self.r |= x
        elif self.ds:
            if 'read' in op or 'rtn' in op or 'permute' in op or 'swizzle' in op:
                self.w |= R[0]
                for x in R[1:]:
                    self.r |= x
            else:
                for x in R:
                    self.r |= x
        self.passes = 0
        if self.mfma:
            self.passes = 8 if '32x32' in op else 4
        self.states = 1
        if op == 's_nop':
            self.states = int(ops[0], 0) + 1


def need(p, c):
    n = 0
    pv = {x for x in p.w if x[0] in 'va'}
    ps = {x for x in p.w if x[0] == 's'}
    if p.valu:
        if pv & c.r:
            if c.dpp or c.perml or c.mfma:
                n = max(n, 2)
            if c.rdlane:
                n = max(n, 1)
            if p.trans and c.valu and not c.trans:
                n = max(n, 1)
            if p.trans and (c.mfma or c.valu):
                n = max(n, 1)
            if p.sdwa_dst and (c.valu or c.mfma):
                n = max(n, 1)
        if p.sdwa_dst and c.valu and (pv & c.w):
            n = max(n, 1)
        if p.dot and (pv & (c.r | c.w)):
            same_c = c.op == p.op and len(c.ops) > 3 and (pv & regs_of(c.ops[3])) and not (pv & (regs_of(c.ops[1]) | regs_of(c.ops[2])))
            if not same_c:
                n = max(n, 3)
        if ps & c.r:
            if c.valu:
                n = max(n, 2)
            if c.vmem:
                n = max(n, 5)
        if ps & c.lanesel:
            n = max(n, 4)
    if p.mfma:
        full = {4: 8, 8: 12}[p.passes]
        if c.mfma:
            ab = regs_of(c.ops[1]) | regs_of(c.ops[2])
            if pv & ab:
                n = max(n, full)
            if pv & c.srcc and not (pv == c.srcc and c.passes == p.passes):
                n = max(n, {4: 6, 8: 10}[p.passes])
            if (pv & c.w) and not (pv & c.srcc):
                n = max(n, {4: 6, 8: 10}[p.passes])
        else:
            if pv & (c.r | c.w):
                n = max(n, full)
        if c.valu and (p.srcc & c.w):
            n = max(n, {4: 3, 8: 7}[p.passes])
    if p.sdata and (p.sdata & c.w):
        n = max(n, 2)
    return n


class Asm:
    def __init__(self):
        self.lines = []
        self.hist = []
        self.nops = 0

    def raw(self, s):
        self.lines.append(s)

    def label(self, name):
        self.lines.append(name + ':')

    def fence(self):
        self.hist = []

    def __call__(self, text):
        for ln in text.strip().split('\n'):
            ln = ln.strip()
            if not ln or ln.startswith(';'):
                if ln:
                    self.lines.append('    ' + ln)
                continue
            if ln.endswith(':'):
                self.label(ln[:-1])
                continue
            c = Ins(ln)
            dist, pad = 0, 0
            for p in reversed(self.hist):
                pad = max(pad, need(p, c) - dist)
                dist += p.states
                if dist >= 20:
                    break
            while pad > 0:
                k = min(pad, 16)
                nop = Ins('s_nop %d' % (k - 1))
                self.lines.append('    s_nop %d' % (k - 1))
                self.hist.append(nop)
                self.nops += 1
                pad -= k
            self.lines.append('    ' + ln)
            self.hist.append(c)
            if len(self.hist) > 40:
                self.hist = self.hist[-24:]

    def text(self):
        return '\n'.join(self.lines) + '\n'
```

```python
import math


def k2(a, P, G):
    vr, sr, srd, scan64, f2u, stamp = G['vr'], G['sr'], G['srd'], G['scan64'], G['f2u'], G['stamp']
    E, BINE, TS, TSR = G['E'], G['BINE'], G['TS'], G['TSR']
    REC0, DESC0, PREP0, WS_BYTES = G['REC0'], G['DESC0'], G['PREP0'], G['WS_BYTES']
    PL = BINE * 4
    RBF0 = 5 * PL + 12
    HI0 = RBF0 + BINE * 16
    SCR = HI0 + 4 * PL
    LDS = SCR + 128
    S_M, S_REC, S_WS, S_DIST, S_MO, S_OUT, S_DBG = 16, 20, 24, 28, 32, 36, 92
    sCEN = 40
    sW, sBIN, sT, sT2 = 48, 49, 50, 51
    sF, sE, sDL, sI, sP = 52, 53, 54, 55, 56
    sREM, sIT, sNT = 57, 58, 59
    sMK = 60
    sM0, sM1, sCL, sCA, sIDM, sHI, sA16, sI2P = 62, 63, 64, 65, 66, 67, 68, 69
    sFL = 70
    sSK = 78
    sPASS, sSEL = 86, 87
    sV3 = 88
    LANE = 1
    AG, AM = 4, 16
    GATE, MD = 24, 40
    GB = (56, 64)
    SBF, RBF, REC = 72, 84, 88
    IA, IB = 90, 92
    A16, ANG = (94, 95), (96, 97)
    VE, VD = 98, 102
    ADDR, F6 = 106, 107
    TM = 108
    A4, A4B, CV, RTN, STK = 116, 117, 118, 119, 120
    M0 = 0x4B400000
    lab = [0]

    def plane(j):
        return (A4, j * PL) if j < 5 else (A4B, (j - 5) * PL)

    def desc_load():
        a('v_and_b32 v%d, 31, v%d' % (TM, LANE))
        a('s_lshl_b32 s%d, s%d, 5' % (sT, sW))
        a('v_add_u32 v%d, s%d, v%d' % (TM, sT, TM))
        a('v_lshl_add_u32 v%d, v%d, 13, v%d' % (TM + 1, TM, IA + 1))
        a('s_lshl_b32 s%d, s%d, 5' % (sT, sBIN))
        a('s_add_u32 s%d, s%d, %d' % (sT, sT, DESC0))
        a('buffer_load_dwordx4 %s, v%d, %s, s%d offen' % (vr(VD, 4), TM + 1, sr(S_WS, 4), sT))
        a('v_mul_u32_u24 v%d, %d, v%d' % (F6, TSR, TM))

    def desc_scan():
        for k in range(4):
            a('v_lshrrev_b32 v%d, 16, v%d' % (VE + k, VD + k))
            a('v_and_b32 v%d, 0xffff, v%d' % (VD + k, VD + k))
        for c, rm in (('row_shr:1', 15), ('row_shr:2', 15), ('row_shr:4', 15), ('row_shr:8', 15), ('row_bcast:15', 10), ('row_bcast:31', 12)):
            for k in range(4):
                a('v_add_u32_dpp v%d, v%d, v%d %s row_mask:0x%x bank_mask:0xf' % (VE + k, VE + k, VE + k, c, rm))
        for k in range(4):
            if k:
                a('v_add_u32 v%d, s%d, v%d' % (VE + k, sNT, VE + k))
            a('v_add_u32 v%d, v%d, v%d' % (VD + k, VD + k, F6))
            a('v_readlane_b32 s%d, v%d, 63' % (sNT, VE + k))
            a('v_sub_u32 v%d, v%d, v%d' % (VD + k, VD + k, VE + k))
            a('v_mul_lo_u32 v%d, v%d, 6' % (VD + k, VD + k))
        a('v_mul_u32_u24 v%d, 6, v%d' % (F6, LANE))
        a('s_mov_b32 s%d, 0' % sF)
        a('s_mov_b32 s%d, 0' % sE)
        a('s_mov_b32 s%d, 0' % sDL)
        a('s_movk_i32 s%d, -64' % sI)
        a('s_mov_b32 s%d, s%d' % (sREM, sNT))

    rots = []

    def fill():
        n = lab[0]
        lab[0] += 1
        a('v_add_u32 v%d, s%d, v%d' % (ADDR, sDL, F6))
        a('s_sub_u32 s%d, s%d, s%d' % (sP, sE, sF))
        a('s_cmp_ge_u32 s%d, 64' % sP)
        a('s_cbranch_scc1 Lfd%d' % n)
        a('Lfl%d:' % n)
        a('v_readlane_b32 s%d, v%d, s%d' % (sDL, VD, sI))
        a('v_readlane_b32 s%d, v%d, s%d' % (sE, VE, sI))
        a('s_lshl_b64 exec, -1, s%d' % sP)
        a('s_add_u32 s%d, s%d, 1' % (sI, sI))
        a('s_cbranch_scc1 Lfr%d' % n)
        a('Lfc%d:' % n)
        a('v_add_u32 v%d, s%d, v%d' % (ADDR, sDL, F6))
        a('s_sub_u32 s%d, s%d, s%d' % (sP, sE, sF))
        a('s_cmp_lt_u32 s%d, 64' % sP)
        a('s_cbranch_scc1 Lfl%d' % n)
        a('s_mov_b64 exec, -1')
        a('Lfd%d:' % n)
        a('s_add_u32 s%d, s%d, 64' % (sF, sF))
        a('v_add_u32 v%d, 384, v%d' % (F6, F6))
        rots.append(n)

    def rot_blocks():
        for n in rots:
            a('Lfr%d:' % n)
            a('s_mov_b64 exec, -1')
            for k in range(3):
                a('v_mov_b32 v%d, v%d' % (VE + k, VE + k + 1))
                a('v_mov_b32 v%d, v%d' % (VD + k, VD + k + 1))
            a('v_mov_b32 v%d, -1' % (VE + 3))
            a('v_bfrev_b32 v%d, 1' % (VD + 3))
            a('s_movk_i32 s%d, -64' % sI)
            a('s_lshl_b64 exec, -1, s%d' % sP)
            a('s_branch Lfc%d' % n)
            a.fence()

    def rec_load():
        a('buffer_load_dwordx2 %s, v%d, %s, 0 offen %s' % (vr(REC, 2), ADDR, sr(S_REC, 4), P['ldrec']))

    def decode(q):
        a('v_and_b32 v%d, s%d, v%d' % (IA, sIDM, REC + 1))
        a('v_and_b32 v%d, s%d, v%d' % (IB, sIDM, REC + 1))
        a('v_and_b32_sdwa v%d, s%d, v%d dst_sel:DWORD dst_unused:UNUSED_PAD src0_sel:DWORD src1_sel:WORD_1' % (A16[q], sA16, REC + 1))
        a('v_and_b32 v%d, s%d, v%d' % (ANG[q], sHI, REC))
        a('v_permlane32_swap_b32 v%d, v%d' % (IA, IB))

    def gathers(q):
        a('buffer_load_dwordx4 %s, %s, %s, 0 idxen offen' % (vr(GB[q], 4), vr(IA, 2), sr(S_M, 4)))
        a('buffer_load_dwordx4 %s, %s, %s, 0 idxen offen' % (vr(GB[q] + 4, 4), vr(IB, 2), sr(S_M, 4)))

    def cosines(p):
        c1, c3, c2 = TM, TM + 1, TM + 2
        a('v_mul_f32 v%d, 0x40400000, v%d' % (c3, ANG[p]))
        a('v_mul_f32 v%d, 0.15915494, v%d' % (c1, ANG[p]))
        a('v_cvt_pk_bf16_f32 v%d, 0, v%d' % (c3, c3))
        a('v_fract_f32 v%d, v%d' % (c1, c1))
        a('v_mul_f32 v%d, 0.15915494, v%d' % (c3, c3))
        a('v_cos_f32 v%d, v%d' % (c1, c1))
        a('v_fract_f32 v%d, v%d' % (c3, c3))
        a('v_add_f32 v%d, v%d, v%d' % (c2, c1, c1))
        a('v_cos_f32 v%d, v%d' % (c3, c3))
        a('v_fma_f32 v%d, v%d, v%d, -1.0' % (c2, c2, c1))
        a('v_cvt_pk_f16_f32 v%d, v%d, v%d' % (c1, c1, c2))
        a('v_cvt_f16_f32 v%d, v%d' % (c3, c3))

    def gate():
        c1, c3 = TM, TM + 1
        for l in range(3):
            src, sel = ((c1, 0), (c1, 1), (c3, 0))[l]
            for j in range(4):
                a('v_pk_mul_f16 v%d, v%d, v%d op_sel:[0,%d] op_sel_hi:[1,%d]' % (SBF + 4 * l + j, RBF + j, src, sel, sel))
            if l:
                a('v_mfma_f32_32x32x16_f16 %s, %s, %s, %s' % (vr(GATE, 16), vr(AG + 4 * (l - 1), 4), vr(SBF + 4 * (l - 1), 4), '0' if l == 1 else vr(GATE, 16)))

    def gate_last():
        a('v_mfma_f32_32x32x16_f16 %s, %s, %s, %s' % (vr(GATE, 16), vr(AG + 8, 4), vr(SBF + 8, 4), vr(GATE, 16)))

    def mdown(p):
        a('v_mfma_f32_32x32x16_bf16 %s, %s, %s, 0' % (vr(MD, 16), vr(AM, 4), vr(GB[p], 4)))
        a('v_mfma_f32_32x32x16_bf16 %s, %s, %s, %s' % (vr(MD, 16), vr(AM + 4, 4), vr(GB[p] + 4, 4), vr(MD, 16)))

    def validmask(dst):
        a('s_max_i32 s%d, s%d, 0' % (sT, sREM))
        a('s_bfm_b64 %s, s%d, 0' % (sr(sMK, 2), sT))
        a('s_cmp_ge_i32 s%d, 64' % sREM)
        a('s_cselect_b64 %s, -1, %s' % (dst, sr(sMK, 2)))
        a('s_sub_i32 s%d, s%d, 64' % (sREM, sREM))

    def addrs(p):
        a('v_lshrrev_b32 v%d, 2, v%d' % (A4, A16[p]))
        a('v_add_u32 v%d, %d, v%d' % (A4B, HI0, A4))

    def step(p):
        q = 1 - p
        a('ds_read_b128 %s, v%d offset:%d' % (vr(RBF, 4), A16[p], RBF0))
        a('s_waitcnt vmcnt(2)')
        decode(q)
        rec_load()
        gathers(q)
        cosines(p)
        a('s_waitcnt lgkmcnt(0)')
        a('v_or_b32 v%d, v%d, v%d' % (STK, STK, RTN))
        gate()
        addrs(p)
        gate_last()
        fill()
        a('s_waitcnt vmcnt(3)')
        mdown(p)
        validmask(sr(sMK, 2))
        for d in range(16):
            a('v_mul_f32 v%d, v%d, v%d' % (MD + d, MD + d, GATE + d))
        a('v_maximum3_f32 v%d, |v%d|, |v%d|, |v%d|' % (CV, MD, MD + 1, MD + 2))
        a('v_maximum3_f32 v%d, |v%d|, |v%d|, |v%d|' % (TM, MD + 3, MD + 4, MD + 5))
        for d in range(6, 14, 4):
            a('v_maximum3_f32 v%d, |v%d|, |v%d|, v%d' % (CV, MD + d, MD + d + 1, CV))
            a('v_maximum3_f32 v%d, |v%d|, |v%d|, v%d' % (TM, MD + d + 2, MD + d + 3, TM))
        a('v_maximum3_f32 v%d, |v%d|, |v%d|, v%d' % (CV, MD + 14, MD + 15, CV))
        a('s_mov_b64 exec, %s' % sr(sMK, 2))
        for j in range(8):
            a('v_add_f32 v%d, s%d, v%d' % (MD + 2 * j, sM0, MD + 2 * j))
            a('v_add_f32 v%d, s%d, v%d' % (MD + 2 * j + 1, sM1, MD + 2 * j + 1))
            if j == 0:
                a('v_maximum3_f32 v%d, v%d, v%d, v%d' % (CV, CV, TM, TM))
            if j == 1:
                a('v_add_f32 v%d, s%d, v%d' % (CV, sM0, CV))
            if j == 2:
                a('v_min_u32 v%d, s%d, v%d' % (CV, sCL, CV))
            if j == 3:
                a('v_add_u32 v%d, s%d, v%d' % (CV, sCA, CV))
            a('v_lshl_add_u32 v%d, v%d, 16, v%d' % (MD + 2 * j, MD + 2 * j + 1, MD + 2 * j))
            b, o = plane(j)
            a('ds_add_u32 v%d, v%d offset:%d' % (b, MD + 2 * j, o))
        a('ds_add_rtn_u32 v%d, v%d, v%d offset:%d' % (RTN, A4B, CV, 3 * PL))
        a('s_mov_b64 exec, -1')

    a('s_cmp_ge_u32 s2, 256')
    a('s_cbranch_scc1 Lk2_end')
    a('s_load_dwordx2 s[4:5], s[0:1], 0')
    a('s_load_dwordx2 s[6:7], s[0:1], 24')
    a('s_load_dwordx2 s[8:9], s[0:1], 40')
    a('s_load_dwordx2 s[10:11], s[0:1], 88')
    a('s_load_dwordx4 s[12:15], s[0:1], 96')
    a('v_lshrrev_b32 v2, 6, v0')
    a('v_and_b32 v%d, 63, v0' % LANE)
    a('v_readfirstlane_b32 s%d, v2' % sW)
    a('s_and_b32 s%d, s2, 7' % sBIN)
    a('s_lshl_b32 s%d, s%d, 5' % (sBIN, sBIN))
    a('s_lshr_b32 s%d, s2, 3' % sT)
    a('s_add_u32 s%d, s%d, s%d' % (sBIN, sBIN, sT))
    a('v_lshrrev_b32 v%d, 5, v%d' % (IA + 1, LANE))
    a('v_lshlrev_b32 v%d, 4, v%d' % (IA + 1, IA + 1))
    a('v_mov_b32 v%d, v%d' % (IB + 1, IA + 1))
    a('s_mov_b32 s%d, 0x%x' % (sM0, M0))
    a('s_mov_b32 s%d, 0x%x' % (sM1, M0 - 0x4B40))
    a('s_mov_b32 s%d, 0x%x' % (sCL, M0 + 32767))
    a('s_mov_b32 s%d, 0x%x' % (sCA, ((1 << 22) + 1 - M0) & 0xffffffff))
    a('s_mov_b32 s%d, 0xfffff' % sIDM)
    a('s_mov_b32 s%d, 0xffff0000' % sHI)
    a('s_mov_b32 s%d, 0xfff0' % sA16)
    a('s_mul_i32 s%d, s%d, %d' % (sT, sBIN, BINE * 2))
    a('s_mul_i32 s%d, s%d, %d' % (sT2, sBIN, BINE * 32))
    a('v_cmp_gt_u32 %s, %d, v0' % (sr(sV3, 2), BINE - 3072))
    a('s_lshl_b32 s%d, s2, 4' % sSEL)
    a('s_or_b32 s%d, s%d, s%d' % (sSEL, sSEL, sW))
    a('s_waitcnt lgkmcnt(0)')
    a('s_load_dwordx4 s[96:99], s[8:9], 0')
    srd(a, S_WS, 14, WS_BYTES)
    srd(a, S_DIST, 6, BINE * 2, 's%d' % sT)
    srd(a, S_M, 4, E, None, 32)
    srd(a, S_REC, 14, 512 * TS + 8, str(REC0 - 2))
    srd(a, S_MO, 4, BINE * 32, 's%d' % sT2)
    srd(a, S_OUT, 10, BINE * 32, 's%d' % sT2)
    if P['stamp']:
        srd(a, S_DBG, 12, 256)
        stamp.sel = sSEL
    desc_load()
    a('v_lshlrev_b32 v2, 1, v0')
    for q in range(4):
        a('s_movk_i32 s%d, %d' % (sT, q * 2048))
        a('buffer_load_ushort v%d, v2, %s, s%d offen' % (GATE + q, sr(S_DIST, 4), sT))

    def img_load(first, n, dst):
        a('v_lshlrev_b32 v2, 4, v%d' % LANE)
        for i in range(n):
            a('s_mov_b32 s%d, %d' % (sT, PREP0 + 1024 * (first + i)))
            a('buffer_load_dwordx4 %s, v2, %s, s%d offen' % (vr(dst + 4 * i, 4), sr(S_WS, 4), sT))

    img_load(0, 5, AG)
    for i in range(4):
        a('v_mov_b32 v%d, 0' % (MD + i))
    a('v_mov_b32 v%d, 0' % STK)
    a('v_mov_b32 v%d, 0' % RTN)
    a('v_lshlrev_b32 v2, 4, v0')
    a('v_add_u32 v3, %d, v2' % HI0)
    a('s_waitcnt lgkmcnt(0)')
    for r in range(4):
        a('s_lshl_b32 s%d, s%d, 16' % (sCEN + 2 * r, 96 + r))
        a('s_and_b32 s%d, s%d, 0xffff0000' % (sCEN + 2 * r + 1, 96 + r))
    stamp(a, 0, S_DBG, 96, 126)
    for o in (0, 16384, 32768, RBF0 - 16384):
        a('ds_write_b128 v2, %s offset:%d' % (vr(MD, 4), o))
    for o in (0, 16384, 32768, 4 * PL - 16384):
        a('ds_write_b128 v3, %s offset:%d' % (vr(MD, 4), o))
    a('s_waitcnt vmcnt(9)')
    desc_scan()
    fill()
    rec_load()
    fill()
    a('s_add_u32 s%d, s%d, 63' % (sT, sNT))
    a('s_lshr_b32 s%d, s%d, 6' % (sT, sT))
    a('v_mov_b32 v%d, s%d' % (TM, sT))
    a('s_lshl_b32 s%d, s%d, 2' % (sT, sW))
    a('s_add_u32 s%d, s%d, %d' % (sT, sT, SCR))
    a('v_mov_b32 v%d, s%d' % (TM + 1, sT))
    a('ds_write_b32 v%d, v%d' % (TM + 1, TM))
    a('s_mov_b32 s%d, 0x%x' % (sT2, f2u(-10.0 * math.log2(math.e))))

    def rbf_batch(q):
        a('v_lshlrev_b32 v%d, 16, v%d' % (GATE + q, GATE + q))
        for r in range(8):
            a('v_subrev_f32 v%d, s%d, v%d' % (MD + r, sCEN + r, GATE + q))
        for r in range(8):
            a('v_mul_f32 v%d, v%d, v%d' % (MD + r, MD + r, MD + r))
        for r in range(8):
            a('v_mul_f32 v%d, s%d, v%d' % (MD + r, sT2, MD + r))
        for r in range(8):
            a('v_exp_f32 v%d, v%d' % (MD + r, MD + r))
        for r in range(4):
            a('v_cvt_pk_f16_f32 v%d, v%d, v%d' % (MD + 8 + r, MD + 2 * r, MD + 2 * r + 1))
        a('ds_write_b128 v2, %s offset:%d' % (vr(MD + 8, 4), RBF0))
        if q < 3:
            a('v_add_u32 v2, 16384, v2')

    a('s_waitcnt vmcnt(6)')
    rbf_batch(0)
    a('s_waitcnt vmcnt(0)')
    decode(0)
    rec_load()
    gathers(0)
    fill()
    rbf_batch(1)
    rbf_batch(2)
    a('s_mov_b64 exec, %s' % sr(sV3, 2))
    a('s_cbranch_execz Lk2_r3')
    rbf_batch(3)
    a('Lk2_r3:')
    a('s_mov_b64 exec, -1')
    a('v_and_b32 v2, 15, v0')
    a('v_lshlrev_b32 v2, 2, v2')
    a('v_add_u32 v2, %d, v2' % SCR)
    a('s_waitcnt lgkmcnt(0)')
    a('s_barrier')
    a('ds_read_b32 v3, v2')
    a('s_waitcnt lgkmcnt(0)')
    for c in ('row_shr:1', 'row_shr:2', 'row_shr:4', 'row_shr:8'):
        a('v_max_u32_dpp v3, v3, v3 %s row_mask:0xf bank_mask:0xf' % c)
    a('v_readlane_b32 s%d, v3, 15' % sIT)
    stamp(a, 1, S_DBG, 96, 126)
    a('s_cmp_eq_u32 s%d, 0' % sIT)
    a('s_cbranch_scc1 Lk2_done')
    a.raw('.p2align 6')
    a('Lk2_loop:')
    step(0)
    if P['bar'] == 1:
        a('s_barrier')
    a('s_cmp_eq_u32 s%d, 1' % sIT)
    a('s_cbranch_scc1 Lk2_done')
    step(1)
    if P['bar'] in (1, 2):
        a('s_barrier')
    a('s_sub_u32 s%d, s%d, 2' % (sIT, sIT))
    a('s_cmp_lg_u32 s%d, 0' % sIT)
    a('s_cbranch_scc1 Lk2_loop')
    a('Lk2_done:')
    stamp(a, 2, S_DBG, 96, 126)
    a('s_mov_b32 s%d, 0' % sPASS)
    for i in range(4):
        a('s_mov_b64 %s, 0' % sr(sFL + 2 * i, 2))
        a('s_mov_b64 %s, 0' % sr(sSK + 2 * i, 2))
    a('Lk2_epi:')
    AU, AR = 4, 12
    MQ = 56
    W, RB, CN, OA, R16 = 96, 104, 108, 88, 89
    img_load(5, 3, AU)
    a('v_and_b32 v2, 31, v0')
    a('v_and_b32 v3, 0x3c0, v0')
    a('v_or_b32 v2, v2, v3')
    a('v_lshl_add_u32 v%d, v2, 5, v%d' % (ADDR, IA + 1))
    for q in range(4):
        a('s_mov_b32 s%d, %d' % (sT, q * 32768))
        a('buffer_load_dwordx4 %s, v%d, %s, s%d offen' % (vr(MQ + 8 * q, 4), ADDR, sr(S_MO, 4), sT))
        a('buffer_load_dwordx4 %s, v%d, %s, s%d offen offset:1024' % (vr(MQ + 8 * q + 4, 4), ADDR, sr(S_MO, 4), sT))
    a('v_mov_b32 v%d, v%d' % (TM + 7, ADDR))
    OA = TM + 7
    a('v_lshlrev_b32 v%d, 2, v0' % A4)
    a('v_add_u32 v%d, %d, v%d' % (A4B, HI0, A4))
    a('v_lshlrev_b32 v%d, 4, v0' % CV)
    R16 = CV
    a('s_waitcnt lgkmcnt(0)')
    a('v_or_b32 v%d, v%d, v%d' % (STK, STK, RTN))
    a('s_barrier')

    def epi_batch(q):
        if q == 3:
            for i in range(4):
                a('v_mov_b32 v%d, 0' % (RB + i))
            for i in range(8):
                a('v_mov_b32 v%d, 0' % (W + i))
            a('v_mov_b32 v%d, 0' % CN)
            a('s_mov_b64 exec, %s' % sr(sV3, 2))
        for j in range(8):
            b, o = plane(j)
            a('ds_read_b32 v%d, v%d offset:%d' % (W + j, b, o + 4096 * q))
        a('ds_read_b32 v%d, v%d offset:%d' % (CN, A4B, 3 * PL + 4096 * q))
        a('ds_read_b128 %s, v%d offset:%d' % (vr(RB, 4), R16, RBF0))
        a('s_andn2_b64 exec, -1, %s' % sr(sSK + 2 * q, 2))
        for j in range(8):
            a('s_waitcnt lgkmcnt(%d)' % (9 - j))
            a('v_add_u32 v%d, 0x8000, v%d' % (CN + 1, W + j))
            a('v_cvt_f32_i32_sdwa v%d, sext(v%d) dst_sel:DWORD dst_unused:UNUSED_PAD src0_sel:WORD_0' % (W + j, W + j))
            a('v_cvt_f32_i32_sdwa v%d, sext(v%d) dst_sel:DWORD dst_unused:UNUSED_PAD src0_sel:WORD_1' % (CN + 1, CN + 1))
            a('v_cvt_pk_bf16_f32 v%d, v%d, v%d' % (W + j, W + j, CN + 1))
        a('s_mov_b64 exec, -1')
        a('s_waitcnt lgkmcnt(0)')
        if q == 0:
            a('s_waitcnt vmcnt(8)')
        a('v_mfma_f32_32x32x16_f16 %s, %s, %s, 0' % (vr(GATE, 16), vr(AR, 4), vr(RB, 4)))
        a('v_mfma_f32_32x32x16_bf16 %s, %s, %s, 0' % (vr(MD, 16), vr(AU, 4), vr(W, 4)))
        a('v_mfma_f32_32x32x16_bf16 %s, %s, %s, %s' % (vr(MD, 16), vr(AU + 4, 4), vr(W + 4, 4), vr(MD, 16)))
        if q < 3:
            a('v_add_u32 v%d, 16384, v%d' % (R16, R16))
        a('v_lshrrev_b32 v%d, 22, v%d' % (CN + 1, CN))
        a('v_and_b32 v%d, 0x3fffff, v%d' % (CN, CN))
        a('v_mul_u32_u24 v%d, %d, v%d' % (CN + 2, P['theta'], CN + 1))
        a('v_cmp_lt_u32 vcc, 127, v%d' % (CN + 1))
        a('s_or_b64 %s, %s, vcc' % (sr(sFL + 2 * q, 2), sr(sFL + 2 * q, 2)))
        a('v_cmp_lt_u32 vcc, 0x7fff, v%d' % CN)
        a('s_or_b64 %s, %s, vcc' % (sr(sFL + 2 * q, 2), sr(sFL + 2 * q, 2)))
        a('v_cmp_lt_u32 vcc, v%d, v%d' % (CN, CN + 2))
        a('s_or_b64 %s, %s, vcc' % (sr(sFL + 2 * q, 2), sr(sFL + 2 * q, 2)))
        a('s_waitcnt vmcnt(6)')
        a('s_mov_b32 s%d, %d' % (sT, q * 32768))
        for j in range(8):
            m = MQ + 8 * q + j
            a('v_lshlrev_b32 v%d, 16, v%d' % (CN + 1, m))
            a('v_and_b32 v%d, s%d, v%d' % (CN + 2, sHI, m))
            a('v_fmac_f32 v%d, v%d, v%d' % (CN + 1, MD + 2 * j, GATE + 2 * j))
            a('v_fmac_f32 v%d, v%d, v%d' % (CN + 2, MD + 2 * j + 1, GATE + 2 * j + 1))
            a('v_cvt_pk_bf16_f32 v%d, v%d, v%d' % (m, CN + 1, CN + 2))
            if j == 3:
                a('buffer_store_dwordx4 %s, v%d, %s, s%d offen %s' % (vr(MQ + 8 * q, 4), OA, sr(S_OUT, 4), sT, P['stout']))
        a('buffer_store_dwordx4 %s, v%d, %s, s%d offen offset:1024 %s' % (vr(MQ + 8 * q + 4, 4), OA, sr(S_OUT, 4), sT, P['stout']))

    for q in range(3):
        epi_batch(q)
    a('s_cmp_lg_u32 s%d, 0' % sW)
    a('s_cbranch_scc1 Lk2_e3')
    epi_batch(3)
    a('Lk2_e3:')
    stamp(a, 3, S_DBG, 96, 126)
    a('s_cmp_lg_u32 s%d, 0' % sPASS)
    a('s_cbranch_scc1 Lk2_end')
    a('s_or_b64 %s, %s, %s' % (sr(sMK, 2), sr(sFL, 2), sr(sFL + 2, 2)))
    a('s_or_b64 %s, %s, %s' % (sr(sMK, 2), sr(sMK, 2), sr(sFL + 4, 2)))
    a('s_or_b64 %s, %s, %s' % (sr(sMK, 2), sr(sMK, 2), sr(sFL + 6, 2)))
    a('s_cselect_b32 s%d, 1, %d' % (sT, P['force_slow']))
    a('v_cmp_gt_i32 vcc, 0, v%d' % STK)
    a('s_cmp_lg_u64 vcc, 0')
    a('s_cselect_b32 s%d, 3, s%d' % (sT, sT))
    a('v_mov_b32 v2, s%d' % sT)
    a('s_lshl_b32 s%d, s%d, 2' % (sT, sW))
    a('s_add_u32 s%d, s%d, %d' % (sT, sT, SCR + 64))
    a('v_mov_b32 v3, s%d' % sT)
    a('ds_write_b32 v3, v2')
    a('v_and_b32 v2, 15, v0')
    a('v_lshlrev_b32 v2, 2, v2')
    a('v_add_u32 v2, %d, v2' % (SCR + 64))
    a('s_waitcnt lgkmcnt(0)')
    a('s_barrier')
    a('ds_read_b32 v3, v2')
    a('s_waitcnt lgkmcnt(0)')
    a('v_cmp_ne_u32 vcc, 0, v3')
    a('s_cmp_eq_u64 vcc, 0')
    a('s_cbranch_scc1 Lk2_end')
    a('v_cmp_lt_u32 vcc, 1, v3')
    a('s_cmp_lg_u64 vcc, 0')
    for q in range(4):
        a('s_cselect_b64 %s, -1, %s' % (sr(sSK + 2 * q, 2), sr(sFL + 2 * q, 2)))
    a('s_and_b64 %s, %s, %s' % (sr(sSK + 6, 2), sr(sSK + 6, 2), sr(sV3, 2)))
    a('s_waitcnt vmcnt(0)')
    img_load(0, 3, AG)
    desc_load()
    a('v_mov_b32 v2, 0')
    a('v_mov_b32 v3, -1')
    for q in range(4):
        if q == 3:
            a('s_mov_b64 exec, %s' % sr(sV3, 2))
        a('ds_write_b32 v%d, v2 offset:%d' % (A4B, 3 * PL + 4096 * q))
        a('s_mov_b64 exec, %s' % sr(sSK + 2 * q, 2))
        a('ds_write_b32 v%d, v3 offset:%d' % (A4B, 3 * PL + 4096 * q))
        for j in range(8):
            b, o = plane(j)
            a('ds_write_b32 v%d, v2 offset:%d' % (b, o + 4096 * q))
        a('s_mov_b64 exec, -1')
        a('s_waitcnt lgkmcnt(0)')
    a('s_barrier')
    a('s_waitcnt vmcnt(0)')
    desc_scan()
    a('Lk2_sl:')
    a('s_cmp_le_i32 s%d, 0' % sREM)
    a('s_cbranch_scc1 Lk2_sd')
    fill()
    rec_load()
    validmask(sr(sMK, 2))
    a('s_waitcnt vmcnt(0)')
    decode(0)
    addrs(0)
    a('ds_read_b32 v%d, v%d offset:%d' % (CV, A4B, 3 * PL))
    a('ds_read_b128 %s, v%d offset:%d' % (vr(RBF, 4), A16[0], RBF0))
    a('s_waitcnt lgkmcnt(0)')
    a('v_cmp_ne_u32 vcc, 0, v%d' % CV)
    a('s_and_b64 %s, %s, vcc' % (sr(sMK, 2), sr(sMK, 2)))
    a('s_cbranch_scc0 Lk2_sl')
    gathers(0)
    cosines(0)
    gate()
    gate_last()
    a('s_waitcnt vmcnt(0)')
    mdown(0)
    for d in range(16):
        a('v_mul_f32 v%d, v%d, v%d' % (MD + d, MD + d, GATE + d))
    a('s_mov_b64 exec, %s' % sr(sMK, 2))
    for j in range(8):
        a('v_cvt_pk_bf16_f32 v%d, v%d, v%d' % (MD + 2 * j, MD + 2 * j, MD + 2 * j + 1))
        b, o = plane(j)
        a('ds_pk_add_bf16 v%d, v%d offset:%d' % (b, MD + 2 * j, o))
    a('s_mov_b64 exec, -1')
    a('s_branch Lk2_sl')
    a.fence()
    a('Lk2_sd:')
    a('s_mov_b32 s%d, 1' % sPASS)
    a('s_branch Lk2_epi')
    a.fence()
    rot_blocks()
    a('Lk2_end:')
    a('s_endpgm')
    a.fence()
    return LDS
```

```python
import sys, math, struct
from asmlib import Asm

NAME = 'gather_scatter__molecular_angular_gemnet__graph'
E, T = 800000, 12800000
BINE = 3125
TS = 152832
TSR = TS // 6
REC0 = 128
DESC0 = 80000000
PREP0 = 0x5100000
WS_BYTES = 268435456

P = dict(ld1='nt', st1='', ldrec='nt', stout='', target=200.0, theta=64, bar=1, stamp=0, force_slow=0)
for a in sys.argv[2:]:
    k, v = a.split('=')
    P[k] = type(P[k])(v)


def f2u(x):
    return struct.unpack('<I', struct.pack('<f', x))[0]


def vr(a, n):
    return 'v[%d:%d]' % (a, a + n - 1)


def sr(a, n):
    return 's[%d:%d]' % (a, a + n - 1)


def srd(a, d, ptr, nbytes, off=None, stride=0):
    if off is None:
        a('s_mov_b32 s%d, s%d' % (d, ptr))
        a('s_mov_b32 s%d, s%d' % (d + 1, ptr + 1))
    else:
        a('s_add_u32 s%d, s%d, %s' % (d, ptr, off))
        a('s_addc_u32 s%d, s%d, 0' % (d + 1, ptr + 1))
    if stride:
        a('s_or_b32 s%d, s%d, 0x%x' % (d + 1, d + 1, stride << 16))
    a('s_mov_b32 s%d, %d' % (d + 2, nbytes))
    a('s_mov_b32 s%d, 0x20000' % (d + 3))


def scan64(a, v, op='v_add_u32'):
    for c in ('row_shr:1', 'row_shr:2', 'row_shr:4', 'row_shr:8'):
        a('%s_dpp v%d, v%d, v%d %s row_mask:0xf bank_mask:0xf' % (op, v, v, v, c))
    a('%s_dpp v%d, v%d, v%d row_bcast:15 row_mask:0xa bank_mask:0xf' % (op, v, v, v))
    a('%s_dpp v%d, v%d, v%d row_bcast:31 row_mask:0xc bank_mask:0xf' % (op, v, v, v))


def stamp(a, idx, sdbg, tmp_s, tmp_v):
    if not P['stamp']:
        return
    lab = 'Lst%d' % stamp.n
    stamp.n += 1
    a('s_cmp_lg_u32 s%d, 0' % stamp.sel)
    a('s_cbranch_scc1 %s' % lab)
    a('s_memrealtime %s' % sr(tmp_s, 2))
    a('s_waitcnt lgkmcnt(0)')
    a('v_mov_b32 v%d, s%d' % (tmp_v, tmp_s))
    a('v_mov_b32 v%d, %d' % (tmp_v + 1, idx * 4))
    a('buffer_store_dword v%d, v%d, %s, 0 offen' % (tmp_v, tmp_v + 1, sr(sdbg, 4)))
    a(lab + ':')


stamp.n = 0
stamp.sel = 0


def k1(a):
    DATA = 8192
    SCR = DATA + TS
    S_IN, S_OUT, S_ANG, S_REC, S_DSC, S_T0, S_DBG = 24, 28, 32, 36, 40, 44, 92
    sMB, sMC, sNEG, sHI, sT, sW = 64, 65, 66, 67, 68, 69
    sREM = 70
    sBASE = 72
    sPREP = 73
    TID, O16, O8, ONE, DA = 0, 1, 2, 3, 12
    TMP = 4
    ANG = 14
    INA, OUTA, INB, OUTB, INR, OUTR = 28, 52, 76, 100, 124, 125
    ld = P['ld1']
    st = P['st1']

    a('s_cmp_ge_u32 s2, 256')
    a('s_cbranch_scc1 Lk1_end')
    a('s_load_dwordx4 s[4:7], s[0:1], 8')
    a('s_load_dwordx2 s[8:9], s[0:1], 32')
    a('s_load_dwordx4 s[76:79], s[0:1], 96')
    a('s_load_dwordx2 s[12:13], s[0:1], 0')
    a('s_load_dwordx8 s[16:23], s[0:1], 56')
    a('v_lshlrev_b32 v%d, 4, v0' % O16)
    a('v_lshlrev_b32 v%d, 3, v0' % O8)
    a('v_mov_b32 v%d, 1' % ONE)
    a('v_lshrrev_b32 v4, 6, v0')
    a('v_readfirstlane_b32 s%d, v4' % sW)
    a('v_mov_b32 v4, 0')
    a('v_mov_b32 v5, 0')
    a('ds_write_b64 v%d, v[4:5]' % O8)
    a('s_mov_b32 s%d, %d' % (sMB, -(-2**32 // BINE)))
    a('s_mov_b32 s%d, %d' % (sMC, 2**32 // 100000))
    a('s_mov_b32 s%d, %d' % (sNEG, -BINE))
    a('s_mov_b32 s%d, 0xffff0000' % sHI)
    a('s_mul_i32 s14, s2, 200000')
    a('s_mul_i32 s15, s2, 100000')
    a('s_movk_i32 s%d, 848' % sT)
    a('v_cmp_gt_u32 %s, s%d, v0' % (sr(sREM, 2), sT))
    a('v_and_b32 v4, 1, v0')
    a('v_lshlrev_b32 v4, 12, v4')
    a('v_and_b32 v5, 2, v0')
    a('v_lshl_or_b32 v4, v5, 9, v4')
    a('v_and_b32 v5, 0x3fc, v0')
    a('v_or_b32 v%d, v4, v5' % DA)
    a('v_and_b32 v13, 63, v0')
    a('v_lshlrev_b32 v27, 4, v13')
    a('s_lshl_b32 s%d, s2, 4' % sPREP)
    a('s_or_b32 s%d, s%d, s%d' % (sPREP, sPREP, sW))
    a('s_waitcnt lgkmcnt(0)')
    srd(a, S_IN, 4, 200000, 's14')
    srd(a, S_OUT, 6, 200000, 's14')
    srd(a, S_ANG, 8, 100000, 's15')
    if P['stamp']:
        srd(a, S_DBG, 76, 256)
        stamp.sel = sPREP
        stamp(a, 0, S_DBG, 96, 126)
    a('s_cmp_lg_u32 s%d, 15' % sPREP)
    a('s_cbranch_scc1 Lk1_main')
    srd(a, S_T0, 18, 768)
    srd(a, S_T0 + 4, 20, 512)
    srd(a, S_T0 + 8, 22, 512)
    srd(a, S_T0 + 12, 16, 256)
    srd(a, S_T0 + 16, 12, E * 32)
    for i in range(4):
        a('buffer_load_dwordx4 %s, v27, %s, 0 offen' % (vr(76 + 4 * i, 4), sr(S_T0 + 4 * i, 4)))
    a('v_mul_u32_u24 v4, 99984, v13')
    for i in range(4):
        a('s_mov_b32 s%d, %d' % (sT, i * 64 * 99984))
        a('buffer_load_dwordx4 %s, v4, %s, s%d offen' % (vr(92 + 4 * i, 4), sr(S_T0 + 16, 4), sT))
    a('Lk1_main:')

    def loads(j, rin, rout, rang):
        a('s_mov_b32 s%d, %d' % (sT, j * 16384))
        a('buffer_load_dwordx4 %s, v%d, %s, s%d offen %s' % (vr(rout, 4), O16, sr(S_OUT, 4), sT, ld))
        a('buffer_load_dwordx4 %s, v%d, %s, s%d offen %s' % (vr(rin, 4), O16, sr(S_IN, 4), sT, ld))
        a('s_mov_b32 s%d, %d' % (sT, j * 8192))
        a('buffer_load_dwordx2 %s, v%d, %s, s%d offen %s' % (vr(rang, 2), O8, sr(S_ANG, 4), sT, ld))

    def pack(items):
        n = len(items)
        for e, (ri, ro, rg, odd) in enumerate(items):
            a('v_mul_hi_u32_u24 v%d, s%d, v%d' % (TMP + e, sMB, ro))
            a('v_mul_hi_u32_u24 v%d, s%d, v%d' % (TMP + 4 + e, sMC, ri))
        for e, (ri, ro, rg, odd) in enumerate(items):
            a('v_mad_i32_i24 v%d, v%d, s%d, v%d' % (ro, TMP + e, sNEG, ro))
            a('v_lshl_add_u32 v%d, v%d, 8, v%d' % (TMP + e, TMP + 4 + e, TMP + e))
        for e, (ri, ro, rg, odd) in enumerate(items):
            a('v_lshlrev_b32 v%d, 2, v%d' % (TMP + e, TMP + e))
            a('v_lshl_or_b32 v%d, v%d, 20, v%d' % (ri, ro, ri))
            a('ds_add_u32 v%d, v%d' % (TMP + e, ONE))
        for e, (ri, ro, rg, odd) in enumerate(items):
            if odd:
                a('v_and_or_b32 v%d, v%d, s%d, v%d' % (ro, rg, sHI, TMP + e))
            else:
                a('v_lshl_or_b32 v%d, v%d, 16, v%d' % (ro, rg, TMP + e))

    def quad(rin, rout, rang):
        return [(rin + e, rout + e, rang + (e >> 1), e & 1) for e in range(4)]

    def scan():
        a('s_waitcnt lgkmcnt(0)')
        a('s_barrier')
        a('ds_read_b64 v[4:5], v%d' % O8)
        a('s_lshl_b32 s%d, s%d, 2' % (sT, sW))
        a('s_add_u32 s%d, s%d, %d' % (sT, sT, SCR))
        a('v_mov_b32 v8, s%d' % sT)
        a('v_and_b32 v9, 15, v0')
        a('s_waitcnt lgkmcnt(0)')
        a('v_add_u32 v6, v4, v5')
        a('v_mov_b32 v7, v6')
        scan64(a, 7)
        a('s_mov_b32 exec_lo, 0')
        a('s_mov_b32 exec_hi, 0x80000000')
        a('ds_write_b32 v8, v7')
        a('s_mov_b64 exec, -1')
        a('v_lshlrev_b32 v10, 2, v9')
        a('v_add_u32 v10, %d, v10' % SCR)
        a('v_mov_b32 v11, 0')
        a('v_cmp_gt_u32 vcc, s%d, v9' % sW)
        a('v_sub_u32 v7, v7, v6')
        a('s_waitcnt lgkmcnt(0)')
        a('s_barrier')
        a('s_mov_b64 exec, vcc')
        a('ds_read_b32 v11, v10')
        a('s_mov_b64 exec, -1')
        a('s_waitcnt lgkmcnt(0)')
        for c in ('row_shr:1', 'row_shr:2', 'row_shr:4', 'row_shr:8'):
            a('v_add_u32_dpp v11, v11, v11 %s row_mask:0xf bank_mask:0xf' % c)
        a('v_readlane_b32 s%d, v11, 15' % sBASE)
        a('v_add_u32 v7, s%d, v7' % sBASE)
        a('v_add_u32 v6, v7, v4')
        a('v_lshl_or_b32 v4, v4, 16, v7')
        a('v_lshl_or_b32 v5, v5, 16, v6')
        a('ds_write_b64 v%d, v[4:5]' % O8)
        a('s_waitcnt lgkmcnt(0)')
        a('s_barrier')

    def rtn(t, ro):
        a('v_and_b32 v%d, 0xffff, v%d' % (t, ro))
        a('ds_add_rtn_u32 v%d, v%d, v%d' % (t, t, ONE))

    def put(t, ri, ro):
        a('v_mul_u32_u24_sdwa v%d, 6, v%d dst_sel:DWORD dst_unused:UNUSED_PAD src0_sel:DWORD src1_sel:WORD_0' % (t, t))
        a('ds_write_b16_d16_hi v%d, v%d offset:%d' % (t, ro, DATA))
        a('ds_write_b16 v%d, v%d offset:%d' % (t, ri, DATA + 2))
        a('ds_write_b16_d16_hi v%d, v%d offset:%d' % (t, ri, DATA + 4))

    def scatter(rin, rout, rem):
        G = 3
        ng = 24 // G
        if rem:
            a('s_mov_b64 exec, %s' % sr(sREM, 2))
            rtn(TMP + 6, OUTR)
            a('s_mov_b64 exec, -1')
        for e in range(G):
            rtn(TMP + e, rout + e)
        for g in range(ng):
            cur, nxt = TMP + (g & 1) * G, TMP + ((g + 1) & 1) * G
            if g + 1 < ng:
                for e in range(G):
                    rtn(nxt + e, rout + (g + 1) * G + e)
            young = (G if g + 1 < ng else 0) + (3 * G if g > 0 else 0)
            a('s_waitcnt lgkmcnt(%d)' % young)
            for e in range(G):
                put(cur + e, rin + g * G + e, rout + g * G + e)
        if rem:
            a('s_mov_b64 exec, %s' % sr(sREM, 2))
            put(TMP + 6, INR, OUTR)
            a('s_mov_b64 exec, -1')

    def readout(sub, base, nround, zero):
        a('s_lshl_b32 s14, s2, 1')
        if sub:
            a('s_add_u32 s14, s14, 1')
        a('s_mul_i32 s15, s14, %d' % TS)
        a('s_add_u32 s15, s15, %d' % REC0)
        srd(a, S_REC, 78, TS, 's15')
        a('s_lshl_b32 s15, s14, 13')
        a('s_add_u32 s15, s15, %d' % DESC0)
        srd(a, S_DSC, 78, 8192, 's15')
        a('v_add_u32 v4, 0x10000, v%d' % O16)
        a('v_add_u32 v5, 0x20000, v%d' % O16)
        a('v_mov_b32 v6, 0')
        a('s_waitcnt lgkmcnt(0)')
        a('s_barrier')
        dsc = base + 4 * nround
        a('ds_read2st64_b32 %s, v%d offset0:0 offset1:8' % (vr(dsc, 2), DA))
        for j in range(nround):
            b = (O16, 4, 5)[j >> 2]
            a('ds_read_b128 %s, v%d offset:%d' % (vr(base + 4 * j, 4), b, DATA + (j & 3) * 16384))
        if zero:
            a('ds_write2st64_b32 v%d, v6, v6 offset0:0 offset1:8' % DA)
        for j in range(nround):
            a('s_mov_b32 s%d, %d' % (sT, j * 16384))
            a('s_waitcnt lgkmcnt(%d)' % (nround - 1 - j + zero))
            a('buffer_store_dwordx4 %s, v%d, %s, s%d offen %s' % (vr(base + 4 * j, 4), O16, sr(S_REC, 4), sT, st))
        a('buffer_store_dwordx2 %s, v%d, %s, 0 offen %s' % (vr(dsc, 2), O8, sr(S_DSC, 4), st))

    for j in range(6):
        loads(j, INA + 4 * j, OUTA + 4 * j, ANG + 2 * j)
    a('s_cmp_lg_u32 s%d, 15' % sPREP)
    a('s_cbranch_scc1 Lk1_noprep')
    prep(a, DATA, S_T0)
    a('Lk1_noprep:')
    a('s_barrier')
    for j in range(6):
        a('s_waitcnt vmcnt(15)')
        pack(quad(INA + 4 * j, OUTA + 4 * j, ANG + 2 * j))
        loads(6 + j, INB + 4 * j, OUTB + 4 * j, ANG + 2 * j)
    a('v_lshlrev_b32 v4, 2, v0')
    a('v_lshlrev_b32 v5, 1, v0')
    a('s_mov_b32 s%d, %d' % (sT, 12 * 16384))
    a('buffer_load_dword v%d, v4, %s, s%d offen %s' % (OUTR, sr(S_OUT, 4), sT, ld))
    a('buffer_load_dword v%d, v4, %s, s%d offen %s' % (INR, sr(S_IN, 4), sT, ld))
    a('s_mov_b32 s%d, %d' % (sT, 12 * 8192))
    a('buffer_load_ushort v%d, v5, %s, s%d offen %s' % (ANG + 12, sr(S_ANG, 4), sT, ld))
    stamp(a, 1, S_DBG, 96, 126)
    scan()
    stamp(a, 2, S_DBG, 96, 126)
    scatter(INA, OUTA, False)
    stamp(a, 3, S_DBG, 96, 126)
    readout(0, INA, 9, 1)
    a('s_waitcnt lgkmcnt(0)')
    a('s_barrier')
    stamp(a, 4, S_DBG, 96, 126)
    for j in range(6):
        a('s_waitcnt vmcnt(%d)' % (28 - 3 * j))
        pack(quad(INB + 4 * j, OUTB + 4 * j, ANG + 2 * j))
    a('s_waitcnt vmcnt(10)')
    a('s_mov_b64 exec, %s' % sr(sREM, 2))
    pack([(INR, OUTR, ANG + 12, 0)])
    a('s_mov_b64 exec, -1')
    stamp(a, 5, S_DBG, 96, 126)
    scan()
    stamp(a, 6, S_DBG, 96, 126)
    scatter(INB, OUTB, True)
    stamp(a, 7, S_DBG, 96, 126)
    readout(1, INB, 10, 0)
    stamp(a, 8, S_DBG, 96, 126)
    if P['stamp']:
        a('s_waitcnt vmcnt(0)')
        stamp(a, 9, S_DBG, 96, 126)
    a('Lk1_end:')
    a('s_endpgm')
    a.fence()
    return SCR + 64


def prep(a, PB, S_T0):
    L, O = 13, 27
    sS = 80
    sS = 48
    a('s_waitcnt vmcnt(18)')
    for i in range(4):
        a('ds_write_b128 v%d, %s offset:%d' % (O, vr(76 + 4 * i, 4), PB + 1024 * i))
    a('v_mov_b32 v4, 0')
    for i in range(16):
        a('v_dot2_f32_bf16 v4, v%d, v%d, v4' % (92 + i, 92 + i))
    scan64(a, 4, 'v_add_f32')
    a('v_readlane_b32 s14, v4, 63')
    a('v_bfe_u32 v5, v%d, 3, 2' % L)
    a('v_and_b32 v6, 3, v%d' % L)
    a('v_lshl_or_b32 v5, v5, 2, v6')
    a('v_lshlrev_b32 v5, 1, v5')
    a('v_bfe_u32 v7, v%d, 2, 1' % L)
    a('v_lshrrev_b32 v8, 5, v%d' % L)
    a('s_waitcnt lgkmcnt(0)')
    for k in range(24):
        a('ds_read_u16 v%d, v5 offset:%d' % (76 + k, PB + 32 * k))
        if k % 8 == 7:
            a('s_waitcnt lgkmcnt(0)')
    for k in range(16):
        a('ds_read_u16 v%d, v5 offset:%d' % (100 + k, PB + 1024 + 32 * k))
        if k % 8 == 7:
            a('s_waitcnt lgkmcnt(0)')
    a('v_lshl_add_u32 v9, v8, 8, v5')
    for k in range(8):
        a('ds_read_u16 v%d, v9 offset:%d' % (116 + k, PB + 1024 + 32 * k))
    a('s_waitcnt lgkmcnt(0)')
    for k in range(48):
        a('v_lshlrev_b32 v%d, 16, v%d' % (76 + k, 76 + k))
    a('v_mul_f32 v9, v76, v76')
    for k in range(1, 24):
        a('v_fmac_f32 v9, v%d, v%d' % (76 + k, 76 + k))
    a('v_mul_f32 v10, v100, v100')
    for k in range(1, 16):
        a('v_fmac_f32 v10, v%d, v%d' % (100 + k, 100 + k))
    a('v_log_f32 v9, v9')
    a('v_log_f32 v10, v10')
    a('v_log_f32 v11, s14')
    a('v_add_f32 v10, v10, v9')
    a('v_add_f32 v10, v10, v11')
    c0 = math.log2(P['target']) - 0.5 * math.log2(0.1625 / 2048)
    a('v_mov_b32 v11, 0x%x' % f2u(c0))
    a('v_fmac_f32 v11, -0.5, v10')
    a('v_floor_f32 v11, v11')
    a('v_mul_f32 v9, 0.5, v9')
    a('v_floor_f32 v9, v9')
    a('s_mov_b32 s14, 0x%x' % f2u(40.0))
    a('v_med3_f32 v11, v11, -s14, s14')
    a('v_med3_f32 v9, -v9, -s14, s14')
    a('v_cvt_i32_f32 v11, v11')
    a('v_cvt_i32_f32 v9, v9')
    a('v_sub_u32 v10, v11, v9')
    for j in range(16):
        a('v_readlane_b32 s%d, v11, %d' % (sS + j, ((j >> 2) << 3) | (j & 3)))
    srd(a, S_T0, 78, 8192, str(PREP0))
    a('v_xor_b32 v4, v7, v8')
    a('v_subrev_u32 v4, 1, v4')
    a('v_subrev_u32 v6, 1, v7')
    a('v_sub_u32 v7, 0, v7')
    for k in range(24):
        a('v_ldexp_f32 v%d, v%d, v9' % (76 + k, 76 + k))
    for k in range(8):
        a('v_ldexp_f32 v%d, v%d, v10' % (116 + k, 116 + k))
    for l in range(3):
        for jj in range(4):
            a('v_cvt_pk_f16_f32 v%d, v%d, v%d' % (100 + 4 * l + jj, 76 + 6 * jj + l, 76 + 6 * jj + 3 + l))
            a('v_and_b32 v%d, v%d, v4' % (100 + 4 * l + jj, 100 + 4 * l + jj))
        a('buffer_store_dwordx4 %s, v%d, %s, 0 offen offset:%d' % (vr(100 + 4 * l, 4), O, sr(S_T0, 4), 1024 * l))
    for jj in range(4):
        a('v_cvt_pk_bf16_f32 v%d, v%d, v%d' % (116 + jj, 116 + 2 * jj, 117 + 2 * jj))
    for jj in range(4):
        a('v_and_b32 v%d, v%d, v6' % (112 + jj, 116 + jj))
        a('v_and_b32 v%d, v%d, v7' % (120 + jj, 116 + jj))
    a('v_add_u32 v11, 4096, v%d' % O)
    a('buffer_store_dwordx4 v[112:115], v%d, %s, 0 offen offset:3072' % (O, sr(S_T0, 4)))
    a('buffer_store_dwordx4 v[120:123], v11, %s, 0 offen' % sr(S_T0, 4))
    a('v_bfe_u32 v5, v%d, 2, 1' % L)
    a('v_bfe_u32 v6, v%d, 3, 1' % L)
    a('v_lshl_or_b32 v5, v5, 1, v6')
    a('v_and_b32 v6, 3, v%d' % L)
    a('v_lshl_or_b32 v5, v5, 2, v6')
    a('v_lshlrev_b32 v5, 1, v5')
    a('v_bfe_u32 v7, v%d, 4, 1' % L)
    a('v_xor_b32 v4, v7, v8')
    a('v_subrev_u32 v4, 1, v4')
    for k in range(16):
        a('ds_read_u16 v%d, v5 offset:%d' % (76 + k, PB + 2048 + 32 * k))
        if k % 8 == 7:
            a('s_waitcnt lgkmcnt(0)')
    for k in range(8):
        a('ds_read_u16 v%d, v5 offset:%d' % (92 + k, PB + 3072 + 32 * k))
    a('s_waitcnt lgkmcnt(0)')
    for k in range(24):
        a('v_lshlrev_b32 v%d, 16, v%d' % (76 + k, 76 + k))
    a('v_mul_f32 v9, v92, v92')
    for k in range(1, 8):
        a('v_fmac_f32 v9, v%d, v%d' % (92 + k, 92 + k))
    a('v_log_f32 v9, v9')
    a('v_mul_f32 v9, 0.5, v9')
    a('v_floor_f32 v9, v9')
    a('v_med3_f32 v9, v9, -s14, s14')
    a('v_cvt_i32_f32 v9, v9')
    a('v_sub_u32 v10, 0, v9')
    for k in range(8):
        a('v_ldexp_f32 v%d, v%d, v10' % (92 + k, 92 + k))
    for k in range(16):
        a('v_subrev_u32 v6, s%d, v9' % (sS + k))
        a('v_ldexp_f32 v%d, v%d, v6' % (76 + k, 76 + k))
    for jj in range(8):
        a('v_cvt_pk_bf16_f32 v%d, v%d, v%d' % (76 + jj, 76 + 2 * jj, 77 + 2 * jj))
        a('v_and_b32 v%d, v%d, v4' % (76 + jj, 76 + jj))
    for jj in range(4):
        a('v_cvt_pk_f16_f32 v%d, v%d, v%d' % (84 + jj, 92 + 2 * jj, 93 + 2 * jj))
        a('v_and_b32 v%d, v%d, v4' % (84 + jj, 84 + jj))
    for i in range(3):
        a('buffer_store_dwordx4 %s, v11, %s, 0 offen offset:%d' % (vr(76 + 4 * i, 4), sr(S_T0, 4), 1024 * (i + 1)))
    a('s_nop 1')


from gen_k2 import k2


def main():
    a = Asm()
    body = Asm()
    out = []
    kernels = []
    for nm, fn in (('bin_kernel', k1), ('acc_kernel', k2)):
        b = Asm()
        if fn is k2:
            lds = fn(b, P, globals())
        else:
            lds = fn(b)
        kernels.append((nm, b, lds))
    hdr = open('cdna_kernels/%s.s.ref' % NAME).read().split('\n')
    hdr = [l for l in hdr if l.startswith(';') and '@launch' not in l and 'Override launch' not in l and 'grid=ceil' not in l]
    out += hdr
    for nm, b, lds in kernels:
        out.append('; @launch kernel=%s grid=(256,1,1) block=(1024,1,1) lds=%d' % (nm, lds))
    out.append('.amdgcn_target "amdgcn-amd-amdhsa--gfx950"')
    out.append('.text')
    for nm, b, lds in kernels:
        out.append('.globl %s\n.p2align 8\n.type %s,@function\n%s:' % (nm, nm, nm))
        out.append(b.text())
    out.append('.section .rodata,"a"')
    for nm, b, lds in kernels:
        out.append('''.p2align 6
.amdhsa_kernel %s
  .amdhsa_next_free_vgpr 128
  .amdhsa_next_free_sgpr 102
  .amdhsa_accum_offset 128
  .amdhsa_group_segment_fixed_size 0
  .amdhsa_kernarg_size 112
  .amdhsa_user_sgpr_count 2
  .amdhsa_user_sgpr_kernarg_segment_ptr 1
  .amdhsa_system_sgpr_workgroup_id_x 1
.end_amdhsa_kernel''' % nm)
    open(sys.argv[1], 'w').write('\n'.join(out) + '\n')


main()
```

```python
import math


def k2(a, P, G):
    vr, sr, srd, scan64, f2u, stamp = G['vr'], G['sr'], G['srd'], G['scan64'], G['f2u'], G['stamp']
    E, BINE, TS, TSR = G['E'], G['BINE'], G['TS'], G['TSR']
    REC0, DESC0, PREP0, WS_BYTES = G['REC0'], G['DESC0'], G['PREP0'], G['WS_BYTES']
    PL = BINE * 4
    RBF0 = 5 * PL + 12
    HI0 = RBF0 + BINE * 16
    SCR = HI0 + 4 * PL
    LDS = SCR + 128
    S_M, S_REC, S_WS, S_DIST, S_MO, S_OUT, S_DBG = 16, 20, 24, 28, 32, 36, 92
    sCEN = 40
    sW, sBIN, sT, sT2 = 48, 49, 50, 51
    sF, sE, sDL, sI, sP = 52, 53, 54, 55, 56
    sREM, sIT, sNT = 57, 58, 59
    sMK = 60
    sM0, sM1, sCL, sCA, sIDM, sHI, sA16, sI2P = 62, 63, 64, 65, 66, 67, 68, 69
    sFL = 70
    sSK = 78
    sPASS, sSEL = 86, 87
    sV3 = 88
    LANE = 1
    AG, AM = 4, 16
    GATE, MD = 24, 40
    GB = (56, 64)
    SBF, RBF = 72, 84
    RECS = (88, 122) if P['rd2'] else (88, 88)
    IA, IB = 90, 92
    A16, ANG = (94, 95), (96, 97)
    VE, VD = 98, 102
    ADDR, F6 = 106, 107
    TM = 108
    A4, A4B, CV, RTN, STK = 116, 117, 118, 119, 120
    M0 = 0x4B400000
    lab = [0]

    def plane(j):
        return (A4, j * PL) if j < 5 else (A4B, (j - 5) * PL)

    def desc_load():
        a('v_and_b32 v%d, 31, v%d' % (TM, LANE))
        a('s_lshl_b32 s%d, s%d, 5' % (sT, sW))
        a('v_add_u32 v%d, s%d, v%d' % (TM, sT, TM))
        a('v_lshl_add_u32 v%d, v%d, 13, v%d' % (TM + 1, TM, IA + 1))
        a('s_lshl_b32 s%d, s%d, 5' % (sT, sBIN))
        a('s_add_u32 s%d, s%d, %d' % (sT, sT, DESC0))
        a('buffer_load_dwordx4 %s, v%d, %s, s%d offen' % (vr(VD, 4), TM + 1, sr(S_WS, 4), sT))
        a('v_mul_u32_u24 v%d, %d, v%d' % (F6, TSR, TM))

    def desc_scan():
        for k in range(4):
            a('v_lshrrev_b32 v%d, 16, v%d' % (VE + k, VD + k))
            a('v_and_b32 v%d, 0xffff, v%d' % (VD + k, VD + k))
        for c, rm in (('row_shr:1', 15), ('row_shr:2', 15), ('row_shr:4', 15), ('row_shr:8', 15), ('row_bcast:15', 10), ('row_bcast:31', 12)):
            for k in range(4):
                a('v_add_u32_dpp v%d, v%d, v%d %s row_mask:0x%x bank_mask:0xf' % (VE + k, VE + k, VE + k, c, rm))
        for k in range(4):
            if k:
                a('v_add_u32 v%d, s%d, v%d' % (VE + k, sNT, VE + k))
            a('v_add_u32 v%d, v%d, v%d' % (VD + k, VD + k, F6))
            a('v_readlane_b32 s%d, v%d, 63' % (sNT, VE + k))
            a('v_sub_u32 v%d, v%d, v%d' % (VD + k, VD + k, VE + k))
            a('v_mul_lo_u32 v%d, v%d, 6' % (VD + k, VD + k))
        a('v_mul_u32_u24 v%d, 6, v%d' % (F6, LANE))
        a('s_mov_b32 s%d, 0' % sF)
        a('s_mov_b32 s%d, 0' % sE)
        a('s_mov_b32 s%d, 0' % sDL)
        a('s_movk_i32 s%d, -64' % sI)
        a('s_mov_b32 s%d, s%d' % (sREM, sNT))

    rots = []

    def fill():
        n = lab[0]
        lab[0] += 1
        if P['abl'] & 2:
            a('v_add_u32 v%d, s%d, v%d' % (ADDR, sDL, F6))
            a('v_add_u32 v%d, 384, v%d' % (F6, F6))
            return
        a('v_add_u32 v%d, s%d, v%d' % (ADDR, sDL, F6))
        a('s_sub_u32 s%d, s%d, s%d' % (sP, sE, sF))
        a('s_cmp_ge_u32 s%d, 64' % sP)
        a('s_cbranch_scc1 Lfd%d' % n)
        a('Lfl%d:' % n)
        a('v_readlane_b32 s%d, v%d, s%d' % (sDL, VD, sI))
        a('v_readlane_b32 s%d, v%d, s%d' % (sE, VE, sI))
        a('s_lshl_b64 exec, -1, s%d' % sP)
        a('s_add_u32 s%d, s%d, 1' % (sI, sI))
        a('s_cbranch_scc1 Lfr%d' % n)
        a('Lfc%d:' % n)
        a('v_add_u32 v%d, s%d, v%d' % (ADDR, sDL, F6))
        a('s_sub_u32 s%d, s%d, s%d' % (sP, sE, sF))
        a('s_cmp_lt_u32 s%d, 64' % sP)
        a('s_cbranch_scc1 Lfl%d' % n)
        a('s_mov_b64 exec, -1')
        a('Lfd%d:' % n)
        a('s_add_u32 s%d, s%d, 64' % (sF, sF))
        a('v_add_u32 v%d, 384, v%d' % (F6, F6))
        rots.append(n)

    def rot_blocks():
        for n in rots:
            a('Lfr%d:' % n)
            a('s_mov_b64 exec, -1')
            for k in range(3):
                a('v_mov_b32 v%d, v%d' % (VE + k, VE + k + 1))
                a('v_mov_b32 v%d, v%d' % (VD + k, VD + k + 1))
            a('v_mov_b32 v%d, -1' % (VE + 3))
            a('v_bfrev_b32 v%d, 1' % (VD + 3))
            a('s_movk_i32 s%d, -64' % sI)
            a('s_lshl_b64 exec, -1, s%d' % sP)
            a('s_branch Lfc%d' % n)
            a.fence()

    def rec_load(q=0):
        REC = RECS[q]
        if P['recm']:
            a('v_and_b32 v%d, 0x%x, v%d' % (ADDR, P['recm'], ADDR))
        a('buffer_load_dwordx2 %s, v%d, %s, 0 offen %s' % (vr(REC, 2), ADDR, sr(S_REC, 4), P['ldrec']))

    def decode(q):
        REC = RECS[q]
        if P['l2x']:
            a('v_and_b32 v%d, s%d, v%d' % (IA, sIDM, REC + 1))
            a('v_and_b32_sdwa v%d, s%d, v%d dst_sel:DWORD dst_unused:UNUSED_PAD src0_sel:DWORD src1_sel:WORD_1' % (A16[q], sA16, REC + 1))
            a('v_and_b32 v%d, s%d, v%d' % (ANG[q], sHI, REC))
            return
        a('v_and_b32 v%d, s%d, v%d' % (IA, sIDM, REC + 1))
        a('v_and_b32 v%d, s%d, v%d' % (IB, sIDM, REC + 1))
        a('v_and_b32_sdwa v%d, s%d, v%d dst_sel:DWORD dst_unused:UNUSED_PAD src0_sel:DWORD src1_sel:WORD_1' % (A16[q], sA16, REC + 1))
        a('v_and_b32 v%d, s%d, v%d' % (ANG[q], sHI, REC))
        a('v_permlane32_swap_b32 v%d, v%d' % (IA, IB))

    def gathers(q):
        if P['l2x']:
            a('buffer_load_dwordx4 %s, v%d, %s, 0 idxen %s' % (vr(GB[q], 4), IA, sr(S_M, 4), P['ldg']))
            a('buffer_load_dwordx4 %s, v%d, %s, 0 idxen offset:16 %s' % (vr(GB[q] + 4, 4), IA, sr(S_M, 4), P['ldg']))
            return
        if P['goff']:
            a('v_lshl_or_b32 v%d, v%d, 5, v%d' % (IA, IA, IA + 1))
            a('v_lshl_or_b32 v%d, v%d, 5, v%d' % (IB, IB, IA + 1))
            a('buffer_load_dwordx4 %s, v%d, %s, 0 offen %s' % (vr(GB[q], 4), IA, sr(S_M, 4), P['ldg']))
            a('buffer_load_dwordx4 %s, v%d, %s, 0 offen %s' % (vr(GB[q] + 4, 4), IB, sr(S_M, 4), P['ldg']))
            return
        a('buffer_load_dwordx4 %s, %s, %s, 0 idxen offen' % (vr(GB[q], 4), vr(IA, 2), sr(S_M, 4)))
        a('buffer_load_dwordx4 %s, %s, %s, 0 idxen offen' % (vr(GB[q] + 4, 4), vr(IB, 2), sr(S_M, 4)))

    def cosines(p):
        if P['abl'] & 32:
            return
        c1, c3, c2 = TM, TM + 1, TM + 2
        a('v_mul_f32 v%d, 0x40400000, v%d' % (c3, ANG[p]))
        a('v_mul_f32 v%d, 0.15915494, v%d' % (c1, ANG[p]))
        a('v_cvt_pk_bf16_f32 v%d, 0, v%d' % (c3, c3))
        a('v_fract_f32 v%d, v%d' % (c1, c1))
        a('v_mul_f32 v%d, 0.15915494, v%d' % (c3, c3))
        a('v_cos_f32 v%d, v%d' % (c1, c1))
        a('v_fract_f32 v%d, v%d' % (c3, c3))
        a('v_add_f32 v%d, v%d, v%d' % (c2, c1, c1))
        a('v_cos_f32 v%d, v%d' % (c3, c3))
        a('v_fma_f32 v%d, v%d, v%d, -1.0' % (c2, c2, c1))
        a('v_cvt_pk_f16_f32 v%d, v%d, v%d' % (c1, c1, c2))
        a('v_cvt_f16_f32 v%d, v%d' % (c3, c3))

    def gate():
        if P['abl'] & 32:
            return
        c1, c3 = TM, TM + 1
        for l in range(3):
            src, sel = ((c1, 0), (c1, 1), (c3, 0))[l]
            for j in range(4):
                a('v_pk_mul_f16 v%d, v%d, v%d op_sel:[0,%d] op_sel_hi:[1,%d]' % (SBF + 4 * l + j, RBF + j, src, sel, sel))
            if l and not P['abl'] & 8:
                a('v_mfma_f32_32x32x16_f16 %s, %s, %s, %s' % (vr(GATE, 16), vr(AG + 4 * (l - 1), 4), vr(SBF + 4 * (l - 1), 4), '0' if l == 1 else vr(GATE, 16)))

    def gate_last():
        if P['abl'] & 8:
            return
        a('v_mfma_f32_32x32x16_f16 %s, %s, %s, %s' % (vr(GATE, 16), vr(AG + 8, 4), vr(SBF + 8, 4), vr(GATE, 16)))

    def mdown(p):
        if P['abl'] & 16:
            return
        a('v_mfma_f32_32x32x16_bf16 %s, %s, %s, 0' % (vr(MD, 16), vr(AM, 4), vr(GB[p], 4)))
        a('v_mfma_f32_32x32x16_bf16 %s, %s, %s, %s' % (vr(MD, 16), vr(AM + 4, 4), vr(GB[p] + 4, 4), vr(MD, 16)))

    def validmask(dst):
        a('s_max_i32 s%d, s%d, 0' % (sT, sREM))
        a('s_bfm_b64 %s, s%d, 0' % (sr(sMK, 2), sT))
        a('s_cmp_ge_i32 s%d, 64' % sREM)
        a('s_cselect_b64 %s, -1, %s' % (dst, sr(sMK, 2)))
        a('s_sub_i32 s%d, s%d, 64' % (sREM, sREM))

    def addrs(p):
        a('v_lshrrev_b32 v%d, 2, v%d' % (A4, A16[p]))
        a('v_add_u32 v%d, %d, v%d' % (A4B, HI0, A4))

    def step(p):
        q = 1 - p
        a('ds_read_b128 %s, v%d offset:%d' % (vr(RBF, 4), A16[p], RBF0))
        a('s_waitcnt vmcnt(%d)' % (3 if P['rd2'] else 2))
        decode(q)
        rec_load(q)
        gathers(q)
        if P['bar'] >= 10:
            n = lab[0]
            lab[0] += 1
            a('s_sub_u32 s%d, s%d, 1' % (sI2P, sI2P))
            a('s_cbranch_scc0 Lnb%d' % n)
            a('s_movk_i32 s%d, %d' % (sI2P, P['bar'] - 11))
            a('s_barrier')
            a('Lnb%d:' % n)
        cosines(p)
        a('s_waitcnt lgkmcnt(0)')
        a('v_or_b32 v%d, v%d, v%d' % (STK, STK, RTN))
        gate()
        addrs(p)
        gate_last()
        fill()
        a('s_waitcnt vmcnt(3)')
        mdown(p)
        validmask(sr(sMK, 2))
        if P['abl'] & 4:
            return
        for d in range(16):
            a('v_mul_f32 v%d, v%d, v%d' % (MD + d, MD + d, GATE + d))
        a('v_maximum3_f32 v%d, |v%d|, |v%d|, |v%d|' % (CV, MD, MD + 1, MD + 2))
        a('v_maximum3_f32 v%d, |v%d|, |v%d|, |v%d|' % (TM, MD + 3, MD + 4, MD + 5))
        for d in range(6, 14, 4):
            a('v_maximum3_f32 v%d, |v%d|, |v%d|, v%d' % (CV, MD + d, MD + d + 1, CV))
            a('v_maximum3_f32 v%d, |v%d|, |v%d|, v%d' % (TM, MD + d + 2, MD + d + 3, TM))
        a('v_maximum3_f32 v%d, |v%d|, |v%d|, v%d' % (CV, MD + 14, MD + 15, CV))
        a('s_mov_b64 exec, %s' % sr(sMK, 2))
        for j in range(8):
            a('v_add_f32 v%d, s%d, v%d' % (MD + 2 * j, sM0, MD + 2 * j))
            a('v_add_f32 v%d, s%d, v%d' % (MD + 2 * j + 1, sM1, MD + 2 * j + 1))
            if j == 0:
                a('v_maximum3_f32 v%d, v%d, v%d, v%d' % (CV, CV, TM, TM))
            if j == 1:
                a('v_add_f32 v%d, s%d, v%d' % (CV, sM0, CV))
            if j == 2:
                a('v_min_u32 v%d, s%d, v%d' % (CV, sCL, CV))
            if j == 3:
                a('v_add_u32 v%d, s%d, v%d' % (CV, sCA, CV))
            a('v_lshl_add_u32 v%d, v%d, 16, v%d' % (MD + 2 * j, MD + 2 * j + 1, MD + 2 * j))
            b, o = plane(j)
            if not P['abl'] & 1:
                a('ds_add_u32 v%d, v%d offset:%d' % (b, MD + 2 * j, o))
        if not P['abl'] & 1:
            a('ds_add_rtn_u32 v%d, v%d, v%d offset:%d' % (RTN, A4B, CV, 3 * PL))
        a('s_mov_b64 exec, -1')

    a('s_cmp_ge_u32 s2, 256')
    a('s_cbranch_scc1 Lk2_end')
    a('s_load_dwordx2 s[4:5], s[0:1], 0')
    a('s_load_dwordx2 s[6:7], s[0:1], 24')
    a('s_load_dwordx2 s[8:9], s[0:1], 40')
    a('s_load_dwordx2 s[10:11], s[0:1], 88')
    a('s_load_dwordx4 s[12:15], s[0:1], 96')
    a('v_lshrrev_b32 v2, 6, v0')
    a('v_and_b32 v%d, 63, v0' % LANE)
    a('v_readfirstlane_b32 s%d, v2' % sW)
    a('s_and_b32 s%d, s2, 7' % sBIN)
    a('s_lshl_b32 s%d, s%d, 5' % (sBIN, sBIN))
    a('s_lshr_b32 s%d, s2, 3' % sT)
    a('s_add_u32 s%d, s%d, s%d' % (sBIN, sBIN, sT))
    a('v_lshrrev_b32 v%d, 5, v%d' % (IA + 1, LANE))
    a('v_lshlrev_b32 v%d, 4, v%d' % (IA + 1, IA + 1))
    a('v_mov_b32 v%d, v%d' % (IB + 1, IA + 1))
    a('s_mov_b32 s%d, 0x%x' % (sM0, M0))
    a('s_mov_b32 s%d, 0x%x' % (sM1, M0 - 0x4B40))
    a('s_mov_b32 s%d, 0x%x' % (sCL, M0 + 32767))
    a('s_mov_b32 s%d, 0x%x' % (sCA, ((1 << 22) + 1 - M0) & 0xffffffff))
    a('s_mov_b32 s%d, 0x%x' % (sIDM, P['idm']))
    a('s_mov_b32 s%d, 0xffff0000' % sHI)
    a('s_mov_b32 s%d, 0xfff0' % sA16)
    a('s_movk_i32 s%d, %d' % (sI2P, max(0, P['bar'] - 12)))
    a('s_mul_i32 s%d, s%d, %d' % (sT, sBIN, BINE * 2))
    a('s_mul_i32 s%d, s%d, %d' % (sT2, sBIN, BINE * 32))
    a('v_cmp_gt_u32 %s, %d, v0' % (sr(sV3, 2), BINE - 3072))
    a('s_lshl_b32 s%d, s2, 4' % sSEL)
    a('s_or_b32 s%d, s%d, s%d' % (sSEL, sSEL, sW))
    a('s_waitcnt lgkmcnt(0)')
    a('s_load_dwordx4 s[96:99], s[8:9], 0')
    srd(a, S_WS, 14, WS_BYTES)
    srd(a, S_DIST, 6, BINE * 2, 's%d' % sT)
    if P['goff']:
        srd(a, S_M, 4, E * 32)
    else:
        srd(a, S_M, 4, E, None, 32)
    srd(a, S_REC, 14, 512 * TS + 8, str(REC0 - (2 if (P["recm"] & 3 or not P["recm"]) else 0)))
    srd(a, S_MO, 4, BINE * 32, 's%d' % sT2)
    srd(a, S_OUT, 10, BINE * 32, 's%d' % sT2)
    G['stamp_init'](a, S_DBG, 14, 1, sW)
    desc_load()
    a('v_lshlrev_b32 v2, 1, v0')
    for q in range(4):
        a('s_movk_i32 s%d, %d' % (sT, q * 2048))
        a('buffer_load_ushort v%d, v2, %s, s%d offen' % (GATE + q, sr(S_DIST, 4), sT))

    def img_load(first, n, dst):
        a('v_lshlrev_b32 v2, 4, v%d' % LANE)
        for i in range(n):
            a('s_mov_b32 s%d, %d' % (sT, PREP0 + 1024 * (first + i)))
            a('buffer_load_dwordx4 %s, v2, %s, s%d offen' % (vr(dst + 4 * i, 4), sr(S_WS, 4), sT))

    img_load(0, 5, AG)
    for i in range(4):
        a('v_mov_b32 v%d, 0' % (MD + i))
    a('v_mov_b32 v%d, 0' % STK)
    a('v_mov_b32 v%d, 0' % RTN)
    a('v_lshlrev_b32 v2, 4, v0')
    a('v_add_u32 v3, %d, v2' % HI0)
    a('s_waitcnt lgkmcnt(0)')
    for r in range(4):
        a('s_lshl_b32 s%d, s%d, 16' % (sCEN + 2 * r, 96 + r))
        a('s_and_b32 s%d, s%d, 0xffff0000' % (sCEN + 2 * r + 1, 96 + r))
    stamp(a, 0, S_DBG, 96, 126)
    for o in (0, 16384, 32768, RBF0 - 16384):
        a('ds_write_b128 v2, %s offset:%d' % (vr(MD, 4), o))
    for o in (0, 16384, 32768, 4 * PL - 16384):
        a('ds_write_b128 v3, %s offset:%d' % (vr(MD, 4), o))
    a('s_waitcnt vmcnt(9)')
    desc_scan()
    fill()
    rec_load(0)
    fill()
    if P['rd2']:
        rec_load(1)
        fill()
    a('s_add_u32 s%d, s%d, 63' % (sT, sNT))
    a('s_lshr_b32 s%d, s%d, 6' % (sT, sT))
    a('v_mov_b32 v%d, s%d' % (TM, sT))
    a('s_lshl_b32 s%d, s%d, 2' % (sT, sW))
    a('s_add_u32 s%d, s%d, %d' % (sT, sT, SCR))
    a('v_mov_b32 v%d, s%d' % (TM + 1, sT))
    a('ds_write_b32 v%d, v%d' % (TM + 1, TM))
    a('s_mov_b32 s%d, 0x%x' % (sT2, f2u(-10.0 * math.log2(math.e))))

    def rbf_batch(q):
        a('v_lshlrev_b32 v%d, 16, v%d' % (GATE + q, GATE + q))
        for r in range(8):
            a('v_subrev_f32 v%d, s%d, v%d' % (MD + r, sCEN + r, GATE + q))
        for r in range(8):
            a('v_mul_f32 v%d, v%d, v%d' % (MD + r, MD + r, MD + r))
        for r in range(8):
            a('v_mul_f32 v%d, s%d, v%d' % (MD + r, sT2, MD + r))
        for r in range(8):
            a('v_exp_f32 v%d, v%d' % (MD + r, MD + r))
        for r in range(4):
            a('v_cvt_pk_f16_f32 v%d, v%d, v%d' % (MD + 8 + r, MD + 2 * r, MD + 2 * r + 1))
        a('ds_write_b128 v2, %s offset:%d' % (vr(MD + 8, 4), RBF0))
        if q < 3:
            a('v_add_u32 v2, 16384, v2')

    a('s_waitcnt vmcnt(%d)' % (6 + P['rd2']))
    rbf_batch(0)
    a('s_waitcnt vmcnt(%d)' % P['rd2'])
    decode(0)
    rec_load()
    gathers(0)
    fill()
    rbf_batch(1)
    rbf_batch(2)
    a('s_mov_b64 exec, %s' % sr(sV3, 2))
    a('s_cbranch_execz Lk2_r3')
    rbf_batch(3)
    a('Lk2_r3:')
    a('s_mov_b64 exec, -1')
    a('v_and_b32 v2, 15, v0')
    a('v_lshlrev_b32 v2, 2, v2')
    a('v_add_u32 v2, %d, v2' % SCR)
    a('s_waitcnt lgkmcnt(0)')
    a('s_barrier')
    a('ds_read_b32 v3, v2')
    a('s_waitcnt lgkmcnt(0)')
    for c in ('row_shr:1', 'row_shr:2', 'row_shr:4', 'row_shr:8'):
        a('v_max_u32_dpp v3, v3, v3 %s row_mask:0xf bank_mask:0xf' % c)
    a('v_readlane_b32 s%d, v3, 15' % sIT)
    stamp(a, 1, S_DBG, 96, 126)
    a('s_cmp_eq_u32 s%d, 0' % sIT)
    a('s_cbranch_scc1 Lk2_done')
    a.raw('.p2align 6')
    a('Lk2_loop:')
    step(0)
    if P['bar'] == 1:
        a('s_barrier')
    a('s_cmp_eq_u32 s%d, 1' % sIT)
    a('s_cbranch_scc1 Lk2_done')
    step(1)
    if P['bar'] in (1, 2):
        a('s_barrier')
    a('s_sub_u32 s%d, s%d, 2' % (sIT, sIT))
    a('s_cmp_lg_u32 s%d, 0' % sIT)
    a('s_cbranch_scc1 Lk2_loop')
    a('Lk2_done:')
    stamp(a, 2, S_DBG, 96, 126)
    a('s_mov_b32 s%d, 0' % sPASS)
    for i in range(4):
        a('s_mov_b64 %s, 0' % sr(sFL + 2 * i, 2))
        a('s_mov_b64 %s, 0' % sr(sSK + 2 * i, 2))
    a('Lk2_epi:')
    AU, AR = 4, 12
    MQ = 56
    W, RB, CN, OA, R16 = 96, 104, 108, 88, 89
    img_load(5, 3, AU)
    a('v_and_b32 v2, 31, v0')
    a('v_and_b32 v3, 0x3c0, v0')
    a('v_or_b32 v2, v2, v3')
    a('v_lshl_add_u32 v%d, v2, 5, v%d' % (ADDR, IA + 1))
    for q in range(4):
        a('s_mov_b32 s%d, %d' % (sT, q * 32768))
        a('buffer_load_dwordx4 %s, v%d, %s, s%d offen' % (vr(MQ + 8 * q, 4), ADDR, sr(S_MO, 4), sT))
        a('buffer_load_dwordx4 %s, v%d, %s, s%d offen offset:1024' % (vr(MQ + 8 * q + 4, 4), ADDR, sr(S_MO, 4), sT))
    a('v_mov_b32 v%d, v%d' % (TM + 7, ADDR))
    OA = TM + 7
    a('v_lshlrev_b32 v%d, 2, v0' % A4)
    a('v_add_u32 v%d, %d, v%d' % (A4B, HI0, A4))
    a('v_lshlrev_b32 v%d, 4, v0' % CV)
    R16 = CV
    a('s_waitcnt lgkmcnt(0)')
    a('v_or_b32 v%d, v%d, v%d' % (STK, STK, RTN))
    a('s_barrier')

    def epi_batch(q):
        if q == 3:
            for i in range(4):
                a('v_mov_b32 v%d, 0' % (RB + i))
            for i in range(8):
                a('v_mov_b32 v%d, 0' % (W + i))
            a('v_mov_b32 v%d, 0' % CN)
            a('s_mov_b64 exec, %s' % sr(sV3, 2))
        for j in range(8):
            b, o = plane(j)
            a('ds_read_b32 v%d, v%d offset:%d' % (W + j, b, o + 4096 * q))
        a('ds_read_b32 v%d, v%d offset:%d' % (CN, A4B, 3 * PL + 4096 * q))
        a('ds_read_b128 %s, v%d offset:%d' % (vr(RB, 4), R16, RBF0))
        a('s_andn2_b64 exec, -1, %s' % sr(sSK + 2 * q, 2))
        for j in range(8):
            a('s_waitcnt lgkmcnt(%d)' % (9 - j))
            a('v_add_u32 v%d, 0x8000, v%d' % (CN + 1, W + j))
            a('v_cvt_f32_i32_sdwa v%d, sext(v%d) dst_sel:DWORD dst_unused:UNUSED_PAD src0_sel:WORD_0' % (W + j, W + j))
            a('v_cvt_f32_i32_sdwa v%d, sext(v%d) dst_sel:DWORD dst_unused:UNUSED_PAD src0_sel:WORD_1' % (CN + 1, CN + 1))
            a('v_cvt_pk_bf16_f32 v%d, v%d, v%d' % (W + j, W + j, CN + 1))
        a('s_mov_b64 exec, -1')
        a('s_waitcnt lgkmcnt(0)')
        if q == 0:
            a('s_waitcnt vmcnt(8)')
        a('v_mfma_f32_32x32x16_f16 %s, %s, %s, 0' % (vr(GATE, 16), vr(AR, 4), vr(RB, 4)))
        a('v_mfma_f32_32x32x16_bf16 %s, %s, %s, 0' % (vr(MD, 16), vr(AU, 4), vr(W, 4)))
        a('v_mfma_f32_32x32x16_bf16 %s, %s, %s, %s' % (vr(MD, 16), vr(AU + 4, 4), vr(W + 4, 4), vr(MD, 16)))
        if q < 3:
            a('v_add_u32 v%d, 16384, v%d' % (R16, R16))
        a('v_lshrrev_b32 v%d, 22, v%d' % (CN + 1, CN))
        a('v_and_b32 v%d, 0x3fffff, v%d' % (CN, CN))
        a('v_mul_u32_u24 v%d, %d, v%d' % (CN + 2, P['theta'], CN + 1))
        a('v_cmp_lt_u32 vcc, 127, v%d' % (CN + 1))
        a('s_or_b64 %s, %s, vcc' % (sr(sFL + 2 * q, 2), sr(sFL + 2 * q, 2)))
        a('v_cmp_lt_u32 vcc, 0x7fff, v%d' % CN)
        a('s_or_b64 %s, %s, vcc' % (sr(sFL + 2 * q, 2), sr(sFL + 2 * q, 2)))
        a('v_cmp_lt_u32 vcc, v%d, v%d' % (CN, CN + 2))
        a('s_or_b64 %s, %s, vcc' % (sr(sFL + 2 * q, 2), sr(sFL + 2 * q, 2)))
        a('s_waitcnt vmcnt(6)')
        a('s_mov_b32 s%d, %d' % (sT, q * 32768))
        for j in range(8):
            m = MQ + 8 * q + j
            a('v_lshlrev_b32 v%d, 16, v%d' % (CN + 1, m))
            a('v_and_b32 v%d, s%d, v%d' % (CN + 2, sHI, m))
            a('v_fmac_f32 v%d, v%d, v%d' % (CN + 1, MD + 2 * j, GATE + 2 * j))
            a('v_fmac_f32 v%d, v%d, v%d' % (CN + 2, MD + 2 * j + 1, GATE + 2 * j + 1))
            a('v_cvt_pk_bf16_f32 v%d, v%d, v%d' % (m, CN + 1, CN + 2))
            if j == 3:
                a('buffer_store_dwordx4 %s, v%d, %s, s%d offen %s' % (vr(MQ + 8 * q, 4), OA, sr(S_OUT, 4), sT, P['stout']))
        a('buffer_store_dwordx4 %s, v%d, %s, s%d offen offset:1024 %s' % (vr(MQ + 8 * q + 4, 4), OA, sr(S_OUT, 4), sT, P['stout']))

    for q in range(3):
        epi_batch(q)
    a('s_cmp_lg_u32 s%d, 0' % sW)
    a('s_cbranch_scc1 Lk2_e3')
    epi_batch(3)
    a('Lk2_e3:')
    stamp(a, 3, S_DBG, 96, 126)
    if P['stamp']:
        a('s_waitcnt vmcnt(0)')
        stamp(a, 4, S_DBG, 96, 126)
    a('s_cmp_lg_u32 s%d, 0' % sPASS)
    a('s_cbranch_scc1 Lk2_end')
    a('s_or_b64 %s, %s, %s' % (sr(sMK, 2), sr(sFL, 2), sr(sFL + 2, 2)))
    a('s_or_b64 %s, %s, %s' % (sr(sMK, 2), sr(sMK, 2), sr(sFL + 4, 2)))
    a('s_or_b64 %s, %s, %s' % (sr(sMK, 2), sr(sMK, 2), sr(sFL + 6, 2)))
    a('s_cselect_b32 s%d, 1, %d' % (sT, P['force_slow']))
    a('v_cmp_gt_i32 vcc, 0, v%d' % STK)
    a('s_cmp_lg_u64 vcc, 0')
    a('s_cselect_b32 s%d, 3, s%d' % (sT, sT))
    a('v_mov_b32 v2, s%d' % sT)
    a('s_lshl_b32 s%d, s%d, 2' % (sT, sW))
    a('s_add_u32 s%d, s%d, %d' % (sT, sT, SCR + 64))
    a('v_mov_b32 v3, s%d' % sT)
    a('ds_write_b32 v3, v2')
    a('v_and_b32 v2, 15, v0')
    a('v_lshlrev_b32 v2, 2, v2')
    a('v_add_u32 v2, %d, v2' % (SCR + 64))
    a('s_waitcnt lgkmcnt(0)')
    a('s_barrier')
    a('ds_read_b32 v3, v2')
    a('s_waitcnt lgkmcnt(0)')
    a('v_cmp_ne_u32 vcc, 0, v3')
    a('s_cmp_eq_u64 vcc, 0')
    a('s_cbranch_scc1 Lk2_end')
    a('v_cmp_lt_u32 vcc, 1, v3')
    a('s_cmp_lg_u64 vcc, 0')
    for q in range(4):
        a('s_cselect_b64 %s, -1, %s' % (sr(sSK + 2 * q, 2), sr(sFL + 2 * q, 2)))
    a('s_and_b64 %s, %s, %s' % (sr(sSK + 6, 2), sr(sSK + 6, 2), sr(sV3, 2)))
    a('s_waitcnt vmcnt(0)')
    img_load(0, 3, AG)
    desc_load()
    a('v_mov_b32 v2, 0')
    a('v_mov_b32 v3, -1')
    for q in range(4):
        if q == 3:
            a('s_mov_b64 exec, %s' % sr(sV3, 2))
        a('ds_write_b32 v%d, v2 offset:%d' % (A4B, 3 * PL + 4096 * q))
        a('s_mov_b64 exec, %s' % sr(sSK + 2 * q, 2))
        a('ds_write_b32 v%d, v3 offset:%d' % (A4B, 3 * PL + 4096 * q))
        for j in range(8):
            b, o = plane(j)
            a('ds_write_b32 v%d, v2 offset:%d' % (b, o + 4096 * q))
        a('s_mov_b64 exec, -1')
        a('s_waitcnt lgkmcnt(0)')
    a('s_barrier')
    a('s_waitcnt vmcnt(0)')
    desc_scan()
    a('Lk2_sl:')
    a('s_cmp_le_i32 s%d, 0' % sREM)
    a('s_cbranch_scc1 Lk2_sd')
    fill()
    rec_load()
    validmask(sr(sMK, 2))
    a('s_waitcnt vmcnt(0)')
    decode(0)
    addrs(0)
    a('ds_read_b32 v%d, v%d offset:%d' % (CV, A4B, 3 * PL))
    a('ds_read_b128 %s, v%d offset:%d' % (vr(RBF, 4), A16[0], RBF0))
    a('s_waitcnt lgkmcnt(0)')
    a('v_cmp_ne_u32 vcc, 0, v%d' % CV)
    a('s_and_b64 %s, %s, vcc' % (sr(sMK, 2), sr(sMK, 2)))
    a('s_cbranch_scc0 Lk2_sl')
    gathers(0)
    cosines(0)
    gate()
    gate_last()
    a('s_waitcnt vmcnt(0)')
    mdown(0)
    for d in range(16):
        a('v_mul_f32 v%d, v%d, v%d' % (MD + d, MD + d, GATE + d))
    a('s_mov_b64 exec, %s' % sr(sMK, 2))
    for j in range(8):
        a('v_cvt_pk_bf16_f32 v%d, v%d, v%d' % (MD + 2 * j, MD + 2 * j, MD + 2 * j + 1))
        b, o = plane(j)
        a('ds_pk_add_bf16 v%d, v%d offset:%d' % (b, MD + 2 * j, o))
    a('s_mov_b64 exec, -1')
    a('s_branch Lk2_sl')
    a.fence()
    a('Lk2_sd:')
    a('s_mov_b32 s%d, 1' % sPASS)
    a('s_branch Lk2_epi')
    a.fence()
    rot_blocks()
    a('Lk2_end:')
    a('s_endpgm')
    a.fence()
    return LDS
```

```python
import sys, math, struct
from asmlib import Asm

NAME = 'gather_scatter__molecular_angular_gemnet__graph'
E, T = 800000, 12800000
BINE = 3125
TS = 152832
TSR = TS // 6
REC0 = 128
DESC0 = 80000000
PREP0 = 0x5100000
WS_BYTES = 268435456

P = dict(ld1='nt', st1='', ldrec='', stout='', target=200.0, theta=64, bar=1, stamp=0, force_slow=0, abl=0, idm=0xfffff, goff=0, stw=0, k2x=0, rd2=1, l2x=0, recm=0, ldg='')
for a in sys.argv[2:]:
    k, v = a.split('=')
    P[k] = type(P[k])(v.replace('+',' ')) if not isinstance(P[k], int) else int(v, 0)


def f2u(x):
    return struct.unpack('<I', struct.pack('<f', x))[0]


def vr(a, n):
    return 'v[%d:%d]' % (a, a + n - 1)


def sr(a, n):
    return 's[%d:%d]' % (a, a + n - 1)


def srd(a, d, ptr, nbytes, off=None, stride=0):
    if off is None:
        a('s_mov_b32 s%d, s%d' % (d, ptr))
        a('s_mov_b32 s%d, s%d' % (d + 1, ptr + 1))
    else:
        a('s_add_u32 s%d, s%d, %s' % (d, ptr, off))
        a('s_addc_u32 s%d, s%d, 0' % (d + 1, ptr + 1))
    if stride:
        a('s_or_b32 s%d, s%d, 0x%x' % (d + 1, d + 1, stride << 16))
    a('s_mov_b32 s%d, %d' % (d + 2, nbytes))
    a('s_mov_b32 s%d, 0x20000' % (d + 3))


def scan64(a, v, op='v_add_u32'):
    for c in ('row_shr:1', 'row_shr:2', 'row_shr:4', 'row_shr:8'):
        a('%s_dpp v%d, v%d, v%d %s row_mask:0xf bank_mask:0xf' % (op, v, v, v, c))
    a('%s_dpp v%d, v%d, v%d row_bcast:15 row_mask:0xa bank_mask:0xf' % (op, v, v, v))
    a('%s_dpp v%d, v%d, v%d row_bcast:31 row_mask:0xc bank_mask:0xf' % (op, v, v, v))


STAMP0 = 0x6000000


def stamp_init(a, sdbg, wsptr, kern, sw):
    if not P['stamp']:
        return
    a('s_lshl_b32 s100, s2, 7')
    a('s_add_u32 s100, s100, %d' % (STAMP0 + kern * 32768))
    srd(a, sdbg, wsptr, 128, 's100')
    stamp.sel = sw


def stamp(a, idx, sdbg, tmp_s, tmp_v):
    if not P['stamp']:
        return
    lab = 'Lst%d' % stamp.n
    stamp.n += 1
    a('s_cmp_lg_u32 s%d, %d' % (stamp.sel, P['stw']))
    a('s_cbranch_scc1 %s' % lab)
    a('s_memrealtime %s' % sr(tmp_s, 2))
    a('s_waitcnt lgkmcnt(0)')
    a('v_mov_b32 v%d, s%d' % (tmp_v, tmp_s))
    a('v_mov_b32 v%d, %d' % (tmp_v + 1, idx * 4))
    a('buffer_store_dword v%d, v%d, %s, 0 offen' % (tmp_v, tmp_v + 1, sr(sdbg, 4)))
    a('s_memtime %s' % sr(tmp_s, 2))
    a('s_waitcnt lgkmcnt(0)')
    a('v_mov_b32 v%d, s%d' % (tmp_v, tmp_s))
    a('buffer_store_dword v%d, v%d, %s, 0 offen offset:64' % (tmp_v, tmp_v + 1, sr(sdbg, 4)))
    a(lab + ':')


stamp.n = 0
stamp.sel = 0


def k1(a):
    DATA = 8192
    SCR = DATA + TS
    S_IN, S_OUT, S_ANG, S_REC, S_DSC, S_T0, S_DBG = 24, 28, 32, 36, 40, 44, 92
    sMB, sMC, sNEG, sHI, sT, sW = 64, 65, 66, 67, 68, 69
    sREM = 70
    sBASE = 72
    sPREP = 73
    TID, O16, O8, ONE, DA = 0, 1, 2, 3, 12
    TMP = 4
    ANG = 14
    INA, OUTA, INB, OUTB, INR, OUTR = 28, 52, 76, 100, 124, 125
    ld = P['ld1']
    st = P['st1']

    a('s_cmp_ge_u32 s2, 256')
    a('s_cbranch_scc1 Lk1_end')
    a('s_load_dwordx4 s[4:7], s[0:1], 8')
    a('s_load_dwordx2 s[8:9], s[0:1], 32')
    a('s_load_dwordx4 s[76:79], s[0:1], 96')
    a('s_load_dwordx2 s[12:13], s[0:1], 0')
    a('s_load_dwordx8 s[16:23], s[0:1], 56')
    a('v_lshlrev_b32 v%d, 4, v0' % O16)
    a('v_lshlrev_b32 v%d, 3, v0' % O8)
    a('v_mov_b32 v%d, 1' % ONE)
    a('v_lshrrev_b32 v4, 6, v0')
    a('v_readfirstlane_b32 s%d, v4' % sW)
    a('v_mov_b32 v4, 0')
    a('v_mov_b32 v5, 0')
    a('ds_write_b64 v%d, v[4:5]' % O8)
    a('s_mov_b32 s%d, %d' % (sMB, -(-2**32 // BINE)))
    a('s_mov_b32 s%d, %d' % (sMC, 2**32 // 100000))
    a('s_mov_b32 s%d, %d' % (sNEG, -BINE))
    a('s_mov_b32 s%d, 0xffff0000' % sHI)
    a('s_mul_i32 s14, s2, 200000')
    a('s_mul_i32 s15, s2, 100000')
    a('s_movk_i32 s%d, 848' % sT)
    a('v_cmp_gt_u32 %s, s%d, v0' % (sr(sREM, 2), sT))
    a('v_and_b32 v4, 1, v0')
    a('v_lshlrev_b32 v4, 12, v4')
    a('v_and_b32 v5, 2, v0')
    a('v_lshl_or_b32 v4, v5, 9, v4')
    a('v_and_b32 v5, 0x3fc, v0')
    a('v_or_b32 v%d, v4, v5' % DA)
    a('v_and_b32 v13, 63, v0')
    a('v_lshlrev_b32 v27, 4, v13')
    a('s_lshl_b32 s%d, s2, 4' % sPREP)
    a('s_or_b32 s%d, s%d, s%d' % (sPREP, sPREP, sW))
    a('s_waitcnt lgkmcnt(0)')
    srd(a, S_IN, 4, 200000, 's14')
    srd(a, S_OUT, 6, 200000, 's14')
    srd(a, S_ANG, 8, 100000, 's15')
    stamp_init(a, S_DBG, 78, 0, sW)
    stamp(a, 0, S_DBG, 96, 126)
    a('s_cmp_lg_u32 s%d, 15' % sPREP)
    a('s_cbranch_scc1 Lk1_main')
    srd(a, S_T0, 18, 768)
    srd(a, S_T0 + 4, 20, 512)
    srd(a, S_T0 + 8, 22, 512)
    srd(a, S_T0 + 12, 16, 256)
    srd(a, S_T0 + 16, 12, E * 32)
    for i in range(4):
        a('buffer_load_dwordx4 %s, v27, %s, 0 offen' % (vr(76 + 4 * i, 4), sr(S_T0 + 4 * i, 4)))
    a('v_mul_u32_u24 v4, 99984, v13')
    for i in range(4):
        a('s_mov_b32 s%d, %d' % (sT, i * 64 * 99984))
        a('buffer_load_dwordx4 %s, v4, %s, s%d offen' % (vr(92 + 4 * i, 4), sr(S_T0 + 16, 4), sT))
    a('Lk1_main:')

    def loads(j, rin, rout, rang):
        a('s_mov_b32 s%d, %d' % (sT, j * 16384))
        a('buffer_load_dwordx4 %s, v%d, %s, s%d offen %s' % (vr(rout, 4), O16, sr(S_OUT, 4), sT, ld))
        a('buffer_load_dwordx4 %s, v%d, %s, s%d offen %s' % (vr(rin, 4), O16, sr(S_IN, 4), sT, ld))
        a('s_mov_b32 s%d, %d' % (sT, j * 8192))
        a('buffer_load_dwordx2 %s, v%d, %s, s%d offen %s' % (vr(rang, 2), O8, sr(S_ANG, 4), sT, ld))

    def pack(items):
        n = len(items)
        for e, (ri, ro, rg, odd) in enumerate(items):
            a('v_mul_hi_u32_u24 v%d, s%d, v%d' % (TMP + e, sMB, ro))
            a('v_mul_hi_u32_u24 v%d, s%d, v%d' % (TMP + 4 + e, sMC, ri))
        for e, (ri, ro, rg, odd) in enumerate(items):
            a('v_mad_i32_i24 v%d, v%d, s%d, v%d' % (ro, TMP + e, sNEG, ro))
            a('v_lshl_add_u32 v%d, v%d, 8, v%d' % (TMP + e, TMP + 4 + e, TMP + e))
        for e, (ri, ro, rg, odd) in enumerate(items):
            a('v_lshlrev_b32 v%d, 2, v%d' % (TMP + e, TMP + e))
            a('v_lshl_or_b32 v%d, v%d, 20, v%d' % (ri, ro, ri))
            a('ds_add_u32 v%d, v%d' % (TMP + e, ONE))
        for e, (ri, ro, rg, odd) in enumerate(items):
            if odd:
                a('v_and_or_b32 v%d, v%d, s%d, v%d' % (ro, rg, sHI, TMP + e))
            else:
                a('v_lshl_or_b32 v%d, v%d, 16, v%d' % (ro, rg, TMP + e))

    def quad(rin, rout, rang):
        return [(rin + e, rout + e, rang + (e >> 1), e & 1) for e in range(4)]

    def scan():
        a('s_waitcnt lgkmcnt(0)')
        a('s_barrier')
        a('ds_read_b64 v[4:5], v%d' % O8)
        a('s_lshl_b32 s%d, s%d, 2' % (sT, sW))
        a('s_add_u32 s%d, s%d, %d' % (sT, sT, SCR))
        a('v_mov_b32 v8, s%d' % sT)
        a('v_and_b32 v9, 15, v0')
        a('s_waitcnt lgkmcnt(0)')
        a('v_add_u32 v6, v4, v5')
        a('v_mov_b32 v7, v6')
        scan64(a, 7)
        a('s_mov_b32 exec_lo, 0')
        a('s_mov_b32 exec_hi, 0x80000000')
        a('ds_write_b32 v8, v7')
        a('s_mov_b64 exec, -1')
        a('v_lshlrev_b32 v10, 2, v9')
        a('v_add_u32 v10, %d, v10' % SCR)
        a('v_mov_b32 v11, 0')
        a('v_cmp_gt_u32 vcc, s%d, v9' % sW)
        a('v_sub_u32 v7, v7, v6')
        a('s_waitcnt lgkmcnt(0)')
        a('s_barrier')
        a('s_mov_b64 exec, vcc')
        a('ds_read_b32 v11, v10')
        a('s_mov_b64 exec, -1')
        a('s_waitcnt lgkmcnt(0)')
        for c in ('row_shr:1', 'row_shr:2', 'row_shr:4', 'row_shr:8'):
            a('v_add_u32_dpp v11, v11, v11 %s row_mask:0xf bank_mask:0xf' % c)
        a('v_readlane_b32 s%d, v11, 15' % sBASE)
        a('v_add_u32 v7, s%d, v7' % sBASE)
        a('v_add_u32 v6, v7, v4')
        a('v_lshl_or_b32 v4, v4, 16, v7')
        a('v_lshl_or_b32 v5, v5, 16, v6')
        a('ds_write_b64 v%d, v[4:5]' % O8)
        a('s_waitcnt lgkmcnt(0)')
        a('s_barrier')

    def rtn(t, ro):
        a('v_and_b32 v%d, 0xffff, v%d' % (t, ro))
        a('ds_add_rtn_u32 v%d, v%d, v%d' % (t, t, ONE))

    def put(t, ri, ro):
        a('v_mul_u32_u24_sdwa v%d, 6, v%d dst_sel:DWORD dst_unused:UNUSED_PAD src0_sel:DWORD src1_sel:WORD_0' % (t, t))
        a('ds_write_b16_d16_hi v%d, v%d offset:%d' % (t, ro, DATA))
        a('ds_write_b16 v%d, v%d offset:%d' % (t, ri, DATA + 2))
        a('ds_write_b16_d16_hi v%d, v%d offset:%d' % (t, ri, DATA + 4))

    def scatter(rin, rout, rem):
        G = 3
        ng = 24 // G
        if rem:
            a('s_mov_b64 exec, %s' % sr(sREM, 2))
            rtn(TMP + 6, OUTR)
            a('s_mov_b64 exec, -1')
        for e in range(G):
            rtn(TMP + e, rout + e)
        for g in range(ng):
            cur, nxt = TMP + (g & 1) * G, TMP + ((g + 1) & 1) * G
            if g + 1 < ng:
                for e in range(G):
                    rtn(nxt + e, rout + (g + 1) * G + e)
            young = (G if g + 1 < ng else 0) + (3 * G if g > 0 else 0)
            a('s_waitcnt lgkmcnt(%d)' % young)
            for e in range(G):
                put(cur + e, rin + g * G + e, rout + g * G + e)
        if rem:
            a('s_mov_b64 exec, %s' % sr(sREM, 2))
            put(TMP + 6, INR, OUTR)
            a('s_mov_b64 exec, -1')

    def readout(sub, base, nround, zero):
        a('s_lshl_b32 s14, s2, 1')
        if sub:
            a('s_add_u32 s14, s14, 1')
        a('s_mul_i32 s15, s14, %d' % TS)
        a('s_add_u32 s15, s15, %d' % REC0)
        srd(a, S_REC, 78, TS, 's15')
        a('s_lshl_b32 s15, s14, 13')
        a('s_add_u32 s15, s15, %d' % DESC0)
        srd(a, S_DSC, 78, 8192, 's15')
        a('v_add_u32 v4, 0x10000, v%d' % O16)
        a('v_add_u32 v5, 0x20000, v%d' % O16)
        a('v_mov_b32 v6, 0')
        a('s_waitcnt lgkmcnt(0)')
        a('s_barrier')
        dsc = base + 4 * nround
        a('ds_read2st64_b32 %s, v%d offset0:0 offset1:8' % (vr(dsc, 2), DA))
        for j in range(nround):
            b = (O16, 4, 5)[j >> 2]
            a('ds_read_b128 %s, v%d offset:%d' % (vr(base + 4 * j, 4), b, DATA + (j & 3) * 16384))
        if zero:
            a('ds_write2st64_b32 v%d, v6, v6 offset0:0 offset1:8' % DA)
        for j in range(nround):
            a('s_mov_b32 s%d, %d' % (sT, j * 16384))
            a('s_waitcnt lgkmcnt(%d)' % (nround - 1 - j + zero))
            a('buffer_store_dwordx4 %s, v%d, %s, s%d offen %s' % (vr(base + 4 * j, 4), O16, sr(S_REC, 4), sT, st))
        a('buffer_store_dwordx2 %s, v%d, %s, 0 offen %s' % (vr(dsc, 2), O8, sr(S_DSC, 4), st))

    for j in range(6):
        loads(j, INA + 4 * j, OUTA + 4 * j, ANG + 2 * j)
    a('s_cmp_lg_u32 s%d, 15' % sPREP)
    a('s_cbranch_scc1 Lk1_noprep')
    prep(a, DATA, S_T0)
    a('Lk1_noprep:')
    a('s_barrier')
    for j in range(6):
        a('s_waitcnt vmcnt(15)')
        pack(quad(INA + 4 * j, OUTA + 4 * j, ANG + 2 * j))
        loads(6 + j, INB + 4 * j, OUTB + 4 * j, ANG + 2 * j)
    a('v_lshlrev_b32 v4, 2, v0')
    a('v_lshlrev_b32 v5, 1, v0')
    a('s_mov_b32 s%d, %d' % (sT, 12 * 16384))
    a('buffer_load_dword v%d, v4, %s, s%d offen %s' % (OUTR, sr(S_OUT, 4), sT, ld))
    a('buffer_load_dword v%d, v4, %s, s%d offen %s' % (INR, sr(S_IN, 4), sT, ld))
    a('s_mov_b32 s%d, %d' % (sT, 12 * 8192))
    a('buffer_load_ushort v%d, v5, %s, s%d offen %s' % (ANG + 12, sr(S_ANG, 4), sT, ld))
    stamp(a, 1, S_DBG, 96, 126)
    scan()
    stamp(a, 2, S_DBG, 96, 126)
    scatter(INA, OUTA, False)
    stamp(a, 3, S_DBG, 96, 126)
    readout(0, INA, 9, 1)
    a('s_waitcnt lgkmcnt(0)')
    a('s_barrier')
    stamp(a, 4, S_DBG, 96, 126)
    for j in range(6):
        a('s_waitcnt vmcnt(%d)' % (28 - 3 * j))
        pack(quad(INB + 4 * j, OUTB + 4 * j, ANG + 2 * j))
    a('s_waitcnt vmcnt(10)')
    a('s_mov_b64 exec, %s' % sr(sREM, 2))
    pack([(INR, OUTR, ANG + 12, 0)])
    a('s_mov_b64 exec, -1')
    stamp(a, 5, S_DBG, 96, 126)
    scan()
    stamp(a, 6, S_DBG, 96, 126)
    scatter(INB, OUTB, True)
    stamp(a, 7, S_DBG, 96, 126)
    readout(1, INB, 10, 0)
    stamp(a, 8, S_DBG, 96, 126)
    if P['stamp']:
        a('s_waitcnt vmcnt(0)')
        stamp(a, 9, S_DBG, 96, 126)
    a('Lk1_end:')
    a('s_endpgm')
    a.fence()
    return SCR + 64


def prep(a, PB, S_T0):
    L, O = 13, 27
    sS = 80
    sS = 48
    a('s_waitcnt vmcnt(18)')
    for i in range(4):
        a('ds_write_b128 v%d, %s offset:%d' % (O, vr(76 + 4 * i, 4), PB + 1024 * i))
    a('v_mov_b32 v4, 0')
    for i in range(16):
        a('v_dot2_f32_bf16 v4, v%d, v%d, v4' % (92 + i, 92 + i))
    scan64(a, 4, 'v_add_f32')
    a('v_readlane_b32 s14, v4, 63')
    a('v_bfe_u32 v5, v%d, 3, 2' % L)
    a('v_and_b32 v6, 3, v%d' % L)
    a('v_lshl_or_b32 v5, v5, 2, v6')
    a('v_lshlrev_b32 v5, 1, v5')
    a('v_bfe_u32 v7, v%d, 2, 1' % L)
    a('v_lshrrev_b32 v8, 5, v%d' % L)
    a('s_waitcnt lgkmcnt(0)')
    for k in range(24):
        a('ds_read_u16 v%d, v5 offset:%d' % (76 + k, PB + 32 * k))
        if k % 8 == 7:
            a('s_waitcnt lgkmcnt(0)')
    for k in range(16):
        a('ds_read_u16 v%d, v5 offset:%d' % (100 + k, PB + 1024 + 32 * k))
        if k % 8 == 7:
            a('s_waitcnt lgkmcnt(0)')
    a('v_lshl_add_u32 v9, v8, 8, v5')
    for k in range(8):
        a('ds_read_u16 v%d, v9 offset:%d' % (116 + k, PB + 1024 + 32 * k))
    a('s_waitcnt lgkmcnt(0)')
    for k in range(48):
        a('v_lshlrev_b32 v%d, 16, v%d' % (76 + k, 76 + k))
    a('v_mul_f32 v9, v76, v76')
    for k in range(1, 24):
        a('v_fmac_f32 v9, v%d, v%d' % (76 + k, 76 + k))
    a('v_mul_f32 v10, v100, v100')
    for k in range(1, 16):
        a('v_fmac_f32 v10, v%d, v%d' % (100 + k, 100 + k))
    a('v_log_f32 v9, v9')
    a('v_log_f32 v10, v10')
    a('v_log_f32 v11, s14')
    a('v_add_f32 v10, v10, v9')
    a('v_add_f32 v10, v10, v11')
    c0 = math.log2(P['target']) - 0.5 * math.log2(0.1625 / 2048)
    a('v_mov_b32 v11, 0x%x' % f2u(c0))
    a('v_fmac_f32 v11, -0.5, v10')
    a('v_floor_f32 v11, v11')
    a('v_mul_f32 v9, 0.5, v9')
    a('v_floor_f32 v9, v9')
    a('s_mov_b32 s14, 0x%x' % f2u(40.0))
    a('v_med3_f32 v11, v11, -s14, s14')
    a('v_med3_f32 v9, -v9, -s14, s14')
    a('v_cvt_i32_f32 v11, v11')
    a('v_cvt_i32_f32 v9, v9')
    a('v_sub_u32 v10, v11, v9')
    for j in range(16):
        a('v_readlane_b32 s%d, v11, %d' % (sS + j, ((j >> 2) << 3) | (j & 3)))
    srd(a, S_T0, 78, 8192, str(PREP0))
    a('v_xor_b32 v4, v7, v8')
    a('v_subrev_u32 v4, 1, v4')
    a('v_subrev_u32 v6, 1, v7')
    a('v_sub_u32 v7, 0, v7')
    for k in range(24):
        a('v_ldexp_f32 v%d, v%d, v9' % (76 + k, 76 + k))
    if P['l2x']:
        for k in range(16):
            a('v_ldexp_f32 v%d, v%d, v10' % (100 + k, 100 + k))
        for jj in range(8):
            a('v_cvt_pk_bf16_f32 v%d, v%d, v%d' % (116 + jj, 100 + 2 * jj, 101 + 2 * jj))
    else:
        for k in range(8):
            a('v_ldexp_f32 v%d, v%d, v10' % (116 + k, 116 + k))
    for l in range(3):
        for jj in range(4):
            a('v_cvt_pk_f16_f32 v%d, v%d, v%d' % (100 + 4 * l + jj, 76 + 6 * jj + l, 76 + 6 * jj + 3 + l))
            a('v_and_b32 v%d, v%d, v4' % (100 + 4 * l + jj, 100 + 4 * l + jj))
        a('buffer_store_dwordx4 %s, v%d, %s, 0 offen offset:%d' % (vr(100 + 4 * l, 4), O, sr(S_T0, 4), 1024 * l))
    if P['l2x']:
        for jj in range(4):
            a('v_and_b32 v%d, v%d, v4' % (112 + jj, 116 + jj))
            a('v_and_b32 v%d, v%d, v4' % (120 + jj, 120 + jj))
    else:
        for jj in range(4):
            a('v_cvt_pk_bf16_f32 v%d, v%d, v%d' % (116 + jj, 116 + 2 * jj, 117 + 2 * jj))
        for jj in range(4):
            a('v_and_b32 v%d, v%d, v6' % (112 + jj, 116 + jj))
            a('v_and_b32 v%d, v%d, v7' % (120 + jj, 116 + jj))
    a('v_add_u32 v11, 4096, v%d' % O)
    a('buffer_store_dwordx4 v[112:115], v%d, %s, 0 offen offset:3072' % (O, sr(S_T0, 4)))
    a('buffer_store_dwordx4 v[120:123], v11, %s, 0 offen' % sr(S_T0, 4))
    a('v_bfe_u32 v5, v%d, 2, 1' % L)
    a('v_bfe_u32 v6, v%d, 3, 1' % L)
    a('v_lshl_or_b32 v5, v5, 1, v6')
    a('v_and_b32 v6, 3, v%d' % L)
    a('v_lshl_or_b32 v5, v5, 2, v6')
    a('v_lshlrev_b32 v5, 1, v5')
    a('v_bfe_u32 v7, v%d, 4, 1' % L)
    a('v_xor_b32 v4, v7, v8')
    a('v_subrev_u32 v4, 1, v4')
    for k in range(16):
        a('ds_read_u16 v%d, v5 offset:%d' % (76 + k, PB + 2048 + 32 * k))
        if k % 8 == 7:
            a('s_waitcnt lgkmcnt(0)')
    for k in range(8):
        a('ds_read_u16 v%d, v5 offset:%d' % (92 + k, PB + 3072 + 32 * k))
    a('s_waitcnt lgkmcnt(0)')
    for k in range(24):
        a('v_lshlrev_b32 v%d, 16, v%d' % (76 + k, 76 + k))
    a('v_mul_f32 v9, v92, v92')
    for k in range(1, 8):
        a('v_fmac_f32 v9, v%d, v%d' % (92 + k, 92 + k))
    a('v_log_f32 v9, v9')
    a('v_mul_f32 v9, 0.5, v9')
    a('v_floor_f32 v9, v9')
    a('v_med3_f32 v9, v9, -s14, s14')
    a('v_cvt_i32_f32 v9, v9')
    a('v_sub_u32 v10, 0, v9')
    for k in range(8):
        a('v_ldexp_f32 v%d, v%d, v10' % (92 + k, 92 + k))
    for k in range(16):
        a('v_subrev_u32 v6, s%d, v9' % (sS + k))
        a('v_ldexp_f32 v%d, v%d, v6' % (76 + k, 76 + k))
    for jj in range(8):
        a('v_cvt_pk_bf16_f32 v%d, v%d, v%d' % (76 + jj, 76 + 2 * jj, 77 + 2 * jj))
        a('v_and_b32 v%d, v%d, v4' % (76 + jj, 76 + jj))
    for jj in range(4):
        a('v_cvt_pk_f16_f32 v%d, v%d, v%d' % (84 + jj, 92 + 2 * jj, 93 + 2 * jj))
        a('v_and_b32 v%d, v%d, v4' % (84 + jj, 84 + jj))
    for i in range(3):
        a('buffer_store_dwordx4 %s, v11, %s, 0 offen offset:%d' % (vr(76 + 4 * i, 4), sr(S_T0, 4), 1024 * (i + 1)))
    a('s_nop 1')


from gen_k2 import k2


def main():
    a = Asm()
    body = Asm()
    out = []
    kernels = []
    for nm, fn in (('bin_kernel', k1), ('acc_kernel', k2)):
        b = Asm()
        if fn is k2:
            lds = fn(b, P, globals())
        else:
            lds = fn(b)
        kernels.append((nm, b, lds))
    hdr = open('cdna_kernels/%s.s.ref' % NAME).read().split('\n')
    hdr = [l for l in hdr if l.startswith(';') and '@launch' not in l and 'Override launch' not in l and 'grid=ceil' not in l]
    out += hdr
    for nm, b, lds in kernels:
        out.append('; @launch kernel=%s grid=(256,1,1) block=(1024,1,1) lds=%d' % (nm, lds))
    if P['k2x']:
        out.append(out[-1])
    out.append('.amdgcn_target "amdgcn-amd-amdhsa--gfx950"')
    out.append('.text')
    for nm, b, lds in kernels:
        out.append('.globl %s\n.p2align 8\n.type %s,@function\n%s:' % (nm, nm, nm))
        out.append(b.text())
    out.append('.section .rodata,"a"')
    for nm, b, lds in kernels:
        out.append('''.p2align 6
.amdhsa_kernel %s
  .amdhsa_next_free_vgpr 128
  .amdhsa_next_free_sgpr 102
  .amdhsa_accum_offset 128
  .amdhsa_group_segment_fixed_size 0
  .amdhsa_kernarg_size 112
  .amdhsa_user_sgpr_count 2
  .amdhsa_user_sgpr_kernarg_segment_ptr 1
  .amdhsa_system_sgpr_workgroup_id_x 1
.end_amdhsa_kernel''' % nm)
    open(sys.argv[1], 'w').write('\n'.join(out) + '\n')


main()
```

```python
import re

REG = re.compile(r'(?<![\w.])([vsa])(?:(\d+)|\[(\d+):(\d+)\])(?![\w])')
TRANS = ('v_exp_', 'v_log_', 'v_rcp_', 'v_rsq_', 'v_sqrt_', 'v_sin_', 'v_cos_')


def regs_of(tok):
    out = set()
    for m in REG.finditer(tok):
        k = m.group(1)
        if m.group(2) is not None:
            out.add((k, int(m.group(2))))
        else:
            for i in range(int(m.group(3)), int(m.group(4)) + 1):
                out.add((k, i))
    if re.search(r'\bvcc(_lo|_hi)?\b', tok):
        out.add(('s', 'vcc'))
    return out


def split_ops(s):
    ops, depth, cur = [], 0, ''
    for ch in s:
        if ch in '[(':
            depth += 1
        if ch in '])':
            depth -= 1
        if ch == ',' and depth == 0:
            ops.append(cur.strip())
            cur = ''
        else:
            cur += ch
    if cur.strip():
        ops.append(cur.strip())
    return ops


class Ins:
    def __init__(self, text):
        self.text = text
        t = text.split(';')[0].strip()
        p = t.split(None, 1)
        self.op = p[0]
        ops = split_ops(p[1]) if len(p) > 1 else []
        self.ops = ops
        op = self.op
        self.valu = op.startswith('v_') and not op.startswith('v_mfma')
        self.mfma = op.startswith('v_mfma')
        self.vmem = op.startswith(('buffer_', 'global_'))
        self.ds = op.startswith('ds_')
        self.trans = op.startswith(TRANS)
        self.dpp = '_dpp' in op or 'row_' in t or 'quad_perm' in t
        self.perml = op.startswith('v_permlane')
        self.rdlane = op.startswith(('v_readlane', 'v_readfirstlane'))
        self.dot = op.startswith('v_dot')
        self.w, self.r = set(), set()
        self.srcc = set()
        self.lanesel = set()
        self.sdata = set()
        self.sdwa_dst = ('dst_sel:' in t and 'dst_sel:DWORD' not in t) or op.startswith(('v_fma_mixhi', 'v_fma_mixlo'))
        R = [regs_of(o) for o in ops]
        if self.valu or self.mfma:
            nd = 1
            if op.startswith(('v_add_co', 'v_sub_co', 'v_addc_co', 'v_subb_co', 'v_subrev_co', 'v_mad_u64_u32')):
                nd = 2
            if op == 'v_nop':
                nd = 0
            for x in R[:nd]:
                self.w |= x
            for x in R[nd:]:
                self.r |= x
            if self.perml:
                self.w |= R[1]
                self.r |= R[0]
            if self.dpp or op.startswith(('v_fmac', 'v_dot2c', 'v_writelane')) or self.sdwa_dst:
                self.r |= R[0]
            if self.mfma:
                self.srcc = R[3]
            if op.startswith(('v_readlane', 'v_writelane')):
                self.lanesel = R[2]
        elif self.vmem:
            if 'store' in op or ('atomic' in op and 'sc0' not in t):
                for x in R:
                    self.r |= x
                if op.endswith(('x3', 'x4')):
                    self.sdata = R[0] if op.startswith('buffer_') else R[1]
            else:
                self.w |= R[0]
                for x in R[1:]:
                    self.r |= x
        elif self.ds:
            if 'read' in op or 'rtn' in op or 'permute' in op or 'swizzle' in op:
                self.w |= R[0]
                for x in R[1:]:
                    self.r |= x
            else:
                for x in R:
                    self.r |= x
        self.cmpx = op.startswith('v_cmpx')
        self.passes = 0
        if self.mfma:
            self.passes = 8 if '32x32' in op else 4
        self.states = 1
        if op == 's_nop':
            self.states = int(ops[0], 0) + 1


def need(p, c):
    n = 0
    pv = {x for x in p.w if x[0] in 'va'}
    ps = {x for x in p.w if x[0] == 's'}
    if p.valu:
        if pv & c.r:
            if c.dpp or c.perml or c.mfma:
                n = max(n, 2)
            if c.rdlane:
                n = max(n, 1)
            if p.trans and c.valu and not c.trans:
                n = max(n, 1)
            if p.trans and (c.mfma or c.valu):
                n = max(n, 1)
            if p.sdwa_dst and (c.valu or c.mfma):
                n = max(n, 1)
        if p.sdwa_dst and c.valu and (pv & c.w):
            n = max(n, 1)
        if p.dot and (pv & (c.r | c.w)):
            same_c = c.op == p.op and len(c.ops) > 3 and (pv & regs_of(c.ops[3])) and not (pv & (regs_of(c.ops[1]) | regs_of(c.ops[2])))
            if not same_c:
                n = max(n, 3)
        if ps & c.r:
            if c.valu:
                n = max(n, 2)
            if c.vmem:
                n = max(n, 5)
        if ps & c.lanesel:
            n = max(n, 4)
    if p.mfma:
        full = {4: 8, 8: 12}[p.passes]
        if c.mfma:
            ab = regs_of(c.ops[1]) | regs_of(c.ops[2])
            if pv & ab:
                n = max(n, full)
            if pv & c.srcc and not (pv == c.srcc and c.passes == p.passes):
                n = max(n, {4: 6, 8: 10}[p.passes])
            if (pv & c.w) and not (pv & c.srcc):
                n = max(n, {4: 6, 8: 10}[p.passes])
        else:
            if pv & (c.r | c.w):
                n = max(n, full)
        if c.valu and (p.srcc & c.w):
            n = max(n, {4: 3, 8: 7}[p.passes])
    if p.cmpx:
        if c.dpp:
            n = max(n, 5)
        if c.rdlane or c.perml or c.mfma or c.op.startswith('v_writelane'):
            n = max(n, 4)
    if p.sdata and (p.sdata & c.w):
        n = max(n, 2)
    return n


class Asm:
    def __init__(self):
        self.lines = []
        self.hist = []
        self.nops = 0
        self.nds = 0
        self.nvm = 0
        self.nocount = False

    def mark(self):
        return (self.nds, self.nvm)

    def wait_ds(self, m):
        self('s_waitcnt lgkmcnt(%d)' % min(15, self.nds - m[0]))

    def wait_vm(self, m, extra=0):
        self('s_waitcnt vmcnt(%d)' % min(63, self.nvm - m[1] + extra))

    def raw(self, s):
        self.lines.append(s)

    def label(self, name):
        self.lines.append(name + ':')

    def fence(self):
        self.hist = []

    def __call__(self, text):
        for ln in text.strip().split('\n'):
            ln = ln.strip()
            if not ln or ln.startswith(';'):
                if ln:
                    self.lines.append('    ' + ln)
                continue
            if ln.endswith(':'):
                self.label(ln[:-1])
                continue
            c = Ins(ln)
            dist, pad = 0, 0
            for p in reversed(self.hist):
                pad = max(pad, need(p, c) - dist)
                dist += p.states
                if dist >= 20:
                    break
            while pad > 0:
                k = min(pad, 16)
                nop = Ins('s_nop %d' % (k - 1))
                self.lines.append('    s_nop %d' % (k - 1))
                self.hist.append(nop)
                self.nops += 1
                pad -= k
            self.lines.append('    ' + ln)
            self.nds += c.ds
            self.nvm += c.vmem and not self.nocount
            self.hist.append(c)
            if len(self.hist) > 40:
                self.hist = self.hist[-24:]

    def text(self):
        return '\n'.join(self.lines) + '\n'
```

```python
import math


def k2(a, P, G):
    vr, sr, srd, f2u = G['vr'], G['sr'], G['srd'], G['f2u']
    E, BINE, TS, TSP = G['E'], G['BINE'], G['TS'], G['TSP']
    REC0, DESC0, PREP0, WS_BYTES = G['REC0'], G['DESC0'], G['PREP0'], G['WS_BYTES']
    PL = BINE * 4
    RBF0 = 5 * PL + 12
    HI0 = RBF0 + BINE * 16
    SCR = HI0 + 4 * PL
    LDS = SCR + 128
    KC0, TB0, BB0, SC0, RING0 = 0, 6400, 15104, 19200, 19456
    NSL = 15
    NBLK = 51
    NQ = 7
    S_M, S_MR, S_WS, S_DIST, S_MO, S_OUT, S_DBG = 16, 20, 24, 28, 32, 36, 92
    sCEN = 40
    sW, sBIN, sT, sT2 = 48, 49, 50, 51
    sM0, sM1, sIDM, sHI, sA16 = 52, 53, 54, 55, 56
    sPASS, sMODE, sIX = 57, 58, 59
    sV6 = 60
    sMK = 62
    sFL, sSK = 64, 78
    sPc = 64
    sR, sTB, sRB, sRE, sPS = 69, 70, 71, 72, 73
    sLO = 74
    sMA = 76
    sLM = 84
    sEND = 88
    sF, sE, sDL, sI, sP, sNT, sSUB = 4, 5, 6, 7, 8, 9, 10
    LANE, S0 = 1, 2
    AG, AM, GATE, MD = 156, 168, 176, 192
    GB = (208, 216)
    SBF, RBF = 224, 232
    IA, IB = 236, 238
    A16, ANG = (240, 241), (242, 243)
    A4, A4B, CV = 244, 245, 246
    RTN = (247, 248)
    STK, CK, TM = 249, 250, 251
    RAW = 156
    RT, RA = 216, 232
    TA = (240, 242)
    TF = (244, 245)
    TH, VM, ONE, EIGHT, L12, RBA, WD, WA = 246, 248, 249, 250, 251, 252, 253, 254
    lab = [0]

    def stamp(i):
        G['stamp'](a, i, S_DBG, 96, 155, 255)

    def plane(j):
        return (A4, j * PL) if j < 5 else (A4B, (j - 5) * PL)

    def desc_load(dst, tb):
        a('v_lshlrev_b32 v%d, 12, v0' % tb)
        a('s_lshl_b32 s%d, s%d, 4' % (sT, sBIN))
        a('s_add_u32 s%d, s%d, %d' % (sT, sT, DESC0))
        a('buffer_load_dwordx4 %s, v%d, %s, s%d offen' % (vr(dst, 4), tb, sr(S_WS, 4), sT))

    def scan4(v):
        for c, rm in (('row_shr:1', 15), ('row_shr:2', 15), ('row_shr:4', 15), ('row_shr:8', 15), ('row_bcast:15', 10), ('row_bcast:31', 12)):
            for k in range(4):
                a('v_add_u32_dpp v%d, v%d, v%d %s row_mask:0x%x bank_mask:0xf' % (v + k, v + k, v + k, c, rm))

    def img_load(first, n, dst, t):
        a('v_lshlrev_b32 v%d, 4, v%d' % (t, LANE))
        for i in range(n):
            a('s_mov_b32 s%d, %d' % (sT, PREP0 + 1024 * (first + i)))
            a('buffer_load_dwordx4 %s, v%d, %s, s%d offen' % (vr(dst + 4 * i, 4), t, sr(S_WS, 4), sT))

    def gathers(q):
        a('buffer_load_dwordx4 %s, %s, %s, 0 idxen offen' % (vr(GB[q], 4), vr(IA, 2), sr(S_M, 4)))
        a('buffer_load_dwordx4 %s, %s, %s, 0 idxen offen' % (vr(GB[q] + 4, 4), vr(IB, 2), sr(S_M, 4)))

    def cosines(p):
        c1, c3, c2 = TM, TM + 1, TM + 2
        a('v_mul_f32 v%d, 0x40400000, v%d' % (c3, ANG[p]))
        a('v_mul_f32 v%d, 0.15915494, v%d' % (c1, ANG[p]))
        a('v_cvt_pk_bf16_f32 v%d, 0, v%d' % (c3, c3))
        a('v_fract_f32 v%d, v%d' % (c1, c1))
        a('v_mul_f32 v%d, 0.15915494, v%d' % (c3, c3))
        a('v_cos_f32 v%d, v%d' % (c1, c1))
        a('v_fract_f32 v%d, v%d' % (c3, c3))
        a('v_add_f32 v%d, v%d, v%d' % (c2, c1, c1))
        a('v_cos_f32 v%d, v%d' % (c3, c3))
        a('v_fma_f32 v%d, v%d, v%d, -1.0' % (c2, c2, c1))
        a('v_cvt_pk_f16_f32 v%d, v%d, v%d' % (c1, c1, c2))
        a('v_cvt_f16_f32 v%d, v%d' % (c3, c3))

    def sbf(l):
        src, sel = ((TM, 0), (TM, 1), (TM + 1, 0))[l]
        for j in range(4):
            a('v_pk_mul_f16 v%d, v%d, v%d op_sel:[0,%d] op_sel_hi:[1,%d]' % (SBF + 4 * (l & 1) + j, RBF + j, src, sel, sel))

    def gmf(l):
        a('v_mfma_f32_32x32x16_f16 %s, %s, %s, %s' % (vr(GATE, 16), vr(AG + 4 * l, 4), vr(SBF + 4 * (l & 1), 4), vr(GATE, 16) if l else '0'))

    def mdown(p):
        a('v_mfma_f32_32x32x16_bf16 %s, %s, %s, 0' % (vr(MD, 16), vr(AM, 4), vr(GB[p], 4)))
        a('v_mfma_f32_32x32x16_bf16 %s, %s, %s, %s' % (vr(MD, 16), vr(AM + 4, 4), vr(GB[p] + 4, 4), vr(MD, 16)))

    def addrs(p):
        a('v_lshrrev_b32 v%d, 2, v%d' % (A4, A16[p]))
        a('v_add_u32 v%d, %d, v%d' % (A4B, HI0, A4))

    def decode_rel(p, base):
        a('s_set_gpr_idx_on s%d, gpr_idx(SRC1)' % sIX)
        a('s_nop 0')
        a('v_and_b32 v%d, s%d, v%d' % (IA, sIDM, S0 + base + p))
        a('v_and_b32 v%d, s%d, v%d' % (IB, sIDM, S0 + base + p))
        if P['sdwa']:
            a('v_and_b32_sdwa v%d, s%d, v%d dst_sel:DWORD dst_unused:UNUSED_PAD src0_sel:DWORD src1_sel:WORD_1' % (A16[p], sA16, S0 + base + p))
        else:
            a('v_lshrrev_b32 v%d, 16, v%d' % (A16[p], S0 + base + p))
        if p:
            a('v_and_b32 v%d, s%d, v%d' % (ANG[p], sHI, S0 + base + 2))
        else:
            a('v_lshlrev_b32 v%d, 16, v%d' % (ANG[p], S0 + base + 2))
        a('s_set_gpr_idx_off')
        a('v_permlane32_swap_b32 v%d, v%d' % (IA, IB))
        if not P['sdwa']:
            a('v_and_b32 v%d, s%d, v%d' % (A16[p], sA16, A16[p]))

    def step(p):
        q = 1 - p
        ab = P['abl']
        vq = (lambda t: None) if ab & 4 else a
        vb = (lambda t: None) if ab & 68 else a
        va = (lambda t: None) if ab & 1 else a
        a('s_waitcnt vmcnt(2)')
        if not ab & 16:
            mdown(p)
        if not ab & 32:
            cosines(p)
        a('s_waitcnt lgkmcnt(%d)' % (0 if ab & 1 else 9))
        if not ab & 32:
            sbf(0)
        addrs(p)
        if not ab & 8:
            gmf(0)
        if not ab & 32:
            sbf(1)
        a('v_or_b32 v%d, v%d, v%d' % (STK, STK, RTN[p]))
        a('s_cmp_eq_u32 s%d, s%d' % (sIX, sEND))
        if not ab & 8:
            gmf(1)
        if not ab & 32:
            sbf(2)
        a('ds_read_b128 %s, v%d offset:%d' % (vr(RBF, 4), A16[q], RBF0))
        a('s_cselect_b64 %s, %s, -1' % (sr(sMK, 2), sr(sLM + 2 * p, 2)))
        if not ab & 8:
            gmf(2)
        decode_rel(p, 3)
        gathers(p)
        a('s_mov_b64 exec, %s' % sr(sMK, 2))
        for j in range(8):
            vq('v_fma_f32 v%d, v%d, v%d, s%d' % (MD + 2 * j, MD + 2 * j, GATE + 2 * j, sM0))
            vq('v_fma_f32 v%d, v%d, v%d, s%d' % (MD + 2 * j + 1, MD + 2 * j + 1, GATE + 2 * j + 1, sM0))
            if j:
                jj = j - 1
                vb('v_sad_u16 v%d, v%d, s%d, v%d' % (TM + (jj >> 1), MD + 2 * jj, sM1, TM + (jj >> 1) if jj & 1 else CK))
            vq('v_cvt_pknorm_u16_f32 v%d, v%d, v%d' % (MD + 2 * j, MD + 2 * j, MD + 2 * j + 1))
            b, o = plane(j)
            va('ds_add_u32 v%d, v%d offset:%d' % (b, MD + 2 * j, o))
        vb('v_max3_u32 v%d, v%d, v%d, v%d' % (CV, TM, TM + 1, TM + 2))
        vb('v_sad_u16 v%d, v%d, s%d, v%d' % (TM + 3, MD + 14, sM1, TM + 3))
        vb('v_max_u32 v%d, v%d, v%d' % (CV, CV, TM + 3))
        va('ds_add_rtn_u32 v%d, v%d, v%d offset:%d' % (RTN[p], A4B, CV, 3 * PL))
        a('s_mov_b64 exec, -1')

    a('s_cmp_ge_u32 s2, 256')
    a('s_cbranch_scc1 Lk2_end')
    a('s_load_dwordx2 s[4:5], s[0:1], 0')
    a('s_load_dwordx2 s[6:7], s[0:1], 24')
    a('s_load_dwordx2 s[8:9], s[0:1], 40')
    a('s_load_dwordx2 s[10:11], s[0:1], 88')
    a('s_load_dwordx4 s[12:15], s[0:1], 96')
    if P['cpf'] & 2:
        G['code_prefetch'](a, 'b', 88, 155)
    a('v_lshrrev_b32 v2, 6, v0')
    a('v_and_b32 v%d, 63, v0' % LANE)
    a('v_readfirstlane_b32 s%d, v2' % sW)
    a('s_and_b32 s%d, s2, 7' % sBIN)
    a('s_lshl_b32 s%d, s%d, 5' % (sBIN, sBIN))
    a('s_lshr_b32 s%d, s2, 3' % sT)
    a('s_add_u32 s%d, s%d, s%d' % (sBIN, sBIN, sT))
    a('s_mov_b32 s%d, 0x%x' % (sM0, f2u(32768.0 / 65535.0)))
    a('s_mov_b32 s%d, 0x80008000' % sM1)
    a('s_mov_b32 s%d, 0x%x' % (sIDM, P['idm']))
    a('s_mov_b32 s%d, 0xffff0000' % sHI)
    a('s_mov_b32 s%d, 0xfff0' % sA16)
    a('s_mov_b32 s%d, 0x07060302' % sPS)
    a('s_mov_b32 s%d, 0' % sMODE)
    a('v_cmp_gt_u32 %s, %d, v0' % (sr(sV6, 2), BINE - 3072))
    a('v_lshrrev_b32 v%d, 5, v%d' % (IA + 1, LANE))
    a('v_lshlrev_b32 v%d, 4, v%d' % (IA + 1, IA + 1))
    a('v_mov_b32 v%d, v%d' % (IB + 1, IA + 1))
    a('v_mov_b32 v%d, 0' % IA)
    a('v_mov_b32 v%d, 0' % IB)
    a('s_waitcnt lgkmcnt(0)')
    a('s_load_dwordx4 s[96:99], s[8:9], 0')
    srd(a, S_WS, 14, WS_BYTES)
    D, X, DL = RAW, RAW + 4, RAW + 8
    desc_load(D, RAW + 12)
    a('s_mul_i32 s%d, s%d, %d' % (sT, sBIN, BINE * 2))
    a('s_mul_i32 s%d, s%d, %d' % (sT2, sBIN, BINE * 32))
    srd(a, S_DIST, 6, BINE * 2, 's%d' % sT)
    srd(a, S_M, 4, E, None, 32)
    srd(a, S_MR, 4, E * 32)
    srd(a, S_MO, 4, BINE * 32, 's%d' % sT2)
    srd(a, S_OUT, 10, BINE * 32, 's%d' % sT2)
    G['stamp_init'](a, S_DBG, 14, 1, sW)
    a('s_waitcnt lgkmcnt(0)')
    for r in range(4):
        a('s_lshl_b32 s%d, s%d, 16' % (sCEN + 2 * r, 96 + r))
        a('s_and_b32 s%d, s%d, 0xffff0000' % (sCEN + 2 * r + 1, 96 + r))
    stamp(0)
    Z, T0 = RAW + 16, RAW + 24
    for i in range(4):
        a('v_mov_b32 v%d, 0' % (Z + i))
        a('v_bfrev_b32 v%d, 1' % (Z + 4 + i))
    a('v_lshlrev_b32 v%d, 4, v0' % T0)
    a('v_lshlrev_b32 v%d, 3, v0' % (T0 + 1))
    a('s_mul_i32 s%d, s%d, 1088' % (sTB, sW))
    a('v_lshl_add_u32 v%d, v%d, 4, s%d' % (T0 + 2, LANE, sTB))
    a('ds_write_b64 v%d, %s offset:%d' % (T0 + 1, vr(Z, 2), BB0))
    a('ds_write_b128 v%d, %s offset:%d' % (T0 + 2, vr(Z + 4, 4), TB0))
    a('ds_write_b128 v%d, %s offset:%d' % (T0 + 2, vr(Z + 4, 4), TB0 + 64))
    a('s_movk_i32 s%d, 400' % sT)
    a('v_cmpx_gt_u32 vcc, s%d, v0' % sT)
    a('ds_write_b128 v%d, %s offset:%d' % (T0, vr(Z, 4), KC0))
    a('s_mov_b64 exec, -1')
    a('v_mov_b32 v%d, 1' % ONE)
    a('v_mov_b32 v%d, 8' % EIGHT)
    a('v_mul_u32_u24 v%d, 12, v%d' % (L12, LANE))
    a('s_lshl_b32 s%d, s%d, 10' % (sT, sW))
    a('v_lshl_add_u32 v%d, v%d, 3, s%d' % (RBA, LANE, sT))
    a('s_lshl_b32 s%d, s2, 9' % sT)
    a('v_add_lshl_u32 v%d, v0, s%d, 7' % (WA, sT))
    a('s_movk_i32 s%d, %d' % (sT, REC0 // 12))
    a('v_mov_b32 v%d, %d' % (T0 + 3, TSP))
    a('v_mad_u32_u24 v%d, v0, v%d, s%d' % (T0 + 3, T0 + 3, sT))
    a('s_waitcnt vmcnt(0)')
    NP = RAW + 28
    for k in range(4):
        a('v_add_u32 v%d, 0x10000, v%d' % (NP + k, D + k))
        a('v_bfe_u32 v%d, v%d, 16, 1' % (X + k, D + k))
        a('v_lshrrev_b32 v%d, 17, v%d' % (NP + k, NP + k))
        a('v_and_b32 v%d, 0xffff, v%d' % (D + k, D + k))
        a('v_lshl_or_b32 v%d, v%d, 20, v%d' % (X + k, X + k, NP + k))
    scan4(X)
    TT = RAW + 32
    a('s_movk_i32 s%d, %d' % (sT2, NSL * 64))
    for k in range(4):
        a('v_lshrrev_b32 v%d, 20, v%d' % (TT + k, X + k))
        a('v_and_b32 v%d, 0xfffff, v%d' % (X + k, X + k))
        a('v_add_u32 v%d, v%d, v%d' % (DL + k, D + k, T0 + 3))
        a('v_sub_u32 v%d, v%d, v%d' % (TT + k, X + k, TT + k))
        a('v_sub_u32 v%d, v%d, v%d' % (DL + k, DL + k, X + k))
        a('v_add_u32 v%d, v%d, v%d' % (TT + k, TT + k, X + k))
        a('v_mul_u32_u24 v%d, 12, v%d' % (DL + k, DL + k))
        a('v_cmpx_lt_u32 vcc, s%d, v%d' % (sT2, X + k))
        a('v_mov_b32 v%d, 0x1000000' % (TT + k))
        a('s_mov_b64 exec, -1')
    a('s_lshl_b32 s%d, s%d, 4' % (sT, sW))
    a('v_mov_b32 v%d, s%d' % (T0, sT))
    a('s_mov_b32 exec_lo, 0')
    a('s_mov_b32 exec_hi, 0x80000000')
    a('ds_write_b128 v%d, %s offset:%d' % (T0, vr(TT, 4), SC0))
    a('s_mov_b64 exec, -1')
    a('s_lshl_b32 s%d, s%d, 9' % (sT, sW))
    for k in range(4):
        a('v_subrev_u32 v%d, 1, v%d' % (T0, X + k))
        a('v_lshlrev_b32 v%d, v%d, v%d' % (T0 + 1, T0, ONE))
        a('v_lshrrev_b32 v%d, 5, v%d' % (T0, T0))
        a('v_lshl_add_u32 v%d, v%d, 2, s%d' % (T0, T0, sT))
        a('v_cmpx_ge_u32 vcc, s%d, v%d' % (sT2, X + k))
        a('v_cmpx_ne_u32 vcc, 0, v%d' % (NP + k))
        a('v_mbcnt_lo_u32_b32 v%d, vcc_lo, 0' % (T0 + 2))
        a('v_mbcnt_hi_u32_b32 v%d, vcc_hi, v%d' % (T0 + 2, T0 + 2))
        a('v_lshl_add_u32 v%d, v%d, 2, s%d' % (T0 + 2, T0 + 2, sTB))
        a('ds_or_b32 v%d, v%d offset:%d' % (T0, T0 + 1, BB0 + 128 * k))
        a('ds_write_b32 v%d, v%d offset:%d' % (T0 + 2, DL + k, TB0 + 272 * k))
        a('s_mov_b64 exec, -1')
    a('v_and_b32 v%d, 7, v0' % T0)
    a('v_lshlrev_b32 v%d, 4, v%d' % (T0, T0))
    a('s_waitcnt lgkmcnt(0)')
    a('s_barrier')
    a('ds_read_b128 %s, v%d offset:%d' % (vr(TT, 4), T0, SC0))
    a('s_mov_b32 s%d, 0' % sPc)
    a('s_mov_b32 s%d, 0' % sR)
    a('s_waitcnt lgkmcnt(0)')
    for c in ('row_shr:1', 'row_shr:2', 'row_shr:4'):
        for k in range(4):
            a('v_add_u32_dpp v%d, v%d, v%d %s row_mask:0xf bank_mask:0xf' % (TT + k, TT + k, TT + k, c))
    for k in range(4):
        a('v_readlane_b32 s%d, v%d, 7' % (sPc + 1 + k, TT + k))
    for k in range(1, 4):
        a('s_add_u32 s%d, s%d, s%d' % (sPc + 1 + k, sPc + 1 + k, sPc + k))
    a('s_cmp_gt_u32 s%d, %d' % (sPc + 4, NBLK * 1024 if P['force_slow'] != 4 else 0))
    a('s_cselect_b32 s%d, 1, 0' % sMODE)
    a('s_cbranch_scc1 Lk2_pre')
    stamp(1)

    def phase(scat, load):
        mA, mC, mV = {}, {}, {}
        if load:
            a('s_lshl_b32 s%d, s%d, 2' % (sT, sW))
            a('s_add_u32 s%d, s%d, s%d' % (sT, sT, sR))
            a('s_mul_i32 s%d, s%d, 272' % (sTB, sT))
            a('s_lshl_b32 s%d, s%d, 7' % (sT, sT))
            a('v_lshl_add_u32 v%d, v%d, 2, s%d' % (VM, LANE, sT))
            a('ds_read_b32 v%d, v%d offset:%d' % (VM, VM, BB0))
            mM = a.mark()

        def A(k):
            R = RAW + 4 * k
            for e in range(2):
                t = TA[k & 1] + e
                a('v_bfe_u32 v%d, v%d, 9, 11' % (t, R + 2 * e))
                a('v_cmpx_gt_i32 %s, 0, v%d' % (sr(sMA + 4 * (k & 1) + 2 * e, 2), R + 2 * e + 1))
                a('v_lshlrev_b32 v%d, 2, v%d' % (t, t))
                a('ds_add_rtn_u32 v%d, v%d, v%d offset:%d' % (t, t, EIGHT, KC0))
            a('s_mov_b64 exec, -1')
            mA[k] = a.mark()

        def B(k):
            R = RAW + 4 * k
            a.wait_ds(mA[k])
            for e in range(2):
                t = TA[k & 1] + e
                a('s_mov_b64 exec, %s' % sr(sMA + 4 * (k & 1) + 2 * e, 2))
                a('v_and_b32 v%d, 0x1ffff, v%d' % (t, t))
                a('ds_write_b64 v%d, %s offset:%d' % (t, vr(R + 2 * e, 2), RING0))
            a('s_mov_b64 exec, -1')

        def C(k):
            t = TF[k & 1]
            if k == 0:
                a.wait_ds(mM)
            a('v_readlane_b32 s%d, v%d, %d' % (sLO, VM, 2 * k))
            a('v_readlane_b32 s%d, v%d, %d' % (sLO + 1, VM, 2 * k + 1))
            a('v_mbcnt_lo_u32_b32 v%d, s%d, 0' % (t, sLO))
            a('v_mbcnt_hi_u32_b32 v%d, s%d, v%d' % (t, sLO + 1, t))
            a('s_bcnt1_i32_b64 s%d, %s' % (sT, sr(sLO, 2)))
            a('v_lshl_add_u32 v%d, v%d, 2, s%d' % (t, t, sTB))
            a('s_lshl2_add_u32 s%d, s%d, s%d' % (sTB, sT, sTB))
            a('ds_read_b32 v%d, v%d offset:%d' % (t, t, TB0))
            mC[k] = a.mark()

        def Dd(k):
            t = TF[k & 1]
            a('s_movk_i32 s%d, %d' % (sT2, 768 * k))
            a.wait_ds(mC[k])
            a('v_add_u32 v%d, v%d, v%d' % (t, t, L12))
            a('buffer_load_dwordx3 %s, v%d, %s, s%d offen %s' % (vr(RAW + 4 * k, 3), t, sr(S_WS, 4), sT2, P['ldrec']))
            mV[k] = a.mark()

        def H(k):
            R = RAW + 4 * k
            a.wait_vm(mV[k])
            a('v_lshlrev_b32 v%d, 16, v%d' % (R + 3, R + 1))
            for e in range(2):
                a('v_bfe_u32 v%d, v%d, 9, 11' % (TH + e, R + 2 * e))
                a('v_cmpx_gt_i32 vcc, 0, v%d' % (R + 2 * e + 1))
                a('v_lshlrev_b32 v%d, 2, v%d' % (TH + e, TH + e))
                a('ds_add_u32 v%d, v%d offset:%d' % (TH + e, ONE, KC0))
            a('s_mov_b64 exec, -1')

        dv = P['dv'] if scat else 8
        for i in range(-1, NSL + dv):
            if scat and i + 1 < NSL:
                A(i + 1)
            if load and i + 1 < NSL:
                C(i + 1)
            if scat and 0 <= i < NSL:
                B(i)
            if load and 0 <= i < NSL:
                Dd(i)
            if load and 0 <= i - dv < NSL:
                H(i - dv)

    def keyscan(tag):
        K = RT
        a('s_cmp_lg_u32 s%d, 7' % sW)
        a('s_cbranch_scc1 Lks%s' % tag)
        a('s_mul_i32 s%d, s%d, 1568' % (sT, sR))
        a('v_lshl_add_u32 v%d, v%d, 5, s%d' % (RA, LANE, sT))
        a('ds_read_b128 %s, v%d offset:%d' % (vr(K, 4), RA, KC0))
        a('ds_read_b128 %s, v%d offset:%d' % (vr(K + 4, 4), RA, KC0 + 16))
        a('s_waitcnt lgkmcnt(0)')
        for j in range(1, 8):
            a('v_add_u32 v%d, v%d, v%d' % (K + j, K + j, K + j - 1))
        a('v_mov_b32 v%d, v%d' % (RA + 1, K + 7))
        G['scan64'](a, RA + 1)
        a('v_sub_u32 v%d, v%d, v%d' % (RA + 1, RA + 1, K + 7))
        a('v_add_u32 v%d, s%d, v%d' % (RA + 1, sRE, RA + 1))
        a('v_lshlrev_b32 v%d, 3, v%d' % (K + 8, RA + 1))
        for j in range(1, 8):
            a('v_add_lshl_u32 v%d, v%d, v%d, 3' % (K + 8 + j, K + j - 1, RA + 1))
        a('v_cmpx_gt_u32 vcc, 49, v%d' % LANE)
        a('ds_write_b128 v%d, %s offset:%d' % (RA, vr(K + 8, 4), KC0))
        a('ds_write_b128 v%d, %s offset:%d' % (RA, vr(K + 12, 4), KC0 + 16))
        a('s_mov_b64 exec, -1')
        a('Lks%s:' % tag)

    def readback(tag):
        a('s_cmp_ge_u32 s%d, s%d' % (sRB, sT2))
        a('s_cbranch_scc1 Lrd%s' % tag)
        a('Lrl%s:' % tag)
        mk = {}
        for j in range(4):
            a('s_add_u32 s%d, s%d, %d' % (sT, sRB, j))
            a('s_and_b32 s%d, s%d, 15' % (sT, sT))
            a('s_lshl_b32 s%d, s%d, 13' % (sT, sT))
            a('v_add_u32 v%d, s%d, v%d' % (RA + j, sT, RBA))
            a('ds_read_b64 %s, v%d offset:%d' % (vr(RT + 4 * j, 2), RA + j, RING0))
            a('ds_read_b64 %s, v%d offset:%d' % (vr(RT + 4 * j + 2, 2), RA + j, RING0 + 512))
            mk[j] = a.mark()
        a('s_mul_i32 s%d, s%d, 3' % (sIX, sRB))
        a('s_set_gpr_idx_on s%d, gpr_idx(DST)' % sIX)
        for j in range(4):
            a.wait_ds(mk[j])
            a('v_mov_b32 v%d, v%d' % (S0 + 3 * j, RT + 4 * j))
            a('v_mov_b32 v%d, v%d' % (S0 + 3 * j + 1, RT + 4 * j + 2))
            a('v_perm_b32 v%d, v%d, v%d, s%d' % (S0 + 3 * j + 2, RT + 4 * j + 3, RT + 4 * j + 1, sPS))
        a('s_set_gpr_idx_off')
        a('s_add_u32 s%d, s%d, 4' % (sRB, sRB))
        a('s_cmp_lt_u32 s%d, s%d' % (sRB, sT2))
        a('s_cbranch_scc1 Lrl%s' % tag)
        a('Lrd%s:' % tag)
        a('s_mov_b32 s%d, s%d' % (sRB, sT2))

    def warm(j):
        if P['warm']:
            a('s_mov_b32 s%d, %d' % (sT, j * 131072 * 128))
            a('buffer_load_dword v%d, v%d, %s, s%d offen' % (WD, WA, sr(S_MR, 4), sT))

    phase(False, True)
    a('s_mov_b32 s%d, 0' % sRE)
    a('s_mov_b32 s%d, 0' % sRB)
    a('s_waitcnt lgkmcnt(0)')
    a('s_barrier')
    keyscan('F')
    a('s_waitcnt lgkmcnt(0)')
    a('s_barrier')
    stamp(2)
    a('Lk2_sort:')
    a('s_add_u32 s%d, s%d, 1' % (sR, sR))
    phase(True, True)
    a('s_mov_b32 s%d, s%d' % (sRE, sPc + 1))
    for k in range(1, 4):
        a('s_mov_b32 s%d, s%d' % (sPc + k, sPc + k + 1))
    a('s_cmp_lg_u32 s%d, 2' % sR)
    a('s_cbranch_scc1 Lk2_nw')
    warm(0)
    a('Lk2_nw:')
    a('s_waitcnt lgkmcnt(0)')
    a('s_barrier')
    keyscan('M')
    a('s_lshr_b32 s%d, s%d, 10' % (sT2, sRE))
    readback('M')
    a('s_waitcnt lgkmcnt(0)')
    a('s_barrier')
    a('s_cmp_lg_u32 s%d, 3' % sR)
    a('s_cbranch_scc1 Lk2_sort')
    stamp(3)
    warm(1)
    phase(True, False)
    a('Lk2_pre:')
    DI = GATE + 8
    a('v_lshlrev_b32 v%d, 1, v0' % TM)
    for q in range(NQ):
        a('s_movk_i32 s%d, %d' % (sT, q * 1024))
        a('buffer_load_ushort v%d, v%d, %s, s%d offen' % (DI + q, TM, sr(S_DIST, 4), sT))
    a('s_waitcnt lgkmcnt(0)')
    a('s_barrier')
    stamp(4)
    a('s_cmp_lg_u32 s%d, 0' % sMODE)
    a('s_cbranch_scc1 Lk2_init')
    a('s_add_u32 s%d, s%d, 1023' % (sT2, sPc + 4))
    a('s_lshr_b32 s%d, s%d, 10' % (sT2, sT2))
    readback('L')
    a('s_max_u32 s%d, s%d, 1' % (sRB, sRB))
    a('s_sub_u32 s%d, s%d, 1' % (sRB, sRB))
    a('s_mul_i32 s%d, s%d, 3' % (sEND, sRB))
    a('s_lshl_b32 s%d, s%d, 10' % (sT, sRB))
    a('s_sub_u32 s%d, s%d, s%d' % (sT, sPc + 4, sT))
    a('v_lshrrev_b32 v%d, 3, v%d' % (TM, RBA))
    a('v_add_u32 v%d, 64, v%d' % (TM + 1, TM))
    a('v_cmp_gt_u32 %s, s%d, v%d' % (sr(sLM, 2), sT, TM))
    a('v_cmp_gt_u32 %s, s%d, v%d' % (sr(sLM + 2, 2), sT, TM + 1))
    a('s_set_gpr_idx_on s%d, gpr_idx(SRC1,DST)' % sEND)
    a('s_andn2_b64 exec, -1, %s' % sr(sLM + 2, 2))
    a('v_mov_b32 v%d, 0' % (S0 + 1))
    a('v_and_b32 v%d, 0xffff, v%d' % (S0 + 2, S0 + 2))
    a('s_andn2_b64 exec, -1, %s' % sr(sLM, 2))
    a('v_mov_b32 v%d, 0' % S0)
    a('v_mov_b32 v%d, 0' % (S0 + 2))
    a('s_mov_b64 exec, -1')
    a('s_set_gpr_idx_off')
    a('s_mov_b32 s%d, 0' % sIX)
    decode_rel(0, 0)
    gathers(0)
    decode_rel(1, 0)
    gathers(1)
    a('Lk2_init:')
    img_load(0, 5, AG, TM)
    for i in range(4):
        a('v_mov_b32 v%d, 0' % (MD + 12 + i))
    a('v_mov_b32 v%d, 0' % STK)
    a('v_mov_b32 v%d, 0' % RTN[0])
    a('v_mov_b32 v%d, 0' % RTN[1])
    a('v_mov_b32 v%d, 0x1000000' % CK)
    a('v_lshlrev_b32 v%d, 4, v0' % A4)
    a('v_add_u32 v%d, %d, v%d' % (A4B, HI0, A4))
    a('s_mov_b32 s%d, 0x%x' % (sT2, f2u(-10.0 * math.log2(math.e))))
    a('s_barrier')
    for o in list(range(0, RBF0 - 8192, 8192)) + [RBF0 - 8192]:
        a('ds_write_b128 v%d, %s offset:%d' % (A4, vr(MD + 12, 4), o))
    for o in list(range(0, 4 * PL - 8192, 8192)) + [4 * PL - 8192]:
        a('ds_write_b128 v%d, %s offset:%d' % (A4B, vr(MD + 12, 4), o))

    def rbf_batch(q):
        a('v_lshlrev_b32 v%d, 16, v%d' % (DI + q, DI + q))
        for r in range(8):
            a('v_subrev_f32 v%d, s%d, v%d' % (MD + r, sCEN + r, DI + q))
        for r in range(8):
            a('v_mul_f32 v%d, v%d, v%d' % (MD + r, MD + r, MD + r))
        for r in range(8):
            a('v_mul_f32 v%d, s%d, v%d' % (MD + r, sT2, MD + r))
        for r in range(8):
            a('v_exp_f32 v%d, v%d' % (MD + r, MD + r))
        for r in range(4):
            a('v_cvt_pk_f16_f32 v%d, v%d, v%d' % (MD + 8 + r, MD + 2 * r, MD + 2 * r + 1))
        a('ds_write_b128 v%d, %s offset:%d' % (A4, vr(MD + 8, 4), RBF0))
        if q < NQ - 1:
            a('v_add_u32 v%d, 8192, v%d' % (A4, A4))

    a('s_cmp_lg_u32 s%d, 0' % sMODE)
    a('s_cbranch_scc0 Lk2_w9')
    a('s_waitcnt vmcnt(5)')
    a('Lk2_w9:')
    a('s_waitcnt vmcnt(9)')
    for q in range(NQ - 1):
        rbf_batch(q)
    a('s_mov_b64 exec, %s' % sr(sV6, 2))
    a('s_cbranch_execz Lk2_r6')
    rbf_batch(NQ - 1)
    a('Lk2_r6:')
    a('s_mov_b64 exec, -1')
    a('s_waitcnt vmcnt(0) lgkmcnt(0)')
    a('s_barrier')
    stamp(5)
    a('s_cmp_lg_u32 s%d, 0' % sMODE)
    a('s_cbranch_scc1 Lk2_all')
    a('ds_read_b128 %s, v%d offset:%d' % (vr(RBF, 4), A16[0], RBF0))
    a('s_waitcnt lgkmcnt(0)')
    a.raw('.p2align 6')
    a('Lk2_loop:')
    step(0)
    step(1)
    if P['mbar']:
        a('s_barrier')
    a('s_add_u32 s%d, s%d, 3' % (sIX, sIX))
    a('s_cmp_le_u32 s%d, s%d' % (sIX, sEND))
    a('s_cbranch_scc1 Lk2_loop')
    stamp(6)
    a('s_mov_b32 s%d, 0' % sPASS)
    for i in range(NQ):
        a('s_mov_b64 %s, 0' % sr(sFL + 2 * i, 2))
        a('s_mov_b64 %s, 0' % sr(sSK + 2 * i, 2))
    a('Lk2_epi:')
    MQ = 4
    AU, AR, W, RB, CN, OA, R16 = 64, 72, 76, 84, 88, 92, 93
    img_load(5, 3, AU, TM)
    a('v_and_b32 v2, 31, v0')
    a('v_and_b32 v3, 0x1c0, v0')
    a('v_or_b32 v2, v2, v3')
    a('v_lshl_add_u32 v%d, v2, 5, v%d' % (OA, IA + 1))
    for q in range(NQ):
        a('s_mov_b32 s%d, %d' % (sT, q * 16384))
        a('buffer_load_dwordx4 %s, v%d, %s, s%d offen' % (vr(MQ + 8 * q, 4), OA, sr(S_MO, 4), sT))
        a('buffer_load_dwordx4 %s, v%d, %s, s%d offen offset:1024' % (vr(MQ + 8 * q + 4, 4), OA, sr(S_MO, 4), sT))
    a('v_lshlrev_b32 v%d, 2, v0' % A4)
    a('v_add_u32 v%d, %d, v%d' % (A4B, HI0, A4))
    a('v_lshlrev_b32 v%d, 4, v0' % R16)
    a('s_waitcnt lgkmcnt(0)')
    a('v_or3_b32 v%d, v%d, v%d, v%d' % (STK, STK, RTN[0], RTN[1]))
    a('s_barrier')

    def epi_batch(q):
        if q == NQ - 1:
            for i in range(4):
                a('v_mov_b32 v%d, 0' % (RB + i))
            for i in range(8):
                a('v_mov_b32 v%d, 0' % (W + i))
            a('v_mov_b32 v%d, 0' % CN)
            a('s_mov_b64 exec, %s' % sr(sV6, 2))
        a('ds_read_b32 v%d, v%d offset:%d' % (CN, A4B, 3 * PL + 2048 * q))
        for j in range(8):
            b, o = plane(j)
            a('ds_read_b32 v%d, v%d offset:%d' % (W + j, b, o + 2048 * q))
        a('ds_read_b128 %s, v%d offset:%d' % (vr(RB, 4), R16, RBF0))
        a('s_mov_b64 exec, -1')
        a('s_waitcnt lgkmcnt(9)')
        a('v_lshrrev_b32 v%d, 24, v%d' % (CN + 3, CN))
        a('v_mul_lo_u32 v%d, v%d, s%d' % (CN + 2, CN + 3, sM1))
        a('s_andn2_b64 exec, -1, %s' % sr(sSK + 2 * q, 2))
        for j in range(8):
            a('s_waitcnt lgkmcnt(%d)' % (8 - j))
            a('v_sub_u32 v%d, v%d, v%d' % (W + j, W + j, CN + 2))
            a('v_add_u32 v%d, 0x8000, v%d' % (CN + 1, W + j))
            a('v_cvt_f32_i32_sdwa v%d, sext(v%d) dst_sel:DWORD dst_unused:UNUSED_PAD src0_sel:WORD_0' % (W + j, W + j))
            a('v_cvt_f32_i32_sdwa v%d, sext(v%d) dst_sel:DWORD dst_unused:UNUSED_PAD src0_sel:WORD_1' % (CN + 1, CN + 1))
            a('v_cvt_pk_bf16_f32 v%d, v%d, v%d' % (W + j, W + j, CN + 1))
        a('s_mov_b64 exec, -1')
        a('s_waitcnt lgkmcnt(0)')
        if q == 0:
            a('s_waitcnt vmcnt(%d)' % (2 * NQ))
        a('v_mfma_f32_32x32x16_f16 %s, %s, %s, 0' % (vr(GATE, 16), vr(AR, 4), vr(RB, 4)))
        a('v_mfma_f32_32x32x16_bf16 %s, %s, %s, 0' % (vr(MD, 16), vr(AU, 4), vr(W, 4)))
        a('v_mfma_f32_32x32x16_bf16 %s, %s, %s, %s' % (vr(MD, 16), vr(AU + 4, 4), vr(W + 4, 4), vr(MD, 16)))
        if q < NQ - 1:
            a('v_add_u32 v%d, 8192, v%d' % (R16, R16))
        a('v_and_b32 v%d, 0xffffff, v%d' % (CN, CN))
        a('v_mul_u32_u24 v%d, %d, v%d' % (CN + 2, P['theta'], CN + 3))
        a('v_cmp_lt_u32 vcc, 127, v%d' % (CN + 3))
        a('s_or_b64 %s, %s, vcc' % (sr(sFL + 2 * q, 2), sr(sFL + 2 * q, 2)))
        a('v_cmp_lt_u32 vcc, 0x7ffe, v%d' % CN)
        a('s_or_b64 %s, %s, vcc' % (sr(sFL + 2 * q, 2), sr(sFL + 2 * q, 2)))
        a('v_cmp_lt_u32 vcc, v%d, v%d' % (CN, CN + 2))
        a('s_or_b64 %s, %s, vcc' % (sr(sFL + 2 * q, 2), sr(sFL + 2 * q, 2)))
        a('s_waitcnt vmcnt(%d)' % (2 * NQ - 2))
        a('s_mov_b32 s%d, %d' % (sT, q * 16384))
        for j in range(8):
            m = MQ + 8 * q + j
            a('v_lshlrev_b32 v%d, 16, v%d' % (CN + 1, m))
            a('v_and_b32 v%d, s%d, v%d' % (CN + 2, sHI, m))
            a('v_fmac_f32 v%d, v%d, v%d' % (CN + 1, MD + 2 * j, GATE + 2 * j))
            a('v_fmac_f32 v%d, v%d, v%d' % (CN + 2, MD + 2 * j + 1, GATE + 2 * j + 1))
            a('v_cvt_pk_bf16_f32 v%d, v%d, v%d' % (m, CN + 1, CN + 2))
            if j == 3:
                a('buffer_store_dwordx4 %s, v%d, %s, s%d offen %s' % (vr(MQ + 8 * q, 4), OA, sr(S_OUT, 4), sT, P['stout']))
        a('buffer_store_dwordx4 %s, v%d, %s, s%d offen offset:1024 %s' % (vr(MQ + 8 * q + 4, 4), OA, sr(S_OUT, 4), sT, P['stout']))

    for q in range(NQ - 1):
        epi_batch(q)
    a('s_cmp_lg_u32 s%d, 0' % sW)
    a('s_cbranch_scc1 Lk2_e6')
    epi_batch(NQ - 1)
    a('Lk2_e6:')
    stamp(7)
    if P['stamp']:
        a('s_waitcnt vmcnt(0)')
        stamp(8)
    if P['abl']:
        a('s_branch Lk2_end')
    a('s_cmp_lg_u32 s%d, 0' % sPASS)
    a('s_cbranch_scc1 Lk2_end')
    a('s_or_b64 %s, %s, %s' % (sr(sMK, 2), sr(sFL, 2), sr(sFL + 2, 2)))
    for q in range(2, NQ):
        a('s_or_b64 %s, %s, %s' % (sr(sMK, 2), sr(sMK, 2), sr(sFL + 2 * q, 2)))
    a('s_cselect_b32 s%d, 1, %d' % (sT, P['force_slow'] & 3))
    a('v_cmp_gt_i32 vcc, 0, v%d' % STK)
    a('s_cmp_lg_u64 vcc, 0')
    a('s_cselect_b32 s%d, 3, s%d' % (sT, sT))
    a('v_mov_b32 v2, s%d' % sT)
    a('s_lshl_b32 s%d, s%d, 2' % (sT, sW))
    a('s_add_u32 s%d, s%d, %d' % (sT, sT, SCR))
    a('v_mov_b32 v3, s%d' % sT)
    a('ds_write_b32 v3, v2')
    a('v_and_b32 v2, 7, v0')
    a('v_lshlrev_b32 v2, 2, v2')
    a('v_add_u32 v2, %d, v2' % SCR)
    a('s_waitcnt lgkmcnt(0)')
    a('s_barrier')
    a('ds_read_b32 v3, v2')
    a('s_waitcnt lgkmcnt(0)')
    a('v_cmp_ne_u32 vcc, 0, v3')
    a('s_cmp_eq_u64 vcc, 0')
    a('s_cbranch_scc1 Lk2_end')
    a('v_cmp_lt_u32 vcc, 1, v3')
    a('s_cmp_lg_u64 vcc, 0')
    a('Lk2_all:')
    for q in range(NQ):
        a('s_cselect_b64 %s, -1, %s' % (sr(sSK + 2 * q, 2), sr(sFL + 2 * q, 2)))
    a('s_and_b64 %s, %s, %s' % (sr(sSK + 2 * NQ - 2, 2), sr(sSK + 2 * NQ - 2, 2), sr(sV6, 2)))
    a('s_waitcnt vmcnt(0)')
    VD, VE, REC, ADDR, F12 = 4, 8, 12, 16, 17
    desc_load(VD, 18)
    a('v_lshlrev_b32 v%d, 2, v0' % A4)
    a('v_add_u32 v%d, %d, v%d' % (A4B, HI0, A4))
    a('v_mov_b32 v2, 0')
    a('v_mov_b32 v3, -1')
    for q in range(NQ):
        if q == NQ - 1:
            a('s_mov_b64 exec, %s' % sr(sV6, 2))
        a('ds_write_b32 v%d, v2 offset:%d' % (A4B, 3 * PL + 2048 * q))
        a('s_mov_b64 exec, %s' % sr(sSK + 2 * q, 2))
        a('ds_write_b32 v%d, v3 offset:%d' % (A4B, 3 * PL + 2048 * q))
        for j in range(8):
            b, o = plane(j)
            a('ds_write_b32 v%d, v2 offset:%d' % (b, o + 2048 * q))
        a('s_mov_b64 exec, -1')
        a('s_waitcnt lgkmcnt(0)')
    a('s_barrier')
    a('s_movk_i32 s%d, %d' % (sT, REC0 // 12))
    a('v_mov_b32 v%d, %d' % (F12, TSP))
    a('v_mad_u32_u24 v%d, v0, v%d, s%d' % (F12, F12, sT))
    a('s_waitcnt vmcnt(0)')
    for k in range(4):
        a('v_add_u32 v%d, 0x10000, v%d' % (VE + k, VD + k))
        a('v_and_b32 v%d, 0xffff, v%d' % (VD + k, VD + k))
        a('v_lshrrev_b32 v%d, 17, v%d' % (VE + k, VE + k))
    scan4(VE)
    for k in range(4):
        if k:
            a('v_add_u32 v%d, s%d, v%d' % (VE + k, sNT, VE + k))
        a('v_add_u32 v%d, v%d, v%d' % (VD + k, VD + k, F12))
        a('v_readlane_b32 s%d, v%d, 63' % (sNT, VE + k))
        a('v_sub_u32 v%d, v%d, v%d' % (VD + k, VD + k, VE + k))
        a('v_mul_lo_u32 v%d, v%d, 12' % (VD + k, VD + k))
    a('v_mul_u32_u24 v%d, 12, v%d' % (F12, LANE))
    a('s_mov_b32 s%d, 0' % sF)
    a('s_mov_b32 s%d, 0' % sE)
    a('s_mov_b32 s%d, 0' % sDL)
    a('s_movk_i32 s%d, -64' % sI)
    a('Lk2_sl:')
    a('s_cmp_ge_u32 s%d, s%d' % (sF, sNT))
    a('s_cbranch_scc1 Lk2_sd')
    a('v_add_u32 v%d, s%d, v%d' % (ADDR, sDL, F12))
    a('s_sub_u32 s%d, s%d, s%d' % (sP, sE, sF))
    a('s_cmp_ge_u32 s%d, 64' % sP)
    a('s_cbranch_scc1 Lfd')
    a('Lfl:')
    a('v_readlane_b32 s%d, v%d, s%d' % (sDL, VD, sI))
    a('v_readlane_b32 s%d, v%d, s%d' % (sE, VE, sI))
    a('s_add_u32 s%d, s%d, 1' % (sI, sI))
    a('s_cbranch_scc0 Lfc')
    a('s_mov_b64 exec, -1')
    for k in range(3):
        a('v_mov_b32 v%d, v%d' % (VE + k, VE + k + 1))
        a('v_mov_b32 v%d, v%d' % (VD + k, VD + k + 1))
    a('v_mov_b32 v%d, -1' % (VE + 3))
    a('v_bfrev_b32 v%d, 1' % (VD + 3))
    a('s_movk_i32 s%d, -64' % sI)
    a('Lfc:')
    a('s_lshl_b64 exec, -1, s%d' % sP)
    a('v_add_u32 v%d, s%d, v%d' % (ADDR, sDL, F12))
    a('s_sub_u32 s%d, s%d, s%d' % (sP, sE, sF))
    a('s_cmp_lt_u32 s%d, 64' % sP)
    a('s_cbranch_scc1 Lfl')
    a('s_mov_b64 exec, -1')
    a('Lfd:')
    a('s_add_u32 s%d, s%d, 64' % (sF, sF))
    a('v_add_u32 v%d, 768, v%d' % (F12, F12))
    a('buffer_load_dwordx3 %s, v%d, %s, 0 offen' % (vr(REC, 3), ADDR, sr(S_WS, 4)))
    a('s_mov_b32 s%d, 0' % sSUB)
    a('s_waitcnt vmcnt(0)')
    a('Lk2_s2:')
    a('v_cmp_gt_i32 %s, 0, v%d' % (sr(sMK, 2), REC + 1))
    a('v_ashrrev_i32 v%d, 31, v%d' % (TM, REC + 1))
    a('v_and_b32 v%d, v%d, v%d' % (REC, REC, TM))
    a('v_and_b32 v%d, s%d, v%d' % (IA, sIDM, REC))
    a('v_and_b32 v%d, s%d, v%d' % (IB, sIDM, REC))
    a('v_lshrrev_b32 v%d, 16, v%d' % (A16[0], REC))
    a('v_and_b32 v%d, s%d, v%d' % (A16[0], sA16, A16[0]))
    a('v_and_b32 v%d, s%d, v%d' % (ANG[0], sHI, REC + 1))
    a('v_permlane32_swap_b32 v%d, v%d' % (IA, IB))
    addrs(0)
    a('ds_read_b32 v%d, v%d offset:%d' % (CV, A4B, 3 * PL))
    a('ds_read_b128 %s, v%d offset:%d' % (vr(RBF, 4), A16[0], RBF0))
    a('s_waitcnt lgkmcnt(0)')
    a('v_cmp_ne_u32 vcc, 0, v%d' % CV)
    a('s_and_b64 %s, %s, vcc' % (sr(sMK, 2), sr(sMK, 2)))
    a('s_cbranch_scc0 Lk2_s3')
    gathers(0)
    cosines(0)
    for l in range(3):
        sbf(l)
        gmf(l)
    a('s_waitcnt vmcnt(0)')
    mdown(0)
    for d in range(16):
        a('v_mul_f32 v%d, 0x47800000, v%d' % (GATE + d, GATE + d))
        a('v_mul_f32 v%d, v%d, v%d' % (MD + d, MD + d, GATE + d))
    a('s_mov_b64 exec, %s' % sr(sMK, 2))
    for j in range(8):
        a('v_cvt_pk_bf16_f32 v%d, v%d, v%d' % (MD + 2 * j, MD + 2 * j, MD + 2 * j + 1))
        b, o = plane(j)
        a('ds_pk_add_bf16 v%d, v%d offset:%d' % (b, MD + 2 * j, o))
    a('s_mov_b64 exec, -1')
    a('Lk2_s3:')
    a('v_mov_b32 v%d, v%d' % (REC, REC + 2))
    a('v_lshlrev_b32 v%d, 16, v%d' % (REC + 1, REC + 1))
    a('s_xor_b32 s%d, s%d, 1' % (sSUB, sSUB))
    a('s_cbranch_scc1 Lk2_s2')
    a('s_branch Lk2_sl')
    a.fence()
    a('Lk2_sd:')
    a('s_mov_b32 s%d, 1' % sPASS)
    a('s_branch Lk2_epi')
    a.fence()
    a('Lk2_end:')
    a('s_endpgm')
    a.fence()
    return LDS
```

```python
import sys, math, struct
from asmlib import Asm

NAME = 'gather_scatter__molecular_angular_gemnet__graph'
E, T = 800000, 12800000
BINE = 3125
TS = 158976
TSP = TS // 12
REC0 = 12288
DESC0 = 0x4F00000
PREP0 = 0x5200000
WS_BYTES = 268435456

P = dict(ld1='nt', st1='', ldrec='', stout='', target=180.0, theta=64, bar=16, stamp=0, force_slow=0, abl=0, idm=0xfffff, goff=0, dv=4, warm=1, mbar=0, sdwa=1, npre=2, only1=0, stw=0, k2x=0, rd2=1, l2x=0, recm=0, ldg='')
for a in sys.argv[2:]:
    k, v = a.split('=')
    P[k] = type(P[k])(v.replace('+',' ')) if not isinstance(P[k], int) else int(v, 0)


def f2u(x):
    return struct.unpack('<I', struct.pack('<f', x))[0]


def vr(a, n):
    return 'v[%d:%d]' % (a, a + n - 1)


def sr(a, n):
    return 's[%d:%d]' % (a, a + n - 1)


def srd(a, d, ptr, nbytes, off=None, stride=0):
    if off is None:
        a('s_mov_b32 s%d, s%d' % (d, ptr))
        a('s_mov_b32 s%d, s%d' % (d + 1, ptr + 1))
    else:
        a('s_add_u32 s%d, s%d, %s' % (d, ptr, off))
        a('s_addc_u32 s%d, s%d, 0' % (d + 1, ptr + 1))
    if stride:
        a('s_or_b32 s%d, s%d, 0x%x' % (d + 1, d + 1, stride << 16))
    a('s_mov_b32 s%d, %d' % (d + 2, nbytes))
    a('s_mov_b32 s%d, 0x20000' % (d + 3))


def scan64(a, v, op='v_add_u32'):
    for c in ('row_shr:1', 'row_shr:2', 'row_shr:4', 'row_shr:8'):
        a('%s_dpp v%d, v%d, v%d %s row_mask:0xf bank_mask:0xf' % (op, v, v, v, c))
    a('%s_dpp v%d, v%d, v%d row_bcast:15 row_mask:0xa bank_mask:0xf' % (op, v, v, v))
    a('%s_dpp v%d, v%d, v%d row_bcast:31 row_mask:0xc bank_mask:0xf' % (op, v, v, v))


STAMP0 = 0x6000000


def stamp_init(a, sdbg, wsptr, kern, sw):
    if not P['stamp']:
        return
    a('s_lshl_b32 s100, s2, 7')
    a('s_add_u32 s100, s100, %d' % (STAMP0 + kern * 32768))
    srd(a, sdbg, wsptr, 128, 's100')
    stamp.sel = sw


def stamp(a, idx, sdbg, tmp_s, tmp_v, tmp_w=None):
    tmp_w = tmp_w or tmp_v + 1
    if not P['stamp']:
        return
    lab = 'Lst%d' % stamp.n
    stamp.n += 1
    a.nocount = True
    a('s_cmp_lg_u32 s%d, %d' % (stamp.sel, P['stw']))
    a('s_cbranch_scc1 %s' % lab)
    a('s_memrealtime %s' % sr(tmp_s, 2))
    a('s_waitcnt lgkmcnt(0)')
    a('v_mov_b32 v%d, s%d' % (tmp_v, tmp_s))
    a('v_mov_b32 v%d, %d' % (tmp_w, idx * 4))
    a('buffer_store_dword v%d, v%d, %s, 0 offen' % (tmp_v, tmp_w, sr(sdbg, 4)))
    a('s_memtime %s' % sr(tmp_s, 2))
    a('s_waitcnt lgkmcnt(0)')
    a('v_mov_b32 v%d, s%d' % (tmp_v, tmp_s))
    a('buffer_store_dword v%d, v%d, %s, 0 offen offset:64' % (tmp_v, tmp_w, sr(sdbg, 4)))
    a(lab + ':')
    a.nocount = False


stamp.n = 0
stamp.sel = 0


def k1(a):
    CNTB, SCR, CNTA = 0, 4096, 4224
    DATB, DATA = 4224, 8320
    S_IN, S_OUT, S_ANG, S_REC, S_DSC, S_T0, S_DBG = 24, 28, 32, 36, 40, 44, 92
    S_REC2 = 80
    sMB, sMC, sNEG, sHI, sT, sW = 64, 65, 66, 67, 68, 69
    sREM = 70
    sBASE, sPREP, sVB, sUM = 72, 73, 74, 75
    O16, O8, ONE, SIX = 1, 2, 3, 12
    TP = 4
    TS_ = 22
    ANG = 14
    ANGR = 13
    INA, OUTA, INB, OUTB, INR, OUTR = 28, 52, 76, 100, 124, 125
    ld = P['ld1']
    st = P['st1']

    a('s_cmp_ge_u32 s2, 256')
    a('s_cbranch_scc1 Lk1_end')
    a('s_load_dwordx4 s[4:7], s[0:1], 8')
    a('s_load_dwordx2 s[8:9], s[0:1], 32')
    a('s_load_dwordx4 s[76:79], s[0:1], 96')
    a('s_load_dwordx2 s[12:13], s[0:1], 0')
    a('s_load_dwordx8 s[16:23], s[0:1], 56')
    a('v_lshlrev_b32 v%d, 4, v0' % O16)
    a('v_lshlrev_b32 v%d, 3, v0' % O8)
    a('v_mov_b32 v%d, 1' % ONE)
    a('v_mov_b32 v%d, 6' % SIX)
    a('v_lshrrev_b32 v4, 6, v0')
    a('v_readfirstlane_b32 s%d, v4' % sW)
    a('v_mov_b32 v4, 0')
    a('v_lshlrev_b32 v5, 2, v0')
    a('ds_write_b32 v5, v4 offset:%d' % CNTB)
    a('ds_write_b32 v5, v4 offset:%d' % CNTA)
    a('s_mov_b32 s%d, %d' % (sMB, -(-2**32 // BINE)))
    a('s_mov_b32 s%d, 21400' % sMC)
    a('s_mov_b32 s%d, %d' % (sNEG, -BINE))
    a('s_mov_b32 s%d, 0xffff0000' % sHI)
    a('s_mov_b32 s%d, 0x80008000' % sVB)
    a('s_mov_b32 s%d, 0xff000' % sUM)
    a('s_mul_i32 s14, s2, 200000')
    a('s_mul_i32 s15, s2, 100000')
    a('s_movk_i32 s%d, 848' % sT)
    a('v_cmp_gt_u32 %s, s%d, v0' % (sr(sREM, 2), sT))
    a('v_and_b32 v13, 63, v0')
    a('v_lshlrev_b32 v27, 4, v13')
    a('s_lshl_b32 s%d, s2, 4' % sPREP)
    a('s_or_b32 s%d, s%d, s%d' % (sPREP, sPREP, sW))
    a('s_waitcnt lgkmcnt(0)')
    srd(a, S_IN, 4, 200000, 's14')
    srd(a, S_OUT, 6, 200000, 's14')
    srd(a, S_ANG, 8, 100000, 's15')
    stamp_init(a, S_DBG, 78, 0, sW)
    stamp(a, 0, S_DBG, 96, 126)
    a('s_cmp_lg_u32 s%d, 0' % sPREP)
    a('s_cbranch_scc1 Lk1_main')
    a.nocount = True
    srd(a, S_T0, 18, 768)
    srd(a, S_T0 + 4, 20, 512)
    srd(a, S_T0 + 8, 22, 512)
    srd(a, S_T0 + 12, 16, 256)
    srd(a, S_T0 + 16, 12, E * 32)
    for i in range(4):
        a('buffer_load_dwordx4 %s, v27, %s, 0 offen' % (vr(76 + 4 * i, 4), sr(S_T0 + 4 * i, 4)))
    a('v_mul_u32_u24 v4, 99984, v13')
    for i in range(4):
        a('s_mov_b32 s%d, %d' % (sT, i * 64 * 99984))
        a('buffer_load_dwordx4 %s, v4, %s, s%d offen' % (vr(92 + 4 * i, 4), sr(S_T0 + 16, 4), sT))
    a.nocount = False
    a('Lk1_main:')
    a('s_lshl_b32 s14, s2, 1')
    a('s_mul_i32 s15, s14, %d' % TS)
    a('s_add_u32 s15, s15, %d' % REC0)
    srd(a, S_REC, 78, 0, 's15')
    a('s_add_u32 s15, s15, %d' % TS)
    srd(a, S_REC2, 78, 0, 's15')
    a('s_lshl_b32 s15, s14, 12')
    a('s_add_u32 s15, s15, %d' % DESC0)
    srd(a, S_DSC, 78, 8192, 's15')

    marks = {}

    def regs(j):
        return ((INA, OUTA) if j < 6 else (INB, OUTB)), 4 * (j % 6), ANG + 2 * (j % 4)

    def loads(j):
        if j == 12:
            a('v_lshlrev_b32 v10, 2, v0')
            a('v_lshlrev_b32 v11, 1, v0')
            a('s_mov_b32 s%d, %d' % (sT, 12 * 16384))
            a('buffer_load_dword v%d, v10, %s, s%d offen %s' % (OUTR, sr(S_OUT, 4), sT, ld))
            a('buffer_load_dword v%d, v10, %s, s%d offen %s' % (INR, sr(S_IN, 4), sT, ld))
            a('s_mov_b32 s%d, %d' % (sT, 12 * 8192))
            a('buffer_load_ushort v%d, v11, %s, s%d offen %s' % (ANGR, sr(S_ANG, 4), sT, ld))
        else:
            (rin, rout), o, rang = regs(j)
            a('s_mov_b32 s%d, %d' % (sT, j * 16384))
            a('buffer_load_dwordx4 %s, v%d, %s, s%d offen %s' % (vr(rout + o, 4), O16, sr(S_OUT, 4), sT, ld))
            a('buffer_load_dwordx4 %s, v%d, %s, s%d offen %s' % (vr(rin + o, 4), O16, sr(S_IN, 4), sT, ld))
            a('s_mov_b32 s%d, %d' % (sT, j * 8192))
            a('buffer_load_dwordx2 %s, v%d, %s, s%d offen %s' % (vr(rang, 2), O8, sr(S_ANG, 4), sT, ld))
        marks[j] = a.mark()

    def pack2(items, rg, cnt):
        a('v_or_b32 v%d, s%d, v%d' % (rg, sVB, rg))
        for e, (ri, ro) in enumerate(items):
            a('v_mul_hi_u32_u24 v%d, s%d, v%d' % (TP + e, sMB, ro))
            a('v_and_b32 v%d, s%d, v%d' % (TP + 2 + e, sUM, ri))
        for e, (ri, ro) in enumerate(items):
            a('v_mul_hi_u32_u24 v%d, s%d, v%d' % (TP + 2 + e, sMC, TP + 2 + e))
            a('v_mad_i32_i24 v%d, v%d, s%d, v%d' % (ro, TP + e, sNEG, ro))
        for e, (ri, ro) in enumerate(items):
            a('v_lshl_add_u32 v%d, v%d, 8, v%d' % (TP + e, TP + 2 + e, TP + e))
            a('v_lshl_or_b32 v%d, v%d, 20, v%d' % (ri, ro, ri))
        for e, (ri, ro) in enumerate(items):
            a('v_lshlrev_b32 v%d, 2, v%d' % (TP + e, TP + e))
        for e, (ri, ro) in enumerate(items):
            a('ds_add_u32 v%d, v%d offset:%d' % (TP + e, ONE, cnt))
            if e:
                a('v_and_or_b32 v%d, v%d, s%d, v%d' % (ro, rg, sHI, TP + e))
            else:
                a('v_lshl_or_b32 v%d, v%d, 16, v%d' % (ro, rg, TP + e))

    def pack(j):
        a.wait_vm(marks[j])
        if j == 12:
            a('s_mov_b64 exec, %s' % sr(sREM, 2))
            pack2([(INR, OUTR)], ANGR, CNTB)
            a('s_mov_b64 exec, -1')
            return
        (rin, rout), o, rang = regs(j)
        for h in range(2):
            pack2([(rin + o + 2 * h + e, rout + o + 2 * h + e) for e in range(2)], rang + h, CNTA if j < 6 else CNTB)

    def scan(sub, cnt, data, srec, mid1=None, mid2=None):
        a('v_lshlrev_b32 v10, 2, v0')
        a('s_waitcnt lgkmcnt(0)')
        a('s_barrier')
        a('ds_read_b32 v4, v10 offset:%d' % cnt)
        m = a.mark()
        if mid1:
            mid1()
        a('s_lshl_b32 s%d, s%d, 2' % (sT, sW))
        a('v_mov_b32 v8, s%d' % sT)
        a('v_and_b32 v9, 60, v10')
        a.wait_ds(m)
        a('v_add_u32 v6, 1, v4')
        a('v_lshrrev_b32 v6, 1, v6')
        a('v_mov_b32 v7, v6')
        scan64(a, 7)
        a('s_mov_b32 exec_lo, 0')
        a('s_mov_b32 exec_hi, 0x80000000')
        a('ds_write_b32 v8, v7 offset:%d' % SCR)
        a('s_mov_b64 exec, -1')
        a('s_waitcnt lgkmcnt(0)')
        a('s_barrier')
        a('ds_read_b32 v11, v9 offset:%d' % SCR)
        m = a.mark()
        if mid2:
            mid2()
        a('v_and_b32 v8, 255, v0')
        a('v_lshrrev_b32 v9, 8, v0')
        a('v_lshlrev_b32 v9, 2, v9')
        a('v_lshl_add_u32 v9, v8, 4, v9')
        a.wait_ds(m)
        a('v_mov_b32 v5, v11')
        for c in ('row_shr:1', 'row_shr:2', 'row_shr:4', 'row_shr:8'):
            a('v_add_u32_dpp v11, v11, v11 %s row_mask:0xf bank_mask:0xf' % c)
        a('v_sub_u32 v5, v11, v5')
        a('v_readlane_b32 s%d, v11, 15' % sT)
        a('v_readlane_b32 s%d, v5, s%d' % (sBASE, sW))
        a('s_mul_i32 s%d, s%d, 12' % (srec + 2, sT))
        a('v_add_u32 v7, s%d, v7' % sBASE)
        a('v_sub_u32 v6, v7, v6')
        a('s_movk_i32 s%d, %d' % (sT, data))
        a('v_mad_u32_u24 v6, v6, 12, s%d' % sT)
        a('ds_write_b32 v10, v6 offset:%d' % cnt)
        a('v_lshl_or_b32 v5, v4, 16, v7')
        a('v_mul_u32_u24 v7, 12, v7')
        a('v_mov_b32 v6, 0')
        a('v_and_b32 v4, 1, v4')
        a('v_cmpx_eq_u32 vcc, 1, v4')
        a('ds_write_b16 v7, v6 offset:%d' % (data - 8))
        a('s_mov_b64 exec, -1')
        a('s_movk_i32 s%d, %d' % (sT, sub * 4096))
        a('buffer_store_dword v5, v9, %s, s%d offen %s' % (sr(S_DSC, 4), sT, st))
        a('s_waitcnt lgkmcnt(0)')
        a('s_barrier')

    def rtn(t, ro, cnt):
        a('v_and_b32 v%d, 0xffff, v%d' % (t, ro))
        a('ds_add_rtn_u32 v%d, v%d, v%d offset:%d' % (t, t, SIX, cnt))

    def put(t, ri, ro, e):
        u = 8 + (e & 1)
        a('v_and_b32 v%d, 2, v%d' % (u, t))
        a('v_add_u32 v%d, v%d, v%d' % (t, t, u))
        a('v_mad_i32_i24 v%d, v%d, -5, v%d' % (u, u, t))
        a('ds_write_b32 v%d, v%d' % (t, ri))
        a('ds_write_b16_d16_hi v%d, v%d offset:6' % (u, ro))

    def scatter(rin, rout, cnt, rem, between):
        G = 3
        ng = 24 // G
        mk = {}
        if rem:
            a('s_mov_b64 exec, %s' % sr(sREM, 2))
            rtn(10, OUTR, cnt)
            a('s_mov_b64 exec, -1')
        for e in range(G):
            rtn(TS_ + e, rout + e, cnt)
        mk[0] = a.mark()
        for g in range(ng):
            cur, nxt = TS_ + (g & 1) * G, TS_ + ((g + 1) & 1) * G
            if g + 1 < ng:
                for e in range(G):
                    rtn(nxt + e, rout + (g + 1) * G + e, cnt)
                mk[g + 1] = a.mark()
            a.wait_ds(mk[g])
            for e in range(G):
                put(cur + e, rin + g * G + e, rout + g * G + e, e)
            if rem and g == 0:
                a('s_mov_b64 exec, %s' % sr(sREM, 2))
                put(10, INR, OUTR, 1)
                a('s_mov_b64 exec, -1')
            between(g)

    rd = {}

    def readout(base, data):
        a('v_add_u32 v22, 0x10000, v%d' % O16)
        a('v_add_u32 v23, 0x20000, v%d' % O16)
        for j in range(10):
            b = (O16, 22, 23)[j >> 2]
            a('ds_read_b128 %s, v%d offset:%d' % (vr(base + 4 * j, 4), b, data + (j & 3) * 16384))
            rd[j] = a.mark()

    def store(base, srec, j, wait=False):
        a('s_mov_b32 s%d, %d' % (sT, j * 16384))
        if wait:
            a.wait_ds(rd[j])
        a('buffer_store_dwordx4 %s, v%d, %s, s%d offen %s' % (vr(base + 4 * j, 4), O16, sr(srec, 4), sT, st))

    loads(0)
    loads(1)
    a('s_cmp_lg_u32 s%d, 0' % sPREP)
    a('s_barrier')
    a('s_cbranch_scc1 Lk1_noprep')
    a.nocount = True
    nds = a.nds
    prep(a, DATA, S_T0)
    a.nds = nds
    a.nocount = False
    a('Lk1_noprep:')
    for j in range(6):
        loads(j + 2)
        pack(j)
    stamp(a, 1, S_DBG, 96, 126)
    scan(0, CNTA, DATA, S_REC)
    stamp(a, 2, S_DBG, 96, 126)

    def btw_a(g):
        if g & 1:
            pack(6 + g // 2)
        else:
            loads(8 + g // 2)

    scatter(INA, OUTA, CNTA, False, btw_a)
    stamp(a, 3, S_DBG, 96, 126)
    loads(12)
    pack(10)
    pack(11)
    pack(12)
    stamp(a, 4, S_DBG, 96, 126)
    npre = P['npre']
    scan(1, CNTB, DATB, S_REC2, lambda: readout(INA, DATA), lambda: [store(INA, S_REC, j) for j in range(npre)])
    stamp(a, 5, S_DBG, 96, 126)
    todo = list(range(npre, 10))

    def btw_b(g):
        k = -(-len(todo) // (8 - g))
        for _ in range(k):
            store(INA, S_REC, todo.pop(0))

    scatter(INB, OUTB, CNTB, True, btw_b)
    stamp(a, 6, S_DBG, 96, 126)
    a('s_waitcnt lgkmcnt(0)')
    a('s_barrier')
    readout(INB, DATB)
    for j in range(10):
        store(INB, S_REC2, j, True)
    stamp(a, 7, S_DBG, 96, 126)
    if P['stamp']:
        a('s_waitcnt vmcnt(0)')
        stamp(a, 8, S_DBG, 96, 126)
    a('Lk1_end:')
    a('s_endpgm')
    a.fence()
    return DATB + (25424 + 1024) * 6


def prep(a, PB, S_T0):
    L, O = 13, 27
    sS = 80
    sS = 48
    a('s_waitcnt vmcnt(6)')
    for i in range(4):
        a('ds_write_b128 v%d, %s offset:%d' % (O, vr(76 + 4 * i, 4), PB + 1024 * i))
    a('v_mov_b32 v4, 0')
    for i in range(16):
        a('v_dot2_f32_bf16 v4, v%d, v%d, v4' % (92 + i, 92 + i))
    scan64(a, 4, 'v_add_f32')
    a('v_readlane_b32 s14, v4, 63')
    a('v_bfe_u32 v5, v%d, 3, 2' % L)
    a('v_and_b32 v6, 3, v%d' % L)
    a('v_lshl_or_b32 v5, v5, 2, v6')
    a('v_lshlrev_b32 v5, 1, v5')
    a('v_bfe_u32 v7, v%d, 2, 1' % L)
    a('v_lshrrev_b32 v8, 5, v%d' % L)
    a('s_waitcnt lgkmcnt(0)')
    for k in range(24):
        a('ds_read_u16 v%d, v5 offset:%d' % (76 + k, PB + 32 * k))
        if k % 8 == 7:
            a('s_waitcnt lgkmcnt(0)')
    for k in range(16):
        a('ds_read_u16 v%d, v5 offset:%d' % (100 + k, PB + 1024 + 32 * k))
        if k % 8 == 7:
            a('s_waitcnt lgkmcnt(0)')
    a('v_lshl_add_u32 v9, v8, 8, v5')
    for k in range(8):
        a('ds_read_u16 v%d, v9 offset:%d' % (116 + k, PB + 1024 + 32 * k))
    a('s_waitcnt lgkmcnt(0)')
    for k in range(48):
        a('v_lshlrev_b32 v%d, 16, v%d' % (76 + k, 76 + k))
    a('v_mul_f32 v9, v76, v76')
    for k in range(1, 24):
        a('v_fmac_f32 v9, v%d, v%d' % (76 + k, 76 + k))
    a('v_mul_f32 v10, v100, v100')
    for k in range(1, 16):
        a('v_fmac_f32 v10, v%d, v%d' % (100 + k, 100 + k))
    a('v_log_f32 v9, v9')
    a('v_log_f32 v10, v10')
    a('v_log_f32 v11, s14')
    a('v_add_f32 v10, v10, v9')
    a('v_add_f32 v10, v10, v11')
    c0 = math.log2(P['target']) - 0.5 * math.log2(0.1625 / 2048)
    a('v_mov_b32 v11, 0x%x' % f2u(c0))
    a('v_fmac_f32 v11, -0.5, v10')
    a('v_floor_f32 v11, v11')
    a('v_mul_f32 v9, 0.5, v9')
    a('v_floor_f32 v9, v9')
    a('s_mov_b32 s14, 0x%x' % f2u(40.0))
    a('v_med3_f32 v11, v11, -s14, s14')
    a('v_med3_f32 v9, -v9, -s14, s14')
    a('v_cvt_i32_f32 v11, v11')
    a('v_cvt_i32_f32 v9, v9')
    a('v_sub_u32 v10, v11, v9')
    a('v_subrev_u32 v10, 16, v10')
    for j in range(16):
        a('v_readlane_b32 s%d, v11, %d' % (sS + j, ((j >> 2) << 3) | (j & 3)))
    srd(a, S_T0, 78, 8192, str(PREP0))
    a('v_xor_b32 v4, v7, v8')
    a('v_subrev_u32 v4, 1, v4')
    a('v_subrev_u32 v6, 1, v7')
    a('v_sub_u32 v7, 0, v7')
    for k in range(24):
        a('v_ldexp_f32 v%d, v%d, v9' % (76 + k, 76 + k))
    if P['l2x']:
        for k in range(16):
            a('v_ldexp_f32 v%d, v%d, v10' % (100 + k, 100 + k))
        for jj in range(8):
            a('v_cvt_pk_bf16_f32 v%d, v%d, v%d' % (116 + jj, 100 + 2 * jj, 101 + 2 * jj))
    else:
        for k in range(8):
            a('v_ldexp_f32 v%d, v%d, v10' % (116 + k, 116 + k))
    for l in range(3):
        for jj in range(4):
            a('v_cvt_pk_f16_f32 v%d, v%d, v%d' % (100 + 4 * l + jj, 76 + 6 * jj + l, 76 + 6 * jj + 3 + l))
            a('v_and_b32 v%d, v%d, v4' % (100 + 4 * l + jj, 100 + 4 * l + jj))
        a('buffer_store_dwordx4 %s, v%d, %s, 0 offen offset:%d' % (vr(100 + 4 * l, 4), O, sr(S_T0, 4), 1024 * l))
    if P['l2x']:
        for jj in range(4):
            a('v_and_b32 v%d, v%d, v4' % (112 + jj, 116 + jj))
            a('v_and_b32 v%d, v%d, v4' % (120 + jj, 120 + jj))
    else:
        for jj in range(4):
            a('v_cvt_pk_bf16_f32 v%d, v%d, v%d' % (116 + jj, 116 + 2 * jj, 117 + 2 * jj))
        for jj in range(4):
            a('v_and_b32 v%d, v%d, v6' % (112 + jj, 116 + jj))
            a('v_and_b32 v%d, v%d, v7' % (120 + jj, 116 + jj))
    a('v_add_u32 v11, 4096, v%d' % O)
    a('buffer_store_dwordx4 v[112:115], v%d, %s, 0 offen offset:3072' % (O, sr(S_T0, 4)))
    a('buffer_store_dwordx4 v[120:123], v11, %s, 0 offen' % sr(S_T0, 4))
    a('v_bfe_u32 v5, v%d, 2, 1' % L)
    a('v_bfe_u32 v6, v%d, 3, 1' % L)
    a('v_lshl_or_b32 v5, v5, 1, v6')
    a('v_and_b32 v6, 3, v%d' % L)
    a('v_lshl_or_b32 v5, v5, 2, v6')
    a('v_lshlrev_b32 v5, 1, v5')
    a('v_bfe_u32 v7, v%d, 4, 1' % L)
    a('v_xor_b32 v4, v7, v8')
    a('v_subrev_u32 v4, 1, v4')
    for k in range(16):
        a('ds_read_u16 v%d, v5 offset:%d' % (76 + k, PB + 2048 + 32 * k))
        if k % 8 == 7:
            a('s_waitcnt lgkmcnt(0)')
    for k in range(8):
        a('ds_read_u16 v%d, v5 offset:%d' % (92 + k, PB + 3072 + 32 * k))
    a('s_waitcnt lgkmcnt(0)')
    for k in range(24):
        a('v_lshlrev_b32 v%d, 16, v%d' % (76 + k, 76 + k))
    a('v_mul_f32 v9, v92, v92')
    for k in range(1, 8):
        a('v_fmac_f32 v9, v%d, v%d' % (92 + k, 92 + k))
    a('v_log_f32 v9, v9')
    a('v_mul_f32 v9, 0.5, v9')
    a('v_floor_f32 v9, v9')
    a('v_med3_f32 v9, v9, -s14, s14')
    a('v_cvt_i32_f32 v9, v9')
    a('v_sub_u32 v10, 0, v9')
    for k in range(8):
        a('v_ldexp_f32 v%d, v%d, v10' % (92 + k, 92 + k))
    for k in range(16):
        a('v_subrev_u32 v6, s%d, v9' % (sS + k))
        a('v_ldexp_f32 v%d, v%d, v6' % (76 + k, 76 + k))
    for jj in range(8):
        a('v_cvt_pk_bf16_f32 v%d, v%d, v%d' % (76 + jj, 76 + 2 * jj, 77 + 2 * jj))
        a('v_and_b32 v%d, v%d, v4' % (76 + jj, 76 + jj))
    for jj in range(4):
        a('v_cvt_pk_f16_f32 v%d, v%d, v%d' % (84 + jj, 92 + 2 * jj, 93 + 2 * jj))
        a('v_and_b32 v%d, v%d, v4' % (84 + jj, 84 + jj))
    for i in range(3):
        a('buffer_store_dwordx4 %s, v11, %s, 0 offen offset:%d' % (vr(76 + 4 * i, 4), sr(S_T0, 4), 1024 * (i + 1)))
    a('s_nop 1')


from gen_k2p import k2


def main():
    a = Asm()
    body = Asm()
    out = []
    kernels = []
    for nm, fn in (('bin_kernel', k1), ('acc_kernel', k2)):
        b = Asm()
        if fn is k2:
            lds = fn(b, P, globals())
        else:
            lds = fn(b)
        kernels.append((nm, b, lds))
        if P['only1']:
            break
    hdr = open('cdna_kernels/%s.s.ref' % NAME).read().split('\n')
    hdr = [l for l in hdr if l.startswith(';') and '@launch' not in l and 'Override launch' not in l and 'grid=ceil' not in l]
    out += hdr
    for nm, b, lds in kernels:
        out.append('; @launch kernel=%s grid=(256,1,1) block=(%d,1,1) lds=%d' % (nm, 1024 if nm[0] == 'b' else 512, lds))
    if P['k2x']:
        out.append(out[-1])
    out.append('.amdgcn_target "amdgcn-amd-amdhsa--gfx950"')
    out.append('.text')
    for nm, b, lds in kernels:
        out.append('.globl %s\n.p2align 8\n.type %s,@function\n%s:' % (nm, nm, nm))
        out.append(b.text())
    out.append('.section .rodata,"a"')
    for nm, b, lds in kernels:
        out.append('''.p2align 6
.amdhsa_kernel %s
  .amdhsa_next_free_vgpr %d
  .amdhsa_next_free_sgpr 102
  .amdhsa_accum_offset %d
  .amdhsa_group_segment_fixed_size 0
  .amdhsa_kernarg_size 112
  .amdhsa_user_sgpr_count 2
  .amdhsa_user_sgpr_kernarg_segment_ptr 1
  .amdhsa_system_sgpr_workgroup_id_x 1
.end_amdhsa_kernel''' % (nm, 128 if nm[0] == 'b' else 256, 128 if nm[0] == 'b' else 256))
    open(sys.argv[1], 'w').write('\n'.join(out) + '\n')


main()
```

```python
import sys, math, struct
from asmlib import Asm

NAME = 'gather_scatter__molecular_angular_gemnet__graph'
E, T = 800000, 12800000
BINE = 3125
TS = 158976
TSP = TS // 12
REC0 = 12288
DESC0 = 0x4F00000
PREP0 = 0x5200000
WS_BYTES = 268435456

P = dict(ld1='nt', st1='', ldrec='', stout='', target=180.0, theta=64, bar=16, stamp=0, force_slow=0, abl=0, idm=0xfffff, goff=0, cpf=0, dv=4, warm=1, mbar=1, sdwa=1, npre=2, only1=0, stw=0, k2x=0, rd2=1, l2x=0, recm=0, ldg='')
for a in sys.argv[2:]:
    k, v = a.split('=')
    P[k] = type(P[k])(v.replace('+',' ')) if not isinstance(P[k], int) else int(v, 0)


def f2u(x):
    return struct.unpack('<I', struct.pack('<f', x))[0]


def vr(a, n):
    return 'v[%d:%d]' % (a, a + n - 1)


def sr(a, n):
    return 's[%d:%d]' % (a, a + n - 1)


def srd(a, d, ptr, nbytes, off=None, stride=0):
    if off is None:
        a('s_mov_b32 s%d, s%d' % (d, ptr))
        a('s_mov_b32 s%d, s%d' % (d + 1, ptr + 1))
    else:
        a('s_add_u32 s%d, s%d, %s' % (d, ptr, off))
        a('s_addc_u32 s%d, s%d, 0' % (d + 1, ptr + 1))
    if stride:
        a('s_or_b32 s%d, s%d, 0x%x' % (d + 1, d + 1, stride << 16))
    a('s_mov_b32 s%d, %d' % (d + 2, nbytes))
    a('s_mov_b32 s%d, 0x20000' % (d + 3))


def scan64(a, v, op='v_add_u32'):
    for c in ('row_shr:1', 'row_shr:2', 'row_shr:4', 'row_shr:8'):
        a('%s_dpp v%d, v%d, v%d %s row_mask:0xf bank_mask:0xf' % (op, v, v, v, c))
    a('%s_dpp v%d, v%d, v%d row_bcast:15 row_mask:0xa bank_mask:0xf' % (op, v, v, v))
    a('%s_dpp v%d, v%d, v%d row_bcast:31 row_mask:0xc bank_mask:0xf' % (op, v, v, v))


def code_prefetch(a, tag, srdr, vt, nwg=16):
    a('s_cmp_ge_u32 s2, %d' % nwg)
    a('s_cbranch_scc1 Lcpf%s' % tag)
    a('s_getpc_b64 %s' % sr(srdr, 2))
    a('Lcpb%s:' % tag)
    a('s_mov_b32 s%d, Lk2_end-Lcpb%s' % (srdr + 2, tag))
    a('s_mov_b32 s%d, 0x20000' % (srdr + 3))
    a('v_lshlrev_b32 v%d, 7, v0' % vt)
    a.nocount = True
    a('buffer_load_dword v%d, v%d, %s, 0 offen' % (vt, vt, sr(srdr, 4)))
    a.nocount = False
    a('Lcpf%s:' % tag)


STAMP0 = 0x6000000


def stamp_init(a, sdbg, wsptr, kern, sw):
    if not P['stamp']:
        return
    a('s_lshl_b32 s100, s2, 7')
    a('s_add_u32 s100, s100, %d' % (STAMP0 + kern * 32768))
    srd(a, sdbg, wsptr, 128, 's100')
    stamp.sel = sw


def stamp(a, idx, sdbg, tmp_s, tmp_v, tmp_w=None):
    tmp_w = tmp_w or tmp_v + 1
    if not P['stamp']:
        return
    lab = 'Lst%d' % stamp.n
    stamp.n += 1
    a.nocount = True
    a('s_cmp_lg_u32 s%d, %d' % (stamp.sel, P['stw']))
    a('s_cbranch_scc1 %s' % lab)
    a('s_memrealtime %s' % sr(tmp_s, 2))
    a('s_waitcnt lgkmcnt(0)')
    a('v_mov_b32 v%d, s%d' % (tmp_v, tmp_s))
    a('v_mov_b32 v%d, %d' % (tmp_w, idx * 4))
    a('buffer_store_dword v%d, v%d, %s, 0 offen' % (tmp_v, tmp_w, sr(sdbg, 4)))
    a('s_memtime %s' % sr(tmp_s, 2))
    a('s_waitcnt lgkmcnt(0)')
    a('v_mov_b32 v%d, s%d' % (tmp_v, tmp_s))
    a('buffer_store_dword v%d, v%d, %s, 0 offen offset:64' % (tmp_v, tmp_w, sr(sdbg, 4)))
    a(lab + ':')
    a.nocount = False


stamp.n = 0
stamp.sel = 0


def k1(a):
    CNTB, SCR, CNTA = 0, 4096, 4224
    DATB, DATA = 4224, 8320
    S_IN, S_OUT, S_ANG, S_REC, S_DSC, S_T0, S_DBG = 24, 28, 32, 36, 40, 44, 92
    S_REC2 = 80
    sMB, sMC, sNEG, sHI, sT, sW = 64, 65, 66, 67, 68, 69
    sREM = 70
    sBASE, sPREP, sVB, sUM = 72, 73, 74, 75
    O16, O8, ONE, SIX = 1, 2, 3, 12
    TP = 4
    TS_ = 22
    ANG = 14
    ANGR = 13
    INA, OUTA, INB, OUTB, INR, OUTR = 28, 52, 76, 100, 124, 125
    ld = P['ld1']
    st = P['st1']

    a('s_cmp_ge_u32 s2, 256')
    a('s_cbranch_scc1 Lk1_end')
    a('s_load_dwordx4 s[4:7], s[0:1], 8')
    a('s_load_dwordx2 s[8:9], s[0:1], 32')
    a('s_load_dwordx4 s[76:79], s[0:1], 96')
    a('s_load_dwordx2 s[12:13], s[0:1], 0')
    a('s_load_dwordx8 s[16:23], s[0:1], 56')
    if P['cpf'] & 1:
        code_prefetch(a, 'a', 84, 127)
    a('v_lshlrev_b32 v%d, 4, v0' % O16)
    a('v_lshlrev_b32 v%d, 3, v0' % O8)
    a('v_mov_b32 v%d, 1' % ONE)
    a('v_mov_b32 v%d, 6' % SIX)
    a('v_lshrrev_b32 v4, 6, v0')
    a('v_readfirstlane_b32 s%d, v4' % sW)
    a('v_mov_b32 v4, 0')
    a('v_lshlrev_b32 v5, 2, v0')
    a('ds_write_b32 v5, v4 offset:%d' % CNTB)
    a('ds_write_b32 v5, v4 offset:%d' % CNTA)
    a('s_mov_b32 s%d, %d' % (sMB, -(-2**32 // BINE)))
    a('s_mov_b32 s%d, 21400' % sMC)
    a('s_mov_b32 s%d, %d' % (sNEG, -BINE))
    a('s_mov_b32 s%d, 0xffff0000' % sHI)
    a('s_mov_b32 s%d, 0x80008000' % sVB)
    a('s_mov_b32 s%d, 0xff000' % sUM)
    a('s_mul_i32 s14, s2, 200000')
    a('s_mul_i32 s15, s2, 100000')
    a('s_movk_i32 s%d, 848' % sT)
    a('v_cmp_gt_u32 %s, s%d, v0' % (sr(sREM, 2), sT))
    a('v_and_b32 v13, 63, v0')
    a('v_lshlrev_b32 v27, 4, v13')
    a('s_lshl_b32 s%d, s2, 4' % sPREP)
    a('s_or_b32 s%d, s%d, s%d' % (sPREP, sPREP, sW))
    a('s_waitcnt lgkmcnt(0)')
    srd(a, S_IN, 4, 200000, 's14')
    srd(a, S_OUT, 6, 200000, 's14')
    srd(a, S_ANG, 8, 100000, 's15')
    stamp_init(a, S_DBG, 78, 0, sW)
    stamp(a, 0, S_DBG, 96, 126)
    a('s_cmp_lg_u32 s%d, 0' % sPREP)
    a('s_cbranch_scc1 Lk1_main')
    a.nocount = True
    srd(a, S_T0, 18, 768)
    srd(a, S_T0 + 4, 20, 512)
    srd(a, S_T0 + 8, 22, 512)
    srd(a, S_T0 + 12, 16, 256)
    srd(a, S_T0 + 16, 12, E * 32)
    for i in range(4):
        a('buffer_load_dwordx4 %s, v27, %s, 0 offen' % (vr(76 + 4 * i, 4), sr(S_T0 + 4 * i, 4)))
    a('v_mul_u32_u24 v4, 99984, v13')
    for i in range(4):
        a('s_mov_b32 s%d, %d' % (sT, i * 64 * 99984))
        a('buffer_load_dwordx4 %s, v4, %s, s%d offen' % (vr(92 + 4 * i, 4), sr(S_T0 + 16, 4), sT))
    a.nocount = False
    a('Lk1_main:')
    a('s_lshl_b32 s14, s2, 1')
    a('s_mul_i32 s15, s14, %d' % TS)
    a('s_add_u32 s15, s15, %d' % REC0)
    srd(a, S_REC, 78, 0, 's15')
    a('s_add_u32 s15, s15, %d' % TS)
    srd(a, S_REC2, 78, 0, 's15')
    a('s_lshl_b32 s15, s14, 12')
    a('s_add_u32 s15, s15, %d' % DESC0)
    srd(a, S_DSC, 78, 8192, 's15')

    marks = {}

    def regs(j):
        return ((INA, OUTA) if j < 6 else (INB, OUTB)), 4 * (j % 6), ANG + 2 * (j % 4)

    def loads(j):
        if j == 12:
            a('v_lshlrev_b32 v10, 2, v0')
            a('v_lshlrev_b32 v11, 1, v0')
            a('s_mov_b32 s%d, %d' % (sT, 12 * 16384))
            a('buffer_load_dword v%d, v10, %s, s%d offen %s' % (OUTR, sr(S_OUT, 4), sT, ld))
            a('buffer_load_dword v%d, v10, %s, s%d offen %s' % (INR, sr(S_IN, 4), sT, ld))
            a('s_mov_b32 s%d, %d' % (sT, 12 * 8192))
            a('buffer_load_ushort v%d, v11, %s, s%d offen %s' % (ANGR, sr(S_ANG, 4), sT, ld))
        else:
            (rin, rout), o, rang = regs(j)
            a('s_mov_b32 s%d, %d' % (sT, j * 16384))
            a('buffer_load_dwordx4 %s, v%d, %s, s%d offen %s' % (vr(rout + o, 4), O16, sr(S_OUT, 4), sT, ld))
            a('buffer_load_dwordx4 %s, v%d, %s, s%d offen %s' % (vr(rin + o, 4), O16, sr(S_IN, 4), sT, ld))
            a('s_mov_b32 s%d, %d' % (sT, j * 8192))
            a('buffer_load_dwordx2 %s, v%d, %s, s%d offen %s' % (vr(rang, 2), O8, sr(S_ANG, 4), sT, ld))
        marks[j] = a.mark()

    def pack2(items, rg, cnt):
        a('v_or_b32 v%d, s%d, v%d' % (rg, sVB, rg))
        for e, (ri, ro) in enumerate(items):
            a('v_mul_hi_u32_u24 v%d, s%d, v%d' % (TP + e, sMB, ro))
            a('v_and_b32 v%d, s%d, v%d' % (TP + 2 + e, sUM, ri))
        for e, (ri, ro) in enumerate(items):
            a('v_mul_hi_u32_u24 v%d, s%d, v%d' % (TP + 2 + e, sMC, TP + 2 + e))
            a('v_mad_i32_i24 v%d, v%d, s%d, v%d' % (ro, TP + e, sNEG, ro))
        for e, (ri, ro) in enumerate(items):
            a('v_lshl_add_u32 v%d, v%d, 8, v%d' % (TP + e, TP + 2 + e, TP + e))
            a('v_lshl_or_b32 v%d, v%d, 20, v%d' % (ri, ro, ri))
        for e, (ri, ro) in enumerate(items):
            a('v_lshlrev_b32 v%d, 2, v%d' % (TP + e, TP + e))
        for e, (ri, ro) in enumerate(items):
            a('ds_add_u32 v%d, v%d offset:%d' % (TP + e, ONE, cnt))
            if e:
                a('v_and_or_b32 v%d, v%d, s%d, v%d' % (ro, rg, sHI, TP + e))
            else:
                a('v_lshl_or_b32 v%d, v%d, 16, v%d' % (ro, rg, TP + e))

    def pack(j):
        a.wait_vm(marks[j])
        if j == 12:
            a('s_mov_b64 exec, %s' % sr(sREM, 2))
            pack2([(INR, OUTR)], ANGR, CNTB)
            a('s_mov_b64 exec, -1')
            return
        (rin, rout), o, rang = regs(j)
        for h in range(2):
            pack2([(rin + o + 2 * h + e, rout + o + 2 * h + e) for e in range(2)], rang + h, CNTA if j < 6 else CNTB)

    def scan(sub, cnt, data, srec, mid1=None, mid2=None):
        a('v_lshlrev_b32 v10, 2, v0')
        a('s_waitcnt lgkmcnt(0)')
        a('s_barrier')
        a('ds_read_b32 v4, v10 offset:%d' % cnt)
        m = a.mark()
        if mid1:
            mid1()
        a('s_lshl_b32 s%d, s%d, 2' % (sT, sW))
        a('v_mov_b32 v8, s%d' % sT)
        a('v_and_b32 v9, 60, v10')
        a.wait_ds(m)
        a('v_add_u32 v6, 1, v4')
        a('v_lshrrev_b32 v6, 1, v6')
        a('v_mov_b32 v7, v6')
        scan64(a, 7)
        a('s_mov_b32 exec_lo, 0')
        a('s_mov_b32 exec_hi, 0x80000000')
        a('ds_write_b32 v8, v7 offset:%d' % SCR)
        a('s_mov_b64 exec, -1')
        a('s_waitcnt lgkmcnt(0)')
        a('s_barrier')
        a('ds_read_b32 v11, v9 offset:%d' % SCR)
        m = a.mark()
        if mid2:
            mid2()
        a('v_and_b32 v8, 255, v0')
        a('v_lshrrev_b32 v9, 8, v0')
        a('v_lshlrev_b32 v9, 2, v9')
        a('v_lshl_add_u32 v9, v8, 4, v9')
        a.wait_ds(m)
        a('v_mov_b32 v5, v11')
        for c in ('row_shr:1', 'row_shr:2', 'row_shr:4', 'row_shr:8'):
            a('v_add_u32_dpp v11, v11, v11 %s row_mask:0xf bank_mask:0xf' % c)
        a('v_sub_u32 v5, v11, v5')
        a('v_readlane_b32 s%d, v11, 15' % sT)
        a('v_readlane_b32 s%d, v5, s%d' % (sBASE, sW))
        a('s_mul_i32 s%d, s%d, 12' % (srec + 2, sT))
        a('v_add_u32 v7, s%d, v7' % sBASE)
        a('v_sub_u32 v6, v7, v6')
        a('s_movk_i32 s%d, %d' % (sT, data))
        a('v_mad_u32_u24 v6, v6, 12, s%d' % sT)
        a('ds_write_b32 v10, v6 offset:%d' % cnt)
        a('v_lshl_or_b32 v5, v4, 16, v7')
        a('v_mul_u32_u24 v7, 12, v7')
        a('v_mov_b32 v6, 0')
        a('v_and_b32 v4, 1, v4')
        a('v_cmpx_eq_u32 vcc, 1, v4')
        a('ds_write_b16 v7, v6 offset:%d' % (data - 8))
        a('s_mov_b64 exec, -1')
        a('s_movk_i32 s%d, %d' % (sT, sub * 4096))
        a('buffer_store_dword v5, v9, %s, s%d offen %s' % (sr(S_DSC, 4), sT, st))
        a('s_waitcnt lgkmcnt(0)')
        a('s_barrier')

    def rtn(t, ro, cnt):
        a('v_and_b32 v%d, 0xffff, v%d' % (t, ro))
        a('ds_add_rtn_u32 v%d, v%d, v%d offset:%d' % (t, t, SIX, cnt))

    def put(t, ri, ro, e):
        u = 8 + (e & 1)
        a('v_and_b32 v%d, 2, v%d' % (u, t))
        a('v_add_u32 v%d, v%d, v%d' % (t, t, u))
        a('v_mad_i32_i24 v%d, v%d, -5, v%d' % (u, u, t))
        a('ds_write_b32 v%d, v%d' % (t, ri))
        a('ds_write_b16_d16_hi v%d, v%d offset:6' % (u, ro))

    def scatter(rin, rout, cnt, rem, between):
        G = 3
        ng = 24 // G
        mk = {}
        if rem:
            a('s_mov_b64 exec, %s' % sr(sREM, 2))
            rtn(10, OUTR, cnt)
            a('s_mov_b64 exec, -1')
        for e in range(G):
            rtn(TS_ + e, rout + e, cnt)
        mk[0] = a.mark()
        for g in range(ng):
            cur, nxt = TS_ + (g & 1) * G, TS_ + ((g + 1) & 1) * G
            if g + 1 < ng:
                for e in range(G):
                    rtn(nxt + e, rout + (g + 1) * G + e, cnt)
                mk[g + 1] = a.mark()
            a.wait_ds(mk[g])
            for e in range(G):
                put(cur + e, rin + g * G + e, rout + g * G + e, e)
            if rem and g == 0:
                a('s_mov_b64 exec, %s' % sr(sREM, 2))
                put(10, INR, OUTR, 1)
                a('s_mov_b64 exec, -1')
            between(g)

    rd = {}

    def readout(base, data):
        a('v_add_u32 v22, 0x10000, v%d' % O16)
        a('v_add_u32 v23, 0x20000, v%d' % O16)
        for j in range(10):
            b = (O16, 22, 23)[j >> 2]
            a('ds_read_b128 %s, v%d offset:%d' % (vr(base + 4 * j, 4), b, data + (j & 3) * 16384))
            rd[j] = a.mark()

    def store(base, srec, j, wait=False):
        a('s_mov_b32 s%d, %d' % (sT, j * 16384))
        if wait:
            a.wait_ds(rd[j])
        a('buffer_store_dwordx4 %s, v%d, %s, s%d offen %s' % (vr(base + 4 * j, 4), O16, sr(srec, 4), sT, st))

    loads(0)
    loads(1)
    a('s_cmp_lg_u32 s%d, 0' % sPREP)
    a('s_barrier')
    a('s_cbranch_scc1 Lk1_noprep')
    a.nocount = True
    nds = a.nds
    prep(a, DATA, S_T0)
    a.nds = nds
    a.nocount = False
    a('Lk1_noprep:')
    for j in range(6):
        loads(j + 2)
        pack(j)
    stamp(a, 1, S_DBG, 96, 126)
    scan(0, CNTA, DATA, S_REC)
    stamp(a, 2, S_DBG, 96, 126)

    def btw_a(g):
        if g & 1:
            pack(6 + g // 2)
        else:
            loads(8 + g // 2)

    scatter(INA, OUTA, CNTA, False, btw_a)
    stamp(a, 3, S_DBG, 96, 126)
    loads(12)
    pack(10)
    pack(11)
    pack(12)
    stamp(a, 4, S_DBG, 96, 126)
    npre = P['npre']
    scan(1, CNTB, DATB, S_REC2, lambda: readout(INA, DATA), lambda: [store(INA, S_REC, j) for j in range(npre)])
    stamp(a, 5, S_DBG, 96, 126)
    todo = list(range(npre, 10))

    def btw_b(g):
        k = -(-len(todo) // (8 - g))
        for _ in range(k):
            store(INA, S_REC, todo.pop(0))

    scatter(INB, OUTB, CNTB, True, btw_b)
    stamp(a, 6, S_DBG, 96, 126)
    a('s_waitcnt lgkmcnt(0)')
    a('s_barrier')
    readout(INB, DATB)
    for j in range(10):
        store(INB, S_REC2, j, True)
    stamp(a, 7, S_DBG, 96, 126)
    if P['stamp']:
        a('s_waitcnt vmcnt(0)')
        stamp(a, 8, S_DBG, 96, 126)
    a('Lk1_end:')
    a('s_endpgm')
    a.fence()
    return DATB + (25424 + 1024) * 6


def prep(a, PB, S_T0):
    L, O = 13, 27
    sS = 80
    sS = 48
    a('s_waitcnt vmcnt(6)')
    for i in range(4):
        a('ds_write_b128 v%d, %s offset:%d' % (O, vr(76 + 4 * i, 4), PB + 1024 * i))
    a('v_mov_b32 v4, 0')
    for i in range(16):
        a('v_dot2_f32_bf16 v4, v%d, v%d, v4' % (92 + i, 92 + i))
    scan64(a, 4, 'v_add_f32')
    a('v_readlane_b32 s14, v4, 63')
    a('v_bfe_u32 v5, v%d, 3, 2' % L)
    a('v_and_b32 v6, 3, v%d' % L)
    a('v_lshl_or_b32 v5, v5, 2, v6')
    a('v_lshlrev_b32 v5, 1, v5')
    a('v_bfe_u32 v7, v%d, 2, 1' % L)
    a('v_lshrrev_b32 v8, 5, v%d' % L)
    a('s_waitcnt lgkmcnt(0)')
    for k in range(24):
        a('ds_read_u16 v%d, v5 offset:%d' % (76 + k, PB + 32 * k))
        if k % 8 == 7:
            a('s_waitcnt lgkmcnt(0)')
    for k in range(16):
        a('ds_read_u16 v%d, v5 offset:%d' % (100 + k, PB + 1024 + 32 * k))
        if k % 8 == 7:
            a('s_waitcnt lgkmcnt(0)')
    a('v_lshl_add_u32 v9, v8, 8, v5')
    for k in range(8):
        a('ds_read_u16 v%d, v9 offset:%d' % (116 + k, PB + 1024 + 32 * k))
    a('s_waitcnt lgkmcnt(0)')
    for k in range(48):
        a('v_lshlrev_b32 v%d, 16, v%d' % (76 + k, 76 + k))
    a('v_mul_f32 v9, v76, v76')
    for k in range(1, 24):
        a('v_fmac_f32 v9, v%d, v%d' % (76 + k, 76 + k))
    a('v_mul_f32 v10, v100, v100')
    for k in range(1, 16):
        a('v_fmac_f32 v10, v%d, v%d' % (100 + k, 100 + k))
    a('v_log_f32 v9, v9')
    a('v_log_f32 v10, v10')
    a('v_log_f32 v11, s14')
    a('v_add_f32 v10, v10, v9')
    a('v_add_f32 v10, v10, v11')
    c0 = math.log2(P['target']) - 0.5 * math.log2(0.1625 / 2048)
    a('v_mov_b32 v11, 0x%x' % f2u(c0))
    a('v_fmac_f32 v11, -0.5, v10')
    a('v_floor_f32 v11, v11')
    a('v_mul_f32 v9, 0.5, v9')
    a('v_floor_f32 v9, v9')
    a('s_mov_b32 s14, 0x%x' % f2u(40.0))
    a('v_med3_f32 v11, v11, -s14, s14')
    a('v_med3_f32 v9, -v9, -s14, s14')
    a('v_cvt_i32_f32 v11, v11')
    a('v_cvt_i32_f32 v9, v9')
    a('v_sub_u32 v10, v11, v9')
    a('v_subrev_u32 v10, 16, v10')
    for j in range(16):
        a('v_readlane_b32 s%d, v11, %d' % (sS + j, ((j >> 2) << 3) | (j & 3)))
    srd(a, S_T0, 78, 8192, str(PREP0))
    a('v_xor_b32 v4, v7, v8')
    a('v_subrev_u32 v4, 1, v4')
    a('v_subrev_u32 v6, 1, v7')
    a('v_sub_u32 v7, 0, v7')
    for k in range(24):
        a('v_ldexp_f32 v%d, v%d, v9' % (76 + k, 76 + k))
    if P['l2x']:
        for k in range(16):
            a('v_ldexp_f32 v%d, v%d, v10' % (100 + k, 100 + k))
        for jj in range(8):
            a('v_cvt_pk_bf16_f32 v%d, v%d, v%d' % (116 + jj, 100 + 2 * jj, 101 + 2 * jj))
    else:
        for k in range(8):
            a('v_ldexp_f32 v%d, v%d, v10' % (116 + k, 116 + k))
    for l in range(3):
        for jj in range(4):
            a('v_cvt_pk_f16_f32 v%d, v%d, v%d' % (100 + 4 * l + jj, 76 + 6 * jj + l, 76 + 6 * jj + 3 + l))
            a('v_and_b32 v%d, v%d, v4' % (100 + 4 * l + jj, 100 + 4 * l + jj))
        a('buffer_store_dwordx4 %s, v%d, %s, 0 offen offset:%d' % (vr(100 + 4 * l, 4), O, sr(S_T0, 4), 1024 * l))
    if P['l2x']:
        for jj in range(4):
            a('v_and_b32 v%d, v%d, v4' % (112 + jj, 116 + jj))
            a('v_and_b32 v%d, v%d, v4' % (120 + jj, 120 + jj))
    else:
        for jj in range(4):
            a('v_cvt_pk_bf16_f32 v%d, v%d, v%d' % (116 + jj, 116 + 2 * jj, 117 + 2 * jj))
        for jj in range(4):
            a('v_and_b32 v%d, v%d, v6' % (112 + jj, 116 + jj))
            a('v_and_b32 v%d, v%d, v7' % (120 + jj, 116 + jj))
    a('v_add_u32 v11, 4096, v%d' % O)
    a('buffer_store_dwordx4 v[112:115], v%d, %s, 0 offen offset:3072' % (O, sr(S_T0, 4)))
    a('buffer_store_dwordx4 v[120:123], v11, %s, 0 offen' % sr(S_T0, 4))
    a('v_bfe_u32 v5, v%d, 2, 1' % L)
    a('v_bfe_u32 v6, v%d, 3, 1' % L)
    a('v_lshl_or_b32 v5, v5, 1, v6')
    a('v_and_b32 v6, 3, v%d' % L)
    a('v_lshl_or_b32 v5, v5, 2, v6')
    a('v_lshlrev_b32 v5, 1, v5')
    a('v_bfe_u32 v7, v%d, 4, 1' % L)
    a('v_xor_b32 v4, v7, v8')
    a('v_subrev_u32 v4, 1, v4')
    for k in range(16):
        a('ds_read_u16 v%d, v5 offset:%d' % (76 + k, PB + 2048 + 32 * k))
        if k % 8 == 7:
            a('s_waitcnt lgkmcnt(0)')
    for k in range(8):
        a('ds_read_u16 v%d, v5 offset:%d' % (92 + k, PB + 3072 + 32 * k))
    a('s_waitcnt lgkmcnt(0)')
    for k in range(24):
        a('v_lshlrev_b32 v%d, 16, v%d' % (76 + k, 76 + k))
    a('v_mul_f32 v9, v92, v92')
    for k in range(1, 8):
        a('v_fmac_f32 v9, v%d, v%d' % (92 + k, 92 + k))
    a('v_log_f32 v9, v9')
    a('v_mul_f32 v9, 0.5, v9')
    a('v_floor_f32 v9, v9')
    a('v_med3_f32 v9, v9, -s14, s14')
    a('v_cvt_i32_f32 v9, v9')
    a('v_sub_u32 v10, 0, v9')
    for k in range(8):
        a('v_ldexp_f32 v%d, v%d, v10' % (92 + k, 92 + k))
    for k in range(16):
        a('v_subrev_u32 v6, s%d, v9' % (sS + k))
        a('v_ldexp_f32 v%d, v%d, v6' % (76 + k, 76 + k))
    for jj in range(8):
        a('v_cvt_pk_bf16_f32 v%d, v%d, v%d' % (76 + jj, 76 + 2 * jj, 77 + 2 * jj))
        a('v_and_b32 v%d, v%d, v4' % (76 + jj, 76 + jj))
    for jj in range(4):
        a('v_cvt_pk_f16_f32 v%d, v%d, v%d' % (84 + jj, 92 + 2 * jj, 93 + 2 * jj))
        a('v_and_b32 v%d, v%d, v4' % (84 + jj, 84 + jj))
    for i in range(3):
        a('buffer_store_dwordx4 %s, v11, %s, 0 offen offset:%d' % (vr(76 + 4 * i, 4), sr(S_T0, 4), 1024 * (i + 1)))
    a('s_nop 1')


from gen_k2p import k2


def main():
    a = Asm()
    body = Asm()
    out = []
    kernels = []
    for nm, fn in (('bin_kernel', k1), ('acc_kernel', k2)):
        b = Asm()
        if fn is k2:
            lds = fn(b, P, globals())
        else:
            lds = fn(b)
        kernels.append((nm, b, lds))
        if P['only1']:
            break
    hdr = open('cdna_kernels/%s.s.ref' % NAME).read().split('\n')
    hdr = [l for l in hdr if l.startswith(';') and '@launch' not in l and 'Override launch' not in l and 'grid=ceil' not in l]
    out += hdr
    for nm, b, lds in kernels:
        out.append('; @launch kernel=%s grid=(256,1,1) block=(%d,1,1) lds=%d' % (nm, 1024 if nm[0] == 'b' else 512, lds))
    if P['k2x']:
        out.append(out[-1])
    out.append('.amdgcn_target "amdgcn-amd-amdhsa--gfx950"')
    out.append('.text')
    for nm, b, lds in kernels:
        out.append('.globl %s\n.p2align 8\n.type %s,@function\n%s:' % (nm, nm, nm))
        out.append(b.text())
    out.append('.section .rodata,"a"')
    for nm, b, lds in kernels:
        out.append('''.p2align 6
.amdhsa_kernel %s
  .amdhsa_next_free_vgpr %d
  .amdhsa_next_free_sgpr 102
  .amdhsa_accum_offset %d
  .amdhsa_group_segment_fixed_size 0
  .amdhsa_kernarg_size 112
  .amdhsa_user_sgpr_count 2
  .amdhsa_user_sgpr_kernarg_segment_ptr 1
  .amdhsa_system_sgpr_workgroup_id_x 1
.end_amdhsa_kernel''' % (nm, 128 if nm[0] == 'b' else 256, 128 if nm[0] == 'b' else 256))
    open(sys.argv[1], 'w').write('\n'.join(out) + '\n')


main()
```

```python
import math


def k2(a, P, G):
    vr, sr, srd, f2u = G['vr'], G['sr'], G['srd'], G['f2u']
    E, BINE, TS, TSP = G['E'], G['BINE'], G['TS'], G['TSP']
    REC0, DESC0, PREP0, WS_BYTES = G['REC0'], G['DESC0'], G['PREP0'], G['WS_BYTES']
    PL = BINE * 4
    RBF0 = 5 * PL + 12
    HI0 = RBF0 + BINE * 16
    SCR = HI0 + 4 * PL
    LDS = SCR + 128
    KC0, TB0, BB0, SC0, RING0 = 0, 6400, 15104, 19200, 19456
    NSL = 15
    NBLK = 51
    NQ = 7
    S_M, S_MR, S_WS, S_DIST, S_MO, S_OUT, S_DBG = 16, 20, 24, 28, 32, 36, 92
    sCEN = 40
    sW, sBIN, sT, sT2 = 48, 49, 50, 51
    sM0, sM1, sIDM, sHI, sA16 = 52, 53, 54, 55, 56
    sPASS, sMODE, sIX = 57, 58, 59
    sV6 = 60
    sMK = 62
    sFL, sSK = 64, 78
    sPc = 64
    sR, sTB, sRB, sRE, sPS = 69, 70, 71, 72, 73
    sLO = 74
    sMA = 76
    sLM = 84
    sEND = 88
    sEW = 80
    sF, sE, sDL, sI, sP, sNT, sSUB = 4, 5, 6, 7, 8, 9, 10
    LANE, S0 = 1, 2
    AG, AM, GATE, MD = 164, 176, 184, 200
    GB = (156, 216)
    SBF, RBF = 224, 232
    IA, IB = 236, 238
    A16, ANG = (240, 241), (242, 243)
    A4, A4B, CV = 244, 245, 246
    RTN = (247, 248)
    STK, CK, TM = 249, 250, 251
    RAW = 156
    RT, RA = 216, 232
    TA, NA = 240, 2
    TF = (244, 245)
    TH, VM, ONE, EIGHT, L12, RBA, WD, WA = 246, 248, 249, 250, 251, 252, 253, 254
    lab = [0]

    def stamp(i, late=False):
        G['stamp'](a, i, S_DBG, 96, *((155, 254) if late else (235, 255)))

    def plane(j):
        return (A4, j * PL) if j < 5 else (A4B, (j - 5) * PL)

    def desc_load(dst, tb):
        a('v_lshlrev_b32 v%d, 12, v0' % tb)
        a('s_lshl_b32 s%d, s%d, 4' % (sT, sBIN))
        a('s_add_u32 s%d, s%d, %d' % (sT, sT, DESC0))
        a('buffer_load_dwordx4 %s, v%d, %s, s%d offen' % (vr(dst, 4), tb, sr(S_WS, 4), sT))

    def scan4(v):
        for c, rm in (('row_shr:1', 15), ('row_shr:2', 15), ('row_shr:4', 15), ('row_shr:8', 15), ('row_bcast:15', 10), ('row_bcast:31', 12)):
            for k in range(4):
                a('v_add_u32_dpp v%d, v%d, v%d %s row_mask:0x%x bank_mask:0xf' % (v + k, v + k, v + k, c, rm))

    def img_load(first, n, dst, t):
        a('v_lshlrev_b32 v%d, 4, v%d' % (t, LANE))
        for i in range(n):
            a('s_mov_b32 s%d, %d' % (sT, PREP0 + 1024 * (first + i)))
            a('buffer_load_dwordx4 %s, v%d, %s, s%d offen' % (vr(dst + 4 * i, 4), t, sr(S_WS, 4), sT))

    def gathers(q):
        a('buffer_load_dwordx4 %s, %s, %s, 0 idxen offen' % (vr(GB[q], 4), vr(IA, 2), sr(S_M, 4)))
        a('buffer_load_dwordx4 %s, %s, %s, 0 idxen offen' % (vr(GB[q] + 4, 4), vr(IB, 2), sr(S_M, 4)))

    def cosines(p):
        c1, c3, c2 = TM, TM + 1, TM + 2
        a('v_mul_f32 v%d, 0x40400000, v%d' % (c3, ANG[p]))
        a('v_mul_f32 v%d, 0.15915494, v%d' % (c1, ANG[p]))
        a('v_cvt_pk_bf16_f32 v%d, 0, v%d' % (c3, c3))
        a('v_fract_f32 v%d, v%d' % (c1, c1))
        a('v_mul_f32 v%d, 0.15915494, v%d' % (c3, c3))
        a('v_cos_f32 v%d, v%d' % (c1, c1))
        a('v_fract_f32 v%d, v%d' % (c3, c3))
        a('v_add_f32 v%d, v%d, v%d' % (c2, c1, c1))
        a('v_cos_f32 v%d, v%d' % (c3, c3))
        a('v_fma_f32 v%d, v%d, v%d, -1.0' % (c2, c2, c1))
        a('v_cvt_pk_f16_f32 v%d, v%d, v%d' % (c1, c1, c2))
        a('v_cvt_f16_f32 v%d, v%d' % (c3, c3))

    def sbf(l):
        src, sel = ((TM, 0), (TM, 1), (TM + 1, 0))[l]
        for j in range(4):
            a('v_pk_mul_f16 v%d, v%d, v%d op_sel:[0,%d] op_sel_hi:[1,%d]' % (SBF + 4 * (l & 1) + j, RBF + j, src, sel, sel))

    def gmf(l):
        a('v_mfma_f32_32x32x16_f16 %s, %s, %s, %s' % (vr(GATE, 16), vr(AG + 4 * l, 4), vr(SBF + 4 * (l & 1), 4), vr(GATE, 16) if l else '0'))

    def mdown(p):
        a('v_mfma_f32_32x32x16_bf16 %s, %s, %s, 0' % (vr(MD, 16), vr(AM, 4), vr(GB[p], 4)))
        a('v_mfma_f32_32x32x16_bf16 %s, %s, %s, %s' % (vr(MD, 16), vr(AM + 4, 4), vr(GB[p] + 4, 4), vr(MD, 16)))

    def addrs(p):
        a('v_lshrrev_b32 v%d, 2, v%d' % (A4, A16[p]))
        a('v_add_u32 v%d, %d, v%d' % (A4B, HI0, A4))

    def decode_rel(p, base):
        a('s_set_gpr_idx_on s%d, gpr_idx(SRC1)' % sIX)
        a('s_nop 0')
        a('v_and_b32 v%d, s%d, v%d' % (IA, sIDM, S0 + base + p))
        a('v_and_b32 v%d, s%d, v%d' % (IB, sIDM, S0 + base + p))
        if P['sdwa']:
            a('v_and_b32_sdwa v%d, s%d, v%d dst_sel:DWORD dst_unused:UNUSED_PAD src0_sel:DWORD src1_sel:WORD_1' % (A16[p], sA16, S0 + base + p))
        else:
            a('v_lshrrev_b32 v%d, 16, v%d' % (A16[p], S0 + base + p))
        if p:
            a('v_and_b32 v%d, s%d, v%d' % (ANG[p], sHI, S0 + base + 2))
        else:
            a('v_lshlrev_b32 v%d, 16, v%d' % (ANG[p], S0 + base + 2))
        a('s_set_gpr_idx_off')
        a('v_permlane32_swap_b32 v%d, v%d' % (IA, IB))
        if not P['sdwa']:
            a('v_and_b32 v%d, s%d, v%d' % (A16[p], sA16, A16[p]))

    def step(p):
        q = 1 - p
        ab = P['abl']
        vq = (lambda t: None) if ab & 4 else a
        vb = (lambda t: None) if ab & 68 else a
        va = (lambda t: None) if ab & 1 else a
        a('s_waitcnt vmcnt(2)')
        if not ab & 16:
            mdown(p)
        if not ab & 32:
            cosines(p)
        a('s_waitcnt lgkmcnt(%d)' % (0 if ab & 1 else 9))
        if not ab & 32:
            sbf(0)
        addrs(p)
        if not ab & 8:
            gmf(0)
        if not ab & 32:
            sbf(1)
        a('v_or_b32 v%d, v%d, v%d' % (STK, STK, RTN[p]))
        a('s_cmp_eq_u32 s%d, s%d' % (sIX, sEND))
        if not ab & 8:
            gmf(1)
        if not ab & 32:
            sbf(2)
        a('ds_read_b128 %s, v%d offset:%d' % (vr(RBF, 4), A16[q], RBF0))
        a('s_cselect_b64 %s, %s, -1' % (sr(sMK, 2), sr(sLM + 2 * p, 2)))
        if not ab & 8:
            gmf(2)
        decode_rel(p, 3)
        gathers(p)
        a('s_mov_b64 exec, %s' % sr(sMK, 2))
        for j in range(8):
            vq('v_fma_f32 v%d, v%d, v%d, s%d' % (MD + 2 * j, MD + 2 * j, GATE + 2 * j, sM0))
            vq('v_fma_f32 v%d, v%d, v%d, s%d' % (MD + 2 * j + 1, MD + 2 * j + 1, GATE + 2 * j + 1, sM0))
            if j:
                jj = j - 1
                vb('v_sad_u16 v%d, v%d, s%d, v%d' % (TM + (jj >> 1), MD + 2 * jj, sM1, TM + (jj >> 1) if jj & 1 else CK))
            vq('v_cvt_pknorm_u16_f32 v%d, v%d, v%d' % (MD + 2 * j, MD + 2 * j, MD + 2 * j + 1))
            b, o = plane(j)
            va('ds_add_u32 v%d, v%d offset:%d' % (b, MD + 2 * j, o))
        vb('v_max3_u32 v%d, v%d, v%d, v%d' % (CV, TM, TM + 1, TM + 2))
        vb('v_sad_u16 v%d, v%d, s%d, v%d' % (TM + 3, MD + 14, sM1, TM + 3))
        vb('v_max_u32 v%d, v%d, v%d' % (CV, CV, TM + 3))
        va('ds_add_rtn_u32 v%d, v%d, v%d offset:%d' % (RTN[p], A4B, CV, 3 * PL))
        a('s_mov_b64 exec, -1')

    a('s_cmp_ge_u32 s2, 256')
    a('s_cbranch_scc1 Lk2_end')
    a('s_load_dwordx2 s[4:5], s[0:1], 0')
    a('s_load_dwordx2 s[6:7], s[0:1], 24')
    a('s_load_dwordx2 s[8:9], s[0:1], 40')
    a('s_load_dwordx2 s[10:11], s[0:1], 88')
    a('s_load_dwordx4 s[12:15], s[0:1], 96')
    if P['cpf'] & 2:
        G['code_prefetch'](a, 'b', 88, 3)
    a('v_lshrrev_b32 v2, 6, v0')
    a('v_and_b32 v%d, 63, v0' % LANE)
    a('v_readfirstlane_b32 s%d, v2' % sW)
    a('s_and_b32 s%d, s2, 7' % sBIN)
    a('s_lshl_b32 s%d, s%d, 5' % (sBIN, sBIN))
    a('s_lshr_b32 s%d, s2, 3' % sT)
    a('s_add_u32 s%d, s%d, s%d' % (sBIN, sBIN, sT))
    a('s_mov_b32 s%d, 0x%x' % (sM0, f2u(32768.0 / 65535.0)))
    a('s_mov_b32 s%d, 0x80008000' % sM1)
    a('s_mov_b32 s%d, 0x%x' % (sIDM, P['idm']))
    a('s_mov_b32 s%d, 0xffff0000' % sHI)
    a('s_mov_b32 s%d, 0xfff0' % sA16)
    a('s_mov_b32 s%d, 0x07060302' % sPS)
    a('s_mov_b32 s%d, 0' % sMODE)
    a('v_cmp_gt_u32 %s, %d, v0' % (sr(sV6, 2), BINE - 3072))
    a('v_lshrrev_b32 v%d, 5, v%d' % (IA + 1, LANE))
    a('v_lshlrev_b32 v%d, 4, v%d' % (IA + 1, IA + 1))
    a('v_mov_b32 v%d, v%d' % (IB + 1, IA + 1))
    a('v_mov_b32 v%d, 0' % IA)
    a('v_mov_b32 v%d, 0' % IB)
    a('s_waitcnt lgkmcnt(0)')
    a('s_load_dwordx4 s[96:99], s[8:9], 0')
    srd(a, S_WS, 14, WS_BYTES)
    D, X, DL = RAW, RAW + 4, RAW + 8
    desc_load(D, RAW + 12)
    a('s_mul_i32 s%d, s%d, %d' % (sT, sBIN, BINE * 2))
    a('s_mul_i32 s%d, s%d, %d' % (sT2, sBIN, BINE * 32))
    srd(a, S_DIST, 6, BINE * 2, 's%d' % sT)
    srd(a, S_M, 4, E, None, 32)
    srd(a, S_MR, 4, E * 32)
    srd(a, S_MO, 4, BINE * 32, 's%d' % sT2)
    srd(a, S_OUT, 10, BINE * 32, 's%d' % sT2)
    G['stamp_init'](a, S_DBG, 14, 1, sW)
    a('s_waitcnt lgkmcnt(0)')
    for r in range(4):
        a('s_lshl_b32 s%d, s%d, 16' % (sCEN + 2 * r, 96 + r))
        a('s_and_b32 s%d, s%d, 0xffff0000' % (sCEN + 2 * r + 1, 96 + r))
    a('s_mov_b32 s%d, 0x%x' % (sR, f2u(math.sqrt(10.0 * math.log2(math.e)))))
    a('v_mov_b32 v%d, s%d' % (RT + 8, sR))
    for r in range(8):
        a('v_mul_f32 v%d, s%d, v%d' % (RT + r, sCEN + r, RT + 8))
    for r in range(8):
        a('v_readfirstlane_b32 s%d, v%d' % (sCEN + r, RT + r))
    stamp(0)
    Z, T0 = RAW + 16, RAW + 24
    for i in range(4):
        a('v_mov_b32 v%d, 0' % (Z + i))
        a('v_bfrev_b32 v%d, 1' % (Z + 4 + i))
    a('v_lshlrev_b32 v%d, 4, v0' % T0)
    a('v_lshlrev_b32 v%d, 3, v0' % (T0 + 1))
    a('s_mul_i32 s%d, s%d, 1088' % (sTB, sW))
    a('v_lshl_add_u32 v%d, v%d, 4, s%d' % (T0 + 2, LANE, sTB))
    a('ds_write_b64 v%d, %s offset:%d' % (T0 + 1, vr(Z, 2), BB0))
    a('ds_write_b128 v%d, %s offset:%d' % (T0 + 2, vr(Z + 4, 4), TB0))
    a('ds_write_b128 v%d, %s offset:%d' % (T0 + 2, vr(Z + 4, 4), TB0 + 64))
    a('s_movk_i32 s%d, 400' % sT)
    a('v_cmpx_gt_u32 vcc, s%d, v0' % sT)
    a('ds_write_b128 v%d, %s offset:%d' % (T0, vr(Z, 4), KC0))
    a('s_mov_b64 exec, -1')
    a('v_mov_b32 v%d, 1' % ONE)
    a('v_mov_b32 v%d, 8' % EIGHT)
    a('v_mul_u32_u24 v%d, 12, v%d' % (L12, LANE))
    a('s_lshl_b32 s%d, s%d, 10' % (sT, sW))
    a('v_lshl_add_u32 v%d, v%d, 3, s%d' % (RBA, LANE, sT))
    a('s_lshl_b32 s%d, s2, 3' % sT)
    a('s_add_u32 s%d, s%d, s%d' % (sT, sT, sW))
    a('s_mul_i32 s%d, s%d, 25' % (sT, sT))
    a('v_min_u32 v%d, 24, v%d' % (WA, LANE))
    a('v_add_lshl_u32 v%d, v%d, s%d, 7' % (WA, WA, sT))
    a('s_movk_i32 s%d, %d' % (sT, REC0 // 12))
    a('v_mov_b32 v%d, %d' % (T0 + 3, TSP))
    a('v_mad_u32_u24 v%d, v0, v%d, s%d' % (T0 + 3, T0 + 3, sT))
    a('s_waitcnt vmcnt(0)')
    NP = RAW + 28
    for k in range(4):
        a('v_add_u32 v%d, 0x10000, v%d' % (NP + k, D + k))
        a('v_bfe_u32 v%d, v%d, 16, 1' % (X + k, D + k))
        a('v_lshrrev_b32 v%d, 17, v%d' % (NP + k, NP + k))
        a('v_and_b32 v%d, 0xffff, v%d' % (D + k, D + k))
        a('v_lshl_or_b32 v%d, v%d, 20, v%d' % (X + k, X + k, NP + k))
    scan4(X)
    TT = RAW + 32
    a('s_movk_i32 s%d, %d' % (sT2, NSL * 64))
    for k in range(4):
        a('v_lshrrev_b32 v%d, 20, v%d' % (TT + k, X + k))
        a('v_and_b32 v%d, 0xfffff, v%d' % (X + k, X + k))
        a('v_add_u32 v%d, v%d, v%d' % (DL + k, D + k, T0 + 3))
        a('v_sub_u32 v%d, v%d, v%d' % (TT + k, X + k, TT + k))
        a('v_sub_u32 v%d, v%d, v%d' % (DL + k, DL + k, X + k))
        a('v_add_u32 v%d, v%d, v%d' % (TT + k, TT + k, X + k))
        a('v_mul_u32_u24 v%d, 12, v%d' % (DL + k, DL + k))
        a('v_subrev_u32 v%d, %d, v%d' % (T0, 64 * P['nfull'], X + k))
        a('v_cmpx_lt_u32 vcc, %d, v%d' % (64 * (NSL - P['nfull']), T0))
        a('v_mov_b32 v%d, 0x1000000' % (TT + k))
        a('s_mov_b64 exec, -1')
    for k in range(4):
        a('v_readlane_b32 s%d, v%d, 63' % (sEW + k, X + k))
    a('s_lshl_b32 s%d, s%d, 4' % (sT, sW))
    a('v_mov_b32 v%d, s%d' % (T0, sT))
    a('s_mov_b32 exec_lo, 0')
    a('s_mov_b32 exec_hi, 0x80000000')
    a('ds_write_b128 v%d, %s offset:%d' % (T0, vr(TT, 4), SC0))
    a('s_mov_b64 exec, -1')
    a('s_lshl_b32 s%d, s%d, 9' % (sT, sW))
    for k in range(4):
        a('v_subrev_u32 v%d, 1, v%d' % (T0, X + k))
        a('v_lshlrev_b32 v%d, v%d, v%d' % (T0 + 1, T0, ONE))
        a('v_lshrrev_b32 v%d, 5, v%d' % (T0, T0))
        a('v_lshl_add_u32 v%d, v%d, 2, s%d' % (T0, T0, sT))
        a('v_cmpx_ge_u32 vcc, s%d, v%d' % (sT2, X + k))
        a('v_cmpx_ne_u32 vcc, 0, v%d' % (NP + k))
        a('v_mbcnt_lo_u32_b32 v%d, vcc_lo, 0' % (T0 + 2))
        a('v_mbcnt_hi_u32_b32 v%d, vcc_hi, v%d' % (T0 + 2, T0 + 2))
        a('v_lshl_add_u32 v%d, v%d, 2, s%d' % (T0 + 2, T0 + 2, sTB))
        a('ds_or_b32 v%d, v%d offset:%d' % (T0, T0 + 1, BB0 + 128 * k))
        a('ds_write_b32 v%d, v%d offset:%d' % (T0 + 2, DL + k, TB0 + 272 * k))
        a('s_mov_b64 exec, -1')
    a('v_and_b32 v%d, 7, v0' % T0)
    a('v_lshlrev_b32 v%d, 4, v%d' % (T0, T0))
    a('s_waitcnt lgkmcnt(0)')
    a('s_barrier')
    a('ds_read_b128 %s, v%d offset:%d' % (vr(TT, 4), T0, SC0))
    a('s_mov_b32 s%d, 0' % sPc)
    a('s_waitcnt lgkmcnt(0)')
    for c in ('row_shr:1', 'row_shr:2', 'row_shr:4'):
        for k in range(4):
            a('v_add_u32_dpp v%d, v%d, v%d %s row_mask:0xf bank_mask:0xf' % (TT + k, TT + k, TT + k, c))
    for k in range(4):
        a('v_readlane_b32 s%d, v%d, 7' % (sPc + 1 + k, TT + k))
    for k in range(1, 4):
        a('s_add_u32 s%d, s%d, s%d' % (sPc + 1 + k, sPc + 1 + k, sPc + k))
    a('s_cmp_gt_u32 s%d, %d' % (sPc + 4, NBLK * 1024 if P['force_slow'] != 4 else 0))
    a('s_cbranch_scc1 Lk2_fb')
    a('s_cmp_ge_u32 s%d, %d' % (sPc + 2, 29 * 1024))
    a('s_cbranch_scc1 Lk2_fb')
    stamp(1)

    BUF = (96, 156)
    LEAD, HP = P['lead'], P['hp']
    RO, ZR = 184, 212
    DI = (TF[0], TF[1], VM, L12, TH, TH + 1, ONE)
    NFULL = P['nfull']
    mA, mC, mV, mM = {}, {}, {}, {}

    def raw(u):
        return BUF[(u // NSL) & 1] + 4 * (u % NSL)

    def Mrd(r):
        a('s_lshl_b32 s%d, s%d, 9' % (sT, sW))
        a('v_lshl_add_u32 v%d, v%d, 2, s%d' % (VM, LANE, sT))
        a('s_mul_i32 s%d, s%d, 1088' % (sTB, sW))
        a('ds_read_b32 v%d, v%d offset:%d' % (VM, VM, BB0 + 128 * r))
        mM[r] = a.mark()

    def A(u):
        R = raw(u)
        tail = u % NSL >= NFULL
        if tail:
            a('v_cmpx_gt_i32 %s, 0, v%d' % (sr(sMA + 2 * (u % NA), 2), R + 1))
        for e in range(2):
            t = TA + 2 * (u % NA) + e
            a('v_and_b32 v%d, 0xffff, v%d' % (t, R + 2 * e + 1))
            if not P['abl'] & 256:
                a('ds_add_rtn_u32 v%d, v%d, v%d offset:%d' % (t, t, EIGHT, KC0))
            else:
                a('v_lshlrev_b32 v%d, 3, v%d' % (t, R + 2 * e))
        if tail:
            a('s_mov_b64 exec, -1')
        mA[u] = a.mark()

    def B(u):
        R = raw(u)
        tail = u % NSL >= NFULL
        if tail:
            a('s_mov_b64 exec, %s' % sr(sMA + 2 * (u % NA), 2))
        a.wait_ds(mA[u])
        for e in range(2):
            t = TA + 2 * (u % NA) + e
            a('v_and_b32 v%d, 0x1ffff, v%d' % (t, t))
            if not P['abl'] & 512:
                a('ds_write_b64 v%d, %s offset:%d' % (t, vr(R + 2 * e, 2), RING0))
        if tail:
            a('s_mov_b64 exec, -1')

    def C(u):
        if u >= 4 * NSL:
            return
        r, k = divmod(u, NSL)
        t = TF[u & 1]
        if k == 0:
            a.wait_ds(mM[r])
        a('v_readlane_b32 s%d, v%d, %d' % (sLO, VM, 2 * k))
        a('v_readlane_b32 s%d, v%d, %d' % (sLO + 1, VM, 2 * k + 1))
        a('s_bcnt1_i32_b64 s%d, %s' % (sT, sr(sLO, 2)))
        a('v_mbcnt_lo_u32_b32 v%d, s%d, 0' % (t, sLO))
        a('v_mbcnt_hi_u32_b32 v%d, s%d, v%d' % (t, sLO + 1, t))
        a('v_lshl_add_u32 v%d, v%d, 2, s%d' % (t, t, sTB))
        a('s_lshl2_add_u32 s%d, s%d, s%d' % (sTB, sT, sTB))
        a('ds_read_b32 v%d, v%d offset:%d' % (t, t, TB0 + 272 * r))
        mC[u] = a.mark()

    def Dd(u):
        if u >= 4 * NSL:
            return
        t = TF[u & 1]
        a('s_movk_i32 s%d, %d' % (sT2, 768 * (u % NSL)))
        a.wait_ds(mC[u])
        a('v_add_u32 v%d, v%d, v%d' % (t, t, L12))
        if P['abl'] & 2048:
            a('v_and_b32 v%d, 0x3ffff, v%d' % (t, t))
        a('buffer_load_dwordx3 %s, v%d, %s, s%d offen %s' % (vr(raw(u), 3), t, sr(S_WS, 4), sT2, P['ldrec']))
        mV[u] = a.mark()

    def H(u):
        R = raw(u)
        tail = u % NSL >= NFULL
        a.wait_vm(mV[u])
        if tail:
            a('v_cmpx_gt_i32 vcc, 0, v%d' % (R + 1))
        for e in range(2):
            a('v_lshrrev_b32 v%d, 7, v%d' % (TH + e, R + 2 * e))
        for e in range(2):
            a('v_and_b32 v%d, 0x1ffc, v%d' % (TH + e, TH + e))
        for e in range(2):
            if not P['abl'] & 1024:
                a('ds_add_u32 v%d, v%d offset:%d' % (TH + e, ONE, KC0))
        a('v_lshl_or_b32 v%d, v%d, 16, v%d' % (R + 3, R + 1, TH + 1))
        a('v_and_or_b32 v%d, v%d, s%d, v%d' % (R + 1, R + 1, sHI, TH))
        if tail:
            a('s_mov_b64 exec, -1')

    def keyscan(r):
        K = RT
        nds = a.nds
        a('s_cmp_lg_u32 s%d, %d' % (sW, P['scw']))
        a('s_cbranch_scc1 Lks%d' % r)
        a('v_lshlrev_b32 v%d, 5, v%d' % (RA, LANE))
        a('ds_read_b128 %s, v%d offset:%d' % (vr(K, 4), RA, KC0 + 1568 * r))
        a('ds_read_b128 %s, v%d offset:%d' % (vr(K + 4, 4), RA, KC0 + 1568 * r + 16))
        a('s_waitcnt lgkmcnt(0)')
        for j in range(1, 8):
            a('v_add_u32 v%d, v%d, v%d' % (K + j, K + j, K + j - 1))
        a('v_mov_b32 v%d, v%d' % (RA + 1, K + 7))
        G['scan64'](a, RA + 1)
        a('v_sub_u32 v%d, v%d, v%d' % (RA + 1, RA + 1, K + 7))
        a('v_add_u32 v%d, s%d, v%d' % (RA + 1, sPc + r, RA + 1))
        a('v_lshlrev_b32 v%d, 3, v%d' % (K + 8, RA + 1))
        for j in range(1, 8):
            a('v_add_lshl_u32 v%d, v%d, v%d, 3' % (K + 8 + j, K + j - 1, RA + 1))
        a('v_cmpx_gt_u32 vcc, 49, v%d' % LANE)
        a('ds_write_b128 v%d, %s offset:%d' % (RA, vr(K + 8, 4), KC0 + 1568 * r))
        a('ds_write_b128 v%d, %s offset:%d' % (RA, vr(K + 12, 4), KC0 + 1568 * r + 16))
        a('s_lshl_b32 s%d, s%d, 3' % (sT, sPc + r + 1))
        a('v_mov_b32 v%d, s%d' % (RA + 1, sT))
        a('s_mov_b64 exec, 1')
        a('ds_write_b32 v%d, v%d offset:%d' % (RA, RA + 1, KC0 + 4 * (1568 + r)))
        a('s_mov_b64 exec, -1')
        a('Lks%d:' % r)
        a('s_nop 1')
        a.nds = nds

    def rb_reads():
        mk = {}
        for j in range(4):
            a('s_add_u32 s%d, s%d, %d' % (sT, sRB, j))
            a('s_and_b32 s%d, s%d, 15' % (sT, sT))
            a('s_lshl_b32 s%d, s%d, 13' % (sT, sT))
            a('v_add_u32 v%d, s%d, v%d' % (RA + j, sT, RBA))
            a('ds_read_b64 %s, v%d offset:%d' % (vr(RT + 4 * j, 2), RA + j, RING0))
            a('ds_read_b64 %s, v%d offset:%d' % (vr(RT + 4 * j + 2, 2), RA + j, RING0 + 512))
            mk[j] = a.mark()
        return mk

    def rb_moves(mk):
        a('s_mul_i32 s%d, s%d, 3' % (sIX, sRB))
        a('s_set_gpr_idx_on s%d, gpr_idx(DST)' % sIX)
        for j in range(4):
            a.wait_ds(mk[j])
            a('v_mov_b32 v%d, v%d' % (S0 + 3 * j, RT + 4 * j))
            a('v_mov_b32 v%d, v%d' % (S0 + 3 * j + 1, RT + 4 * j + 2))
            a('v_perm_b32 v%d, v%d, v%d, s%d' % (S0 + 3 * j + 2, RT + 4 * j + 3, RT + 4 * j + 1, sPS))
        a('s_set_gpr_idx_off')
        a('s_add_u32 s%d, s%d, 4' % (sRB, sRB))

    def readback(tag):
        nds = a.nds
        a('s_cmp_ge_u32 s%d, s%d' % (sRB, sRE))
        a('s_cbranch_scc1 Lrd%s' % tag)
        a('Lrl%s:' % tag)
        rb_moves(rb_reads())
        a('s_cmp_lt_u32 s%d, s%d' % (sRB, sRE))
        a('s_cbranch_scc1 Lrl%s' % tag)
        a('Lrd%s:' % tag)
        a('s_mov_b32 s%d, s%d' % (sRB, sRE))
        a.nds = nds

    def warm(j):
        if P['warm']:
            a('s_mov_b32 s%d, %d' % (sT, j * 51200 * 128))
            a('buffer_load_dword v%d, v%d, %s, s%d offen' % (WD, WA, sr(S_MR, 4), sT))

    def dist_loads():
        a('v_lshlrev_b32 v%d, 1, v0' % WD)
        for q in range(NQ):
            a('s_movk_i32 s%d, %d' % (sT, q * 1024))
            a('buffer_load_ushort v%d, v%d, %s, s%d offen' % (DI[q], WD, sr(S_DIST, 4), sT))
        return a.mark()

    def rbf_batch(q):
        K = RT
        a('v_lshlrev_b32 v%d, 16, v%d' % (K + 8, DI[q]))
        a('v_mul_f32 v%d, s%d, v%d' % (K + 8, sR, K + 8))
        for r in range(8):
            a('v_subrev_f32 v%d, s%d, v%d' % (K + r, sCEN + r, K + 8))
        for r in range(8):
            a('v_mul_f32 v%d, v%d, v%d' % (K + r, K + r, K + r))
        for r in range(8):
            a('v_exp_f32 v%d, -v%d' % (K + r, K + r))
        for r in range(4):
            a('v_cvt_pk_f16_f32 v%d, v%d, v%d' % (RO + 4 * q + r, K + 2 * r, K + 2 * r + 1))

    NP_ = P['npipe']

    def guarded(r, body):
        n = lab[0]
        lab[0] += 1
        nds, nvm = a.nds, a.nvm
        for k in range(NP_, NSL):
            a('s_cmp_le_u32 s%d, %d' % (sEW + r, 64 * k))
            a('s_cbranch_scc1 Lg%d' % n)
            body(NSL * r + k)
        a('Lg%d:' % n)
        a('s_nop 3')
        a.nds, a.nvm = nds, nvm

    def U(x):
        return NSL * (x // NP_) + x % NP_

    def Cx(x):
        C(U(x))

    def Dx(x):
        if x >= 4 * NP_:
            return
        Dd(U(x))

    def loadstep(x):
        def first():
            if (x + 1) % NP_:
                Cx(x + 1)

        def second():
            Dx(x)
            if (x + 1) % NP_ == 0 and x < 4 * NP_:
                r = x // NP_

                def body(u):
                    C(u)
                    Dd(u)
                guarded(r, body)
                for k in range(NP_, NSL):
                    mV[NSL * r + k] = a.mark()
                if r < 3:
                    Mrd(r + 1)
                    Cx(x + 1)
        return first, second

    def Hx(x):
        H(U(x))
        if (x + 1) % NP_ == 0:
            guarded(x // NP_, H)

    Mrd(0)
    a('s_mov_b32 s%d, 0' % sRB)
    lag = P['dv']
    C(0)
    for i in range(NP_ + lag):
        f1, f2 = loadstep(i)
        f1()
        f2()
        if i >= lag:
            Hx(i - lag)
    a('s_waitcnt lgkmcnt(0)')
    a('s_barrier')
    keyscan(0)
    lead0 = P['lead0']
    for i in range(NP_ + lag, NP_ + lead0):
        f1, f2 = loadstep(i)
        f1()
        f2()
    a('s_waitcnt lgkmcnt(0)')
    a('s_barrier')
    nxt = NP_ + max(lag, lead0)
    for r in range(4):
        stamp(2 + r)
        u0 = NSL * r
        hq = list(range(NP_ * (r + 1), NP_ * (r + 2))) if r < 3 else []
        if r:
            a('s_lshr_b32 s%d, s%d, 10' % (sRE, sPc + r))
            for g in range(3):
                mk = rb_reads()
                if hq:
                    Hx(hq.pop(0))
                rb_moves(mk)
            readback(str(r))
        while r and len(hq) > NP_ - HP:
            Hx(hq.pop(0))
        A(u0)
        if r:
            a('s_barrier')
        for i in range(NP_):
            f1, f2 = loadstep(nxt)
            f1()
            if i + 1 < NP_:
                A(u0 + i + 1)
            B(u0 + i)
            assert nxt < NP_ * (r + 2) or nxt - NP_ * (r + 2) <= i
            f2()
            nxt += 1
            if nxt < NP_ * (r + 1) + LEAD + i + 1:
                f1, f2 = loadstep(nxt)
                f1()
                f2()
                nxt += 1
            nh = 2 if (len(hq) > max(1, NP_ - HP - i) and U(hq[1]) in mV and hq[1] + 4 <= nxt) else 1
            for _ in range(nh):
                if hq:
                    Hx(hq.pop(0))
                    if not hq:
                        a('s_waitcnt lgkmcnt(0)')
                        a('s_barrier')
                        keyscan(r + 1)
                        if r == 2:
                            mD = dist_loads()
            for j in range(4):
                if P['wpos'][j] == 'abcdefghijklmnopqrstuvwxyzABCDEFGH'[(r - 2) * NP_ + i] and r >= 2:
                    warm(j)
            if r == 3 and i == 6:
                img_load(0, 5, AG, RA)
                a.wait_vm(mD)
            if r == 3 and 7 <= i < 7 + NQ - 1:
                rbf_batch(i - 7)

        def body(u):
            A(u)
            B(u)
        guarded(r, body)
        if r == 3:
            a('s_cmp_lg_u32 s%d, 0' % sW)
            a('s_cbranch_scc1 Lk2_r6')
            rbf_batch(NQ - 1)
            a('Lk2_r6:')
        a('s_waitcnt lgkmcnt(0)')
        a('s_barrier')
    stamp(6)
    a('s_add_u32 s%d, s%d, 1023' % (sRE, sPc + 4))
    a('s_lshr_b32 s%d, s%d, 10' % (sRE, sRE))
    readback('L')
    a('s_max_u32 s%d, s%d, 1' % (sRB, sRB))
    a('s_sub_u32 s%d, s%d, 1' % (sRB, sRB))
    a('s_mul_i32 s%d, s%d, 3' % (sEND, sRB))
    a('s_lshl_b32 s%d, s%d, 10' % (sT, sRB))
    a('s_sub_u32 s%d, s%d, s%d' % (sT, sPc + 4, sT))
    a('v_lshrrev_b32 v%d, 3, v%d' % (TM, RBA))
    a('v_add_u32 v%d, 64, v%d' % (TM + 1, TM))
    a('v_cmp_gt_u32 %s, s%d, v%d' % (sr(sLM, 2), sT, TM))
    a('v_cmp_gt_u32 %s, s%d, v%d' % (sr(sLM + 2, 2), sT, TM + 1))
    a('s_set_gpr_idx_on s%d, gpr_idx(SRC1,DST)' % sEND)
    a('s_andn2_b64 exec, -1, %s' % sr(sLM + 2, 2))
    a('v_mov_b32 v%d, 0' % (S0 + 1))
    a('v_and_b32 v%d, 0xffff, v%d' % (S0 + 2, S0 + 2))
    a('s_andn2_b64 exec, -1, %s' % sr(sLM, 2))
    a('v_mov_b32 v%d, 0' % S0)
    a('v_mov_b32 v%d, 0' % (S0 + 2))
    a('s_mov_b64 exec, -1')
    a('s_set_gpr_idx_off')
    a('s_mov_b32 s%d, 0' % sIX)
    a('Lk2_init:')
    a('s_barrier')
    for i in range(4):
        a('v_mov_b32 v%d, 0' % (ZR + i))
    a('v_lshlrev_b32 v%d, 4, v0' % A4)
    a('v_add_u32 v%d, %d, v%d' % (A4B, HI0, A4))
    a('v_add_u32 v%d, %d, v%d' % (CV, RBF0, A4))
    for q in range(NQ - 1):
        a('ds_write_b128 v%d, %s offset:%d' % (CV, vr(RO + 4 * q, 4), 8192 * q))
    a('s_mov_b64 exec, %s' % sr(sV6, 2))
    a('ds_write_b128 v%d, %s offset:%d' % (CV, vr(RO + 4 * NQ - 4, 4), 8192 * (NQ - 1)))
    a('s_mov_b64 exec, -1')
    a('s_cmp_lg_u32 s%d, 0' % sMODE)
    a('s_cbranch_scc1 Lk2_ng')
    decode_rel(0, 0)
    gathers(0)
    decode_rel(1, 0)
    gathers(1)
    a('Lk2_ng:')
    for o in list(range(0, RBF0 - 8192, 8192)) + [RBF0 - 8192]:
        a('ds_write_b128 v%d, %s offset:%d' % (A4, vr(ZR, 4), o))
    for o in list(range(0, 4 * PL - 8192, 8192)) + [4 * PL - 8192]:
        a('ds_write_b128 v%d, %s offset:%d' % (A4B, vr(ZR, 4), o))
    a('v_mov_b32 v%d, 0' % STK)
    a('v_mov_b32 v%d, 0' % RTN[0])
    a('v_mov_b32 v%d, 0' % RTN[1])
    a('v_mov_b32 v%d, 0x1000000' % CK)
    a('v_and_b32 v255, 0x1df, v0')
    a('v_lshl_add_u32 v255, v255, 5, v%d' % (IA + 1))
    a('s_waitcnt lgkmcnt(0)')
    a('s_barrier')
    stamp(7, True)
    a('s_cmp_lg_u32 s%d, 0' % sMODE)
    a('s_cbranch_scc1 Lk2_all')
    a('ds_read_b128 %s, v%d offset:%d' % (vr(RBF, 4), A16[0], RBF0))
    a('s_waitcnt lgkmcnt(0)')
    MQ, AU, AR, OA = 4, 60, 68, 255
    WW, RBB, CNN = (76, 96), (84, 104), (88, 108)
    R16, T1, T2, T3, T4 = 92, 112, 113, 114, 115
    sTRG = 89

    def epi_loads():
        img_load(5, 3, AU, 2)
        for q in range(NQ):
            a('s_mov_b32 s%d, %d' % (sT, q * 16384))
            a('buffer_load_dwordx4 %s, v%d, %s, s%d offen' % (vr(MQ + 8 * q, 4), OA, sr(S_MO, 4), sT))
            a('buffer_load_dwordx4 %s, v%d, %s, s%d offen offset:1024' % (vr(MQ + 8 * q + 4, 4), OA, sr(S_MO, 4), sT))

    a('s_mul_i32 s%d, s%d, 49' % (sTRG, sBIN))
    a('s_lshr_b32 s%d, s%d, 8' % (sTRG, sTRG))
    a('s_add_u32 s%d, s%d, %d' % (sTRG, sTRG, P['trg']))
    a('s_and_b32 s%d, s%d, 15' % (sT, sBIN))
    a('s_add_u32 s%d, s%d, 24' % (sT, sT))
    a('s_cmp_lt_u32 s%d, 24' % sTRG)
    a('s_cselect_b32 s%d, s%d, s%d' % (sTRG, sT, sTRG))
    a('s_mul_i32 s%d, s%d, 3' % (sTRG, sTRG))
    a('s_min_u32 s%d, s%d, s%d' % (sTRG, sTRG, sEND))
    if P['prio']:
        a('s_cmp_lt_u32 s%d, 4' % sW)
        a('s_cbranch_scc1 Lk2_np')
        a('s_setprio 1')
        a('Lk2_np:')
    a.raw('.p2align 6')
    a('Lk2_loop:')
    a('s_cmp_eq_u32 s%d, s%d' % (sIX, sTRG))
    a('s_cbranch_scc1 Lk2_el')
    a('Lk2_lc:')
    step(0)
    step(1)
    if P['mbar'] == 1:
        a('s_barrier')
    elif P['mbar']:
        a('s_and_b32 s%d, s%d, %d' % (sT, sIX, P['mbar'] - 1))
        a('s_cbranch_scc1 Lk2_nb')
        a('s_barrier')
        a('Lk2_nb:')
    a('s_add_u32 s%d, s%d, 3' % (sIX, sIX))
    a('s_cmp_le_u32 s%d, s%d' % (sIX, sEND))
    a('s_cbranch_scc1 Lk2_loop')
    stamp(8, True)
    a('s_mov_b32 s%d, 0' % sPASS)
    for i in range(NQ):
        a('s_mov_b64 %s, 0' % sr(sFL + 2 * i, 2))
        a('s_mov_b64 %s, 0' % sr(sSK + 2 * i, 2))
    a('Lk2_epi:')
    a('v_lshlrev_b32 v%d, 2, v0' % A4)
    a('v_add_u32 v%d, %d, v%d' % (A4B, HI0, A4))
    a('v_lshlrev_b32 v%d, 4, v0' % R16)
    a('s_waitcnt vmcnt(4) lgkmcnt(0)')
    a('v_or3_b32 v%d, v%d, v%d, v%d' % (STK, STK, RTN[0], RTN[1]))
    a('s_barrier')
    mk = {}

    def e_read(q):
        W, RB, CN = WW[q & 1], RBB[q & 1], CNN[q & 1]
        if q == NQ - 1:
            for i in range(4):
                a('v_mov_b32 v%d, 0' % (RB + i))
            for i in range(8):
                a('v_mov_b32 v%d, 0' % (W + i))
            a('v_mov_b32 v%d, 0' % CN)
            a('s_mov_b64 exec, %s' % sr(sV6, 2))
        a('ds_read_b32 v%d, v%d offset:%d' % (CN, A4B, 3 * PL + 2048 * q))
        mk[q, -1] = a.mark()
        for j in range(8):
            b, o = plane(j)
            a('ds_read_b32 v%d, v%d offset:%d' % (W + j, b, o + 2048 * q))
            mk[q, j] = a.mark()
        a('ds_read_b128 %s, v%d offset:%d' % (vr(RB, 4), R16, RBF0))
        mk[q, 8] = a.mark()
        if q == NQ - 1:
            a('s_mov_b64 exec, -1')
        else:
            a('v_add_u32 v%d, 8192, v%d' % (R16, R16))

    def e_decode(q):
        W, CN = WW[q & 1], CNN[q & 1]
        a.wait_ds(mk[q, -1 if q == 0 else 8])
        a('v_lshrrev_b32 v%d, 24, v%d' % (CN + 3, CN))
        a('v_and_b32 v%d, 0xffffff, v%d' % (CN, CN))
        a('v_mul_lo_u32 v%d, v%d, s%d' % (CN + 2, CN + 3, sM1))
        a('v_cmp_lt_u32 vcc, 127, v%d' % (CN + 3))
        a('v_mul_u32_u24 v%d, %d, v%d' % (CN + 3, P['theta'], CN + 3))
        a('s_or_b64 %s, %s, vcc' % (sr(sFL + 2 * q, 2), sr(sFL + 2 * q, 2)))
        a('v_cmp_lt_u32 vcc, 0x7ffe, v%d' % CN)
        a('s_or_b64 %s, %s, vcc' % (sr(sFL + 2 * q, 2), sr(sFL + 2 * q, 2)))
        a('v_cmp_lt_u32 vcc, v%d, v%d' % (CN, CN + 3))
        a('s_or_b64 %s, %s, vcc' % (sr(sFL + 2 * q, 2), sr(sFL + 2 * q, 2)))
        a('s_andn2_b64 exec, -1, %s' % sr(sSK + 2 * q, 2))
        for j in range(8):
            if q == 0:
                a.wait_ds(mk[q, j])
            t = CN + (j & 1)
            a('v_sub_u32 v%d, v%d, v%d' % (W + j, W + j, CN + 2))
            a('v_add_u32 v%d, 0x8000, v%d' % (t, W + j))
            a('v_cvt_f32_i32_sdwa v%d, sext(v%d) dst_sel:DWORD dst_unused:UNUSED_PAD src0_sel:WORD_0' % (W + j, W + j))
            a('v_cvt_f32_i32_sdwa v%d, sext(v%d) dst_sel:DWORD dst_unused:UNUSED_PAD src0_sel:WORD_1' % (t, t))
            a('v_cvt_pk_bf16_f32 v%d, v%d, v%d' % (W + j, W + j, t))
        a('s_mov_b64 exec, -1')
        if q == 0:
            a.wait_ds(mk[q, 8])

    def e_mfma(q):
        W, RB = WW[q & 1], RBB[q & 1]
        a('v_mfma_f32_32x32x16_f16 %s, %s, %s, 0' % (vr(GATE, 16), vr(AR, 4), vr(RB, 4)))
        a('v_mfma_f32_32x32x16_bf16 %s, %s, %s, 0' % (vr(MD, 16), vr(AU, 4), vr(W, 4)))
        a('v_mfma_f32_32x32x16_bf16 %s, %s, %s, %s' % (vr(MD, 16), vr(AU + 4, 4), vr(W + 4, 4), vr(MD, 16)))

    def e_out(q):
        a('s_mov_b32 s%d, %d' % (sT, q * 16384))
        for j in range(8):
            m = MQ + 8 * q + j
            ta, tb = (T1, T2) if j & 1 else (T3, T4)
            a('v_lshlrev_b32 v%d, 16, v%d' % (ta, m))
            a('v_and_b32 v%d, s%d, v%d' % (tb, sHI, m))
            a('v_fmac_f32 v%d, v%d, v%d' % (ta, MD + 2 * j, GATE + 2 * j))
            a('v_fmac_f32 v%d, v%d, v%d' % (tb, MD + 2 * j + 1, GATE + 2 * j + 1))
            a('v_cvt_pk_bf16_f32 v%d, v%d, v%d' % (m, ta, tb))
            if j == 3:
                a('buffer_store_dwordx4 %s, v%d, %s, s%d offen %s' % (vr(MQ + 8 * q, 4), OA, sr(S_OUT, 4), sT, P['stout']))
        a('buffer_store_dwordx4 %s, v%d, %s, s%d offen offset:1024 %s' % (vr(MQ + 8 * q + 4, 4), OA, sr(S_OUT, 4), sT, P['stout']))

    e_read(0)
    e_read(1)
    e_decode(0)
    for q in range(NQ - 1):
        e_mfma(q)
        if q + 1 < NQ - 1:
            e_decode(q + 1)
        if q + 2 < NQ:
            e_read(q + 2)
        e_out(q)
    a('s_cmp_lg_u32 s%d, 0' % sW)
    a('s_cbranch_scc1 Lk2_e6')
    e_decode(NQ - 1)
    e_mfma(NQ - 1)
    e_out(NQ - 1)
    a('Lk2_e6:')
    stamp(9, True)
    if P['stamp']:
        a('s_waitcnt vmcnt(0)')
        stamp(10, True)
    if P['abl']:
        a('s_branch Lk2_end')
    a('s_cmp_lg_u32 s%d, 0' % sPASS)
    a('s_cbranch_scc1 Lk2_end')
    a('s_or_b64 %s, %s, %s' % (sr(sMK, 2), sr(sFL, 2), sr(sFL + 2, 2)))
    for q in range(2, NQ):
        a('s_or_b64 %s, %s, %s' % (sr(sMK, 2), sr(sMK, 2), sr(sFL + 2 * q, 2)))
    a('s_cselect_b32 s%d, 1, %d' % (sT, P['force_slow'] & 3))
    a('v_cmp_gt_i32 vcc, 0, v%d' % STK)
    a('s_cmp_lg_u64 vcc, 0')
    a('s_cselect_b32 s%d, 3, s%d' % (sT, sT))
    a('v_mov_b32 v2, s%d' % sT)
    a('s_lshl_b32 s%d, s%d, 2' % (sT, sW))
    a('s_add_u32 s%d, s%d, %d' % (sT, sT, SCR))
    a('v_mov_b32 v3, s%d' % sT)
    a('ds_write_b32 v3, v2')
    a('v_and_b32 v2, 7, v0')
    a('v_lshlrev_b32 v2, 2, v2')
    a('v_add_u32 v2, %d, v2' % SCR)
    a('s_waitcnt lgkmcnt(0)')
    a('s_barrier')
    a('ds_read_b32 v3, v2')
    a('s_waitcnt lgkmcnt(0)')
    a('v_cmp_ne_u32 vcc, 0, v3')
    a('s_cmp_eq_u64 vcc, 0')
    a('s_cbranch_scc1 Lk2_end')
    a('v_cmp_lt_u32 vcc, 1, v3')
    a('s_cmp_lg_u64 vcc, 0')
    a('Lk2_all:')
    for q in range(NQ):
        a('s_cselect_b64 %s, -1, %s' % (sr(sSK + 2 * q, 2), sr(sFL + 2 * q, 2)))
    a('s_and_b64 %s, %s, %s' % (sr(sSK + 2 * NQ - 2, 2), sr(sSK + 2 * NQ - 2, 2), sr(sV6, 2)))
    a('s_waitcnt vmcnt(0)')
    VD, VE, REC, ADDR, F12 = 4, 8, 12, 16, 17
    desc_load(VD, 18)
    a('v_lshlrev_b32 v%d, 2, v0' % A4)
    a('v_add_u32 v%d, %d, v%d' % (A4B, HI0, A4))
    a('v_mov_b32 v2, 0')
    a('v_mov_b32 v3, -1')
    for q in range(NQ):
        a('s_mov_b64 exec, %s' % sr(sSK + 2 * q, 2))
        a('ds_write_b32 v%d, v3 offset:%d' % (A4B, 3 * PL + 2048 * q))
        for j in range(8):
            b, o = plane(j)
            a('ds_write_b32 v%d, v2 offset:%d' % (b, o + 2048 * q))
        a('s_mov_b64 exec, -1')
        a('s_waitcnt lgkmcnt(0)')
    a('s_barrier')
    a('s_movk_i32 s%d, %d' % (sT, REC0 // 12))
    a('v_mov_b32 v%d, %d' % (F12, TSP))
    a('v_mad_u32_u24 v%d, v0, v%d, s%d' % (F12, F12, sT))
    a('s_waitcnt vmcnt(0)')
    for k in range(4):
        a('v_add_u32 v%d, 0x10000, v%d' % (VE + k, VD + k))
        a('v_and_b32 v%d, 0xffff, v%d' % (VD + k, VD + k))
        a('v_lshrrev_b32 v%d, 17, v%d' % (VE + k, VE + k))
    scan4(VE)
    for k in range(4):
        if k:
            a('v_add_u32 v%d, s%d, v%d' % (VE + k, sNT, VE + k))
        a('v_add_u32 v%d, v%d, v%d' % (VD + k, VD + k, F12))
        a('v_readlane_b32 s%d, v%d, 63' % (sNT, VE + k))
        a('v_sub_u32 v%d, v%d, v%d' % (VD + k, VD + k, VE + k))
        a('v_mul_lo_u32 v%d, v%d, 12' % (VD + k, VD + k))
    a('v_mul_u32_u24 v%d, 12, v%d' % (F12, LANE))
    a('s_mov_b32 s%d, 0' % sF)
    a('s_mov_b32 s%d, 0' % sE)
    a('s_mov_b32 s%d, 0' % sDL)
    a('s_movk_i32 s%d, -64' % sI)
    a('Lk2_sl:')
    a('s_cmp_ge_u32 s%d, s%d' % (sF, sNT))
    a('s_cbranch_scc1 Lk2_sd')
    a('v_add_u32 v%d, s%d, v%d' % (ADDR, sDL, F12))
    a('s_sub_u32 s%d, s%d, s%d' % (sP, sE, sF))
    a('s_cmp_ge_u32 s%d, 64' % sP)
    a('s_cbranch_scc1 Lfd')
    a('Lfl:')
    a('v_readlane_b32 s%d, v%d, s%d' % (sDL, VD, sI))
    a('v_readlane_b32 s%d, v%d, s%d' % (sE, VE, sI))
    a('s_add_u32 s%d, s%d, 1' % (sI, sI))
    a('s_cbranch_scc0 Lfc')
    a('s_mov_b64 exec, -1')
    for k in range(3):
        a('v_mov_b32 v%d, v%d' % (VE + k, VE + k + 1))
        a('v_mov_b32 v%d, v%d' % (VD + k, VD + k + 1))
    a('v_mov_b32 v%d, -1' % (VE + 3))
    a('v_bfrev_b32 v%d, 1' % (VD + 3))
    a('s_movk_i32 s%d, -64' % sI)
    a('Lfc:')
    a('s_lshl_b64 exec, -1, s%d' % sP)
    a('v_add_u32 v%d, s%d, v%d' % (ADDR, sDL, F12))
    a('s_sub_u32 s%d, s%d, s%d' % (sP, sE, sF))
    a('s_cmp_lt_u32 s%d, 64' % sP)
    a('s_cbranch_scc1 Lfl')
    a('s_mov_b64 exec, -1')
    a('Lfd:')
    a('s_add_u32 s%d, s%d, 64' % (sF, sF))
    a('v_add_u32 v%d, 768, v%d' % (F12, F12))
    a('buffer_load_dwordx3 %s, v%d, %s, 0 offen' % (vr(REC, 3), ADDR, sr(S_WS, 4)))
    a('s_mov_b32 s%d, 0' % sSUB)
    a('s_waitcnt vmcnt(0)')
    a('Lk2_s2:')
    a('v_cmp_gt_i32 %s, 0, v%d' % (sr(sMK, 2), REC + 1))
    a('v_ashrrev_i32 v%d, 31, v%d' % (TM, REC + 1))
    a('v_and_b32 v%d, v%d, v%d' % (REC, REC, TM))
    a('v_and_b32 v%d, s%d, v%d' % (IA, sIDM, REC))
    a('v_and_b32 v%d, s%d, v%d' % (IB, sIDM, REC))
    a('v_lshrrev_b32 v%d, 16, v%d' % (A16[0], REC))
    a('v_and_b32 v%d, s%d, v%d' % (A16[0], sA16, A16[0]))
    a('v_and_b32 v%d, s%d, v%d' % (ANG[0], sHI, REC + 1))
    a('v_permlane32_swap_b32 v%d, v%d' % (IA, IB))
    addrs(0)
    a('ds_read_b32 v%d, v%d offset:%d' % (CV, A4B, 3 * PL))
    a('ds_read_b128 %s, v%d offset:%d' % (vr(RBF, 4), A16[0], RBF0))
    a('s_waitcnt lgkmcnt(0)')
    a('v_cmp_gt_i32 vcc, 0, v%d' % CV)
    a('s_and_b64 %s, %s, vcc' % (sr(sMK, 2), sr(sMK, 2)))
    a('s_cbranch_scc0 Lk2_s3')
    gathers(0)
    cosines(0)
    for l in range(3):
        sbf(l)
        gmf(l)
    a('s_waitcnt vmcnt(0)')
    mdown(0)
    for d in range(16):
        a('v_mul_f32 v%d, 0x47800000, v%d' % (GATE + d, GATE + d))
        a('v_mul_f32 v%d, v%d, v%d' % (MD + d, MD + d, GATE + d))
    a('s_mov_b64 exec, %s' % sr(sMK, 2))
    for j in range(8):
        a('v_cvt_pk_bf16_f32 v%d, v%d, v%d' % (MD + 2 * j, MD + 2 * j, MD + 2 * j + 1))
        b, o = plane(j)
        a('ds_pk_add_bf16 v%d, v%d offset:%d' % (b, MD + 2 * j, o))
    a('s_mov_b64 exec, -1')
    a('Lk2_s3:')
    a('v_mov_b32 v%d, v%d' % (REC, REC + 2))
    a('v_lshlrev_b32 v%d, 16, v%d' % (REC + 1, REC + 1))
    a('s_xor_b32 s%d, s%d, 1' % (sSUB, sSUB))
    a('s_cbranch_scc1 Lk2_s2')
    a('s_branch Lk2_sl')
    a.fence()
    a('Lk2_sd:')
    a('s_mov_b32 s%d, 1' % sPASS)
    epi_loads()
    a('s_waitcnt vmcnt(0)')
    a('s_branch Lk2_epi')
    a.fence()
    a('Lk2_fb:')
    a('s_mov_b32 s%d, 1' % sMODE)
    dist_loads()
    img_load(0, 5, AG, RA)
    a('s_waitcnt vmcnt(0)')
    for q in range(NQ):
        rbf_batch(q)
    a('s_branch Lk2_init')
    a.fence()
    a('Lk2_el:')
    epi_loads()
    a('s_branch Lk2_lc')
    a.fence()
    a('Lk2_end:')
    a('s_endpgm')
    a.fence()
    return LDS
```

```python
import sys, math, struct
from asmlib import Asm

NAME = 'gather_scatter__molecular_angular_gemnet__graph'
E, T = 800000, 12800000
BINE = 3125
TS = 158976
TSP = TS // 12
REC0 = 12288
DESC0 = 0x4F00000
PREP0 = 0x5200000
WS_BYTES = 268435456

P = dict(ld1='nt', st1='', ldrec='', stout='nt', target=180.0, theta=64, bar=16, stamp=0, force_slow=0, abl=0, idm=0xfffff, goff=0, sta='', stb='', nfull=10, wpos='kosw', lead=9, lead0=6, npipe=13, hp=4, scw=7, trg=1, prio=0, cpf=0, dv=4, warm=1, mbar=1, sdwa=1, npre=2, only1=0, stw=0, k2x=0, rd2=1, l2x=0, recm=0, ldg='')
for a in sys.argv[2:]:
    k, v = a.split('=')
    P[k] = type(P[k])(v.replace('+',' ')) if not isinstance(P[k], int) else int(v, 0)


def f2u(x):
    return struct.unpack('<I', struct.pack('<f', x))[0]


def vr(a, n):
    return 'v[%d:%d]' % (a, a + n - 1)


def sr(a, n):
    return 's[%d:%d]' % (a, a + n - 1)


def srd(a, d, ptr, nbytes, off=None, stride=0):
    if off is None:
        a('s_mov_b32 s%d, s%d' % (d, ptr))
        a('s_mov_b32 s%d, s%d' % (d + 1, ptr + 1))
    else:
        a('s_add_u32 s%d, s%d, %s' % (d, ptr, off))
        a('s_addc_u32 s%d, s%d, 0' % (d + 1, ptr + 1))
    if stride:
        a('s_or_b32 s%d, s%d, 0x%x' % (d + 1, d + 1, stride << 16))
    a('s_mov_b32 s%d, %d' % (d + 2, nbytes))
    a('s_mov_b32 s%d, 0x20000' % (d + 3))


def scan64(a, v, op='v_add_u32'):
    for c in ('row_shr:1', 'row_shr:2', 'row_shr:4', 'row_shr:8'):
        a('%s_dpp v%d, v%d, v%d %s row_mask:0xf bank_mask:0xf' % (op, v, v, v, c))
    a('%s_dpp v%d, v%d, v%d row_bcast:15 row_mask:0xa bank_mask:0xf' % (op, v, v, v))
    a('%s_dpp v%d, v%d, v%d row_bcast:31 row_mask:0xc bank_mask:0xf' % (op, v, v, v))


def code_prefetch(a, tag, srdr, vt, nwg=16):
    a('s_cmp_ge_u32 s2, %d' % nwg)
    a('s_cbranch_scc1 Lcpf%s' % tag)
    a('s_getpc_b64 %s' % sr(srdr, 2))
    a('Lcpb%s:' % tag)
    a('s_mov_b32 s%d, Lk2_end-Lcpb%s' % (srdr + 2, tag))
    a('s_mov_b32 s%d, 0x20000' % (srdr + 3))
    a('v_lshlrev_b32 v%d, 7, v0' % vt)
    a.nocount = True
    a('buffer_load_dword v%d, v%d, %s, 0 offen' % (vt, vt, sr(srdr, 4)))
    a.nocount = False
    a('Lcpf%s:' % tag)


STAMP0 = 0x6000000


def stamp_init(a, sdbg, wsptr, kern, sw):
    if not P['stamp']:
        return
    a('s_lshl_b32 s100, s2, 7')
    a('s_add_u32 s100, s100, %d' % (STAMP0 + kern * 32768))
    srd(a, sdbg, wsptr, 128, 's100')
    stamp.sel = sw


def stamp(a, idx, sdbg, tmp_s, tmp_v, tmp_w=None):
    tmp_w = tmp_w or tmp_v + 1
    if not P['stamp']:
        return
    lab = 'Lst%d' % stamp.n
    stamp.n += 1
    a.nocount = True
    a('s_cmp_lg_u32 s%d, %d' % (stamp.sel, P['stw']))
    a('s_cbranch_scc1 %s' % lab)
    a('s_memrealtime %s' % sr(tmp_s, 2))
    a('s_waitcnt lgkmcnt(0)')
    a('v_mov_b32 v%d, s%d' % (tmp_v, tmp_s))
    a('v_mov_b32 v%d, %d' % (tmp_w, idx * 4))
    a('buffer_store_dword v%d, v%d, %s, 0 offen' % (tmp_v, tmp_w, sr(sdbg, 4)))
    a('s_memtime %s' % sr(tmp_s, 2))
    a('s_waitcnt lgkmcnt(0)')
    a('v_mov_b32 v%d, s%d' % (tmp_v, tmp_s))
    a('buffer_store_dword v%d, v%d, %s, 0 offen offset:64' % (tmp_v, tmp_w, sr(sdbg, 4)))
    a(lab + ':')
    a.nocount = False


stamp.n = 0
stamp.sel = 0


def k1(a):
    CNTB, SCR, CNTA = 0, 4096, 4224
    DATB, DATA = 4224, 8320
    S_IN, S_OUT, S_ANG, S_REC, S_DSC, S_T0, S_DBG = 24, 28, 32, 36, 40, 44, 92
    S_REC2 = 80
    sMB, sMC, sNEG, sHI, sT, sW = 64, 65, 66, 67, 68, 69
    sREM = 70
    sBASE, sPREP, sVB, sUM = 72, 73, 74, 75
    O16, O8, ONE, SIX = 1, 2, 3, 12
    TP = 4
    TS_ = 22
    ANG = 14
    ANGR = 13
    INA, OUTA, INB, OUTB, INR, OUTR = 28, 52, 76, 100, 124, 125
    ld = P['ld1']
    st = P['st1']

    a('s_cmp_ge_u32 s2, 256')
    a('s_cbranch_scc1 Lk1_end')
    a('s_load_dwordx4 s[4:7], s[0:1], 8')
    a('s_load_dwordx2 s[8:9], s[0:1], 32')
    a('s_load_dwordx4 s[76:79], s[0:1], 96')
    a('s_load_dwordx2 s[12:13], s[0:1], 0')
    a('s_load_dwordx8 s[16:23], s[0:1], 56')
    if P['cpf'] & 1:
        code_prefetch(a, 'a', 84, 127)
    a('v_lshlrev_b32 v%d, 4, v0' % O16)
    a('v_lshlrev_b32 v%d, 3, v0' % O8)
    a('v_mov_b32 v%d, 1' % ONE)
    a('v_mov_b32 v%d, 6' % SIX)
    a('v_lshrrev_b32 v4, 6, v0')
    a('v_readfirstlane_b32 s%d, v4' % sW)
    a('v_mov_b32 v4, 0')
    a('v_lshlrev_b32 v5, 2, v0')
    a('ds_write_b32 v5, v4 offset:%d' % CNTB)
    a('ds_write_b32 v5, v4 offset:%d' % CNTA)
    a('s_mov_b32 s%d, %d' % (sMB, -(-2**32 // BINE)))
    a('s_mov_b32 s%d, 21400' % sMC)
    a('s_mov_b32 s%d, %d' % (sNEG, -BINE))
    a('s_mov_b32 s%d, 0xffff0000' % sHI)
    a('s_mov_b32 s%d, 0x80008000' % sVB)
    a('s_mov_b32 s%d, 0xff000' % sUM)
    a('s_mul_i32 s14, s2, 200000')
    a('s_mul_i32 s15, s2, 100000')
    a('s_movk_i32 s%d, 848' % sT)
    a('v_cmp_gt_u32 %s, s%d, v0' % (sr(sREM, 2), sT))
    a('v_and_b32 v13, 63, v0')
    a('v_lshlrev_b32 v27, 4, v13')
    a('s_lshl_b32 s%d, s2, 4' % sPREP)
    a('s_or_b32 s%d, s%d, s%d' % (sPREP, sPREP, sW))
    a('s_waitcnt lgkmcnt(0)')
    srd(a, S_IN, 4, 200000, 's14')
    srd(a, S_OUT, 6, 200000, 's14')
    srd(a, S_ANG, 8, 100000, 's15')
    stamp_init(a, S_DBG, 78, 0, sW)
    stamp(a, 0, S_DBG, 96, 126)
    a('s_cmp_lg_u32 s%d, 0' % sPREP)
    a('s_cbranch_scc1 Lk1_main')
    a.nocount = True
    srd(a, S_T0, 18, 768)
    srd(a, S_T0 + 4, 20, 512)
    srd(a, S_T0 + 8, 22, 512)
    srd(a, S_T0 + 12, 16, 256)
    srd(a, S_T0 + 16, 12, E * 32)
    for i in range(4):
        a('buffer_load_dwordx4 %s, v27, %s, 0 offen' % (vr(76 + 4 * i, 4), sr(S_T0 + 4 * i, 4)))
    a('v_mul_u32_u24 v4, 99984, v13')
    for i in range(4):
        a('s_mov_b32 s%d, %d' % (sT, i * 64 * 99984))
        a('buffer_load_dwordx4 %s, v4, %s, s%d offen' % (vr(92 + 4 * i, 4), sr(S_T0 + 16, 4), sT))
    a.nocount = False
    a('Lk1_main:')
    a('s_lshl_b32 s14, s2, 1')
    a('s_mul_i32 s15, s14, %d' % TS)
    a('s_add_u32 s15, s15, %d' % REC0)
    srd(a, S_REC, 78, 0, 's15')
    a('s_add_u32 s15, s15, %d' % TS)
    srd(a, S_REC2, 78, 0, 's15')
    a('s_lshl_b32 s15, s14, 12')
    a('s_add_u32 s15, s15, %d' % DESC0)
    srd(a, S_DSC, 78, 8192, 's15')

    marks = {}

    def regs(j):
        return ((INA, OUTA) if j < 6 else (INB, OUTB)), 4 * (j % 6), ANG + 2 * (j % 4)

    def loads(j):
        if j == 12:
            a('v_lshlrev_b32 v10, 2, v0')
            a('v_lshlrev_b32 v11, 1, v0')
            a('s_mov_b32 s%d, %d' % (sT, 12 * 16384))
            a('buffer_load_dword v%d, v10, %s, s%d offen %s' % (OUTR, sr(S_OUT, 4), sT, ld))
            a('buffer_load_dword v%d, v10, %s, s%d offen %s' % (INR, sr(S_IN, 4), sT, ld))
            a('s_mov_b32 s%d, %d' % (sT, 12 * 8192))
            a('buffer_load_ushort v%d, v11, %s, s%d offen %s' % (ANGR, sr(S_ANG, 4), sT, ld))
        else:
            (rin, rout), o, rang = regs(j)
            a('s_mov_b32 s%d, %d' % (sT, j * 16384))
            a('buffer_load_dwordx4 %s, v%d, %s, s%d offen %s' % (vr(rout + o, 4), O16, sr(S_OUT, 4), sT, ld))
            a('buffer_load_dwordx4 %s, v%d, %s, s%d offen %s' % (vr(rin + o, 4), O16, sr(S_IN, 4), sT, ld))
            a('s_mov_b32 s%d, %d' % (sT, j * 8192))
            a('buffer_load_dwordx2 %s, v%d, %s, s%d offen %s' % (vr(rang, 2), O8, sr(S_ANG, 4), sT, ld))
        marks[j] = a.mark()

    def pack2(items, rg, cnt):
        a('v_or_b32 v%d, s%d, v%d' % (rg, sVB, rg))
        for e, (ri, ro) in enumerate(items):
            a('v_mul_hi_u32_u24 v%d, s%d, v%d' % (TP + e, sMB, ro))
            a('v_and_b32 v%d, s%d, v%d' % (TP + 2 + e, sUM, ri))
        for e, (ri, ro) in enumerate(items):
            a('v_mul_hi_u32_u24 v%d, s%d, v%d' % (TP + 2 + e, sMC, TP + 2 + e))
            a('v_mad_i32_i24 v%d, v%d, s%d, v%d' % (ro, TP + e, sNEG, ro))
        for e, (ri, ro) in enumerate(items):
            a('v_lshl_add_u32 v%d, v%d, 8, v%d' % (TP + e, TP + 2 + e, TP + e))
            a('v_lshl_or_b32 v%d, v%d, 20, v%d' % (ri, ro, ri))
        for e, (ri, ro) in enumerate(items):
            a('v_lshlrev_b32 v%d, 2, v%d' % (TP + e, TP + e))
        for e, (ri, ro) in enumerate(items):
            a('ds_add_u32 v%d, v%d offset:%d' % (TP + e, ONE, cnt))
            if e:
                a('v_and_or_b32 v%d, v%d, s%d, v%d' % (ro, rg, sHI, TP + e))
            else:
                a('v_lshl_or_b32 v%d, v%d, 16, v%d' % (ro, rg, TP + e))

    def pack(j):
        a.wait_vm(marks[j])
        if j == 12:
            a('s_mov_b64 exec, %s' % sr(sREM, 2))
            pack2([(INR, OUTR)], ANGR, CNTB)
            a('s_mov_b64 exec, -1')
            return
        (rin, rout), o, rang = regs(j)
        for h in range(2):
            pack2([(rin + o + 2 * h + e, rout + o + 2 * h + e) for e in range(2)], rang + h, CNTA if j < 6 else CNTB)

    def scan(sub, cnt, data, srec, mid1=None, mid2=None):
        a('v_lshlrev_b32 v10, 2, v0')
        a('s_waitcnt lgkmcnt(0)')
        a('s_barrier')
        a('ds_read_b32 v4, v10 offset:%d' % cnt)
        m = a.mark()
        if mid1:
            mid1()
        a('s_lshl_b32 s%d, s%d, 2' % (sT, sW))
        a('v_mov_b32 v8, s%d' % sT)
        a('v_and_b32 v9, 60, v10')
        a.wait_ds(m)
        a('v_add_u32 v6, 1, v4')
        a('v_lshrrev_b32 v6, 1, v6')
        a('v_mov_b32 v7, v6')
        scan64(a, 7)
        a('s_mov_b32 exec_lo, 0')
        a('s_mov_b32 exec_hi, 0x80000000')
        a('ds_write_b32 v8, v7 offset:%d' % SCR)
        a('s_mov_b64 exec, -1')
        a('s_waitcnt lgkmcnt(0)')
        a('s_barrier')
        a('ds_read_b32 v11, v9 offset:%d' % SCR)
        m = a.mark()
        if mid2:
            mid2()
        a('v_and_b32 v8, 255, v0')
        a('v_lshrrev_b32 v9, 8, v0')
        a('v_lshlrev_b32 v9, 2, v9')
        a('v_lshl_add_u32 v9, v8, 4, v9')
        a.wait_ds(m)
        a('v_mov_b32 v5, v11')
        for c in ('row_shr:1', 'row_shr:2', 'row_shr:4', 'row_shr:8'):
            a('v_add_u32_dpp v11, v11, v11 %s row_mask:0xf bank_mask:0xf' % c)
        a('v_sub_u32 v5, v11, v5')
        a('v_readlane_b32 s%d, v11, 15' % sT)
        a('v_readlane_b32 s%d, v5, s%d' % (sBASE, sW))
        a('s_mul_i32 s%d, s%d, 12' % (srec + 2, sT))
        a('v_add_u32 v7, s%d, v7' % sBASE)
        a('v_sub_u32 v6, v7, v6')
        a('s_movk_i32 s%d, %d' % (sT, data))
        a('v_mad_u32_u24 v6, v6, 12, s%d' % sT)
        a('ds_write_b32 v10, v6 offset:%d' % cnt)
        a('v_lshl_or_b32 v5, v4, 16, v7')
        a('v_mul_u32_u24 v7, 12, v7')
        a('v_mov_b32 v6, 0')
        a('v_and_b32 v4, 1, v4')
        a('v_lshrrev_b32 v8, 8, v0')
        a('v_add_u32 v8, 1568, v8')
        a('v_lshlrev_b32 v8, 9, v8')
        a('v_cmpx_eq_u32 vcc, 1, v4')
        a('ds_write_b16 v7, v6 offset:%d' % (data - 8))
        a('ds_write_b32 v7, v8 offset:%d' % (data - 4))
        a('s_mov_b64 exec, -1')
        a('s_movk_i32 s%d, %d' % (sT, sub * 4096))
        a('buffer_store_dword v5, v9, %s, s%d offen %s' % (sr(S_DSC, 4), sT, st))
        a('s_waitcnt lgkmcnt(0)')
        a('s_barrier')

    def rtn(t, ro, cnt):
        a('v_and_b32 v%d, 0xffff, v%d' % (t, ro))
        a('ds_add_rtn_u32 v%d, v%d, v%d offset:%d' % (t, t, SIX, cnt))

    def put(t, ri, ro, e):
        u = 8 + (e & 1)
        a('v_and_b32 v%d, 2, v%d' % (u, t))
        a('v_add_u32 v%d, v%d, v%d' % (t, t, u))
        a('v_mad_i32_i24 v%d, v%d, -5, v%d' % (u, u, t))
        a('ds_write_b32 v%d, v%d' % (t, ri))
        a('ds_write_b16_d16_hi v%d, v%d offset:6' % (u, ro))

    def scatter(rin, rout, cnt, rem, between):
        G = 3
        ng = 24 // G
        mk = {}
        if rem:
            a('s_mov_b64 exec, %s' % sr(sREM, 2))
            rtn(10, OUTR, cnt)
            a('s_mov_b64 exec, -1')
        for e in range(G):
            rtn(TS_ + e, rout + e, cnt)
        mk[0] = a.mark()
        for g in range(ng):
            cur, nxt = TS_ + (g & 1) * G, TS_ + ((g + 1) & 1) * G
            if g + 1 < ng:
                for e in range(G):
                    rtn(nxt + e, rout + (g + 1) * G + e, cnt)
                mk[g + 1] = a.mark()
            a.wait_ds(mk[g])
            for e in range(G):
                put(cur + e, rin + g * G + e, rout + g * G + e, e)
            if rem and g == 0:
                a('s_mov_b64 exec, %s' % sr(sREM, 2))
                put(10, INR, OUTR, 1)
                a('s_mov_b64 exec, -1')
            between(g)

    rd = {}

    def readout(base, data):
        a('v_add_u32 v22, 0x10000, v%d' % O16)
        a('v_add_u32 v23, 0x20000, v%d' % O16)
        for j in range(10):
            b = (O16, 22, 23)[j >> 2]
            a('ds_read_b128 %s, v%d offset:%d' % (vr(base + 4 * j, 4), b, data + (j & 3) * 16384))
            rd[j] = a.mark()

    def store(base, srec, j, wait=False):
        a('s_mov_b32 s%d, %d' % (sT, j * 16384))
        if wait:
            a.wait_ds(rd[j])
        a('buffer_store_dwordx4 %s, v%d, %s, s%d offen %s' % (vr(base + 4 * j, 4), O16, sr(srec, 4), sT, P['sta'] if base == INA else P['stb']))

    loads(0)
    loads(1)
    a('s_cmp_lg_u32 s%d, 0' % sPREP)
    a('s_barrier')
    a('s_cbranch_scc1 Lk1_noprep')
    a.nocount = True
    nds = a.nds
    prep(a, DATA, S_T0)
    a.nds = nds
    a.nocount = False
    a('Lk1_noprep:')
    for j in range(6):
        loads(j + 2)
        pack(j)
    stamp(a, 1, S_DBG, 96, 126)
    scan(0, CNTA, DATA, S_REC)
    stamp(a, 2, S_DBG, 96, 126)

    def btw_a(g):
        if g & 1:
            pack(6 + g // 2)
        else:
            loads(8 + g // 2)

    scatter(INA, OUTA, CNTA, False, btw_a)
    stamp(a, 3, S_DBG, 96, 126)
    loads(12)
    pack(10)
    pack(11)
    pack(12)
    stamp(a, 4, S_DBG, 96, 126)
    npre = P['npre']
    scan(1, CNTB, DATB, S_REC2, lambda: readout(INA, DATA), lambda: [store(INA, S_REC, j) for j in range(npre)])
    stamp(a, 5, S_DBG, 96, 126)
    todo = list(range(npre, 10))

    def btw_b(g):
        k = -(-len(todo) // (8 - g))
        for _ in range(k):
            store(INA, S_REC, todo.pop(0))

    scatter(INB, OUTB, CNTB, True, btw_b)
    stamp(a, 6, S_DBG, 96, 126)
    a('s_waitcnt lgkmcnt(0)')
    a('s_barrier')
    readout(INB, DATB)
    for j in range(10):
        store(INB, S_REC2, j, True)
    stamp(a, 7, S_DBG, 96, 126)
    if P['stamp']:
        a('s_waitcnt vmcnt(0)')
        stamp(a, 8, S_DBG, 96, 126)
    a('Lk1_end:')
    a('s_endpgm')
    a.fence()
    return DATB + (25424 + 1024) * 6


def prep(a, PB, S_T0):
    L, O = 13, 27
    sS = 80
    sS = 48
    a('s_waitcnt vmcnt(6)')
    for i in range(4):
        a('ds_write_b128 v%d, %s offset:%d' % (O, vr(76 + 4 * i, 4), PB + 1024 * i))
    a('v_mov_b32 v4, 0')
    for i in range(16):
        a('v_dot2_f32_bf16 v4, v%d, v%d, v4' % (92 + i, 92 + i))
    scan64(a, 4, 'v_add_f32')
    a('v_readlane_b32 s14, v4, 63')
    a('v_bfe_u32 v5, v%d, 3, 2' % L)
    a('v_and_b32 v6, 3, v%d' % L)
    a('v_lshl_or_b32 v5, v5, 2, v6')
    a('v_lshlrev_b32 v5, 1, v5')
    a('v_bfe_u32 v7, v%d, 2, 1' % L)
    a('v_lshrrev_b32 v8, 5, v%d' % L)
    a('s_waitcnt lgkmcnt(0)')
    for k in range(24):
        a('ds_read_u16 v%d, v5 offset:%d' % (76 + k, PB + 32 * k))
        if k % 8 == 7:
            a('s_waitcnt lgkmcnt(0)')
    for k in range(16):
        a('ds_read_u16 v%d, v5 offset:%d' % (100 + k, PB + 1024 + 32 * k))
        if k % 8 == 7:
            a('s_waitcnt lgkmcnt(0)')
    a('v_lshl_add_u32 v9, v8, 8, v5')
    for k in range(8):
        a('ds_read_u16 v%d, v9 offset:%d' % (116 + k, PB + 1024 + 32 * k))
    a('s_waitcnt lgkmcnt(0)')
    for k in range(48):
        a('v_lshlrev_b32 v%d, 16, v%d' % (76 + k, 76 + k))
    a('v_mul_f32 v9, v76, v76')
    for k in range(1, 24):
        a('v_fmac_f32 v9, v%d, v%d' % (76 + k, 76 + k))
    a('v_mul_f32 v10, v100, v100')
    for k in range(1, 16):
        a('v_fmac_f32 v10, v%d, v%d' % (100 + k, 100 + k))
    a('v_log_f32 v9, v9')
    a('v_log_f32 v10, v10')
    a('v_log_f32 v11, s14')
    a('v_add_f32 v10, v10, v9')
    a('v_add_f32 v10, v10, v11')
    c0 = math.log2(P['target']) - 0.5 * math.log2(0.1625 / 2048)
    a('v_mov_b32 v11, 0x%x' % f2u(c0))
    a('v_fmac_f32 v11, -0.5, v10')
    a('v_floor_f32 v11, v11')
    a('v_mul_f32 v9, 0.5, v9')
    a('v_floor_f32 v9, v9')
    a('s_mov_b32 s14, 0x%x' % f2u(40.0))
    a('v_med3_f32 v11, v11, -s14, s14')
    a('v_med3_f32 v9, -v9, -s14, s14')
    a('v_cvt_i32_f32 v11, v11')
    a('v_cvt_i32_f32 v9, v9')
    a('v_sub_u32 v10, v11, v9')
    a('v_subrev_u32 v10, 16, v10')
    for j in range(16):
        a('v_readlane_b32 s%d, v11, %d' % (sS + j, ((j >> 2) << 3) | (j & 3)))
    srd(a, S_T0, 78, 8192, str(PREP0))
    a('v_xor_b32 v4, v7, v8')
    a('v_subrev_u32 v4, 1, v4')
    a('v_subrev_u32 v6, 1, v7')
    a('v_sub_u32 v7, 0, v7')
    for k in range(24):
        a('v_ldexp_f32 v%d, v%d, v9' % (76 + k, 76 + k))
    if P['l2x']:
        for k in range(16):
            a('v_ldexp_f32 v%d, v%d, v10' % (100 + k, 100 + k))
        for jj in range(8):
            a('v_cvt_pk_bf16_f32 v%d, v%d, v%d' % (116 + jj, 100 + 2 * jj, 101 + 2 * jj))
    else:
        for k in range(8):
            a('v_ldexp_f32 v%d, v%d, v10' % (116 + k, 116 + k))
    for l in range(3):
        for jj in range(4):
            a('v_cvt_pk_f16_f32 v%d, v%d, v%d' % (100 + 4 * l + jj, 76 + 6 * jj + l, 76 + 6 * jj + 3 + l))
            a('v_and_b32 v%d, v%d, v4' % (100 + 4 * l + jj, 100 + 4 * l + jj))
        a('buffer_store_dwordx4 %s, v%d, %s, 0 offen offset:%d' % (vr(100 + 4 * l, 4), O, sr(S_T0, 4), 1024 * l))
    if P['l2x']:
        for jj in range(4):
            a('v_and_b32 v%d, v%d, v4' % (112 + jj, 116 + jj))
            a('v_and_b32 v%d, v%d, v4' % (120 + jj, 120 + jj))
    else:
        for jj in range(4):
            a('v_cvt_pk_bf16_f32 v%d, v%d, v%d' % (116 + jj, 116 + 2 * jj, 117 + 2 * jj))
        for jj in range(4):
            a('v_and_b32 v%d, v%d, v6' % (112 + jj, 116 + jj))
            a('v_and_b32 v%d, v%d, v7' % (120 + jj, 116 + jj))
    a('v_add_u32 v11, 4096, v%d' % O)
    a('buffer_store_dwordx4 v[112:115], v%d, %s, 0 offen offset:3072' % (O, sr(S_T0, 4)))
    a('buffer_store_dwordx4 v[120:123], v11, %s, 0 offen' % sr(S_T0, 4))
    a('v_bfe_u32 v5, v%d, 2, 1' % L)
    a('v_bfe_u32 v6, v%d, 3, 1' % L)
    a('v_lshl_or_b32 v5, v5, 1, v6')
    a('v_and_b32 v6, 3, v%d' % L)
    a('v_lshl_or_b32 v5, v5, 2, v6')
    a('v_lshlrev_b32 v5, 1, v5')
    a('v_bfe_u32 v7, v%d, 4, 1' % L)
    a('v_xor_b32 v4, v7, v8')
    a('v_subrev_u32 v4, 1, v4')
    for k in range(16):
        a('ds_read_u16 v%d, v5 offset:%d' % (76 + k, PB + 2048 + 32 * k))
        if k % 8 == 7:
            a('s_waitcnt lgkmcnt(0)')
    for k in range(8):
        a('ds_read_u16 v%d, v5 offset:%d' % (92 + k, PB + 3072 + 32 * k))
    a('s_waitcnt lgkmcnt(0)')
    for k in range(24):
        a('v_lshlrev_b32 v%d, 16, v%d' % (76 + k, 76 + k))
    a('v_mul_f32 v9, v92, v92')
    for k in range(1, 8):
        a('v_fmac_f32 v9, v%d, v%d' % (92 + k, 92 + k))
    a('v_log_f32 v9, v9')
    a('v_mul_f32 v9, 0.5, v9')
    a('v_floor_f32 v9, v9')
    a('v_med3_f32 v9, v9, -s14, s14')
    a('v_cvt_i32_f32 v9, v9')
    a('v_sub_u32 v10, 0, v9')
    for k in range(8):
        a('v_ldexp_f32 v%d, v%d, v10' % (92 + k, 92 + k))
    for k in range(16):
        a('v_subrev_u32 v6, s%d, v9' % (sS + k))
        a('v_ldexp_f32 v%d, v%d, v6' % (76 + k, 76 + k))
    for jj in range(8):
        a('v_cvt_pk_bf16_f32 v%d, v%d, v%d' % (76 + jj, 76 + 2 * jj, 77 + 2 * jj))
        a('v_and_b32 v%d, v%d, v4' % (76 + jj, 76 + jj))
    for jj in range(4):
        a('v_cvt_pk_f16_f32 v%d, v%d, v%d' % (84 + jj, 92 + 2 * jj, 93 + 2 * jj))
        a('v_and_b32 v%d, v%d, v4' % (84 + jj, 84 + jj))
    for i in range(3):
        a('buffer_store_dwordx4 %s, v11, %s, 0 offen offset:%d' % (vr(76 + 4 * i, 4), sr(S_T0, 4), 1024 * (i + 1)))
    a('s_nop 1')


from gen_k2p import k2


def main():
    a = Asm()
    body = Asm()
    out = []
    kernels = []
    for nm, fn in (('bin_kernel', k1), ('acc_kernel', k2)):
        b = Asm()
        if fn is k2:
            lds = fn(b, P, globals())
        else:
            lds = fn(b)
        kernels.append((nm, b, lds))
        if P['only1']:
            break
    hdr = open('cdna_kernels/%s.s.ref' % NAME).read().split('\n')
    hdr = [l for l in hdr if l.startswith(';') and '@launch' not in l and 'Override launch' not in l and 'grid=ceil' not in l]
    out += hdr
    for nm, b, lds in kernels:
        out.append('; @launch kernel=%s grid=(256,1,1) block=(%d,1,1) lds=%d' % (nm, 1024 if nm[0] == 'b' else 512, lds))
    if P['k2x']:
        out.append(out[-1])
    out.append('.amdgcn_target "amdgcn-amd-amdhsa--gfx950"')
    out.append('.text')
    for nm, b, lds in kernels:
        out.append('.globl %s\n.p2align 8\n.type %s,@function\n%s:' % (nm, nm, nm))
        out.append(b.text())
    out.append('.section .rodata,"a"')
    for nm, b, lds in kernels:
        out.append('''.p2align 6
.amdhsa_kernel %s
  .amdhsa_next_free_vgpr %d
  .amdhsa_next_free_sgpr 102
  .amdhsa_accum_offset %d
  .amdhsa_group_segment_fixed_size 0
  .amdhsa_kernarg_size 112
  .amdhsa_user_sgpr_count 2
  .amdhsa_user_sgpr_kernarg_segment_ptr 1
  .amdhsa_system_sgpr_workgroup_id_x 1
.end_amdhsa_kernel''' % (nm, 128 if nm[0] == 'b' else 256, 128 if nm[0] == 'b' else 256))
    open(sys.argv[1], 'w').write('\n'.join(out) + '\n')


main()
```

```python
import math


def k2(a, P, G):
    vr, sr, srd, f2u = G['vr'], G['sr'], G['srd'], G['f2u']
    E, BINE, TS, TSP = G['E'], G['BINE'], G['TS'], G['TSP']
    REC0, DESC0, PREP0, WS_BYTES = G['REC0'], G['DESC0'], G['PREP0'], G['WS_BYTES']
    PL = BINE * 4
    RBF0 = 5 * PL + 12
    HI0 = RBF0 + BINE * 16
    SCR = HI0 + 4 * PL
    LDS = SCR + 128
    KC0, TB0, BB0, SC0, RING0 = 0, 6400, 15104, 19200, 19456
    NSL = 15
    NBLK = 51
    NQ = 7
    S_M, S_MR, S_WS, S_DIST, S_MO, S_OUT, S_DBG = 16, 20, 24, 28, 32, 36, 92
    sCEN = 40
    sW, sBIN, sT, sT2 = 48, 49, 50, 51
    sM0, sM1, sIDM, sHI, sA16 = 52, 53, 54, 55, 56
    sPASS, sMODE, sIX = 57, 58, 59
    sV6 = 60
    sMK = 62
    sFL, sSK = 64, 78
    sPc = 64
    sR, sTB, sRB, sRE, sPS = 69, 70, 71, 72, 73
    sLO = 74
    sMA = 76
    sLM = 84
    sEND = 88
    sEW = 80
    sF, sE, sDL, sI, sP, sNT, sSUB = 4, 5, 6, 7, 8, 9, 10
    LANE, S0 = 1, 2
    AG, AM, GATE, MD = 164, 176, 184, 200
    GB = (156, 216)
    SBF, RBF = 224, 232
    IA, IB = 236, 238
    A16, ANG = (240, 241), (242, 243)
    A4, A4B, CV = 244, 245, 246
    RTN = (247, 248)
    STK, CK, TM = 249, 250, 251
    RAW = 156
    RT, RA = 216, 232
    TA, NA = 240, 2
    TF = (244, 245)
    TH, VM, ONE, EIGHT, L12, RBA, WD, WA = 246, 248, 249, 250, 251, 252, 253, 254
    lab = [0]

    def stamp(i, late=False):
        G['stamp'](a, i, S_DBG, 96, *((155, 254) if late else (235, 255)))

    def plane(j):
        return (A4, j * PL) if j < 5 else (A4B, (j - 5) * PL)

    def desc_load(dst, tb):
        a('v_lshlrev_b32 v%d, 12, v0' % tb)
        a('s_lshl_b32 s%d, s%d, 4' % (sT, sBIN))
        a('s_add_u32 s%d, s%d, %d' % (sT, sT, DESC0))
        a('buffer_load_dwordx4 %s, v%d, %s, s%d offen' % (vr(dst, 4), tb, sr(S_WS, 4), sT))

    def scan4(v):
        for c, rm in (('row_shr:1', 15), ('row_shr:2', 15), ('row_shr:4', 15), ('row_shr:8', 15), ('row_bcast:15', 10), ('row_bcast:31', 12)):
            for k in range(4):
                a('v_add_u32_dpp v%d, v%d, v%d %s row_mask:0x%x bank_mask:0xf' % (v + k, v + k, v + k, c, rm))

    def img_load(first, n, dst, t):
        a('v_lshlrev_b32 v%d, 4, v%d' % (t, LANE))
        for i in range(n):
            a('s_mov_b32 s%d, %d' % (sT, PREP0 + 1024 * (first + i)))
            a('buffer_load_dwordx4 %s, v%d, %s, s%d offen' % (vr(dst + 4 * i, 4), t, sr(S_WS, 4), sT))

    def gathers(q):
        a('buffer_load_dwordx4 %s, %s, %s, 0 idxen offen' % (vr(GB[q], 4), vr(IA, 2), sr(S_M, 4)))
        a('buffer_load_dwordx4 %s, %s, %s, 0 idxen offen' % (vr(GB[q] + 4, 4), vr(IB, 2), sr(S_M, 4)))

    def cosines(p):
        c1, c3, c2 = TM, TM + 1, TM + 2
        a('v_mul_f32 v%d, 0x40400000, v%d' % (c3, ANG[p]))
        a('v_mul_f32 v%d, 0.15915494, v%d' % (c1, ANG[p]))
        a('v_cvt_pk_bf16_f32 v%d, 0, v%d' % (c3, c3))
        a('v_fract_f32 v%d, v%d' % (c1, c1))
        a('v_mul_f32 v%d, 0.15915494, v%d' % (c3, c3))
        a('v_cos_f32 v%d, v%d' % (c1, c1))
        a('v_fract_f32 v%d, v%d' % (c3, c3))
        a('v_add_f32 v%d, v%d, v%d' % (c2, c1, c1))
        a('v_cos_f32 v%d, v%d' % (c3, c3))
        a('v_fma_f32 v%d, v%d, v%d, -1.0' % (c2, c2, c1))
        a('v_cvt_pk_f16_f32 v%d, v%d, v%d' % (c1, c1, c2))
        a('v_cvt_f16_f32 v%d, v%d' % (c3, c3))

    def sbf(l):
        src, sel = ((TM, 0), (TM, 1), (TM + 1, 0))[l]
        for j in range(4):
            a('v_pk_mul_f16 v%d, v%d, v%d op_sel:[0,%d] op_sel_hi:[1,%d]' % (SBF + 4 * (l & 1) + j, RBF + j, src, sel, sel))

    def gmf(l):
        a('v_mfma_f32_32x32x16_f16 %s, %s, %s, %s' % (vr(GATE, 16), vr(AG + 4 * l, 4), vr(SBF + 4 * (l & 1), 4), vr(GATE, 16) if l else '0'))

    def mdown(p):
        a('v_mfma_f32_32x32x16_bf16 %s, %s, %s, 0' % (vr(MD, 16), vr(AM, 4), vr(GB[p], 4)))
        a('v_mfma_f32_32x32x16_bf16 %s, %s, %s, %s' % (vr(MD, 16), vr(AM + 4, 4), vr(GB[p] + 4, 4), vr(MD, 16)))

    def addrs(p):
        a('v_lshrrev_b32 v%d, 2, v%d' % (A4, A16[p]))
        a('v_add_u32 v%d, %d, v%d' % (A4B, HI0, A4))

    def decode_rel(p, base, part=3):
        a('s_set_gpr_idx_on s%d, gpr_idx(SRC1)' % sIX)
        a('s_nop 0')
        if part & 1:
            a('v_and_b32 v%d, s%d, v%d' % (IA, sIDM, S0 + base + p))
            a('v_and_b32 v%d, s%d, v%d' % (IB, sIDM, S0 + base + p))
        if part & 2:
            a('v_and_b32_sdwa v%d, s%d, v%d dst_sel:DWORD dst_unused:UNUSED_PAD src0_sel:DWORD src1_sel:WORD_1' % (A16[p], sA16, S0 + base + p))
            if p:
                a('v_and_b32 v%d, s%d, v%d' % (ANG[p], sHI, S0 + base + 2))
            else:
                a('v_lshlrev_b32 v%d, 16, v%d' % (ANG[p], S0 + base + 2))
        a('s_set_gpr_idx_off')
        if part & 1:
            a('v_permlane32_swap_b32 v%d, v%d' % (IA, IB))

    def halfbar(hi):
        n = lab[0]
        lab[0] += 1
        a('s_bitcmp%d_b32 s%d, %d' % (0 if hi else 1, sW, P['stb_']))
        a('s_cbranch_scc1 Lhb%d' % n)
        a('s_barrier')
        a('Lhb%d:' % n)

    def step(p):
        q = 1 - p
        ab = P['abl']
        vq = (lambda t: None) if ab & 4 else a
        vb = (lambda t: None) if ab & 68 else a
        va = (lambda t: None) if ab & 1 else a
        if P['early']:
            decode_rel(p, 3, 1)
        a('s_waitcnt vmcnt(2)')
        if not ab & 16:
            mdown(p)
        if P['early']:
            gathers(p)
        if not ab & 32:
            cosines(p)
        a('s_waitcnt lgkmcnt(%d)' % (0 if ab & 1 else 9))
        if not ab & 32:
            sbf(0)
        addrs(p)
        if not ab & 8:
            gmf(0)
        if not ab & 32:
            sbf(1)
        a('v_or_b32 v%d, v%d, v%d' % (STK, STK, RTN[p]))
        a('s_cmp_eq_u32 s%d, s%d' % (sIX, sEND))
        if not ab & 8:
            gmf(1)
        if not ab & 32:
            sbf(2)
        a('ds_read_b128 %s, v%d offset:%d' % (vr(RBF, 4), A16[q], RBF0))
        a('s_cselect_b64 %s, %s, -1' % (sr(sMK, 2), sr(sLM + 2 * p, 2)))
        if not ab & 8:
            gmf(2)
        if P['early']:
            decode_rel(p, 3, 2)
        else:
            decode_rel(p, 3)
            gathers(p)
        if P['stag'] and (p == 1 or P['stag'] == 2):
            halfbar(1)
        a('s_mov_b64 exec, %s' % sr(sMK, 2))
        for j in range(8):
            vq('v_fma_f32 v%d, v%d, v%d, s%d' % (MD + 2 * j, MD + 2 * j, GATE + 2 * j, sM0))
            vq('v_fma_f32 v%d, v%d, v%d, s%d' % (MD + 2 * j + 1, MD + 2 * j + 1, GATE + 2 * j + 1, sM0))
            if j:
                jj = j - 1
                vb('v_sad_u16 v%d, v%d, s%d, v%d' % (TM + (jj >> 1), MD + 2 * jj, sM1, TM + (jj >> 1) if jj & 1 else CK))
            vq('v_cvt_pknorm_u16_f32 v%d, v%d, v%d' % (MD + 2 * j, MD + 2 * j, MD + 2 * j + 1))
            b, o = plane(j)
            va('ds_add_u32 v%d, v%d offset:%d' % (b, MD + 2 * j, o))
        vb('v_max3_u32 v%d, v%d, v%d, v%d' % (CV, TM, TM + 1, TM + 2))
        vb('v_sad_u16 v%d, v%d, s%d, v%d' % (TM + 3, MD + 14, sM1, TM + 3))
        vb('v_max_u32 v%d, v%d, v%d' % (CV, CV, TM + 3))
        va('ds_add_rtn_u32 v%d, v%d, v%d offset:%d' % (RTN[p], A4B, CV, 3 * PL))
        a('s_mov_b64 exec, -1')

    a('s_cmp_ge_u32 s2, 256')
    a('s_cbranch_scc1 Lk2_end')
    a('s_load_dwordx2 s[4:5], s[0:1], 0')
    a('s_load_dwordx2 s[6:7], s[0:1], 24')
    a('s_load_dwordx2 s[8:9], s[0:1], 40')
    a('s_load_dwordx2 s[10:11], s[0:1], 88')
    a('s_load_dwordx4 s[12:15], s[0:1], 96')
    if P['cpf'] & 2:
        G['code_prefetch'](a, 'b', 88, 4)
    a('v_lshrrev_b32 v2, 6, v0')
    a('v_and_b32 v%d, 63, v0' % LANE)
    a('v_readfirstlane_b32 s%d, v2' % sW)
    a('s_and_b32 s%d, s2, 7' % sBIN)
    a('s_lshl_b32 s%d, s%d, 5' % (sBIN, sBIN))
    a('s_lshr_b32 s%d, s2, 3' % sT)
    a('s_add_u32 s%d, s%d, s%d' % (sBIN, sBIN, sT))
    a('s_mov_b32 s%d, 0x%x' % (sM0, f2u(32768.0 / 65535.0)))
    a('s_mov_b32 s%d, 0x80008000' % sM1)
    a('s_mov_b32 s%d, 0x%x' % (sIDM, P['idm']))
    a('s_mov_b32 s%d, 0xffff0000' % sHI)
    a('s_mov_b32 s%d, 0xfff0' % sA16)
    a('s_mov_b32 s%d, 0x07060302' % sPS)
    a('s_mov_b32 s%d, 0' % sMODE)
    a('v_cmp_gt_u32 %s, %d, v0' % (sr(sV6, 2), BINE - 3072))
    a('v_lshrrev_b32 v%d, 5, v%d' % (IA + 1, LANE))
    a('v_lshlrev_b32 v%d, 4, v%d' % (IA + 1, IA + 1))
    a('v_mov_b32 v%d, v%d' % (IB + 1, IA + 1))
    a('v_mov_b32 v%d, 0' % IA)
    a('v_mov_b32 v%d, 0' % IB)
    a('s_waitcnt lgkmcnt(0)')
    a('s_load_dwordx4 s[96:99], s[8:9], 0')
    srd(a, S_WS, 14, WS_BYTES)
    D, X, DL = RAW, RAW + 4, RAW + 8
    desc_load(D, RAW + 12)
    a('s_mul_i32 s%d, s%d, %d' % (sT, sBIN, BINE * 2))
    a('s_mul_i32 s%d, s%d, %d' % (sT2, sBIN, BINE * 32))
    srd(a, S_DIST, 6, BINE * 2, 's%d' % sT)
    srd(a, S_M, 4, E, None, 32)
    srd(a, S_MR, 4, E * 32)
    srd(a, S_MO, 4, BINE * 32, 's%d' % sT2)
    srd(a, S_OUT, 10, BINE * 32, 's%d' % sT2)
    G['stamp_init'](a, S_DBG, 14, 1, sW)
    a('s_waitcnt lgkmcnt(0)')
    for r in range(4):
        a('s_lshl_b32 s%d, s%d, 16' % (sCEN + 2 * r, 96 + r))
        a('s_and_b32 s%d, s%d, 0xffff0000' % (sCEN + 2 * r + 1, 96 + r))
    a('s_mov_b32 s%d, 0x%x' % (sR, f2u(math.sqrt(10.0 * math.log2(math.e)))))
    a('v_mov_b32 v%d, s%d' % (RT + 8, sR))
    for r in range(8):
        a('v_mul_f32 v%d, s%d, v%d' % (RT + r, sCEN + r, RT + 8))
    for r in range(8):
        a('v_readfirstlane_b32 s%d, v%d' % (sCEN + r, RT + r))
    stamp(0)
    Z, T0 = RAW + 16, RAW + 24
    for i in range(4):
        a('v_mov_b32 v%d, 0' % (Z + i))
        a('v_bfrev_b32 v%d, 1' % (Z + 4 + i))
    a('v_lshlrev_b32 v%d, 4, v0' % T0)
    a('v_lshlrev_b32 v%d, 3, v0' % (T0 + 1))
    a('s_mul_i32 s%d, s%d, 1088' % (sTB, sW))
    a('v_lshl_add_u32 v%d, v%d, 4, s%d' % (T0 + 2, LANE, sTB))
    a('ds_write_b64 v%d, %s offset:%d' % (T0 + 1, vr(Z, 2), BB0))
    a('ds_write_b128 v%d, %s offset:%d' % (T0 + 2, vr(Z + 4, 4), TB0))
    a('ds_write_b128 v%d, %s offset:%d' % (T0 + 2, vr(Z + 4, 4), TB0 + 64))
    a('s_movk_i32 s%d, 400' % sT)
    a('v_cmpx_gt_u32 vcc, s%d, v0' % sT)
    a('ds_write_b128 v%d, %s offset:%d' % (T0, vr(Z, 4), KC0))
    a('s_mov_b64 exec, -1')
    a('v_mov_b32 v%d, 1' % ONE)
    a('v_mov_b32 v%d, 8' % EIGHT)
    a('v_mul_u32_u24 v%d, 12, v%d' % (L12, LANE))
    a('s_lshl_b32 s%d, s%d, 10' % (sT, sW))
    a('v_lshl_add_u32 v%d, v%d, 3, s%d' % (RBA, LANE, sT))
    a('s_lshl_b32 s%d, s2, 3' % sT)
    a('s_add_u32 s%d, s%d, s%d' % (sT, sT, sW))
    a('s_mul_i32 s%d, s%d, 25' % (sT, sT))
    a('v_min_u32 v%d, 24, v%d' % (WA, LANE))
    a('v_add_lshl_u32 v%d, v%d, s%d, 7' % (WA, WA, sT))
    for j in range(4):
        if P['wpos'][j] == '0':
            a('s_mov_b32 s%d, %d' % (sT, j * 51200 * 128))
            a('buffer_load_dword v%d, v%d, %s, s%d offen' % (WD, WA, sr(S_MR, 4), sT))
    a('s_movk_i32 s%d, %d' % (sT, REC0 // 12))
    a('v_mov_b32 v%d, %d' % (T0 + 3, TSP))
    a('v_mad_u32_u24 v%d, v0, v%d, s%d' % (T0 + 3, T0 + 3, sT))
    a('s_waitcnt vmcnt(%d)' % (0 if P['stamp'] else P['wpos'].count('0')))
    NP = RAW + 28
    for k in range(4):
        a('v_add_u32 v%d, 0x10000, v%d' % (NP + k, D + k))
        a('v_bfe_u32 v%d, v%d, 16, 1' % (X + k, D + k))
        a('v_lshrrev_b32 v%d, 17, v%d' % (NP + k, NP + k))
        a('v_and_b32 v%d, 0xffff, v%d' % (D + k, D + k))
        a('v_lshl_or_b32 v%d, v%d, 20, v%d' % (X + k, X + k, NP + k))
    scan4(X)
    TT = RAW + 32
    a('s_movk_i32 s%d, %d' % (sT2, NSL * 64))
    for k in range(4):
        a('v_lshrrev_b32 v%d, 20, v%d' % (TT + k, X + k))
        a('v_and_b32 v%d, 0xfffff, v%d' % (X + k, X + k))
        a('v_add_u32 v%d, v%d, v%d' % (DL + k, D + k, T0 + 3))
        a('v_sub_u32 v%d, v%d, v%d' % (TT + k, X + k, TT + k))
        a('v_sub_u32 v%d, v%d, v%d' % (DL + k, DL + k, X + k))
        a('v_add_u32 v%d, v%d, v%d' % (TT + k, TT + k, X + k))
        a('v_mul_u32_u24 v%d, 12, v%d' % (DL + k, DL + k))
        a('v_subrev_u32 v%d, %d, v%d' % (T0, 64 * P['nfull'], X + k))
        a('v_cmpx_lt_u32 vcc, %d, v%d' % (64 * (NSL - P['nfull']), T0))
        a('v_mov_b32 v%d, 0x1000000' % (TT + k))
        a('s_mov_b64 exec, -1')
    for k in range(4):
        a('v_readlane_b32 s%d, v%d, 63' % (sEW + k, X + k))
    a('s_lshl_b32 s%d, s%d, 4' % (sT, sW))
    a('v_mov_b32 v%d, s%d' % (T0, sT))
    a('s_mov_b32 exec_lo, 0')
    a('s_mov_b32 exec_hi, 0x80000000')
    a('ds_write_b128 v%d, %s offset:%d' % (T0, vr(TT, 4), SC0))
    a('s_mov_b64 exec, -1')
    a('s_lshl_b32 s%d, s%d, 9' % (sT, sW))
    for k in range(4):
        a('v_subrev_u32 v%d, 1, v%d' % (T0, X + k))
        a('v_lshlrev_b32 v%d, v%d, v%d' % (T0 + 1, T0, ONE))
        a('v_lshrrev_b32 v%d, 5, v%d' % (T0, T0))
        a('v_lshl_add_u32 v%d, v%d, 2, s%d' % (T0, T0, sT))
        a('v_cmpx_ge_u32 vcc, s%d, v%d' % (sT2, X + k))
        a('v_cmpx_ne_u32 vcc, 0, v%d' % (NP + k))
        a('v_mbcnt_lo_u32_b32 v%d, vcc_lo, 0' % (T0 + 2))
        a('v_mbcnt_hi_u32_b32 v%d, vcc_hi, v%d' % (T0 + 2, T0 + 2))
        a('v_lshl_add_u32 v%d, v%d, 2, s%d' % (T0 + 2, T0 + 2, sTB))
        a('ds_or_b32 v%d, v%d offset:%d' % (T0, T0 + 1, BB0 + 128 * k))
        a('ds_write_b32 v%d, v%d offset:%d' % (T0 + 2, DL + k, TB0 + 272 * k))
        a('s_mov_b64 exec, -1')
    a('v_and_b32 v%d, 7, v0' % T0)
    a('v_lshlrev_b32 v%d, 4, v%d' % (T0, T0))
    a('s_waitcnt lgkmcnt(0)')
    a('s_barrier')
    a('ds_read_b128 %s, v%d offset:%d' % (vr(TT, 4), T0, SC0))
    a('s_mov_b32 s%d, 0' % sPc)
    a('s_waitcnt lgkmcnt(0)')
    for c in ('row_shr:1', 'row_shr:2', 'row_shr:4'):
        for k in range(4):
            a('v_add_u32_dpp v%d, v%d, v%d %s row_mask:0xf bank_mask:0xf' % (TT + k, TT + k, TT + k, c))
    for k in range(4):
        a('v_readlane_b32 s%d, v%d, 7' % (sPc + 1 + k, TT + k))
    for k in range(1, 4):
        a('s_add_u32 s%d, s%d, s%d' % (sPc + 1 + k, sPc + 1 + k, sPc + k))
    a('s_cmp_gt_u32 s%d, %d' % (sPc + 4, NBLK * 1024 if P['force_slow'] != 4 else 0))
    a('s_cbranch_scc1 Lk2_fb')
    a('s_cmp_ge_u32 s%d, %d' % (sPc + 2, 29 * 1024))
    a('s_cbranch_scc1 Lk2_fb')
    stamp(1)

    BUF = (96, 156)
    LEAD, HP = P['lead'], P['hp']
    RO, ZR = 184, 212
    DI = (TF[0], TF[1], VM, L12, TH, TH + 1, ONE)
    NFULL = P['nfull']
    mA, mC, mV, mM = {}, {}, {}, {}

    def raw(u):
        return BUF[(u // NSL) & 1] + 4 * (u % NSL)

    def Mrd(r):
        a('s_lshl_b32 s%d, s%d, 9' % (sT, sW))
        a('v_lshl_add_u32 v%d, v%d, 2, s%d' % (VM, LANE, sT))
        a('s_mul_i32 s%d, s%d, 1088' % (sTB, sW))
        a('ds_read_b32 v%d, v%d offset:%d' % (VM, VM, BB0 + 128 * r))
        mM[r] = a.mark()

    def A(u):
        R = raw(u)
        tail = u % NSL >= NFULL
        if tail:
            a('v_cmpx_gt_i32 %s, 0, v%d' % (sr(sMA + 2 * (u % NA), 2), R + 1))
        for e in range(2):
            t = TA + 2 * (u % NA) + e
            a('v_and_b32 v%d, 0xffff, v%d' % (t, R + 2 * e + 1))
            if not P['abl'] & 256:
                a('ds_add_rtn_u32 v%d, v%d, v%d offset:%d' % (t, t, EIGHT, KC0))
            else:
                a('v_lshlrev_b32 v%d, 3, v%d' % (t, R + 2 * e))
        if tail:
            a('s_mov_b64 exec, -1')
        mA[u] = a.mark()

    def B(u):
        R = raw(u)
        tail = u % NSL >= NFULL
        if tail:
            a('s_mov_b64 exec, %s' % sr(sMA + 2 * (u % NA), 2))
        a.wait_ds(mA[u])
        for e in range(2):
            t = TA + 2 * (u % NA) + e
            a('v_and_b32 v%d, 0x1ffff, v%d' % (t, t))
            if not P['abl'] & 512:
                a('ds_write_b64 v%d, %s offset:%d' % (t, vr(R + 2 * e, 2), RING0))
        if tail:
            a('s_mov_b64 exec, -1')

    def C(u):
        if u >= 4 * NSL:
            return
        r, k = divmod(u, NSL)
        t = TF[u & 1]
        if k == 0:
            a.wait_ds(mM[r])
        a('v_readlane_b32 s%d, v%d, %d' % (sLO, VM, 2 * k))
        a('v_readlane_b32 s%d, v%d, %d' % (sLO + 1, VM, 2 * k + 1))
        a('s_bcnt1_i32_b64 s%d, %s' % (sT, sr(sLO, 2)))
        a('v_mbcnt_lo_u32_b32 v%d, s%d, 0' % (t, sLO))
        a('v_mbcnt_hi_u32_b32 v%d, s%d, v%d' % (t, sLO + 1, t))
        a('v_lshl_add_u32 v%d, v%d, 2, s%d' % (t, t, sTB))
        a('s_lshl2_add_u32 s%d, s%d, s%d' % (sTB, sT, sTB))
        a('ds_read_b32 v%d, v%d offset:%d' % (t, t, TB0 + 272 * r))
        mC[u] = a.mark()

    def Dd(u):
        if u >= 4 * NSL:
            return
        t = TF[u & 1]
        a('s_movk_i32 s%d, %d' % (sT2, 768 * (u % NSL)))
        a.wait_ds(mC[u])
        a('v_add_u32 v%d, v%d, v%d' % (t, t, L12))
        if P['abl'] & 2048:
            a('v_and_b32 v%d, 0x3ffff, v%d' % (t, t))
        a('buffer_load_dwordx3 %s, v%d, %s, s%d offen %s' % (vr(raw(u), 3), t, sr(S_WS, 4), sT2, P['ldrec']))
        mV[u] = a.mark()

    def H(u):
        R = raw(u)
        tail = u % NSL >= NFULL
        a.wait_vm(mV[u])
        if tail:
            a('v_cmpx_gt_i32 vcc, 0, v%d' % (R + 1))
        for e in range(2):
            a('v_lshrrev_b32 v%d, 7, v%d' % (TH + e, R + 2 * e))
        for e in range(2):
            a('v_and_b32 v%d, 0x1ffc, v%d' % (TH + e, TH + e))
        for e in range(2):
            if not P['abl'] & 1024:
                a('ds_add_u32 v%d, v%d offset:%d' % (TH + e, ONE, KC0))
        a('v_lshl_or_b32 v%d, v%d, 16, v%d' % (R + 3, R + 1, TH + 1))
        a('v_and_or_b32 v%d, v%d, s%d, v%d' % (R + 1, R + 1, sHI, TH))
        if tail:
            a('s_mov_b64 exec, -1')

    def keyscan(r):
        K = RT
        nds = a.nds
        a('s_cmp_lg_u32 s%d, %d' % (sW, P['scw']))
        a('s_cbranch_scc1 Lks%d' % r)
        a('v_lshlrev_b32 v%d, 5, v%d' % (RA, LANE))
        a('ds_read_b128 %s, v%d offset:%d' % (vr(K, 4), RA, KC0 + 1568 * r))
        a('ds_read_b128 %s, v%d offset:%d' % (vr(K + 4, 4), RA, KC0 + 1568 * r + 16))
        a('s_waitcnt lgkmcnt(0)')
        for j in range(1, 8):
            a('v_add_u32 v%d, v%d, v%d' % (K + j, K + j, K + j - 1))
        a('v_mov_b32 v%d, v%d' % (RA + 1, K + 7))
        G['scan64'](a, RA + 1)
        a('v_sub_u32 v%d, v%d, v%d' % (RA + 1, RA + 1, K + 7))
        a('v_add_u32 v%d, s%d, v%d' % (RA + 1, sPc + r, RA + 1))
        a('v_lshlrev_b32 v%d, 3, v%d' % (K + 8, RA + 1))
        for j in range(1, 8):
            a('v_add_lshl_u32 v%d, v%d, v%d, 3' % (K + 8 + j, K + j - 1, RA + 1))
        a('v_cmpx_gt_u32 vcc, 49, v%d' % LANE)
        a('ds_write_b128 v%d, %s offset:%d' % (RA, vr(K + 8, 4), KC0 + 1568 * r))
        a('ds_write_b128 v%d, %s offset:%d' % (RA, vr(K + 12, 4), KC0 + 1568 * r + 16))
        a('s_lshl_b32 s%d, s%d, 3' % (sT, sPc + r + 1))
        a('v_mov_b32 v%d, s%d' % (RA + 1, sT))
        a('s_mov_b64 exec, 1')
        a('ds_write_b32 v%d, v%d offset:%d' % (RA, RA + 1, KC0 + 4 * (1568 + r)))
        a('s_mov_b64 exec, -1')
        a('Lks%d:' % r)
        a('s_nop 1')
        a.nds = nds

    def rb_reads():
        mk = {}
        for j in range(4):
            a('s_add_u32 s%d, s%d, %d' % (sT, sRB, j))
            a('s_and_b32 s%d, s%d, 15' % (sT, sT))
            a('s_lshl_b32 s%d, s%d, 13' % (sT, sT))
            a('v_add_u32 v%d, s%d, v%d' % (RA + j, sT, RBA))
            a('ds_read_b64 %s, v%d offset:%d' % (vr(RT + 4 * j, 2), RA + j, RING0))
            a('ds_read_b64 %s, v%d offset:%d' % (vr(RT + 4 * j + 2, 2), RA + j, RING0 + 512))
            mk[j] = a.mark()
        return mk

    def rb_moves(mk):
        a('s_mul_i32 s%d, s%d, 3' % (sIX, sRB))
        a('s_set_gpr_idx_on s%d, gpr_idx(DST)' % sIX)
        for j in range(4):
            a.wait_ds(mk[j])
            a('v_mov_b32 v%d, v%d' % (S0 + 3 * j, RT + 4 * j))
            a('v_mov_b32 v%d, v%d' % (S0 + 3 * j + 1, RT + 4 * j + 2))
            a('v_perm_b32 v%d, v%d, v%d, s%d' % (S0 + 3 * j + 2, RT + 4 * j + 3, RT + 4 * j + 1, sPS))
        a('s_set_gpr_idx_off')
        a('s_add_u32 s%d, s%d, 4' % (sRB, sRB))

    def readback(tag):
        nds = a.nds
        a('s_cmp_ge_u32 s%d, s%d' % (sRB, sRE))
        a('s_cbranch_scc1 Lrd%s' % tag)
        a('Lrl%s:' % tag)
        rb_moves(rb_reads())
        a('s_cmp_lt_u32 s%d, s%d' % (sRB, sRE))
        a('s_cbranch_scc1 Lrl%s' % tag)
        a('Lrd%s:' % tag)
        a('s_mov_b32 s%d, s%d' % (sRB, sRE))
        a.nds = nds

    def warm(j):
        if P['warm']:
            a('s_mov_b32 s%d, %d' % (sT, j * 51200 * 128))
            a('buffer_load_dword v%d, v%d, %s, s%d offen' % (WD, WA, sr(S_MR, 4), sT))

    def l2pf(j):
        if j * 16384 >= P['pfn']:
            return
        if j == 0:
            a('s_lshr_b32 s%d, s2, 3' % sT)
            a('s_lshl_b32 s%d, s%d, 9' % (sT, sT))
            a('v_add_lshl_u32 v%d, v0, s%d, 7' % (WA, sT))
            a('s_mov_b32 s%d, %d' % (S_MR + 2, P['pfn'] * 128))
        a('s_mov_b32 s%d, %d' % (sT, j * 16384 * 128))
        a('buffer_load_dword v%d, v%d, %s, s%d offen' % (WD, WA, sr(S_MR, 4), sT))

    def dist_loads():
        a('v_lshlrev_b32 v%d, 1, v0' % (RA + 2))
        for q in range(NQ):
            a('s_movk_i32 s%d, %d' % (sT, q * 1024))
            a('buffer_load_ushort v%d, v%d, %s, s%d offen' % (DI[q], RA + 2, sr(S_DIST, 4), sT))
        return a.mark()

    def rbf_batch(q):
        K = RT
        a('v_lshlrev_b32 v%d, 16, v%d' % (K + 8, DI[q]))
        a('v_mul_f32 v%d, s%d, v%d' % (K + 8, sR, K + 8))
        for r in range(8):
            a('v_subrev_f32 v%d, s%d, v%d' % (K + r, sCEN + r, K + 8))
        for r in range(8):
            a('v_mul_f32 v%d, v%d, v%d' % (K + r, K + r, K + r))
        for r in range(8):
            a('v_exp_f32 v%d, -v%d' % (K + r, K + r))
        for r in range(4):
            a('v_cvt_pk_f16_f32 v%d, v%d, v%d' % (RO + 4 * q + r, K + 2 * r, K + 2 * r + 1))

    NP_ = P['npipe']

    def guarded(r, body):
        n = lab[0]
        lab[0] += 1
        nds, nvm = a.nds, a.nvm
        for k in range(NP_, NSL):
            a('s_cmp_le_u32 s%d, %d' % (sEW + r, 64 * k))
            a('s_cbranch_scc1 Lg%d' % n)
            body(NSL * r + k)
        a('Lg%d:' % n)
        a('s_nop 3')
        a.nds, a.nvm = nds, nvm

    def U(x):
        return NSL * (x // NP_) + x % NP_

    def Cx(x):
        C(U(x))

    def Dx(x):
        if x >= 4 * NP_:
            return
        Dd(U(x))

    def loadstep(x):
        def first():
            if (x + 1) % NP_:
                Cx(x + 1)

        def second():
            Dx(x)
            if (x + 1) % NP_ == 0 and x < 4 * NP_:
                r = x // NP_

                def body(u):
                    C(u)
                    Dd(u)
                guarded(r, body)
                for k in range(NP_, NSL):
                    mV[NSL * r + k] = a.mark()
                if r < 3:
                    Mrd(r + 1)
                    Cx(x + 1)
        return first, second

    def Hx(x):
        H(U(x))
        if (x + 1) % NP_ == 0:
            guarded(x // NP_, H)

    Mrd(0)
    a('s_mov_b32 s%d, 0' % sRB)
    lag = P['dv']
    C(0)
    for i in range(NP_ + lag):
        f1, f2 = loadstep(i)
        f1()
        f2()
        if i >= lag:
            Hx(i - lag)
    a('s_waitcnt lgkmcnt(0)')
    a('s_barrier')
    keyscan(0)
    lead0 = P['lead0']
    for i in range(NP_ + lag, NP_ + lead0):
        f1, f2 = loadstep(i)
        f1()
        f2()
    a('s_waitcnt lgkmcnt(0)')
    a('s_barrier')
    nxt = NP_ + max(lag, lead0)
    for r in range(4):
        stamp(2 + r)
        u0 = NSL * r
        hq = list(range(NP_ * (r + 1), NP_ * (r + 2))) if r < 3 else []
        if r:
            a('s_lshr_b32 s%d, s%d, 10' % (sRE, sPc + r))
            for g in range(3):
                mk = rb_reads()
                if hq:
                    Hx(hq.pop(0))
                rb_moves(mk)
            readback(str(r))
        while r and len(hq) > NP_ - HP:
            Hx(hq.pop(0))
        A(u0)
        if r:
            a('s_barrier')
        for i in range(NP_):
            f1, f2 = loadstep(nxt)
            f1()
            if i + 1 < NP_:
                A(u0 + i + 1)
            B(u0 + i)
            assert nxt < NP_ * (r + 2) or nxt - NP_ * (r + 2) <= i
            f2()
            nxt += 1
            if nxt < NP_ * (r + 1) + LEAD + i + 1:
                f1, f2 = loadstep(nxt)
                f1()
                f2()
                nxt += 1
            nh = 2 if (len(hq) > max(1, NP_ - HP - i) and U(hq[1]) in mV and hq[1] + 4 <= nxt) else 1
            for _ in range(nh):
                if hq:
                    Hx(hq.pop(0))
                    if not hq:
                        a('s_waitcnt lgkmcnt(0)')
                        a('s_barrier')
                        keyscan(r + 1)
                        if r == 2:
                            mD = dist_loads()
            for j in range(4):
                if P['wpos'][j] == 'abcdefghijklmnopqrstuvwxyzABCDEFGH'[(r - 2) * NP_ + i] and r >= 2:
                    warm(j)
            for j in range(2):
                if P['ppos'][j] == 'abcdefghijklmnopqrstuvwxyzABCDEFGH'[(r - 2) * NP_ + i] and r >= 2:
                    l2pf(j)
            if r == 3 and i == 6:
                if not P['imgl']:
                    img_load(0, 5, AG, RA)
                a.wait_vm(mD)
            if r == 3 and 7 <= i < 7 + NQ - 1:
                rbf_batch(i - 7)

        def body(u):
            A(u)
            B(u)
        guarded(r, body)
        if r == 3:
            a('s_cmp_lg_u32 s%d, 0' % sW)
            a('s_cbranch_scc1 Lk2_r6')
            rbf_batch(NQ - 1)
            a('Lk2_r6:')
        a('s_waitcnt lgkmcnt(0)')
        a('s_barrier')
    stamp(6)
    a('s_add_u32 s%d, s%d, 1023' % (sRE, sPc + 4))
    a('s_lshr_b32 s%d, s%d, 10' % (sRE, sRE))
    readback('L')
    a('s_max_u32 s%d, s%d, 1' % (sRB, sRB))
    a('s_sub_u32 s%d, s%d, 1' % (sRB, sRB))
    a('s_mul_i32 s%d, s%d, 3' % (sEND, sRB))
    a('s_lshl_b32 s%d, s%d, 10' % (sT, sRB))
    a('s_sub_u32 s%d, s%d, s%d' % (sT, sPc + 4, sT))
    a('v_lshrrev_b32 v%d, 3, v%d' % (TM, RBA))
    a('v_add_u32 v%d, 64, v%d' % (TM + 1, TM))
    a('v_cmp_gt_u32 %s, s%d, v%d' % (sr(sLM, 2), sT, TM))
    a('v_cmp_gt_u32 %s, s%d, v%d' % (sr(sLM + 2, 2), sT, TM + 1))
    a('s_set_gpr_idx_on s%d, gpr_idx(SRC1,DST)' % sEND)
    a('s_andn2_b64 exec, -1, %s' % sr(sLM + 2, 2))
    a('v_mov_b32 v%d, 0' % (S0 + 1))
    a('v_and_b32 v%d, 0xffff, v%d' % (S0 + 2, S0 + 2))
    a('s_andn2_b64 exec, -1, %s' % sr(sLM, 2))
    a('v_mov_b32 v%d, 0' % S0)
    a('v_mov_b32 v%d, 0' % (S0 + 2))
    a('s_mov_b64 exec, -1')
    a('s_set_gpr_idx_off')
    a('s_mov_b32 s%d, 0' % sIX)
    a('Lk2_init:')
    a('s_barrier')
    for i in range(4):
        a('v_mov_b32 v%d, 0' % (ZR + i))
    a('v_lshlrev_b32 v%d, 4, v0' % A4)
    a('v_add_u32 v%d, %d, v%d' % (A4B, HI0, A4))
    a('v_add_u32 v%d, %d, v%d' % (CV, RBF0, A4))
    for q in range(NQ - 1):
        a('ds_write_b128 v%d, %s offset:%d' % (CV, vr(RO + 4 * q, 4), 8192 * q))
    a('s_mov_b64 exec, %s' % sr(sV6, 2))
    a('ds_write_b128 v%d, %s offset:%d' % (CV, vr(RO + 4 * NQ - 4, 4), 8192 * (NQ - 1)))
    a('s_mov_b64 exec, -1')
    a('s_cmp_lg_u32 s%d, 0' % sMODE)
    a('s_cbranch_scc1 Lk2_ng')
    if P['imgl']:
        img_load(0, 5, AG, TM)
    decode_rel(0, 0)
    gathers(0)
    decode_rel(1, 0)
    gathers(1)
    a('Lk2_ng:')
    for o in list(range(0, RBF0 - 8192, 8192)) + [RBF0 - 8192]:
        a('ds_write_b128 v%d, %s offset:%d' % (A4, vr(ZR, 4), o))
    for o in list(range(0, 4 * PL - 8192, 8192)) + [4 * PL - 8192]:
        a('ds_write_b128 v%d, %s offset:%d' % (A4B, vr(ZR, 4), o))
    a('v_mov_b32 v%d, 0' % STK)
    a('v_mov_b32 v%d, 0' % RTN[0])
    a('v_mov_b32 v%d, 0' % RTN[1])
    a('v_mov_b32 v%d, 0x1000000' % CK)
    a('v_and_b32 v255, 0x1df, v0')
    a('v_lshl_add_u32 v255, v255, 5, v%d' % (IA + 1))
    a('s_waitcnt lgkmcnt(0)')
    a('s_barrier')
    stamp(7, True)
    a('s_cmp_lg_u32 s%d, 0' % sMODE)
    a('s_cbranch_scc1 Lk2_all')
    a('ds_read_b128 %s, v%d offset:%d' % (vr(RBF, 4), A16[0], RBF0))
    a('s_waitcnt lgkmcnt(0)')
    MQ, AU, AR, OA = 4, 60, 68, 255
    WW, RBB, CNN = (76, 96), (84, 104), (88, 108)
    R16, T1, T2, T3, T4 = 92, 112, 113, 114, 115
    sTRG = 89

    def epi_loads():
        img_load(5, 3, AU, 2)
        for q in range(NQ):
            a('s_mov_b32 s%d, %d' % (sT, q * 16384))
            a('buffer_load_dwordx4 %s, v%d, %s, s%d offen' % (vr(MQ + 8 * q, 4), OA, sr(S_MO, 4), sT))
            a('buffer_load_dwordx4 %s, v%d, %s, s%d offen offset:1024' % (vr(MQ + 8 * q + 4, 4), OA, sr(S_MO, 4), sT))

    a('s_mul_i32 s%d, s%d, 49' % (sTRG, sBIN))
    a('s_lshr_b32 s%d, s%d, 8' % (sTRG, sTRG))
    a('s_add_u32 s%d, s%d, %d' % (sTRG, sTRG, P['trg']))
    a('s_and_b32 s%d, s%d, 15' % (sT, sBIN))
    a('s_add_u32 s%d, s%d, 24' % (sT, sT))
    a('s_cmp_lt_u32 s%d, 24' % sTRG)
    a('s_cselect_b32 s%d, s%d, s%d' % (sTRG, sT, sTRG))
    a('s_mul_i32 s%d, s%d, 3' % (sTRG, sTRG))
    a('s_min_u32 s%d, s%d, s%d' % (sTRG, sTRG, sEND))
    if '1' in P['wpos']:
        a('s_mov_b32 s90, %d' % (3 * P['mw1']))
        a('s_mov_b32 s91, %d' % (P['wpos'].index('1') * 51200 * 128))
        a('v_mov_b32 v155, v%d' % WA)
    if P['prio']:
        a('s_cmp_lt_u32 s%d, 4' % sW)
        a('s_cbranch_scc1 Lk2_np')
        a('s_setprio 1')
        a('Lk2_np:')
    a.raw('.p2align 6')
    a('Lk2_loop:')
    a('s_cmp_eq_u32 s%d, s%d' % (sIX, sTRG))
    a('s_cbranch_scc1 Lk2_el')
    a('Lk2_lc:')
    if '1' in P['wpos']:
        a('s_cmp_eq_u32 s%d, s90' % sIX)
        a('s_cbranch_scc1 Lk2_wl')
        a('Lk2_wc:')
    step(0)
    if P['stag'] == 2:
        halfbar(0)
    step(1)
    if P['stag']:
        halfbar(0)
    elif P['mbar'] == 1:
        a('s_barrier')
    elif P['mbar']:
        a('s_and_b32 s%d, s%d, %d' % (sT, sIX, P['mbar'] - 1))
        a('s_cbranch_scc1 Lk2_nb')
        a('s_barrier')
        a('Lk2_nb:')
    a('s_add_u32 s%d, s%d, 3' % (sIX, sIX))
    a('s_cmp_le_u32 s%d, s%d' % (sIX, sEND))
    a('s_cbranch_scc1 Lk2_loop')
    stamp(8, True)
    a('s_mov_b32 s%d, 0' % sPASS)
    for i in range(NQ):
        a('s_mov_b64 %s, 0' % sr(sFL + 2 * i, 2))
        a('s_mov_b64 %s, 0' % sr(sSK + 2 * i, 2))
    a('Lk2_epi:')
    a('v_lshlrev_b32 v%d, 2, v0' % A4)
    a('v_add_u32 v%d, %d, v%d' % (A4B, HI0, A4))
    a('v_lshlrev_b32 v%d, 4, v0' % R16)
    a('s_waitcnt vmcnt(4) lgkmcnt(0)')
    a('v_or3_b32 v%d, v%d, v%d, v%d' % (STK, STK, RTN[0], RTN[1]))
    a('s_barrier')
    mk = {}

    def e_read(q):
        W, RB, CN = WW[q & 1], RBB[q & 1], CNN[q & 1]
        if q == NQ - 1:
            for i in range(4):
                a('v_mov_b32 v%d, 0' % (RB + i))
            for i in range(8):
                a('v_mov_b32 v%d, 0' % (W + i))
            a('v_mov_b32 v%d, 0' % CN)
            a('s_mov_b64 exec, %s' % sr(sV6, 2))
        a('ds_read_b32 v%d, v%d offset:%d' % (CN, A4B, 3 * PL + 2048 * q))
        mk[q, -1] = a.mark()
        for j in range(8):
            b, o = plane(j)
            a('ds_read_b32 v%d, v%d offset:%d' % (W + j, b, o + 2048 * q))
            mk[q, j] = a.mark()
        a('ds_read_b128 %s, v%d offset:%d' % (vr(RB, 4), R16, RBF0))
        mk[q, 8] = a.mark()
        if q == NQ - 1:
            a('s_mov_b64 exec, -1')
        else:
            a('v_add_u32 v%d, 8192, v%d' % (R16, R16))

    def e_decode(q):
        W, CN = WW[q & 1], CNN[q & 1]
        a.wait_ds(mk[q, -1 if q == 0 else 8])
        a('v_lshrrev_b32 v%d, 24, v%d' % (CN + 3, CN))
        a('v_and_b32 v%d, 0xffffff, v%d' % (CN, CN))
        a('v_mul_lo_u32 v%d, v%d, s%d' % (CN + 2, CN + 3, sM1))
        a('v_cmp_lt_u32 vcc, 127, v%d' % (CN + 3))
        a('v_mul_u32_u24 v%d, %d, v%d' % (CN + 3, P['theta'], CN + 3))
        a('s_or_b64 %s, %s, vcc' % (sr(sFL + 2 * q, 2), sr(sFL + 2 * q, 2)))
        a('v_cmp_lt_u32 vcc, 0x7ffe, v%d' % CN)
        a('s_or_b64 %s, %s, vcc' % (sr(sFL + 2 * q, 2), sr(sFL + 2 * q, 2)))
        a('v_cmp_lt_u32 vcc, v%d, v%d' % (CN, CN + 3))
        a('s_or_b64 %s, %s, vcc' % (sr(sFL + 2 * q, 2), sr(sFL + 2 * q, 2)))
        a('s_andn2_b64 exec, -1, %s' % sr(sSK + 2 * q, 2))
        for j in range(8):
            if q == 0:
                a.wait_ds(mk[q, j])
            t = CN + (j & 1)
            a('v_sub_u32 v%d, v%d, v%d' % (W + j, W + j, CN + 2))
            a('v_add_u32 v%d, 0x8000, v%d' % (t, W + j))
            a('v_cvt_f32_i32_sdwa v%d, sext(v%d) dst_sel:DWORD dst_unused:UNUSED_PAD src0_sel:WORD_0' % (W + j, W + j))
            a('v_cvt_f32_i32_sdwa v%d, sext(v%d) dst_sel:DWORD dst_unused:UNUSED_PAD src0_sel:WORD_1' % (t, t))
            a('v_cvt_pk_bf16_f32 v%d, v%d, v%d' % (W + j, W + j, t))
        a('s_mov_b64 exec, -1')
        if q == 0:
            a.wait_ds(mk[q, 8])

    def e_mfma(q):
        W, RB = WW[q & 1], RBB[q & 1]
        a('v_mfma_f32_32x32x16_f16 %s, %s, %s, 0' % (vr(GATE, 16), vr(AR, 4), vr(RB, 4)))
        a('v_mfma_f32_32x32x16_bf16 %s, %s, %s, 0' % (vr(MD, 16), vr(AU, 4), vr(W, 4)))
        a('v_mfma_f32_32x32x16_bf16 %s, %s, %s, %s' % (vr(MD, 16), vr(AU + 4, 4), vr(W + 4, 4), vr(MD, 16)))

    def e_out(q):
        a('s_mov_b32 s%d, %d' % (sT, q * 16384))
        for j in range(8):
            m = MQ + 8 * q + j
            ta, tb = (T1, T2) if j & 1 else (T3, T4)
            a('v_lshlrev_b32 v%d, 16, v%d' % (ta, m))
            a('v_and_b32 v%d, s%d, v%d' % (tb, sHI, m))
            a('v_fmac_f32 v%d, v%d, v%d' % (ta, MD + 2 * j, GATE + 2 * j))
            a('v_fmac_f32 v%d, v%d, v%d' % (tb, MD + 2 * j + 1, GATE + 2 * j + 1))
            a('v_cvt_pk_bf16_f32 v%d, v%d, v%d' % (m, ta, tb))
            if j == 3:
                a('buffer_store_dwordx4 %s, v%d, %s, s%d offen %s' % (vr(MQ + 8 * q, 4), OA, sr(S_OUT, 4), sT, P['stout']))
        a('buffer_store_dwordx4 %s, v%d, %s, s%d offen offset:1024 %s' % (vr(MQ + 8 * q + 4, 4), OA, sr(S_OUT, 4), sT, P['stout']))

    e_read(0)
    e_read(1)
    e_decode(0)
    for q in range(NQ - 1):
        e_mfma(q)
        if q + 1 < NQ - 1:
            e_decode(q + 1)
        if q + 2 < NQ:
            e_read(q + 2)
        e_out(q)
    a('s_cmp_lg_u32 s%d, 0' % sW)
    a('s_cbranch_scc1 Lk2_e6')
    e_decode(NQ - 1)
    e_mfma(NQ - 1)
    e_out(NQ - 1)
    a('Lk2_e6:')
    stamp(9, True)
    if P['stamp']:
        a('s_waitcnt vmcnt(0)')
        stamp(10, True)
    if P['abl']:
        a('s_branch Lk2_end')
    a('s_cmp_lg_u32 s%d, 0' % sPASS)
    a('s_cbranch_scc1 Lk2_end')
    a('s_or_b64 %s, %s, %s' % (sr(sMK, 2), sr(sFL, 2), sr(sFL + 2, 2)))
    for q in range(2, NQ):
        a('s_or_b64 %s, %s, %s' % (sr(sMK, 2), sr(sMK, 2), sr(sFL + 2 * q, 2)))
    a('s_cselect_b32 s%d, 1, %d' % (sT, P['force_slow'] & 3))
    a('v_cmp_gt_i32 vcc, 0, v%d' % STK)
    a('s_cmp_lg_u64 vcc, 0')
    a('s_cselect_b32 s%d, 3, s%d' % (sT, sT))
    a('v_mov_b32 v2, s%d' % sT)
    a('s_lshl_b32 s%d, s%d, 2' % (sT, sW))
    a('s_add_u32 s%d, s%d, %d' % (sT, sT, SCR))
    a('v_mov_b32 v3, s%d' % sT)
    a('ds_write_b32 v3, v2')
    a('v_and_b32 v2, 7, v0')
    a('v_lshlrev_b32 v2, 2, v2')
    a('v_add_u32 v2, %d, v2' % SCR)
    a('s_waitcnt lgkmcnt(0)')
    a('s_barrier')
    a('ds_read_b32 v3, v2')
    a('s_waitcnt lgkmcnt(0)')
    a('v_cmp_ne_u32 vcc, 0, v3')
    a('s_cmp_eq_u64 vcc, 0')
    a('s_cbranch_scc1 Lk2_end')
    a('v_cmp_lt_u32 vcc, 1, v3')
    a('s_cmp_lg_u64 vcc, 0')
    a('Lk2_all:')
    for q in range(NQ):
        a('s_cselect_b64 %s, -1, %s' % (sr(sSK + 2 * q, 2), sr(sFL + 2 * q, 2)))
    a('s_and_b64 %s, %s, %s' % (sr(sSK + 2 * NQ - 2, 2), sr(sSK + 2 * NQ - 2, 2), sr(sV6, 2)))
    a('s_waitcnt vmcnt(0)')
    VD, VE, REC, ADDR, F12 = 4, 8, 12, 16, 17
    desc_load(VD, 18)
    a('v_lshlrev_b32 v%d, 2, v0' % A4)
    a('v_add_u32 v%d, %d, v%d' % (A4B, HI0, A4))
    a('v_mov_b32 v2, 0')
    a('v_mov_b32 v3, -1')
    for q in range(NQ):
        a('s_mov_b64 exec, %s' % sr(sSK + 2 * q, 2))
        a('ds_write_b32 v%d, v3 offset:%d' % (A4B, 3 * PL + 2048 * q))
        for j in range(8):
            b, o = plane(j)
            a('ds_write_b32 v%d, v2 offset:%d' % (b, o + 2048 * q))
        a('s_mov_b64 exec, -1')
        a('s_waitcnt lgkmcnt(0)')
    a('s_barrier')
    a('s_movk_i32 s%d, %d' % (sT, REC0 // 12))
    a('v_mov_b32 v%d, %d' % (F12, TSP))
    a('v_mad_u32_u24 v%d, v0, v%d, s%d' % (F12, F12, sT))
    a('s_waitcnt vmcnt(0)')
    for k in range(4):
        a('v_add_u32 v%d, 0x10000, v%d' % (VE + k, VD + k))
        a('v_and_b32 v%d, 0xffff, v%d' % (VD + k, VD + k))
        a('v_lshrrev_b32 v%d, 17, v%d' % (VE + k, VE + k))
    scan4(VE)
    for k in range(4):
        if k:
            a('v_add_u32 v%d, s%d, v%d' % (VE + k, sNT, VE + k))
        a('v_add_u32 v%d, v%d, v%d' % (VD + k, VD + k, F12))
        a('v_readlane_b32 s%d, v%d, 63' % (sNT, VE + k))
        a('v_sub_u32 v%d, v%d, v%d' % (VD + k, VD + k, VE + k))
        a('v_mul_lo_u32 v%d, v%d, 12' % (VD + k, VD + k))
    a('v_mul_u32_u24 v%d, 12, v%d' % (F12, LANE))
    a('s_mov_b32 s%d, 0' % sF)
    a('s_mov_b32 s%d, 0' % sE)
    a('s_mov_b32 s%d, 0' % sDL)
    a('s_movk_i32 s%d, -64' % sI)
    a('Lk2_sl:')
    a('s_cmp_ge_u32 s%d, s%d' % (sF, sNT))
    a('s_cbranch_scc1 Lk2_sd')
    a('v_add_u32 v%d, s%d, v%d' % (ADDR, sDL, F12))
    a('s_sub_u32 s%d, s%d, s%d' % (sP, sE, sF))
    a('s_cmp_ge_u32 s%d, 64' % sP)
    a('s_cbranch_scc1 Lfd')
    a('Lfl:')
    a('v_readlane_b32 s%d, v%d, s%d' % (sDL, VD, sI))
    a('v_readlane_b32 s%d, v%d, s%d' % (sE, VE, sI))
    a('s_add_u32 s%d, s%d, 1' % (sI, sI))
    a('s_cbranch_scc0 Lfc')
    a('s_mov_b64 exec, -1')
    for k in range(3):
        a('v_mov_b32 v%d, v%d' % (VE + k, VE + k + 1))
        a('v_mov_b32 v%d, v%d' % (VD + k, VD + k + 1))
    a('v_mov_b32 v%d, -1' % (VE + 3))
    a('v_bfrev_b32 v%d, 1' % (VD + 3))
    a('s_movk_i32 s%d, -64' % sI)
    a('Lfc:')
    a('s_lshl_b64 exec, -1, s%d' % sP)
    a('v_add_u32 v%d, s%d, v%d' % (ADDR, sDL, F12))
    a('s_sub_u32 s%d, s%d, s%d' % (sP, sE, sF))
    a('s_cmp_lt_u32 s%d, 64' % sP)
    a('s_cbranch_scc1 Lfl')
    a('s_mov_b64 exec, -1')
    a('Lfd:')
    a('s_add_u32 s%d, s%d, 64' % (sF, sF))
    a('v_add_u32 v%d, 768, v%d' % (F12, F12))
    a('buffer_load_dwordx3 %s, v%d, %s, 0 offen' % (vr(REC, 3), ADDR, sr(S_WS, 4)))
    a('s_mov_b32 s%d, 0' % sSUB)
    a('s_waitcnt vmcnt(0)')
    a('Lk2_s2:')
    a('v_cmp_gt_i32 %s, 0, v%d' % (sr(sMK, 2), REC + 1))
    a('v_ashrrev_i32 v%d, 31, v%d' % (TM, REC + 1))
    a('v_and_b32 v%d, v%d, v%d' % (REC, REC, TM))
    a('v_and_b32 v%d, s%d, v%d' % (IA, sIDM, REC))
    a('v_and_b32 v%d, s%d, v%d' % (IB, sIDM, REC))
    a('v_lshrrev_b32 v%d, 16, v%d' % (A16[0], REC))
    a('v_and_b32 v%d, s%d, v%d' % (A16[0], sA16, A16[0]))
    a('v_and_b32 v%d, s%d, v%d' % (ANG[0], sHI, REC + 1))
    a('v_permlane32_swap_b32 v%d, v%d' % (IA, IB))
    addrs(0)
    a('ds_read_b32 v%d, v%d offset:%d' % (CV, A4B, 3 * PL))
    a('ds_read_b128 %s, v%d offset:%d' % (vr(RBF, 4), A16[0], RBF0))
    a('s_waitcnt lgkmcnt(0)')
    a('v_cmp_gt_i32 vcc, 0, v%d' % CV)
    a('s_and_b64 %s, %s, vcc' % (sr(sMK, 2), sr(sMK, 2)))
    a('s_cbranch_scc0 Lk2_s3')
    gathers(0)
    cosines(0)
    for l in range(3):
        sbf(l)
        gmf(l)
    a('s_waitcnt vmcnt(0)')
    mdown(0)
    for d in range(16):
        a('v_mul_f32 v%d, 0x47800000, v%d' % (GATE + d, GATE + d))
        a('v_mul_f32 v%d, v%d, v%d' % (MD + d, MD + d, GATE + d))
    a('s_mov_b64 exec, %s' % sr(sMK, 2))
    for j in range(8):
        a('v_cvt_pk_bf16_f32 v%d, v%d, v%d' % (MD + 2 * j, MD + 2 * j, MD + 2 * j + 1))
        b, o = plane(j)
        a('ds_pk_add_bf16 v%d, v%d offset:%d' % (b, MD + 2 * j, o))
    a('s_mov_b64 exec, -1')
    a('Lk2_s3:')
    a('v_mov_b32 v%d, v%d' % (REC, REC + 2))
    a('v_lshlrev_b32 v%d, 16, v%d' % (REC + 1, REC + 1))
    a('s_xor_b32 s%d, s%d, 1' % (sSUB, sSUB))
    a('s_cbranch_scc1 Lk2_s2')
    a('s_branch Lk2_sl')
    a.fence()
    a('Lk2_sd:')
    a('s_mov_b32 s%d, 1' % sPASS)
    epi_loads()
    a('s_waitcnt vmcnt(0)')
    a('s_branch Lk2_epi')
    a.fence()
    a('Lk2_fb:')
    a('s_mov_b32 s%d, 1' % sMODE)
    dist_loads()
    img_load(0, 5, AG, RA)
    a('s_waitcnt vmcnt(0)')
    for q in range(NQ):
        rbf_batch(q)
    a('s_branch Lk2_init')
    a.fence()
    if '1' in P['wpos']:
        a('Lk2_wl:')
        a('buffer_load_dword v2, v155, %s, s91 offen' % sr(S_MR, 4))
        a('s_add_u32 s90, s90, %d' % (3 * P['mw2']))
        a('s_add_u32 s91, s91, %d' % (51200 * 128))
        a('s_cmp_ge_u32 s91, %d' % (4 * 51200 * 128))
        a('s_cselect_b32 s90, -1, s90')
        a('s_branch Lk2_wc')
        a.fence()
    a('Lk2_el:')
    epi_loads()
    a('s_branch Lk2_lc')
    a.fence()
    a('Lk2_end:')
    a('s_endpgm')
    a.fence()
    return LDS
```

```python
import sys, math, struct
from asmlib import Asm

NAME = 'gather_scatter__molecular_angular_gemnet__graph'
E, T = 800000, 12800000
BINE = 3125
TS = 158976
TSP = TS // 12
REC0 = 12288
DESC0 = 0x4F00000
PREP0 = 0x5200000
WS_BYTES = 268435456

P = dict(ld1='nt', st1='', ldrec='', stout='nt', target=180.0, theta=64, bar=16, stamp=0, force_slow=0, abl=0, idm=0xfffff, goff=0, early=0, stag=0, stb_=2, mw1=1, mw2=8, k1w=0, k1p=1, imgl=1, pfn=0, ppos='uz', sta='', stb='', nfull=10, wpos='kosw', lead=9, lead0=6, npipe=13, hp=4, scw=7, trg=1, prio=0, cpf=1, dv=4, warm=1, mbar=1, sdwa=1, npre=2, only1=0, stw=0, k2x=0, rd2=1, l2x=0, recm=0, ldg='')
for a in sys.argv[2:]:
    k, v = a.split('=')
    P[k] = type(P[k])(v.replace('+',' ')) if not isinstance(P[k], int) else int(v, 0)


def f2u(x):
    return struct.unpack('<I', struct.pack('<f', x))[0]


def vr(a, n):
    return 'v[%d:%d]' % (a, a + n - 1)


def sr(a, n):
    return 's[%d:%d]' % (a, a + n - 1)


def srd(a, d, ptr, nbytes, off=None, stride=0):
    if off is None:
        a('s_mov_b32 s%d, s%d' % (d, ptr))
        a('s_mov_b32 s%d, s%d' % (d + 1, ptr + 1))
    else:
        a('s_add_u32 s%d, s%d, %s' % (d, ptr, off))
        a('s_addc_u32 s%d, s%d, 0' % (d + 1, ptr + 1))
    if stride:
        a('s_or_b32 s%d, s%d, 0x%x' % (d + 1, d + 1, stride << 16))
    a('s_mov_b32 s%d, %d' % (d + 2, nbytes))
    a('s_mov_b32 s%d, 0x20000' % (d + 3))


def scan64(a, v, op='v_add_u32'):
    for c in ('row_shr:1', 'row_shr:2', 'row_shr:4', 'row_shr:8'):
        a('%s_dpp v%d, v%d, v%d %s row_mask:0xf bank_mask:0xf' % (op, v, v, v, c))
    a('%s_dpp v%d, v%d, v%d row_bcast:15 row_mask:0xa bank_mask:0xf' % (op, v, v, v))
    a('%s_dpp v%d, v%d, v%d row_bcast:31 row_mask:0xc bank_mask:0xf' % (op, v, v, v))


def code_prefetch(a, tag, st, vt, nwg=16):
    a('s_cmp_ge_u32 s2, %d' % nwg)
    a('s_cbranch_scc1 Lcpf%s' % tag)
    a('s_getpc_b64 %s' % sr(st, 2))
    a('Lcpb%s:' % tag)
    a('v_lshlrev_b32 v%d, 7, v0' % vt)
    a('v_mov_b32 v%d, 0' % (vt + 1))
    a('v_cmp_gt_u32 vcc, Lk2_end-Lcpb%s, v%d' % (tag, vt))
    a('v_lshl_add_u64 %s, %s, 0, %s' % (vr(vt, 2), vr(vt, 2), sr(st, 2)))
    a('s_and_b64 exec, exec, vcc')
    a('s_cbranch_execz Lcpe%s' % tag)
    a.nocount = True
    a('global_load_dword v%d, %s, off' % (vt, vr(vt, 2)))
    a.nocount = False
    a('Lcpe%s:' % tag)
    a('s_mov_b64 exec, -1')
    a('Lcpf%s:' % tag)


STAMP0 = 0x6000000


def stamp_init(a, sdbg, wsptr, kern, sw):
    if not P['stamp']:
        return
    a('s_lshl_b32 s100, s2, 7')
    a('s_add_u32 s100, s100, %d' % (STAMP0 + kern * 32768))
    srd(a, sdbg, wsptr, 128, 's100')
    stamp.sel = sw


def stamp(a, idx, sdbg, tmp_s, tmp_v, tmp_w=None):
    tmp_w = tmp_w or tmp_v + 1
    if not P['stamp']:
        return
    lab = 'Lst%d' % stamp.n
    stamp.n += 1
    a.nocount = True
    a('s_cmp_lg_u32 s%d, %d' % (stamp.sel, P['stw']))
    a('s_cbranch_scc1 %s' % lab)
    a('s_memrealtime %s' % sr(tmp_s, 2))
    a('s_waitcnt lgkmcnt(0)')
    a('v_mov_b32 v%d, s%d' % (tmp_v, tmp_s))
    a('v_mov_b32 v%d, %d' % (tmp_w, idx * 4))
    a('buffer_store_dword v%d, v%d, %s, 0 offen' % (tmp_v, tmp_w, sr(sdbg, 4)))
    a('s_memtime %s' % sr(tmp_s, 2))
    a('s_waitcnt lgkmcnt(0)')
    a('v_mov_b32 v%d, s%d' % (tmp_v, tmp_s))
    a('buffer_store_dword v%d, v%d, %s, 0 offen offset:64' % (tmp_v, tmp_w, sr(sdbg, 4)))
    a(lab + ':')
    a.nocount = False


stamp.n = 0
stamp.sel = 0


def k1(a):
    CNTB, SCR, CNTA = 0, 4096, 4224
    DATB, DATA = 4224, 8320
    S_IN, S_OUT, S_ANG, S_REC, S_DSC, S_T0, S_DBG = 24, 28, 32, 36, 40, 44, 92
    S_REC2 = 80
    sMB, sMC, sNEG, sHI, sT, sW = 64, 65, 66, 67, 68, 69
    sREM = 70
    sBASE, sPREP, sVB, sUM = 72, 73, 74, 75
    O16, O8, ONE, SIX = 1, 2, 3, 12
    TP = 4
    TS_ = 22
    ANG = 14
    ANGR = 13
    INA, OUTA, INB, OUTB, INR, OUTR = 28, 52, 76, 100, 124, 125
    ld = P['ld1']
    st = P['st1']

    a('s_cmp_ge_u32 s2, 256')
    a('s_cbranch_scc1 Lk1_end')
    a('s_load_dwordx4 s[4:7], s[0:1], 8')
    a('s_load_dwordx2 s[8:9], s[0:1], 32')
    a('s_load_dwordx4 s[76:79], s[0:1], 96')
    a('s_load_dwordx2 s[12:13], s[0:1], 0')
    a('s_load_dwordx8 s[16:23], s[0:1], 56')
    if P['cpf'] & 1:
        code_prefetch(a, 'a', 84, 124)
    a('v_lshlrev_b32 v%d, 4, v0' % O16)
    a('v_lshlrev_b32 v%d, 3, v0' % O8)
    a('v_mov_b32 v%d, 1' % ONE)
    a('v_mov_b32 v%d, 6' % SIX)
    a('v_lshrrev_b32 v4, 6, v0')
    a('v_readfirstlane_b32 s%d, v4' % sW)
    a('v_mov_b32 v4, 0')
    a('v_lshlrev_b32 v5, 2, v0')
    a('ds_write_b32 v5, v4 offset:%d' % CNTB)
    a('ds_write_b32 v5, v4 offset:%d' % CNTA)
    a('s_mov_b32 s%d, %d' % (sMB, -(-2**32 // BINE)))
    a('s_mov_b32 s%d, 21400' % sMC)
    a('s_mov_b32 s%d, %d' % (sNEG, -BINE))
    a('s_mov_b32 s%d, 0xffff0000' % sHI)
    a('s_mov_b32 s%d, 0x80008000' % sVB)
    a('s_mov_b32 s%d, 0xff000' % sUM)
    a('s_mul_i32 s14, s2, 200000')
    a('s_mul_i32 s15, s2, 100000')
    a('s_movk_i32 s%d, 848' % sT)
    a('v_cmp_gt_u32 %s, s%d, v0' % (sr(sREM, 2), sT))
    a('v_and_b32 v13, 63, v0')
    a('v_lshlrev_b32 v27, 4, v13')
    a('s_lshl_b32 s%d, s2, 4' % sPREP)
    a('s_or_b32 s%d, s%d, s%d' % (sPREP, sPREP, sW))
    a('s_waitcnt lgkmcnt(0)')
    srd(a, S_IN, 4, 200000, 's14')
    srd(a, S_OUT, 6, 200000, 's14')
    srd(a, S_ANG, 8, 100000, 's15')
    stamp_init(a, S_DBG, 78, 0, sW)
    stamp(a, 0, S_DBG, 96, 126)
    a('s_cmp_lg_u32 s%d, 0' % sPREP)
    a('s_cbranch_scc1 Lk1_main')
    a.nocount = True
    srd(a, S_T0, 18, 768)
    srd(a, S_T0 + 4, 20, 512)
    srd(a, S_T0 + 8, 22, 512)
    srd(a, S_T0 + 12, 16, 256)
    srd(a, S_T0 + 16, 12, E * 32)
    for i in range(4):
        a('buffer_load_dwordx4 %s, v27, %s, 0 offen' % (vr(76 + 4 * i, 4), sr(S_T0 + 4 * i, 4)))
    a('v_mul_u32_u24 v4, 99984, v13')
    for i in range(4):
        a('s_mov_b32 s%d, %d' % (sT, i * 64 * 99984))
        a('buffer_load_dwordx4 %s, v4, %s, s%d offen' % (vr(92 + 4 * i, 4), sr(S_T0 + 16, 4), sT))
    a.nocount = False
    a('Lk1_main:')
    a('s_lshl_b32 s14, s2, 1')
    a('s_mul_i32 s15, s14, %d' % TS)
    a('s_add_u32 s15, s15, %d' % REC0)
    srd(a, S_REC, 78, 0, 's15')
    a('s_add_u32 s15, s15, %d' % TS)
    srd(a, S_REC2, 78, 0, 's15')
    a('s_lshl_b32 s15, s14, 12')
    a('s_add_u32 s15, s15, %d' % DESC0)
    srd(a, S_DSC, 78, 8192, 's15')

    marks = {}

    def regs(j):
        return ((INA, OUTA) if j < 6 else (INB, OUTB)), 4 * (j % 6), ANG + 2 * (j % 4)

    def loads(j):
        if j == 12:
            a('v_lshlrev_b32 v10, 2, v0')
            a('v_lshlrev_b32 v11, 1, v0')
            a('s_mov_b32 s%d, %d' % (sT, 12 * 16384))
            a('buffer_load_dword v%d, v10, %s, s%d offen %s' % (OUTR, sr(S_OUT, 4), sT, ld))
            a('buffer_load_dword v%d, v10, %s, s%d offen %s' % (INR, sr(S_IN, 4), sT, ld))
            a('s_mov_b32 s%d, %d' % (sT, 12 * 8192))
            a('buffer_load_ushort v%d, v11, %s, s%d offen %s' % (ANGR, sr(S_ANG, 4), sT, ld))
        else:
            (rin, rout), o, rang = regs(j)
            a('s_mov_b32 s%d, %d' % (sT, j * 16384))
            a('buffer_load_dwordx4 %s, v%d, %s, s%d offen %s' % (vr(rout + o, 4), O16, sr(S_OUT, 4), sT, ld))
            a('buffer_load_dwordx4 %s, v%d, %s, s%d offen %s' % (vr(rin + o, 4), O16, sr(S_IN, 4), sT, ld))
            a('s_mov_b32 s%d, %d' % (sT, j * 8192))
            a('buffer_load_dwordx2 %s, v%d, %s, s%d offen %s' % (vr(rang, 2), O8, sr(S_ANG, 4), sT, ld))
        marks[j] = a.mark()

    def pack2(items, rg, cnt):
        a('v_or_b32 v%d, s%d, v%d' % (rg, sVB, rg))
        for e, (ri, ro) in enumerate(items):
            a('v_mul_hi_u32_u24 v%d, s%d, v%d' % (TP + e, sMB, ro))
            a('v_and_b32 v%d, s%d, v%d' % (TP + 2 + e, sUM, ri))
        for e, (ri, ro) in enumerate(items):
            a('v_mul_hi_u32_u24 v%d, s%d, v%d' % (TP + 2 + e, sMC, TP + 2 + e))
            a('v_mad_i32_i24 v%d, v%d, s%d, v%d' % (ro, TP + e, sNEG, ro))
        for e, (ri, ro) in enumerate(items):
            a('v_lshl_add_u32 v%d, v%d, 8, v%d' % (TP + e, TP + 2 + e, TP + e))
            a('v_lshl_or_b32 v%d, v%d, 20, v%d' % (ri, ro, ri))
        for e, (ri, ro) in enumerate(items):
            a('v_lshlrev_b32 v%d, 2, v%d' % (TP + e, TP + e))
        for e, (ri, ro) in enumerate(items):
            a('ds_add_u32 v%d, v%d offset:%d' % (TP + e, ONE, cnt))
            if e:
                a('v_and_or_b32 v%d, v%d, s%d, v%d' % (ro, rg, sHI, TP + e))
            else:
                a('v_lshl_or_b32 v%d, v%d, 16, v%d' % (ro, rg, TP + e))

    def pack(j):
        a.wait_vm(marks[j])
        if j == 12:
            a('s_mov_b64 exec, %s' % sr(sREM, 2))
            pack2([(INR, OUTR)], ANGR, CNTB)
            a('s_mov_b64 exec, -1')
            return
        (rin, rout), o, rang = regs(j)
        for h in range(2):
            pack2([(rin + o + 2 * h + e, rout + o + 2 * h + e) for e in range(2)], rang + h, CNTA if j < 6 else CNTB)

    def scan(sub, cnt, data, srec, mid1=None, mid2=None):
        a('v_lshlrev_b32 v10, 2, v0')
        a('s_waitcnt lgkmcnt(0)')
        a('s_barrier')
        a('ds_read_b32 v4, v10 offset:%d' % cnt)
        m = a.mark()
        if mid1:
            mid1()
        a('s_lshl_b32 s%d, s%d, 2' % (sT, sW))
        a('v_mov_b32 v8, s%d' % sT)
        a('v_and_b32 v9, 60, v10')
        a.wait_ds(m)
        a('v_add_u32 v6, 1, v4')
        a('v_lshrrev_b32 v6, 1, v6')
        a('v_mov_b32 v7, v6')
        scan64(a, 7)
        a('s_mov_b32 exec_lo, 0')
        a('s_mov_b32 exec_hi, 0x80000000')
        a('ds_write_b32 v8, v7 offset:%d' % SCR)
        a('s_mov_b64 exec, -1')
        a('s_waitcnt lgkmcnt(0)')
        a('s_barrier')
        a('ds_read_b32 v11, v9 offset:%d' % SCR)
        m = a.mark()
        if mid2:
            mid2()
        a('v_and_b32 v8, 255, v0')
        a('v_lshrrev_b32 v9, 8, v0')
        a('v_lshlrev_b32 v9, 2, v9')
        a('v_lshl_add_u32 v9, v8, 4, v9')
        a.wait_ds(m)
        a('v_mov_b32 v5, v11')
        for c in ('row_shr:1', 'row_shr:2', 'row_shr:4', 'row_shr:8'):
            a('v_add_u32_dpp v11, v11, v11 %s row_mask:0xf bank_mask:0xf' % c)
        a('v_sub_u32 v5, v11, v5')
        a('v_readlane_b32 s%d, v11, 15' % sT)
        a('v_readlane_b32 s%d, v5, s%d' % (sBASE, sW))
        a('s_mul_i32 s%d, s%d, 12' % (srec + 2, sT))
        a('v_add_u32 v7, s%d, v7' % sBASE)
        a('v_sub_u32 v6, v7, v6')
        a('s_movk_i32 s%d, %d' % (sT, data))
        a('v_mad_u32_u24 v6, v6, 12, s%d' % sT)
        a('ds_write_b32 v10, v6 offset:%d' % cnt)
        a('v_lshl_or_b32 v5, v4, 16, v7')
        a('v_mul_u32_u24 v7, 12, v7')
        a('v_mov_b32 v6, 0')
        a('v_and_b32 v4, 1, v4')
        a('v_lshrrev_b32 v8, 8, v0')
        a('v_add_u32 v8, 1568, v8')
        a('v_lshlrev_b32 v8, 9, v8')
        a('v_cmpx_eq_u32 vcc, 1, v4')
        a('ds_write_b16 v7, v6 offset:%d' % (data - 8))
        a('ds_write_b32 v7, v8 offset:%d' % (data - 4))
        a('s_mov_b64 exec, -1')
        a('s_movk_i32 s%d, %d' % (sT, sub * 4096))
        a('buffer_store_dword v5, v9, %s, s%d offen %s' % (sr(S_DSC, 4), sT, st))
        a('s_waitcnt lgkmcnt(0)')
        a('s_barrier')

    def rtn(t, ro, cnt):
        a('v_and_b32 v%d, 0xffff, v%d' % (t, ro))
        a('ds_add_rtn_u32 v%d, v%d, v%d offset:%d' % (t, t, SIX, cnt))

    def put(t, ri, ro, e):
        u = 8 + (e & 1)
        a('v_and_b32 v%d, 2, v%d' % (u, t))
        a('v_add_u32 v%d, v%d, v%d' % (t, t, u))
        a('v_mad_i32_i24 v%d, v%d, -5, v%d' % (u, u, t))
        a('ds_write_b32 v%d, v%d' % (t, ri))
        a('ds_write_b16_d16_hi v%d, v%d offset:6' % (u, ro))

    def scatter(rin, rout, cnt, rem, between):
        G = 3
        ng = 24 // G
        mk = {}
        if rem:
            a('s_mov_b64 exec, %s' % sr(sREM, 2))
            rtn(10, OUTR, cnt)
            a('s_mov_b64 exec, -1')
        for e in range(G):
            rtn(TS_ + e, rout + e, cnt)
        mk[0] = a.mark()
        for g in range(ng):
            cur, nxt = TS_ + (g & 1) * G, TS_ + ((g + 1) & 1) * G
            if g + 1 < ng:
                for e in range(G):
                    rtn(nxt + e, rout + (g + 1) * G + e, cnt)
                mk[g + 1] = a.mark()
            a.wait_ds(mk[g])
            for e in range(G):
                put(cur + e, rin + g * G + e, rout + g * G + e, e)
            if rem and g == 0:
                a('s_mov_b64 exec, %s' % sr(sREM, 2))
                put(10, INR, OUTR, 1)
                a('s_mov_b64 exec, -1')
            between(g)

    rd = {}

    def readout(base, data):
        a('v_add_u32 v22, 0x10000, v%d' % O16)
        a('v_add_u32 v23, 0x20000, v%d' % O16)
        for j in range(10):
            b = (O16, 22, 23)[j >> 2]
            a('ds_read_b128 %s, v%d offset:%d' % (vr(base + 4 * j, 4), b, data + (j & 3) * 16384))
            rd[j] = a.mark()

    def store(base, srec, j, wait=False):
        a('s_mov_b32 s%d, %d' % (sT, j * 16384))
        if wait:
            a.wait_ds(rd[j])
        a('buffer_store_dwordx4 %s, v%d, %s, s%d offen %s' % (vr(base + 4 * j, 4), O16, sr(srec, 4), sT, P['sta'] if base == INA else P['stb']))

    loads(0)
    loads(1)
    a('s_cmp_lg_u32 s%d, 0' % sPREP)
    a('s_barrier')
    a('s_cbranch_scc1 Lk1_noprep')
    a.nocount = True
    nds = a.nds
    prep(a, DATA, S_T0)
    a.nds = nds
    a.nocount = False
    a('Lk1_noprep:')
    for j in range(6):
        loads(j + 2)
        pack(j)
    stamp(a, 1, S_DBG, 96, 126)
    scan(0, CNTA, DATA, S_REC)
    stamp(a, 2, S_DBG, 96, 126)

    def btw_a(g):
        if g & 1:
            pack(6 + g // 2)
        else:
            loads(8 + g // 2)

    scatter(INA, OUTA, CNTA, False, btw_a)
    stamp(a, 3, S_DBG, 96, 126)
    loads(12)
    pack(10)
    pack(11)
    pack(12)
    stamp(a, 4, S_DBG, 96, 126)
    npre = P['npre']
    scan(1, CNTB, DATB, S_REC2, lambda: readout(INA, DATA), lambda: [store(INA, S_REC, j) for j in range(npre)])
    stamp(a, 5, S_DBG, 96, 126)
    todo = list(range(npre, 10))

    def btw_b(g):
        k = -(-len(todo) // (8 - g))
        for _ in range(k):
            store(INA, S_REC, todo.pop(0))

    scatter(INB, OUTB, CNTB, True, btw_b)
    stamp(a, 6, S_DBG, 96, 126)
    a('s_waitcnt lgkmcnt(0)')
    a('s_barrier')

    def k1warm():
        srd(a, S_T0, 12, P['k1w'] * 51200 * 128 if P['k1w'] < 4 else E * 32)
        a('s_lshl_b32 s%d, s2, 4' % sT)
        a('s_add_u32 s%d, s%d, s%d' % (sT, sT, sW))
        a('s_mul_i32 s%d, s%d, %d' % (sT, sT, 13 * P['k1w']))
        a('v_and_b32 v4, 63, v0')
        a('v_min_u32 v4, %d, v4' % (13 * P['k1w'] - 1))
        a('v_add_lshl_u32 v4, v4, s%d, 7' % sT)
        a('buffer_load_dword v4, v4, %s, 0 offen' % sr(S_T0, 4))

    readout(INB, DATB)
    if P['k1w'] and P['k1p'] == 0:
        k1warm()
    for j in range(10):
        store(INB, S_REC2, j, True)
    if P['k1w'] and P['k1p'] == 1:
        k1warm()
    stamp(a, 7, S_DBG, 96, 126)
    if P['stamp']:
        a('s_waitcnt vmcnt(0)')
        stamp(a, 8, S_DBG, 96, 126)
    a('Lk1_end:')
    a('s_endpgm')
    a.fence()
    return DATB + (25424 + 1024) * 6


def prep(a, PB, S_T0):
    L, O = 13, 27
    sS = 80
    sS = 48
    a('s_waitcnt vmcnt(6)')
    for i in range(4):
        a('ds_write_b128 v%d, %s offset:%d' % (O, vr(76 + 4 * i, 4), PB + 1024 * i))
    a('v_mov_b32 v4, 0')
    for i in range(16):
        a('v_dot2_f32_bf16 v4, v%d, v%d, v4' % (92 + i, 92 + i))
    scan64(a, 4, 'v_add_f32')
    a('v_readlane_b32 s14, v4, 63')
    a('v_bfe_u32 v5, v%d, 3, 2' % L)
    a('v_and_b32 v6, 3, v%d' % L)
    a('v_lshl_or_b32 v5, v5, 2, v6')
    a('v_lshlrev_b32 v5, 1, v5')
    a('v_bfe_u32 v7, v%d, 2, 1' % L)
    a('v_lshrrev_b32 v8, 5, v%d' % L)
    a('s_waitcnt lgkmcnt(0)')
    for k in range(24):
        a('ds_read_u16 v%d, v5 offset:%d' % (76 + k, PB + 32 * k))
        if k % 8 == 7:
            a('s_waitcnt lgkmcnt(0)')
    for k in range(16):
        a('ds_read_u16 v%d, v5 offset:%d' % (100 + k, PB + 1024 + 32 * k))
        if k % 8 == 7:
            a('s_waitcnt lgkmcnt(0)')
    a('v_lshl_add_u32 v9, v8, 8, v5')
    for k in range(8):
        a('ds_read_u16 v%d, v9 offset:%d' % (116 + k, PB + 1024 + 32 * k))
    a('s_waitcnt lgkmcnt(0)')
    for k in range(48):
        a('v_lshlrev_b32 v%d, 16, v%d' % (76 + k, 76 + k))
    a('v_mul_f32 v9, v76, v76')
    for k in range(1, 24):
        a('v_fmac_f32 v9, v%d, v%d' % (76 + k, 76 + k))
    a('v_mul_f32 v10, v100, v100')
    for k in range(1, 16):
        a('v_fmac_f32 v10, v%d, v%d' % (100 + k, 100 + k))
    a('v_log_f32 v9, v9')
    a('v_log_f32 v10, v10')
    a('v_log_f32 v11, s14')
    a('v_add_f32 v10, v10, v9')
    a('v_add_f32 v10, v10, v11')
    c0 = math.log2(P['target']) - 0.5 * math.log2(0.1625 / 2048)
    a('v_mov_b32 v11, 0x%x' % f2u(c0))
    a('v_fmac_f32 v11, -0.5, v10')
    a('v_floor_f32 v11, v11')
    a('v_mul_f32 v9, 0.5, v9')
    a('v_floor_f32 v9, v9')
    a('s_mov_b32 s14, 0x%x' % f2u(40.0))
    a('v_med3_f32 v11, v11, -s14, s14')
    a('v_med3_f32 v9, -v9, -s14, s14')
    a('v_cvt_i32_f32 v11, v11')
    a('v_cvt_i32_f32 v9, v9')
    a('v_sub_u32 v10, v11, v9')
    a('v_subrev_u32 v10, 16, v10')
    for j in range(16):
        a('v_readlane_b32 s%d, v11, %d' % (sS + j, ((j >> 2) << 3) | (j & 3)))
    srd(a, S_T0, 78, 8192, str(PREP0))
    a('v_xor_b32 v4, v7, v8')
    a('v_subrev_u32 v4, 1, v4')
    a('v_subrev_u32 v6, 1, v7')
    a('v_sub_u32 v7, 0, v7')
    for k in range(24):
        a('v_ldexp_f32 v%d, v%d, v9' % (76 + k, 76 + k))
    if P['l2x']:
        for k in range(16):
            a('v_ldexp_f32 v%d, v%d, v10' % (100 + k, 100 + k))
        for jj in range(8):
            a('v_cvt_pk_bf16_f32 v%d, v%d, v%d' % (116 + jj, 100 + 2 * jj, 101 + 2 * jj))
    else:
        for k in range(8):
            a('v_ldexp_f32 v%d, v%d, v10' % (116 + k, 116 + k))
    for l in range(3):
        for jj in range(4):
            a('v_cvt_pk_f16_f32 v%d, v%d, v%d' % (100 + 4 * l + jj, 76 + 6 * jj + l, 76 + 6 * jj + 3 + l))
            a('v_and_b32 v%d, v%d, v4' % (100 + 4 * l + jj, 100 + 4 * l + jj))
        a('buffer_store_dwordx4 %s, v%d, %s, 0 offen offset:%d' % (vr(100 + 4 * l, 4), O, sr(S_T0, 4), 1024 * l))
    if P['l2x']:
        for jj in range(4):
            a('v_and_b32 v%d, v%d, v4' % (112 + jj, 116 + jj))
            a('v_and_b32 v%d, v%d, v4' % (120 + jj, 120 + jj))
    else:
        for jj in range(4):
            a('v_cvt_pk_bf16_f32 v%d, v%d, v%d' % (116 + jj, 116 + 2 * jj, 117 + 2 * jj))
        for jj in range(4):
            a('v_and_b32 v%d, v%d, v6' % (112 + jj, 116 + jj))
            a('v_and_b32 v%d, v%d, v7' % (120 + jj, 116 + jj))
    a('v_add_u32 v11, 4096, v%d' % O)
    a('buffer_store_dwordx4 v[112:115], v%d, %s, 0 offen offset:3072' % (O, sr(S_T0, 4)))
    a('buffer_store_dwordx4 v[120:123], v11, %s, 0 offen' % sr(S_T0, 4))
    a('v_bfe_u32 v5, v%d, 2, 1' % L)
    a('v_bfe_u32 v6, v%d, 3, 1' % L)
    a('v_lshl_or_b32 v5, v5, 1, v6')
    a('v_and_b32 v6, 3, v%d' % L)
    a('v_lshl_or_b32 v5, v5, 2, v6')
    a('v_lshlrev_b32 v5, 1, v5')
    a('v_bfe_u32 v7, v%d, 4, 1' % L)
    a('v_xor_b32 v4, v7, v8')
    a('v_subrev_u32 v4, 1, v4')
    for k in range(16):
        a('ds_read_u16 v%d, v5 offset:%d' % (76 + k, PB + 2048 + 32 * k))
        if k % 8 == 7:
            a('s_waitcnt lgkmcnt(0)')
    for k in range(8):
        a('ds_read_u16 v%d, v5 offset:%d' % (92 + k, PB + 3072 + 32 * k))
    a('s_waitcnt lgkmcnt(0)')
    for k in range(24):
        a('v_lshlrev_b32 v%d, 16, v%d' % (76 + k, 76 + k))
    a('v_mul_f32 v9, v92, v92')
    for k in range(1, 8):
        a('v_fmac_f32 v9, v%d, v%d' % (92 + k, 92 + k))
    a('v_log_f32 v9, v9')
    a('v_mul_f32 v9, 0.5, v9')
    a('v_floor_f32 v9, v9')
    a('v_med3_f32 v9, v9, -s14, s14')
    a('v_cvt_i32_f32 v9, v9')
    a('v_sub_u32 v10, 0, v9')
    for k in range(8):
        a('v_ldexp_f32 v%d, v%d, v10' % (92 + k, 92 + k))
    for k in range(16):
        a('v_subrev_u32 v6, s%d, v9' % (sS + k))
        a('v_ldexp_f32 v%d, v%d, v6' % (76 + k, 76 + k))
    for jj in range(8):
        a('v_cvt_pk_bf16_f32 v%d, v%d, v%d' % (76 + jj, 76 + 2 * jj, 77 + 2 * jj))
        a('v_and_b32 v%d, v%d, v4' % (76 + jj, 76 + jj))
    for jj in range(4):
        a('v_cvt_pk_f16_f32 v%d, v%d, v%d' % (84 + jj, 92 + 2 * jj, 93 + 2 * jj))
        a('v_and_b32 v%d, v%d, v4' % (84 + jj, 84 + jj))
    for i in range(3):
        a('buffer_store_dwordx4 %s, v11, %s, 0 offen offset:%d' % (vr(76 + 4 * i, 4), sr(S_T0, 4), 1024 * (i + 1)))
    a('s_nop 1')


from gen_k2p import k2


def main():
    a = Asm()
    body = Asm()
    out = []
    kernels = []
    for nm, fn in (('bin_kernel', k1), ('acc_kernel', k2)):
        b = Asm()
        if fn is k2:
            lds = fn(b, P, globals())
        else:
            lds = fn(b)
        kernels.append((nm, b, lds))
        if P['only1']:
            break
    hdr = open('cdna_kernels/%s.s.ref' % NAME).read().split('\n')
    hdr = [l for l in hdr if l.startswith(';') and '@launch' not in l and 'Override launch' not in l and 'grid=ceil' not in l]
    out += hdr
    for nm, b, lds in kernels:
        out.append('; @launch kernel=%s grid=(256,1,1) block=(%d,1,1) lds=%d' % (nm, 1024 if nm[0] == 'b' else 512, lds))
    if P['k2x']:
        out.append(out[-1])
    out.append('.amdgcn_target "amdgcn-amd-amdhsa--gfx950"')
    out.append('.text')
    for nm, b, lds in kernels:
        out.append('.globl %s\n.p2align 8\n.type %s,@function\n%s:' % (nm, nm, nm))
        out.append(b.text())
    out.append('.section .rodata,"a"')
    for nm, b, lds in kernels:
        out.append('''.p2align 6
.amdhsa_kernel %s
  .amdhsa_next_free_vgpr %d
  .amdhsa_next_free_sgpr 102
  .amdhsa_accum_offset %d
  .amdhsa_group_segment_fixed_size 0
  .amdhsa_kernarg_size 112
  .amdhsa_user_sgpr_count 2
  .amdhsa_user_sgpr_kernarg_segment_ptr 1
  .amdhsa_system_sgpr_workgroup_id_x 1
.end_amdhsa_kernel''' % (nm, 128 if nm[0] == 'b' else 256, 128 if nm[0] == 'b' else 256))
    open(sys.argv[1], 'w').write('\n'.join(out) + '\n')


main()
```

```python
import math


def k2(a, P, G):
    vr, sr, srd, f2u = G['vr'], G['sr'], G['srd'], G['f2u']
    E, BINE, TS, TSP = G['E'], G['BINE'], G['TS'], G['TSP']
    REC0, DESC0, PREP0, WS_BYTES = G['REC0'], G['DESC0'], G['PREP0'], G['WS_BYTES']
    PL = BINE * 4
    RBF0 = 5 * PL + 12
    HI0 = RBF0 + BINE * 16
    SCR = HI0 + 4 * PL
    LDS = SCR + 128
    KC0, TB0, BB0, SC0, RING0 = 0, 12800, 21504, 25600, 25856
    NSL = 15
    NBLK = 51
    NQ = 7
    S_M, S_MR, S_WS, S_DIST, S_MO, S_OUT, S_DBG = 16, 20, 24, 28, 32, 36, 92
    sCEN = 40
    sW, sBIN, sT, sT2 = 48, 49, 50, 51
    sM0, sM1, sIDM, sHI, sA16 = 52, 53, 54, 55, 56
    sPASS, sMODE, sIX = 57, 58, 59
    sV6 = 60
    sMK = 62
    sFL, sSK = 64, 78
    sPc = 64
    sR, sTB, sRB, sRE, sPS = 69, 70, 71, 72, 73
    sLO = 74
    sMA = 84
    sLM = 84
    sEND = 88
    sEW = 80
    sF, sE, sDL, sI, sP, sNT, sSUB = 4, 5, 6, 7, 8, 9, 10
    LANE, S0 = 1, 2
    AG, AM, GATE, MD = 164, 176, 184, 200
    GB = (156, 216)
    SBF, RBF = 224, 232
    IA, IB = 236, 238
    A16, ANG = (240, 241), (242, 243)
    A4, A4B, CV = 244, 245, 246
    RTN = (247, 248)
    STK, CK, TM = 249, 250, 251
    RAW = 156
    RT, RA = 216, 232
    NA = P['na']
    TAR = (240, 241, 242, 243, 236, 238)
    TF = (244, 245)
    TH, VM, ONE, EIGHT, L12, RBA, WD, WA = 246, 248, 249, 250, 251, 252, 253, 254
    lab = [0]

    def stamp(i, late=False):
        G['stamp'](a, i, S_DBG, 96, *((155, 254) if late else (235, 234)))

    def plane(j):
        return (A4, j * PL) if j < 5 else (A4B, (j - 5) * PL)

    def desc_load(dst, tb):
        a('v_lshlrev_b32 v%d, 12, v0' % tb)
        a('s_lshl_b32 s%d, s%d, 4' % (sT, sBIN))
        a('s_add_u32 s%d, s%d, %d' % (sT, sT, DESC0))
        a('buffer_load_dwordx4 %s, v%d, %s, s%d offen' % (vr(dst, 4), tb, sr(S_WS, 4), sT))

    def scan4(v):
        for c, rm in (('row_shr:1', 15), ('row_shr:2', 15), ('row_shr:4', 15), ('row_shr:8', 15), ('row_bcast:15', 10), ('row_bcast:31', 12)):
            for k in range(4):
                a('v_add_u32_dpp v%d, v%d, v%d %s row_mask:0x%x bank_mask:0xf' % (v + k, v + k, v + k, c, rm))

    def img_load(first, n, dst, t):
        a('v_lshlrev_b32 v%d, 4, v%d' % (t, LANE))
        for i in range(n):
            a('s_mov_b32 s%d, %d' % (sT, PREP0 + 1024 * (first + i)))
            a('buffer_load_dwordx4 %s, v%d, %s, s%d offen' % (vr(dst + 4 * i, 4), t, sr(S_WS, 4), sT))

    def gathers(q):
        a('buffer_load_dwordx4 %s, %s, %s, 0 idxen offen' % (vr(GB[q], 4), vr(IA, 2), sr(S_M, 4)))
        a('buffer_load_dwordx4 %s, %s, %s, 0 idxen offen' % (vr(GB[q] + 4, 4), vr(IB, 2), sr(S_M, 4)))

    def cosines(p):
        c1, c3, c2 = TM, TM + 1, TM + 2
        a('v_mul_f32 v%d, 0x40400000, v%d' % (c3, ANG[p]))
        a('v_mul_f32 v%d, 0.15915494, v%d' % (c1, ANG[p]))
        a('v_cvt_pk_bf16_f32 v%d, 0, v%d' % (c3, c3))
        a('v_fract_f32 v%d, v%d' % (c1, c1))
        a('v_mul_f32 v%d, 0.15915494, v%d' % (c3, c3))
        a('v_cos_f32 v%d, v%d' % (c1, c1))
        a('v_fract_f32 v%d, v%d' % (c3, c3))
        a('v_add_f32 v%d, v%d, v%d' % (c2, c1, c1))
        a('v_cos_f32 v%d, v%d' % (c3, c3))
        a('v_fma_f32 v%d, v%d, v%d, -1.0' % (c2, c2, c1))
        a('v_cvt_pk_f16_f32 v%d, v%d, v%d' % (c1, c1, c2))
        a('v_cvt_f16_f32 v%d, v%d' % (c3, c3))

    def sbf(l):
        src, sel = ((TM, 0), (TM, 1), (TM + 1, 0))[l]
        for j in range(4):
            a('v_pk_mul_f16 v%d, v%d, v%d op_sel:[0,%d] op_sel_hi:[1,%d]' % (SBF + 4 * (l & 1) + j, RBF + j, src, sel, sel))

    def gmf(l):
        a('v_mfma_f32_32x32x16_f16 %s, %s, %s, %s' % (vr(GATE, 16), vr(AG + 4 * l, 4), vr(SBF + 4 * (l & 1), 4), vr(GATE, 16) if l else '0'))

    def mdown(p):
        a('v_mfma_f32_32x32x16_bf16 %s, %s, %s, 0' % (vr(MD, 16), vr(AM, 4), vr(GB[p], 4)))
        a('v_mfma_f32_32x32x16_bf16 %s, %s, %s, %s' % (vr(MD, 16), vr(AM + 4, 4), vr(GB[p] + 4, 4), vr(MD, 16)))

    def addrs(p):
        a('v_lshrrev_b32 v%d, 2, v%d' % (A4, A16[p]))
        a('v_add_u32 v%d, %d, v%d' % (A4B, HI0, A4))

    def decode_rel(p, base, part=3):
        a('s_set_gpr_idx_on s%d, gpr_idx(SRC1)' % sIX)
        a('s_nop 0')
        if part & 1:
            a('v_and_b32 v%d, s%d, v%d' % (IA, sIDM, S0 + base + p))
            a('v_and_b32 v%d, s%d, v%d' % (IB, sIDM, S0 + base + p))
        if part & 2:
            a('v_and_b32_sdwa v%d, s%d, v%d dst_sel:DWORD dst_unused:UNUSED_PAD src0_sel:DWORD src1_sel:WORD_1' % (A16[p], sA16, S0 + base + p))
            if p:
                a('v_and_b32 v%d, s%d, v%d' % (ANG[p], sHI, S0 + base + 2))
            else:
                a('v_lshlrev_b32 v%d, 16, v%d' % (ANG[p], S0 + base + 2))
        a('s_set_gpr_idx_off')
        if part & 1:
            a('v_permlane32_swap_b32 v%d, v%d' % (IA, IB))

    def halfbar(hi):
        n = lab[0]
        lab[0] += 1
        a('s_bitcmp%d_b32 s%d, %d' % (0 if hi else 1, sW, P['stb_']))
        a('s_cbranch_scc1 Lhb%d' % n)
        a('s_barrier')
        a('Lhb%d:' % n)

    def step(p):
        q = 1 - p
        ab = P['abl']
        vq = (lambda t: None) if ab & 4 else a
        vb = (lambda t: None) if ab & 68 else a
        va = (lambda t: None) if ab & 1 else a
        if P['early']:
            decode_rel(p, 3, 1)
        a('s_waitcnt vmcnt(2)')
        if not ab & 16:
            mdown(p)
        if P['early']:
            gathers(p)
        if not ab & 32:
            cosines(p)
        a('s_waitcnt lgkmcnt(%d)' % (0 if ab & 1 else 9))
        if not ab & 32:
            sbf(0)
        addrs(p)
        if not ab & 8:
            gmf(0)
        if not ab & 32:
            sbf(1)
        a('v_or_b32 v%d, v%d, v%d' % (STK, STK, RTN[p]))
        a('s_cmp_eq_u32 s%d, s%d' % (sIX, sEND))
        if not ab & 8:
            gmf(1)
        if not ab & 32:
            sbf(2)
        a('ds_read_b128 %s, v%d offset:%d' % (vr(RBF, 4), A16[q], RBF0))
        a('s_cselect_b64 %s, %s, -1' % (sr(sMK, 2), sr(sLM + 2 * p, 2)))
        if not ab & 8:
            gmf(2)
        if P['early']:
            decode_rel(p, 3, 2)
        else:
            decode_rel(p, 3)
            gathers(p)
        if P['stag'] and (p == 1 or P['stag'] == 2):
            halfbar(1)
        a('s_mov_b64 exec, %s' % sr(sMK, 2))
        for j in range(8):
            vq('v_fma_f32 v%d, v%d, v%d, s%d' % (MD + 2 * j, MD + 2 * j, GATE + 2 * j, sM0))
            vq('v_fma_f32 v%d, v%d, v%d, s%d' % (MD + 2 * j + 1, MD + 2 * j + 1, GATE + 2 * j + 1, sM0))
            if j:
                jj = j - 1
                vb('v_sad_u16 v%d, v%d, s%d, v%d' % (TM + (jj >> 1), MD + 2 * jj, sM1, TM + (jj >> 1) if jj & 1 else CK))
            vq('v_cvt_pknorm_u16_f32 v%d, v%d, v%d' % (MD + 2 * j, MD + 2 * j, MD + 2 * j + 1))
            b, o = plane(j)
            va('ds_add_u32 v%d, v%d offset:%d' % (b, MD + 2 * j, o))
        vb('v_max3_u32 v%d, v%d, v%d, v%d' % (CV, TM, TM + 1, TM + 2))
        vb('v_sad_u16 v%d, v%d, s%d, v%d' % (TM + 3, MD + 14, sM1, TM + 3))
        vb('v_max_u32 v%d, v%d, v%d' % (CV, CV, TM + 3))
        va('ds_add_rtn_u32 v%d, v%d, v%d offset:%d' % (RTN[p], A4B, CV, 3 * PL))
        a('s_mov_b64 exec, -1')

    a('s_cmp_ge_u32 s2, 256')
    a('s_cbranch_scc1 Lk2_end')
    a('s_load_dwordx2 s[4:5], s[0:1], 0')
    a('s_load_dwordx2 s[6:7], s[0:1], 24')
    a('s_load_dwordx2 s[8:9], s[0:1], 40')
    a('s_load_dwordx2 s[10:11], s[0:1], 88')
    a('s_load_dwordx4 s[12:15], s[0:1], 96')
    if P['cpf'] & 2:
        G['code_prefetch'](a, 'b', 88, 4)
    a('v_lshrrev_b32 v2, 6, v0')
    a('v_and_b32 v%d, 63, v0' % LANE)
    a('v_readfirstlane_b32 s%d, v2' % sW)
    a('s_and_b32 s%d, s2, 7' % sBIN)
    a('s_lshl_b32 s%d, s%d, 5' % (sBIN, sBIN))
    a('s_lshr_b32 s%d, s2, 3' % sT)
    a('s_add_u32 s%d, s%d, s%d' % (sBIN, sBIN, sT))
    a('s_mov_b32 s%d, 0x%x' % (sM0, f2u(32768.0 / 65535.0)))
    a('s_mov_b32 s%d, 0x80008000' % sM1)
    a('s_mov_b32 s%d, 0x%x' % (sIDM, P['idm']))
    a('s_mov_b32 s%d, 0xffff0000' % sHI)
    a('s_mov_b32 s%d, 0xfff0' % sA16)
    a('s_mov_b32 s%d, 0x07060302' % sPS)
    a('s_mov_b32 s%d, 0' % sMODE)
    a('v_cmp_gt_u32 %s, %d, v0' % (sr(sV6, 2), BINE - 3072))
    a('v_lshrrev_b32 v%d, 5, v%d' % (IA + 1, LANE))
    a('v_lshlrev_b32 v%d, 4, v%d' % (IA + 1, IA + 1))
    a('v_mov_b32 v%d, v%d' % (IB + 1, IA + 1))
    a('v_mov_b32 v%d, 0' % IA)
    a('v_mov_b32 v%d, 0' % IB)
    a('s_waitcnt lgkmcnt(0)')
    a('s_load_dwordx4 s[96:99], s[8:9], 0')
    srd(a, S_WS, 14, WS_BYTES)
    D, X, DL = RAW, RAW + 4, RAW + 8
    desc_load(D, RAW + 12)
    a('s_mul_i32 s%d, s%d, %d' % (sT, sBIN, BINE * 2))
    a('s_mul_i32 s%d, s%d, %d' % (sT2, sBIN, BINE * 32))
    srd(a, S_DIST, 6, BINE * 2, 's%d' % sT)
    srd(a, S_M, 4, E, None, 32)
    srd(a, S_MR, 4, E * 32)
    srd(a, S_MO, 4, BINE * 32, 's%d' % sT2)
    srd(a, S_OUT, 10, BINE * 32, 's%d' % sT2)
    G['stamp_init'](a, S_DBG, 14, 1, sW)
    a('s_waitcnt lgkmcnt(0)')
    for r in range(4):
        a('s_lshl_b32 s%d, s%d, 16' % (sCEN + 2 * r, 96 + r))
        a('s_and_b32 s%d, s%d, 0xffff0000' % (sCEN + 2 * r + 1, 96 + r))
    a('s_mov_b32 s%d, 0x%x' % (sR, f2u(math.sqrt(10.0 * math.log2(math.e)))))
    a('v_mov_b32 v%d, s%d' % (RT + 8, sR))
    for r in range(8):
        a('v_mul_f32 v%d, s%d, v%d' % (RT + r, sCEN + r, RT + 8))
    for r in range(8):
        a('v_readfirstlane_b32 s%d, v%d' % (sCEN + r, RT + r))
    stamp(0)
    Z, T0 = RAW + 16, RAW + 24
    for i in range(4):
        a('v_mov_b32 v%d, 0' % (Z + i))
        a('v_bfrev_b32 v%d, 1' % (Z + 4 + i))
    a('v_lshlrev_b32 v%d, 4, v0' % T0)
    a('v_lshlrev_b32 v%d, 3, v0' % (T0 + 1))
    a('s_mul_i32 s%d, s%d, 1088' % (sTB, sW))
    a('v_lshl_add_u32 v%d, v%d, 4, s%d' % (T0 + 2, LANE, sTB))
    a('ds_write_b64 v%d, %s offset:%d' % (T0 + 1, vr(Z, 2), BB0))
    a('ds_write_b128 v%d, %s offset:%d' % (T0 + 2, vr(Z + 4, 4), TB0))
    a('ds_write_b128 v%d, %s offset:%d' % (T0 + 2, vr(Z + 4, 4), TB0 + 64))
    a('s_movk_i32 s%d, 400' % sT)
    a('v_cmpx_gt_u32 vcc, s%d, v0' % sT)
    a('ds_write_b128 v%d, %s offset:%d' % (T0, vr(Z, 4), KC0))
    a('ds_write_b128 v%d, %s offset:%d' % (T0, vr(Z, 4), KC0 + 6400))
    a('s_mov_b64 exec, -1')
    a('v_mov_b32 v%d, 1' % ONE)
    a('v_mov_b32 v%d, 8' % EIGHT)
    a('v_mul_u32_u24 v%d, 12, v%d' % (L12, LANE))
    a('s_lshl_b32 s%d, s%d, 10' % (sT, sW))
    a('v_lshl_add_u32 v%d, v%d, 3, s%d' % (RBA, LANE, sT))
    a('s_lshl_b32 s%d, s2, 3' % sT)
    a('s_add_u32 s%d, s%d, s%d' % (sT, sT, sW))
    a('s_mul_i32 s%d, s%d, 25' % (sT, sT))
    a('v_min_u32 v%d, 24, v%d' % (WA, LANE))
    a('v_add_lshl_u32 v%d, v%d, s%d, 7' % (WA, WA, sT))
    for j in range(4):
        if P['wpos'][j] == '0':
            a('s_mov_b32 s%d, %d' % (sT, j * 51200 * 128))
            a('buffer_load_dword v%d, v%d, %s, s%d offen' % (WD, WA, sr(S_MR, 4), sT))
    a('s_movk_i32 s%d, %d' % (sT, REC0 // 12))
    a('v_mov_b32 v%d, %d' % (T0 + 3, TSP))
    a('v_mad_u32_u24 v%d, v0, v%d, s%d' % (T0 + 3, T0 + 3, sT))
    a('s_waitcnt vmcnt(%d)' % (0 if P['stamp'] else P['wpos'].count('0')))
    NP = RAW + 28
    for k in range(4):
        a('v_add_u32 v%d, 0x10000, v%d' % (NP + k, D + k))
        a('v_bfe_u32 v%d, v%d, 16, 1' % (X + k, D + k))
        a('v_lshrrev_b32 v%d, 17, v%d' % (NP + k, NP + k))
        a('v_and_b32 v%d, 0xffff, v%d' % (D + k, D + k))
        a('v_lshl_or_b32 v%d, v%d, 20, v%d' % (X + k, X + k, NP + k))
    scan4(X)
    TT = RAW + 32
    a('s_movk_i32 s%d, %d' % (sT2, NSL * 64))
    for k in range(4):
        a('v_lshrrev_b32 v%d, 20, v%d' % (TT + k, X + k))
        a('v_and_b32 v%d, 0xfffff, v%d' % (X + k, X + k))
        a('v_add_u32 v%d, v%d, v%d' % (DL + k, D + k, T0 + 3))
        a('v_sub_u32 v%d, v%d, v%d' % (TT + k, X + k, TT + k))
        a('v_sub_u32 v%d, v%d, v%d' % (DL + k, DL + k, X + k))
        a('v_add_u32 v%d, v%d, v%d' % (TT + k, TT + k, X + k))
        a('v_mul_u32_u24 v%d, 12, v%d' % (DL + k, DL + k))
        a('v_subrev_u32 v%d, %d, v%d' % (T0, 64 * P['nfull'], X + k))
        a('v_cmpx_lt_u32 vcc, %d, v%d' % (64 * (NSL - P['nfull']), T0))
        a('v_mov_b32 v%d, 0x1000000' % (TT + k))
        a('s_mov_b64 exec, -1')
    for k in range(4):
        a('v_readlane_b32 s%d, v%d, 63' % (sEW + k, X + k))
    a('s_lshl_b32 s%d, s%d, 4' % (sT, sW))
    a('v_mov_b32 v%d, s%d' % (T0, sT))
    a('s_mov_b32 exec_lo, 0')
    a('s_mov_b32 exec_hi, 0x80000000')
    a('ds_write_b128 v%d, %s offset:%d' % (T0, vr(TT, 4), SC0))
    a('s_mov_b64 exec, -1')
    a('s_lshl_b32 s%d, s%d, 9' % (sT, sW))
    for k in range(4):
        a('v_subrev_u32 v%d, 1, v%d' % (T0, X + k))
        a('v_lshlrev_b32 v%d, v%d, v%d' % (T0 + 1, T0, ONE))
        a('v_lshrrev_b32 v%d, 5, v%d' % (T0, T0))
        a('v_lshl_add_u32 v%d, v%d, 2, s%d' % (T0, T0, sT))
        a('v_cmpx_ge_u32 vcc, s%d, v%d' % (sT2, X + k))
        a('v_cmpx_ne_u32 vcc, 0, v%d' % (NP + k))
        a('v_mbcnt_lo_u32_b32 v%d, vcc_lo, 0' % (T0 + 2))
        a('v_mbcnt_hi_u32_b32 v%d, vcc_hi, v%d' % (T0 + 2, T0 + 2))
        a('v_lshl_add_u32 v%d, v%d, 2, s%d' % (T0 + 2, T0 + 2, sTB))
        a('ds_or_b32 v%d, v%d offset:%d' % (T0, T0 + 1, BB0 + 128 * k))
        a('ds_write_b32 v%d, v%d offset:%d' % (T0 + 2, DL + k, TB0 + 272 * k))
        a('s_mov_b64 exec, -1')
    a('v_and_b32 v%d, 7, v0' % T0)
    a('v_lshlrev_b32 v%d, 4, v%d' % (T0, T0))
    a('s_waitcnt lgkmcnt(0)')
    a('s_barrier')
    a('ds_read_b128 %s, v%d offset:%d' % (vr(TT, 4), T0, SC0))
    a('s_mov_b32 s%d, 0' % sPc)
    a('s_waitcnt lgkmcnt(0)')
    for c in ('row_shr:1', 'row_shr:2', 'row_shr:4'):
        for k in range(4):
            a('v_add_u32_dpp v%d, v%d, v%d %s row_mask:0xf bank_mask:0xf' % (TT + k, TT + k, TT + k, c))
    for k in range(4):
        a('v_readlane_b32 s%d, v%d, 7' % (sPc + 1 + k, TT + k))
    for k in range(1, 4):
        a('s_add_u32 s%d, s%d, s%d' % (sPc + 1 + k, sPc + 1 + k, sPc + k))
    a('s_cmp_gt_u32 s%d, %d' % (sPc + 4, NBLK * 1024 if P['force_slow'] != 4 else 0))
    a('s_cbranch_scc1 Lk2_fb')
    a('s_cmp_ge_u32 s%d, %d' % (sPc + 2, 29 * 1024))
    a('s_cbranch_scc1 Lk2_fb')
    stamp(1)

    BUF = (96, 156)
    LEAD, HP = P['lead'], P['hp']
    RO, ZR = 184, 212
    DI = (TF[0], TF[1], VM, L12, TH, TH + 1, ONE)
    NFULL = P['nfull']
    mA, mC, mV, mM = {}, {}, {}, {}
    VMS = (255, VM)

    def raw(u):
        return BUF[(u // NSL) & 1] + 4 * (u % NSL)

    def Mrd(r):
        a('s_lshl_b32 s%d, s%d, 9' % (sT, sW))
        a('v_lshl_add_u32 v%d, v%d, 2, s%d' % (VMS[r >> 1], LANE, sT))
        a('ds_read_b32 v%d, v%d offset:%d' % (VMS[r >> 1], VMS[r >> 1], BB0 + 128 * r))
        mM[r] = a.mark()

    def A(u):
        R = raw(u)
        tail = u % NSL >= NFULL
        if tail:
            a('v_cmpx_gt_i32 %s, 0, v%d' % (sr(sMA + 2 * (u % NA), 2), R + 1))
        for e in range(2):
            t = TAR[2 * (u % NA) + e]
            a('v_and_b32 v%d, 0xffff, v%d' % (t, R + 2 * e + 1))
            if not P['abl'] & 256:
                a('ds_add_rtn_u32 v%d, v%d, v%d offset:%d' % (t, t, EIGHT, KC0))
            else:
                a('v_lshlrev_b32 v%d, 3, v%d' % (t, R + 2 * e))
        if tail:
            a('s_mov_b64 exec, -1')
        mA[u] = a.mark()

    def B(u):
        R = raw(u)
        tail = u % NSL >= NFULL
        if tail:
            a('s_mov_b64 exec, %s' % sr(sMA + 2 * (u % NA), 2))
        a.wait_ds(mA[u])
        for e in range(2):
            t = TAR[2 * (u % NA) + e]
            a('v_and_b32 v%d, 0x1ffff, v%d' % (t, t))
            if not P['abl'] & 512:
                a('ds_write_b64 v%d, %s offset:%d' % (t, vr(R + 2 * e, 2), RING0))
        if tail:
            a('s_mov_b64 exec, -1')

    def C(u):
        if u >= 4 * NSL:
            return
        r, k = divmod(u, NSL)
        t = TF[u & 1]
        if u == 0:
            a.wait_ds(mM[2])
        if k == 0:
            a('s_mul_i32 s%d, s%d, 1088' % (sTB, sW))
        a('v_readlane_b32 s%d, v%d, %d' % (sLO, VMS[r >> 1], 32 * (r & 1) + 2 * k))
        a('v_readlane_b32 s%d, v%d, %d' % (sLO + 1, VMS[r >> 1], 32 * (r & 1) + 2 * k + 1))
        a('s_bcnt1_i32_b64 s%d, %s' % (sT, sr(sLO, 2)))
        a('v_mbcnt_lo_u32_b32 v%d, s%d, 0' % (t, sLO))
        a('v_mbcnt_hi_u32_b32 v%d, s%d, v%d' % (t, sLO + 1, t))
        a('v_lshl_add_u32 v%d, v%d, 2, s%d' % (t, t, sTB))
        a('s_lshl2_add_u32 s%d, s%d, s%d' % (sTB, sT, sTB))
        a('ds_read_b32 v%d, v%d offset:%d' % (t, t, TB0 + 272 * r))
        mC[u] = a.mark()

    def Dd(u):
        if u >= 4 * NSL:
            return
        t = TF[u & 1]
        a('s_movk_i32 s%d, %d' % (sT2, 768 * (u % NSL)))
        a.wait_ds(mC[u])
        a('v_add_u32 v%d, v%d, v%d' % (t, t, L12))
        if P['abl'] & 2048:
            a('v_and_b32 v%d, 0x3ffff, v%d' % (t, t))
        a('buffer_load_dwordx3 %s, v%d, %s, s%d offen %s' % (vr(raw(u), 3), t, sr(S_WS, 4), sT2, P['ldrec']))
        mV[u] = a.mark()

    def H(u):
        R = raw(u)
        tail = u % NSL >= NFULL
        a.wait_vm(mV[u])
        if tail:
            a('v_cmpx_gt_i32 vcc, 0, v%d' % (R + 1))
        for e in range(2):
            a('v_lshrrev_b32 v%d, 6, v%d' % (TH + e, R + 2 * e))
        for e in range(2):
            a('v_and_b32 v%d, 0x3ffc, v%d' % (TH + e, TH + e))
        for e in range(2):
            if not P['abl'] & 1024:
                a('ds_add_u32 v%d, v%d offset:%d' % (TH + e, ONE, KC0))
        a('v_lshl_or_b32 v%d, v%d, 16, v%d' % (R + 3, R + 1, TH + 1))
        a('v_and_or_b32 v%d, v%d, s%d, v%d' % (R + 1, R + 1, sHI, TH))
        if tail:
            a('s_mov_b64 exec, -1')

    def keyscan(r):
        K = RT
        nds = a.nds
        a('s_cmp_lg_u32 s%d, %d' % (sW, P['scw']))
        a('s_cbranch_scc1 Lks%d' % r)
        a('v_lshlrev_b32 v%d, 6, v%d' % (RA, LANE))
        for j in range(4):
            a('ds_read_b128 %s, v%d offset:%d' % (vr(K + 4 * j, 4), RA, KC0 + 3136 * r + 16 * j))
        a('s_waitcnt lgkmcnt(0)')
        for j in range(1, 16):
            a('v_add_u32 v%d, v%d, v%d' % (K + j, K + j, K + j - 1))
        a('v_mov_b32 v%d, v%d' % (RA + 1, K + 15))
        G['scan64'](a, RA + 1)
        a('v_sub_u32 v%d, v%d, v%d' % (RA + 1, RA + 1, K + 15))
        a('v_add_u32 v%d, s%d, v%d' % (RA + 1, sPc + r, RA + 1))
        a('v_cmpx_gt_u32 vcc, 49, v%d' % LANE)
        for j in range(15, -1, -1):
            if j:
                a('v_add_lshl_u32 v%d, v%d, v%d, 3' % (K + j, K + j - 1, RA + 1))
            else:
                a('v_lshlrev_b32 v%d, 3, v%d' % (K, RA + 1))
            if j % 4 == 0:
                a('ds_write_b128 v%d, %s offset:%d' % (RA, vr(K + j, 4), KC0 + 3136 * r + 4 * j))
        a('s_lshl_b32 s%d, s%d, 3' % (sT, sPc + r + 1))
        a('v_mov_b32 v%d, s%d' % (RA + 1, sT))
        a('v_lshlrev_b32 v%d, 2, v%d' % (RA, LANE))
        a('s_mov_b64 exec, 0xffff')
        a('ds_write_b32 v%d, v%d offset:%d' % (RA, RA + 1, KC0 + 4 * (3136 + 16 * r)))
        a('s_mov_b64 exec, -1')
        a('Lks%d:' % r)
        a('s_nop 1')
        a.nds = nds

    def rb_reads():
        mk = {}
        for j in range(4):
            a('s_add_u32 s%d, s%d, %d' % (sT, sRB, j))
            a('s_and_b32 s%d, s%d, 15' % (sT, sT))
            a('s_lshl_b32 s%d, s%d, 13' % (sT, sT))
            a('v_add_u32 v%d, s%d, v%d' % (RA + j, sT, RBA))
            a('ds_read_b64 %s, v%d offset:%d' % (vr(RT + 4 * j, 2), RA + j, RING0))
            a('ds_read_b64 %s, v%d offset:%d' % (vr(RT + 4 * j + 2, 2), RA + j, RING0 + 512))
            mk[j] = a.mark()
        return mk

    def rb_moves(mk):
        a('s_mul_i32 s%d, s%d, 3' % (sIX, sRB))
        a('s_set_gpr_idx_on s%d, gpr_idx(DST)' % sIX)
        for j in range(4):
            a.wait_ds(mk[j])
            a('v_mov_b32 v%d, v%d' % (S0 + 3 * j, RT + 4 * j))
            a('v_mov_b32 v%d, v%d' % (S0 + 3 * j + 1, RT + 4 * j + 2))
            a('v_perm_b32 v%d, v%d, v%d, s%d' % (S0 + 3 * j + 2, RT + 4 * j + 3, RT + 4 * j + 1, sPS))
        a('s_set_gpr_idx_off')
        a('s_add_u32 s%d, s%d, 4' % (sRB, sRB))

    def readback(tag):
        nds = a.nds
        a('s_cmp_ge_u32 s%d, s%d' % (sRB, sRE))
        a('s_cbranch_scc1 Lrd%s' % tag)
        a('Lrl%s:' % tag)
        rb_moves(rb_reads())
        a('s_cmp_lt_u32 s%d, s%d' % (sRB, sRE))
        a('s_cbranch_scc1 Lrl%s' % tag)
        a('Lrd%s:' % tag)
        a('s_mov_b32 s%d, s%d' % (sRB, sRE))
        a.nds = nds

    def warm(j):
        if P['warm']:
            a('s_mov_b32 s%d, %d' % (sT, j * 51200 * 128))
            a('buffer_load_dword v%d, v%d, %s, s%d offen' % (WD, WA, sr(S_MR, 4), sT))

    def l2pf(j):
        if j * 16384 >= P['pfn']:
            return
        if j == 0:
            a('s_lshr_b32 s%d, s2, 3' % sT)
            a('s_lshl_b32 s%d, s%d, 9' % (sT, sT))
            a('v_add_lshl_u32 v%d, v0, s%d, 7' % (WA, sT))
            a('s_mov_b32 s%d, %d' % (S_MR + 2, P['pfn'] * 128))
        a('s_mov_b32 s%d, %d' % (sT, j * 16384 * 128))
        a('buffer_load_dword v%d, v%d, %s, s%d offen' % (WD, WA, sr(S_MR, 4), sT))

    def dist_loads():
        a('v_lshlrev_b32 v%d, 1, v0' % (RA + 2))
        for q in range(NQ):
            a('s_movk_i32 s%d, %d' % (sT, q * 1024))
            a('buffer_load_ushort v%d, v%d, %s, s%d offen' % (DI[q], RA + 2, sr(S_DIST, 4), sT))
        return a.mark()

    def rbf_batch(q):
        K = RT
        a('v_lshlrev_b32 v%d, 16, v%d' % (K + 8, DI[q]))
        a('v_mul_f32 v%d, s%d, v%d' % (K + 8, sR, K + 8))
        for r in range(8):
            a('v_subrev_f32 v%d, s%d, v%d' % (K + r, sCEN + r, K + 8))
        for r in range(8):
            a('v_mul_f32 v%d, v%d, v%d' % (K + r, K + r, K + r))
        for r in range(8):
            a('v_exp_f32 v%d, -v%d' % (K + r, K + r))
        for r in range(4):
            a('v_cvt_pk_f16_f32 v%d, v%d, v%d' % (RO + 4 * q + r, K + 2 * r, K + 2 * r + 1))

    NP_ = P['npipe']

    def guarded(r, body):
        n = lab[0]
        lab[0] += 1
        nds, nvm = a.nds, a.nvm
        for k in range(NP_, NSL):
            a('s_cmp_le_u32 s%d, %d' % (sEW + r, 64 * k))
            a('s_cbranch_scc1 Lg%d' % n)
            body(NSL * r + k)
        a('Lg%d:' % n)
        a('s_nop 3')
        a.nds, a.nvm = nds, nvm

    def U(x):
        return NSL * (x // NP_) + x % NP_

    def Cx(x):
        C(U(x))

    def Dx(x):
        if x >= 4 * NP_:
            return
        Dd(U(x))

    def loadstep(x):
        def first():
            if (x + 1) % NP_:
                Cx(x + 1)

        def second():
            Dx(x)
            if (x + 1) % NP_ == 0 and x < 4 * NP_:
                r = x // NP_

                def body(u):
                    C(u)
                    Dd(u)
                guarded(r, body)
                for k in range(NP_, NSL):
                    mV[NSL * r + k] = a.mark()
                if r < 3:
                    Cx(x + 1)
        return first, second

    def Hx(x):
        H(U(x))
        if (x + 1) % NP_ == 0:
            guarded(x // NP_, H)

    Mrd(0)
    Mrd(2)
    a('s_mov_b32 s%d, 0' % sRB)
    lag = P['dv']
    C(0)
    for i in range(NP_ + lag):
        f1, f2 = loadstep(i)
        f1()
        f2()
        if i >= lag:
            Hx(i - lag)
    a('s_waitcnt lgkmcnt(0)')
    a('s_barrier')
    keyscan(0)
    lead0 = P['lead0']
    for i in range(NP_ + lag, NP_ + lead0):
        f1, f2 = loadstep(i)
        f1()
        f2()
    a('s_waitcnt lgkmcnt(0)')
    a('s_barrier')
    nxt = NP_ + max(lag, lead0)
    for r in range(4):
        stamp(2 + r)
        u0 = NSL * r
        hq = list(range(NP_ * (r + 1), NP_ * (r + 2))) if r < 3 else []
        if r:
            a('s_lshr_b32 s%d, s%d, 10' % (sRE, sPc + r))
            for g in range(3):
                mk = rb_reads()
                if hq:
                    Hx(hq.pop(0))
                rb_moves(mk)
            readback(str(r))
        while r and len(hq) > NP_ - HP:
            Hx(hq.pop(0))
        for k in range(NA - 1):
            A(u0 + k)
        if r == P['fr']:
            stamp(11)
        if r:
            a('s_barrier')
        if r == P['fr']:
            stamp(12)
        pend = None
        for i in range(NP_):
            f1, f2 = loadstep(nxt)
            f1()
            if i + NA - 1 < NP_:
                A(u0 + i + NA - 1)
            B(u0 + i)
            assert nxt < NP_ * (r + 2) or nxt - NP_ * (r + 2) <= i
            f2()
            nxt += 1
            if nxt < NP_ * (r + 1) + LEAD + i + 1:
                f1, f2 = loadstep(nxt)
                f1()
                f2()
                nxt += 1
            nh = 2 if (len(hq) > max(1, NP_ - HP - i) and U(hq[1]) in mV and hq[1] + 4 <= nxt) else 1
            for _ in range(nh):
                if hq:
                    Hx(hq.pop(0))
                    if not hq:
                        pend = (i + P['bhd'], a.mark())
                        if r == 2:
                            mD = dist_loads()
            if pend and pend[0] == i:
                a.wait_ds(pend[1])
                if r == P['fr']:
                    stamp(13)
                a('s_barrier')
                keyscan(r + 1)
                if r == P['fr']:
                    stamp(14)
            for j in range(4):
                if P['wpos'][j] == 'abcdefghijklmnopqrstuvwxyzABCDEFGH'[(r - 2) * NP_ + i] and r >= 2:
                    warm(j)
            for j in range(2):
                if P['ppos'][j] == 'abcdefghijklmnopqrstuvwxyzABCDEFGH'[(r - 2) * NP_ + i] and r >= 2:
                    l2pf(j)
            if r == 3 and i == 6:
                if not P['imgl']:
                    img_load(0, 5, AG, RA)
                a.wait_vm(mD)
            if r == 3 and 7 <= i < 7 + NQ - 1:
                rbf_batch(i - 7)

        def body(u):
            A(u)
            B(u)
        guarded(r, body)
        if r == 3:
            a('s_cmp_lg_u32 s%d, 0' % sW)
            a('s_cbranch_scc1 Lk2_r6')
            rbf_batch(NQ - 1)
            a('Lk2_r6:')
        a('s_waitcnt lgkmcnt(0)')
        if r == P['fr']:
            stamp(15)
        a('s_barrier')
    stamp(6)
    a('s_add_u32 s%d, s%d, 1023' % (sRE, sPc + 4))
    a('s_lshr_b32 s%d, s%d, 10' % (sRE, sRE))
    readback('L')
    a('s_max_u32 s%d, s%d, 1' % (sRB, sRB))
    a('s_sub_u32 s%d, s%d, 1' % (sRB, sRB))
    a('s_mul_i32 s%d, s%d, 3' % (sEND, sRB))
    a('s_lshl_b32 s%d, s%d, 10' % (sT, sRB))
    a('s_sub_u32 s%d, s%d, s%d' % (sT, sPc + 4, sT))
    a('v_lshrrev_b32 v%d, 3, v%d' % (TM, RBA))
    a('v_add_u32 v%d, 64, v%d' % (TM + 1, TM))
    a('v_cmp_gt_u32 %s, s%d, v%d' % (sr(sLM, 2), sT, TM))
    a('v_cmp_gt_u32 %s, s%d, v%d' % (sr(sLM + 2, 2), sT, TM + 1))
    a('s_set_gpr_idx_on s%d, gpr_idx(SRC1,DST)' % sEND)
    a('s_andn2_b64 exec, -1, %s' % sr(sLM + 2, 2))
    a('v_mov_b32 v%d, 0' % (S0 + 1))
    a('v_and_b32 v%d, 0xffff, v%d' % (S0 + 2, S0 + 2))
    a('s_andn2_b64 exec, -1, %s' % sr(sLM, 2))
    a('v_mov_b32 v%d, 0' % S0)
    a('v_mov_b32 v%d, 0' % (S0 + 2))
    a('s_mov_b64 exec, -1')
    a('s_set_gpr_idx_off')
    a('s_mov_b32 s%d, 0' % sIX)
    a('Lk2_init:')
    a('s_barrier')
    for i in range(4):
        a('v_mov_b32 v%d, 0' % (ZR + i))
    a('v_lshlrev_b32 v%d, 4, v0' % A4)
    a('v_add_u32 v%d, %d, v%d' % (A4B, HI0, A4))
    a('v_add_u32 v%d, %d, v%d' % (CV, RBF0, A4))
    for q in range(NQ - 1):
        a('ds_write_b128 v%d, %s offset:%d' % (CV, vr(RO + 4 * q, 4), 8192 * q))
    a('s_mov_b64 exec, %s' % sr(sV6, 2))
    a('ds_write_b128 v%d, %s offset:%d' % (CV, vr(RO + 4 * NQ - 4, 4), 8192 * (NQ - 1)))
    a('s_mov_b64 exec, -1')
    a('s_cmp_lg_u32 s%d, 0' % sMODE)
    a('s_cbranch_scc1 Lk2_ng')
    if P['imgl']:
        img_load(0, 5, AG, TM)
    decode_rel(0, 0)
    gathers(0)
    decode_rel(1, 0)
    gathers(1)
    a('Lk2_ng:')
    for o in list(range(0, RBF0 - 8192, 8192)) + [RBF0 - 8192]:
        a('ds_write_b128 v%d, %s offset:%d' % (A4, vr(ZR, 4), o))
    for o in list(range(0, 4 * PL - 8192, 8192)) + [4 * PL - 8192]:
        a('ds_write_b128 v%d, %s offset:%d' % (A4B, vr(ZR, 4), o))
    a('v_mov_b32 v%d, 0' % STK)
    a('v_mov_b32 v%d, 0' % RTN[0])
    a('v_mov_b32 v%d, 0' % RTN[1])
    a('v_mov_b32 v%d, 0x1000000' % CK)
    a('v_and_b32 v255, 0x1df, v0')
    a('v_lshl_add_u32 v255, v255, 5, v%d' % (IA + 1))
    a('s_waitcnt lgkmcnt(0)')
    a('s_barrier')
    stamp(7, True)
    a('s_cmp_lg_u32 s%d, 0' % sMODE)
    a('s_cbranch_scc1 Lk2_all')
    a('ds_read_b128 %s, v%d offset:%d' % (vr(RBF, 4), A16[0], RBF0))
    a('s_waitcnt lgkmcnt(0)')
    MQ, AU, AR, OA = 4, 60, 68, 255
    WW, RBB, CNN = (76, 96), (84, 104), (88, 108)
    R16, T1, T2, T3, T4 = 92, 112, 113, 114, 115
    sTRG = 89

    def epi_loads():
        img_load(5, 3, AU, 2)
        for q in range(NQ):
            a('s_mov_b32 s%d, %d' % (sT, q * 16384))
            a('buffer_load_dwordx4 %s, v%d, %s, s%d offen' % (vr(MQ + 8 * q, 4), OA, sr(S_MO, 4), sT))
            a('buffer_load_dwordx4 %s, v%d, %s, s%d offen offset:1024' % (vr(MQ + 8 * q + 4, 4), OA, sr(S_MO, 4), sT))

    a('s_mul_i32 s%d, s%d, 49' % (sTRG, sBIN))
    a('s_lshr_b32 s%d, s%d, 8' % (sTRG, sTRG))
    a('s_add_u32 s%d, s%d, %d' % (sTRG, sTRG, P['trg']))
    a('s_and_b32 s%d, s%d, 15' % (sT, sBIN))
    a('s_add_u32 s%d, s%d, 24' % (sT, sT))
    a('s_cmp_lt_u32 s%d, 24' % sTRG)
    a('s_cselect_b32 s%d, s%d, s%d' % (sTRG, sT, sTRG))
    a('s_mul_i32 s%d, s%d, 3' % (sTRG, sTRG))
    a('s_min_u32 s%d, s%d, s%d' % (sTRG, sTRG, sEND))
    if '1' in P['wpos']:
        a('s_mov_b32 s90, %d' % (3 * P['mw1']))
        a('s_mov_b32 s91, %d' % (P['wpos'].index('1') * 51200 * 128))
        a('v_mov_b32 v155, v%d' % WA)
    if P['prio']:
        a('s_cmp_lt_u32 s%d, 4' % sW)
        a('s_cbranch_scc1 Lk2_np')
        a('s_setprio 1')
        a('Lk2_np:')
    a.raw('.p2align 6')
    a('Lk2_loop:')
    a('s_cmp_eq_u32 s%d, s%d' % (sIX, sTRG))
    a('s_cbranch_scc1 Lk2_el')
    a('Lk2_lc:')
    if '1' in P['wpos']:
        a('s_cmp_eq_u32 s%d, s90' % sIX)
        a('s_cbranch_scc1 Lk2_wl')
        a('Lk2_wc:')
    step(0)
    if P['stag'] == 2:
        halfbar(0)
    step(1)
    if P['stag']:
        halfbar(0)
    elif P['mbar'] == 1:
        a('s_barrier')
    elif P['mbar']:
        a('s_and_b32 s%d, s%d, %d' % (sT, sIX, P['mbar'] - 1))
        a('s_cbranch_scc1 Lk2_nb')
        a('s_barrier')
        a('Lk2_nb:')
    a('s_add_u32 s%d, s%d, 3' % (sIX, sIX))
    a('s_cmp_le_u32 s%d, s%d' % (sIX, sEND))
    a('s_cbranch_scc1 Lk2_loop')
    stamp(8, True)
    a('s_mov_b32 s%d, 0' % sPASS)
    for i in range(NQ):
        a('s_mov_b64 %s, 0' % sr(sFL + 2 * i, 2))
        a('s_mov_b64 %s, 0' % sr(sSK + 2 * i, 2))
    a('Lk2_epi:')
    a('v_lshlrev_b32 v%d, 2, v0' % A4)
    a('v_add_u32 v%d, %d, v%d' % (A4B, HI0, A4))
    a('v_lshlrev_b32 v%d, 4, v0' % R16)
    a('s_waitcnt vmcnt(4) lgkmcnt(0)')
    a('v_or3_b32 v%d, v%d, v%d, v%d' % (STK, STK, RTN[0], RTN[1]))
    a('s_barrier')
    mk = {}

    def e_read(q):
        W, RB, CN = WW[q & 1], RBB[q & 1], CNN[q & 1]
        if q == NQ - 1:
            for i in range(4):
                a('v_mov_b32 v%d, 0' % (RB + i))
            for i in range(8):
                a('v_mov_b32 v%d, 0' % (W + i))
            a('v_mov_b32 v%d, 0' % CN)
            a('s_mov_b64 exec, %s' % sr(sV6, 2))
        a('ds_read_b32 v%d, v%d offset:%d' % (CN, A4B, 3 * PL + 2048 * q))
        mk[q, -1] = a.mark()
        for j in range(8):
            b, o = plane(j)
            a('ds_read_b32 v%d, v%d offset:%d' % (W + j, b, o + 2048 * q))
            mk[q, j] = a.mark()
        a('ds_read_b128 %s, v%d offset:%d' % (vr(RB, 4), R16, RBF0))
        mk[q, 8] = a.mark()
        if q == NQ - 1:
            a('s_mov_b64 exec, -1')
        else:
            a('v_add_u32 v%d, 8192, v%d' % (R16, R16))

    def e_decode(q):
        W, CN = WW[q & 1], CNN[q & 1]
        a.wait_ds(mk[q, -1 if q == 0 else 8])
        a('v_lshrrev_b32 v%d, 24, v%d' % (CN + 3, CN))
        a('v_and_b32 v%d, 0xffffff, v%d' % (CN, CN))
        a('v_mul_lo_u32 v%d, v%d, s%d' % (CN + 2, CN + 3, sM1))
        a('v_cmp_lt_u32 vcc, 127, v%d' % (CN + 3))
        a('v_mul_u32_u24 v%d, %d, v%d' % (CN + 3, P['theta'], CN + 3))
        a('s_or_b64 %s, %s, vcc' % (sr(sFL + 2 * q, 2), sr(sFL + 2 * q, 2)))
        a('v_cmp_lt_u32 vcc, 0x7ffe, v%d' % CN)
        a('s_or_b64 %s, %s, vcc' % (sr(sFL + 2 * q, 2), sr(sFL + 2 * q, 2)))
        a('v_cmp_lt_u32 vcc, v%d, v%d' % (CN, CN + 3))
        a('s_or_b64 %s, %s, vcc' % (sr(sFL + 2 * q, 2), sr(sFL + 2 * q, 2)))
        a('s_andn2_b64 exec, -1, %s' % sr(sSK + 2 * q, 2))
        for j in range(8):
            if q == 0:
                a.wait_ds(mk[q, j])
            t = CN + (j & 1)
            a('v_sub_u32 v%d, v%d, v%d' % (W + j, W + j, CN + 2))
            a('v_add_u32 v%d, 0x8000, v%d' % (t, W + j))
            a('v_cvt_f32_i32_sdwa v%d, sext(v%d) dst_sel:DWORD dst_unused:UNUSED_PAD src0_sel:WORD_0' % (W + j, W + j))
            a('v_cvt_f32_i32_sdwa v%d, sext(v%d) dst_sel:DWORD dst_unused:UNUSED_PAD src0_sel:WORD_1' % (t, t))
            a('v_cvt_pk_bf16_f32 v%d, v%d, v%d' % (W + j, W + j, t))
        a('s_mov_b64 exec, -1')
        if q == 0:
            a.wait_ds(mk[q, 8])

    def e_mfma(q):
        W, RB = WW[q & 1], RBB[q & 1]
        a('v_mfma_f32_32x32x16_f16 %s, %s, %s, 0' % (vr(GATE, 16), vr(AR, 4), vr(RB, 4)))
        a('v_mfma_f32_32x32x16_bf16 %s, %s, %s, 0' % (vr(MD, 16), vr(AU, 4), vr(W, 4)))
        a('v_mfma_f32_32x32x16_bf16 %s, %s, %s, %s' % (vr(MD, 16), vr(AU + 4, 4), vr(W + 4, 4), vr(MD, 16)))

    def e_out(q):
        a('s_mov_b32 s%d, %d' % (sT, q * 16384))
        for j in range(8):
            m = MQ + 8 * q + j
            ta, tb = (T1, T2) if j & 1 else (T3, T4)
            a('v_lshlrev_b32 v%d, 16, v%d' % (ta, m))
            a('v_and_b32 v%d, s%d, v%d' % (tb, sHI, m))
            a('v_fmac_f32 v%d, v%d, v%d' % (ta, MD + 2 * j, GATE + 2 * j))
            a('v_fmac_f32 v%d, v%d, v%d' % (tb, MD + 2 * j + 1, GATE + 2 * j + 1))
            a('v_cvt_pk_bf16_f32 v%d, v%d, v%d' % (m, ta, tb))
            if j == 3:
                a('buffer_store_dwordx4 %s, v%d, %s, s%d offen %s' % (vr(MQ + 8 * q, 4), OA, sr(S_OUT, 4), sT, P['stout']))
        a('buffer_store_dwordx4 %s, v%d, %s, s%d offen offset:1024 %s' % (vr(MQ + 8 * q + 4, 4), OA, sr(S_OUT, 4), sT, P['stout']))

    e_read(0)
    e_read(1)
    e_decode(0)
    for q in range(NQ - 1):
        e_mfma(q)
        if q + 1 < NQ - 1:
            e_decode(q + 1)
        if q + 2 < NQ:
            e_read(q + 2)
        e_out(q)
    a('s_cmp_lg_u32 s%d, 0' % sW)
    a('s_cbranch_scc1 Lk2_e6')
    e_decode(NQ - 1)
    e_mfma(NQ - 1)
    e_out(NQ - 1)
    a('Lk2_e6:')
    stamp(9, True)
    if P['stamp']:
        a('s_waitcnt vmcnt(0)')
        stamp(10, True)
    if P['abl']:
        a('s_branch Lk2_end')
    a('s_cmp_lg_u32 s%d, 0' % sPASS)
    a('s_cbranch_scc1 Lk2_end')
    a('s_or_b64 %s, %s, %s' % (sr(sMK, 2), sr(sFL, 2), sr(sFL + 2, 2)))
    for q in range(2, NQ):
        a('s_or_b64 %s, %s, %s' % (sr(sMK, 2), sr(sMK, 2), sr(sFL + 2 * q, 2)))
    a('s_cselect_b32 s%d, 1, %d' % (sT, P['force_slow'] & 3))
    a('v_cmp_gt_i32 vcc, 0, v%d' % STK)
    a('s_cmp_lg_u64 vcc, 0')
    a('s_cselect_b32 s%d, 3, s%d' % (sT, sT))
    a('v_mov_b32 v2, s%d' % sT)
    a('s_lshl_b32 s%d, s%d, 2' % (sT, sW))
    a('s_add_u32 s%d, s%d, %d' % (sT, sT, SCR))
    a('v_mov_b32 v3, s%d' % sT)
    a('ds_write_b32 v3, v2')
    a('v_and_b32 v2, 7, v0')
    a('v_lshlrev_b32 v2, 2, v2')
    a('v_add_u32 v2, %d, v2' % SCR)
    a('s_waitcnt lgkmcnt(0)')
    a('s_barrier')
    a('ds_read_b32 v3, v2')
    a('s_waitcnt lgkmcnt(0)')
    a('v_cmp_ne_u32 vcc, 0, v3')
    a('s_cmp_eq_u64 vcc, 0')
    a('s_cbranch_scc1 Lk2_end')
    a('v_cmp_lt_u32 vcc, 1, v3')
    a('s_cmp_lg_u64 vcc, 0')
    a('Lk2_all:')
    for q in range(NQ):
        a('s_cselect_b64 %s, -1, %s' % (sr(sSK + 2 * q, 2), sr(sFL + 2 * q, 2)))
    a('s_and_b64 %s, %s, %s' % (sr(sSK + 2 * NQ - 2, 2), sr(sSK + 2 * NQ - 2, 2), sr(sV6, 2)))
    a('s_waitcnt vmcnt(0)')
    VD, VE, REC, ADDR, F12 = 4, 8, 12, 16, 17
    desc_load(VD, 18)
    a('v_lshlrev_b32 v%d, 2, v0' % A4)
    a('v_add_u32 v%d, %d, v%d' % (A4B, HI0, A4))
    a('v_mov_b32 v2, 0')
    a('v_mov_b32 v3, -1')
    for q in range(NQ):
        a('s_mov_b64 exec, %s' % sr(sSK + 2 * q, 2))
        a('ds_write_b32 v%d, v3 offset:%d' % (A4B, 3 * PL + 2048 * q))
        for j in range(8):
            b, o = plane(j)
            a('ds_write_b32 v%d, v2 offset:%d' % (b, o + 2048 * q))
        a('s_mov_b64 exec, -1')
        a('s_waitcnt lgkmcnt(0)')
    a('s_barrier')
    a('s_movk_i32 s%d, %d' % (sT, REC0 // 12))
    a('v_mov_b32 v%d, %d' % (F12, TSP))
    a('v_mad_u32_u24 v%d, v0, v%d, s%d' % (F12, F12, sT))
    a('s_waitcnt vmcnt(0)')
    for k in range(4):
        a('v_add_u32 v%d, 0x10000, v%d' % (VE + k, VD + k))
        a('v_and_b32 v%d, 0xffff, v%d' % (VD + k, VD + k))
        a('v_lshrrev_b32 v%d, 17, v%d' % (VE + k, VE + k))
    scan4(VE)
    for k in range(4):
        if k:
            a('v_add_u32 v%d, s%d, v%d' % (VE + k, sNT, VE + k))
        a('v_add_u32 v%d, v%d, v%d' % (VD + k, VD + k, F12))
        a('v_readlane_b32 s%d, v%d, 63' % (sNT, VE + k))
        a('v_sub_u32 v%d, v%d, v%d' % (VD + k, VD + k, VE + k))
        a('v_mul_lo_u32 v%d, v%d, 12' % (VD + k, VD + k))
    a('v_mul_u32_u24 v%d, 12, v%d' % (F12, LANE))
    a('s_mov_b32 s%d, 0' % sF)
    a('s_mov_b32 s%d, 0' % sE)
    a('s_mov_b32 s%d, 0' % sDL)
    a('s_movk_i32 s%d, -64' % sI)
    a('Lk2_sl:')
    a('s_cmp_ge_u32 s%d, s%d' % (sF, sNT))
    a('s_cbranch_scc1 Lk2_sd')
    a('v_add_u32 v%d, s%d, v%d' % (ADDR, sDL, F12))
    a('s_sub_u32 s%d, s%d, s%d' % (sP, sE, sF))
    a('s_cmp_ge_u32 s%d, 64' % sP)
    a('s_cbranch_scc1 Lfd')
    a('Lfl:')
    a('v_readlane_b32 s%d, v%d, s%d' % (sDL, VD, sI))
    a('v_readlane_b32 s%d, v%d, s%d' % (sE, VE, sI))
    a('s_add_u32 s%d, s%d, 1' % (sI, sI))
    a('s_cbranch_scc0 Lfc')
    a('s_mov_b64 exec, -1')
    for k in range(3):
        a('v_mov_b32 v%d, v%d' % (VE + k, VE + k + 1))
        a('v_mov_b32 v%d, v%d' % (VD + k, VD + k + 1))
    a('v_mov_b32 v%d, -1' % (VE + 3))
    a('v_bfrev_b32 v%d, 1' % (VD + 3))
    a('s_movk_i32 s%d, -64' % sI)
    a('Lfc:')
    a('s_lshl_b64 exec, -1, s%d' % sP)
    a('v_add_u32 v%d, s%d, v%d' % (ADDR, sDL, F12))
    a('s_sub_u32 s%d, s%d, s%d' % (sP, sE, sF))
    a('s_cmp_lt_u32 s%d, 64' % sP)
    a('s_cbranch_scc1 Lfl')
    a('s_mov_b64 exec, -1')
    a('Lfd:')
    a('s_add_u32 s%d, s%d, 64' % (sF, sF))
    a('v_add_u32 v%d, 768, v%d' % (F12, F12))
    a('buffer_load_dwordx3 %s, v%d, %s, 0 offen' % (vr(REC, 3), ADDR, sr(S_WS, 4)))
    a('s_mov_b32 s%d, 0' % sSUB)
    a('s_waitcnt vmcnt(0)')
    a('Lk2_s2:')
    a('v_cmp_gt_i32 %s, 0, v%d' % (sr(sMK, 2), REC + 1))
    a('v_ashrrev_i32 v%d, 31, v%d' % (TM, REC + 1))
    a('v_and_b32 v%d, v%d, v%d' % (REC, REC, TM))
    a('v_and_b32 v%d, s%d, v%d' % (IA, sIDM, REC))
    a('v_and_b32 v%d, s%d, v%d' % (IB, sIDM, REC))
    a('v_lshrrev_b32 v%d, 16, v%d' % (A16[0], REC))
    a('v_and_b32 v%d, s%d, v%d' % (A16[0], sA16, A16[0]))
    a('v_and_b32 v%d, s%d, v%d' % (ANG[0], sHI, REC + 1))
    a('v_permlane32_swap_b32 v%d, v%d' % (IA, IB))
    addrs(0)
    a('ds_read_b32 v%d, v%d offset:%d' % (CV, A4B, 3 * PL))
    a('ds_read_b128 %s, v%d offset:%d' % (vr(RBF, 4), A16[0], RBF0))
    a('s_waitcnt lgkmcnt(0)')
    a('v_cmp_gt_i32 vcc, 0, v%d' % CV)
    a('s_and_b64 %s, %s, vcc' % (sr(sMK, 2), sr(sMK, 2)))
    a('s_cbranch_scc0 Lk2_s3')
    gathers(0)
    cosines(0)
    for l in range(3):
        sbf(l)
        gmf(l)
    a('s_waitcnt vmcnt(0)')
    mdown(0)
    for d in range(16):
        a('v_mul_f32 v%d, 0x47800000, v%d' % (GATE + d, GATE + d))
        a('v_mul_f32 v%d, v%d, v%d' % (MD + d, MD + d, GATE + d))
    a('s_mov_b64 exec, %s' % sr(sMK, 2))
    for j in range(8):
        a('v_cvt_pk_bf16_f32 v%d, v%d, v%d' % (MD + 2 * j, MD + 2 * j, MD + 2 * j + 1))
        b, o = plane(j)
        a('ds_pk_add_bf16 v%d, v%d offset:%d' % (b, MD + 2 * j, o))
    a('s_mov_b64 exec, -1')
    a('Lk2_s3:')
    a('v_mov_b32 v%d, v%d' % (REC, REC + 2))
    a('v_lshlrev_b32 v%d, 16, v%d' % (REC + 1, REC + 1))
    a('s_xor_b32 s%d, s%d, 1' % (sSUB, sSUB))
    a('s_cbranch_scc1 Lk2_s2')
    a('s_branch Lk2_sl')
    a.fence()
    a('Lk2_sd:')
    a('s_mov_b32 s%d, 1' % sPASS)
    epi_loads()
    a('s_waitcnt vmcnt(0)')
    a('s_branch Lk2_epi')
    a.fence()
    a('Lk2_fb:')
    a('s_mov_b32 s%d, 1' % sMODE)
    dist_loads()
    img_load(0, 5, AG, RA)
    a('s_waitcnt vmcnt(0)')
    for q in range(NQ):
        rbf_batch(q)
    a('s_branch Lk2_init')
    a.fence()
    if '1' in P['wpos']:
        a('Lk2_wl:')
        a('buffer_load_dword v2, v155, %s, s91 offen' % sr(S_MR, 4))
        a('s_add_u32 s90, s90, %d' % (3 * P['mw2']))
        a('s_add_u32 s91, s91, %d' % (51200 * 128))
        a('s_cmp_ge_u32 s91, %d' % (4 * 51200 * 128))
        a('s_cselect_b32 s90, -1, s90')
        a('s_branch Lk2_wc')
        a.fence()
    a('Lk2_el:')
    epi_loads()
    a('s_branch Lk2_lc')
    a.fence()
    a('Lk2_end:')
    a('s_endpgm')
    a.fence()
    return LDS
```

```python
import sys, math, struct
from asmlib import Asm

NAME = 'gather_scatter__molecular_angular_gemnet__graph'
E, T = 800000, 12800000
BINE = 3125
TS = 158976
TSP = TS // 12
REC0 = 12288
DESC0 = 0x4F00000
PREP0 = 0x5200000
WS_BYTES = 268435456

P = dict(ld1='nt', st1='', ldrec='', stout='nt', target=180.0, theta=64, bar=16, stamp=0, force_slow=0, abl=0, idm=0xfffff, goff=0, fr=9, na=2, bhd=0, sch='.L.L.L.L.LP.P.P.P', early=1, stag=1, stb_=1, mw1=1, mw2=8, k1w=0, k1p=1, imgl=1, pfn=0, ppos='uz', sta='sc1', stb='', nfull=10, wpos='kosw', lead=9, lead0=6, npipe=13, hp=4, scw=7, trg=1, prio=0, cpf=1, dv=4, warm=1, mbar=1, sdwa=1, npre=2, only1=0, stw=0, k2x=0, rd2=1, l2x=0, recm=0, ldg='')
for a in sys.argv[2:]:
    k, v = a.split('=')
    P[k] = type(P[k])(v.replace('+',' ')) if not isinstance(P[k], int) else int(v, 0)


def f2u(x):
    return struct.unpack('<I', struct.pack('<f', x))[0]


def vr(a, n):
    return 'v[%d:%d]' % (a, a + n - 1)


def sr(a, n):
    return 's[%d:%d]' % (a, a + n - 1)


def srd(a, d, ptr, nbytes, off=None, stride=0):
    if off is None:
        a('s_mov_b32 s%d, s%d' % (d, ptr))
        a('s_mov_b32 s%d, s%d' % (d + 1, ptr + 1))
    else:
        a('s_add_u32 s%d, s%d, %s' % (d, ptr, off))
        a('s_addc_u32 s%d, s%d, 0' % (d + 1, ptr + 1))
    if stride:
        a('s_or_b32 s%d, s%d, 0x%x' % (d + 1, d + 1, stride << 16))
    a('s_mov_b32 s%d, %d' % (d + 2, nbytes))
    a('s_mov_b32 s%d, 0x20000' % (d + 3))


def scan64(a, v, op='v_add_u32'):
    for c in ('row_shr:1', 'row_shr:2', 'row_shr:4', 'row_shr:8'):
        a('%s_dpp v%d, v%d, v%d %s row_mask:0xf bank_mask:0xf' % (op, v, v, v, c))
    a('%s_dpp v%d, v%d, v%d row_bcast:15 row_mask:0xa bank_mask:0xf' % (op, v, v, v))
    a('%s_dpp v%d, v%d, v%d row_bcast:31 row_mask:0xc bank_mask:0xf' % (op, v, v, v))


def code_prefetch(a, tag, st, vt, nwg=16):
    a('s_cmp_ge_u32 s2, %d' % nwg)
    a('s_cbranch_scc1 Lcpf%s' % tag)
    a('s_getpc_b64 %s' % sr(st, 2))
    a('Lcpb%s:' % tag)
    a('v_lshlrev_b32 v%d, 7, v0' % vt)
    a('v_mov_b32 v%d, 0' % (vt + 1))
    a('v_cmp_gt_u32 vcc, Lk2_end-Lcpb%s, v%d' % (tag, vt))
    a('v_lshl_add_u64 %s, %s, 0, %s' % (vr(vt, 2), vr(vt, 2), sr(st, 2)))
    a('s_and_b64 exec, exec, vcc')
    a('s_cbranch_execz Lcpe%s' % tag)
    a.nocount = True
    a('global_load_dword v%d, %s, off' % (vt, vr(vt, 2)))
    a.nocount = False
    a('Lcpe%s:' % tag)
    a('s_mov_b64 exec, -1')
    a('Lcpf%s:' % tag)


STAMP0 = 0x6000000


def stamp_init(a, sdbg, wsptr, kern, sw):
    if not P['stamp']:
        return
    a('s_lshl_b32 s100, s2, 7')
    a('s_add_u32 s100, s100, %d' % (STAMP0 + kern * 32768))
    srd(a, sdbg, wsptr, 128, 's100')
    stamp.sel = sw


def stamp(a, idx, sdbg, tmp_s, tmp_v, tmp_w=None):
    tmp_w = tmp_w or tmp_v + 1
    if not P['stamp']:
        return
    lab = 'Lst%d' % stamp.n
    stamp.n += 1
    a.nocount = True
    a('s_cmp_lg_u32 s%d, %d' % (stamp.sel, P['stw']))
    a('s_cbranch_scc1 %s' % lab)
    a('s_memrealtime %s' % sr(tmp_s, 2))
    a('s_waitcnt lgkmcnt(0)')
    a('v_mov_b32 v%d, s%d' % (tmp_v, tmp_s))
    a('v_mov_b32 v%d, %d' % (tmp_w, idx * 4))
    a('buffer_store_dword v%d, v%d, %s, 0 offen' % (tmp_v, tmp_w, sr(sdbg, 4)))
    a('s_memtime %s' % sr(tmp_s, 2))
    a('s_waitcnt lgkmcnt(0)')
    a('v_mov_b32 v%d, s%d' % (tmp_v, tmp_s))
    a('buffer_store_dword v%d, v%d, %s, 0 offen offset:64' % (tmp_v, tmp_w, sr(sdbg, 4)))
    a(lab + ':')
    a.nocount = False


stamp.n = 0
stamp.sel = 0


def k1(a):
    CNTB, SCR, CNTA = 0, 4096, 4224
    DATB, DATA = 4224, 8320
    S_IN, S_OUT, S_ANG, S_REC, S_DSC, S_T0, S_DBG = 24, 28, 32, 36, 40, 44, 92
    S_REC2 = 80
    sMB, sMC, sNEG, sHI, sT, sW = 64, 65, 66, 67, 68, 69
    sREM = 70
    sBASE, sPREP, sVB, sUM = 72, 73, 74, 75
    O16, O8, ONE, SIX = 1, 2, 3, 12
    TP = 4
    TS_ = 22
    ANG = 14
    ANGR = 13
    INA, OUTA, INB, OUTB, INR, OUTR = 28, 52, 76, 100, 124, 125
    ld = P['ld1']
    st = P['st1']

    a('s_cmp_ge_u32 s2, 256')
    a('s_cbranch_scc1 Lk1_end')
    a('s_load_dwordx4 s[4:7], s[0:1], 8')
    a('s_load_dwordx2 s[8:9], s[0:1], 32')
    a('s_load_dwordx4 s[76:79], s[0:1], 96')
    a('s_load_dwordx2 s[12:13], s[0:1], 0')
    a('s_load_dwordx8 s[16:23], s[0:1], 56')
    if P['cpf'] & 1:
        code_prefetch(a, 'a', 84, 124)
    a('v_lshlrev_b32 v%d, 4, v0' % O16)
    a('v_lshlrev_b32 v%d, 3, v0' % O8)
    a('v_mov_b32 v%d, 1' % ONE)
    a('v_mov_b32 v%d, 6' % SIX)
    a('v_lshrrev_b32 v4, 6, v0')
    a('v_readfirstlane_b32 s%d, v4' % sW)
    a('v_mov_b32 v4, 0')
    a('v_lshlrev_b32 v5, 2, v0')
    a('ds_write_b32 v5, v4 offset:%d' % CNTB)
    a('ds_write_b32 v5, v4 offset:%d' % CNTA)
    a('s_mov_b32 s%d, %d' % (sMB, -(-2**32 // BINE)))
    a('s_mov_b32 s%d, 21400' % sMC)
    a('s_mov_b32 s%d, %d' % (sNEG, -BINE))
    a('s_mov_b32 s%d, 0xffff0000' % sHI)
    a('s_mov_b32 s%d, 0x80008000' % sVB)
    a('s_mov_b32 s%d, 0xff000' % sUM)
    a('s_mul_i32 s14, s2, 3125')
    a('s_add_u32 s15, s14, 3125')
    a('s_lshr_b32 s14, s14, 2')
    a('s_lshr_b32 s15, s15, 2')
    a('s_sub_u32 s3, s15, s14')
    a('s_lshl_b32 s15, s14, 7')
    a('s_lshl_b32 s14, s14, 8')
    a('s_sub_u32 s%d, s3, 768' % sT)
    a('s_lshl_b32 s%d, s%d, 6' % (sT, sT))
    a('v_cmp_gt_u32 %s, s%d, v0' % (sr(sREM, 2), sT))
    a('v_and_b32 v13, 63, v0')
    a('v_lshlrev_b32 v27, 4, v13')
    a('s_lshl_b32 s%d, s2, 4' % sPREP)
    a('s_or_b32 s%d, s%d, s%d' % (sPREP, sPREP, sW))
    a('s_waitcnt lgkmcnt(0)')
    srd(a, S_IN, 4, 0, 's14')
    srd(a, S_OUT, 6, 0, 's14')
    srd(a, S_ANG, 8, 0, 's15')
    a('s_lshl_b32 s%d, s3, 8' % (S_IN + 2))
    a('s_lshl_b32 s%d, s3, 8' % (S_OUT + 2))
    a('s_lshl_b32 s%d, s3, 7' % (S_ANG + 2))
    stamp_init(a, S_DBG, 78, 0, sW)
    stamp(a, 0, S_DBG, 96, 126)
    a('s_cmp_lg_u32 s%d, 0' % sPREP)
    a('s_cbranch_scc1 Lk1_main')
    a.nocount = True
    srd(a, S_T0, 18, 768)
    srd(a, S_T0 + 4, 20, 512)
    srd(a, S_T0 + 8, 22, 512)
    srd(a, S_T0 + 12, 16, 256)
    srd(a, S_T0 + 16, 12, E * 32)
    for i in range(4):
        a('buffer_load_dwordx4 %s, v27, %s, 0 offen' % (vr(76 + 4 * i, 4), sr(S_T0 + 4 * i, 4)))
    a('v_mul_u32_u24 v4, 99984, v13')
    for i in range(4):
        a('s_mov_b32 s%d, %d' % (sT, i * 64 * 99984))
        a('buffer_load_dwordx4 %s, v4, %s, s%d offen' % (vr(92 + 4 * i, 4), sr(S_T0 + 16, 4), sT))
    a.nocount = False
    a('Lk1_main:')
    a('s_lshl_b32 s14, s2, 1')
    a('s_mul_i32 s15, s14, %d' % TS)
    a('s_add_u32 s15, s15, %d' % REC0)
    srd(a, S_REC, 78, 0, 's15')
    a('s_add_u32 s15, s15, %d' % TS)
    srd(a, S_REC2, 78, 0, 's15')
    a('s_lshl_b32 s15, s14, 12')
    a('s_add_u32 s15, s15, %d' % DESC0)
    srd(a, S_DSC, 78, 8192, 's15')

    marks = {}

    def regs(j):
        return ((INA, OUTA) if j < 6 else (INB, OUTB)), 4 * (j % 6), (ANG + 2 * (j % 4) if j < 10 else (INA, OUTA)[j - 10])

    def loads(j):
        if j == 12:
            a('v_lshlrev_b32 v10, 2, v0')
            a('v_lshlrev_b32 v11, 1, v0')
            a('s_mov_b32 s%d, %d' % (sT, 12 * 16384))
            a('buffer_load_dword v%d, v10, %s, s%d offen %s' % (OUTR, sr(S_OUT, 4), sT, ld))
            a('buffer_load_dword v%d, v10, %s, s%d offen %s' % (INR, sr(S_IN, 4), sT, ld))
            a('s_mov_b32 s%d, %d' % (sT, 12 * 8192))
            a('buffer_load_ushort v%d, v11, %s, s%d offen %s' % (ANGR, sr(S_ANG, 4), sT, ld))
        else:
            (rin, rout), o, rang = regs(j)
            a('s_mov_b32 s%d, %d' % (sT, j * 16384))
            a('buffer_load_dwordx4 %s, v%d, %s, s%d offen %s' % (vr(rout + o, 4), O16, sr(S_OUT, 4), sT, ld))
            a('buffer_load_dwordx4 %s, v%d, %s, s%d offen %s' % (vr(rin + o, 4), O16, sr(S_IN, 4), sT, ld))
            a('s_mov_b32 s%d, %d' % (sT, j * 8192))
            a('buffer_load_dwordx2 %s, v%d, %s, s%d offen %s' % (vr(rang, 2), O8, sr(S_ANG, 4), sT, ld))
        marks[j] = a.mark()

    def pack2(items, rg, cnt):
        a('v_or_b32 v%d, s%d, v%d' % (rg, sVB, rg))
        for e, (ri, ro) in enumerate(items):
            a('v_mul_hi_u32_u24 v%d, s%d, v%d' % (TP + e, sMB, ro))
            a('v_and_b32 v%d, s%d, v%d' % (TP + 2 + e, sUM, ri))
        for e, (ri, ro) in enumerate(items):
            a('v_mul_hi_u32_u24 v%d, s%d, v%d' % (TP + 2 + e, sMC, TP + 2 + e))
            a('v_mad_i32_i24 v%d, v%d, s%d, v%d' % (ro, TP + e, sNEG, ro))
        for e, (ri, ro) in enumerate(items):
            a('v_lshl_add_u32 v%d, v%d, 8, v%d' % (TP + e, TP + 2 + e, TP + e))
            a('v_lshl_or_b32 v%d, v%d, 20, v%d' % (ri, ro, ri))
        for e, (ri, ro) in enumerate(items):
            a('v_lshlrev_b32 v%d, 2, v%d' % (TP + e, TP + e))
        for e, (ri, ro) in enumerate(items):
            a('ds_add_u32 v%d, v%d offset:%d' % (TP + e, ONE, cnt))
            if e:
                a('v_and_or_b32 v%d, v%d, s%d, v%d' % (ro, rg, sHI, TP + e))
            else:
                a('v_lshl_or_b32 v%d, v%d, 16, v%d' % (ro, rg, TP + e))

    def pack(j):
        a.wait_vm(marks[j])
        if j == 12:
            a('s_mov_b64 exec, %s' % sr(sREM, 2))
            pack2([(INR, OUTR)], ANGR, CNTB)
            a('s_mov_b64 exec, -1')
            return
        (rin, rout), o, rang = regs(j)
        for h in range(2):
            pack2([(rin + o + 2 * h + e, rout + o + 2 * h + e) for e in range(2)], rang + h, CNTA if j < 6 else CNTB)

    def scan(sub, cnt, data, srec, mid1=None, mid2=None):
        a('v_lshlrev_b32 v10, 2, v0')
        a('s_waitcnt lgkmcnt(0)')
        a('s_barrier')
        a('ds_read_b32 v4, v10 offset:%d' % cnt)
        m = a.mark()
        if mid1:
            mid1()
        a('s_lshl_b32 s%d, s%d, 2' % (sT, sW))
        a('v_mov_b32 v8, s%d' % sT)
        a('v_and_b32 v9, 60, v10')
        a.wait_ds(m)
        a('v_add_u32 v6, 1, v4')
        a('v_lshrrev_b32 v6, 1, v6')
        a('v_mov_b32 v7, v6')
        scan64(a, 7)
        a('s_mov_b32 exec_lo, 0')
        a('s_mov_b32 exec_hi, 0x80000000')
        a('ds_write_b32 v8, v7 offset:%d' % SCR)
        a('s_mov_b64 exec, -1')
        a('s_waitcnt lgkmcnt(0)')
        a('s_barrier')
        a('ds_read_b32 v11, v9 offset:%d' % SCR)
        m = a.mark()
        if mid2:
            mid2()
        a('v_and_b32 v8, 255, v0')
        a('v_lshrrev_b32 v9, 8, v0')
        a('v_lshlrev_b32 v9, 2, v9')
        a('v_lshl_add_u32 v9, v8, 4, v9')
        a.wait_ds(m)
        a('v_mov_b32 v5, v11')
        for c in ('row_shr:1', 'row_shr:2', 'row_shr:4', 'row_shr:8'):
            a('v_add_u32_dpp v11, v11, v11 %s row_mask:0xf bank_mask:0xf' % c)
        a('v_sub_u32 v5, v11, v5')
        a('v_readlane_b32 s%d, v11, 15' % sT)
        a('v_readlane_b32 s%d, v5, s%d' % (sBASE, sW))
        a('s_mul_i32 s%d, s%d, 12' % (srec + 2, sT))
        a('v_add_u32 v7, s%d, v7' % sBASE)
        a('v_sub_u32 v6, v7, v6')
        a('s_movk_i32 s%d, %d' % (sT, data))
        a('v_mad_u32_u24 v6, v6, 12, s%d' % sT)
        a('ds_write_b32 v10, v6 offset:%d' % cnt)
        a('v_lshl_or_b32 v5, v4, 16, v7')
        a('v_mul_u32_u24 v7, 12, v7')
        a('v_mov_b32 v6, 0')
        a('v_and_b32 v4, 1, v4')
        a('s_and_b32 s%d, s2, 7' % sT)
        a('s_lshl1_add_u32 s%d, s%d, %d' % (sT, sT, 3136 + sub))
        a('v_lshrrev_b32 v8, 8, v0')
        a('v_lshl_add_u32 v8, v8, 4, s%d' % sT)
        a('v_lshlrev_b32 v8, 8, v8')
        a('v_cmpx_eq_u32 vcc, 1, v4')
        a('ds_write_b16 v7, v6 offset:%d' % (data - 8))
        a('ds_write_b32 v7, v8 offset:%d' % (data - 4))
        a('s_mov_b64 exec, -1')
        a('s_movk_i32 s%d, %d' % (sT, sub * 4096))
        a('buffer_store_dword v5, v9, %s, s%d offen %s' % (sr(S_DSC, 4), sT, st))
        a('s_waitcnt lgkmcnt(0)')
        a('s_barrier')

    def rtn(t, ro, cnt):
        a('v_and_b32 v%d, 0xffff, v%d' % (t, ro))
        a('ds_add_rtn_u32 v%d, v%d, v%d offset:%d' % (t, t, SIX, cnt))

    def put(t, ri, ro, e):
        u = 8 + (e & 1)
        a('v_and_b32 v%d, 2, v%d' % (u, t))
        a('v_add_u32 v%d, v%d, v%d' % (t, t, u))
        a('v_mad_i32_i24 v%d, v%d, -5, v%d' % (u, u, t))
        a('ds_write_b32 v%d, v%d' % (t, ri))
        a('ds_write_b16_d16_hi v%d, v%d offset:6' % (u, ro))

    def scatter(rin, rout, cnt, rem, between):
        G = 3
        ng = 24 // G
        mk = {}
        if rem:
            a('s_mov_b64 exec, %s' % sr(sREM, 2))
            rtn(10, OUTR, cnt)
            a('s_mov_b64 exec, -1')
        for e in range(G):
            rtn(TS_ + e, rout + e, cnt)
        mk[0] = a.mark()
        for g in range(ng):
            cur, nxt = TS_ + (g & 1) * G, TS_ + ((g + 1) & 1) * G
            if g + 1 < ng:
                for e in range(G):
                    rtn(nxt + e, rout + (g + 1) * G + e, cnt)
                mk[g + 1] = a.mark()
            a.wait_ds(mk[g])
            for e in range(G):
                put(cur + e, rin + g * G + e, rout + g * G + e, e)
            if rem and g == 0:
                a('s_mov_b64 exec, %s' % sr(sREM, 2))
                put(10, INR, OUTR, 1)
                a('s_mov_b64 exec, -1')
            between(g)

    rd = {}

    def readout(base, data):
        a('v_add_u32 v22, 0x10000, v%d' % O16)
        a('v_add_u32 v23, 0x20000, v%d' % O16)
        for j in range(10):
            b = (O16, 22, 23)[j >> 2]
            a('ds_read_b128 %s, v%d offset:%d' % (vr(base + 4 * j, 4), b, data + (j & 3) * 16384))
            rd[j] = a.mark()

    def store(base, srec, j, wait=False):
        a('s_mov_b32 s%d, %d' % (sT, j * 16384))
        if wait:
            a.wait_ds(rd[j])
        a('buffer_store_dwordx4 %s, v%d, %s, s%d offen %s' % (vr(base + 4 * j, 4), O16, sr(srec, 4), sT, P['sta'] if base == INA else P['stb']))

    loads(0)
    loads(1)
    a('s_cmp_lg_u32 s%d, 0' % sPREP)
    a('s_barrier')
    a('s_cbranch_scc1 Lk1_noprep')
    a.nocount = True
    nds = a.nds
    prep(a, DATA, S_T0)
    a.nds = nds
    a.nocount = False
    a('Lk1_noprep:')
    for j in range(6):
        loads(j + 2)
        pack(j)
    stamp(a, 1, S_DBG, 96, 126)
    scan(0, CNTA, DATA, S_REC)
    stamp(a, 2, S_DBG, 96, 126)

    sched = P['sch'].split('.')
    nl, npk = [8], [6]

    def do(ops):
        for c in ops:
            if c == 'L':
                loads(nl[0])
                nl[0] += 1
            elif c == 'P':
                pack(npk[0])
                npk[0] += 1
            elif c == 'B':
                a('s_barrier')

    do(sched[0])
    scatter(INA, OUTA, CNTA, False, lambda g: do(sched[g + 1]))
    stamp(a, 3, S_DBG, 96, 126)
    do('L' * (13 - nl[0]))
    if P['cpf'] & 4:
        code_prefetch(a, 'c', 84, 126, 8)
    do('P' * (13 - npk[0]))
    stamp(a, 4, S_DBG, 96, 126)
    npre = P['npre']
    scan(1, CNTB, DATB, S_REC2, lambda: readout(INA, DATA), lambda: [store(INA, S_REC, j) for j in range(npre)])
    stamp(a, 5, S_DBG, 96, 126)
    todo = list(range(npre, 10))

    def btw_b(g):
        k = -(-len(todo) // (8 - g))
        for _ in range(k):
            store(INA, S_REC, todo.pop(0))

    scatter(INB, OUTB, CNTB, True, btw_b)
    stamp(a, 6, S_DBG, 96, 126)
    a('s_waitcnt lgkmcnt(0)')
    a('s_barrier')

    def k1warm():
        srd(a, S_T0, 12, P['k1w'] * 51200 * 128 if P['k1w'] < 4 else E * 32)
        a('s_lshl_b32 s%d, s2, 4' % sT)
        a('s_add_u32 s%d, s%d, s%d' % (sT, sT, sW))
        a('s_mul_i32 s%d, s%d, %d' % (sT, sT, 13 * P['k1w']))
        a('v_and_b32 v4, 63, v0')
        a('v_min_u32 v4, %d, v4' % (13 * P['k1w'] - 1))
        a('v_add_lshl_u32 v4, v4, s%d, 7' % sT)
        a('buffer_load_dword v4, v4, %s, 0 offen' % sr(S_T0, 4))

    readout(INB, DATB)
    if P['k1w'] and P['k1p'] == 0:
        k1warm()
    for j in range(10):
        store(INB, S_REC2, j, True)
    if P['k1w'] and P['k1p'] == 1:
        k1warm()
    stamp(a, 7, S_DBG, 96, 126)
    if P['stamp']:
        a('s_waitcnt vmcnt(0)')
        stamp(a, 8, S_DBG, 96, 126)
    a('Lk1_end:')
    a('s_endpgm')
    a.fence()
    return DATB + (25472 + 1024) * 6


def prep(a, PB, S_T0):
    L, O = 13, 27
    sS = 80
    sS = 48
    a('s_waitcnt vmcnt(6)')
    for i in range(4):
        a('ds_write_b128 v%d, %s offset:%d' % (O, vr(76 + 4 * i, 4), PB + 1024 * i))
    a('v_mov_b32 v4, 0')
    for i in range(16):
        a('v_dot2_f32_bf16 v4, v%d, v%d, v4' % (92 + i, 92 + i))
    scan64(a, 4, 'v_add_f32')
    a('v_readlane_b32 s14, v4, 63')
    a('v_bfe_u32 v5, v%d, 3, 2' % L)
    a('v_and_b32 v6, 3, v%d' % L)
    a('v_lshl_or_b32 v5, v5, 2, v6')
    a('v_lshlrev_b32 v5, 1, v5')
    a('v_bfe_u32 v7, v%d, 2, 1' % L)
    a('v_lshrrev_b32 v8, 5, v%d' % L)
    a('s_waitcnt lgkmcnt(0)')
    for k in range(24):
        a('ds_read_u16 v%d, v5 offset:%d' % (76 + k, PB + 32 * k))
        if k % 8 == 7:
            a('s_waitcnt lgkmcnt(0)')
    for k in range(16):
        a('ds_read_u16 v%d, v5 offset:%d' % (100 + k, PB + 1024 + 32 * k))
        if k % 8 == 7:
            a('s_waitcnt lgkmcnt(0)')
    a('v_lshl_add_u32 v9, v8, 8, v5')
    for k in range(8):
        a('ds_read_u16 v%d, v9 offset:%d' % (116 + k, PB + 1024 + 32 * k))
    a('s_waitcnt lgkmcnt(0)')
    for k in range(48):
        a('v_lshlrev_b32 v%d, 16, v%d' % (76 + k, 76 + k))
    a('v_mul_f32 v9, v76, v76')
    for k in range(1, 24):
        a('v_fmac_f32 v9, v%d, v%d' % (76 + k, 76 + k))
    a('v_mul_f32 v10, v100, v100')
    for k in range(1, 16):
        a('v_fmac_f32 v10, v%d, v%d' % (100 + k, 100 + k))
    a('v_log_f32 v9, v9')
    a('v_log_f32 v10, v10')
    a('v_log_f32 v11, s14')
    a('v_add_f32 v10, v10, v9')
    a('v_add_f32 v10, v10, v11')
    c0 = math.log2(P['target']) - 0.5 * math.log2(0.1625 / 2048)
    a('v_mov_b32 v11, 0x%x' % f2u(c0))
    a('v_fmac_f32 v11, -0.5, v10')
    a('v_floor_f32 v11, v11')
    a('v_mul_f32 v9, 0.5, v9')
    a('v_floor_f32 v9, v9')
    a('s_mov_b32 s14, 0x%x' % f2u(40.0))
    a('v_med3_f32 v11, v11, -s14, s14')
    a('v_med3_f32 v9, -v9, -s14, s14')
    a('v_cvt_i32_f32 v11, v11')
    a('v_cvt_i32_f32 v9, v9')
    a('v_sub_u32 v10, v11, v9')
    a('v_subrev_u32 v10, 16, v10')
    for j in range(16):
        a('v_readlane_b32 s%d, v11, %d' % (sS + j, ((j >> 2) << 3) | (j & 3)))
    srd(a, S_T0, 78, 8192, str(PREP0))
    a('v_xor_b32 v4, v7, v8')
    a('v_subrev_u32 v4, 1, v4')
    a('v_subrev_u32 v6, 1, v7')
    a('v_sub_u32 v7, 0, v7')
    for k in range(24):
        a('v_ldexp_f32 v%d, v%d, v9' % (76 + k, 76 + k))
    if P['l2x']:
        for k in range(16):
            a('v_ldexp_f32 v%d, v%d, v10' % (100 + k, 100 + k))
        for jj in range(8):
            a('v_cvt_pk_bf16_f32 v%d, v%d, v%d' % (116 + jj, 100 + 2 * jj, 101 + 2 * jj))
    else:
        for k in range(8):
            a('v_ldexp_f32 v%d, v%d, v10' % (116 + k, 116 + k))
    for l in range(3):
        for jj in range(4):
            a('v_cvt_pk_f16_f32 v%d, v%d, v%d' % (100 + 4 * l + jj, 76 + 6 * jj + l, 76 + 6 * jj + 3 + l))
            a('v_and_b32 v%d, v%d, v4' % (100 + 4 * l + jj, 100 + 4 * l + jj))
        a('buffer_store_dwordx4 %s, v%d, %s, 0 offen offset:%d' % (vr(100 + 4 * l, 4), O, sr(S_T0, 4), 1024 * l))
    if P['l2x']:
        for jj in range(4):
            a('v_and_b32 v%d, v%d, v4' % (112 + jj, 116 + jj))
            a('v_and_b32 v%d, v%d, v4' % (120 + jj, 120 + jj))
    else:
        for jj in range(4):
            a('v_cvt_pk_bf16_f32 v%d, v%d, v%d' % (116 + jj, 116 + 2 * jj, 117 + 2 * jj))
        for jj in range(4):
            a('v_and_b32 v%d, v%d, v6' % (112 + jj, 116 + jj))
            a('v_and_b32 v%d, v%d, v7' % (120 + jj, 116 + jj))
    a('v_add_u32 v11, 4096, v%d' % O)
    a('buffer_store_dwordx4 v[112:115], v%d, %s, 0 offen offset:3072' % (O, sr(S_T0, 4)))
    a('buffer_store_dwordx4 v[120:123], v11, %s, 0 offen' % sr(S_T0, 4))
    a('v_bfe_u32 v5, v%d, 2, 1' % L)
    a('v_bfe_u32 v6, v%d, 3, 1' % L)
    a('v_lshl_or_b32 v5, v5, 1, v6')
    a('v_and_b32 v6, 3, v%d' % L)
    a('v_lshl_or_b32 v5, v5, 2, v6')
    a('v_lshlrev_b32 v5, 1, v5')
    a('v_bfe_u32 v7, v%d, 4, 1' % L)
    a('v_xor_b32 v4, v7, v8')
    a('v_subrev_u32 v4, 1, v4')
    for k in range(16):
        a('ds_read_u16 v%d, v5 offset:%d' % (76 + k, PB + 2048 + 32 * k))
        if k % 8 == 7:
            a('s_waitcnt lgkmcnt(0)')
    for k in range(8):
        a('ds_read_u16 v%d, v5 offset:%d' % (92 + k, PB + 3072 + 32 * k))
    a('s_waitcnt lgkmcnt(0)')
    for k in range(24):
        a('v_lshlrev_b32 v%d, 16, v%d' % (76 + k, 76 + k))
    a('v_mul_f32 v9, v92, v92')
    for k in range(1, 8):
        a('v_fmac_f32 v9, v%d, v%d' % (92 + k, 92 + k))
    a('v_log_f32 v9, v9')
    a('v_mul_f32 v9, 0.5, v9')
    a('v_floor_f32 v9, v9')
    a('v_med3_f32 v9, v9, -s14, s14')
    a('v_cvt_i32_f32 v9, v9')
    a('v_sub_u32 v10, 0, v9')
    for k in range(8):
        a('v_ldexp_f32 v%d, v%d, v10' % (92 + k, 92 + k))
    for k in range(16):
        a('v_subrev_u32 v6, s%d, v9' % (sS + k))
        a('v_ldexp_f32 v%d, v%d, v6' % (76 + k, 76 + k))
    for jj in range(8):
        a('v_cvt_pk_bf16_f32 v%d, v%d, v%d' % (76 + jj, 76 + 2 * jj, 77 + 2 * jj))
        a('v_and_b32 v%d, v%d, v4' % (76 + jj, 76 + jj))
    for jj in range(4):
        a('v_cvt_pk_f16_f32 v%d, v%d, v%d' % (84 + jj, 92 + 2 * jj, 93 + 2 * jj))
        a('v_and_b32 v%d, v%d, v4' % (84 + jj, 84 + jj))
    for i in range(3):
        a('buffer_store_dwordx4 %s, v11, %s, 0 offen offset:%d' % (vr(76 + 4 * i, 4), sr(S_T0, 4), 1024 * (i + 1)))
    a('s_nop 1')


from gen_k2p import k2


def main():
    a = Asm()
    body = Asm()
    out = []
    kernels = []
    for nm, fn in (('bin_kernel', k1), ('acc_kernel', k2)):
        b = Asm()
        if fn is k2:
            lds = fn(b, P, globals())
        else:
            lds = fn(b)
        kernels.append((nm, b, lds))
        if P['only1']:
            break
    hdr = open('cdna_kernels/%s.s.ref' % NAME).read().split('\n')
    hdr = [l for l in hdr if l.startswith(';') and '@launch' not in l and 'Override launch' not in l and 'grid=ceil' not in l]
    out += hdr
    for nm, b, lds in kernels:
        out.append('; @launch kernel=%s grid=(256,1,1) block=(%d,1,1) lds=%d' % (nm, 1024 if nm[0] == 'b' else 512, lds))
    if P['k2x']:
        out.append(out[-1])
    out.append('.amdgcn_target "amdgcn-amd-amdhsa--gfx950"')
    out.append('.text')
    for nm, b, lds in kernels:
        out.append('.globl %s\n.p2align 8\n.type %s,@function\n%s:' % (nm, nm, nm))
        out.append(b.text())
    out.append('.section .rodata,"a"')
    for nm, b, lds in kernels:
        out.append('''.p2align 6
.amdhsa_kernel %s
  .amdhsa_next_free_vgpr %d
  .amdhsa_next_free_sgpr 102
  .amdhsa_accum_offset %d
  .amdhsa_group_segment_fixed_size 0
  .amdhsa_kernarg_size 112
  .amdhsa_user_sgpr_count 2
  .amdhsa_user_sgpr_kernarg_segment_ptr 1
  .amdhsa_system_sgpr_workgroup_id_x 1
.end_amdhsa_kernel''' % (nm, 128 if nm[0] == 'b' else 256, 128 if nm[0] == 'b' else 256))
    open(sys.argv[1], 'w').write('\n'.join(out) + '\n')


main()
```

```python
import math


def k2(a, P, G, hk):
    vr, sr, srd, f2u = G['vr'], G['sr'], G['srd'], G['f2u']
    E, BINE, TS, TSP = G['E'], G['BINE'], G['TS'], G['TSP']
    REC0, DESC0, PREP0, WS_BYTES = G['REC0'], G['DESC0'], G['PREP0'], G['WS_BYTES']
    PL = BINE * 4
    RBF0 = 5 * PL + 12
    HI0 = RBF0 + BINE * 16
    SCR = HI0 + 4 * PL
    LDS = SCR + 128
    KC0, TB0, BB0, SC0, RING0 = 0, 12800, 21504, 25600, 25856
    NSL = 15
    NBLK = 51
    NQ = 7
    S_M, S_MR, S_WS, S_DIST, S_MO, S_OUT, S_DBG = 16, 20, 24, 28, 32, 36, 92
    sCEN = 40
    sW, sBIN, sT, sT2 = 48, 49, 50, 51
    sM0, sM1, sIDM, sHI, sA16 = 52, 53, 54, 55, 56
    sPASS, sMODE, sIX = 57, 58, 59
    sV6 = 60
    sMK = 62
    sFL, sSK = 64, 78
    sPc = 64
    sR, sTB, sRB, sRE, sPS = 69, 70, 71, 72, 73
    sLO = 74
    sMA = 84
    sLM = 84
    sEND = 88
    sEW = 80
    sF, sE, sDL, sI, sP, sNT, sSUB = 4, 5, 6, 7, 8, 9, 10
    LANE, S0 = 1, 2
    AG, AM, GATE, MD = 164, 176, 184, 200
    GB = (156, 216)
    SBF, RBF = 224, 232
    IA, IB = 236, 238
    A16, ANG = (240, 241), (242, 243)
    A4, A4B, CV = 244, 245, 246
    RTN = (247, 248)
    STK, CK, TM = 249, 250, 251
    RAW = 156
    RT, RA = 216, 232
    NA = P['na']
    TAR = (240, 241, 242, 243, 236, 238)
    TF = (244, 245)
    TH, VM, ONE, EIGHT, L12, RBA, WD, WA = 246, 248, 249, 250, 251, 252, 253, 254
    lab = [0]
    HO = 'sc1' if hk else P['ldrec']
    VZ, VP, VT = 6, 7, 8
    NS0 = 6

    def spin(load, notready, m):
        n = lab[0]
        lab[0] += 1
        a('s_mov_b32 s%d, 0x40000' % sT2)
        a.wait_vm(m)
        a('Lpl%d:' % n)
        notready()
        a('s_cbranch_execz Lpd%d' % n)
        a('s_sleep %d' % P['slp'])
        a.nocount = True
        load()
        a.nocount = False
        a('s_sub_u32 s%d, s%d, 1' % (sT2, sT2))
        a('s_waitcnt vmcnt(0)')
        a('s_cbranch_scc0 Lpl%d' % n)
        a('Lpd%d:' % n)
        a('s_mov_b64 exec, -1')
        a('s_nop 3')

    def cleared_load():
        a('global_load_dword v%d, v%d, s[12:13] sc1' % (VP, VZ))
        return a.mark()

    def done_load():
        a('global_load_dword v%d, v%d, s[14:15] sc1' % (VP, VZ))
        return a.mark()

    def done_addr():
        a('s_and_b32 s%d, s2, 7' % sT)
        a('s_lshl3_add_u32 s%d, s%d, s%d' % (sT, sT, sW))
        a('s_lshl_b32 s%d, s%d, 7' % (sT, sT))
        a('s_add_u32 s%d, s%d, %d' % (sT, sT, G['FLG0']))
        a('v_and_b32 v%d, 31, v0' % VZ)
        a('v_lshl_add_u32 v%d, v%d, 2, s%d' % (VZ, VZ, sT))

    def done_wait(m):
        spin(done_load, lambda: a('v_cmpx_ne_u32 vcc, 1, v%d' % VP), m)

    def stamp(i, late=False):
        G['stamp'](a, i, S_DBG, 96, *((155, 254) if late else (235, 234)))

    def plane(j):
        return (A4, j * PL) if j < 5 else (A4B, (j - 5) * PL)

    def desc_load(dst, tb):
        a('v_lshlrev_b32 v%d, 12, v0' % tb)
        a('s_lshl_b32 s%d, s%d, 4' % (sT, sBIN))
        a('s_add_u32 s%d, s%d, %d' % (sT, sT, DESC0))
        a('buffer_load_dwordx4 %s, v%d, %s, s%d offen %s' % (vr(dst, 4), tb, sr(S_WS, 4), sT, HO))
        return a.mark()

    def scan4(v):
        for c, rm in (('row_shr:1', 15), ('row_shr:2', 15), ('row_shr:4', 15), ('row_shr:8', 15), ('row_bcast:15', 10), ('row_bcast:31', 12)):
            for k in range(4):
                a('v_add_u32_dpp v%d, v%d, v%d %s row_mask:0x%x bank_mask:0xf' % (v + k, v + k, v + k, c, rm))

    def img_load(first, n, dst, t):
        a('v_lshlrev_b32 v%d, 4, v%d' % (t, LANE))
        for i in range(n):
            a('s_mov_b32 s%d, %d' % (sT, PREP0 + 1024 * (first + i)))
            a('buffer_load_dwordx4 %s, v%d, %s, s%d offen %s' % (vr(dst + 4 * i, 4), t, sr(S_WS, 4), sT, HO))

    def gathers(q):
        a('buffer_load_dwordx4 %s, %s, %s, 0 idxen offen' % (vr(GB[q], 4), vr(IA, 2), sr(S_M, 4)))
        a('buffer_load_dwordx4 %s, %s, %s, 0 idxen offen' % (vr(GB[q] + 4, 4), vr(IB, 2), sr(S_M, 4)))

    def cosines(p):
        c1, c3, c2 = TM, TM + 1, TM + 2
        a('v_mul_f32 v%d, 0x40400000, v%d' % (c3, ANG[p]))
        a('v_mul_f32 v%d, 0.15915494, v%d' % (c1, ANG[p]))
        a('v_cvt_pk_bf16_f32 v%d, 0, v%d' % (c3, c3))
        a('v_fract_f32 v%d, v%d' % (c1, c1))
        a('v_mul_f32 v%d, 0.15915494, v%d' % (c3, c3))
        a('v_cos_f32 v%d, v%d' % (c1, c1))
        a('v_fract_f32 v%d, v%d' % (c3, c3))
        a('v_add_f32 v%d, v%d, v%d' % (c2, c1, c1))
        a('v_cos_f32 v%d, v%d' % (c3, c3))
        a('v_fma_f32 v%d, v%d, v%d, -1.0' % (c2, c2, c1))
        a('v_cvt_pk_f16_f32 v%d, v%d, v%d' % (c1, c1, c2))
        a('v_cvt_f16_f32 v%d, v%d' % (c3, c3))

    def sbf(l):
        src, sel = ((TM, 0), (TM, 1), (TM + 1, 0))[l]
        for j in range(4):
            a('v_pk_mul_f16 v%d, v%d, v%d op_sel:[0,%d] op_sel_hi:[1,%d]' % (SBF + 4 * (l & 1) + j, RBF + j, src, sel, sel))

    def gmf(l):
        a('v_mfma_f32_32x32x16_f16 %s, %s, %s, %s' % (vr(GATE, 16), vr(AG + 4 * l, 4), vr(SBF + 4 * (l & 1), 4), vr(GATE, 16) if l else '0'))

    def mdown(p):
        a('v_mfma_f32_32x32x16_bf16 %s, %s, %s, 0' % (vr(MD, 16), vr(AM, 4), vr(GB[p], 4)))
        a('v_mfma_f32_32x32x16_bf16 %s, %s, %s, %s' % (vr(MD, 16), vr(AM + 4, 4), vr(GB[p] + 4, 4), vr(MD, 16)))

    def addrs(p):
        a('v_lshrrev_b32 v%d, 2, v%d' % (A4, A16[p]))
        a('v_add_u32 v%d, %d, v%d' % (A4B, HI0, A4))

    def decode_rel(p, base, part=3):
        a('s_set_gpr_idx_on s%d, gpr_idx(SRC1)' % sIX)
        a('s_nop 0')
        if part & 1:
            a('v_and_b32 v%d, s%d, v%d' % (IA, sIDM, S0 + base + p))
            a('v_and_b32 v%d, s%d, v%d' % (IB, sIDM, S0 + base + p))
        if part & 2:
            a('v_and_b32_sdwa v%d, s%d, v%d dst_sel:DWORD dst_unused:UNUSED_PAD src0_sel:DWORD src1_sel:WORD_1' % (A16[p], sA16, S0 + base + p))
            if p:
                a('v_and_b32 v%d, s%d, v%d' % (ANG[p], sHI, S0 + base + 2))
            else:
                a('v_lshlrev_b32 v%d, 16, v%d' % (ANG[p], S0 + base + 2))
        a('s_set_gpr_idx_off')
        if part & 1:
            a('v_permlane32_swap_b32 v%d, v%d' % (IA, IB))

    def halfbar(hi):
        n = lab[0]
        lab[0] += 1
        a('s_bitcmp%d_b32 s%d, %d' % (0 if hi else 1, sW, P['stb_']))
        a('s_cbranch_scc1 Lhb%d' % n)
        a('s_barrier')
        a('Lhb%d:' % n)

    def step(p):
        q = 1 - p
        ab = P['abl']
        vq = (lambda t: None) if ab & 4 else a
        vb = (lambda t: None) if ab & 68 else a
        va = (lambda t: None) if ab & 1 else a
        if P['early']:
            decode_rel(p, 3, 1)
        a('s_waitcnt vmcnt(2)')
        if not ab & 16:
            mdown(p)
        if P['early']:
            gathers(p)
        if not ab & 32:
            cosines(p)
        a('s_waitcnt lgkmcnt(%d)' % (0 if ab & 1 else 9))
        if not ab & 32:
            sbf(0)
        addrs(p)
        if not ab & 8:
            gmf(0)
        if not ab & 32:
            sbf(1)
        a('v_or_b32 v%d, v%d, v%d' % (STK, STK, RTN[p]))
        a('s_cmp_eq_u32 s%d, s%d' % (sIX, sEND))
        if not ab & 8:
            gmf(1)
        if not ab & 32:
            sbf(2)
        a('ds_read_b128 %s, v%d offset:%d' % (vr(RBF, 4), A16[q], RBF0))
        a('s_cselect_b64 %s, %s, -1' % (sr(sMK, 2), sr(sLM + 2 * p, 2)))
        if not ab & 8:
            gmf(2)
        if P['early']:
            decode_rel(p, 3, 2)
        else:
            decode_rel(p, 3)
            gathers(p)
        if P['stag'] and (p == 1 or P['stag'] == 2):
            halfbar(1)
        a('s_mov_b64 exec, %s' % sr(sMK, 2))
        for j in range(8):
            vq('v_fma_f32 v%d, v%d, v%d, s%d' % (MD + 2 * j, MD + 2 * j, GATE + 2 * j, sM0))
            vq('v_fma_f32 v%d, v%d, v%d, s%d' % (MD + 2 * j + 1, MD + 2 * j + 1, GATE + 2 * j + 1, sM0))
            if j:
                jj = j - 1
                vb('v_sad_u16 v%d, v%d, s%d, v%d' % (TM + (jj >> 1), MD + 2 * jj, sM1, TM + (jj >> 1) if jj & 1 else CK))
            vq('v_cvt_pknorm_u16_f32 v%d, v%d, v%d' % (MD + 2 * j, MD + 2 * j, MD + 2 * j + 1))
            b, o = plane(j)
            va('ds_add_u32 v%d, v%d offset:%d' % (b, MD + 2 * j, o))
        vb('v_max3_u32 v%d, v%d, v%d, v%d' % (CV, TM, TM + 1, TM + 2))
        vb('v_sad_u16 v%d, v%d, s%d, v%d' % (TM + 3, MD + 14, sM1, TM + 3))
        vb('v_max_u32 v%d, v%d, v%d' % (CV, CV, TM + 3))
        va('ds_add_rtn_u32 v%d, v%d, v%d offset:%d' % (RTN[p], A4B, CV, 3 * PL))
        a('s_mov_b64 exec, -1')

    if not hk:
        a('s_cmp_ge_u32 s2, 256')
        a('s_cbranch_scc1 Lk2_end')
    a('s_load_dwordx2 s[4:5], s[0:1], 0')
    a('s_load_dwordx2 s[6:7], s[0:1], 24')
    a('s_load_dwordx2 s[8:9], s[0:1], 40')
    a('s_load_dwordx2 s[10:11], s[0:1], 88')
    if not hk:
        a('s_load_dwordx4 s[12:15], s[0:1], 96')
    if P['cpf'] & 2:
        G['code_prefetch'](a, 'b', 88, 4)
    a('v_lshrrev_b32 v3, 6, v0')
    a('v_and_b32 v%d, 63, v0' % LANE)
    a('v_readfirstlane_b32 s%d, v3' % sW)
    if hk:
        a('v_and_b32 v%d, 3, v0' % VZ)
        a('v_lshlrev_b32 v%d, 6, v%d' % (VZ, VZ))
        mP = cleared_load()
    a('s_and_b32 s%d, s2, 7' % sBIN)
    a('s_lshl_b32 s%d, s%d, 5' % (sBIN, sBIN))
    a('s_lshr_b32 s%d, s2, 3' % sT)
    a('s_add_u32 s%d, s%d, s%d' % (sBIN, sBIN, sT))
    a('s_mov_b32 s%d, 0x%x' % (sM0, f2u(32768.0 / 65535.0)))
    a('s_mov_b32 s%d, 0x80008000' % sM1)
    a('s_mov_b32 s%d, 0x%x' % (sIDM, P['idm']))
    a('s_mov_b32 s%d, 0xffff0000' % sHI)
    a('s_mov_b32 s%d, 0xfff0' % sA16)
    a('s_mov_b32 s%d, 0x07060302' % sPS)
    a('s_mov_b32 s%d, 0' % sMODE)
    a('v_cmp_gt_u32 %s, %d, v0' % (sr(sV6, 2), BINE - 3072))
    a('v_lshrrev_b32 v%d, 5, v%d' % (IA + 1, LANE))
    a('v_lshlrev_b32 v%d, 4, v%d' % (IA + 1, IA + 1))
    a('v_mov_b32 v%d, v%d' % (IB + 1, IA + 1))
    a('v_mov_b32 v%d, 0' % IA)
    a('v_mov_b32 v%d, 0' % IB)
    a('s_waitcnt lgkmcnt(0)')
    a('s_load_dwordx4 s[96:99], s[8:9], 0')
    srd(a, S_WS, 14, WS_BYTES)
    D, X, DL = RAW, RAW + 4, RAW + 8
    if hk:
        a('s_barrier')
        for j in range(NS0):
            mS = hk.store(j)
    else:
        mDs = desc_load(D, RAW + 12)
    a('s_mul_i32 s%d, s%d, %d' % (sT, sBIN, BINE * 2))
    a('s_mul_i32 s%d, s%d, %d' % (sT2, sBIN, BINE * 32))
    srd(a, S_DIST, 6, BINE * 2, 's%d' % sT)
    srd(a, S_M, 4, E, None, 32)
    srd(a, S_MR, 4, E * 32)
    srd(a, S_MO, 4, BINE * 32, 's%d' % sT2)
    srd(a, S_OUT, 10, BINE * 32, 's%d' % sT2)
    G['stamp_init'](a, S_DBG, 14, 1, sW)
    a('s_waitcnt lgkmcnt(0)')
    for r in range(4):
        a('s_lshl_b32 s%d, s%d, 16' % (sCEN + 2 * r, 96 + r))
        a('s_and_b32 s%d, s%d, 0xffff0000' % (sCEN + 2 * r + 1, 96 + r))
    a('s_mov_b32 s%d, 0x%x' % (sR, f2u(math.sqrt(10.0 * math.log2(math.e)))))
    a('v_mov_b32 v%d, s%d' % (RT + 8, sR))
    for r in range(8):
        a('v_mul_f32 v%d, s%d, v%d' % (RT + r, sCEN + r, RT + 8))
    for r in range(8):
        a('v_readfirstlane_b32 s%d, v%d' % (sCEN + r, RT + r))
    stamp(0)
    Z, T0 = 96, 104
    for i in range(4):
        a('v_mov_b32 v%d, 0' % (Z + i))
        a('v_bfrev_b32 v%d, 1' % (Z + 4 + i))
    a('v_lshlrev_b32 v%d, 4, v0' % T0)
    a('v_lshlrev_b32 v%d, 3, v0' % (T0 + 1))
    a('s_mul_i32 s%d, s%d, 1088' % (sTB, sW))
    a('v_lshl_add_u32 v%d, v%d, 4, s%d' % (T0 + 2, LANE, sTB))
    a('ds_write_b64 v%d, %s offset:%d' % (T0 + 1, vr(Z, 2), BB0))
    a('ds_write_b128 v%d, %s offset:%d' % (T0 + 2, vr(Z + 4, 4), TB0))
    a('ds_write_b128 v%d, %s offset:%d' % (T0 + 2, vr(Z + 4, 4), TB0 + 64))
    a('s_movk_i32 s%d, 400' % sT)
    a('v_cmpx_gt_u32 vcc, s%d, v0' % sT)
    a('ds_write_b128 v%d, %s offset:%d' % (T0, vr(Z, 4), KC0))
    a('ds_write_b128 v%d, %s offset:%d' % (T0, vr(Z, 4), KC0 + 6400))
    a('s_mov_b64 exec, -1')
    a('v_mov_b32 v%d, 1' % ONE)
    a('v_mov_b32 v%d, 8' % EIGHT)
    a('v_mul_u32_u24 v%d, 12, v%d' % (L12, LANE))
    a('s_lshl_b32 s%d, s%d, 10' % (sT, sW))
    a('v_lshl_add_u32 v%d, v%d, 3, s%d' % (RBA, LANE, sT))
    a('s_lshl_b32 s%d, s2, 3' % sT)
    a('s_add_u32 s%d, s%d, s%d' % (sT, sT, sW))
    a('s_mul_i32 s%d, s%d, 25' % (sT, sT))
    a('v_min_u32 v%d, 24, v%d' % (WA, LANE))
    a('v_add_lshl_u32 v%d, v%d, s%d, 7' % (WA, WA, sT))
    for j in range(4):
        if P['wpos'][j] == '0':
            a('s_mov_b32 s%d, %d' % (sT, j * 51200 * 128))
            a('buffer_load_dword v%d, v%d, %s, s%d offen' % (WD, WA, sr(S_MR, 4), sT))
    a('s_movk_i32 s%d, %d' % (sT, REC0 // 12))
    a('v_mov_b32 v%d, %d' % (T0 + 3, TSP))
    a('v_mad_u32_u24 v%d, v0, v%d, s%d' % (T0 + 3, T0 + 3, sT))
    if hk:
        rest = []
        for j in range(NS0, 20):
            if 20 - j <= len(hk.rest_a):
                rest.append(hk.rest_a[j - 20])
            rest.append(lambda j=j: hk.store(j))
        for j in range(P['nsx']):
            rest.pop(0)()
        a.wait_vm(mS)
        a('s_barrier')
        hk.publish()
        stamp(11)
        for f in rest:
            mS = f()
        spin(cleared_load, lambda: a('v_cmpx_ne_u32 vcc, 64, v%d' % VP), mP)
        mDs = desc_load(D, RAW + 12)
        done_addr()
        stamp(12)
        a.wait_vm(mS)
        hk.arrive2(0, VT, hk.arrive1(0, VT))

        def nr():
            a('v_and_b32 v%d, v%d, v%d' % (VT, D, D + 1))
            a('v_and_b32 v%d, v%d, v%d' % (VT + 1, D + 2, D + 3))
            a('v_and_b32 v%d, v%d, v%d' % (VT, VT, VT + 1))
            a('v_cmpx_le_i32 vcc, 0, v%d' % VT)
        spin(lambda: desc_load(D, RAW + 12), nr, mDs)
        stamp(13)
        for k in range(4):
            a('v_and_b32 v%d, 0x7fffffff, v%d' % (D + k, D + k))
    else:
        a.wait_vm(mDs)
    NP = RAW + 28
    for k in range(4):
        a('v_add_u32 v%d, 0x10000, v%d' % (NP + k, D + k))
        a('v_bfe_u32 v%d, v%d, 16, 1' % (X + k, D + k))
        a('v_lshrrev_b32 v%d, 17, v%d' % (NP + k, NP + k))
        a('v_and_b32 v%d, 0xffff, v%d' % (D + k, D + k))
        a('v_lshl_or_b32 v%d, v%d, 20, v%d' % (X + k, X + k, NP + k))
    scan4(X)
    TT = RAW + 32
    a('s_movk_i32 s%d, %d' % (sT2, NSL * 64))
    for k in range(4):
        a('v_lshrrev_b32 v%d, 20, v%d' % (TT + k, X + k))
        a('v_and_b32 v%d, 0xfffff, v%d' % (X + k, X + k))
        a('v_add_u32 v%d, v%d, v%d' % (DL + k, D + k, T0 + 3))
        a('v_sub_u32 v%d, v%d, v%d' % (TT + k, X + k, TT + k))
        a('v_sub_u32 v%d, v%d, v%d' % (DL + k, DL + k, X + k))
        a('v_add_u32 v%d, v%d, v%d' % (TT + k, TT + k, X + k))
        a('v_mul_u32_u24 v%d, 12, v%d' % (DL + k, DL + k))
        a('v_subrev_u32 v%d, %d, v%d' % (T0, 64 * P['nfull'], X + k))
        a('v_cmpx_lt_u32 vcc, %d, v%d' % (64 * (NSL - P['nfull']), T0))
        a('v_mov_b32 v%d, 0x1000000' % (TT + k))
        a('s_mov_b64 exec, -1')
    if hk:
        a('v_cmp_lt_u32 vcc, %d, v%d' % (NS0 * 8192 // 12, D))
        a('s_cmp_lg_u64 vcc, 0')
        a('s_cselect_b64 exec, -1, 0')
        a('v_mov_b32 v%d, 0x1000000' % TT)
        a('s_mov_b64 exec, -1')
    for k in range(4):
        a('v_readlane_b32 s%d, v%d, 63' % (sEW + k, X + k))
    a('s_lshl_b32 s%d, s%d, 4' % (sT, sW))
    a('v_mov_b32 v%d, s%d' % (T0, sT))
    a('s_mov_b32 exec_lo, 0')
    a('s_mov_b32 exec_hi, 0x80000000')
    a('ds_write_b128 v%d, %s offset:%d' % (T0, vr(TT, 4), SC0))
    a('s_mov_b64 exec, -1')
    a('s_lshl_b32 s%d, s%d, 9' % (sT, sW))
    for k in range(4):
        a('v_subrev_u32 v%d, 1, v%d' % (T0, X + k))
        a('v_lshlrev_b32 v%d, v%d, v%d' % (T0 + 1, T0, ONE))
        a('v_lshrrev_b32 v%d, 5, v%d' % (T0, T0))
        a('v_lshl_add_u32 v%d, v%d, 2, s%d' % (T0, T0, sT))
        a('v_cmpx_ge_u32 vcc, s%d, v%d' % (sT2, X + k))
        a('v_cmpx_ne_u32 vcc, 0, v%d' % (NP + k))
        a('v_mbcnt_lo_u32_b32 v%d, vcc_lo, 0' % (T0 + 2))
        a('v_mbcnt_hi_u32_b32 v%d, vcc_hi, v%d' % (T0 + 2, T0 + 2))
        a('v_lshl_add_u32 v%d, v%d, 2, s%d' % (T0 + 2, T0 + 2, sTB))
        a('ds_or_b32 v%d, v%d offset:%d' % (T0, T0 + 1, BB0 + 128 * k))
        a('ds_write_b32 v%d, v%d offset:%d' % (T0 + 2, DL + k, TB0 + 272 * k))
        a('s_mov_b64 exec, -1')
    a('v_and_b32 v%d, 7, v0' % T0)
    a('v_lshlrev_b32 v%d, 4, v%d' % (T0, T0))
    a('s_waitcnt lgkmcnt(0)')
    a('s_barrier')
    a('ds_read_b128 %s, v%d offset:%d' % (vr(TT, 4), T0, SC0))
    a('s_mov_b32 s%d, 0' % sPc)
    a('s_waitcnt lgkmcnt(0)')
    for c in ('row_shr:1', 'row_shr:2', 'row_shr:4'):
        for k in range(4):
            a('v_add_u32_dpp v%d, v%d, v%d %s row_mask:0xf bank_mask:0xf' % (TT + k, TT + k, TT + k, c))
    for k in range(4):
        a('v_readlane_b32 s%d, v%d, 7' % (sPc + 1 + k, TT + k))
    for k in range(1, 4):
        a('s_add_u32 s%d, s%d, s%d' % (sPc + 1 + k, sPc + 1 + k, sPc + k))
    a('s_cmp_gt_u32 s%d, %d' % (sPc + 4, NBLK * 1024 if P['force_slow'] != 4 else 0))
    a('s_cbranch_scc1 Lk2_fb')
    a('s_cmp_ge_u32 s%d, %d' % (sPc + 2, 29 * 1024))
    a('s_cbranch_scc1 Lk2_fb')
    stamp(1)

    BUF = (96, 156)
    LEAD, HP = P['lead'], P['hp']
    RO, ZR = 184, 212
    DI = (TF[0], TF[1], VM, L12, TH, TH + 1, ONE)
    NFULL = P['nfull']
    mA, mC, mV, mM = {}, {}, {}, {}
    VMS = (255, VM)

    def raw(u):
        return BUF[(u // NSL) & 1] + 4 * (u % NSL)

    def Mrd(r):
        a('s_lshl_b32 s%d, s%d, 9' % (sT, sW))
        a('v_lshl_add_u32 v%d, v%d, 2, s%d' % (VMS[r >> 1], LANE, sT))
        a('ds_read_b32 v%d, v%d offset:%d' % (VMS[r >> 1], VMS[r >> 1], BB0 + 128 * r))
        mM[r] = a.mark()

    def A(u):
        R = raw(u)
        tail = u % NSL >= NFULL
        if tail:
            a('v_cmpx_gt_i32 %s, 0, v%d' % (sr(sMA + 2 * (u % NA), 2), R + 1))
        for e in range(2):
            t = TAR[2 * (u % NA) + e]
            a('v_and_b32 v%d, 0xffff, v%d' % (t, R + 2 * e + 1))
            if not P['abl'] & 256:
                a('ds_add_rtn_u32 v%d, v%d, v%d offset:%d' % (t, t, EIGHT, KC0))
            else:
                a('v_lshlrev_b32 v%d, 3, v%d' % (t, R + 2 * e))
        if tail:
            a('s_mov_b64 exec, -1')
        mA[u] = a.mark()

    def B(u):
        R = raw(u)
        tail = u % NSL >= NFULL
        if tail:
            a('s_mov_b64 exec, %s' % sr(sMA + 2 * (u % NA), 2))
        a.wait_ds(mA[u])
        for e in range(2):
            t = TAR[2 * (u % NA) + e]
            a('v_and_b32 v%d, 0x1ffff, v%d' % (t, t))
            if not P['abl'] & 512:
                a('ds_write_b64 v%d, %s offset:%d' % (t, vr(R + 2 * e, 2), RING0))
        if tail:
            a('s_mov_b64 exec, -1')

    def C(u):
        if u >= 4 * NSL:
            return
        r, k = divmod(u, NSL)
        t = TF[u & 1]
        if u == 0:
            a.wait_ds(mM[2])
        if k == 0:
            a('s_mul_i32 s%d, s%d, 1088' % (sTB, sW))
        a('v_readlane_b32 s%d, v%d, %d' % (sLO, VMS[r >> 1], 32 * (r & 1) + 2 * k))
        a('v_readlane_b32 s%d, v%d, %d' % (sLO + 1, VMS[r >> 1], 32 * (r & 1) + 2 * k + 1))
        a('s_bcnt1_i32_b64 s%d, %s' % (sT, sr(sLO, 2)))
        a('v_mbcnt_lo_u32_b32 v%d, s%d, 0' % (t, sLO))
        a('v_mbcnt_hi_u32_b32 v%d, s%d, v%d' % (t, sLO + 1, t))
        a('v_lshl_add_u32 v%d, v%d, 2, s%d' % (t, t, sTB))
        a('s_lshl2_add_u32 s%d, s%d, s%d' % (sTB, sT, sTB))
        a('ds_read_b32 v%d, v%d offset:%d' % (t, t, TB0 + 272 * r))
        mC[u] = a.mark()

    def Dd(u):
        if u >= 4 * NSL:
            return
        t = TF[u & 1]
        a('s_movk_i32 s%d, %d' % (sT2, 768 * (u % NSL)))
        a.wait_ds(mC[u])
        a('v_add_u32 v%d, v%d, v%d' % (t, t, L12))
        if P['abl'] & 2048:
            a('v_and_b32 v%d, 0x3ffff, v%d' % (t, t))
        a('buffer_load_dwordx3 %s, v%d, %s, s%d offen %s' % (vr(raw(u), 3), t, sr(S_WS, 4), sT2, HO))
        mV[u] = a.mark()

    def H(u):
        R = raw(u)
        tail = u % NSL >= NFULL
        a.wait_vm(mV[u])
        if tail:
            a('v_cmpx_gt_i32 vcc, 0, v%d' % (R + 1))
        for e in range(2):
            a('v_lshrrev_b32 v%d, 6, v%d' % (TH + e, R + 2 * e))
        for e in range(2):
            a('v_and_b32 v%d, 0x3ffc, v%d' % (TH + e, TH + e))
        for e in range(2):
            if not P['abl'] & 1024:
                a('ds_add_u32 v%d, v%d offset:%d' % (TH + e, ONE, KC0))
        a('v_lshl_or_b32 v%d, v%d, 16, v%d' % (R + 3, R + 1, TH + 1))
        a('v_and_or_b32 v%d, v%d, s%d, v%d' % (R + 1, R + 1, sHI, TH))
        if tail:
            a('s_mov_b64 exec, -1')

    def keyscan(r):
        K = RT
        nds = a.nds
        a('s_cmp_lg_u32 s%d, %d' % (sW, P['scw']))
        a('s_cbranch_scc1 Lks%d' % r)
        a('v_lshlrev_b32 v%d, 6, v%d' % (RA, LANE))
        for j in range(4):
            a('ds_read_b128 %s, v%d offset:%d' % (vr(K + 4 * j, 4), RA, KC0 + 3136 * r + 16 * j))
        a('s_waitcnt lgkmcnt(0)')
        for j in range(1, 16):
            a('v_add_u32 v%d, v%d, v%d' % (K + j, K + j, K + j - 1))
        a('v_mov_b32 v%d, v%d' % (RA + 1, K + 15))
        G['scan64'](a, RA + 1)
        a('v_sub_u32 v%d, v%d, v%d' % (RA + 1, RA + 1, K + 15))
        a('v_add_u32 v%d, s%d, v%d' % (RA + 1, sPc + r, RA + 1))
        a('v_cmpx_gt_u32 vcc, 49, v%d' % LANE)
        for j in range(15, -1, -1):
            if j:
                a('v_add_lshl_u32 v%d, v%d, v%d, 3' % (K + j, K + j - 1, RA + 1))
            else:
                a('v_lshlrev_b32 v%d, 3, v%d' % (K, RA + 1))
            if j % 4 == 0:
                a('ds_write_b128 v%d, %s offset:%d' % (RA, vr(K + j, 4), KC0 + 3136 * r + 4 * j))
        a('s_lshl_b32 s%d, s%d, 3' % (sT, sPc + r + 1))
        a('v_mov_b32 v%d, s%d' % (RA + 1, sT))
        a('v_lshlrev_b32 v%d, 2, v%d' % (RA, LANE))
        a('s_mov_b64 exec, 0xffff')
        a('ds_write_b32 v%d, v%d offset:%d' % (RA, RA + 1, KC0 + 4 * (3136 + 16 * r)))
        a('s_mov_b64 exec, -1')
        a('Lks%d:' % r)
        a('s_nop 1')
        a.nds = nds

    def rb_reads():
        mk = {}
        for j in range(4):
            a('s_add_u32 s%d, s%d, %d' % (sT, sRB, j))
            a('s_and_b32 s%d, s%d, 15' % (sT, sT))
            a('s_lshl_b32 s%d, s%d, 13' % (sT, sT))
            a('v_add_u32 v%d, s%d, v%d' % (RA + j, sT, RBA))
            a('ds_read_b64 %s, v%d offset:%d' % (vr(RT + 4 * j, 2), RA + j, RING0))
            a('ds_read_b64 %s, v%d offset:%d' % (vr(RT + 4 * j + 2, 2), RA + j, RING0 + 512))
            mk[j] = a.mark()
        return mk

    def rb_moves(mk):
        a('s_mul_i32 s%d, s%d, 3' % (sIX, sRB))
        a('s_set_gpr_idx_on s%d, gpr_idx(DST)' % sIX)
        for j in range(4):
            a.wait_ds(mk[j])
            a('v_mov_b32 v%d, v%d' % (S0 + 3 * j, RT + 4 * j))
            a('v_mov_b32 v%d, v%d' % (S0 + 3 * j + 1, RT + 4 * j + 2))
            a('v_perm_b32 v%d, v%d, v%d, s%d' % (S0 + 3 * j + 2, RT + 4 * j + 3, RT + 4 * j + 1, sPS))
        a('s_set_gpr_idx_off')
        a('s_add_u32 s%d, s%d, 4' % (sRB, sRB))

    def readback(tag):
        nds = a.nds
        a('s_cmp_ge_u32 s%d, s%d' % (sRB, sRE))
        a('s_cbranch_scc1 Lrd%s' % tag)
        a('Lrl%s:' % tag)
        rb_moves(rb_reads())
        a('s_cmp_lt_u32 s%d, s%d' % (sRB, sRE))
        a('s_cbranch_scc1 Lrl%s' % tag)
        a('Lrd%s:' % tag)
        a('s_mov_b32 s%d, s%d' % (sRB, sRE))
        a.nds = nds

    def warm(j):
        if P['warm']:
            a('s_mov_b32 s%d, %d' % (sT, j * 51200 * 128))
            a('buffer_load_dword v%d, v%d, %s, s%d offen' % (WD, WA, sr(S_MR, 4), sT))

    def l2pf(j):
        if j * 16384 >= P['pfn']:
            return
        if j == 0:
            a('s_lshr_b32 s%d, s2, 3' % sT)
            a('s_lshl_b32 s%d, s%d, 9' % (sT, sT))
            a('v_add_lshl_u32 v%d, v0, s%d, 7' % (WA, sT))
            a('s_mov_b32 s%d, %d' % (S_MR + 2, P['pfn'] * 128))
        a('s_mov_b32 s%d, %d' % (sT, j * 16384 * 128))
        a('buffer_load_dword v%d, v%d, %s, s%d offen' % (WD, WA, sr(S_MR, 4), sT))

    def dist_loads():
        a('v_lshlrev_b32 v%d, 1, v0' % (RA + 2))
        for q in range(NQ):
            a('s_movk_i32 s%d, %d' % (sT, q * 1024))
            a('buffer_load_ushort v%d, v%d, %s, s%d offen' % (DI[q], RA + 2, sr(S_DIST, 4), sT))
        return a.mark()

    def rbf_batch(q):
        K = RT
        a('v_lshlrev_b32 v%d, 16, v%d' % (K + 8, DI[q]))
        a('v_mul_f32 v%d, s%d, v%d' % (K + 8, sR, K + 8))
        for r in range(8):
            a('v_subrev_f32 v%d, s%d, v%d' % (K + r, sCEN + r, K + 8))
        for r in range(8):
            a('v_mul_f32 v%d, v%d, v%d' % (K + r, K + r, K + r))
        for r in range(8):
            a('v_exp_f32 v%d, -v%d' % (K + r, K + r))
        for r in range(4):
            a('v_cvt_pk_f16_f32 v%d, v%d, v%d' % (RO + 4 * q + r, K + 2 * r, K + 2 * r + 1))

    NP_ = P['npipe']

    def guarded(r, body):
        n = lab[0]
        lab[0] += 1
        nds, nvm = a.nds, a.nvm
        for k in range(NP_, NSL):
            a('s_cmp_le_u32 s%d, %d' % (sEW + r, 64 * k))
            a('s_cbranch_scc1 Lg%d' % n)
            body(NSL * r + k)
        a('Lg%d:' % n)
        a('s_nop 3')
        a.nds, a.nvm = nds, nvm

    def U(x):
        return NSL * (x // NP_) + x % NP_

    def Cx(x):
        C(U(x))

    def Dx(x):
        if x >= 4 * NP_:
            return
        Dd(U(x))

    def loadstep(x):
        def first():
            if (x + 1) % NP_:
                Cx(x + 1)

        def second():
            Dx(x)
            if (x + 1) % NP_ == 0 and x < 4 * NP_:
                r = x // NP_

                def body(u):
                    C(u)
                    Dd(u)
                guarded(r, body)
                for k in range(NP_, NSL):
                    mV[NSL * r + k] = a.mark()
                if r < 3:
                    Cx(x + 1)
        return first, second

    def Hx(x):
        H(U(x))
        if (x + 1) % NP_ == 0:
            guarded(x // NP_, H)

    Mrd(0)
    Mrd(2)
    a('s_mov_b32 s%d, 0' % sRB)
    lag = P['dv']
    C(0)
    for i in range(NP_ + lag):
        if hk and i == NP_ - 4:
            mP = done_load()
        if hk and i == NP_:
            stamp(14)
            done_wait(mP)
            stamp(15)
        f1, f2 = loadstep(i)
        f1()
        f2()
        if i >= lag:
            Hx(i - lag)
    a('s_waitcnt lgkmcnt(0)')
    a('s_barrier')
    keyscan(0)
    lead0 = P['lead0']
    for i in range(NP_ + lag, NP_ + lead0):
        f1, f2 = loadstep(i)
        f1()
        f2()
    a('s_waitcnt lgkmcnt(0)')
    a('s_barrier')
    nxt = NP_ + max(lag, lead0)
    for r in range(4):
        stamp(2 + r)
        u0 = NSL * r
        hq = list(range(NP_ * (r + 1), NP_ * (r + 2))) if r < 3 else []
        if r:
            a('s_lshr_b32 s%d, s%d, 10' % (sRE, sPc + r))
            for g in range(3):
                mk = rb_reads()
                if hq:
                    Hx(hq.pop(0))
                rb_moves(mk)
            readback(str(r))
        while r and len(hq) > NP_ - HP:
            Hx(hq.pop(0))
        for k in range(NA - 1):
            A(u0 + k)
        if r == P['fr']:
            stamp(11)
        if r:
            a('s_barrier')
        if r == P['fr']:
            stamp(12)
        pend = None
        for i in range(NP_):
            f1, f2 = loadstep(nxt)
            f1()
            if i + NA - 1 < NP_:
                A(u0 + i + NA - 1)
            B(u0 + i)
            assert nxt < NP_ * (r + 2) or nxt - NP_ * (r + 2) <= i
            f2()
            nxt += 1
            if nxt < NP_ * (r + 1) + LEAD + i + 1:
                f1, f2 = loadstep(nxt)
                f1()
                f2()
                nxt += 1
            nh = 2 if (len(hq) > max(1, NP_ - HP - i) and U(hq[1]) in mV and hq[1] + 4 <= nxt) else 1
            for _ in range(nh):
                if hq:
                    Hx(hq.pop(0))
                    if not hq:
                        pend = (i + P['bhd'], a.mark())
                        if r == 2:
                            mD = dist_loads()
            if pend and pend[0] == i:
                a.wait_ds(pend[1])
                if r == P['fr']:
                    stamp(13)
                a('s_barrier')
                keyscan(r + 1)
                if r == P['fr']:
                    stamp(14)
            for j in range(4):
                if P['wpos'][j] == 'abcdefghijklmnopqrstuvwxyzABCDEFGH'[(r - 2) * NP_ + i] and r >= 2:
                    warm(j)
            for j in range(2):
                if P['ppos'][j] == 'abcdefghijklmnopqrstuvwxyzABCDEFGH'[(r - 2) * NP_ + i] and r >= 2:
                    l2pf(j)
            if r == 3 and i == 6:
                if not P['imgl']:
                    img_load(0, 5, AG, RA)
                a.wait_vm(mD)
            if r == 3 and 7 <= i < 7 + NQ - 1:
                rbf_batch(i - 7)

        def body(u):
            A(u)
            B(u)
        guarded(r, body)
        if r == 3:
            a('s_cmp_lg_u32 s%d, 0' % sW)
            a('s_cbranch_scc1 Lk2_r6')
            rbf_batch(NQ - 1)
            a('Lk2_r6:')
        a('s_waitcnt lgkmcnt(0)')
        if r == P['fr']:
            stamp(15)
        a('s_barrier')
    stamp(6)
    a('s_add_u32 s%d, s%d, 1023' % (sRE, sPc + 4))
    a('s_lshr_b32 s%d, s%d, 10' % (sRE, sRE))
    readback('L')
    a('s_max_u32 s%d, s%d, 1' % (sRB, sRB))
    a('s_sub_u32 s%d, s%d, 1' % (sRB, sRB))
    a('s_mul_i32 s%d, s%d, 3' % (sEND, sRB))
    a('s_lshl_b32 s%d, s%d, 10' % (sT, sRB))
    a('s_sub_u32 s%d, s%d, s%d' % (sT, sPc + 4, sT))
    a('v_lshrrev_b32 v%d, 3, v%d' % (TM, RBA))
    a('v_add_u32 v%d, 64, v%d' % (TM + 1, TM))
    a('v_cmp_gt_u32 %s, s%d, v%d' % (sr(sLM, 2), sT, TM))
    a('v_cmp_gt_u32 %s, s%d, v%d' % (sr(sLM + 2, 2), sT, TM + 1))
    a('s_set_gpr_idx_on s%d, gpr_idx(SRC1,DST)' % sEND)
    a('s_andn2_b64 exec, -1, %s' % sr(sLM + 2, 2))
    a('v_mov_b32 v%d, 0' % (S0 + 1))
    a('v_and_b32 v%d, 0xffff, v%d' % (S0 + 2, S0 + 2))
    a('s_andn2_b64 exec, -1, %s' % sr(sLM, 2))
    a('v_mov_b32 v%d, 0' % S0)
    a('v_mov_b32 v%d, 0' % (S0 + 2))
    a('s_mov_b64 exec, -1')
    a('s_set_gpr_idx_off')
    a('s_mov_b32 s%d, 0' % sIX)
    a('Lk2_init:')
    a('s_barrier')
    for i in range(4):
        a('v_mov_b32 v%d, 0' % (ZR + i))
    a('v_lshlrev_b32 v%d, 4, v0' % A4)
    a('v_add_u32 v%d, %d, v%d' % (A4B, HI0, A4))
    a('v_add_u32 v%d, %d, v%d' % (CV, RBF0, A4))
    for q in range(NQ - 1):
        a('ds_write_b128 v%d, %s offset:%d' % (CV, vr(RO + 4 * q, 4), 8192 * q))
    a('s_mov_b64 exec, %s' % sr(sV6, 2))
    a('ds_write_b128 v%d, %s offset:%d' % (CV, vr(RO + 4 * NQ - 4, 4), 8192 * (NQ - 1)))
    a('s_mov_b64 exec, -1')
    a('s_cmp_lg_u32 s%d, 0' % sMODE)
    a('s_cbranch_scc1 Lk2_ng')
    if P['imgl']:
        img_load(0, 5, AG, TM)
    decode_rel(0, 0)
    gathers(0)
    decode_rel(1, 0)
    gathers(1)
    a('Lk2_ng:')
    for o in list(range(0, RBF0 - 8192, 8192)) + [RBF0 - 8192]:
        a('ds_write_b128 v%d, %s offset:%d' % (A4, vr(ZR, 4), o))
    for o in list(range(0, 4 * PL - 8192, 8192)) + [4 * PL - 8192]:
        a('ds_write_b128 v%d, %s offset:%d' % (A4B, vr(ZR, 4), o))
    a('v_mov_b32 v%d, 0' % STK)
    a('v_mov_b32 v%d, 0' % RTN[0])
    a('v_mov_b32 v%d, 0' % RTN[1])
    a('v_mov_b32 v%d, 0x1000000' % CK)
    a('v_and_b32 v255, 0x1df, v0')
    a('v_lshl_add_u32 v255, v255, 5, v%d' % (IA + 1))
    a('s_waitcnt lgkmcnt(0)')
    a('s_barrier')
    stamp(7, True)
    a('s_cmp_lg_u32 s%d, 0' % sMODE)
    a('s_cbranch_scc1 Lk2_all')
    a('ds_read_b128 %s, v%d offset:%d' % (vr(RBF, 4), A16[0], RBF0))
    a('s_waitcnt lgkmcnt(0)')
    MQ, AU, AR, OA = 4, 60, 68, 255
    WW, RBB, CNN = (76, 96), (84, 104), (88, 108)
    R16, T1, T2, T3, T4 = 92, 112, 113, 114, 115
    sTRG = 89

    def epi_loads():
        img_load(5, 3, AU, 2)
        for q in range(NQ):
            a('s_mov_b32 s%d, %d' % (sT, q * 16384))
            a('buffer_load_dwordx4 %s, v%d, %s, s%d offen' % (vr(MQ + 8 * q, 4), OA, sr(S_MO, 4), sT))
            a('buffer_load_dwordx4 %s, v%d, %s, s%d offen offset:1024' % (vr(MQ + 8 * q + 4, 4), OA, sr(S_MO, 4), sT))

    a('s_mul_i32 s%d, s%d, 49' % (sTRG, sBIN))
    a('s_lshr_b32 s%d, s%d, 8' % (sTRG, sTRG))
    a('s_add_u32 s%d, s%d, %d' % (sTRG, sTRG, P['trg']))
    a('s_and_b32 s%d, s%d, 15' % (sT, sBIN))
    a('s_add_u32 s%d, s%d, 24' % (sT, sT))
    a('s_cmp_lt_u32 s%d, 24' % sTRG)
    a('s_cselect_b32 s%d, s%d, s%d' % (sTRG, sT, sTRG))
    a('s_mul_i32 s%d, s%d, 3' % (sTRG, sTRG))
    a('s_min_u32 s%d, s%d, s%d' % (sTRG, sTRG, sEND))
    if '1' in P['wpos']:
        a('s_mov_b32 s90, %d' % (3 * P['mw1']))
        a('s_mov_b32 s91, %d' % (P['wpos'].index('1') * 51200 * 128))
        a('v_mov_b32 v155, v%d' % WA)
    if P['prio']:
        a('s_cmp_lt_u32 s%d, 4' % sW)
        a('s_cbranch_scc1 Lk2_np')
        a('s_setprio 1')
        a('Lk2_np:')
    a.raw('.p2align 6')
    a('Lk2_loop:')
    a('s_cmp_eq_u32 s%d, s%d' % (sIX, sTRG))
    a('s_cbranch_scc1 Lk2_el')
    a('Lk2_lc:')
    if '1' in P['wpos']:
        a('s_cmp_eq_u32 s%d, s90' % sIX)
        a('s_cbranch_scc1 Lk2_wl')
        a('Lk2_wc:')
    step(0)
    if P['stag'] == 2:
        halfbar(0)
    step(1)
    if P['stag']:
        halfbar(0)
    elif P['mbar'] == 1:
        a('s_barrier')
    elif P['mbar']:
        a('s_and_b32 s%d, s%d, %d' % (sT, sIX, P['mbar'] - 1))
        a('s_cbranch_scc1 Lk2_nb')
        a('s_barrier')
        a('Lk2_nb:')
    a('s_add_u32 s%d, s%d, 3' % (sIX, sIX))
    a('s_cmp_le_u32 s%d, s%d' % (sIX, sEND))
    a('s_cbranch_scc1 Lk2_loop')
    stamp(8, True)
    a('s_mov_b32 s%d, 0' % sPASS)
    for i in range(NQ):
        a('s_mov_b64 %s, 0' % sr(sFL + 2 * i, 2))
        a('s_mov_b64 %s, 0' % sr(sSK + 2 * i, 2))
    a('Lk2_epi:')
    a('v_lshlrev_b32 v%d, 2, v0' % A4)
    a('v_add_u32 v%d, %d, v%d' % (A4B, HI0, A4))
    a('v_lshlrev_b32 v%d, 4, v0' % R16)
    a('s_waitcnt vmcnt(4) lgkmcnt(0)')
    a('v_or3_b32 v%d, v%d, v%d, v%d' % (STK, STK, RTN[0], RTN[1]))
    a('s_barrier')
    mk = {}

    def e_read(q):
        W, RB, CN = WW[q & 1], RBB[q & 1], CNN[q & 1]
        if q == NQ - 1:
            for i in range(4):
                a('v_mov_b32 v%d, 0' % (RB + i))
            for i in range(8):
                a('v_mov_b32 v%d, 0' % (W + i))
            a('v_mov_b32 v%d, 0' % CN)
            a('s_mov_b64 exec, %s' % sr(sV6, 2))
        a('ds_read_b32 v%d, v%d offset:%d' % (CN, A4B, 3 * PL + 2048 * q))
        mk[q, -1] = a.mark()
        for j in range(8):
            b, o = plane(j)
            a('ds_read_b32 v%d, v%d offset:%d' % (W + j, b, o + 2048 * q))
            mk[q, j] = a.mark()
        a('ds_read_b128 %s, v%d offset:%d' % (vr(RB, 4), R16, RBF0))
        mk[q, 8] = a.mark()
        if q == NQ - 1:
            a('s_mov_b64 exec, -1')
        else:
            a('v_add_u32 v%d, 8192, v%d' % (R16, R16))

    def e_decode(q):
        W, CN = WW[q & 1], CNN[q & 1]
        a.wait_ds(mk[q, -1 if q == 0 else 8])
        a('v_lshrrev_b32 v%d, 24, v%d' % (CN + 3, CN))
        a('v_and_b32 v%d, 0xffffff, v%d' % (CN, CN))
        a('v_mul_lo_u32 v%d, v%d, s%d' % (CN + 2, CN + 3, sM1))
        a('v_cmp_lt_u32 vcc, 127, v%d' % (CN + 3))
        a('v_mul_u32_u24 v%d, %d, v%d' % (CN + 3, P['theta'], CN + 3))
        a('s_or_b64 %s, %s, vcc' % (sr(sFL + 2 * q, 2), sr(sFL + 2 * q, 2)))
        a('v_cmp_lt_u32 vcc, 0x7ffe, v%d' % CN)
        a('s_or_b64 %s, %s, vcc' % (sr(sFL + 2 * q, 2), sr(sFL + 2 * q, 2)))
        a('v_cmp_lt_u32 vcc, v%d, v%d' % (CN, CN + 3))
        a('s_or_b64 %s, %s, vcc' % (sr(sFL + 2 * q, 2), sr(sFL + 2 * q, 2)))
        a('s_andn2_b64 exec, -1, %s' % sr(sSK + 2 * q, 2))
        for j in range(8):
            if q == 0:
                a.wait_ds(mk[q, j])
            t = CN + (j & 1)
            a('v_sub_u32 v%d, v%d, v%d' % (W + j, W + j, CN + 2))
            a('v_add_u32 v%d, 0x8000, v%d' % (t, W + j))
            a('v_cvt_f32_i32_sdwa v%d, sext(v%d) dst_sel:DWORD dst_unused:UNUSED_PAD src0_sel:WORD_0' % (W + j, W + j))
            a('v_cvt_f32_i32_sdwa v%d, sext(v%d) dst_sel:DWORD dst_unused:UNUSED_PAD src0_sel:WORD_1' % (t, t))
            a('v_cvt_pk_bf16_f32 v%d, v%d, v%d' % (W + j, W + j, t))
        a('s_mov_b64 exec, -1')
        if q == 0:
            a.wait_ds(mk[q, 8])

    def e_mfma(q):
        W, RB = WW[q & 1], RBB[q & 1]
        a('v_mfma_f32_32x32x16_f16 %s, %s, %s, 0' % (vr(GATE, 16), vr(AR, 4), vr(RB, 4)))
        a('v_mfma_f32_32x32x16_bf16 %s, %s, %s, 0' % (vr(MD, 16), vr(AU, 4), vr(W, 4)))
        a('v_mfma_f32_32x32x16_bf16 %s, %s, %s, %s' % (vr(MD, 16), vr(AU + 4, 4), vr(W + 4, 4), vr(MD, 16)))

    def e_out(q):
        a('s_mov_b32 s%d, %d' % (sT, q * 16384))
        for j in range(8):
            m = MQ + 8 * q + j
            ta, tb = (T1, T2) if j & 1 else (T3, T4)
            a('v_lshlrev_b32 v%d, 16, v%d' % (ta, m))
            a('v_and_b32 v%d, s%d, v%d' % (tb, sHI, m))
            a('v_fmac_f32 v%d, v%d, v%d' % (ta, MD + 2 * j, GATE + 2 * j))
            a('v_fmac_f32 v%d, v%d, v%d' % (tb, MD + 2 * j + 1, GATE + 2 * j + 1))
            a('v_cvt_pk_bf16_f32 v%d, v%d, v%d' % (m, ta, tb))
            if j == 3:
                a('buffer_store_dwordx4 %s, v%d, %s, s%d offen %s' % (vr(MQ + 8 * q, 4), OA, sr(S_OUT, 4), sT, P['stout']))
        a('buffer_store_dwordx4 %s, v%d, %s, s%d offen offset:1024 %s' % (vr(MQ + 8 * q + 4, 4), OA, sr(S_OUT, 4), sT, P['stout']))

    e_read(0)
    e_read(1)
    e_decode(0)
    for q in range(NQ - 1):
        e_mfma(q)
        if q + 1 < NQ - 1:
            e_decode(q + 1)
        if q + 2 < NQ:
            e_read(q + 2)
        e_out(q)
    a('s_cmp_lg_u32 s%d, 0' % sW)
    a('s_cbranch_scc1 Lk2_e6')
    e_decode(NQ - 1)
    e_mfma(NQ - 1)
    e_out(NQ - 1)
    a('Lk2_e6:')
    stamp(9, True)
    if P['stamp']:
        a('s_waitcnt vmcnt(0)')
        stamp(10, True)
    if P['abl']:
        a('s_branch Lk2_end')
    a('s_cmp_lg_u32 s%d, 0' % sPASS)
    a('s_cbranch_scc1 Lk2_end')
    a('s_or_b64 %s, %s, %s' % (sr(sMK, 2), sr(sFL, 2), sr(sFL + 2, 2)))
    for q in range(2, NQ):
        a('s_or_b64 %s, %s, %s' % (sr(sMK, 2), sr(sMK, 2), sr(sFL + 2 * q, 2)))
    a('s_cselect_b32 s%d, 1, %d' % (sT, P['force_slow'] & 3))
    a('v_cmp_gt_i32 vcc, 0, v%d' % STK)
    a('s_cmp_lg_u64 vcc, 0')
    a('s_cselect_b32 s%d, 3, s%d' % (sT, sT))
    a('v_mov_b32 v2, s%d' % sT)
    a('s_lshl_b32 s%d, s%d, 2' % (sT, sW))
    a('s_add_u32 s%d, s%d, %d' % (sT, sT, SCR))
    a('v_mov_b32 v3, s%d' % sT)
    a('ds_write_b32 v3, v2')
    a('v_and_b32 v2, 7, v0')
    a('v_lshlrev_b32 v2, 2, v2')
    a('v_add_u32 v2, %d, v2' % SCR)
    a('s_waitcnt lgkmcnt(0)')
    a('s_barrier')
    a('ds_read_b32 v3, v2')
    a('s_waitcnt lgkmcnt(0)')
    a('v_cmp_ne_u32 vcc, 0, v3')
    a('s_cmp_eq_u64 vcc, 0')
    a('s_cbranch_scc1 Lk2_end')
    a('v_cmp_lt_u32 vcc, 1, v3')
    a('s_cmp_lg_u64 vcc, 0')
    a('Lk2_all:')
    for q in range(NQ):
        a('s_cselect_b64 %s, -1, %s' % (sr(sSK + 2 * q, 2), sr(sFL + 2 * q, 2)))
    a('s_and_b64 %s, %s, %s' % (sr(sSK + 2 * NQ - 2, 2), sr(sSK + 2 * NQ - 2, 2), sr(sV6, 2)))
    a('s_waitcnt vmcnt(0)')
    VD, VE, REC, ADDR, F12 = 4, 8, 12, 16, 17
    desc_load(VD, 18)
    a('v_lshlrev_b32 v%d, 2, v0' % A4)
    a('v_add_u32 v%d, %d, v%d' % (A4B, HI0, A4))
    a('v_mov_b32 v2, 0')
    a('v_mov_b32 v3, -1')
    for q in range(NQ):
        a('s_mov_b64 exec, %s' % sr(sSK + 2 * q, 2))
        a('ds_write_b32 v%d, v3 offset:%d' % (A4B, 3 * PL + 2048 * q))
        for j in range(8):
            b, o = plane(j)
            a('ds_write_b32 v%d, v2 offset:%d' % (b, o + 2048 * q))
        a('s_mov_b64 exec, -1')
        a('s_waitcnt lgkmcnt(0)')
    a('s_barrier')
    a('s_movk_i32 s%d, %d' % (sT, REC0 // 12))
    a('v_mov_b32 v%d, %d' % (F12, TSP))
    a('v_mad_u32_u24 v%d, v0, v%d, s%d' % (F12, F12, sT))
    a('s_waitcnt vmcnt(0)')
    for k in range(4):
        a('v_and_b32 v%d, 0x7fffffff, v%d' % (VD + k, VD + k))
        a('v_add_u32 v%d, 0x10000, v%d' % (VE + k, VD + k))
        a('v_and_b32 v%d, 0xffff, v%d' % (VD + k, VD + k))
        a('v_lshrrev_b32 v%d, 17, v%d' % (VE + k, VE + k))
    scan4(VE)
    for k in range(4):
        if k:
            a('v_add_u32 v%d, s%d, v%d' % (VE + k, sNT, VE + k))
        a('v_add_u32 v%d, v%d, v%d' % (VD + k, VD + k, F12))
        a('v_readlane_b32 s%d, v%d, 63' % (sNT, VE + k))
        a('v_sub_u32 v%d, v%d, v%d' % (VD + k, VD + k, VE + k))
        a('v_mul_lo_u32 v%d, v%d, 12' % (VD + k, VD + k))
    a('v_mul_u32_u24 v%d, 12, v%d' % (F12, LANE))
    a('s_mov_b32 s%d, 0' % sF)
    a('s_mov_b32 s%d, 0' % sE)
    a('s_mov_b32 s%d, 0' % sDL)
    a('s_movk_i32 s%d, -64' % sI)
    a('Lk2_sl:')
    a('s_cmp_ge_u32 s%d, s%d' % (sF, sNT))
    a('s_cbranch_scc1 Lk2_sd')
    a('v_add_u32 v%d, s%d, v%d' % (ADDR, sDL, F12))
    a('s_sub_u32 s%d, s%d, s%d' % (sP, sE, sF))
    a('s_cmp_ge_u32 s%d, 64' % sP)
    a('s_cbranch_scc1 Lfd')
    a('Lfl:')
    a('v_readlane_b32 s%d, v%d, s%d' % (sDL, VD, sI))
    a('v_readlane_b32 s%d, v%d, s%d' % (sE, VE, sI))
    a('s_add_u32 s%d, s%d, 1' % (sI, sI))
    a('s_cbranch_scc0 Lfc')
    a('s_mov_b64 exec, -1')
    for k in range(3):
        a('v_mov_b32 v%d, v%d' % (VE + k, VE + k + 1))
        a('v_mov_b32 v%d, v%d' % (VD + k, VD + k + 1))
    a('v_mov_b32 v%d, -1' % (VE + 3))
    a('v_bfrev_b32 v%d, 1' % (VD + 3))
    a('s_movk_i32 s%d, -64' % sI)
    a('Lfc:')
    a('s_lshl_b64 exec, -1, s%d' % sP)
    a('v_add_u32 v%d, s%d, v%d' % (ADDR, sDL, F12))
    a('s_sub_u32 s%d, s%d, s%d' % (sP, sE, sF))
    a('s_cmp_lt_u32 s%d, 64' % sP)
    a('s_cbranch_scc1 Lfl')
    a('s_mov_b64 exec, -1')
    a('Lfd:')
    a('s_add_u32 s%d, s%d, 64' % (sF, sF))
    a('v_add_u32 v%d, 768, v%d' % (F12, F12))
    a('buffer_load_dwordx3 %s, v%d, %s, 0 offen %s' % (vr(REC, 3), ADDR, sr(S_WS, 4), HO))
    a('s_mov_b32 s%d, 0' % sSUB)
    a('s_waitcnt vmcnt(0)')
    a('Lk2_s2:')
    a('v_cmp_gt_i32 %s, 0, v%d' % (sr(sMK, 2), REC + 1))
    a('v_ashrrev_i32 v%d, 31, v%d' % (TM, REC + 1))
    a('v_and_b32 v%d, v%d, v%d' % (REC, REC, TM))
    a('v_and_b32 v%d, s%d, v%d' % (IA, sIDM, REC))
    a('v_and_b32 v%d, s%d, v%d' % (IB, sIDM, REC))
    a('v_lshrrev_b32 v%d, 16, v%d' % (A16[0], REC))
    a('v_and_b32 v%d, s%d, v%d' % (A16[0], sA16, A16[0]))
    a('v_and_b32 v%d, s%d, v%d' % (ANG[0], sHI, REC + 1))
    a('v_permlane32_swap_b32 v%d, v%d' % (IA, IB))
    addrs(0)
    a('ds_read_b32 v%d, v%d offset:%d' % (CV, A4B, 3 * PL))
    a('ds_read_b128 %s, v%d offset:%d' % (vr(RBF, 4), A16[0], RBF0))
    a('s_waitcnt lgkmcnt(0)')
    a('v_cmp_gt_i32 vcc, 0, v%d' % CV)
    a('s_and_b64 %s, %s, vcc' % (sr(sMK, 2), sr(sMK, 2)))
    a('s_cbranch_scc0 Lk2_s3')
    gathers(0)
    cosines(0)
    for l in range(3):
        sbf(l)
        gmf(l)
    a('s_waitcnt vmcnt(0)')
    mdown(0)
    for d in range(16):
        a('v_mul_f32 v%d, 0x47800000, v%d' % (GATE + d, GATE + d))
        a('v_mul_f32 v%d, v%d, v%d' % (MD + d, MD + d, GATE + d))
    a('s_mov_b64 exec, %s' % sr(sMK, 2))
    for j in range(8):
        a('v_cvt_pk_bf16_f32 v%d, v%d, v%d' % (MD + 2 * j, MD + 2 * j, MD + 2 * j + 1))
        b, o = plane(j)
        a('ds_pk_add_bf16 v%d, v%d offset:%d' % (b, MD + 2 * j, o))
    a('s_mov_b64 exec, -1')
    a('Lk2_s3:')
    a('v_mov_b32 v%d, v%d' % (REC, REC + 2))
    a('v_lshlrev_b32 v%d, 16, v%d' % (REC + 1, REC + 1))
    a('s_xor_b32 s%d, s%d, 1' % (sSUB, sSUB))
    a('s_cbranch_scc1 Lk2_s2')
    a('s_branch Lk2_sl')
    a.fence()
    a('Lk2_sd:')
    a('s_mov_b32 s%d, 1' % sPASS)
    epi_loads()
    a('s_waitcnt vmcnt(0)')
    a('s_branch Lk2_epi')
    a.fence()
    a('Lk2_fb:')
    a('s_mov_b32 s%d, 1' % sMODE)
    if hk:
        done_wait(done_load())
    dist_loads()
    img_load(0, 5, AG, RA)
    a('s_waitcnt vmcnt(0)')
    for q in range(NQ):
        rbf_batch(q)
    a('s_branch Lk2_init')
    a.fence()
    if '1' in P['wpos']:
        a('Lk2_wl:')
        a('buffer_load_dword v2, v155, %s, s91 offen' % sr(S_MR, 4))
        a('s_add_u32 s90, s90, %d' % (3 * P['mw2']))
        a('s_add_u32 s91, s91, %d' % (51200 * 128))
        a('s_cmp_ge_u32 s91, %d' % (4 * 51200 * 128))
        a('s_cselect_b32 s90, -1, s90')
        a('s_branch Lk2_wc')
        a.fence()
    a('Lk2_el:')
    epi_loads()
    a('s_branch Lk2_lc')
    a.fence()
    a('Lk2_end:')
    a('s_endpgm')
    a.fence()
    return LDS
```

```python
class Hooks:
    pass


def prod(a, P, G):
    vr, sr, srd, scan64 = G['vr'], G['sr'], G['srd'], G['scan64']
    E, BINE, TS, REC0, DESC0, FLG0 = G['E'], G['BINE'], G['TS'], G['REC0'], G['DESC0'], G['FLG0']
    fused = P['fuse']
    CNTB, SCR, CNTA = 0, 4096, 4224
    DATB, DATA = 4224, 8320
    ARR = DATB + TS
    S_IN, S_OUT, S_ANG, S_REC, S_DSC, S_T0, S_REC2, S_DBG = 24, 28, 32, 80, 64, 44, 76, 92
    sMB, sMC, sNEG, sHI, sW = 40, 41, 42, 43, 69
    sREM = 70
    sBASE, sPREP, sVB, sUM = 72, 73, 74, 75
    sT, sU = 90, 91
    LANE, O16, O8, SIX = 1, 2, 3, 12
    ONE, VZ, VARR, VSG = 92 + 140, 8, 9, 10
    TP = 4
    ANG, ANGR, TS_ = 14, 26, 28
    NANG = 6
    INB, OUTB, INR, OUTR, INA, OUTA = 36, 84, 132, 134, 136, 184
    IMGB = 12
    DSC = 248
    NR = 12
    ld, st = P['ld1'], 'sc1' if fused else P['st1']

    def stamp(i):
        G['stamp'](a, i, S_DBG, 96, 254)

    a('s_cmp_ge_u32 s2, 256')
    a('s_cbranch_scc1 %s' % ('Lk2_end' if fused else 'Lk1_end'))
    a('s_load_dwordx4 s[4:7], s[0:1], 8')
    a('s_load_dwordx2 s[8:9], s[0:1], 32')
    a('s_load_dwordx4 s[12:15], s[0:1], 96')
    a('s_load_dwordx2 s[10:11], s[0:1], 0')
    a('s_load_dwordx8 s[16:23], s[0:1], 56')
    if P['cpf'] & 1:
        G['code_prefetch'](a, 'a', 84, INR)
    a('v_lshlrev_b32 v%d, 4, v0' % O16)
    a('v_lshlrev_b32 v%d, 3, v0' % O8)
    a('v_mov_b32 v%d, 1' % ONE)
    a('v_mov_b32 v%d, 6' % SIX)
    a('v_lshrrev_b32 v4, 6, v0')
    a('v_readfirstlane_b32 s%d, v4' % sW)
    a('v_mov_b32 v4, 0')
    a('v_mov_b32 v5, 0')
    a('v_and_b32 v6, 8, v%d' % O8)
    a('v_add_u32 v6, %d, v6' % ARR)
    a('ds_write_b64 v%d, v[4:5] offset:%d' % (O8, CNTB))
    a('ds_write_b64 v%d, v[4:5] offset:%d' % (O8, CNTA))
    a('ds_write_b64 v6, v[4:5]')
    a('s_mov_b32 s%d, %d' % (sMB, -(-2**32 // BINE)))
    a('s_mov_b32 s%d, 21400' % sMC)
    a('s_mov_b32 s%d, %d' % (sNEG, -BINE))
    a('s_mov_b32 s%d, 0xffff0000' % sHI)
    a('s_mov_b32 s%d, 0x80008000' % sVB)
    a('s_mov_b32 s%d, 0xff000' % sUM)
    a('s_mul_i32 s%d, s2, 3125' % sT)
    a('s_add_u32 s%d, s%d, 3125' % (sU, sT))
    a('s_lshr_b32 s%d, s%d, 2' % (sT, sT))
    a('s_lshr_b32 s%d, s%d, 2' % (sU, sU))
    a('s_sub_u32 s3, s%d, s%d' % (sU, sT))
    a('s_lshl_b32 s%d, s%d, 7' % (sU, sT))
    a('s_lshl_b32 s%d, s%d, 8' % (sT, sT))
    a('s_sub_u32 s%d, s3, 768' % sBASE)
    a('s_lshl_b32 s%d, s%d, 5' % (sBASE, sBASE))
    a('v_cmp_gt_u32 %s, s%d, v0' % (sr(sREM, 2), sBASE))
    a('v_and_b32 v%d, 63, v0' % LANE)
    a('v_lshlrev_b32 v27, 4, v%d' % LANE)
    a('s_lshl_b32 s%d, s2, 4' % sPREP)
    a('s_or_b32 s%d, s%d, s%d' % (sPREP, sPREP, sW))
    a('s_waitcnt lgkmcnt(0)')
    srd(a, S_IN, 4, 0, 's%d' % sT)
    srd(a, S_OUT, 6, 0, 's%d' % sT)
    srd(a, S_ANG, 8, 0, 's%d' % sU)
    a('s_lshl_b32 s%d, s3, 8' % (S_IN + 2))
    a('s_lshl_b32 s%d, s3, 8' % (S_OUT + 2))
    a('s_lshl_b32 s%d, s3, 7' % (S_ANG + 2))
    G['stamp_init'](a, S_DBG, 14, 0, sW)
    stamp(0)
    a('s_cmp_lg_u32 s%d, 0' % sPREP)
    a('s_cbranch_scc1 Lk1_main')
    a.nocount = True
    srd(a, S_T0, 18, 768)
    srd(a, S_T0 + 4, 20, 512)
    srd(a, S_T0 + 8, 22, 512)
    srd(a, S_T0 + 12, 16, 256)
    srd(a, S_T0 + 16, 10, E * 32)
    for i in range(4):
        a('buffer_load_dwordx4 %s, v27, %s, 0 offen' % (vr(76 + 4 * i, 4), sr(S_T0 + 4 * i, 4)))
    a('v_mul_u32_u24 v4, 99984, v%d' % LANE)
    for i in range(4):
        a('s_mov_b32 s%d, %d' % (sT, i * 64 * 99984))
        a('buffer_load_dwordx4 %s, v4, %s, s%d offen' % (vr(92 + 4 * i, 4), sr(S_T0 + 16, 4), sT))
    a.nocount = False
    a('Lk1_main:')
    a('s_mul_i32 s%d, s2, %d' % (sU, 2 * TS))
    a('s_add_u32 s%d, s%d, %d' % (sU, sU, REC0))
    srd(a, S_REC, 14, 0, 's%d' % sU)
    a('s_add_u32 s%d, s%d, %d' % (sU, sU, TS))
    srd(a, S_REC2, 14, 0, 's%d' % sU)
    a('s_lshl_b32 s%d, s2, 13' % sU)
    a('s_add_u32 s%d, s%d, %d' % (sU, sU, DESC0))
    srd(a, S_DSC, 14, 8192, 's%d' % sU)

    marks = {}
    packed = [0]

    def regs(j):
        return ((INA, OUTA) if j < NR else (INB, OUTB)), 4 * (j % NR), ANG + 2 * (j % NANG)

    def loads(j):
        if j == 2 * NR:
            a('v_lshlrev_b32 v10, 2, v0')
            a('s_mov_b32 s%d, %d' % (sT, j * 8192))
            a('buffer_load_dwordx2 %s, v%d, %s, s%d offen %s' % (vr(OUTR, 2), O8, sr(S_OUT, 4), sT, ld))
            a('buffer_load_dwordx2 %s, v%d, %s, s%d offen %s' % (vr(INR, 2), O8, sr(S_IN, 4), sT, ld))
            a('s_mov_b32 s%d, %d' % (sT, j * 4096))
            a('buffer_load_dword v%d, v10, %s, s%d offen %s' % (ANGR, sr(S_ANG, 4), sT, ld))
        else:
            assert j - packed[0] < NANG
            (rin, rout), o, rang = regs(j)
            a('s_mov_b32 s%d, %d' % (sT, j * 8192))
            a('buffer_load_dwordx4 %s, v%d, %s, s%d offen %s' % (vr(rout + o, 4), O16, sr(S_OUT, 4), sT, ld))
            a('buffer_load_dwordx4 %s, v%d, %s, s%d offen %s' % (vr(rin + o, 4), O16, sr(S_IN, 4), sT, ld))
            a('s_mov_b32 s%d, %d' % (sT, j * 4096))
            a('buffer_load_dwordx2 %s, v%d, %s, s%d offen %s' % (vr(rang, 2), O8, sr(S_ANG, 4), sT, ld))
        marks[j] = a.mark()

    def pack2(items, rg, cnt):
        a('v_or_b32 v%d, s%d, v%d' % (rg, sVB, rg))
        for e, (ri, ro) in enumerate(items):
            a('v_mul_hi_u32_u24 v%d, s%d, v%d' % (TP + e, sMB, ro))
            a('v_and_b32 v%d, s%d, v%d' % (TP + 2 + e, sUM, ri))
        for e, (ri, ro) in enumerate(items):
            a('v_mul_hi_u32_u24 v%d, s%d, v%d' % (TP + 2 + e, sMC, TP + 2 + e))
            a('v_mad_i32_i24 v%d, v%d, s%d, v%d' % (ro, TP + e, sNEG, ro))
        for e, (ri, ro) in enumerate(items):
            a('v_lshl_add_u32 v%d, v%d, 2, v%d' % (TP + e, TP + e, TP + 2 + e))
            a('v_lshl_or_b32 v%d, v%d, 20, v%d' % (ri, ro, ri))
        for e, (ri, ro) in enumerate(items):
            a('v_lshlrev_b32 v%d, 2, v%d' % (TP + e, TP + e))
        for e, (ri, ro) in enumerate(items):
            a('ds_add_u32 v%d, v%d offset:%d' % (TP + e, ONE, cnt))
            if e:
                a('v_and_or_b32 v%d, v%d, s%d, v%d' % (ro, rg, sHI, TP + e))
            else:
                a('v_lshl_or_b32 v%d, v%d, 16, v%d' % (ro, rg, TP + e))

    def pack(j):
        a.wait_vm(marks[j])
        packed[0] = j + 1
        if j == 2 * NR:
            a('s_mov_b64 exec, %s' % sr(sREM, 2))
            pack2([(INR, OUTR), (INR + 1, OUTR + 1)], ANGR, CNTB)
            a('s_mov_b64 exec, -1')
            return
        (rin, rout), o, rang = regs(j)
        for h in range(2):
            pack2([(rin + o + 2 * h + e, rout + o + 2 * h + e) for e in range(2)], rang + h, CNTA if j < NR else CNTB)

    def scan(sub, cnt, data, srec, mid1=None, mid2=None):
        N, PA, EN, ST, X = 4, 28, 236, 240, 10
        AD = 244
        a('v_and_b32 v%d, 0xff0, v%d' % (AD, O16))
        a('s_waitcnt lgkmcnt(0)')
        a('s_barrier')
        a('ds_read_b128 %s, v%d offset:%d' % (vr(N, 4), AD, cnt))
        m = a.mark()
        if mid1:
            mid1()
        a('s_lshl_b32 s%d, s%d, 3' % (sT, sW))
        a('v_mov_b32 v8, s%d' % sT)
        a('v_and_b32 v9, 24, v%d' % O8)
        a.wait_ds(m)
        for k in range(4):
            a('v_add_u32 v%d, 1, v%d' % (PA + k, N + k))
        for k in range(4):
            a('v_lshrrev_b32 v%d, 1, v%d' % (PA + k, PA + k))
        for h in range(2):
            a('v_lshl_or_b32 v%d, v%d, 16, v%d' % (X + h, PA + 2 * h + 1, PA + 2 * h))
        for c, rm in (('row_shr:1', 15), ('row_shr:2', 15), ('row_shr:4', 15), ('row_shr:8', 15), ('row_bcast:15', 10), ('row_bcast:31', 12)):
            for h in range(2):
                a('v_add_u32_dpp v%d, v%d, v%d %s row_mask:0x%x bank_mask:0xf' % (X + h, X + h, X + h, c, rm))
        a('s_mov_b32 exec_lo, 0')
        a('s_mov_b32 exec_hi, 0x80000000')
        a('ds_write_b64 v8, %s offset:%d' % (vr(X, 2), SCR))
        a('s_mov_b64 exec, -1')
        a('s_waitcnt lgkmcnt(0)')
        a('s_barrier')
        a('ds_read_b64 v[32:33], v9 offset:%d' % SCR)
        m = a.mark()
        if mid2:
            mid2()
        a('s_and_b32 s%d, s%d, 3' % (sU, sW))
        a.wait_ds(m)
        a('v_mov_b32 v8, v32')
        a('v_mov_b32 v9, v33')
        for c in ('row_shr:1', 'row_shr:2'):
            for h in range(2):
                a('v_add_u32_dpp v%d, v%d, v%d %s row_mask:0xf bank_mask:0xf' % (32 + h, 32 + h, 32 + h, c))
        a('v_sub_u32 v8, v32, v8')
        a('v_sub_u32 v9, v33, v9')
        a('v_readlane_b32 s16, v32, 3')
        a('v_readlane_b32 s17, v33, 3')
        a('v_readlane_b32 s18, v8, s%d' % sU)
        a('v_readlane_b32 s19, v9, s%d' % sU)
        a('s_lshl_b32 s84, s16, 16')
        a('s_add_u32 s18, s18, s84')
        a('s_add_u32 s84, s84, s16')
        a('s_lshr_b32 s84, s84, 16')
        a('s_mul_i32 s85, s84, 0x10001')
        a('s_lshl_b32 s86, s17, 16')
        a('s_add_u32 s85, s85, s86')
        a('s_add_u32 s19, s19, s85')
        a('s_add_u32 s85, s85, s17')
        a('s_lshr_b32 s85, s85, 16')
        a('s_mul_i32 s%d, s85, 12' % (srec + 2))
        a('s_cmp_lt_u32 s%d, 4' % sW)
        a('s_cselect_b64 s[84:85], -1, 0')
        a('s_movk_i32 s%d, %d' % (sT, data))
        for h in range(2):
            a('v_add_u32 v%d, s%d, v%d' % (X + h, 18 + h, X + h))
        for h in range(2):
            a('v_and_b32 v%d, 0xffff, v%d' % (EN + 2 * h, X + h))
            a('v_lshrrev_b32 v%d, 16, v%d' % (EN + 2 * h + 1, X + h))
        for k in range(4):
            a('v_sub_u32 v%d, v%d, v%d' % (ST + k, EN + k, PA + k))
            a('v_lshl_or_b32 v%d, v%d, 16, v%d' % (PA + k, N + k, EN + k))
            a('v_mad_u32_u24 v%d, v%d, 12, s%d' % (ST + k, ST + k, sT))
        a('s_mov_b64 exec, s[84:85]')
        a('ds_write_b128 v%d, %s offset:%d' % (AD, vr(ST, 4), cnt))
        if fused:
            if sub:
                a('s_andn2_b64 exec, -1, s[84:85]')
            for k in range(4):
                a('v_or_b32 v%d, 0x80000000, v%d' % (DSC + k, PA + k))
        else:
            a('s_movk_i32 s%d, %d' % (sT, sub * 4096))
            a('buffer_store_dwordx4 %s, v%d, %s, s%d offen %s' % (vr(PA, 4), AD, sr(S_DSC, 4), sT, st))
        md = a.mark()
        a('s_mov_b64 exec, -1')
        a('s_andn2_b64 exec, -1, s[84:85]')
        for k in range(2):
            a('v_mov_b32 v%d, v%d' % (N + k, N + 2 + k))
            a('v_mov_b32 v%d, v%d' % (EN + k, EN + 2 + k))
        a('s_mov_b64 exec, -1')
        a('s_and_b32 s%d, s2, 7' % sT)
        a('s_lshl1_add_u32 s%d, s%d, %d' % (sT, sT, 3136 + sub))
        a('s_and_b32 s%d, s%d, 4' % (sU, sW))
        a('s_lshl3_add_u32 s%d, s%d, s%d' % (sT, sU, sT))
        a('s_lshl_b32 s%d, s%d, 8' % (sT, sT))
        a('v_mov_b32 v8, 0')
        a('v_mov_b32 v9, s%d' % sT)
        a('v_add_u32 v10, 4096, v9')
        for k in range(2):
            a('v_mul_u32_u24 v%d, 12, v%d' % (EN + k, EN + k))
            a('v_and_b32 v%d, 1, v%d' % (N + k, N + k))
            a('v_cmpx_eq_u32 vcc, 1, v%d' % (N + k))
            a('ds_write_b16 v%d, v8 offset:%d' % (EN + k, data - 8))
            a('ds_write_b32 v%d, v%d offset:%d' % (EN + k, 9 + k, data - 4))
            a('s_mov_b64 exec, -1')
        a('s_waitcnt lgkmcnt(0)')
        a('s_barrier')
        return md

    def rtn(t, ro, cnt):
        a('v_and_b32 v%d, 0xffff, v%d' % (t, ro))
        a('ds_add_rtn_u32 v%d, v%d, v%d offset:%d' % (t, t, SIX, cnt))

    def put(t, ri, ro, e):
        u = 8 + (e & 1)
        a('v_and_b32 v%d, 2, v%d' % (u, t))
        a('v_add_u32 v%d, v%d, v%d' % (t, t, u))
        a('v_mad_i32_i24 v%d, v%d, -5, v%d' % (u, u, t))
        a('ds_write_b32 v%d, v%d' % (t, ri))
        a('ds_write_b16_d16_hi v%d, v%d offset:6' % (u, ro))

    def scatter(rin, rout, cnt, rem, between):
        Gs = 4
        ng = 4 * NR // Gs
        mk = {}
        if rem:
            a('s_mov_b64 exec, %s' % sr(sREM, 2))
            rtn(10, OUTR, cnt)
            rtn(11, OUTR + 1, cnt)
            a('s_mov_b64 exec, -1')
        for e in range(Gs):
            rtn(TS_ + e, rout + e, cnt)
        mk[0] = a.mark()
        for g in range(ng):
            cur, nxt = TS_ + (g & 1) * Gs, TS_ + ((g + 1) & 1) * Gs
            if g + 1 < ng:
                for e in range(Gs):
                    rtn(nxt + e, rout + (g + 1) * Gs + e, cnt)
                mk[g + 1] = a.mark()
            a.wait_ds(mk[g])
            for e in range(Gs):
                put(cur + e, rin + g * Gs + e, rout + g * Gs + e, e)
            if rem and g == 0:
                a('s_mov_b64 exec, %s' % sr(sREM, 2))
                put(10, INR, OUTR, 0)
                put(11, INR + 1, OUTR + 1, 1)
                a('s_mov_b64 exec, -1')
            between(g)

    rd = {}

    def readout(base, data, t):
        a('v_add_u32 v%d, %d, v%d' % (t, 7 * 8192, O16))
        a('v_add_u32 v%d, %d, v%d' % (t + 1, 14 * 8192, O16))
        for j in range(20):
            b = (O16, t, t + 1)[j // 7]
            a('ds_read_b128 %s, v%d offset:%d' % (vr(base + 4 * j, 4), b, data + (j % 7) * 8192))
            rd[j] = a.mark()

    def store(base, srec, j, wait=False):
        a('s_mov_b32 s%d, %d' % (sT, j * 8192))
        if wait:
            a.wait_ds(rd[j])
        a('buffer_store_dwordx4 %s, v%d, %s, s%d offen %s' % (vr(base + 4 * j, 4), O16, sr(srec, 4), sT, 'sc1'))
        return a.mark()

    def arrive1(k, t):
        a('v_mov_b32 v%d, %d' % (t, ARR + 4 * k))
        a('v_mov_b32 v%d, 1' % (t + 1))
        a('s_mov_b64 exec, 1')
        a('ds_add_rtn_u32 v%d, v%d, v%d' % (t, t, t + 1))
        a('s_mov_b64 exec, -1')
        return a.mark()

    def flag_addr(t):
        a('s_lshl2_add_u32 s%d, s2, %d' % (sT, FLG0))
        a('v_lshl_add_u32 v%d, v%d, 10, s%d' % (t, LANE, sT))

    def arrive2(k, t, m):
        flag_addr(t + 2)
        a.wait_ds(m)
        a('v_readfirstlane_b32 s%d, v%d' % (sT, t))
        a('s_cmp_eq_u32 s%d, 7' % sT)
        a('s_cselect_b64 exec, 0xff, 0')
        a('global_store_dword v%d, v%d, s[14:15] sc1' % (t + 2, t + 1))
        a('s_mov_b64 exec, -1')

    def publish():
        a('buffer_store_dwordx4 %s, v%d, %s, 0 offen sc1' % (vr(92, 4), O16, sr(S_DSC, 4)))

    LD = P['pld']
    if fused:
        a('s_cmp_lg_u32 s%d, 0' % sW)
        a('s_cbranch_scc1 Lk1_nc')
        a.nocount = True
        for i in range(4):
            a('v_mov_b32 v%d, 0' % (240 + i))
        for i in range(8):
            a('s_movk_i32 s%d, %d' % (sT, 1024 * i))
            a('buffer_store_dwordx4 v[240:243], v%d, %s, s%d offen sc1' % (O16, sr(S_DSC, 4), sT))
        flag_addr(244)
        a('s_mov_b64 exec, 0xff')
        a('global_store_dword v244, v240, s[14:15] sc1')
        a('s_mov_b64 exec, -1')
        a.nocount = False
        a('Lk1_nc:')
    for j in range(LD):
        loads(j)
    a('s_cmp_lg_u32 s%d, 0' % sPREP)
    a('s_barrier')
    a('s_cbranch_scc1 Lk1_noprep')
    a.nocount = True
    nds = a.nds
    G['prep'](a, DATA, S_T0, 3 * LD, LANE, 14, sU, st)
    a.nds = nds
    a.nocount = False
    a('Lk1_noprep:')
    for j in range(NR):
        loads(j + LD)
        pack(j)
        if fused and j == P['atj']:
            a('s_and_b32 s%d, s2, 3' % sT)
            a('s_lshl_b32 s%d, s%d, 6' % (sT, sT))
            a('v_mov_b32 v244, s%d' % sT)
            a('s_cmp_eq_u32 s%d, 0' % sW)
            a('s_cselect_b64 exec, 1, 0')
            a('global_atomic_add v244, v%d, s[12:13] sc1' % ONE)
            a('s_mov_b64 exec, -1')
    stamp(1)
    scan(0, CNTA, DATA, S_REC)
    stamp(2)
    nl, npk = [NR + LD], [NR]

    def do(ops):
        for c in ops:
            if c == 'L' and nl[0] <= 2 * NR:
                loads(nl[0])
                nl[0] += 1
            elif c == 'P' and npk[0] <= 2 * NR:
                pack(npk[0])
                npk[0] += 1

    sched = P['sch8'].split('.')
    do(sched[0])
    scatter(INA, OUTA, CNTA, False, lambda g: do(sched[g + 1]))
    stamp(3)
    while npk[0] <= 2 * NR:
        do('LP')
    stamp(4)
    npre = P['npre'] * 2
    md = scan(1, CNTB, DATB, S_REC2, lambda: readout(INA, DATA, 34), lambda: [store(INA, S_REC, j) for j in range(npre)])
    stamp(5)
    nae = P['nae'] if fused else 20
    todo = list(range(npre, nae))
    ar = {}

    def btw_b(g):
        k = -(-len(todo) // (NR - g)) if g >= P['sg0'] else 0
        for _ in range(k):
            store(INA, S_REC, todo.pop(0))

    scatter(INB, OUTB, CNTB, True, btw_b)
    stamp(6)
    a('s_waitcnt lgkmcnt(0)')
    a('s_barrier')
    readout(IMGB, DATB, 4)
    if fused:
        for k in range(4):
            a('v_mov_b32 v%d, v%d' % (92 + k, DSC + k))
    h = Hooks()
    h.store = lambda j, wait=False: store(IMGB, S_REC2, j, wait)
    h.rest_a = [(lambda j=j: store(INA, S_REC, j)) for j in range(nae, 20)]
    h.arrive1, h.arrive2, h.publish, h.lds = arrive1, arrive2, publish, ARR + 64
    if not fused:
        for j in range(20):
            h.store(j, True)
        stamp(7)
        if P['stamp']:
            a('s_waitcnt vmcnt(0)')
            stamp(8)
        a('Lk1_end:')
        a('s_endpgm')
        a.fence()
    return h
```

```python
import sys, math, struct
from asmlib import Asm

NAME = 'gather_scatter__molecular_angular_gemnet__graph'
E, T = 800000, 12800000
BINE = 3125
TS = 158976
TSP = TS // 12
REC0 = 12288
DESC0 = 0x4F00000
PREP0 = 0x5200000
FLG0 = 0x5300000
WS_BYTES = 268435456

P = dict(ld1='nt', st1='', ldrec='', stout='nt', target=165.0, theta=64, bar=16, stamp=0, force_slow=0, abl=0, idm=0xfffff, goff=0, fpipe=0, ztid=0, spf=44, ns0=6, nrun=1, nlate=0, lt0=0, mpf=0, mpp=4, atj=11, nae=20, nsx=2, slp=16, sg0=0, fuse=0, p8=0, pld=4, sch8='.L.LP.LP.LP.LP.LP.LP.LP.LP.P.P.P', fr=9, na=2, bhd=0, sch='.L.L.L.L.LP.P.P.P', early=1, stag=1, stb_=1, mw1=1, mw2=8, k1w=0, k1p=1, imgl=1, pfn=0, ppos='uz', sta='sc1', stb='sc1', nfull=10, wpos='kosw', lead=9, lead0=6, npipe=13, hp=4, scw=3, trg=1, prio=0, cpf=1, dv=4, warm=1, mbar=1, sdwa=1, npre=2, only1=0, stw=0, k2x=0, rd2=1, l2x=0, recm=0, ldg='')
for a in sys.argv[2:]:
    k, v = a.split('=')
    P[k] = type(P[k])(v.replace('+',' ')) if not isinstance(P[k], int) else int(v, 0)


def f2u(x):
    return struct.unpack('<I', struct.pack('<f', x))[0]


def vr(a, n):
    return 'v[%d:%d]' % (a, a + n - 1)


def sr(a, n):
    return 's[%d:%d]' % (a, a + n - 1)


def srd(a, d, ptr, nbytes, off=None, stride=0):
    if off is None:
        a('s_mov_b32 s%d, s%d' % (d, ptr))
        a('s_mov_b32 s%d, s%d' % (d + 1, ptr + 1))
    else:
        a('s_add_u32 s%d, s%d, %s' % (d, ptr, off))
        a('s_addc_u32 s%d, s%d, 0' % (d + 1, ptr + 1))
    if stride:
        a('s_or_b32 s%d, s%d, 0x%x' % (d + 1, d + 1, stride << 16))
    a('s_mov_b32 s%d, %d' % (d + 2, nbytes))
    a('s_mov_b32 s%d, 0x20000' % (d + 3))


def scan64(a, v, op='v_add_u32'):
    for c in ('row_shr:1', 'row_shr:2', 'row_shr:4', 'row_shr:8'):
        a('%s_dpp v%d, v%d, v%d %s row_mask:0xf bank_mask:0xf' % (op, v, v, v, c))
    a('%s_dpp v%d, v%d, v%d row_bcast:15 row_mask:0xa bank_mask:0xf' % (op, v, v, v))
    a('%s_dpp v%d, v%d, v%d row_bcast:31 row_mask:0xc bank_mask:0xf' % (op, v, v, v))


def code_prefetch(a, tag, st, vt, nwg=16):
    a('s_cmp_ge_u32 s2, %d' % nwg)
    a('s_cbranch_scc1 Lcpf%s' % tag)
    a('s_getpc_b64 %s' % sr(st, 2))
    a('Lcpb%s:' % tag)
    a('v_lshlrev_b32 v%d, 7, v0' % vt)
    a('v_mov_b32 v%d, 0' % (vt + 1))
    a('v_cmp_gt_u32 vcc, Lk2_end-Lcpb%s, v%d' % (tag, vt))
    a('v_lshl_add_u64 %s, %s, 0, %s' % (vr(vt, 2), vr(vt, 2), sr(st, 2)))
    a('s_and_b64 exec, exec, vcc')
    a('s_cbranch_execz Lcpe%s' % tag)
    a.nocount = True
    a('global_load_dword v%d, %s, off' % (vt, vr(vt, 2)))
    a.nocount = False
    a('Lcpe%s:' % tag)
    a('s_mov_b64 exec, -1')
    a('Lcpf%s:' % tag)


STAMP0 = 0x6000000


def stamp_init(a, sdbg, wsptr, kern, sw):
    if not P['stamp']:
        return
    a('s_lshl_b32 s100, s2, 7')
    a('s_add_u32 s100, s100, %d' % (STAMP0 + kern * 32768))
    srd(a, sdbg, wsptr, 128, 's100')
    stamp.sel = sw


def stamp(a, idx, sdbg, tmp_s, tmp_v, tmp_w=None):
    tmp_w = tmp_w or tmp_v + 1
    if not P['stamp']:
        return
    lab = 'Lst%d' % stamp.n
    stamp.n += 1
    a.nocount = True
    a('s_cmp_lg_u32 s%d, %d' % (stamp.sel, P['stw']))
    a('s_cbranch_scc1 %s' % lab)
    a('s_memrealtime %s' % sr(tmp_s, 2))
    a('s_waitcnt lgkmcnt(0)')
    a('v_mov_b32 v%d, s%d' % (tmp_v, tmp_s))
    a('v_mov_b32 v%d, %d' % (tmp_w, idx * 4))
    a('buffer_store_dword v%d, v%d, %s, 0 offen' % (tmp_v, tmp_w, sr(sdbg, 4)))
    a('s_memtime %s' % sr(tmp_s, 2))
    a('s_waitcnt lgkmcnt(0)')
    a('v_mov_b32 v%d, s%d' % (tmp_v, tmp_s))
    a('buffer_store_dword v%d, v%d, %s, 0 offen offset:64' % (tmp_v, tmp_w, sr(sdbg, 4)))
    a(lab + ':')
    a.nocount = False


stamp.n = 0
stamp.sel = 0


def k1(a):
    CNTB, SCR, CNTA = 0, 4096, 4224
    DATB, DATA = 4224, 8320
    S_IN, S_OUT, S_ANG, S_REC, S_DSC, S_T0, S_DBG = 24, 28, 32, 36, 40, 44, 92
    S_REC2 = 80
    sMB, sMC, sNEG, sHI, sT, sW = 64, 65, 66, 67, 68, 69
    sREM = 70
    sBASE, sPREP, sVB, sUM = 72, 73, 74, 75
    O16, O8, ONE, SIX = 1, 2, 3, 12
    TP = 4
    TS_ = 22
    ANG = 14
    ANGR = 13
    INA, OUTA, INB, OUTB, INR, OUTR = 28, 52, 76, 100, 124, 125
    ld = P['ld1']
    st = P['st1']

    a('s_cmp_ge_u32 s2, 256')
    a('s_cbranch_scc1 Lk1_end')
    a('s_load_dwordx4 s[4:7], s[0:1], 8')
    a('s_load_dwordx2 s[8:9], s[0:1], 32')
    a('s_load_dwordx4 s[76:79], s[0:1], 96')
    a('s_load_dwordx2 s[12:13], s[0:1], 0')
    a('s_load_dwordx8 s[16:23], s[0:1], 56')
    if P['cpf'] & 1:
        code_prefetch(a, 'a', 84, 124)
    a('v_lshlrev_b32 v%d, 4, v0' % O16)
    a('v_lshlrev_b32 v%d, 3, v0' % O8)
    a('v_mov_b32 v%d, 1' % ONE)
    a('v_mov_b32 v%d, 6' % SIX)
    a('v_lshrrev_b32 v4, 6, v0')
    a('v_readfirstlane_b32 s%d, v4' % sW)
    a('v_mov_b32 v4, 0')
    a('v_lshlrev_b32 v5, 2, v0')
    a('ds_write_b32 v5, v4 offset:%d' % CNTB)
    a('ds_write_b32 v5, v4 offset:%d' % CNTA)
    a('s_mov_b32 s%d, %d' % (sMB, -(-2**32 // BINE)))
    a('s_mov_b32 s%d, 21400' % sMC)
    a('s_mov_b32 s%d, %d' % (sNEG, -BINE))
    a('s_mov_b32 s%d, 0xffff0000' % sHI)
    a('s_mov_b32 s%d, 0x80008000' % sVB)
    a('s_mov_b32 s%d, 0xff000' % sUM)
    a('s_mul_i32 s14, s2, 3125')
    a('s_add_u32 s15, s14, 3125')
    a('s_lshr_b32 s14, s14, 2')
    a('s_lshr_b32 s15, s15, 2')
    a('s_sub_u32 s3, s15, s14')
    a('s_lshl_b32 s15, s14, 7')
    a('s_lshl_b32 s14, s14, 8')
    a('s_sub_u32 s%d, s3, 768' % sT)
    a('s_lshl_b32 s%d, s%d, 6' % (sT, sT))
    a('v_cmp_gt_u32 %s, s%d, v0' % (sr(sREM, 2), sT))
    a('v_and_b32 v13, 63, v0')
    a('v_lshlrev_b32 v27, 4, v13')
    a('s_lshl_b32 s%d, s2, 4' % sPREP)
    a('s_or_b32 s%d, s%d, s%d' % (sPREP, sPREP, sW))
    a('s_waitcnt lgkmcnt(0)')
    srd(a, S_IN, 4, 0, 's14')
    srd(a, S_OUT, 6, 0, 's14')
    srd(a, S_ANG, 8, 0, 's15')
    a('s_lshl_b32 s%d, s3, 8' % (S_IN + 2))
    a('s_lshl_b32 s%d, s3, 8' % (S_OUT + 2))
    a('s_lshl_b32 s%d, s3, 7' % (S_ANG + 2))
    stamp_init(a, S_DBG, 78, 0, sW)
    stamp(a, 0, S_DBG, 96, 126)
    a('s_cmp_lg_u32 s%d, 0' % sPREP)
    a('s_cbranch_scc1 Lk1_main')
    a.nocount = True
    srd(a, S_T0, 18, 768)
    srd(a, S_T0 + 4, 20, 512)
    srd(a, S_T0 + 8, 22, 512)
    srd(a, S_T0 + 12, 16, 256)
    srd(a, S_T0 + 16, 12, E * 32)
    for i in range(4):
        a('buffer_load_dwordx4 %s, v27, %s, 0 offen' % (vr(76 + 4 * i, 4), sr(S_T0 + 4 * i, 4)))
    a('v_mul_u32_u24 v4, 99984, v13')
    for i in range(4):
        a('s_mov_b32 s%d, %d' % (sT, i * 64 * 99984))
        a('buffer_load_dwordx4 %s, v4, %s, s%d offen' % (vr(92 + 4 * i, 4), sr(S_T0 + 16, 4), sT))
    a.nocount = False
    a('Lk1_main:')
    a('s_lshl_b32 s14, s2, 1')
    a('s_mul_i32 s15, s14, %d' % TS)
    a('s_add_u32 s15, s15, %d' % REC0)
    srd(a, S_REC, 78, 0, 's15')
    a('s_add_u32 s15, s15, %d' % TS)
    srd(a, S_REC2, 78, 0, 's15')
    a('s_lshl_b32 s15, s14, 12')
    a('s_add_u32 s15, s15, %d' % DESC0)
    srd(a, S_DSC, 78, 8192, 's15')

    marks = {}

    def regs(j):
        return ((INA, OUTA) if j < 6 else (INB, OUTB)), 4 * (j % 6), (ANG + 2 * (j % 4) if j < 10 else (INA, OUTA)[j - 10])

    def loads(j):
        if j == 12:
            a('v_lshlrev_b32 v10, 2, v0')
            a('v_lshlrev_b32 v11, 1, v0')
            a('s_mov_b32 s%d, %d' % (sT, 12 * 16384))
            a('buffer_load_dword v%d, v10, %s, s%d offen %s' % (OUTR, sr(S_OUT, 4), sT, ld))
            a('buffer_load_dword v%d, v10, %s, s%d offen %s' % (INR, sr(S_IN, 4), sT, ld))
            a('s_mov_b32 s%d, %d' % (sT, 12 * 8192))
            a('buffer_load_ushort v%d, v11, %s, s%d offen %s' % (ANGR, sr(S_ANG, 4), sT, ld))
        else:
            (rin, rout), o, rang = regs(j)
            a('s_mov_b32 s%d, %d' % (sT, j * 16384))
            a('buffer_load_dwordx4 %s, v%d, %s, s%d offen %s' % (vr(rout + o, 4), O16, sr(S_OUT, 4), sT, ld))
            a('buffer_load_dwordx4 %s, v%d, %s, s%d offen %s' % (vr(rin + o, 4), O16, sr(S_IN, 4), sT, ld))
            a('s_mov_b32 s%d, %d' % (sT, j * 8192))
            a('buffer_load_dwordx2 %s, v%d, %s, s%d offen %s' % (vr(rang, 2), O8, sr(S_ANG, 4), sT, ld))
        marks[j] = a.mark()

    def pack2(items, rg, cnt):
        a('v_or_b32 v%d, s%d, v%d' % (rg, sVB, rg))
        for e, (ri, ro) in enumerate(items):
            a('v_mul_hi_u32_u24 v%d, s%d, v%d' % (TP + e, sMB, ro))
            a('v_and_b32 v%d, s%d, v%d' % (TP + 2 + e, sUM, ri))
        for e, (ri, ro) in enumerate(items):
            a('v_mul_hi_u32_u24 v%d, s%d, v%d' % (TP + 2 + e, sMC, TP + 2 + e))
            a('v_mad_i32_i24 v%d, v%d, s%d, v%d' % (ro, TP + e, sNEG, ro))
        for e, (ri, ro) in enumerate(items):
            a('v_lshl_add_u32 v%d, v%d, 8, v%d' % (TP + e, TP + 2 + e, TP + e))
            a('v_lshl_or_b32 v%d, v%d, 20, v%d' % (ri, ro, ri))
        for e, (ri, ro) in enumerate(items):
            a('v_lshlrev_b32 v%d, 2, v%d' % (TP + e, TP + e))
        for e, (ri, ro) in enumerate(items):
            a('ds_add_u32 v%d, v%d offset:%d' % (TP + e, ONE, cnt))
            if e:
                a('v_and_or_b32 v%d, v%d, s%d, v%d' % (ro, rg, sHI, TP + e))
            else:
                a('v_lshl_or_b32 v%d, v%d, 16, v%d' % (ro, rg, TP + e))

    def pack(j):
        a.wait_vm(marks[j])
        if j == 12:
            a('s_mov_b64 exec, %s' % sr(sREM, 2))
            pack2([(INR, OUTR)], ANGR, CNTB)
            a('s_mov_b64 exec, -1')
            return
        (rin, rout), o, rang = regs(j)
        for h in range(2):
            pack2([(rin + o + 2 * h + e, rout + o + 2 * h + e) for e in range(2)], rang + h, CNTA if j < 6 else CNTB)

    def scan(sub, cnt, data, srec, mid1=None, mid2=None):
        a('v_lshlrev_b32 v10, 2, v0')
        a('s_waitcnt lgkmcnt(0)')
        a('s_barrier')
        a('ds_read_b32 v4, v10 offset:%d' % cnt)
        m = a.mark()
        if mid1:
            mid1()
        a('s_lshl_b32 s%d, s%d, 2' % (sT, sW))
        a('v_mov_b32 v8, s%d' % sT)
        a('v_and_b32 v9, 60, v10')
        a.wait_ds(m)
        a('v_add_u32 v6, 1, v4')
        a('v_lshrrev_b32 v6, 1, v6')
        a('v_mov_b32 v7, v6')
        scan64(a, 7)
        a('s_mov_b32 exec_lo, 0')
        a('s_mov_b32 exec_hi, 0x80000000')
        a('ds_write_b32 v8, v7 offset:%d' % SCR)
        a('s_mov_b64 exec, -1')
        a('s_waitcnt lgkmcnt(0)')
        a('s_barrier')
        a('ds_read_b32 v11, v9 offset:%d' % SCR)
        m = a.mark()
        if mid2:
            mid2()
        a('v_and_b32 v8, 255, v0')
        a('v_lshrrev_b32 v9, 8, v0')
        a('v_lshlrev_b32 v9, 2, v9')
        a('v_lshl_add_u32 v9, v8, 4, v9')
        a.wait_ds(m)
        a('v_mov_b32 v5, v11')
        for c in ('row_shr:1', 'row_shr:2', 'row_shr:4', 'row_shr:8'):
            a('v_add_u32_dpp v11, v11, v11 %s row_mask:0xf bank_mask:0xf' % c)
        a('v_sub_u32 v5, v11, v5')
        a('v_readlane_b32 s%d, v11, 15' % sT)
        a('v_readlane_b32 s%d, v5, s%d' % (sBASE, sW))
        a('s_mul_i32 s%d, s%d, 12' % (srec + 2, sT))
        a('v_add_u32 v7, s%d, v7' % sBASE)
        a('v_sub_u32 v6, v7, v6')
        a('s_movk_i32 s%d, %d' % (sT, data))
        a('v_mad_u32_u24 v6, v6, 12, s%d' % sT)
        a('ds_write_b32 v10, v6 offset:%d' % cnt)
        a('v_lshl_or_b32 v5, v4, 16, v7')
        a('v_mul_u32_u24 v7, 12, v7')
        a('v_mov_b32 v6, 0')
        a('v_and_b32 v4, 1, v4')
        a('s_and_b32 s%d, s2, 7' % sT)
        a('s_lshl1_add_u32 s%d, s%d, %d' % (sT, sT, 3136 + sub))
        a('v_lshrrev_b32 v8, 8, v0')
        a('v_lshl_add_u32 v8, v8, 4, s%d' % sT)
        a('v_lshlrev_b32 v8, 8, v8')
        a('v_cmpx_eq_u32 vcc, 1, v4')
        a('ds_write_b16 v7, v6 offset:%d' % (data - 8))
        a('ds_write_b32 v7, v8 offset:%d' % (data - 4))
        a('s_mov_b64 exec, -1')
        a('s_movk_i32 s%d, %d' % (sT, sub * 4096))
        a('buffer_store_dword v5, v9, %s, s%d offen %s' % (sr(S_DSC, 4), sT, st))
        a('s_waitcnt lgkmcnt(0)')
        a('s_barrier')

    def rtn(t, ro, cnt):
        a('v_and_b32 v%d, 0xffff, v%d' % (t, ro))
        a('ds_add_rtn_u32 v%d, v%d, v%d offset:%d' % (t, t, SIX, cnt))

    def put(t, ri, ro, e):
        u = 8 + (e & 1)
        a('v_and_b32 v%d, 2, v%d' % (u, t))
        a('v_add_u32 v%d, v%d, v%d' % (t, t, u))
        a('v_mad_i32_i24 v%d, v%d, -5, v%d' % (u, u, t))
        a('ds_write_b32 v%d, v%d' % (t, ri))
        a('ds_write_b16_d16_hi v%d, v%d offset:6' % (u, ro))

    def scatter(rin, rout, cnt, rem, between):
        G = 3
        ng = 24 // G
        mk = {}
        if rem:
            a('s_mov_b64 exec, %s' % sr(sREM, 2))
            rtn(10, OUTR, cnt)
            a('s_mov_b64 exec, -1')
        for e in range(G):
            rtn(TS_ + e, rout + e, cnt)
        mk[0] = a.mark()
        for g in range(ng):
            cur, nxt = TS_ + (g & 1) * G, TS_ + ((g + 1) & 1) * G
            if g + 1 < ng:
                for e in range(G):
                    rtn(nxt + e, rout + (g + 1) * G + e, cnt)
                mk[g + 1] = a.mark()
            a.wait_ds(mk[g])
            for e in range(G):
                put(cur + e, rin + g * G + e, rout + g * G + e, e)
            if rem and g == 0:
                a('s_mov_b64 exec, %s' % sr(sREM, 2))
                put(10, INR, OUTR, 1)
                a('s_mov_b64 exec, -1')
            between(g)

    rd = {}

    def readout(base, data):
        a('v_add_u32 v22, 0x10000, v%d' % O16)
        a('v_add_u32 v23, 0x20000, v%d' % O16)
        for j in range(10):
            b = (O16, 22, 23)[j >> 2]
            a('ds_read_b128 %s, v%d offset:%d' % (vr(base + 4 * j, 4), b, data + (j & 3) * 16384))
            rd[j] = a.mark()

    def store(base, srec, j, wait=False):
        a('s_mov_b32 s%d, %d' % (sT, j * 16384))
        if wait:
            a.wait_ds(rd[j])
        a('buffer_store_dwordx4 %s, v%d, %s, s%d offen %s' % (vr(base + 4 * j, 4), O16, sr(srec, 4), sT, P['sta'] if base == INA else P['stb']))

    loads(0)
    loads(1)
    a('s_cmp_lg_u32 s%d, 0' % sPREP)
    a('s_barrier')
    a('s_cbranch_scc1 Lk1_noprep')
    a.nocount = True
    nds = a.nds
    prep(a, DATA, S_T0)
    a.nds = nds
    a.nocount = False
    a('Lk1_noprep:')
    for j in range(6):
        loads(j + 2)
        pack(j)
    stamp(a, 1, S_DBG, 96, 126)
    scan(0, CNTA, DATA, S_REC)
    stamp(a, 2, S_DBG, 96, 126)

    sched = P['sch'].split('.')
    nl, npk = [8], [6]

    def do(ops):
        for c in ops:
            if c == 'L':
                loads(nl[0])
                nl[0] += 1
            elif c == 'P':
                pack(npk[0])
                npk[0] += 1
            elif c == 'B':
                a('s_barrier')

    do(sched[0])
    scatter(INA, OUTA, CNTA, False, lambda g: do(sched[g + 1]))
    stamp(a, 3, S_DBG, 96, 126)
    do('L' * (13 - nl[0]))
    if P['cpf'] & 4:
        code_prefetch(a, 'c', 84, 126, 8)
    do('P' * (13 - npk[0]))
    stamp(a, 4, S_DBG, 96, 126)
    npre = P['npre']
    scan(1, CNTB, DATB, S_REC2, lambda: readout(INA, DATA), lambda: [store(INA, S_REC, j) for j in range(npre)])
    stamp(a, 5, S_DBG, 96, 126)
    todo = list(range(npre, 10))

    def btw_b(g):
        k = -(-len(todo) // (8 - g))
        for _ in range(k):
            store(INA, S_REC, todo.pop(0))

    scatter(INB, OUTB, CNTB, True, btw_b)
    stamp(a, 6, S_DBG, 96, 126)
    a('s_waitcnt lgkmcnt(0)')
    a('s_barrier')

    def k1warm():
        srd(a, S_T0, 12, P['k1w'] * 51200 * 128 if P['k1w'] < 4 else E * 32)
        a('s_lshl_b32 s%d, s2, 4' % sT)
        a('s_add_u32 s%d, s%d, s%d' % (sT, sT, sW))
        a('s_mul_i32 s%d, s%d, %d' % (sT, sT, 13 * P['k1w']))
        a('v_and_b32 v4, 63, v0')
        a('v_min_u32 v4, %d, v4' % (13 * P['k1w'] - 1))
        a('v_add_lshl_u32 v4, v4, s%d, 7' % sT)
        a('buffer_load_dword v4, v4, %s, 0 offen' % sr(S_T0, 4))

    readout(INB, DATB)
    if P['k1w'] and P['k1p'] == 0:
        k1warm()
    for j in range(10):
        store(INB, S_REC2, j, True)
    if P['k1w'] and P['k1p'] == 1:
        k1warm()
    stamp(a, 7, S_DBG, 96, 126)
    if P['stamp']:
        a('s_waitcnt vmcnt(0)')
        stamp(a, 8, S_DBG, 96, 126)
    a('Lk1_end:')
    a('s_endpgm')
    a.fence()
    return DATB + (25472 + 1024) * 6


def prep(a_, PB, S_T0, nvm=6, L=13, wsp=78, st=14, fl=''):
    a0 = a_

    def a(t):
        t = t.replace('s14', 's%d' % st) if not t.startswith('s_add') else t
        a0(t + ' ' + fl if t.startswith('buffer_store') else t)
    O = 27
    sS = 80
    sS = 48
    a('s_waitcnt vmcnt(%d)' % nvm)
    for i in range(4):
        a('ds_write_b128 v%d, %s offset:%d' % (O, vr(76 + 4 * i, 4), PB + 1024 * i))
    a('v_mov_b32 v4, 0')
    for i in range(16):
        a('v_dot2_f32_bf16 v4, v%d, v%d, v4' % (92 + i, 92 + i))
    scan64(a, 4, 'v_add_f32')
    a('v_readlane_b32 s14, v4, 63')
    a('v_bfe_u32 v5, v%d, 3, 2' % L)
    a('v_and_b32 v6, 3, v%d' % L)
    a('v_lshl_or_b32 v5, v5, 2, v6')
    a('v_lshlrev_b32 v5, 1, v5')
    a('v_bfe_u32 v7, v%d, 2, 1' % L)
    a('v_lshrrev_b32 v8, 5, v%d' % L)
    a('s_waitcnt lgkmcnt(0)')
    for k in range(24):
        a('ds_read_u16 v%d, v5 offset:%d' % (76 + k, PB + 32 * k))
        if k % 8 == 7:
            a('s_waitcnt lgkmcnt(0)')
    for k in range(16):
        a('ds_read_u16 v%d, v5 offset:%d' % (100 + k, PB + 1024 + 32 * k))
        if k % 8 == 7:
            a('s_waitcnt lgkmcnt(0)')
    a('v_lshl_add_u32 v9, v8, 8, v5')
    for k in range(8):
        a('ds_read_u16 v%d, v9 offset:%d' % (116 + k, PB + 1024 + 32 * k))
    a('s_waitcnt lgkmcnt(0)')
    for k in range(48):
        a('v_lshlrev_b32 v%d, 16, v%d' % (76 + k, 76 + k))
    a('v_mul_f32 v9, v76, v76')
    for k in range(1, 24):
        a('v_fmac_f32 v9, v%d, v%d' % (76 + k, 76 + k))
    a('v_mul_f32 v10, v100, v100')
    for k in range(1, 16):
        a('v_fmac_f32 v10, v%d, v%d' % (100 + k, 100 + k))
    a('v_log_f32 v9, v9')
    a('v_log_f32 v10, v10')
    a('v_log_f32 v11, s14')
    a('v_add_f32 v10, v10, v9')
    a('v_add_f32 v10, v10, v11')
    c0 = math.log2(P['target']) - 0.5 * math.log2(0.1625 / 2048)
    a('v_mov_b32 v11, 0x%x' % f2u(c0))
    a('v_fmac_f32 v11, -0.5, v10')
    a('v_floor_f32 v11, v11')
    a('v_mul_f32 v9, 0.5, v9')
    a('v_floor_f32 v9, v9')
    a('s_mov_b32 s14, 0x%x' % f2u(40.0))
    a('v_med3_f32 v11, v11, -s14, s14')
    a('v_med3_f32 v9, -v9, -s14, s14')
    a('v_cvt_i32_f32 v11, v11')
    a('v_cvt_i32_f32 v9, v9')
    a('v_sub_u32 v10, v11, v9')
    a('v_subrev_u32 v10, 16, v10')
    for j in range(16):
        a('v_readlane_b32 s%d, v11, %d' % (sS + j, ((j >> 2) << 3) | (j & 3)))
    srd(a, S_T0, wsp, 8192, str(PREP0))
    a('v_xor_b32 v4, v7, v8')
    a('v_subrev_u32 v4, 1, v4')
    a('v_subrev_u32 v6, 1, v7')
    a('v_sub_u32 v7, 0, v7')
    for k in range(24):
        a('v_ldexp_f32 v%d, v%d, v9' % (76 + k, 76 + k))
        if k % 3 == 1:
            a('v_add_f32 v%d, v%d, v%d' % (76 + k, 76 + k, 76 + k))
    if P['l2x']:
        for k in range(16):
            a('v_ldexp_f32 v%d, v%d, v10' % (100 + k, 100 + k))
        for jj in range(8):
            a('v_cvt_pk_bf16_f32 v%d, v%d, v%d' % (116 + jj, 100 + 2 * jj, 101 + 2 * jj))
    else:
        for k in range(8):
            a('v_ldexp_f32 v%d, v%d, v10' % (116 + k, 116 + k))
    for l in range(3):
        for jj in range(4):
            a('v_cvt_pk_f16_f32 v%d, v%d, v%d' % (100 + 4 * l + jj, 76 + 6 * jj + l, 76 + 6 * jj + 3 + l))
            a('v_and_b32 v%d, v%d, v4' % (100 + 4 * l + jj, 100 + 4 * l + jj))
        a('buffer_store_dwordx4 %s, v%d, %s, 0 offen offset:%d' % (vr(100 + 4 * l, 4), O, sr(S_T0, 4), 1024 * l))
    if P['l2x']:
        for jj in range(4):
            a('v_and_b32 v%d, v%d, v4' % (112 + jj, 116 + jj))
            a('v_and_b32 v%d, v%d, v4' % (120 + jj, 120 + jj))
    else:
        for jj in range(4):
            a('v_cvt_pk_bf16_f32 v%d, v%d, v%d' % (116 + jj, 116 + 2 * jj, 117 + 2 * jj))
        for jj in range(4):
            a('v_and_b32 v%d, v%d, v6' % (112 + jj, 116 + jj))
            a('v_and_b32 v%d, v%d, v7' % (120 + jj, 116 + jj))
    a('v_add_u32 v11, 4096, v%d' % O)
    a('buffer_store_dwordx4 v[112:115], v%d, %s, 0 offen offset:3072' % (O, sr(S_T0, 4)))
    a('buffer_store_dwordx4 v[120:123], v11, %s, 0 offen' % sr(S_T0, 4))
    a('v_bfe_u32 v5, v%d, 2, 1' % L)
    a('v_bfe_u32 v6, v%d, 3, 1' % L)
    a('v_lshl_or_b32 v5, v5, 1, v6')
    a('v_and_b32 v6, 3, v%d' % L)
    a('v_lshl_or_b32 v5, v5, 2, v6')
    a('v_lshlrev_b32 v5, 1, v5')
    a('v_bfe_u32 v7, v%d, 4, 1' % L)
    a('v_xor_b32 v4, v7, v8')
    a('v_subrev_u32 v4, 1, v4')
    for k in range(16):
        a('ds_read_u16 v%d, v5 offset:%d' % (76 + k, PB + 2048 + 32 * k))
        if k % 8 == 7:
            a('s_waitcnt lgkmcnt(0)')
    for k in range(8):
        a('ds_read_u16 v%d, v5 offset:%d' % (92 + k, PB + 3072 + 32 * k))
    a('s_waitcnt lgkmcnt(0)')
    for k in range(24):
        a('v_lshlrev_b32 v%d, 16, v%d' % (76 + k, 76 + k))
    a('v_mul_f32 v9, v92, v92')
    for k in range(1, 8):
        a('v_fmac_f32 v9, v%d, v%d' % (92 + k, 92 + k))
    a('v_log_f32 v9, v9')
    a('v_mul_f32 v9, 0.5, v9')
    a('v_floor_f32 v9, v9')
    a('v_med3_f32 v9, v9, -s14, s14')
    a('v_cvt_i32_f32 v9, v9')
    a('v_sub_u32 v10, 0, v9')
    for k in range(8):
        a('v_ldexp_f32 v%d, v%d, v10' % (92 + k, 92 + k))
    for k in range(16):
        a('v_subrev_u32 v6, s%d, v9' % (sS + k))
        a('v_ldexp_f32 v%d, v%d, v6' % (76 + k, 76 + k))
    for jj in range(8):
        a('v_cvt_pk_bf16_f32 v%d, v%d, v%d' % (76 + jj, 76 + 2 * jj, 77 + 2 * jj))
        a('v_and_b32 v%d, v%d, v4' % (76 + jj, 76 + jj))
    for jj in range(4):
        a('v_cvt_pk_f16_f32 v%d, v%d, v%d' % (84 + jj, 92 + 2 * jj, 93 + 2 * jj))
        a('v_and_b32 v%d, v%d, v4' % (84 + jj, 84 + jj))
    for i in range(3):
        a('buffer_store_dwordx4 %s, v11, %s, 0 offen offset:%d' % (vr(76 + 4 * i, 4), sr(S_T0, 4), 1024 * (i + 1)))
    a('s_nop 1')


from gen_k2p import k2
from gen_p8 import prod


def main():
    a = Asm()
    body = Asm()
    out = []
    kernels = []
    if P['fuse']:
        b = Asm()
        h = prod(b, P, globals())
        lds = max(h.lds, k2(b, P, globals(), h))
        kernels.append((NAME + '_kernel', b, lds, 512))
    else:
        b = Asm()
        if P['p8']:
            kernels.append(('bin_kernel', b, prod(b, P, globals()).lds, 512))
        else:
            kernels.append(('bin_kernel', b, k1(b), 1024))
        if not P['only1']:
            b = Asm()
            kernels.append(('acc_kernel', b, k2(b, P, globals(), None), 512))
    hdr = open('cdna_kernels/%s.s.ref' % NAME).read().split('\n')
    hdr = [l for l in hdr if l.startswith(';') and '@launch' not in l and 'Override launch' not in l and 'grid=ceil' not in l]
    out += hdr
    for nm, b, lds, nt in kernels:
        out.append('; @launch kernel=%s grid=(256,1,1) block=(%d,1,1) lds=%d' % (nm, nt, lds))
        if P['fuse'] == 2:
            out[-1] = '; @launch grid=(256,1,1) block=(512,1,1) lds=%d' % lds
    if P['k2x']:
        out.append(out[-1])
    out.append('.amdgcn_target "amdgcn-amd-amdhsa--gfx950"')
    out.append('.text')
    for nm, b, lds, nt in kernels:
        out.append('.globl %s\n.p2align 8\n.type %s,@function\n%s:' % (nm, nm, nm))
        out.append(b.text())
    out.append('.section .rodata,"a"')
    for nm, b, lds, nt in kernels:
        out.append('''.p2align 6
.amdhsa_kernel %s
  .amdhsa_next_free_vgpr %d
  .amdhsa_next_free_sgpr 102
  .amdhsa_accum_offset %d
  .amdhsa_group_segment_fixed_size 0
  .amdhsa_kernarg_size 112
  .amdhsa_user_sgpr_count 2
  .amdhsa_user_sgpr_kernarg_segment_ptr 1
  .amdhsa_system_sgpr_workgroup_id_x 1
.end_amdhsa_kernel''' % (nm, 131072 // nt, 131072 // nt))
    open(sys.argv[1], 'w').write('\n'.join(out) + '\n')


main()
```

```python
import math


def k2(a, P, G, hk):
    vr, sr, srd, f2u = G['vr'], G['sr'], G['srd'], G['f2u']
    E, BINE, TS, TSP = G['E'], G['BINE'], G['TS'], G['TSP']
    REC0, DESC0, PREP0, WS_BYTES = G['REC0'], G['DESC0'], G['PREP0'], G['WS_BYTES']
    PL = BINE * 4
    RBF0 = 5 * PL + 12
    HI0 = RBF0 + BINE * 16
    SCR = HI0 + 4 * PL
    LDS = SCR + 128
    KC0, TB0, BB0, SC0, RING0 = 0, 12800, 21504, 25600, 25856
    NSL = 15
    NBLK = 51
    NQ = 7
    S_M, S_MR, S_WS, S_DIST, S_MO, S_OUT, S_DBG = 16, 20, 24, 28, 32, 36, 92
    sCEN = 40
    sW, sBIN, sT, sT2 = 48, 49, 50, 51
    sM0, sM1, sIDM, sHI, sA16 = 52, 53, 54, 55, 56
    sPASS, sMODE, sIX = 57, 58, 59
    sV6 = 60
    sMK = 62
    sFL, sSK = 64, 78
    sPc = 64
    sR, sTB, sRB, sRE, sPS = 69, 70, 71, 72, 73
    sLO = 74
    sMA = 84
    sLM = 84
    sEND = 88
    sEW = 80
    sF, sE, sDL, sI, sP, sNT, sSUB = 4, 5, 6, 7, 8, 9, 10
    LANE, S0 = 1, 2
    AG, AM, GATE, MD = 164, 176, 184, 200
    GB = (156, 216)
    SBF, RBF = 224, 232
    IA, IB = 236, 238
    A16, ANG = (240, 241), (242, 243)
    A4, A4B, CV, AC = 244, 245, 246, 155
    RTN = (247, 248)
    STK, CK, TM = 249, 250, 251
    RAW = 156
    RT, RA = 216, 232
    NA = P['na']
    TAR = (240, 241, 242, 243, 236, 238)
    TF = (244, 245)
    TH, VM, ONE, EIGHT, L12, RBA, WD, WA = 246, 248, 249, 250, 251, 252, 253, 254
    lab = [0]
    HO = 'sc1' if hk else P['ldrec']
    VZ, VP, VT = 6, 7, 8
    NS0 = P['ns0']

    def spin(load, notready, m):
        n = lab[0]
        lab[0] += 1
        a('s_mov_b32 s%d, 0x40000' % sT2)
        a.wait_vm(m)
        a('Lpl%d:' % n)
        notready()
        a('s_cbranch_execz Lpd%d' % n)
        a('s_sleep %d' % P['slp'])
        a.nocount = True
        load()
        a.nocount = False
        a('s_sub_u32 s%d, s%d, 1' % (sT2, sT2))
        a('s_waitcnt vmcnt(0)')
        a('s_cbranch_scc0 Lpl%d' % n)
        a('Lpd%d:' % n)
        a('s_mov_b64 exec, -1')
        a('s_nop 3')

    def cleared_load():
        a('global_load_dword v%d, v%d, s[12:13] sc1' % (VP, VZ))
        return a.mark()

    def done_load():
        a('global_load_dword v%d, v%d, s[14:15] sc1' % (VP, VZ))
        return a.mark()

    def done_addr():
        a('s_and_b32 s%d, s2, 7' % sT)
        a('s_lshl3_add_u32 s%d, s%d, s%d' % (sT, sT, sW))
        a('s_lshl_b32 s%d, s%d, 7' % (sT, sT))
        a('s_add_u32 s%d, s%d, %d' % (sT, sT, G['FLG0']))
        a('v_and_b32 v%d, 31, v0' % VZ)
        a('v_lshl_add_u32 v%d, v%d, 2, s%d' % (VZ, VZ, sT))

    def done_wait(m):
        spin(done_load, lambda: a('v_cmpx_ne_u32 vcc, 1, v%d' % VP), m)

    def stamp(i, late=False):
        G['stamp'](a, i, S_DBG, 96, *((253, 254) if late else (235, 234)))

    CNT0 = 2 * PL

    def plane(j):
        return ((A4, 0), (A4, 3 * PL + 4), (A4B, 0), (A4B, 2 * PL))[j]

    def desc_load(dst, tb):
        a('v_lshlrev_b32 v%d, 12, v0' % tb)
        a('s_lshl_b32 s%d, s%d, 4' % (sT, sBIN))
        a('s_add_u32 s%d, s%d, %d' % (sT, sT, DESC0))
        a('buffer_load_dwordx4 %s, v%d, %s, s%d offen %s' % (vr(dst, 4), tb, sr(S_WS, 4), sT, HO))
        return a.mark()

    def scan4(v):
        for c, rm in (('row_shr:1', 15), ('row_shr:2', 15), ('row_shr:4', 15), ('row_shr:8', 15), ('row_bcast:15', 10), ('row_bcast:31', 12)):
            for k in range(4):
                a('v_add_u32_dpp v%d, v%d, v%d %s row_mask:0x%x bank_mask:0xf' % (v + k, v + k, v + k, c, rm))

    def img_load(first, n, dst, t):
        a('v_lshlrev_b32 v%d, 4, v%d' % (t, LANE))
        for i in range(n):
            a('s_mov_b32 s%d, %d' % (sT, PREP0 + 1024 * (first + i)))
            a('buffer_load_dwordx4 %s, v%d, %s, s%d offen %s' % (vr(dst + 4 * i, 4), t, sr(S_WS, 4), sT, HO))

    def gathers(q):
        a('buffer_load_dwordx4 %s, %s, %s, 0 idxen offen' % (vr(GB[q], 4), vr(IA, 2), sr(S_M, 4)))
        a('buffer_load_dwordx4 %s, %s, %s, 0 idxen offen' % (vr(GB[q] + 4, 4), vr(IB, 2), sr(S_M, 4)))

    def cosines(p):
        c1, c3, c2 = TM, TM + 1, TM + 2
        a('v_mul_f32 v%d, 0x40400000, v%d' % (c3, ANG[p]))
        a('v_mul_f32 v%d, 0.15915494, v%d' % (c1, ANG[p]))
        a('v_cvt_pk_bf16_f32 v%d, 0, v%d' % (c3, c3))
        a('v_fract_f32 v%d, v%d' % (c1, c1))
        a('v_mul_f32 v%d, 0.15915494, v%d' % (c3, c3))
        a('v_cos_f32 v%d, v%d' % (c1, c1))
        a('v_fract_f32 v%d, v%d' % (c3, c3))
        a('v_cos_f32 v%d, v%d' % (c3, c3))
        a('v_fma_mixlo_f16 v%d, v%d, v%d, -0.5' % (c2, c1, c1))
        a('v_cvt_pk_f16_f32 v%d, v%d, v%d' % (c1, c1, c3))

    def sbf(l):
        src, sel = ((TM, 0), (TM + 2, 0), (TM, 1))[l]
        for j in range(4):
            a('v_pk_mul_f16 v%d, v%d, v%d op_sel:[0,%d] op_sel_hi:[1,%d]' % (SBF + 4 * (l & 1) + j, RBF + j, src, sel, sel))

    def gmf(l):
        a('v_mfma_f32_32x32x16_f16 %s, %s, %s, %s' % (vr(GATE, 16), vr(AG + 4 * l, 4), vr(SBF + 4 * (l & 1), 4), vr(GATE, 16) if l else '0'))

    def mdown(p):
        a('v_mfma_f32_32x32x16_bf16 %s, %s, %s, 0' % (vr(MD, 16), vr(AM, 4), vr(GB[p], 4)))
        a('v_mfma_f32_32x32x16_bf16 %s, %s, %s, %s' % (vr(MD, 16), vr(AM + 4, 4), vr(GB[p] + 4, 4), vr(MD, 16)))

    def addrs(p):
        a('v_lshrrev_b32 v%d, 1, v%d' % (A4, A16[p]))
        a('v_lshrrev_b32 v%d, 2, v%d' % (AC, A16[p]))
        a('v_add_u32 v%d, %d, v%d' % (A4B, HI0, A4))

    def decode_rel(p, base, part=3):
        a('s_set_gpr_idx_on s%d, gpr_idx(SRC1)' % sIX)
        a('s_nop 0')
        if part & 1:
            a('v_and_b32 v%d, s%d, v%d' % (IA, sIDM, S0 + base + p))
            a('v_and_b32 v%d, s%d, v%d' % (IB, sIDM, S0 + base + p))
        if part & 2:
            a('v_and_b32_sdwa v%d, s%d, v%d dst_sel:DWORD dst_unused:UNUSED_PAD src0_sel:DWORD src1_sel:WORD_1' % (A16[p], sA16, S0 + base + p))
            if p:
                a('v_and_b32 v%d, s%d, v%d' % (ANG[p], sHI, S0 + base + 2))
            else:
                a('v_lshlrev_b32 v%d, 16, v%d' % (ANG[p], S0 + base + 2))
        a('s_set_gpr_idx_off')
        if part & 1:
            a('v_permlane32_swap_b32 v%d, v%d' % (IA, IB))

    def halfbar(hi):
        n = lab[0]
        lab[0] += 1
        a('s_bitcmp%d_b32 s%d, %d' % (0 if hi else 1, sW, P['stb_']))
        a('s_cbranch_scc1 Lhb%d' % n)
        a('s_barrier')
        a.hist[-1].states = 0
        a('Lhb%d:' % n)

    def step(p):
        q = 1 - p
        ab = P['abl']
        vq = (lambda t: None) if ab & 4 else a
        vb = (lambda t: None) if ab & 68 else a
        va = (lambda t: None) if ab & 1 else a
        if P['early']:
            decode_rel(p, 3, 1)
        a('s_waitcnt vmcnt(2)')
        if not ab & 16:
            mdown(p)
        if P['early']:
            gathers(p)
        if not ab & 32:
            cosines(p)
        a('s_waitcnt lgkmcnt(%d)' % (0 if ab & 1 else 5))
        if not ab & 32:
            sbf(0)
        addrs(p)
        if not ab & 8:
            gmf(0)
        if not ab & 32:
            sbf(1)
        a('v_or_b32 v%d, v%d, v%d' % (STK, STK, RTN[p]))
        a('s_cmp_eq_u32 s%d, s%d' % (sIX, sEND))
        if not ab & 8:
            gmf(1)
        if not ab & 32:
            sbf(2)
        a('ds_read_b128 %s, v%d offset:%d' % (vr(RBF, 4), A16[q], RBF0))
        a('s_cselect_b64 %s, %s, -1' % (sr(sMK, 2), sr(sLM + 2 * p, 2)))
        if not ab & 8:
            gmf(2)
        if P['early']:
            decode_rel(p, 3, 2)
        else:
            decode_rel(p, 3)
            gathers(p)
        if P['stag'] and (p == 1 or P['stag'] == 2):
            halfbar(1)
        a('s_mov_b64 exec, %s' % sr(sMK, 2))
        pk = lambda j: MD + 4 * (j >> 1) + (j & 1)
        for j in range(8):
            vq('v_fma_f32 v%d, v%d, v%d, s%d' % (MD + 2 * j, MD + 2 * j, GATE + 2 * j, sM0))
            vq('v_fma_f32 v%d, v%d, v%d, s%d' % (MD + 2 * j + 1, MD + 2 * j + 1, GATE + 2 * j + 1, sM0))
            if j:
                jj = j - 1
                vb('v_sad_u16 v%d, v%d, s%d, v%d' % (TM + (jj >> 1), pk(jj), sM1, TM + (jj >> 1) if jj & 1 else CK))
            vq('v_cvt_pknorm_u16_f32 v%d, v%d, v%d' % (pk(j), MD + 2 * j, MD + 2 * j + 1))
            if j & 1:
                b, o = plane(j >> 1)
                va('ds_add_u64 v%d, %s offset:%d' % (b, vr(pk(j - 1), 2), o))
        vb('v_max3_u32 v%d, v%d, v%d, v%d' % (CV, TM, TM + 1, TM + 2))
        vb('v_sad_u16 v%d, v%d, s%d, v%d' % (TM + 3, pk(7), sM1, TM + 3))
        vb('v_max_u32 v%d, v%d, v%d' % (CV, CV, TM + 3))
        va('ds_add_rtn_u32 v%d, v%d, v%d offset:%d' % (RTN[p], AC, CV, CNT0))
        a('s_mov_b64 exec, -1')

    if not hk:
        a('s_cmp_ge_u32 s2, 256')
        a('s_cbranch_scc1 Lk2_end')
    a('s_load_dwordx2 s[4:5], s[0:1], 0')
    a('s_load_dwordx2 s[6:7], s[0:1], 24')
    a('s_load_dwordx2 s[8:9], s[0:1], 40')
    a('s_load_dwordx2 s[10:11], s[0:1], 88')
    if not hk:
        a('s_load_dwordx4 s[12:15], s[0:1], 96')
    if P['cpf'] & 2:
        G['code_prefetch'](a, 'b', 88, 4)
    a('v_lshrrev_b32 v3, 6, v0')
    a('v_and_b32 v%d, 63, v0' % LANE)
    a('v_readfirstlane_b32 s%d, v3' % sW)
    if hk:
        a('v_and_b32 v%d, 3, v0' % VZ)
        a('v_lshlrev_b32 v%d, 6, v%d' % (VZ, VZ))
        mP = cleared_load()
    a('s_and_b32 s%d, s2, 7' % sBIN)
    a('s_lshl_b32 s%d, s%d, 5' % (sBIN, sBIN))
    a('s_lshr_b32 s%d, s2, 3' % sT)
    a('s_add_u32 s%d, s%d, s%d' % (sBIN, sBIN, sT))
    a('s_mov_b32 s%d, 0x%x' % (sM0, f2u(32768.0 / 65535.0)))
    a('s_mov_b32 s%d, 0x80008000' % sM1)
    a('s_mov_b32 s%d, 0x%x' % (sIDM, P['idm']))
    a('s_mov_b32 s%d, 0xffff0000' % sHI)
    a('s_mov_b32 s%d, 0xfff0' % sA16)
    a('s_mov_b32 s%d, 0x07060302' % sPS)
    a('s_mov_b32 s%d, 0' % sMODE)
    a('v_cmp_gt_u32 %s, %d, v0' % (sr(sV6, 2), BINE - 3072))
    a('v_lshrrev_b32 v%d, 5, v%d' % (IA + 1, LANE))
    a('v_lshlrev_b32 v%d, 4, v%d' % (IA + 1, IA + 1))
    a('v_mov_b32 v%d, v%d' % (IB + 1, IA + 1))
    a('v_mov_b32 v%d, 0' % IA)
    a('v_mov_b32 v%d, 0' % IB)
    a('s_waitcnt lgkmcnt(0)')
    a('s_load_dwordx4 s[96:99], s[8:9], 0')
    srd(a, S_WS, 14, WS_BYTES)
    D, X, DL = RAW, RAW + 4, RAW + 8
    if hk:
        a('s_barrier')
        for j in range(NS0):
            mS = hk.store(j)
    else:
        mDs = desc_load(D, RAW + 12)
        if P['spf']:
            a('s_lshr_b32 s%d, s2, 3' % sT)
            a('s_and_b32 s%d, s%d, 1' % (sT2, sT))
            a('s_mul_i32 s%d, s%d, 160' % (sT2, sT2))
            a('s_add_u32 s%d, s%d, 4720' % (sT2, sT2))
            a('s_and_b32 s90, s2, 7')
            a('s_mul_i32 s%d, s%d, s90' % (sT2, sT2))
            a('s_lshl_b32 s90, s%d, 6' % sW)
            a('s_add_u32 s90, s90, s%d' % sT)
            a('s_mul_i32 s90, s90, %d' % TS)
            a('s_add_u32 s90, s90, s%d' % sT2)
            a('s_add_u32 s90, s90, %d' % REC0)
            a('s_cmp_lt_u32 s%d, %d' % (sT, P['spf']))
            a('s_cselect_b32 s90, s90, %d' % WS_BYTES)
            a('v_min_u32 v%d, 38, v%d' % (WD, LANE))
            a('v_lshlrev_b32 v%d, 7, v%d' % (WD, WD))
            if P['spf'] > 32:
                a('buffer_load_dword v%d, v%d, %s, s90 offen' % (TH, WD, sr(S_WS, 4)))
                a('s_add_u32 s90, s90, %d' % (32 * TS))
                a('s_cmp_lt_u32 s%d, %d' % (sT, P['spf'] - 32))
                a('s_cselect_b32 s90, s90, %d' % WS_BYTES)
            a('buffer_load_dword v%d, v%d, %s, s90 offen' % (WD, WD, sr(S_WS, 4)))
    a('s_mul_i32 s%d, s%d, %d' % (sT, sBIN, BINE * 2))
    a('s_mul_i32 s%d, s%d, %d' % (sT2, sBIN, BINE * 32))
    srd(a, S_DIST, 6, BINE * 2, 's%d' % sT)
    srd(a, S_M, 4, E, None, 32)
    srd(a, S_MR, 4, E * 32)
    srd(a, S_MO, 4, BINE * 32, 's%d' % sT2)
    srd(a, S_OUT, 10, BINE * 32, 's%d' % sT2)
    G['stamp_init'](a, S_DBG, 14, 1, sW)
    a('s_waitcnt lgkmcnt(0)')
    for r in range(4):
        a('s_lshl_b32 s%d, s%d, 16' % (sCEN + 2 * r, 96 + r))
        a('s_and_b32 s%d, s%d, 0xffff0000' % (sCEN + 2 * r + 1, 96 + r))
    a('s_mov_b32 s%d, 0x%x' % (sR, f2u(math.sqrt(10.0 * math.log2(math.e)))))
    a('v_mov_b32 v%d, s%d' % (RT + 8, sR))
    for r in range(8):
        a('v_mul_f32 v%d, s%d, v%d' % (RT + r, sCEN + r, RT + 8))
    for r in range(8):
        a('v_readfirstlane_b32 s%d, v%d' % (sCEN + r, RT + r))
    stamp(0)
    Z, T0 = 96, 104
    for i in range(4):
        a('v_mov_b32 v%d, 0' % (Z + i))
        a('v_bfrev_b32 v%d, 1' % (Z + 4 + i))
    a('v_lshlrev_b32 v%d, 4, v0' % T0)
    a('v_lshlrev_b32 v%d, 3, v0' % (T0 + 1))
    a('s_mul_i32 s%d, s%d, 1088' % (sTB, sW))
    a('v_lshl_add_u32 v%d, v%d, 4, s%d' % (T0 + 2, LANE, sTB))
    a('ds_write_b64 v%d, %s offset:%d' % (T0 + 1, vr(Z, 2), BB0))
    a('ds_write_b128 v%d, %s offset:%d' % (T0 + 2, vr(Z + 4, 4), TB0))
    a('ds_write_b128 v%d, %s offset:%d' % (T0 + 2, vr(Z + 4, 4), TB0 + 64))
    a('s_movk_i32 s%d, 400' % sT)
    a('v_cmpx_gt_u32 vcc, s%d, v0' % sT)
    a('ds_write_b128 v%d, %s offset:%d' % (T0, vr(Z, 4), KC0))
    a('ds_write_b128 v%d, %s offset:%d' % (T0, vr(Z, 4), KC0 + 6400))
    a('s_mov_b64 exec, -1')
    a('v_mov_b32 v%d, 1' % ONE)
    a('v_mov_b32 v%d, 4' % EIGHT)
    a('v_mul_u32_u24 v%d, 12, v%d' % (L12, LANE))
    a('s_lshl_b32 s%d, s%d, 10' % (sT, sW))
    a('v_lshl_add_u32 v%d, v%d, 3, s%d' % (RBA, LANE, sT))
    a('s_lshl_b32 s%d, s2, 3' % sT)
    a('s_add_u32 s%d, s%d, s%d' % (sT, sT, sW))
    a('s_mul_i32 s%d, s%d, 25' % (sT, sT))
    a('v_min_u32 v%d, 24, v%d' % (WA, LANE))
    a('v_add_lshl_u32 v%d, v%d, s%d, 7' % (WA, WA, sT))
    for j in range(4):
        if P['wpos'][j] == '0':
            a('s_mov_b32 s%d, %d' % (sT, j * 51200 * 128))
            a('buffer_load_dword v%d, v%d, %s, s%d offen' % (WD, WA, sr(S_MR, 4), sT))
    a('s_movk_i32 s%d, %d' % (sT, REC0 // 12))
    a('v_mov_b32 v%d, %d' % (T0 + 3, TSP))
    a('v_mad_u32_u24 v%d, v0, v%d, s%d' % (T0 + 3, T0 + 3, sT))
    if hk:
        rest = []
        for j in range(NS0, 20):
            if 20 - j <= len(hk.rest_a):
                rest.append(hk.rest_a[j - 20])
            rest.append(lambda j=j: hk.store(j))
        for j in range(P['nsx']):
            rest.pop(0)()
        a.wait_vm(mS)
        a('s_barrier')
        hk.publish()
        stamp(11)
        late = rest[len(rest) - P['nlate']:] if P['nlate'] else []
        for f in rest[:len(rest) - len(late)]:
            mS = f()
        spin(cleared_load, lambda: a('v_cmpx_gt_u32 vcc, 64, v%d' % VP), mP)
        mDs = desc_load(D, RAW + 12)
        done_addr()
        stamp(12)
        if not late:
            a.wait_vm(mS)
            hk.arrive2(0, VT, hk.arrive1(0, VT))

        def nr():
            a('v_and_b32 v%d, v%d, v%d' % (VT, D, D + 1))
            a('v_and_b32 v%d, v%d, v%d' % (VT + 1, D + 2, D + 3))
            a('v_and_b32 v%d, v%d, v%d' % (VT, VT, VT + 1))
            a('v_cmpx_le_i32 vcc, 0, v%d' % VT)
        spin(lambda: desc_load(D, RAW + 12), nr, mDs)
        stamp(13)
        for k in range(4):
            a('v_and_b32 v%d, 0x7fffffff, v%d' % (D + k, D + k))
    else:
        a.wait_vm(mDs)
    NP = RAW + 28
    for k in range(4):
        a('v_add_u32 v%d, 0x10000, v%d' % (NP + k, D + k))
        a('v_bfe_u32 v%d, v%d, 16, 1' % (X + k, D + k))
        a('v_lshrrev_b32 v%d, 17, v%d' % (NP + k, NP + k))
        a('v_and_b32 v%d, 0xffff, v%d' % (D + k, D + k))
        a('v_lshl_or_b32 v%d, v%d, 20, v%d' % (X + k, X + k, NP + k))
    scan4(X)
    TT = RAW + 32
    a('s_movk_i32 s%d, %d' % (sT2, NSL * 64))
    for k in range(4):
        a('v_lshrrev_b32 v%d, 20, v%d' % (TT + k, X + k))
        a('v_and_b32 v%d, 0xfffff, v%d' % (X + k, X + k))
        a('v_add_u32 v%d, v%d, v%d' % (DL + k, D + k, T0 + 3))
        a('v_sub_u32 v%d, v%d, v%d' % (TT + k, X + k, TT + k))
        a('v_sub_u32 v%d, v%d, v%d' % (DL + k, DL + k, X + k))
        a('v_add_u32 v%d, v%d, v%d' % (TT + k, TT + k, X + k))
        a('v_mul_u32_u24 v%d, 12, v%d' % (DL + k, DL + k))
        a('v_subrev_u32 v%d, %d, v%d' % (T0, 64 * P['nfull'], X + k))
        a('v_cmpx_lt_u32 vcc, %d, v%d' % (64 * (NSL - P['nfull']), T0))
        a('v_mov_b32 v%d, 0x1000000' % (TT + k))
        a('s_mov_b64 exec, -1')
    if hk:
        a('v_cmp_lt_u32 vcc, %d, v%d' % (NS0 * 8192 // 12, D + P['nrun'] - 1))
        a('s_cmp_lg_u64 vcc, 0')
        a('s_cselect_b64 exec, -1, 0')
        a('v_mov_b32 v%d, 0x1000000' % TT)
        a('s_mov_b64 exec, -1')
    for k in range(4):
        a('v_readlane_b32 s%d, v%d, 63' % (sEW + k, X + k))
    a('s_lshl_b32 s%d, s%d, 4' % (sT, sW))
    a('v_mov_b32 v%d, s%d' % (T0, sT))
    a('s_mov_b32 exec_lo, 0')
    a('s_mov_b32 exec_hi, 0x80000000')
    a('ds_write_b128 v%d, %s offset:%d' % (T0, vr(TT, 4), SC0))
    a('s_mov_b64 exec, -1')
    a('s_lshl_b32 s%d, s%d, 9' % (sT, sW))
    for k in range(4):
        a('v_subrev_u32 v%d, 1, v%d' % (T0, X + k))
        a('v_lshlrev_b32 v%d, v%d, v%d' % (T0 + 1, T0, ONE))
        a('v_lshrrev_b32 v%d, 5, v%d' % (T0, T0))
        a('v_lshl_add_u32 v%d, v%d, 2, s%d' % (T0, T0, sT))
        a('v_cmpx_ge_u32 vcc, s%d, v%d' % (sT2, X + k))
        a('v_cmpx_ne_u32 vcc, 0, v%d' % (NP + k))
        a('v_mbcnt_lo_u32_b32 v%d, vcc_lo, 0' % (T0 + 2))
        a('v_mbcnt_hi_u32_b32 v%d, vcc_hi, v%d' % (T0 + 2, T0 + 2))
        a('v_lshl_add_u32 v%d, v%d, 2, s%d' % (T0 + 2, T0 + 2, sTB))
        a('ds_or_b32 v%d, v%d offset:%d' % (T0, T0 + 1, BB0 + 128 * k))
        a('ds_write_b32 v%d, v%d offset:%d' % (T0 + 2, DL + k, TB0 + 272 * k))
        a('s_mov_b64 exec, -1')
    a('v_and_b32 v%d, 7, v0' % T0)
    a('v_lshlrev_b32 v%d, 4, v%d' % (T0, T0))
    a('s_waitcnt lgkmcnt(0)')
    a('s_barrier')
    a('ds_read_b128 %s, v%d offset:%d' % (vr(TT, 4), T0, SC0))
    a('s_mov_b32 s%d, 0' % sPc)
    a('s_waitcnt lgkmcnt(0)')
    for c in ('row_shr:1', 'row_shr:2', 'row_shr:4'):
        for k in range(4):
            a('v_add_u32_dpp v%d, v%d, v%d %s row_mask:0xf bank_mask:0xf' % (TT + k, TT + k, TT + k, c))
    for k in range(4):
        a('v_readlane_b32 s%d, v%d, 7' % (sPc + 1 + k, TT + k))
    for k in range(1, 4):
        a('s_add_u32 s%d, s%d, s%d' % (sPc + 1 + k, sPc + 1 + k, sPc + k))
    a('s_cmp_gt_u32 s%d, %d' % (sPc + 4, NBLK * 1024 if P['force_slow'] != 4 else 0))
    a('s_cbranch_scc1 Lk2_fb')
    a('s_cmp_ge_u32 s%d, %d' % (sPc + 2, 29 * 1024))
    a('s_cbranch_scc1 Lk2_fb')
    stamp(1)

    BUF = (96, 156)
    LEAD, HP = P['lead'], P['hp']
    RO, ZR = 184, 212
    DI = (TF[0], TF[1], VM, L12, TH, TH + 1, ONE)
    NFULL = P['nfull']
    mA, mC, mV, mM = {}, {}, {}, {}
    VMS = (255, VM)

    def raw(u):
        return BUF[(u // NSL) & 1] + 4 * (u % NSL)

    def Mrd(r):
        a('s_lshl_b32 s%d, s%d, 9' % (sT, sW))
        a('v_lshl_add_u32 v%d, v%d, 2, s%d' % (VMS[r >> 1], LANE, sT))
        a('ds_read_b32 v%d, v%d offset:%d' % (VMS[r >> 1], VMS[r >> 1], BB0 + 128 * r))
        mM[r] = a.mark()

    def keys(t0, t1, R):
        for e, t in enumerate((t0, t1)):
            a('v_lshrrev_b32 v%d, 6, v%d' % (t, R + 2 * e))
        for t in (t0, t1):
            a('v_and_b32 v%d, 0x3ffc, v%d' % (t, t))

    def A(u):
        R = raw(u)
        t0, t1 = TAR[2 * (u % NA)], TAR[2 * (u % NA) + 1]
        keys(t0, t1, R)
        for t in (t0, t1):
            a('ds_read_b32 v%d, v%d offset:%d' % (t, t, KC0))
        mA[u] = a.mark()

    def B(u):
        R = raw(u)
        tail = u % NSL >= NFULL
        if tail:
            a('v_cmpx_gt_i32 vcc, 0, v%d' % (R + 1))
        a.wait_ds(mA[u])
        for e in range(2):
            t = TAR[2 * (u % NA) + e]
            a('v_add_u32 v%d, v%d, v%d' % (t, t, R + 2 * e + 1))
        for e in range(2):
            t = TAR[2 * (u % NA) + e]
            a('v_lshlrev_b32_sdwa v%d, 1, v%d dst_sel:DWORD dst_unused:UNUSED_PAD src0_sel:DWORD src1_sel:WORD_0' % (t, t))
            a('ds_write_b64 v%d, %s offset:%d' % (t, vr(R + 2 * e, 2), RING0))
        if tail:
            a('s_mov_b64 exec, -1')

    def C(u):
        if u >= 4 * NSL:
            return
        r, k = divmod(u, NSL)
        t = TF[u & 1]
        if u == 0:
            a.wait_ds(mM[2])
        if k == 0:
            a('s_mul_i32 s%d, s%d, 1088' % (sTB, sW))
        a('v_readlane_b32 s%d, v%d, %d' % (sLO, VMS[r >> 1], 32 * (r & 1) + 2 * k))
        a('v_readlane_b32 s%d, v%d, %d' % (sLO + 1, VMS[r >> 1], 32 * (r & 1) + 2 * k + 1))
        a('s_bcnt1_i32_b64 s%d, %s' % (sT, sr(sLO, 2)))
        a('v_mbcnt_lo_u32_b32 v%d, s%d, 0' % (t, sLO))
        a('v_mbcnt_hi_u32_b32 v%d, s%d, v%d' % (t, sLO + 1, t))
        a('v_lshl_add_u32 v%d, v%d, 2, s%d' % (t, t, sTB))
        a('s_lshl2_add_u32 s%d, s%d, s%d' % (sTB, sT, sTB))
        a('ds_read_b32 v%d, v%d offset:%d' % (t, t, TB0 + 272 * r))
        mC[u] = a.mark()

    def Dd(u):
        if u >= 4 * NSL:
            return
        t = TF[u & 1]
        a('s_movk_i32 s%d, %d' % (sT2, 768 * (u % NSL)))
        a.wait_ds(mC[u])
        a('v_add_u32 v%d, v%d, v%d' % (t, t, L12))
        if P['abl'] & 2048:
            a('v_and_b32 v%d, 0x3ffff, v%d' % (t, t))
        a('buffer_load_dwordx3 %s, v%d, %s, s%d offen %s' % (vr(raw(u), 3), t, sr(S_WS, 4), sT2, HO))
        mV[u] = a.mark()

    hpend = []
    hcnt = [0]

    def H2():
        while hpend:
            R, t0, t1, m = hpend.pop()
            a.wait_ds(m)
            a('v_lshl_or_b32 v%d, v%d, 16, v%d' % (R + 3, R + 1, t1))
            a('v_and_or_b32 v%d, v%d, s%d, v%d' % (R + 1, R + 1, sHI, t0))

    def H(u):
        R = raw(u)
        tail = u % NSL >= NFULL
        t0, t1 = ((TH, TH + 1), (236, 238))[hcnt[0] & 1]
        hcnt[0] += 1
        a.wait_vm(mV[u])
        keys(t0, t1, R)
        if tail:
            a('v_cmpx_gt_i32 vcc, 0, v%d' % (R + 1))
        for t in (t0, t1):
            a('ds_add_rtn_u32 v%d, v%d, v%d offset:%d' % (t, t, EIGHT, KC0))
        m = a.mark()
        if tail:
            a('s_mov_b64 exec, -1')
        H2()
        hpend.append((R, t0, t1, m))

    def keyscan(r):
        K = RT
        nds = a.nds
        a('s_cmp_lg_u32 s%d, %d' % (sW, P['scw']))
        a('s_cbranch_scc1 Lks%d' % r)
        a('v_lshlrev_b32 v%d, 6, v%d' % (RA, LANE))
        for j in range(4):
            a('ds_read_b128 %s, v%d offset:%d' % (vr(K + 4 * j, 4), RA, KC0 + 3136 * r + 16 * j))
        a('s_waitcnt lgkmcnt(0)')
        for j in range(1, 16):
            a('v_add_u32 v%d, v%d, v%d' % (K + j, K + j, K + j - 1))
        a('v_mov_b32 v%d, v%d' % (RA + 1, K + 15))
        G['scan64'](a, RA + 1)
        a('v_sub_u32 v%d, v%d, v%d' % (RA + 1, RA + 1, K + 15))
        a('v_lshl_add_u32 v%d, s%d, 2, v%d' % (RA + 1, sPc + r, RA + 1))
        a('v_cmpx_gt_u32 vcc, 49, v%d' % LANE)
        for j in range(15, -1, -1):
            if j:
                a('v_add_u32 v%d, v%d, v%d' % (K + j, K + j - 1, RA + 1))
            else:
                a('v_mov_b32 v%d, v%d' % (K, RA + 1))
            if j % 4 == 0:
                a('ds_write_b128 v%d, %s offset:%d' % (RA, vr(K + j, 4), KC0 + 3136 * r + 4 * j))
        a('s_lshl_b32 s%d, s%d, 2' % (sT, sPc + r + 1))
        a('v_mov_b32 v%d, s%d' % (RA + 1, sT))
        a('v_lshlrev_b32 v%d, 2, v%d' % (RA, LANE))
        a('s_mov_b64 exec, 0xffff')
        a('ds_write_b32 v%d, v%d offset:%d' % (RA, RA + 1, KC0 + 4 * (3136 + 16 * r)))
        a('s_mov_b64 exec, -1')
        a('Lks%d:' % r)
        a('s_nop 1')
        a.nds = nds

    def rb_reads(RT=RT, j0=0):
        mk = {}
        for j in range(4):
            a('s_add_u32 s%d, s%d, %d' % (sT, sRB, j0 + j))
            a('s_and_b32 s%d, s%d, 15' % (sT, sT))
            a('s_lshl_b32 s%d, s%d, 13' % (sT, sT))
            a('v_add_u32 v%d, s%d, v%d' % (RA + j, sT, RBA))
            a('ds_read_b64 %s, v%d offset:%d' % (vr(RT + 4 * j, 2), RA + j, RING0))
            a('ds_read_b64 %s, v%d offset:%d' % (vr(RT + 4 * j + 2, 2), RA + j, RING0 + 512))
            mk[j] = a.mark()
        return mk

    def rb_moves(mk, RT=RT):
        a('s_mul_i32 s%d, s%d, 3' % (sIX, sRB))
        a('s_set_gpr_idx_on s%d, gpr_idx(DST)' % sIX)
        for j in range(4):
            a.wait_ds(mk[j])
            a('v_mov_b32 v%d, v%d' % (S0 + 3 * j, RT + 4 * j))
            a('v_mov_b32 v%d, v%d' % (S0 + 3 * j + 1, RT + 4 * j + 2))
            a('v_perm_b32 v%d, v%d, v%d, s%d' % (S0 + 3 * j + 2, RT + 4 * j + 3, RT + 4 * j + 1, sPS))
        a('s_set_gpr_idx_off')
        a('s_add_u32 s%d, s%d, 4' % (sRB, sRB))

    def readback(tag):
        nds = a.nds
        a('s_cmp_ge_u32 s%d, s%d' % (sRB, sRE))
        a('s_cbranch_scc1 Lrd%s' % tag)
        a('Lrl%s:' % tag)
        rb_moves(rb_reads())
        a('s_cmp_lt_u32 s%d, s%d' % (sRB, sRE))
        a('s_cbranch_scc1 Lrl%s' % tag)
        a('Lrd%s:' % tag)
        a('s_mov_b32 s%d, s%d' % (sRB, sRE))
        a.nds = nds

    def warm(j):
        if P['warm']:
            a('s_mov_b32 s%d, %d' % (sT, j * 51200 * 128))
            a('buffer_load_dword v%d, v%d, %s, s%d offen' % (WD, WA, sr(S_MR, 4), sT))

    def l2pf(j):
        if j * 16384 >= P['pfn']:
            return
        if j == 0:
            a('s_lshr_b32 s%d, s2, 3' % sT)
            a('s_lshl_b32 s%d, s%d, 9' % (sT, sT))
            a('v_add_lshl_u32 v%d, v0, s%d, 7' % (WA, sT))
            a('s_mov_b32 s%d, %d' % (S_MR + 2, P['pfn'] * 128))
        a('s_mov_b32 s%d, %d' % (sT, j * 16384 * 128))
        a('buffer_load_dword v%d, v%d, %s, s%d offen' % (WD, WA, sr(S_MR, 4), sT))

    def dist_loads():
        a('v_lshlrev_b32 v%d, 1, v0' % (RA + 2))
        for q in range(NQ):
            a('s_movk_i32 s%d, %d' % (sT, q * 1024))
            a('buffer_load_ushort v%d, v%d, %s, s%d offen' % (DI[q], RA + 2, sr(S_DIST, 4), sT))
        return a.mark()

    def rbf_batch(q):
        K = RT
        a('v_lshlrev_b32 v%d, 16, v%d' % (K + 8, DI[q]))
        a('v_mul_f32 v%d, s%d, v%d' % (K + 8, sR, K + 8))
        for r in range(8):
            a('v_subrev_f32 v%d, s%d, v%d' % (K + r, sCEN + r, K + 8))
        for r in range(8):
            a('v_mul_f32 v%d, v%d, v%d' % (K + r, K + r, K + r))
        for r in range(8):
            a('v_exp_f32 v%d, -v%d' % (K + r, K + r))
        for r in range(4):
            a('v_cvt_pk_f16_f32 v%d, v%d, v%d' % (RO + 4 * q + r, K + 2 * r, K + 2 * r + 1))

    NP_ = P['npipe']

    def guarded(r, body):
        n = lab[0]
        lab[0] += 1
        nds, nvm = a.nds, a.nvm
        for k in range(NP_, NSL):
            a('s_cmp_le_u32 s%d, %d' % (sEW + r, 64 * k))
            a('s_cbranch_scc1 Lg%d' % n)
            body(NSL * r + k)
        a('Lg%d:' % n)
        a('s_nop 3')
        a.nds, a.nvm = nds, nvm

    def U(x):
        return NSL * (x // NP_) + x % NP_

    def Cx(x):
        C(U(x))

    def Dx(x):
        if x >= 4 * NP_:
            return
        if hk and x == NP_ * P['nrun'] - 3:
            mM['p'] = done_load()
        if hk and x == NP_ * P['nrun']:
            stamp(14)
            done_wait(mM['p'])
            stamp(15)
        Dd(U(x))

    def loadstep(x):
        def first():
            if (x + 1) % NP_:
                Cx(x + 1)

        def second():
            Dx(x)
            if (x + 1) % NP_ == 0 and x < 4 * NP_:
                r = x // NP_

                def body(u):
                    C(u)
                    Dd(u)
                guarded(r, body)
                for k in range(NP_, NSL):
                    mV[NSL * r + k] = a.mark()
                if r < 3:
                    Cx(x + 1)
        return first, second

    def Hx(x):
        H(U(x))
        if (x + 1) % NP_ == 0:
            H2()
            guarded(x // NP_, lambda u: (H(u), H2()))

    Mrd(0)
    Mrd(2)
    a('s_mov_b32 s%d, 0' % sRB)
    lag = P['dv']
    C(0)
    for i in range(NP_ + lag):
        f1, f2 = loadstep(i)
        f1()
        f2()
        if hk and P['lt0'] <= i < P['lt0'] + len(late):
            mS = late[i - P['lt0']]()
        if i >= lag:
            Hx(i - lag)
    if hk and late:
        a.wait_vm(mS)
        hk.arrive2(0, VT, hk.arrive1(0, VT))
    a('s_waitcnt lgkmcnt(0)')
    a('s_barrier')
    keyscan(0)
    lead0 = P['lead0']
    for i in range(NP_ + lag, NP_ + lead0):
        f1, f2 = loadstep(i)
        f1()
        f2()
    a('s_waitcnt lgkmcnt(0)')
    a('s_barrier')
    nxt = NP_ + max(lag, lead0)
    for r in range(4):
        stamp(2 + r)
        u0 = NSL * r
        hq = list(range(NP_ * (r + 1), NP_ * (r + 2))) if r < 3 else []
        if r:
            a('s_lshr_b32 s%d, s%d, 10' % (sRE, sPc + r))
            for g in range(3):
                mk = rb_reads()
                if hq:
                    Hx(hq.pop(0))
                rb_moves(mk)
            readback(str(r))
        while r and len(hq) > NP_ - HP:
            Hx(hq.pop(0))
        for k in range(NA - 1):
            A(u0 + k)
        if r == P['fr']:
            stamp(11)
        if r:
            a('s_barrier')
        if r == P['fr']:
            stamp(12)
        pend = None
        for i in range(NP_):
            f1, f2 = loadstep(nxt)
            f1()
            if i + NA - 1 < NP_:
                A(u0 + i + NA - 1)
            B(u0 + i)
            assert nxt < NP_ * (r + 2) or nxt - NP_ * (r + 2) <= i
            f2()
            nxt += 1
            if nxt < NP_ * (r + 1) + LEAD + i + 1:
                f1, f2 = loadstep(nxt)
                f1()
                f2()
                nxt += 1
            nh = 2 if (len(hq) > max(1, NP_ - HP - i) and U(hq[1]) in mV and hq[1] + 4 <= nxt) else 1
            for _ in range(nh):
                if hq:
                    Hx(hq.pop(0))
                    if not hq:
                        pend = (i + P['bhd'], a.mark())
                        if r == 2:
                            mD = dist_loads()
            if pend and pend[0] == i:
                a.wait_ds(pend[1])
                if r == P['fr']:
                    stamp(13)
                a('s_barrier')
                keyscan(r + 1)
                if r == P['fr']:
                    stamp(14)
            for j in range(4):
                if P['wpos'][j] == 'abcdefghijklmnopqrstuvwxyzABCDEFGH'[(r - 2) * NP_ + i] and r >= 2:
                    warm(j)
            for j in range(2):
                if P['ppos'][j] == 'abcdefghijklmnopqrstuvwxyzABCDEFGH'[(r - 2) * NP_ + i] and r >= 2:
                    l2pf(j)
            if r == 3 and i == 6:
                if not P['imgl']:
                    img_load(0, 5, AG, RA)
                a.wait_vm(mD)
            if r == 3 and 7 <= i < 7 + NQ - 1:
                rbf_batch(i - 7)

        def body(u):
            A(u)
            B(u)
        guarded(r, body)
        if r == 3:
            a('s_cmp_lg_u32 s%d, 0' % sW)
            a('s_cbranch_scc1 Lk2_r6')
            rbf_batch(NQ - 1)
            a('Lk2_r6:')
        a('s_waitcnt lgkmcnt(0)')
        if r == P['fr']:
            stamp(15)
        a('s_barrier')
    stamp(6)
    a('s_add_u32 s%d, s%d, 1023' % (sRE, sPc + 4))
    a('s_lshr_b32 s%d, s%d, 10' % (sRE, sRE))
    if P['fpipe']:
        RT2 = 164
        a('s_cmp_gt_u32 s%d, 41' % sRB)
        a('s_cbranch_scc1 Lk2_f0')
        m0 = rb_reads(RT)
        m1 = rb_reads(RT2, 4)
        rb_moves(m0, RT)
        m0 = rb_reads(RT, 4)
        rb_moves(m1, RT2)
        rb_moves(m0, RT)
        a('Lk2_f0:')
    readback('L')
    a('s_max_u32 s%d, s%d, 1' % (sRB, sRB))
    a('s_sub_u32 s%d, s%d, 1' % (sRB, sRB))
    a('s_mul_i32 s%d, s%d, 3' % (sEND, sRB))
    a('s_lshl_b32 s%d, s%d, 10' % (sT, sRB))
    a('s_sub_u32 s%d, s%d, s%d' % (sT, sPc + 4, sT))
    a('v_lshrrev_b32 v%d, 3, v%d' % (TM, RBA))
    a('v_add_u32 v%d, 64, v%d' % (TM + 1, TM))
    a('v_cmp_gt_u32 %s, s%d, v%d' % (sr(sLM, 2), sT, TM))
    a('v_cmp_gt_u32 %s, s%d, v%d' % (sr(sLM + 2, 2), sT, TM + 1))
    a('s_set_gpr_idx_on s%d, gpr_idx(SRC1,DST)' % sEND)
    a('s_andn2_b64 exec, -1, %s' % sr(sLM + 2, 2))
    a('v_mov_b32 v%d, 0' % (S0 + 1))
    a('v_and_b32 v%d, 0xffff, v%d' % (S0 + 2, S0 + 2))
    a('s_andn2_b64 exec, -1, %s' % sr(sLM, 2))
    a('v_mov_b32 v%d, 0' % S0)
    a('v_mov_b32 v%d, 0' % (S0 + 2))
    a('s_mov_b64 exec, -1')
    a('s_set_gpr_idx_off')
    a('s_mov_b32 s%d, 0' % sIX)
    a('Lk2_init:')
    a('s_barrier')
    for i in range(4):
        a('v_mov_b32 v%d, 0' % (ZR + i))
    a('v_lshlrev_b32 v%d, 4, v0' % A4)
    a('v_add_u32 v%d, %d, v%d' % (A4B, HI0, A4))
    a('v_add_u32 v%d, %d, v%d' % (CV, RBF0, A4))
    for q in range(NQ - 1):
        a('ds_write_b128 v%d, %s offset:%d' % (CV, vr(RO + 4 * q, 4), 8192 * q))
    a('s_mov_b64 exec, %s' % sr(sV6, 2))
    a('ds_write_b128 v%d, %s offset:%d' % (CV, vr(RO + 4 * NQ - 4, 4), 8192 * (NQ - 1)))
    a('s_mov_b64 exec, -1')
    a('s_cmp_lg_u32 s%d, 0' % sMODE)
    a('s_cbranch_scc1 Lk2_ng')
    if P['imgl']:
        img_load(0, 5, AG, TM)
    decode_rel(0, 0)
    gathers(0)
    decode_rel(1, 0)
    gathers(1)
    a('Lk2_ng:')
    if P['ztid']:
        a('s_lshl_b32 m0, s%d, 8' % sW)
        a('s_nop 0')
        for o in list(range(0, RBF0 - 2048, 2048)) + [RBF0 - 2048]:
            a('ds_write_addtid_b32 v%d offset:%d' % (ZR, o))
    for o in (list(range(0, RBF0 - 8192, 8192)) + [RBF0 - 8192]) * (not P['ztid']):
        a('ds_write_b128 v%d, %s offset:%d' % (A4, vr(ZR, 4), o))
    for o in list(range(0, 4 * PL - 8192, 8192)) + [4 * PL - 8192]:
        a('ds_write_b128 v%d, %s offset:%d' % (A4B, vr(ZR, 4), o))
    a('v_mov_b32 v%d, 0' % STK)
    a('v_mov_b32 v%d, 0' % RTN[0])
    a('v_mov_b32 v%d, 0' % RTN[1])
    a('v_mov_b32 v%d, 0x1000000' % CK)
    a('v_and_b32 v255, 0x1df, v0')
    a('v_lshl_add_u32 v255, v255, 5, v%d' % (IA + 1))
    a('s_waitcnt lgkmcnt(0)')
    a('s_barrier')
    stamp(7, True)
    a('s_cmp_lg_u32 s%d, 0' % sMODE)
    a('s_cbranch_scc1 Lk2_all')
    a('ds_read_b128 %s, v%d offset:%d' % (vr(RBF, 4), A16[0], RBF0))
    a('s_waitcnt lgkmcnt(0)')
    MQ, AU, AR, OA = 4, 60, 68, 255
    WW, RBB, CNN = (76, 96), (84, 104), (88, 108)
    R16, T1, T2, T3, T4 = 92, 112, 113, 114, 115
    MF, AI, KB = 116, 132, 140
    sTRG = 89

    def epi_loads():
        img_load(5, 3, AU, 2)
        for q in range(NQ):
            a('s_mov_b32 s%d, %d' % (sT, q * 16384))
            a('buffer_load_dwordx4 %s, v%d, %s, s%d offen' % (vr(MQ + 8 * q, 4), OA, sr(S_MO, 4), sT))
            a('buffer_load_dwordx4 %s, v%d, %s, s%d offen offset:1024' % (vr(MQ + 8 * q + 4, 4), OA, sr(S_MO, 4), sT))

    a('s_mul_i32 s%d, s%d, 49' % (sTRG, sBIN))
    a('s_lshr_b32 s%d, s%d, 8' % (sTRG, sTRG))
    a('s_add_u32 s%d, s%d, %d' % (sTRG, sTRG, P['trg']))
    a('s_and_b32 s%d, s%d, 15' % (sT, sBIN))
    a('s_add_u32 s%d, s%d, 24' % (sT, sT))
    a('s_cmp_lt_u32 s%d, 24' % sTRG)
    a('s_cselect_b32 s%d, s%d, s%d' % (sTRG, sT, sTRG))
    a('s_mul_i32 s%d, s%d, 3' % (sTRG, sTRG))
    a('s_min_u32 s%d, s%d, s%d' % (sTRG, sTRG, sEND))
    if '1' in P['wpos']:
        a('s_mov_b32 s90, %d' % (3 * P['mw1']))
        a('s_mov_b32 s91, %d' % (P['wpos'].index('1') * 51200 * 128))
        a('v_mov_b32 v155, v%d' % WA)
    if P['mpf']:
        per = P['mpp']
        a('s_lshr_b32 s%d, s2, 3' % sT)
        a('s_and_b32 s90, s%d, %d' % (sT, per - 1))
        a('s_add_u32 s90, s90, 1')
        a('s_lshr_b32 s%d, s%d, %d' % (sT, sT, per.bit_length() - 1))
        a('s_mul_i32 s%d, s%d, %d' % (sT, sT, 128 * per * 128))
        a('s_add_u32 s91, s90, %d' % P['mpf'])
        a('s_lshl_b32 s91, s91, 19')
        a('s_add_u32 s91, s91, s%d' % sT)
        a('s_mul_i32 s90, s90, 3')
    if P['prio']:
        a('s_cmp_lt_u32 s%d, 4' % sW)
        a('s_cbranch_scc1 Lk2_np')
        a('s_setprio 1')
        a('Lk2_np:')
    a.raw('.p2align 6')
    a('Lk2_loop:')
    a('s_cmp_eq_u32 s%d, s%d' % (sIX, sTRG))
    a('s_cbranch_scc1 Lk2_el')
    a('Lk2_lc:')
    if P['mpf']:
        a('s_cmp_eq_u32 s%d, s90' % sIX)
        a('s_cbranch_scc1 Lk2_pl')
        a('Lk2_pc:')
    if '1' in P['wpos']:
        a('s_cmp_eq_u32 s%d, s90' % sIX)
        a('s_cbranch_scc1 Lk2_wl')
        a('Lk2_wc:')
    step(0)
    if P['stag'] == 2:
        halfbar(0)
    step(1)
    if P['stag']:
        halfbar(0)
    elif P['mbar'] == 1:
        a('s_barrier')
    elif P['mbar']:
        a('s_and_b32 s%d, s%d, %d' % (sT, sIX, P['mbar'] - 1))
        a('s_cbranch_scc1 Lk2_nb')
        a('s_barrier')
        a('Lk2_nb:')
    a('s_add_u32 s%d, s%d, 3' % (sIX, sIX))
    a('s_cmp_le_u32 s%d, s%d' % (sIX, sEND))
    a('s_cbranch_scc1 Lk2_loop')
    stamp(8, True)
    a('s_mov_b32 s%d, 0' % sPASS)
    for i in range(NQ):
        a('s_mov_b64 %s, 0' % sr(sFL + 2 * i, 2))
        a('s_mov_b64 %s, 0' % sr(sSK + 2 * i, 2))
    a('Lk2_epi:')
    a('v_lshlrev_b32 v%d, 3, v0' % A4)
    a('v_lshlrev_b32 v%d, 2, v0' % AC)
    a('v_add_u32 v%d, %d, v%d' % (A4B, HI0, A4))
    a('v_mov_b32 v%d, 0' % KB)
    a('v_mov_b32 v%d, 0x%x' % (KB + 1, (-0x10001) & 0xffffffff))
    a('v_bfe_u32 v%d, v0, 2, 1' % T1)
    a('v_bfe_u32 v%d, v0, 5, 1' % T2)
    a('v_and_b32 v%d, 1, v0' % T3)
    a('v_lshlrev_b32 v%d, 4, v%d' % (T3, T3))
    a('v_mov_b32 v%d, 0x3f80' % T4)
    a('v_lshlrev_b32 v%d, v%d, v%d' % (T3, T3, T4))
    a('v_bfe_u32 v%d, v0, 3, 2' % T4)
    a('v_xor_b32 v%d, v%d, v%d' % (T1, T1, T2))
    a('v_bfe_u32 v%d, v0, 1, 1' % T2)
    a('v_lshl_or_b32 v%d, v%d, 1, v%d' % (T4, T4, T2))
    a('v_lshl_or_b32 v%d, v%d, 3, v%d' % (T4, T1, T4))
    for i in range(8):
        a('v_mov_b32 v%d, 0' % (AI + i))
        a('v_cmpx_eq_u32 vcc, %d, v%d' % (i, T4))
        a('v_mov_b32 v%d, v%d' % (AI + i, T3))
        a('s_mov_b64 exec, -1')
    a('v_lshlrev_b32 v%d, 4, v0' % R16)
    a('s_waitcnt vmcnt(4) lgkmcnt(0)')
    a('v_or3_b32 v%d, v%d, v%d, v%d' % (STK, STK, RTN[0], RTN[1]))
    a('s_barrier')
    mk = {}

    def e_read(q):
        W, RB, CN = WW[q & 1], RBB[q & 1], CNN[q & 1]
        if q == NQ - 1:
            for i in range(4):
                a('v_mov_b32 v%d, 0' % (RB + i))
            for i in range(8):
                a('v_mov_b32 v%d, 0' % (W + i))
            a('v_mov_b32 v%d, 0' % CN)
            a('s_mov_b64 exec, %s' % sr(sV6, 2))
        a('ds_read_b32 v%d, v%d offset:%d' % (CN, AC, CNT0 + 2048 * q))
        mk[q, -1] = a.mark()
        for j in range(4):
            b, o = plane(j)
            a('ds_read_b64 %s, v%d offset:%d' % (vr(W + 2 * j, 2), b, o + 4096 * q))
            mk[q, j] = a.mark()
        a('ds_read_b128 %s, v%d offset:%d' % (vr(RB, 4), R16, RBF0))
        mk[q, 8] = a.mark()
        if q == NQ - 1:
            a('s_mov_b64 exec, -1')
        else:
            a('v_add_u32 v%d, 8192, v%d' % (R16, R16))

    def e_decode(q):
        W, CN = WW[q & 1], CNN[q & 1]
        a.wait_ds(mk[q, -1 if q == 0 else 8])
        a('v_lshrrev_b32 v%d, 24, v%d' % (CN + 1, CN))
        a('v_and_b32 v%d, 0xffffff, v%d' % (CN, CN))
        a('v_sub_u32 v%d, 0x20001, v%d' % (T1, CN + 1))
        a('v_mad_u64_u32 %s, vcc, v%d, s%d, %s' % (vr(CN + 2, 2), T1, sM1, vr(KB, 2)))
        a('v_cmp_lt_u32 vcc, 127, v%d' % (CN + 1))
        a('v_mul_u32_u24 v%d, %d, v%d' % (CN + 1, P['theta'], CN + 1))
        a('s_or_b64 %s, %s, vcc' % (sr(sFL + 2 * q, 2), sr(sFL + 2 * q, 2)))
        a('v_cmp_lt_u32 vcc, 0x7ffe, v%d' % CN)
        a('v_add_u32 v%d, v%d, v%d' % (CN + 3, CN + 3, CN + 2))
        a('s_or_b64 %s, %s, vcc' % (sr(sFL + 2 * q, 2), sr(sFL + 2 * q, 2)))
        a('v_cmp_lt_u32 vcc, v%d, v%d' % (CN, CN + 1))
        a('s_or_b64 %s, %s, vcc' % (sr(sFL + 2 * q, 2), sr(sFL + 2 * q, 2)))
        a('s_andn2_b64 exec, -1, %s' % sr(sSK + 2 * q, 2))
        for j in range(4):
            if q == 0:
                a.wait_ds(mk[q, j])
            a('v_lshl_add_u64 %s, %s, 0, %s' % (vr(W + 2 * j, 2), vr(W + 2 * j, 2), vr(CN + 2, 2)))
            for e in range(2):
                a('v_xor_b32 v%d, s%d, v%d' % (W + 2 * j + e, sM1, W + 2 * j + e))
            for e in range(2):
                w = W + 2 * j + e
                a('v_cvt_f32_i32_sdwa v%d, sext(v%d) dst_sel:DWORD dst_unused:UNUSED_PAD src0_sel:WORD_1' % (CN + e, w))
                a('v_cvt_f32_i32_sdwa v%d, sext(v%d) dst_sel:DWORD dst_unused:UNUSED_PAD src0_sel:WORD_0' % (w, w))
            for e in range(2):
                a('v_cvt_pk_bf16_f32 v%d, v%d, v%d' % (W + 2 * j + e, W + 2 * j + e, CN + e))
        a('s_mov_b64 exec, -1')
        if q == 0:
            a.wait_ds(mk[q, 8])

    def e_mfma(q):
        W, RB = WW[q & 1], RBB[q & 1]
        a('v_mfma_f32_32x32x16_bf16 %s, %s, %s, 0' % (vr(MF, 16), vr(AI, 4), vr(MQ + 8 * q, 4)))
        a('v_mfma_f32_32x32x16_bf16 %s, %s, %s, %s' % (vr(MF, 16), vr(AI + 4, 4), vr(MQ + 8 * q + 4, 4), vr(MF, 16)))
        a('v_mfma_f32_32x32x16_f16 %s, %s, %s, 0' % (vr(GATE, 16), vr(AR, 4), vr(RB, 4)))
        a('v_mfma_f32_32x32x16_bf16 %s, %s, %s, 0' % (vr(MD, 16), vr(AU, 4), vr(W, 4)))
        a('v_mfma_f32_32x32x16_bf16 %s, %s, %s, %s' % (vr(MD, 16), vr(AU + 4, 4), vr(W + 4, 4), vr(MD, 16)))

    def e_out(q):
        a('s_mov_b32 s%d, %d' % (sT, q * 16384))
        for j in range(8):
            m = MQ + 8 * q + j
            ta, tb = MF + 2 * j, MF + 2 * j + 1
            a('v_fmac_f32 v%d, v%d, v%d' % (ta, MD + 2 * j, GATE + 2 * j))
            a('v_fmac_f32 v%d, v%d, v%d' % (tb, MD + 2 * j + 1, GATE + 2 * j + 1))
            a('v_cvt_pk_bf16_f32 v%d, v%d, v%d' % (m, ta, tb))
            if j == 3:
                a('buffer_store_dwordx4 %s, v%d, %s, s%d offen %s' % (vr(MQ + 8 * q, 4), OA, sr(S_OUT, 4), sT, P['stout']))
        a('buffer_store_dwordx4 %s, v%d, %s, s%d offen offset:1024 %s' % (vr(MQ + 8 * q + 4, 4), OA, sr(S_OUT, 4), sT, P['stout']))

    e_read(0)
    e_read(1)
    e_decode(0)
    for q in range(NQ - 1):
        e_mfma(q)
        if q + 1 < NQ - 1:
            e_decode(q + 1)
        if q + 2 < NQ:
            e_read(q + 2)
        e_out(q)
    a('s_cmp_lg_u32 s%d, 0' % sW)
    a('s_cbranch_scc1 Lk2_e6')
    e_decode(NQ - 1)
    e_mfma(NQ - 1)
    e_out(NQ - 1)
    a('Lk2_e6:')
    stamp(9, True)
    if P['stamp']:
        a('s_waitcnt vmcnt(0)')
        stamp(10, True)
    if P['abl']:
        a('s_branch Lk2_end')
    a('s_cmp_lg_u32 s%d, 0' % sPASS)
    a('s_cbranch_scc1 Lk2_end')
    a('s_or_b64 %s, %s, %s' % (sr(sMK, 2), sr(sFL, 2), sr(sFL + 2, 2)))
    for q in range(2, NQ):
        a('s_or_b64 %s, %s, %s' % (sr(sMK, 2), sr(sMK, 2), sr(sFL + 2 * q, 2)))
    a('s_cselect_b32 s%d, 1, %d' % (sT, P['force_slow'] & 3))
    a('v_cmp_gt_i32 vcc, 0, v%d' % STK)
    a('s_cmp_lg_u64 vcc, 0')
    a('s_cselect_b32 s%d, 3, s%d' % (sT, sT))
    a('v_mov_b32 v2, s%d' % sT)
    a('s_lshl_b32 s%d, s%d, 2' % (sT, sW))
    a('s_add_u32 s%d, s%d, %d' % (sT, sT, SCR))
    a('v_mov_b32 v3, s%d' % sT)
    a('ds_write_b32 v3, v2')
    a('v_and_b32 v2, 7, v0')
    a('v_lshlrev_b32 v2, 2, v2')
    a('v_add_u32 v2, %d, v2' % SCR)
    a('s_waitcnt lgkmcnt(0)')
    a('s_barrier')
    a('ds_read_b32 v3, v2')
    a('s_waitcnt lgkmcnt(0)')
    a('v_cmp_ne_u32 vcc, 0, v3')
    a('s_cmp_eq_u64 vcc, 0')
    a('s_cbranch_scc1 Lk2_end')
    a('v_cmp_lt_u32 vcc, 1, v3')
    a('s_cmp_lg_u64 vcc, 0')
    a('Lk2_all:')
    for q in range(NQ):
        a('s_cselect_b64 %s, -1, %s' % (sr(sSK + 2 * q, 2), sr(sFL + 2 * q, 2)))
    a('s_and_b64 %s, %s, %s' % (sr(sSK + 2 * NQ - 2, 2), sr(sSK + 2 * NQ - 2, 2), sr(sV6, 2)))
    a('s_waitcnt vmcnt(0)')
    VD, VE, REC, ADDR, F12 = 4, 8, 12, 16, 17
    desc_load(VD, 18)
    a('v_lshlrev_b32 v%d, 3, v0' % A4)
    a('v_lshlrev_b32 v%d, 2, v0' % AC)
    a('v_add_u32 v%d, %d, v%d' % (A4B, HI0, A4))
    a('v_mov_b32 v2, 0')
    a('v_mov_b32 v3, 0')
    a('v_mov_b32 v19, -1')
    for q in range(NQ):
        a('s_mov_b64 exec, %s' % sr(sSK + 2 * q, 2))
        a('ds_write_b32 v%d, v19 offset:%d' % (AC, CNT0 + 2048 * q))
        for j in range(4):
            b, o = plane(j)
            a('ds_write_b64 v%d, v[2:3] offset:%d' % (b, o + 4096 * q))
        a('s_mov_b64 exec, -1')
        a('s_waitcnt lgkmcnt(0)')
    a('s_barrier')
    a('s_movk_i32 s%d, %d' % (sT, REC0 // 12))
    a('v_mov_b32 v%d, %d' % (F12, TSP))
    a('v_mad_u32_u24 v%d, v0, v%d, s%d' % (F12, F12, sT))
    a('s_waitcnt vmcnt(0)')
    for k in range(4):
        a('v_and_b32 v%d, 0x7fffffff, v%d' % (VD + k, VD + k))
        a('v_add_u32 v%d, 0x10000, v%d' % (VE + k, VD + k))
        a('v_and_b32 v%d, 0xffff, v%d' % (VD + k, VD + k))
        a('v_lshrrev_b32 v%d, 17, v%d' % (VE + k, VE + k))
    scan4(VE)
    for k in range(4):
        if k:
            a('v_add_u32 v%d, s%d, v%d' % (VE + k, sNT, VE + k))
        a('v_add_u32 v%d, v%d, v%d' % (VD + k, VD + k, F12))
        a('v_readlane_b32 s%d, v%d, 63' % (sNT, VE + k))
        a('v_sub_u32 v%d, v%d, v%d' % (VD + k, VD + k, VE + k))
        a('v_mul_lo_u32 v%d, v%d, 12' % (VD + k, VD + k))
    a('v_mul_u32_u24 v%d, 12, v%d' % (F12, LANE))
    a('s_mov_b32 s%d, 0' % sF)
    a('s_mov_b32 s%d, 0' % sE)
    a('s_mov_b32 s%d, 0' % sDL)
    a('s_movk_i32 s%d, -64' % sI)
    a('Lk2_sl:')
    a('s_cmp_ge_u32 s%d, s%d' % (sF, sNT))
    a('s_cbranch_scc1 Lk2_sd')
    a('v_add_u32 v%d, s%d, v%d' % (ADDR, sDL, F12))
    a('s_sub_u32 s%d, s%d, s%d' % (sP, sE, sF))
    a('s_cmp_ge_u32 s%d, 64' % sP)
    a('s_cbranch_scc1 Lfd')
    a('Lfl:')
    a('v_readlane_b32 s%d, v%d, s%d' % (sDL, VD, sI))
    a('v_readlane_b32 s%d, v%d, s%d' % (sE, VE, sI))
    a('s_add_u32 s%d, s%d, 1' % (sI, sI))
    a('s_cbranch_scc0 Lfc')
    a('s_mov_b64 exec, -1')
    for k in range(3):
        a('v_mov_b32 v%d, v%d' % (VE + k, VE + k + 1))
        a('v_mov_b32 v%d, v%d' % (VD + k, VD + k + 1))
    a('v_mov_b32 v%d, -1' % (VE + 3))
    a('v_bfrev_b32 v%d, 1' % (VD + 3))
    a('s_movk_i32 s%d, -64' % sI)
    a('Lfc:')
    a('s_lshl_b64 exec, -1, s%d' % sP)
    a('v_add_u32 v%d, s%d, v%d' % (ADDR, sDL, F12))
    a('s_sub_u32 s%d, s%d, s%d' % (sP, sE, sF))
    a('s_cmp_lt_u32 s%d, 64' % sP)
    a('s_cbranch_scc1 Lfl')
    a('s_mov_b64 exec, -1')
    a('Lfd:')
    a('s_add_u32 s%d, s%d, 64' % (sF, sF))
    a('v_add_u32 v%d, 768, v%d' % (F12, F12))
    a('buffer_load_dwordx3 %s, v%d, %s, 0 offen %s' % (vr(REC, 3), ADDR, sr(S_WS, 4), HO))
    a('s_mov_b32 s%d, 0' % sSUB)
    a('s_waitcnt vmcnt(0)')
    a('Lk2_s2:')
    a('v_cmp_gt_i32 %s, 0, v%d' % (sr(sMK, 2), REC + 1))
    a('v_ashrrev_i32 v%d, 31, v%d' % (TM, REC + 1))
    a('v_and_b32 v%d, v%d, v%d' % (REC, REC, TM))
    a('v_and_b32 v%d, s%d, v%d' % (IA, sIDM, REC))
    a('v_and_b32 v%d, s%d, v%d' % (IB, sIDM, REC))
    a('v_lshrrev_b32 v%d, 16, v%d' % (A16[0], REC))
    a('v_and_b32 v%d, s%d, v%d' % (A16[0], sA16, A16[0]))
    a('v_and_b32 v%d, s%d, v%d' % (ANG[0], sHI, REC + 1))
    a('v_permlane32_swap_b32 v%d, v%d' % (IA, IB))
    addrs(0)
    a('ds_read_b32 v%d, v%d offset:%d' % (CV, AC, CNT0))
    a('ds_read_b128 %s, v%d offset:%d' % (vr(RBF, 4), A16[0], RBF0))
    a('s_waitcnt lgkmcnt(0)')
    a('v_cmp_gt_i32 vcc, 0, v%d' % CV)
    a('s_and_b64 %s, %s, vcc' % (sr(sMK, 2), sr(sMK, 2)))
    a('s_cbranch_scc0 Lk2_s3')
    gathers(0)
    cosines(0)
    for l in range(3):
        sbf(l)
        gmf(l)
    a('s_waitcnt vmcnt(0)')
    mdown(0)
    for d in range(16):
        a('v_mul_f32 v%d, 0x47800000, v%d' % (GATE + d, GATE + d))
        a('v_mul_f32 v%d, v%d, v%d' % (MD + d, MD + d, GATE + d))
    a('s_mov_b64 exec, %s' % sr(sMK, 2))
    for j in range(8):
        a('v_cvt_pk_bf16_f32 v%d, v%d, v%d' % (MD + 2 * j, MD + 2 * j, MD + 2 * j + 1))
        b, o = plane(j >> 1)
        a('ds_pk_add_bf16 v%d, v%d offset:%d' % (b, MD + 2 * j, o + 4 * (j & 1)))
    a('s_mov_b64 exec, -1')
    a('Lk2_s3:')
    a('v_mov_b32 v%d, v%d' % (REC, REC + 2))
    a('v_lshlrev_b32 v%d, 16, v%d' % (REC + 1, REC + 1))
    a('s_xor_b32 s%d, s%d, 1' % (sSUB, sSUB))
    a('s_cbranch_scc1 Lk2_s2')
    a('s_branch Lk2_sl')
    a.fence()
    a('Lk2_sd:')
    a('s_mov_b32 s%d, 1' % sPASS)
    epi_loads()
    a('s_waitcnt vmcnt(0)')
    a('s_branch Lk2_epi')
    a.fence()
    a('Lk2_fb:')
    a('s_mov_b32 s%d, 1' % sMODE)
    if hk:
        if late:
            for f in late:
                f()
            a('s_waitcnt vmcnt(0)')
            hk.arrive2(0, VT, hk.arrive1(0, VT))
        done_wait(done_load())
    dist_loads()
    img_load(0, 5, AG, RA)
    a('s_waitcnt vmcnt(0)')
    for q in range(NQ):
        rbf_batch(q)
    a('s_branch Lk2_init')
    a.fence()
    if '1' in P['wpos']:
        a('Lk2_wl:')
        a('buffer_load_dword v2, v155, %s, s91 offen' % sr(S_MR, 4))
        a('s_add_u32 s90, s90, %d' % (3 * P['mw2']))
        a('s_add_u32 s91, s91, %d' % (51200 * 128))
        a('s_cmp_ge_u32 s91, %d' % (4 * 51200 * 128))
        a('s_cselect_b32 s90, -1, s90')
        a('s_branch Lk2_wc')
        a.fence()
    if P['mpf']:
        a('Lk2_pl:')
        per = P['mpp']
        if per == 2:
            a('v_and_b32 v3, 31, v0')
            a('v_lshl_add_u32 v3, s%d, 5, v3' % sW)
            a('v_lshlrev_b32 v3, 7, v3')
        else:
            a('v_lshlrev_b32 v3, 7, v0')
        if per == 8:
            a('s_add_u32 s%d, s91, 65536' % sT)
            a('buffer_load_dword v%d, v3, %s, s%d offen' % (72, sr(S_MR, 4), sT))
        a('buffer_load_dword v3, v3, %s, s91 offen' % sr(S_MR, 4))
        a('s_add_u32 s90, s90, %d' % (3 * per))
        a('s_add_u32 s91, s91, %d' % (per << 19))
        a('s_branch Lk2_pc')
        a.fence()
    a('Lk2_el:')
    epi_loads()
    a('s_branch Lk2_lc')
    a.fence()
    a('Lk2_end:')
    a('s_endpgm')
    a.fence()
    return LDS
```

```python
import math


def k2(a, P, G, hk):
    vr, sr, srd, f2u = G['vr'], G['sr'], G['srd'], G['f2u']
    E, BINE, TS, TSP = G['E'], G['BINE'], G['TS'], G['TSP']
    REC0, DESC0, PREP0, WS_BYTES = G['REC0'], G['DESC0'], G['PREP0'], G['WS_BYTES']
    ROWS = BINE + 3
    PL = ROWS * 4
    RBF0 = 5 * PL
    HI0 = RBF0 + ROWS * 16
    SCR = HI0 + 4 * PL
    LDS = SCR + 128
    KC0, TB0, BB0, SC0, RING0 = 0, 12800, 21504, 25600, 25856
    NSL = 15
    NBLK = 51
    NQ = 7
    S_M, S_MR, S_WS, S_DIST, S_MO, S_OUT, S_DBG = 16, 20, 24, 28, 32, 36, 92
    sCEN = 40
    sW, sBIN, sT, sT2 = 48, 49, 50, 51
    sM0, sM1, sIDM, sHI, sA16 = 52, 53, 54, 55, 56
    sPASS, sMODE, sIX = 57, 58, 59
    sV6 = 60
    sMK = 62
    sFL, sSK = 64, 78
    sPc = 64
    sR, sTB, sRB, sRE, sPS = 69, 70, 71, 72, 73
    sLO = 74
    sMA = 84
    sLM = 84
    sEND = 88
    sEW = 80
    sF, sE, sDL, sI, sP, sNT, sSUB = 4, 5, 6, 7, 8, 9, 10
    LANE, S0 = 1, 2
    AG, AM, GATE, MD = 164, 176, 184, 200
    GB = (156, 216)
    SBF, RBF = 224, 232
    IA, IB = 236, 238
    A16, ANG = (240, 241), (242, 243)
    A4, A4B, CV, AC = 244, 245, 246, 155
    RTN = (247, 248)
    STK, CK, TM = 249, 250, 251
    RAW = 156
    RT, RA = 216, 232
    NA = P['na']
    TAR = (240, 241, 242, 243, 236, 238)
    TF = (244, 245)
    TH, VM, ONE, EIGHT, L12, RBA, WD, WA = 246, 248, 249, 250, 251, 252, 253, 254
    lab = [0]
    HO = 'sc1' if hk else P['ldrec']
    VZ, VP, VT = 6, 7, 8
    NS0 = P['ns0']

    def spin(load, notready, m):
        n = lab[0]
        lab[0] += 1
        a('s_mov_b32 s%d, 0x40000' % sT2)
        a.wait_vm(m)
        a('Lpl%d:' % n)
        notready()
        a('s_cbranch_execz Lpd%d' % n)
        a('s_sleep %d' % P['slp'])
        a.nocount = True
        load()
        a.nocount = False
        a('s_sub_u32 s%d, s%d, 1' % (sT2, sT2))
        a('s_waitcnt vmcnt(0)')
        a('s_cbranch_scc0 Lpl%d' % n)
        a('Lpd%d:' % n)
        a('s_mov_b64 exec, -1')
        a('s_nop 3')

    def cleared_load():
        a('global_load_dword v%d, v%d, s[12:13] sc1' % (VP, VZ))
        return a.mark()

    def done_load():
        a('global_load_dword v%d, v%d, s[14:15] sc1' % (VP, VZ))
        return a.mark()

    def done_addr():
        a('s_and_b32 s%d, s2, 7' % sT)
        a('s_lshl3_add_u32 s%d, s%d, s%d' % (sT, sT, sW))
        a('s_lshl_b32 s%d, s%d, 7' % (sT, sT))
        a('s_add_u32 s%d, s%d, %d' % (sT, sT, G['FLG0']))
        a('v_and_b32 v%d, 31, v0' % VZ)
        a('v_lshl_add_u32 v%d, v%d, 2, s%d' % (VZ, VZ, sT))

    def done_wait(m):
        spin(done_load, lambda: a('v_cmpx_ne_u32 vcc, 1, v%d' % VP), m)

    def stamp(i, late=False):
        G['stamp'](a, i, S_DBG, 96, *((253, 254) if late else (235, 234)))

    CNT0 = 2 * PL

    def plane(j):
        return ((A4, 0), (A4, 3 * PL), (A4B, 0), (A4B, 2 * PL))[j]

    def desc_load(dst, tb):
        a('v_lshlrev_b32 v%d, 12, v0' % tb)
        a('s_lshl_b32 s%d, s%d, 4' % (sT, sBIN))
        a('s_add_u32 s%d, s%d, %d' % (sT, sT, DESC0))
        a('buffer_load_dwordx4 %s, v%d, %s, s%d offen %s' % (vr(dst, 4), tb, sr(S_WS, 4), sT, HO))
        return a.mark()

    def scan4(v):
        for c, rm in (('row_shr:1', 15), ('row_shr:2', 15), ('row_shr:4', 15), ('row_shr:8', 15), ('row_bcast:15', 10), ('row_bcast:31', 12)):
            for k in range(4):
                a('v_add_u32_dpp v%d, v%d, v%d %s row_mask:0x%x bank_mask:0xf' % (v + k, v + k, v + k, c, rm))

    def img_load(first, n, dst, t):
        a('v_lshlrev_b32 v%d, 4, v%d' % (t, LANE))
        for i in range(n):
            a('s_mov_b32 s%d, %d' % (sT, PREP0 + 1024 * (first + i)))
            a('buffer_load_dwordx4 %s, v%d, %s, s%d offen %s' % (vr(dst + 4 * i, 4), t, sr(S_WS, 4), sT, HO))

    def gathers(q):
        a('buffer_load_dwordx4 %s, %s, %s, 0 idxen offen' % (vr(GB[q], 4), vr(IA, 2), sr(S_M, 4)))
        a('buffer_load_dwordx4 %s, %s, %s, 0 idxen offen' % (vr(GB[q] + 4, 4), vr(IB, 2), sr(S_M, 4)))

    def cosines(p):
        c1, c3, c2 = TM, TM + 1, TM + 2
        a('v_mul_f32 v%d, 0x40400000, v%d' % (c3, ANG[p]))
        a('v_mul_f32 v%d, 0.15915494, v%d' % (c1, ANG[p]))
        a('v_cvt_pk_bf16_f32 v%d, 0, v%d' % (c3, c3))
        a('v_fract_f32 v%d, v%d' % (c1, c1))
        a('v_mul_f32 v%d, 0.15915494, v%d' % (c3, c3))
        a('v_cos_f32 v%d, v%d' % (c1, c1))
        a('v_fract_f32 v%d, v%d' % (c3, c3))
        a('v_cos_f32 v%d, v%d' % (c3, c3))
        a('v_fma_mixlo_f16 v%d, v%d, v%d, -0.5' % (c2, c1, c1))
        a('v_cvt_pk_f16_f32 v%d, v%d, v%d' % (c1, c1, c3))

    def sbf(l):
        src, sel = ((TM, 0), (TM + 2, 0), (TM, 1))[l]
        for j in range(4):
            a('v_pk_mul_f16 v%d, v%d, v%d op_sel:[0,%d] op_sel_hi:[1,%d]' % (SBF + 4 * (l & 1) + j, RBF + j, src, sel, sel))

    def gmf(l):
        a('v_mfma_f32_32x32x16_f16 %s, %s, %s, %s' % (vr(GATE, 16), vr(AG + 4 * l, 4), vr(SBF + 4 * (l & 1), 4), vr(GATE, 16) if l else '0'))

    def mdown(p):
        a('v_mfma_f32_32x32x16_bf16 %s, %s, %s, 0' % (vr(MD, 16), vr(AM, 4), vr(GB[p], 4)))
        a('v_mfma_f32_32x32x16_bf16 %s, %s, %s, %s' % (vr(MD, 16), vr(AM + 4, 4), vr(GB[p] + 4, 4), vr(MD, 16)))

    def addrs(p):
        a('v_lshrrev_b32 v%d, 1, v%d' % (A4, A16[p]))
        a('v_lshrrev_b32 v%d, 2, v%d' % (AC, A16[p]))
        a('v_add_u32 v%d, %d, v%d' % (A4B, HI0, A4))

    def decode_rel(p, base, part=3):
        a('s_set_gpr_idx_on s%d, gpr_idx(SRC1)' % sIX)
        a('s_nop 0')
        if part & 1:
            a('v_and_b32 v%d, s%d, v%d' % (IA, sIDM, S0 + base + p))
            a('v_and_b32 v%d, s%d, v%d' % (IB, sIDM, S0 + base + p))
        if part & 2:
            a('v_and_b32_sdwa v%d, s%d, v%d dst_sel:DWORD dst_unused:UNUSED_PAD src0_sel:DWORD src1_sel:WORD_1' % (A16[p], sA16, S0 + base + p))
            if p:
                a('v_and_b32 v%d, s%d, v%d' % (ANG[p], sHI, S0 + base + 2))
            else:
                a('v_lshlrev_b32 v%d, 16, v%d' % (ANG[p], S0 + base + 2))
        a('s_set_gpr_idx_off')
        if part & 1:
            a('v_permlane32_swap_b32 v%d, v%d' % (IA, IB))

    def halfbar(hi):
        n = lab[0]
        lab[0] += 1
        a('s_bitcmp%d_b32 s%d, %d' % (0 if hi else 1, sW, P['stb_']))
        a('s_cbranch_scc1 Lhb%d' % n)
        a('s_barrier')
        a.hist[-1].states = 0
        a('Lhb%d:' % n)

    def step(p):
        q = 1 - p
        ab = P['abl']
        vq = (lambda t: None) if ab & 4 else a
        vb = (lambda t: None) if ab & 68 else a
        va = (lambda t: None) if ab & 1 else a
        if P['early']:
            decode_rel(p, 3, 1)
        a('s_waitcnt vmcnt(2)')
        if not ab & 16:
            mdown(p)
        if P['early']:
            gathers(p)
        if not ab & 32:
            cosines(p)
        a('s_waitcnt lgkmcnt(%d)' % (0 if ab & 1 else 5))
        if not ab & 32:
            sbf(0)
        addrs(p)
        if not ab & 8:
            gmf(0)
        if not ab & 32:
            sbf(1)
        a('v_or_b32 v%d, v%d, v%d' % (STK, STK, RTN[p]))
        a('s_cmp_eq_u32 s%d, s%d' % (sIX, sEND))
        if not ab & 8:
            gmf(1)
        if not ab & 32:
            sbf(2)
        a('ds_read_b128 %s, v%d offset:%d' % (vr(RBF, 4), A16[q], RBF0))
        a('s_cselect_b64 %s, %s, -1' % (sr(sMK, 2), sr(sLM + 2 * p, 2)))
        if not ab & 8:
            gmf(2)
        if P['early']:
            decode_rel(p, 3, 2)
        else:
            decode_rel(p, 3)
            gathers(p)
        if P['stag'] and (p == 1 or P['stag'] == 2):
            halfbar(1)
        a('s_mov_b64 exec, %s' % sr(sMK, 2))
        pk = lambda j: MD + 4 * (j >> 1) + (j & 1)
        for j in range(8):
            vq('v_fma_f32 v%d, v%d, v%d, s%d' % (MD + 2 * j, MD + 2 * j, GATE + 2 * j, sM0))
            vq('v_fma_f32 v%d, v%d, v%d, s%d' % (MD + 2 * j + 1, MD + 2 * j + 1, GATE + 2 * j + 1, sM0))
            if j:
                jj = j - 1
                vb('v_sad_u16 v%d, v%d, s%d, v%d' % (TM + (jj >> 1), pk(jj), sM1, TM + (jj >> 1) if jj & 1 else CK))
            vq('v_cvt_pknorm_u16_f32 v%d, v%d, v%d' % (pk(j), MD + 2 * j, MD + 2 * j + 1))
            if j & 1:
                b, o = plane(j >> 1)
                va('ds_add_u64 v%d, %s offset:%d' % (b, vr(pk(j - 1), 2), o))
        vb('v_max3_u32 v%d, v%d, v%d, v%d' % (CV, TM, TM + 1, TM + 2))
        vb('v_sad_u16 v%d, v%d, s%d, v%d' % (TM + 3, pk(7), sM1, TM + 3))
        vb('v_max_u32 v%d, v%d, v%d' % (CV, CV, TM + 3))
        va('ds_add_rtn_u32 v%d, v%d, v%d offset:%d' % (RTN[p], AC, CV, CNT0))
        a('s_mov_b64 exec, -1')

    if not hk:
        a('s_cmp_ge_u32 s2, 256')
        a('s_cbranch_scc1 Lk2_end')
    a('s_load_dwordx2 s[4:5], s[0:1], 0')
    a('s_load_dwordx2 s[6:7], s[0:1], 24')
    a('s_load_dwordx2 s[8:9], s[0:1], 40')
    a('s_load_dwordx2 s[10:11], s[0:1], 88')
    if not hk:
        a('s_load_dwordx4 s[12:15], s[0:1], 96')
    if P['cpf'] & 2:
        G['code_prefetch'](a, 'b', 88, 4)
    a('v_lshrrev_b32 v3, 6, v0')
    a('v_and_b32 v%d, 63, v0' % LANE)
    a('v_readfirstlane_b32 s%d, v3' % sW)
    if hk:
        a('v_and_b32 v%d, 3, v0' % VZ)
        a('v_lshlrev_b32 v%d, 6, v%d' % (VZ, VZ))
        mP = cleared_load()
    a('s_and_b32 s%d, s2, 7' % sBIN)
    a('s_lshl_b32 s%d, s%d, 5' % (sBIN, sBIN))
    a('s_lshr_b32 s%d, s2, 3' % sT)
    a('s_add_u32 s%d, s%d, s%d' % (sBIN, sBIN, sT))
    a('s_mov_b32 s%d, 0x%x' % (sM0, f2u(32768.0 / 65535.0)))
    a('s_mov_b32 s%d, 0x80008000' % sM1)
    a('s_mov_b32 s%d, 0x%x' % (sIDM, P['idm']))
    a('s_mov_b32 s%d, 0xffff0000' % sHI)
    a('s_mov_b32 s%d, 0xfff0' % sA16)
    a('s_mov_b32 s%d, 0x07060302' % sPS)
    a('s_mov_b32 s%d, 0' % sMODE)
    a('s_mul_i32 s%d, s%d, %d' % (sPASS, sBIN, BINE))
    a('s_add_u32 s%d, s%d, %d' % (sIX, sPASS, BINE))
    a('s_andn2_b32 s%d, s%d, 3' % (sPASS, sPASS))
    a('s_andn2_b32 s%d, s%d, 3' % (sIX, sIX))
    a('s_sub_u32 s%d, s%d, s%d' % (sIX, sIX, sPASS))
    a('s_sub_u32 s%d, s%d, 3072' % (sT, sIX))
    a('v_cmp_gt_u32 %s, s%d, v0' % (sr(sV6, 2), sT))
    a('v_lshrrev_b32 v%d, 5, v%d' % (IA + 1, LANE))
    a('v_lshlrev_b32 v%d, 4, v%d' % (IA + 1, IA + 1))
    a('v_mov_b32 v%d, v%d' % (IB + 1, IA + 1))
    a('v_mov_b32 v%d, 0' % IA)
    a('v_mov_b32 v%d, 0' % IB)
    a('s_waitcnt lgkmcnt(0)')
    a('s_load_dwordx4 s[96:99], s[8:9], 0')
    srd(a, S_WS, 14, WS_BYTES)
    D, X, DL = RAW, RAW + 4, RAW + 8
    if hk:
        a('s_barrier')
        for j in range(NS0):
            mS = hk.store(j)
    else:
        mDs = desc_load(D, RAW + 12)
        if P['spf']:
            a('s_lshr_b32 s%d, s2, 3' % sT)
            a('s_and_b32 s%d, s%d, 1' % (sT2, sT))
            a('s_mul_i32 s%d, s%d, 160' % (sT2, sT2))
            a('s_add_u32 s%d, s%d, 4720' % (sT2, sT2))
            a('s_and_b32 s90, s2, 7')
            a('s_mul_i32 s%d, s%d, s90' % (sT2, sT2))
            a('s_lshl_b32 s90, s%d, 6' % sW)
            a('s_add_u32 s90, s90, s%d' % sT)
            a('s_mul_i32 s90, s90, %d' % TS)
            a('s_add_u32 s90, s90, s%d' % sT2)
            a('s_add_u32 s90, s90, %d' % REC0)
            a('s_cmp_lt_u32 s%d, %d' % (sT, P['spf']))
            a('s_cselect_b32 s90, s90, %d' % WS_BYTES)
            a('v_min_u32 v%d, 38, v%d' % (WD, LANE))
            a('v_lshlrev_b32 v%d, 7, v%d' % (WD, WD))
            if P['spf'] > 32:
                a('buffer_load_dword v%d, v%d, %s, s90 offen' % (TH, WD, sr(S_WS, 4)))
                a('s_add_u32 s90, s90, %d' % (32 * TS))
                a('s_cmp_lt_u32 s%d, %d' % (sT, P['spf'] - 32))
                a('s_cselect_b32 s90, s90, %d' % WS_BYTES)
            a('buffer_load_dword v%d, v%d, %s, s90 offen' % (WD, WD, sr(S_WS, 4)))
    a('s_lshl_b32 s%d, s%d, 1' % (sT, sPASS))
    a('s_lshl_b32 s%d, s%d, 5' % (sT2, sPASS))
    srd(a, S_DIST, 6, 0, 's%d' % sT)
    srd(a, S_M, 4, E, None, 32)
    srd(a, S_MR, 4, E * 32)
    srd(a, S_MO, 4, 0, 's%d' % sT2)
    srd(a, S_OUT, 10, 0, 's%d' % sT2)
    a('s_lshl_b32 s%d, s%d, 1' % (S_DIST + 2, sIX))
    a('s_lshl_b32 s%d, s%d, 5' % (S_MO + 2, sIX))
    a('s_lshl_b32 s%d, s%d, 5' % (S_OUT + 2, sIX))
    G['stamp_init'](a, S_DBG, 14, 1, sW)
    a('s_waitcnt lgkmcnt(0)')
    for r in range(4):
        a('s_lshl_b32 s%d, s%d, 16' % (sCEN + 2 * r, 96 + r))
        a('s_and_b32 s%d, s%d, 0xffff0000' % (sCEN + 2 * r + 1, 96 + r))
    a('s_mov_b32 s%d, 0x%x' % (sR, f2u(math.sqrt(10.0 * math.log2(math.e)))))
    a('v_mov_b32 v%d, s%d' % (RT + 8, sR))
    for r in range(8):
        a('v_mul_f32 v%d, s%d, v%d' % (RT + r, sCEN + r, RT + 8))
    for r in range(8):
        a('v_readfirstlane_b32 s%d, v%d' % (sCEN + r, RT + r))
    stamp(0)
    Z, T0 = 96, 104
    for i in range(4):
        a('v_mov_b32 v%d, 0' % (Z + i))
        a('v_bfrev_b32 v%d, 1' % (Z + 4 + i))
    a('v_lshlrev_b32 v%d, 4, v0' % T0)
    a('v_lshlrev_b32 v%d, 3, v0' % (T0 + 1))
    a('s_mul_i32 s%d, s%d, 1088' % (sTB, sW))
    a('v_lshl_add_u32 v%d, v%d, 4, s%d' % (T0 + 2, LANE, sTB))
    a('ds_write_b64 v%d, %s offset:%d' % (T0 + 1, vr(Z, 2), BB0))
    a('ds_write_b128 v%d, %s offset:%d' % (T0 + 2, vr(Z + 4, 4), TB0))
    a('ds_write_b128 v%d, %s offset:%d' % (T0 + 2, vr(Z + 4, 4), TB0 + 64))
    a('s_movk_i32 s%d, 400' % sT)
    a('v_cmpx_gt_u32 vcc, s%d, v0' % sT)
    a('ds_write_b128 v%d, %s offset:%d' % (T0, vr(Z, 4), KC0))
    a('ds_write_b128 v%d, %s offset:%d' % (T0, vr(Z, 4), KC0 + 6400))
    a('s_mov_b64 exec, -1')
    a('v_mov_b32 v%d, 1' % ONE)
    a('v_mov_b32 v%d, 4' % EIGHT)
    a('v_mul_u32_u24 v%d, 12, v%d' % (L12, LANE))
    a('s_lshl_b32 s%d, s%d, 10' % (sT, sW))
    a('v_lshl_add_u32 v%d, v%d, 3, s%d' % (RBA, LANE, sT))
    a('s_lshl_b32 s%d, s2, 3' % sT)
    a('s_add_u32 s%d, s%d, s%d' % (sT, sT, sW))
    a('s_mul_i32 s%d, s%d, 25' % (sT, sT))
    a('v_min_u32 v%d, 24, v%d' % (WA, LANE))
    a('v_add_lshl_u32 v%d, v%d, s%d, 7' % (WA, WA, sT))
    for j in range(4):
        if P['wpos'][j] == '0':
            a('s_mov_b32 s%d, %d' % (sT, j * 51200 * 128))
            a('buffer_load_dword v%d, v%d, %s, s%d offen' % (WD, WA, sr(S_MR, 4), sT))
    a('s_movk_i32 s%d, %d' % (sT, REC0 // 12))
    a('v_mov_b32 v%d, %d' % (T0 + 3, TSP))
    a('v_mad_u32_u24 v%d, v0, v%d, s%d' % (T0 + 3, T0 + 3, sT))
    if hk:
        rest = []
        for j in range(NS0, 20):
            if 20 - j <= len(hk.rest_a):
                rest.append(hk.rest_a[j - 20])
            rest.append(lambda j=j: hk.store(j))
        for j in range(P['nsx']):
            rest.pop(0)()
        a.wait_vm(mS)
        a('s_barrier')
        hk.publish()
        stamp(11)
        late = rest[len(rest) - P['nlate']:] if P['nlate'] else []
        for f in rest[:len(rest) - len(late)]:
            mS = f()
        spin(cleared_load, lambda: a('v_cmpx_gt_u32 vcc, 64, v%d' % VP), mP)
        mDs = desc_load(D, RAW + 12)
        done_addr()
        stamp(12)
        if not late:
            a.wait_vm(mS)
            hk.arrive2(0, VT, hk.arrive1(0, VT))

        def nr():
            a('v_and_b32 v%d, v%d, v%d' % (VT, D, D + 1))
            a('v_and_b32 v%d, v%d, v%d' % (VT + 1, D + 2, D + 3))
            a('v_and_b32 v%d, v%d, v%d' % (VT, VT, VT + 1))
            a('v_cmpx_le_i32 vcc, 0, v%d' % VT)
        spin(lambda: desc_load(D, RAW + 12), nr, mDs)
        stamp(13)
        for k in range(4):
            a('v_and_b32 v%d, 0x7fffffff, v%d' % (D + k, D + k))
    else:
        a.wait_vm(mDs)
    NP = RAW + 28
    for k in range(4):
        a('v_add_u32 v%d, 0x10000, v%d' % (NP + k, D + k))
        a('v_bfe_u32 v%d, v%d, 16, 1' % (X + k, D + k))
        a('v_lshrrev_b32 v%d, 17, v%d' % (NP + k, NP + k))
        a('v_and_b32 v%d, 0xffff, v%d' % (D + k, D + k))
        a('v_lshl_or_b32 v%d, v%d, 20, v%d' % (X + k, X + k, NP + k))
    scan4(X)
    TT = RAW + 32
    a('s_movk_i32 s%d, %d' % (sT2, NSL * 64))
    for k in range(4):
        a('v_lshrrev_b32 v%d, 20, v%d' % (TT + k, X + k))
        a('v_and_b32 v%d, 0xfffff, v%d' % (X + k, X + k))
        a('v_add_u32 v%d, v%d, v%d' % (DL + k, D + k, T0 + 3))
        a('v_sub_u32 v%d, v%d, v%d' % (TT + k, X + k, TT + k))
        a('v_sub_u32 v%d, v%d, v%d' % (DL + k, DL + k, X + k))
        a('v_add_u32 v%d, v%d, v%d' % (TT + k, TT + k, X + k))
        a('v_mul_u32_u24 v%d, 12, v%d' % (DL + k, DL + k))
        a('v_subrev_u32 v%d, %d, v%d' % (T0, 64 * P['nfull'], X + k))
        a('v_cmpx_lt_u32 vcc, %d, v%d' % (64 * (NSL - P['nfull']), T0))
        a('v_mov_b32 v%d, 0x1000000' % (TT + k))
        a('s_mov_b64 exec, -1')
    if hk:
        a('v_cmp_lt_u32 vcc, %d, v%d' % (NS0 * 8192 // 12, D + P['nrun'] - 1))
        a('s_cmp_lg_u64 vcc, 0')
        a('s_cselect_b64 exec, -1, 0')
        a('v_mov_b32 v%d, 0x1000000' % TT)
        a('s_mov_b64 exec, -1')
    for k in range(4):
        a('v_readlane_b32 s%d, v%d, 63' % (sEW + k, X + k))
    a('s_lshl_b32 s%d, s%d, 4' % (sT, sW))
    a('v_mov_b32 v%d, s%d' % (T0, sT))
    a('s_mov_b32 exec_lo, 0')
    a('s_mov_b32 exec_hi, 0x80000000')
    a('ds_write_b128 v%d, %s offset:%d' % (T0, vr(TT, 4), SC0))
    a('s_mov_b64 exec, -1')
    a('s_lshl_b32 s%d, s%d, 9' % (sT, sW))
    for k in range(4):
        a('v_subrev_u32 v%d, 1, v%d' % (T0, X + k))
        a('v_lshlrev_b32 v%d, v%d, v%d' % (T0 + 1, T0, ONE))
        a('v_lshrrev_b32 v%d, 5, v%d' % (T0, T0))
        a('v_lshl_add_u32 v%d, v%d, 2, s%d' % (T0, T0, sT))
        a('v_cmpx_ge_u32 vcc, s%d, v%d' % (sT2, X + k))
        a('v_cmpx_ne_u32 vcc, 0, v%d' % (NP + k))
        a('v_mbcnt_lo_u32_b32 v%d, vcc_lo, 0' % (T0 + 2))
        a('v_mbcnt_hi_u32_b32 v%d, vcc_hi, v%d' % (T0 + 2, T0 + 2))
        a('v_lshl_add_u32 v%d, v%d, 2, s%d' % (T0 + 2, T0 + 2, sTB))
        a('ds_or_b32 v%d, v%d offset:%d' % (T0, T0 + 1, BB0 + 128 * k))
        a('ds_write_b32 v%d, v%d offset:%d' % (T0 + 2, DL + k, TB0 + 272 * k))
        a('s_mov_b64 exec, -1')
    a('v_and_b32 v%d, 7, v0' % T0)
    a('v_lshlrev_b32 v%d, 4, v%d' % (T0, T0))
    a('s_waitcnt lgkmcnt(0)')
    a('s_barrier')
    a('ds_read_b128 %s, v%d offset:%d' % (vr(TT, 4), T0, SC0))
    a('s_mov_b32 s%d, 0' % sPc)
    a('s_waitcnt lgkmcnt(0)')
    for c in ('row_shr:1', 'row_shr:2', 'row_shr:4'):
        for k in range(4):
            a('v_add_u32_dpp v%d, v%d, v%d %s row_mask:0xf bank_mask:0xf' % (TT + k, TT + k, TT + k, c))
    for k in range(4):
        a('v_readlane_b32 s%d, v%d, 7' % (sPc + 1 + k, TT + k))
    for k in range(1, 4):
        a('s_add_u32 s%d, s%d, s%d' % (sPc + 1 + k, sPc + 1 + k, sPc + k))
    a('s_cmp_gt_u32 s%d, %d' % (sPc + 4, NBLK * 1024 if P['force_slow'] != 4 else 0))
    a('s_cbranch_scc1 Lk2_fb')
    a('s_cmp_ge_u32 s%d, %d' % (sPc + 2, 29 * 1024))
    a('s_cbranch_scc1 Lk2_fb')
    stamp(1)

    BUF = (96, 156)
    LEAD, HP = P['lead'], P['hp']
    RO, ZR = 184, 212
    DI = (TF[0], TF[1], VM, L12, TH, TH + 1, ONE)
    NFULL = P['nfull']
    mA, mC, mV, mM = {}, {}, {}, {}
    VMS = (255, VM)

    def raw(u):
        return BUF[(u // NSL) & 1] + 4 * (u % NSL)

    def Mrd(r):
        a('s_lshl_b32 s%d, s%d, 9' % (sT, sW))
        a('v_lshl_add_u32 v%d, v%d, 2, s%d' % (VMS[r >> 1], LANE, sT))
        a('ds_read_b32 v%d, v%d offset:%d' % (VMS[r >> 1], VMS[r >> 1], BB0 + 128 * r))
        mM[r] = a.mark()

    def keys(t0, t1, R):
        for e, t in enumerate((t0, t1)):
            a('v_lshrrev_b32 v%d, 6, v%d' % (t, R + 2 * e))
        for t in (t0, t1):
            a('v_and_b32 v%d, 0x3ffc, v%d' % (t, t))

    def A(u):
        R = raw(u)
        t0, t1 = TAR[2 * (u % NA)], TAR[2 * (u % NA) + 1]
        keys(t0, t1, R)
        for t in (t0, t1):
            a('ds_read_b32 v%d, v%d offset:%d' % (t, t, KC0))
        mA[u] = a.mark()

    def B(u):
        R = raw(u)
        tail = u % NSL >= NFULL
        if tail:
            a('v_cmpx_gt_i32 vcc, 0, v%d' % (R + 1))
        a.wait_ds(mA[u])
        for e in range(2):
            t = TAR[2 * (u % NA) + e]
            a('v_add_u32 v%d, v%d, v%d' % (t, t, R + 2 * e + 1))
        for e in range(2):
            t = TAR[2 * (u % NA) + e]
            a('v_lshlrev_b32_sdwa v%d, 1, v%d dst_sel:DWORD dst_unused:UNUSED_PAD src0_sel:DWORD src1_sel:WORD_0' % (t, t))
            a('ds_write_b64 v%d, %s offset:%d' % (t, vr(R + 2 * e, 2), RING0))
        if tail:
            a('s_mov_b64 exec, -1')

    def C(u):
        if u >= 4 * NSL:
            return
        r, k = divmod(u, NSL)
        t = TF[u & 1]
        if u == 0:
            a.wait_ds(mM[2])
        if k == 0:
            a('s_mul_i32 s%d, s%d, 1088' % (sTB, sW))
        a('v_readlane_b32 s%d, v%d, %d' % (sLO, VMS[r >> 1], 32 * (r & 1) + 2 * k))
        a('v_readlane_b32 s%d, v%d, %d' % (sLO + 1, VMS[r >> 1], 32 * (r & 1) + 2 * k + 1))
        a('s_bcnt1_i32_b64 s%d, %s' % (sT, sr(sLO, 2)))
        a('v_mbcnt_lo_u32_b32 v%d, s%d, 0' % (t, sLO))
        a('v_mbcnt_hi_u32_b32 v%d, s%d, v%d' % (t, sLO + 1, t))
        a('v_lshl_add_u32 v%d, v%d, 2, s%d' % (t, t, sTB))
        a('s_lshl2_add_u32 s%d, s%d, s%d' % (sTB, sT, sTB))
        a('ds_read_b32 v%d, v%d offset:%d' % (t, t, TB0 + 272 * r))
        mC[u] = a.mark()

    def Dd(u):
        if u >= 4 * NSL:
            return
        t = TF[u & 1]
        a('s_movk_i32 s%d, %d' % (sT2, 768 * (u % NSL)))
        a.wait_ds(mC[u])
        a('v_add_u32 v%d, v%d, v%d' % (t, t, L12))
        if P['abl'] & 2048:
            a('v_and_b32 v%d, 0x3ffff, v%d' % (t, t))
        a('buffer_load_dwordx3 %s, v%d, %s, s%d offen %s' % (vr(raw(u), 3), t, sr(S_WS, 4), sT2, HO))
        mV[u] = a.mark()

    hpend = []
    hcnt = [0]

    def H2():
        while hpend:
            R, t0, t1, m = hpend.pop()
            a.wait_ds(m)
            a('v_lshl_or_b32 v%d, v%d, 16, v%d' % (R + 3, R + 1, t1))
            a('v_and_or_b32 v%d, v%d, s%d, v%d' % (R + 1, R + 1, sHI, t0))

    def H(u):
        R = raw(u)
        tail = u % NSL >= NFULL
        t0, t1 = ((TH, TH + 1), (236, 238))[hcnt[0] & 1]
        hcnt[0] += 1
        a.wait_vm(mV[u])
        keys(t0, t1, R)
        if tail:
            a('v_cmpx_gt_i32 vcc, 0, v%d' % (R + 1))
        for t in (t0, t1):
            a('ds_add_rtn_u32 v%d, v%d, v%d offset:%d' % (t, t, EIGHT, KC0))
        m = a.mark()
        if tail:
            a('s_mov_b64 exec, -1')
        H2()
        hpend.append((R, t0, t1, m))

    def keyscan(r):
        K = RT
        nds = a.nds
        a('s_cmp_lg_u32 s%d, %d' % (sW, P['scw']))
        a('s_cbranch_scc1 Lks%d' % r)
        a('v_lshlrev_b32 v%d, 6, v%d' % (RA, LANE))
        for j in range(4):
            a('ds_read_b128 %s, v%d offset:%d' % (vr(K + 4 * j, 4), RA, KC0 + 3136 * r + 16 * j))
        a('s_waitcnt lgkmcnt(0)')
        for j in range(1, 16):
            a('v_add_u32 v%d, v%d, v%d' % (K + j, K + j, K + j - 1))
        a('v_mov_b32 v%d, v%d' % (RA + 1, K + 15))
        G['scan64'](a, RA + 1)
        a('v_sub_u32 v%d, v%d, v%d' % (RA + 1, RA + 1, K + 15))
        a('v_lshl_add_u32 v%d, s%d, 2, v%d' % (RA + 1, sPc + r, RA + 1))
        a('v_cmpx_gt_u32 vcc, 49, v%d' % LANE)
        for j in range(15, -1, -1):
            if j:
                a('v_add_u32 v%d, v%d, v%d' % (K + j, K + j - 1, RA + 1))
            else:
                a('v_mov_b32 v%d, v%d' % (K, RA + 1))
            if j % 4 == 0:
                a('ds_write_b128 v%d, %s offset:%d' % (RA, vr(K + j, 4), KC0 + 3136 * r + 4 * j))
        a('s_lshl_b32 s%d, s%d, 2' % (sT, sPc + r + 1))
        a('v_mov_b32 v%d, s%d' % (RA + 1, sT))
        a('v_lshlrev_b32 v%d, 2, v%d' % (RA, LANE))
        a('s_mov_b64 exec, 0xffff')
        a('ds_write_b32 v%d, v%d offset:%d' % (RA, RA + 1, KC0 + 4 * (3136 + 16 * r)))
        a('s_mov_b64 exec, -1')
        a('Lks%d:' % r)
        a('s_nop 1')
        a.nds = nds

    def rb_reads(RT=RT, j0=0):
        mk = {}
        for j in range(4):
            a('s_add_u32 s%d, s%d, %d' % (sT, sRB, j0 + j))
            a('s_and_b32 s%d, s%d, 15' % (sT, sT))
            a('s_lshl_b32 s%d, s%d, 13' % (sT, sT))
            a('v_add_u32 v%d, s%d, v%d' % (RA + j, sT, RBA))
            a('ds_read_b64 %s, v%d offset:%d' % (vr(RT + 4 * j, 2), RA + j, RING0))
            a('ds_read_b64 %s, v%d offset:%d' % (vr(RT + 4 * j + 2, 2), RA + j, RING0 + 512))
            mk[j] = a.mark()
        return mk

    def rb_moves(mk, RT=RT):
        a('s_mul_i32 s%d, s%d, 3' % (sIX, sRB))
        a('s_set_gpr_idx_on s%d, gpr_idx(DST)' % sIX)
        for j in range(4):
            a.wait_ds(mk[j])
            a('v_mov_b32 v%d, v%d' % (S0 + 3 * j, RT + 4 * j))
            a('v_mov_b32 v%d, v%d' % (S0 + 3 * j + 1, RT + 4 * j + 2))
            a('v_perm_b32 v%d, v%d, v%d, s%d' % (S0 + 3 * j + 2, RT + 4 * j + 3, RT + 4 * j + 1, sPS))
        a('s_set_gpr_idx_off')
        a('s_add_u32 s%d, s%d, 4' % (sRB, sRB))

    def readback(tag):
        nds = a.nds
        a('s_cmp_ge_u32 s%d, s%d' % (sRB, sRE))
        a('s_cbranch_scc1 Lrd%s' % tag)
        a('Lrl%s:' % tag)
        rb_moves(rb_reads())
        a('s_cmp_lt_u32 s%d, s%d' % (sRB, sRE))
        a('s_cbranch_scc1 Lrl%s' % tag)
        a('Lrd%s:' % tag)
        a('s_mov_b32 s%d, s%d' % (sRB, sRE))
        a.nds = nds

    def warm(j):
        if P['warm']:
            a('s_mov_b32 s%d, %d' % (sT, j * 51200 * 128))
            a('buffer_load_dword v%d, v%d, %s, s%d offen' % (WD, WA, sr(S_MR, 4), sT))

    def l2pf(j):
        if j * 16384 >= P['pfn']:
            return
        if j == 0:
            a('s_lshr_b32 s%d, s2, 3' % sT)
            a('s_lshl_b32 s%d, s%d, 9' % (sT, sT))
            a('v_add_lshl_u32 v%d, v0, s%d, 7' % (WA, sT))
            a('s_mov_b32 s%d, %d' % (S_MR + 2, P['pfn'] * 128))
        a('s_mov_b32 s%d, %d' % (sT, j * 16384 * 128))
        a('buffer_load_dword v%d, v%d, %s, s%d offen' % (WD, WA, sr(S_MR, 4), sT))

    def dist_loads():
        a('v_lshlrev_b32 v%d, 1, v0' % (RA + 2))
        for q in range(NQ):
            a('s_movk_i32 s%d, %d' % (sT, q * 1024))
            a('buffer_load_ushort v%d, v%d, %s, s%d offen' % (DI[q], RA + 2, sr(S_DIST, 4), sT))
        return a.mark()

    def rbf_batch(q):
        K = RT
        a('v_lshlrev_b32 v%d, 16, v%d' % (K + 8, DI[q]))
        a('v_mul_f32 v%d, s%d, v%d' % (K + 8, sR, K + 8))
        for r in range(8):
            a('v_subrev_f32 v%d, s%d, v%d' % (K + r, sCEN + r, K + 8))
        for r in range(8):
            a('v_mul_f32 v%d, v%d, v%d' % (K + r, K + r, K + r))
        for r in range(8):
            a('v_exp_f32 v%d, -v%d' % (K + r, K + r))
        for r in range(4):
            a('v_cvt_pk_f16_f32 v%d, v%d, v%d' % (RO + 4 * q + r, K + 2 * r, K + 2 * r + 1))

    NP_ = P['npipe']

    def guarded(r, body):
        n = lab[0]
        lab[0] += 1
        nds, nvm = a.nds, a.nvm
        for k in range(NP_, NSL):
            a('s_cmp_le_u32 s%d, %d' % (sEW + r, 64 * k))
            a('s_cbranch_scc1 Lg%d' % n)
            body(NSL * r + k)
        a('Lg%d:' % n)
        a('s_nop 3')
        a.nds, a.nvm = nds, nvm

    def U(x):
        return NSL * (x // NP_) + x % NP_

    def Cx(x):
        C(U(x))

    def Dx(x):
        if x >= 4 * NP_:
            return
        if hk and x == NP_ * P['nrun'] - 3:
            mM['p'] = done_load()
        if hk and x == NP_ * P['nrun']:
            stamp(14)
            done_wait(mM['p'])
            stamp(15)
        Dd(U(x))

    def loadstep(x):
        def first():
            if (x + 1) % NP_:
                Cx(x + 1)

        def second():
            Dx(x)
            if (x + 1) % NP_ == 0 and x < 4 * NP_:
                r = x // NP_

                def body(u):
                    C(u)
                    Dd(u)
                guarded(r, body)
                for k in range(NP_, NSL):
                    mV[NSL * r + k] = a.mark()
                if r < 3:
                    Cx(x + 1)
        return first, second

    def Hx(x):
        H(U(x))
        if (x + 1) % NP_ == 0:
            H2()
            guarded(x // NP_, lambda u: (H(u), H2()))

    Mrd(0)
    Mrd(2)
    a('s_mov_b32 s%d, 0' % sRB)
    lag = P['dv']
    C(0)
    for i in range(NP_ + lag):
        f1, f2 = loadstep(i)
        f1()
        f2()
        if hk and P['lt0'] <= i < P['lt0'] + len(late):
            mS = late[i - P['lt0']]()
        if i >= lag:
            Hx(i - lag)
    if hk and late:
        a.wait_vm(mS)
        hk.arrive2(0, VT, hk.arrive1(0, VT))
    a('s_waitcnt lgkmcnt(0)')
    a('s_barrier')
    keyscan(0)
    lead0 = P['lead0']
    for i in range(NP_ + lag, NP_ + lead0):
        f1, f2 = loadstep(i)
        f1()
        f2()
    a('s_waitcnt lgkmcnt(0)')
    a('s_barrier')
    nxt = NP_ + max(lag, lead0)
    for r in range(4):
        stamp(2 + r)
        u0 = NSL * r
        hq = list(range(NP_ * (r + 1), NP_ * (r + 2))) if r < 3 else []
        if r:
            a('s_lshr_b32 s%d, s%d, 10' % (sRE, sPc + r))
            for g in range(3):
                mk = rb_reads()
                if hq:
                    Hx(hq.pop(0))
                rb_moves(mk)
            readback(str(r))
        while r and len(hq) > NP_ - HP:
            Hx(hq.pop(0))
        for k in range(NA - 1):
            A(u0 + k)
        if r == P['fr']:
            stamp(11)
        if r:
            a('s_barrier')
        if r == P['fr']:
            stamp(12)
        pend = None
        for i in range(NP_):
            f1, f2 = loadstep(nxt)
            f1()
            if i + NA - 1 < NP_:
                A(u0 + i + NA - 1)
            B(u0 + i)
            assert nxt < NP_ * (r + 2) or nxt - NP_ * (r + 2) <= i
            f2()
            nxt += 1
            if nxt < NP_ * (r + 1) + LEAD + i + 1:
                f1, f2 = loadstep(nxt)
                f1()
                f2()
                nxt += 1
            nh = 2 if (len(hq) > max(1, NP_ - HP - i) and U(hq[1]) in mV and hq[1] + 4 <= nxt) else 1
            for _ in range(nh):
                if hq:
                    Hx(hq.pop(0))
                    if not hq:
                        pend = (i + P['bhd'], a.mark())
                        if r == 2:
                            mD = dist_loads()
            if pend and pend[0] == i:
                a.wait_ds(pend[1])
                if r == P['fr']:
                    stamp(13)
                a('s_barrier')
                keyscan(r + 1)
                if r == P['fr']:
                    stamp(14)
            for j in range(4):
                if P['wpos'][j] == 'abcdefghijklmnopqrstuvwxyzABCDEFGH'[(r - 2) * NP_ + i] and r >= 2:
                    warm(j)
            for j in range(2):
                if P['ppos'][j] == 'abcdefghijklmnopqrstuvwxyzABCDEFGH'[(r - 2) * NP_ + i] and r >= 2:
                    l2pf(j)
            if r == 3 and i == 6:
                if not P['imgl']:
                    img_load(0, 5, AG, RA)
                a.wait_vm(mD)
            if r == 3 and 7 <= i < 7 + NQ - 1:
                rbf_batch(i - 7)

        def body(u):
            A(u)
            B(u)
        guarded(r, body)
        if r == 3:
            a('s_cmp_lg_u32 s%d, 0' % sW)
            a('s_cbranch_scc1 Lk2_r6')
            rbf_batch(NQ - 1)
            a('Lk2_r6:')
        a('s_waitcnt lgkmcnt(0)')
        if r == P['fr']:
            stamp(15)
        a('s_barrier')
    stamp(6)
    a('s_add_u32 s%d, s%d, 1023' % (sRE, sPc + 4))
    a('s_lshr_b32 s%d, s%d, 10' % (sRE, sRE))
    if P['fpipe']:
        RT2 = 164
        a('s_cmp_gt_u32 s%d, 41' % sRB)
        a('s_cbranch_scc1 Lk2_f0')
        m0 = rb_reads(RT)
        m1 = rb_reads(RT2, 4)
        rb_moves(m0, RT)
        m0 = rb_reads(RT, 4)
        rb_moves(m1, RT2)
        rb_moves(m0, RT)
        a('Lk2_f0:')
    readback('L')
    a('s_max_u32 s%d, s%d, 1' % (sRB, sRB))
    a('s_sub_u32 s%d, s%d, 1' % (sRB, sRB))
    a('s_mul_i32 s%d, s%d, 3' % (sEND, sRB))
    a('s_lshl_b32 s%d, s%d, 10' % (sT, sRB))
    a('s_sub_u32 s%d, s%d, s%d' % (sT, sPc + 4, sT))
    a('v_lshrrev_b32 v%d, 3, v%d' % (TM, RBA))
    a('v_add_u32 v%d, 64, v%d' % (TM + 1, TM))
    a('v_cmp_gt_u32 %s, s%d, v%d' % (sr(sLM, 2), sT, TM))
    a('v_cmp_gt_u32 %s, s%d, v%d' % (sr(sLM + 2, 2), sT, TM + 1))
    a('s_set_gpr_idx_on s%d, gpr_idx(SRC1,DST)' % sEND)
    a('s_andn2_b64 exec, -1, %s' % sr(sLM + 2, 2))
    a('v_mov_b32 v%d, 0' % (S0 + 1))
    a('v_and_b32 v%d, 0xffff, v%d' % (S0 + 2, S0 + 2))
    a('s_andn2_b64 exec, -1, %s' % sr(sLM, 2))
    a('v_mov_b32 v%d, 0' % S0)
    a('v_mov_b32 v%d, 0' % (S0 + 2))
    a('s_mov_b64 exec, -1')
    a('s_set_gpr_idx_off')
    a('s_mov_b32 s%d, 0' % sIX)
    a('Lk2_init:')
    a('s_barrier')
    for i in range(4):
        a('v_mov_b32 v%d, 0' % (ZR + i))
    a('v_lshlrev_b32 v%d, 4, v0' % A4)
    a('v_add_u32 v%d, %d, v%d' % (A4B, HI0, A4))
    a('v_add_u32 v%d, %d, v%d' % (CV, RBF0, A4))
    for q in range(NQ - 1):
        a('ds_write_b128 v%d, %s offset:%d' % (CV, vr(RO + 4 * q, 4), 8192 * q))
    a('s_mov_b64 exec, %s' % sr(sV6, 2))
    a('ds_write_b128 v%d, %s offset:%d' % (CV, vr(RO + 4 * NQ - 4, 4), 8192 * (NQ - 1)))
    a('s_mov_b64 exec, -1')
    a('s_cmp_lg_u32 s%d, 0' % sMODE)
    a('s_cbranch_scc1 Lk2_ng')
    if P['imgl']:
        img_load(0, 5, AG, TM)
    decode_rel(0, 0)
    gathers(0)
    decode_rel(1, 0)
    gathers(1)
    a('Lk2_ng:')
    if P['ztid']:
        a('s_lshl_b32 m0, s%d, 8' % sW)
        a('s_nop 0')
        for o in list(range(0, RBF0 - 2048, 2048)) + [RBF0 - 2048]:
            a('ds_write_addtid_b32 v%d offset:%d' % (ZR, o))
    for o in (list(range(0, RBF0 - 8192, 8192)) + [RBF0 - 8192]) * (not P['ztid']):
        a('ds_write_b128 v%d, %s offset:%d' % (A4, vr(ZR, 4), o))
    for o in list(range(0, 4 * PL - 8192, 8192)) + [4 * PL - 8192]:
        a('ds_write_b128 v%d, %s offset:%d' % (A4B, vr(ZR, 4), o))
    a('v_mov_b32 v%d, 0' % STK)
    a('v_mov_b32 v%d, 0' % RTN[0])
    a('v_mov_b32 v%d, 0' % RTN[1])
    a('v_mov_b32 v%d, 0x1000000' % CK)
    a('v_and_b32 v255, 0x1df, v0')
    a('v_lshl_add_u32 v255, v255, 5, v%d' % (IA + 1))
    a('s_waitcnt lgkmcnt(0)')
    a('s_barrier')
    stamp(7, True)
    a('s_cmp_lg_u32 s%d, 0' % sMODE)
    a('s_cbranch_scc1 Lk2_all')
    a('ds_read_b128 %s, v%d offset:%d' % (vr(RBF, 4), A16[0], RBF0))
    a('s_waitcnt lgkmcnt(0)')
    MQ, AU, AR, OA = 4, 60, 68, 255
    WW, RBB, CNN = (132, 96), (140, 104), (144, 108)
    R16, T1, T2, T3, T4 = 92, 112, 113, 114, 115
    MF, AI, KB = 116, 72, 80
    sTRG = 89

    def epi_loads():
        img_load(5, 3, AU, 2)
        for q in range(NQ):
            a('s_mov_b32 s%d, %d' % (sT, q * 16384))
            a('buffer_load_dwordx4 %s, v%d, %s, s%d offen' % (vr(MQ + 8 * q, 4), OA, sr(S_MO, 4), sT))
            a('buffer_load_dwordx4 %s, v%d, %s, s%d offen offset:1024' % (vr(MQ + 8 * q + 4, 4), OA, sr(S_MO, 4), sT))
        T1, T2, T3, T4 = 2, 3, 82, 83
        a('v_mov_b32 v%d, 0' % KB)
        a('v_mov_b32 v%d, 0x%x' % (KB + 1, (-0x10001) & 0xffffffff))
        a('v_bfe_u32 v%d, v0, 2, 1' % T1)
        a('v_bfe_u32 v%d, v0, 5, 1' % T2)
        a('v_and_b32 v%d, 1, v0' % T3)
        a('v_lshlrev_b32 v%d, 4, v%d' % (T3, T3))
        a('v_mov_b32 v%d, 0x3f80' % T4)
        a('v_lshlrev_b32 v%d, v%d, v%d' % (T3, T3, T4))
        a('v_bfe_u32 v%d, v0, 3, 2' % T4)
        a('v_xor_b32 v%d, v%d, v%d' % (T1, T1, T2))
        a('v_bfe_u32 v%d, v0, 1, 1' % T2)
        a('v_lshl_or_b32 v%d, v%d, 1, v%d' % (T4, T4, T2))
        a('v_lshl_or_b32 v%d, v%d, 3, v%d' % (T4, T1, T4))
        for i in range(8):
            a('v_mov_b32 v%d, 0' % (AI + i))
            a('v_cmpx_eq_u32 vcc, %d, v%d' % (i, T4))
            a('v_mov_b32 v%d, v%d' % (AI + i, T3))
            a('s_mov_b64 exec, -1')
        if P['epf']:
            G['code_prefetch'](a, 'e%d' % lab[0], 90, 2, 256, 'Lk2_epi', 'Lk2_e6')
            lab[0] += 1

    a('s_mul_i32 s%d, s%d, 49' % (sTRG, sBIN))
    a('s_lshr_b32 s%d, s%d, 8' % (sTRG, sTRG))
    a('s_add_u32 s%d, s%d, %d' % (sTRG, sTRG, P['trg']))
    a('s_and_b32 s%d, s%d, 15' % (sT, sBIN))
    a('s_add_u32 s%d, s%d, 28' % (sT, sT))
    a('s_cmp_lt_u32 s%d, 28' % sTRG)
    a('s_cselect_b32 s%d, s%d, s%d' % (sTRG, sT, sTRG))
    a('s_mul_i32 s%d, s%d, 3' % (sTRG, sTRG))
    a('s_min_u32 s%d, s%d, s%d' % (sTRG, sTRG, sEND))
    if '1' in P['wpos']:
        a('s_mov_b32 s90, %d' % (3 * P['mw1']))
        a('s_mov_b32 s91, %d' % (P['wpos'].index('1') * 51200 * 128))
        a('v_mov_b32 v155, v%d' % WA)
    if P['mpf']:
        per = P['mpp']
        a('s_lshr_b32 s%d, s2, 3' % sT)
        a('s_and_b32 s90, s%d, %d' % (sT, per - 1))
        a('s_add_u32 s90, s90, 1')
        a('s_lshr_b32 s%d, s%d, %d' % (sT, sT, per.bit_length() - 1))
        a('s_mul_i32 s%d, s%d, %d' % (sT, sT, 128 * per * 128))
        a('s_add_u32 s91, s90, %d' % P['mpf'])
        a('s_lshl_b32 s91, s91, 19')
        a('s_add_u32 s91, s91, s%d' % sT)
        a('s_mul_i32 s90, s90, 3')
    if P['prio']:
        a('s_cmp_lt_u32 s%d, 4' % sW)
        a('s_cbranch_scc1 Lk2_np')
        a('s_setprio 1')
        a('Lk2_np:')
    a.raw('.p2align 6')
    a('Lk2_loop:')
    a('s_cmp_eq_u32 s%d, s%d' % (sIX, sTRG))
    a('s_cbranch_scc1 Lk2_el')
    a('Lk2_lc:')
    if P['mpf']:
        a('s_cmp_eq_u32 s%d, s90' % sIX)
        a('s_cbranch_scc1 Lk2_pl')
        a('Lk2_pc:')
    if '1' in P['wpos']:
        a('s_cmp_eq_u32 s%d, s90' % sIX)
        a('s_cbranch_scc1 Lk2_wl')
        a('Lk2_wc:')
    step(0)
    if P['stag'] == 2:
        halfbar(0)
    step(1)
    if P['stag']:
        halfbar(0)
    elif P['mbar'] == 1:
        a('s_barrier')
    elif P['mbar']:
        a('s_and_b32 s%d, s%d, %d' % (sT, sIX, P['mbar'] - 1))
        a('s_cbranch_scc1 Lk2_nb')
        a('s_barrier')
        a('Lk2_nb:')
    a('s_add_u32 s%d, s%d, 3' % (sIX, sIX))
    a('s_cmp_le_u32 s%d, s%d' % (sIX, sEND))
    a('s_cbranch_scc1 Lk2_loop')
    stamp(8, True)
    a('s_mov_b32 s%d, 0' % sPASS)
    for i in range(NQ):
        a('s_mov_b64 %s, 0' % sr(sFL + 2 * i, 2))
        a('s_mov_b64 %s, 0' % sr(sSK + 2 * i, 2))
    a('Lk2_epi:')
    a('v_lshlrev_b32 v%d, 3, v0' % A4)
    a('v_lshlrev_b32 v%d, 2, v0' % AC)
    a('v_add_u32 v%d, %d, v%d' % (A4B, HI0, A4))
    a('v_lshlrev_b32 v%d, 4, v0' % R16)
    a('s_waitcnt vmcnt(4) lgkmcnt(0)')
    a('v_or3_b32 v%d, v%d, v%d, v%d' % (STK, STK, RTN[0], RTN[1]))
    a('s_barrier')
    mk = {}

    def e_read(q):
        W, RB, CN = WW[q & 1], RBB[q & 1], CNN[q & 1]
        if q == NQ - 1:
            for i in range(4):
                a('v_mov_b32 v%d, 0' % (RB + i))
            for i in range(8):
                a('v_mov_b32 v%d, 0' % (W + i))
            a('v_mov_b32 v%d, 0' % CN)
            a('s_mov_b64 exec, %s' % sr(sV6, 2))
        a('ds_read_b32 v%d, v%d offset:%d' % (CN, AC, CNT0 + 2048 * q))
        mk[q, -1] = a.mark()
        for j in range(4):
            b, o = plane(j)
            a('ds_read_b64 %s, v%d offset:%d' % (vr(W + 2 * j, 2), b, o + 4096 * q))
            mk[q, j] = a.mark()
        a('ds_read_b128 %s, v%d offset:%d' % (vr(RB, 4), R16, RBF0))
        mk[q, 8] = a.mark()
        if q == NQ - 1:
            a('s_mov_b64 exec, -1')
        else:
            a('v_add_u32 v%d, 8192, v%d' % (R16, R16))

    def e_decode(q, mf=()):
        mf = list(mf)
        if mf:
            a(mf.pop(0))
        W, CN = WW[q & 1], CNN[q & 1]
        a.wait_ds(mk[q, -1 if q == 0 else 8])
        a('v_lshrrev_b32 v%d, 24, v%d' % (CN + 1, CN))
        a('v_and_b32 v%d, 0xffffff, v%d' % (CN, CN))
        a('v_sub_u32 v%d, 0x20001, v%d' % (T1, CN + 1))
        a('v_mad_u64_u32 %s, vcc, v%d, s%d, %s' % (vr(CN + 2, 2), T1, sM1, vr(KB, 2)))
        a('v_cmp_lt_u32 vcc, 127, v%d' % (CN + 1))
        a('v_mul_u32_u24 v%d, %d, v%d' % (CN + 1, P['theta'], CN + 1))
        a('s_or_b64 %s, %s, vcc' % (sr(sFL + 2 * q, 2), sr(sFL + 2 * q, 2)))
        a('v_cmp_lt_u32 vcc, 0x7ffe, v%d' % CN)
        a('v_add_u32 v%d, v%d, v%d' % (CN + 3, CN + 3, CN + 2))
        a('s_or_b64 %s, %s, vcc' % (sr(sFL + 2 * q, 2), sr(sFL + 2 * q, 2)))
        a('v_cmp_lt_u32 vcc, v%d, v%d' % (CN, CN + 1))
        a('s_or_b64 %s, %s, vcc' % (sr(sFL + 2 * q, 2), sr(sFL + 2 * q, 2)))
        for j in range(4):
            if mf:
                a(mf.pop(0))
            a('s_andn2_b64 exec, -1, %s' % sr(sSK + 2 * q, 2))
            if q == 0:
                a.wait_ds(mk[q, j])
            a('v_lshl_add_u64 %s, %s, 0, %s' % (vr(W + 2 * j, 2), vr(W + 2 * j, 2), vr(CN + 2, 2)))
            for e in range(2):
                a('v_xor_b32 v%d, s%d, v%d' % (W + 2 * j + e, sM1, W + 2 * j + e))
            for e in range(2):
                w = W + 2 * j + e
                a('v_cvt_f32_i32_sdwa v%d, sext(v%d) dst_sel:DWORD dst_unused:UNUSED_PAD src0_sel:WORD_1' % (CN + e, w))
                a('v_cvt_f32_i32_sdwa v%d, sext(v%d) dst_sel:DWORD dst_unused:UNUSED_PAD src0_sel:WORD_0' % (w, w))
            for e in range(2):
                a('v_cvt_pk_bf16_f32 v%d, v%d, v%d' % (W + 2 * j + e, W + 2 * j + e, CN + e))
            a('s_mov_b64 exec, -1')
        if q == 0:
            a.wait_ds(mk[q, 8])

    def e_mfma(q):
        W, RB = WW[q & 1], RBB[q & 1]
        r = []
        r.append('v_mfma_f32_32x32x16_bf16 %s, %s, %s, 0' % (vr(MF, 16), vr(AI, 4), vr(MQ + 8 * q, 4)))
        r.append('v_mfma_f32_32x32x16_bf16 %s, %s, %s, %s' % (vr(MF, 16), vr(AI + 4, 4), vr(MQ + 8 * q + 4, 4), vr(MF, 16)))
        r.append('v_mfma_f32_32x32x16_f16 %s, %s, %s, 0' % (vr(GATE, 16), vr(AR, 4), vr(RB, 4)))
        r.append('v_mfma_f32_32x32x16_bf16 %s, %s, %s, 0' % (vr(MD, 16), vr(AU, 4), vr(W, 4)))
        r.append('v_mfma_f32_32x32x16_bf16 %s, %s, %s, %s' % (vr(MD, 16), vr(AU + 4, 4), vr(W + 4, 4), vr(MD, 16)))
        return r

    def e_out(q):
        a('s_mov_b32 s%d, %d' % (sT, q * 16384))
        for j in range(8):
            m = MQ + 8 * q + j
            ta, tb = MF + 2 * j, MF + 2 * j + 1
            a('v_fmac_f32 v%d, v%d, v%d' % (ta, MD + 2 * j, GATE + 2 * j))
            a('v_fmac_f32 v%d, v%d, v%d' % (tb, MD + 2 * j + 1, GATE + 2 * j + 1))
            a('v_cvt_pk_bf16_f32 v%d, v%d, v%d' % (m, ta, tb))
            if j == 3:
                a('buffer_store_dwordx4 %s, v%d, %s, s%d offen %s' % (vr(MQ + 8 * q, 4), OA, sr(S_OUT, 4), sT, P['stout']))
        a('buffer_store_dwordx4 %s, v%d, %s, s%d offen offset:1024 %s' % (vr(MQ + 8 * q + 4, 4), OA, sr(S_OUT, 4), sT, P['stout']))

    e_read(0)
    e_read(1)
    e_decode(0)
    for q in range(NQ - 1):
        if q + 1 < NQ - 1:
            e_decode(q + 1, e_mfma(q))
        else:
            for t in e_mfma(q):
                a(t)
        if q + 2 < NQ:
            e_read(q + 2)
        e_out(q)
    a('s_cmp_lg_u32 s%d, 0' % sW)
    a('s_cbranch_scc1 Lk2_e6')
    e_decode(NQ - 1)
    for t in e_mfma(NQ - 1):
        a(t)
    e_out(NQ - 1)
    a('Lk2_e6:')
    stamp(9, True)
    if P['stamp']:
        a('s_waitcnt vmcnt(0)')
        stamp(10, True)
    if P['abl']:
        a('s_branch Lk2_end')
    a('s_cmp_lg_u32 s%d, 0' % sPASS)
    a('s_cbranch_scc1 Lk2_end')
    a('s_or_b64 %s, %s, %s' % (sr(sMK, 2), sr(sFL, 2), sr(sFL + 2, 2)))
    for q in range(2, NQ):
        a('s_or_b64 %s, %s, %s' % (sr(sMK, 2), sr(sMK, 2), sr(sFL + 2 * q, 2)))
    a('s_cselect_b32 s%d, 1, %d' % (sT, P['force_slow'] & 3))
    a('v_cmp_gt_i32 vcc, 0, v%d' % STK)
    a('s_cmp_lg_u64 vcc, 0')
    a('s_cselect_b32 s%d, 3, s%d' % (sT, sT))
    a('v_mov_b32 v2, s%d' % sT)
    a('s_lshl_b32 s%d, s%d, 2' % (sT, sW))
    a('s_add_u32 s%d, s%d, %d' % (sT, sT, SCR))
    a('v_mov_b32 v3, s%d' % sT)
    a('ds_write_b32 v3, v2')
    a('v_and_b32 v2, 7, v0')
    a('v_lshlrev_b32 v2, 2, v2')
    a('v_add_u32 v2, %d, v2' % SCR)
    a('s_waitcnt lgkmcnt(0)')
    a('s_barrier')
    a('ds_read_b32 v3, v2')
    a('s_waitcnt lgkmcnt(0)')
    a('v_cmp_ne_u32 vcc, 0, v3')
    a('s_cmp_eq_u64 vcc, 0')
    a('s_cbranch_scc1 Lk2_end')
    a('v_cmp_lt_u32 vcc, 1, v3')
    a('s_cmp_lg_u64 vcc, 0')
    a('Lk2_all:')
    for q in range(NQ):
        a('s_cselect_b64 %s, -1, %s' % (sr(sSK + 2 * q, 2), sr(sFL + 2 * q, 2)))
    a('s_and_b64 %s, %s, %s' % (sr(sSK + 2 * NQ - 2, 2), sr(sSK + 2 * NQ - 2, 2), sr(sV6, 2)))
    a('s_waitcnt vmcnt(0)')
    VD, VE, REC, ADDR, F12 = 4, 8, 12, 16, 17
    desc_load(VD, 18)
    a('v_lshlrev_b32 v%d, 3, v0' % A4)
    a('v_lshlrev_b32 v%d, 2, v0' % AC)
    a('v_add_u32 v%d, %d, v%d' % (A4B, HI0, A4))
    a('v_mov_b32 v2, 0')
    a('v_mov_b32 v3, 0')
    a('v_mov_b32 v19, -1')
    for q in range(NQ):
        a('s_mov_b64 exec, %s' % sr(sSK + 2 * q, 2))
        a('ds_write_b32 v%d, v19 offset:%d' % (AC, CNT0 + 2048 * q))
        for j in range(4):
            b, o = plane(j)
            a('ds_write_b64 v%d, v[2:3] offset:%d' % (b, o + 4096 * q))
        a('s_mov_b64 exec, -1')
        a('s_waitcnt lgkmcnt(0)')
    a('s_barrier')
    a('s_movk_i32 s%d, %d' % (sT, REC0 // 12))
    a('v_mov_b32 v%d, %d' % (F12, TSP))
    a('v_mad_u32_u24 v%d, v0, v%d, s%d' % (F12, F12, sT))
    a('s_waitcnt vmcnt(0)')
    for k in range(4):
        a('v_and_b32 v%d, 0x7fffffff, v%d' % (VD + k, VD + k))
        a('v_add_u32 v%d, 0x10000, v%d' % (VE + k, VD + k))
        a('v_and_b32 v%d, 0xffff, v%d' % (VD + k, VD + k))
        a('v_lshrrev_b32 v%d, 17, v%d' % (VE + k, VE + k))
    scan4(VE)
    for k in range(4):
        if k:
            a('v_add_u32 v%d, s%d, v%d' % (VE + k, sNT, VE + k))
        a('v_add_u32 v%d, v%d, v%d' % (VD + k, VD + k, F12))
        a('v_readlane_b32 s%d, v%d, 63' % (sNT, VE + k))
        a('v_sub_u32 v%d, v%d, v%d' % (VD + k, VD + k, VE + k))
        a('v_mul_lo_u32 v%d, v%d, 12' % (VD + k, VD + k))
    a('v_mul_u32_u24 v%d, 12, v%d' % (F12, LANE))
    a('s_mov_b32 s%d, 0' % sF)
    a('s_mov_b32 s%d, 0' % sE)
    a('s_mov_b32 s%d, 0' % sDL)
    a('s_movk_i32 s%d, -64' % sI)
    a('Lk2_sl:')
    a('s_cmp_ge_u32 s%d, s%d' % (sF, sNT))
    a('s_cbranch_scc1 Lk2_sd')
    a('v_add_u32 v%d, s%d, v%d' % (ADDR, sDL, F12))
    a('s_sub_u32 s%d, s%d, s%d' % (sP, sE, sF))
    a('s_cmp_ge_u32 s%d, 64' % sP)
    a('s_cbranch_scc1 Lfd')
    a('Lfl:')
    a('v_readlane_b32 s%d, v%d, s%d' % (sDL, VD, sI))
    a('v_readlane_b32 s%d, v%d, s%d' % (sE, VE, sI))
    a('s_add_u32 s%d, s%d, 1' % (sI, sI))
    a('s_cbranch_scc0 Lfc')
    a('s_mov_b64 exec, -1')
    for k in range(3):
        a('v_mov_b32 v%d, v%d' % (VE + k, VE + k + 1))
        a('v_mov_b32 v%d, v%d' % (VD + k, VD + k + 1))
    a('v_mov_b32 v%d, -1' % (VE + 3))
    a('v_bfrev_b32 v%d, 1' % (VD + 3))
    a('s_movk_i32 s%d, -64' % sI)
    a('Lfc:')
    a('s_lshl_b64 exec, -1, s%d' % sP)
    a('v_add_u32 v%d, s%d, v%d' % (ADDR, sDL, F12))
    a('s_sub_u32 s%d, s%d, s%d' % (sP, sE, sF))
    a('s_cmp_lt_u32 s%d, 64' % sP)
    a('s_cbranch_scc1 Lfl')
    a('s_mov_b64 exec, -1')
    a('Lfd:')
    a('s_add_u32 s%d, s%d, 64' % (sF, sF))
    a('v_add_u32 v%d, 768, v%d' % (F12, F12))
    a('buffer_load_dwordx3 %s, v%d, %s, 0 offen %s' % (vr(REC, 3), ADDR, sr(S_WS, 4), HO))
    a('s_mov_b32 s%d, 0' % sSUB)
    a('s_waitcnt vmcnt(0)')
    a('Lk2_s2:')
    a('v_cmp_gt_i32 %s, 0, v%d' % (sr(sMK, 2), REC + 1))
    a('v_ashrrev_i32 v%d, 31, v%d' % (TM, REC + 1))
    a('v_and_b32 v%d, v%d, v%d' % (REC, REC, TM))
    a('v_and_b32 v%d, s%d, v%d' % (IA, sIDM, REC))
    a('v_and_b32 v%d, s%d, v%d' % (IB, sIDM, REC))
    a('v_lshrrev_b32 v%d, 16, v%d' % (A16[0], REC))
    a('v_and_b32 v%d, s%d, v%d' % (A16[0], sA16, A16[0]))
    a('v_and_b32 v%d, s%d, v%d' % (ANG[0], sHI, REC + 1))
    a('v_permlane32_swap_b32 v%d, v%d' % (IA, IB))
    addrs(0)
    a('ds_read_b32 v%d, v%d offset:%d' % (CV, AC, CNT0))
    a('ds_read_b128 %s, v%d offset:%d' % (vr(RBF, 4), A16[0], RBF0))
    a('s_waitcnt lgkmcnt(0)')
    a('v_cmp_gt_i32 vcc, 0, v%d' % CV)
    a('s_and_b64 %s, %s, vcc' % (sr(sMK, 2), sr(sMK, 2)))
    a('s_cbranch_scc0 Lk2_s3')
    gathers(0)
    cosines(0)
    for l in range(3):
        sbf(l)
        gmf(l)
    a('s_waitcnt vmcnt(0)')
    mdown(0)
    for d in range(16):
        a('v_mul_f32 v%d, 0x47800000, v%d' % (GATE + d, GATE + d))
        a('v_mul_f32 v%d, v%d, v%d' % (MD + d, MD + d, GATE + d))
    a('s_mov_b64 exec, %s' % sr(sMK, 2))
    for j in range(8):
        a('v_cvt_pk_bf16_f32 v%d, v%d, v%d' % (MD + 2 * j, MD + 2 * j, MD + 2 * j + 1))
        b, o = plane(j >> 1)
        a('ds_pk_add_bf16 v%d, v%d offset:%d' % (b, MD + 2 * j, o + 4 * (j & 1)))
    a('s_mov_b64 exec, -1')
    a('Lk2_s3:')
    a('v_mov_b32 v%d, v%d' % (REC, REC + 2))
    a('v_lshlrev_b32 v%d, 16, v%d' % (REC + 1, REC + 1))
    a('s_xor_b32 s%d, s%d, 1' % (sSUB, sSUB))
    a('s_cbranch_scc1 Lk2_s2')
    a('s_branch Lk2_sl')
    a.fence()
    a('Lk2_sd:')
    a('s_mov_b32 s%d, 1' % sPASS)
    epi_loads()
    a('s_waitcnt vmcnt(0)')
    a('s_branch Lk2_epi')
    a.fence()
    a('Lk2_fb:')
    a('s_mov_b32 s%d, 1' % sMODE)
    if hk:
        if late:
            for f in late:
                f()
            a('s_waitcnt vmcnt(0)')
            hk.arrive2(0, VT, hk.arrive1(0, VT))
        done_wait(done_load())
    dist_loads()
    img_load(0, 5, AG, RA)
    a('s_waitcnt vmcnt(0)')
    for q in range(NQ):
        rbf_batch(q)
    a('s_branch Lk2_init')
    a.fence()
    if '1' in P['wpos']:
        a('Lk2_wl:')
        a('buffer_load_dword v2, v155, %s, s91 offen' % sr(S_MR, 4))
        a('s_add_u32 s90, s90, %d' % (3 * P['mw2']))
        a('s_add_u32 s91, s91, %d' % (51200 * 128))
        a('s_cmp_ge_u32 s91, %d' % (4 * 51200 * 128))
        a('s_cselect_b32 s90, -1, s90')
        a('s_branch Lk2_wc')
        a.fence()
    if P['mpf']:
        a('Lk2_pl:')
        per = P['mpp']
        if per == 2:
            a('v_and_b32 v3, 31, v0')
            a('v_lshl_add_u32 v3, s%d, 5, v3' % sW)
            a('v_lshlrev_b32 v3, 7, v3')
        else:
            a('v_lshlrev_b32 v3, 7, v0')
        if per == 8:
            a('s_add_u32 s%d, s91, 65536' % sT)
            a('buffer_load_dword v%d, v3, %s, s%d offen' % (72, sr(S_MR, 4), sT))
        a('buffer_load_dword v3, v3, %s, s91 offen' % sr(S_MR, 4))
        a('s_add_u32 s90, s90, %d' % (3 * per))
        a('s_add_u32 s91, s91, %d' % (per << 19))
        a('s_branch Lk2_pc')
        a.fence()
    a('Lk2_el:')
    epi_loads()
    a('s_branch Lk2_lc')
    a.fence()
    a('Lk2_end:')
    a('s_endpgm')
    a.fence()
    return LDS
```

```python
import sys, math, struct
from asmlib import Asm

NAME = 'gather_scatter__molecular_angular_gemnet__graph'
E, T = 800000, 12800000
BINE = 3125
TS = 158976
TSP = TS // 12
REC0 = 12288
DESC0 = 0x4F00000
PREP0 = 0x5200000
FLG0 = 0x5300000
WS_BYTES = 268435456

P = dict(ld1='nt', st1='', ldrec='', stout='nt', target=165.0, theta=64, bar=16, stamp=0, force_slow=0, abl=0, idm=0xfffff, goff=0, lf=0, lfb=3, lfm=0, tw=0, epf=0, fpipe=0, ztid=0, spf=44, ns0=6, nrun=1, nlate=0, lt0=0, mpf=0, mpp=4, atj=11, nae=20, nsx=2, slp=16, sg0=0, fuse=0, p8=0, pld=4, sch8='.L.LP.LP.LP.LP.LP.LP.LP.LP.P.P.P', fr=9, na=2, bhd=0, sch='.L.L.L.L.LP.P.P.P', early=1, stag=1, stb_=1, mw1=1, mw2=8, k1w=0, k1p=1, imgl=1, pfn=0, ppos='uz', sta='sc1', stb='sc1', nfull=10, wpos='kosw', lead=9, lead0=6, npipe=13, hp=4, scw=3, trg=1, prio=0, cpf=1, dv=4, warm=1, mbar=1, sdwa=1, npre=2, only1=0, stw=0, k2x=0, rd2=1, l2x=0, recm=0, ldg='')
for a in sys.argv[2:]:
    k, v = a.split('=')
    P[k] = type(P[k])(v.replace('+',' ')) if not isinstance(P[k], int) else int(v, 0)


def f2u(x):
    return struct.unpack('<I', struct.pack('<f', x))[0]


def vr(a, n):
    return 'v[%d:%d]' % (a, a + n - 1)


def sr(a, n):
    return 's[%d:%d]' % (a, a + n - 1)


def srd(a, d, ptr, nbytes, off=None, stride=0):
    if off is None:
        a('s_mov_b32 s%d, s%d' % (d, ptr))
        a('s_mov_b32 s%d, s%d' % (d + 1, ptr + 1))
    else:
        a('s_add_u32 s%d, s%d, %s' % (d, ptr, off))
        a('s_addc_u32 s%d, s%d, 0' % (d + 1, ptr + 1))
    if stride:
        a('s_or_b32 s%d, s%d, 0x%x' % (d + 1, d + 1, stride << 16))
    a('s_mov_b32 s%d, %d' % (d + 2, nbytes))
    a('s_mov_b32 s%d, 0x20000' % (d + 3))


def scan64(a, v, op='v_add_u32'):
    for c in ('row_shr:1', 'row_shr:2', 'row_shr:4', 'row_shr:8'):
        a('%s_dpp v%d, v%d, v%d %s row_mask:0xf bank_mask:0xf' % (op, v, v, v, c))
    a('%s_dpp v%d, v%d, v%d row_bcast:15 row_mask:0xa bank_mask:0xf' % (op, v, v, v))
    a('%s_dpp v%d, v%d, v%d row_bcast:31 row_mask:0xc bank_mask:0xf' % (op, v, v, v))


def code_prefetch(a, tag, st, vt, nwg=16, first=None, last='Lk2_end'):
    a('s_cmp_ge_u32 s2, %d' % nwg)
    a('s_cbranch_scc1 Lcpf%s' % tag)
    a('s_getpc_b64 %s' % sr(st, 2))
    a('Lcpb%s:' % tag)
    a('v_lshlrev_b32 v%d, 7, v0' % vt)
    a('v_mov_b32 v%d, 0' % (vt + 1))
    if first:
        a('s_sub_u32 s%d, s%d, Lcpb%s-%s' % (st, st, tag, first))
        a('s_subb_u32 s%d, s%d, 0' % (st + 1, st + 1))
    a('v_cmp_gt_u32 vcc, %s-%s, v%d' % (last, first or 'Lcpb' + tag, vt))
    a('v_lshl_add_u64 %s, %s, 0, %s' % (vr(vt, 2), vr(vt, 2), sr(st, 2)))
    a('s_and_b64 exec, exec, vcc')
    a('s_cbranch_execz Lcpe%s' % tag)
    a.nocount = True
    a('global_load_dword v%d, %s, off' % (vt, vr(vt, 2)))
    a.nocount = False
    a('Lcpe%s:' % tag)
    a('s_mov_b64 exec, -1')
    a('Lcpf%s:' % tag)


STAMP0 = 0x6000000


def stamp_init(a, sdbg, wsptr, kern, sw):
    if not P['stamp']:
        return
    a('s_lshl_b32 s100, s2, 7')
    a('s_add_u32 s100, s100, %d' % (STAMP0 + kern * 32768))
    srd(a, sdbg, wsptr, 128, 's100')
    stamp.sel = sw


def stamp(a, idx, sdbg, tmp_s, tmp_v, tmp_w=None):
    tmp_w = tmp_w or tmp_v + 1
    if not P['stamp']:
        return
    lab = 'Lst%d' % stamp.n
    stamp.n += 1
    a.nocount = True
    a('s_cmp_lg_u32 s%d, %d' % (stamp.sel, P['stw']))
    a('s_cbranch_scc1 %s' % lab)
    a('s_memrealtime %s' % sr(tmp_s, 2))
    a('s_waitcnt lgkmcnt(0)')
    a('v_mov_b32 v%d, s%d' % (tmp_v, tmp_s))
    a('v_mov_b32 v%d, %d' % (tmp_w, idx * 4))
    a('buffer_store_dword v%d, v%d, %s, 0 offen' % (tmp_v, tmp_w, sr(sdbg, 4)))
    a('s_memtime %s' % sr(tmp_s, 2))
    a('s_waitcnt lgkmcnt(0)')
    a('v_mov_b32 v%d, s%d' % (tmp_v, tmp_s))
    a('buffer_store_dword v%d, v%d, %s, 0 offen offset:64' % (tmp_v, tmp_w, sr(sdbg, 4)))
    a(lab + ':')
    a.nocount = False


stamp.n = 0
stamp.sel = 0


def k1(a):
    CNTB, SCR, CNTA = 0, 4096, 4224
    DATB, DATA = 4224, 8320
    S_IN, S_OUT, S_ANG, S_REC, S_DSC, S_T0, S_DBG = 24, 28, 32, 36, 40, 44, 92
    S_REC2 = 80
    sMB, sMC, sNEG, sHI, sT, sW = 64, 65, 66, 67, 68, 69
    sREM = 70
    sBASE, sPREP, sVB, sUM = 72, 73, 74, 75
    O16, O8, ONE, SIX = 1, 2, 3, 12
    TP = 4
    TS_ = 22
    ANG = 14
    ANGR = 13
    INA, OUTA, INB, OUTB, INR, OUTR = 28, 52, 76, 100, 124, 125
    ld = P['ld1']
    st = P['st1']

    a('s_cmp_ge_u32 s2, 256')
    a('s_cbranch_scc1 Lk1_end')
    a('s_load_dwordx4 s[4:7], s[0:1], 8')
    a('s_load_dwordx2 s[8:9], s[0:1], 32')
    a('s_load_dwordx4 s[76:79], s[0:1], 96')
    a('s_load_dwordx2 s[12:13], s[0:1], 0')
    a('s_load_dwordx8 s[16:23], s[0:1], 56')
    if P['cpf'] & 1:
        code_prefetch(a, 'a', 84, 124)
    a('v_lshlrev_b32 v%d, 4, v0' % O16)
    a('v_lshlrev_b32 v%d, 3, v0' % O8)
    a('v_mov_b32 v%d, 1' % ONE)
    a('v_mov_b32 v%d, 6' % SIX)
    a('v_lshrrev_b32 v4, 6, v0')
    a('v_readfirstlane_b32 s%d, v4' % sW)
    a('v_mov_b32 v4, 0')
    a('v_lshlrev_b32 v5, 2, v0')
    a('ds_write_b32 v5, v4 offset:%d' % CNTB)
    a('ds_write_b32 v5, v4 offset:%d' % CNTA)
    a('s_mov_b32 s%d, %d' % (sMB, -(-2**32 // BINE)))
    a('s_mov_b32 s%d, 21400' % sMC)
    a('s_mov_b32 s%d, %d' % (sNEG, -BINE))
    a('s_mov_b32 s%d, 0xffff0000' % sHI)
    a('s_mov_b32 s%d, 0x80008000' % sVB)
    a('s_mov_b32 s%d, 0xff000' % sUM)
    a('s_mul_i32 s14, s2, 3125')
    a('s_add_u32 s15, s14, 3125')
    a('s_lshr_b32 s14, s14, 2')
    a('s_lshr_b32 s15, s15, 2')
    a('s_sub_u32 s3, s15, s14')
    a('s_lshl_b32 s15, s14, 7')
    a('s_lshl_b32 s14, s14, 8')
    a('s_sub_u32 s%d, s3, 768' % sT)
    a('s_lshl_b32 s%d, s%d, 6' % (sT, sT))
    a('v_cmp_gt_u32 %s, s%d, v0' % (sr(sREM, 2), sT))
    a('v_and_b32 v13, 63, v0')
    a('v_lshlrev_b32 v27, 4, v13')
    a('s_lshl_b32 s%d, s2, 4' % sPREP)
    a('s_or_b32 s%d, s%d, s%d' % (sPREP, sPREP, sW))
    a('s_waitcnt lgkmcnt(0)')
    srd(a, S_IN, 4, 0, 's14')
    srd(a, S_OUT, 6, 0, 's14')
    srd(a, S_ANG, 8, 0, 's15')
    a('s_lshl_b32 s%d, s3, 8' % (S_IN + 2))
    a('s_lshl_b32 s%d, s3, 8' % (S_OUT + 2))
    a('s_lshl_b32 s%d, s3, 7' % (S_ANG + 2))
    stamp_init(a, S_DBG, 78, 0, sW)
    stamp(a, 0, S_DBG, 96, 126)
    a('s_cmp_lg_u32 s%d, 0' % sPREP)
    a('s_cbranch_scc1 Lk1_main')
    a.nocount = True
    srd(a, S_T0, 18, 768)
    srd(a, S_T0 + 4, 20, 512)
    srd(a, S_T0 + 8, 22, 512)
    srd(a, S_T0 + 12, 16, 256)
    srd(a, S_T0 + 16, 12, E * 32)
    for i in range(4):
        a('buffer_load_dwordx4 %s, v27, %s, 0 offen' % (vr(76 + 4 * i, 4), sr(S_T0 + 4 * i, 4)))
    a('v_mul_u32_u24 v4, 99984, v13')
    for i in range(4):
        a('s_mov_b32 s%d, %d' % (sT, i * 64 * 99984))
        a('buffer_load_dwordx4 %s, v4, %s, s%d offen' % (vr(92 + 4 * i, 4), sr(S_T0 + 16, 4), sT))
    a.nocount = False
    a('Lk1_main:')
    a('s_lshl_b32 s14, s2, 1')
    a('s_mul_i32 s15, s14, %d' % TS)
    a('s_add_u32 s15, s15, %d' % REC0)
    srd(a, S_REC, 78, 0, 's15')
    a('s_add_u32 s15, s15, %d' % TS)
    srd(a, S_REC2, 78, 0, 's15')
    a('s_lshl_b32 s15, s14, 12')
    a('s_add_u32 s15, s15, %d' % DESC0)
    srd(a, S_DSC, 78, 8192, 's15')

    marks = {}

    def regs(j):
        return ((INA, OUTA) if j < 6 else (INB, OUTB)), 4 * (j % 6), (ANG + 2 * (j % 4) if j < 10 else (INA, OUTA)[j - 10])

    def loads(j):
        if j == 12:
            a('v_lshlrev_b32 v10, 2, v0')
            a('v_lshlrev_b32 v11, 1, v0')
            a('s_mov_b32 s%d, %d' % (sT, 12 * 16384))
            a('buffer_load_dword v%d, v10, %s, s%d offen %s' % (OUTR, sr(S_OUT, 4), sT, ld))
            a('buffer_load_dword v%d, v10, %s, s%d offen %s' % (INR, sr(S_IN, 4), sT, ld))
            a('s_mov_b32 s%d, %d' % (sT, 12 * 8192))
            a('buffer_load_ushort v%d, v11, %s, s%d offen %s' % (ANGR, sr(S_ANG, 4), sT, ld))
        else:
            (rin, rout), o, rang = regs(j)
            a('s_mov_b32 s%d, %d' % (sT, j * 16384))
            a('buffer_load_dwordx4 %s, v%d, %s, s%d offen %s' % (vr(rout + o, 4), O16, sr(S_OUT, 4), sT, ld))
            a('buffer_load_dwordx4 %s, v%d, %s, s%d offen %s' % (vr(rin + o, 4), O16, sr(S_IN, 4), sT, ld))
            a('s_mov_b32 s%d, %d' % (sT, j * 8192))
            a('buffer_load_dwordx2 %s, v%d, %s, s%d offen %s' % (vr(rang, 2), O8, sr(S_ANG, 4), sT, ld))
        marks[j] = a.mark()

    def pack2(items, rg, cnt):
        a('v_or_b32 v%d, s%d, v%d' % (rg, sVB, rg))
        for e, (ri, ro) in enumerate(items):
            a('v_or_b32 v%d, 3, v%d' % (TP + e, ro))
        for e, (ri, ro) in enumerate(items):
            a('v_mul_hi_u32_u24 v%d, s%d, v%d' % (TP + e, sMB, TP + e))
        for e, (ri, ro) in enumerate(items):
            a('v_and_b32 v%d, 3, v%d' % (TP + 2 + e, TP + e))
            a('v_mad_i32_i24 v%d, v%d, s%d, v%d' % (ro, TP + e, sNEG, ro))
        for e, (ri, ro) in enumerate(items):
            a('v_add_u32 v%d, v%d, v%d' % (ro, ro, TP + 2 + e))
            a('v_and_b32 v%d, s%d, v%d' % (TP + 2 + e, sUM, ri))
        for e, (ri, ro) in enumerate(items):
            a('v_mul_hi_u32_u24 v%d, s%d, v%d' % (TP + 2 + e, sMC, TP + 2 + e))
        for e, (ri, ro) in enumerate(items):
            a('v_lshl_add_u32 v%d, v%d, 8, v%d' % (TP + e, TP + 2 + e, TP + e))
            a('v_lshl_or_b32 v%d, v%d, 20, v%d' % (ri, ro, ri))
        for e, (ri, ro) in enumerate(items):
            a('v_lshlrev_b32 v%d, 2, v%d' % (TP + e, TP + e))
        for e, (ri, ro) in enumerate(items):
            a('ds_add_u32 v%d, v%d offset:%d' % (TP + e, ONE, cnt))
            if e:
                a('v_and_or_b32 v%d, v%d, s%d, v%d' % (ro, rg, sHI, TP + e))
            else:
                a('v_lshl_or_b32 v%d, v%d, 16, v%d' % (ro, rg, TP + e))

    def pack(j):
        a.wait_vm(marks[j])
        if j == 12:
            a('s_mov_b64 exec, %s' % sr(sREM, 2))
            pack2([(INR, OUTR)], ANGR, CNTB)
            a('s_mov_b64 exec, -1')
            return
        (rin, rout), o, rang = regs(j)
        for h in range(2):
            pack2([(rin + o + 2 * h + e, rout + o + 2 * h + e) for e in range(2)], rang + h, CNTA if j < 6 else CNTB)

    def scan(sub, cnt, data, srec, mid1=None, mid2=None):
        a('v_lshlrev_b32 v10, 2, v0')
        a('s_waitcnt lgkmcnt(0)')
        a('s_barrier')
        a('ds_read_b32 v4, v10 offset:%d' % cnt)
        m = a.mark()
        if mid1:
            mid1()
        a('s_lshl_b32 s%d, s%d, 2' % (sT, sW))
        a('v_mov_b32 v8, s%d' % sT)
        a('v_and_b32 v9, 60, v10')
        a.wait_ds(m)
        a('v_add_u32 v6, 1, v4')
        a('v_lshrrev_b32 v6, 1, v6')
        a('v_mov_b32 v7, v6')
        scan64(a, 7)
        a('s_mov_b32 exec_lo, 0')
        a('s_mov_b32 exec_hi, 0x80000000')
        a('ds_write_b32 v8, v7 offset:%d' % SCR)
        a('s_mov_b64 exec, -1')
        a('s_waitcnt lgkmcnt(0)')
        a('s_barrier')
        a('ds_read_b32 v11, v9 offset:%d' % SCR)
        m = a.mark()
        if mid2:
            mid2()
        a('v_and_b32 v8, 255, v0')
        a('v_lshrrev_b32 v9, 8, v0')
        a('v_lshlrev_b32 v9, 2, v9')
        a('v_lshl_add_u32 v9, v8, 4, v9')
        a.wait_ds(m)
        a('v_mov_b32 v5, v11')
        for c in ('row_shr:1', 'row_shr:2', 'row_shr:4', 'row_shr:8'):
            a('v_add_u32_dpp v11, v11, v11 %s row_mask:0xf bank_mask:0xf' % c)
        a('v_sub_u32 v5, v11, v5')
        a('v_readlane_b32 s%d, v11, 15' % sT)
        a('v_readlane_b32 s%d, v5, s%d' % (sBASE, sW))
        a('s_mul_i32 s%d, s%d, 12' % (srec + 2, sT))
        a('v_add_u32 v7, s%d, v7' % sBASE)
        a('v_sub_u32 v6, v7, v6')
        a('s_movk_i32 s%d, %d' % (sT, data))
        a('v_mad_u32_u24 v6, v6, 12, s%d' % sT)
        a('ds_write_b32 v10, v6 offset:%d' % cnt)
        a('v_lshl_or_b32 v5, v4, 16, v7')
        a('v_mul_u32_u24 v7, 12, v7')
        a('v_mov_b32 v6, 0')
        a('v_and_b32 v4, 1, v4')
        a('s_and_b32 s%d, s2, 7' % sT)
        a('s_lshl1_add_u32 s%d, s%d, %d' % (sT, sT, 3136 + sub))
        a('v_lshrrev_b32 v8, 8, v0')
        a('v_lshl_add_u32 v8, v8, 4, s%d' % sT)
        a('v_lshlrev_b32 v8, 8, v8')
        a('v_cmpx_eq_u32 vcc, 1, v4')
        a('ds_write_b16 v7, v6 offset:%d' % (data - 8))
        a('ds_write_b32 v7, v8 offset:%d' % (data - 4))
        a('s_mov_b64 exec, -1')
        a('s_movk_i32 s%d, %d' % (sT, sub * 4096))
        a('buffer_store_dword v5, v9, %s, s%d offen %s' % (sr(S_DSC, 4), sT, st))
        a('s_waitcnt lgkmcnt(0)')
        a('s_barrier')

    def rtn(t, ro, cnt):
        a('v_and_b32 v%d, 0xffff, v%d' % (t, ro))
        a('ds_add_rtn_u32 v%d, v%d, v%d offset:%d' % (t, t, SIX, cnt))

    def put(t, ri, ro, e):
        u = 8 + (e & 1)
        a('v_and_b32 v%d, 2, v%d' % (u, t))
        a('v_add_u32 v%d, v%d, v%d' % (t, t, u))
        a('v_mad_i32_i24 v%d, v%d, -5, v%d' % (u, u, t))
        a('ds_write_b32 v%d, v%d' % (t, ri))
        a('ds_write_b16_d16_hi v%d, v%d offset:6' % (u, ro))

    def scatter(rin, rout, cnt, rem, between):
        G = 3
        ng = 24 // G
        mk = {}
        if rem:
            a('s_mov_b64 exec, %s' % sr(sREM, 2))
            rtn(10, OUTR, cnt)
            a('s_mov_b64 exec, -1')
        for e in range(G):
            rtn(TS_ + e, rout + e, cnt)
        mk[0] = a.mark()
        for g in range(ng):
            cur, nxt = TS_ + (g & 1) * G, TS_ + ((g + 1) & 1) * G
            if g + 1 < ng:
                for e in range(G):
                    rtn(nxt + e, rout + (g + 1) * G + e, cnt)
                mk[g + 1] = a.mark()
            a.wait_ds(mk[g])
            for e in range(G):
                put(cur + e, rin + g * G + e, rout + g * G + e, e)
            if rem and g == 0:
                a('s_mov_b64 exec, %s' % sr(sREM, 2))
                put(10, INR, OUTR, 1)
                a('s_mov_b64 exec, -1')
            between(g)

    rd = {}

    def readout(base, data):
        a('v_add_u32 v22, 0x10000, v%d' % O16)
        a('v_add_u32 v23, 0x20000, v%d' % O16)
        for j in range(10):
            b = (O16, 22, 23)[j >> 2]
            a('ds_read_b128 %s, v%d offset:%d' % (vr(base + 4 * j, 4), b, data + (j & 3) * 16384))
            rd[j] = a.mark()

    def store(base, srec, j, wait=False):
        a('s_mov_b32 s%d, %d' % (sT, j * 16384))
        if wait:
            a.wait_ds(rd[j])
        a('buffer_store_dwordx4 %s, v%d, %s, s%d offen %s' % (vr(base + 4 * j, 4), O16, sr(srec, 4), sT, P['sta'] if base == INA else P['stb']))

    loads(0)
    loads(1)
    a('s_cmp_lg_u32 s%d, 0' % sPREP)
    a('s_barrier')
    a('s_cbranch_scc1 Lk1_noprep')
    a.nocount = True
    nds = a.nds
    prep(a, DATA, S_T0)
    a.nds = nds
    a.nocount = False
    a('Lk1_noprep:')
    for j in range(6):
        loads(j + 2)
        pack(j)
    stamp(a, 1, S_DBG, 96, 126)
    scan(0, CNTA, DATA, S_REC)
    stamp(a, 2, S_DBG, 96, 126)

    sched = P['sch'].split('.')
    nl, npk = [8], [6]

    def do(ops):
        for c in ops:
            if c == 'L':
                loads(nl[0])
                nl[0] += 1
            elif c == 'P':
                pack(npk[0])
                npk[0] += 1
            elif c == 'B':
                a('s_barrier')

    do(sched[0])
    scatter(INA, OUTA, CNTA, False, lambda g: do(sched[g + 1]))
    stamp(a, 3, S_DBG, 96, 126)
    do('L' * (13 - nl[0]))
    if P['cpf'] & 4:
        code_prefetch(a, 'c', 84, 126, 8)
    do('P' * (13 - npk[0]))
    stamp(a, 4, S_DBG, 96, 126)
    npre = P['npre']
    scan(1, CNTB, DATB, S_REC2, lambda: readout(INA, DATA), lambda: [store(INA, S_REC, j) for j in range(npre)])
    stamp(a, 5, S_DBG, 96, 126)
    todo = list(range(npre, 10))

    def btw_b(g):
        k = -(-len(todo) // (8 - g))
        for _ in range(k):
            store(INA, S_REC, todo.pop(0))

    scatter(INB, OUTB, CNTB, True, btw_b)
    stamp(a, 6, S_DBG, 96, 126)
    a('s_waitcnt lgkmcnt(0)')
    a('s_barrier')

    def k1warm():
        srd(a, S_T0, 12, P['k1w'] * 51200 * 128 if P['k1w'] < 4 else E * 32)
        a('s_lshl_b32 s%d, s2, 4' % sT)
        a('s_add_u32 s%d, s%d, s%d' % (sT, sT, sW))
        a('s_mul_i32 s%d, s%d, %d' % (sT, sT, 13 * P['k1w']))
        a('v_and_b32 v4, 63, v0')
        a('v_min_u32 v4, %d, v4' % (13 * P['k1w'] - 1))
        a('v_add_lshl_u32 v4, v4, s%d, 7' % sT)
        a('buffer_load_dword v4, v4, %s, 0 offen' % sr(S_T0, 4))

    readout(INB, DATB)
    if P['k1w'] and P['k1p'] == 0:
        k1warm()
    for j in range(10):
        store(INB, S_REC2, j, True)
    if P['k1w'] and P['k1p'] == 1:
        k1warm()
    stamp(a, 7, S_DBG, 96, 126)
    if P['stamp']:
        a('s_waitcnt vmcnt(0)')
        stamp(a, 8, S_DBG, 96, 126)
    a('Lk1_end:')
    a('s_endpgm')
    a.fence()
    return DATB + (25472 + 1024) * 6


def prep(a_, PB, S_T0, nvm=6, L=13, wsp=78, st=14, fl=''):
    a0 = a_

    def a(t):
        t = t.replace('s14', 's%d' % st) if not t.startswith('s_add') else t
        a0(t + ' ' + fl if t.startswith('buffer_store') else t)
    O = 27
    sS = 80
    sS = 48
    a('s_waitcnt vmcnt(%d)' % nvm)
    for i in range(4):
        a('ds_write_b128 v%d, %s offset:%d' % (O, vr(76 + 4 * i, 4), PB + 1024 * i))
    a('v_mov_b32 v4, 0')
    for i in range(16):
        a('v_dot2_f32_bf16 v4, v%d, v%d, v4' % (92 + i, 92 + i))
    scan64(a, 4, 'v_add_f32')
    a('v_readlane_b32 s14, v4, 63')
    a('v_bfe_u32 v5, v%d, 3, 2' % L)
    a('v_and_b32 v6, 3, v%d' % L)
    a('v_lshl_or_b32 v5, v5, 2, v6')
    a('v_lshlrev_b32 v5, 1, v5')
    a('v_bfe_u32 v7, v%d, 2, 1' % L)
    a('v_lshrrev_b32 v8, 5, v%d' % L)
    a('s_waitcnt lgkmcnt(0)')
    for k in range(24):
        a('ds_read_u16 v%d, v5 offset:%d' % (76 + k, PB + 32 * k))
        if k % 8 == 7:
            a('s_waitcnt lgkmcnt(0)')
    for k in range(16):
        a('ds_read_u16 v%d, v5 offset:%d' % (100 + k, PB + 1024 + 32 * k))
        if k % 8 == 7:
            a('s_waitcnt lgkmcnt(0)')
    a('v_lshl_add_u32 v9, v8, 8, v5')
    for k in range(8):
        a('ds_read_u16 v%d, v9 offset:%d' % (116 + k, PB + 1024 + 32 * k))
    a('s_waitcnt lgkmcnt(0)')
    for k in range(48):
        a('v_lshlrev_b32 v%d, 16, v%d' % (76 + k, 76 + k))
    a('v_mul_f32 v9, v76, v76')
    for k in range(1, 24):
        a('v_fmac_f32 v9, v%d, v%d' % (76 + k, 76 + k))
    a('v_mul_f32 v10, v100, v100')
    for k in range(1, 16):
        a('v_fmac_f32 v10, v%d, v%d' % (100 + k, 100 + k))
    a('v_log_f32 v9, v9')
    a('v_log_f32 v10, v10')
    a('v_log_f32 v11, s14')
    a('v_add_f32 v10, v10, v9')
    a('v_add_f32 v10, v10, v11')
    c0 = math.log2(P['target']) - 0.5 * math.log2(0.1625 / 2048)
    a('v_mov_b32 v11, 0x%x' % f2u(c0))
    a('v_fmac_f32 v11, -0.5, v10')
    a('v_floor_f32 v11, v11')
    a('v_mul_f32 v9, 0.5, v9')
    a('v_floor_f32 v9, v9')
    a('s_mov_b32 s14, 0x%x' % f2u(40.0))
    a('v_med3_f32 v11, v11, -s14, s14')
    a('v_med3_f32 v9, -v9, -s14, s14')
    a('v_cvt_i32_f32 v11, v11')
    a('v_cvt_i32_f32 v9, v9')
    a('v_sub_u32 v10, v11, v9')
    a('v_subrev_u32 v10, 16, v10')
    for j in range(16):
        a('v_readlane_b32 s%d, v11, %d' % (sS + j, ((j >> 2) << 3) | (j & 3)))
    srd(a, S_T0, wsp, 8192, str(PREP0))
    a('v_xor_b32 v4, v7, v8')
    a('v_subrev_u32 v4, 1, v4')
    a('v_subrev_u32 v6, 1, v7')
    a('v_sub_u32 v7, 0, v7')
    for k in range(24):
        a('v_ldexp_f32 v%d, v%d, v9' % (76 + k, 76 + k))
        if k % 3 == 1:
            a('v_add_f32 v%d, v%d, v%d' % (76 + k, 76 + k, 76 + k))
    if P['l2x']:
        for k in range(16):
            a('v_ldexp_f32 v%d, v%d, v10' % (100 + k, 100 + k))
        for jj in range(8):
            a('v_cvt_pk_bf16_f32 v%d, v%d, v%d' % (116 + jj, 100 + 2 * jj, 101 + 2 * jj))
    else:
        for k in range(8):
            a('v_ldexp_f32 v%d, v%d, v10' % (116 + k, 116 + k))
    for l in range(3):
        for jj in range(4):
            a('v_cvt_pk_f16_f32 v%d, v%d, v%d' % (100 + 4 * l + jj, 76 + 6 * jj + l, 76 + 6 * jj + 3 + l))
            a('v_and_b32 v%d, v%d, v4' % (100 + 4 * l + jj, 100 + 4 * l + jj))
        a('buffer_store_dwordx4 %s, v%d, %s, 0 offen offset:%d' % (vr(100 + 4 * l, 4), O, sr(S_T0, 4), 1024 * l))
    if P['l2x']:
        for jj in range(4):
            a('v_and_b32 v%d, v%d, v4' % (112 + jj, 116 + jj))
            a('v_and_b32 v%d, v%d, v4' % (120 + jj, 120 + jj))
    else:
        for jj in range(4):
            a('v_cvt_pk_bf16_f32 v%d, v%d, v%d' % (116 + jj, 116 + 2 * jj, 117 + 2 * jj))
        for jj in range(4):
            a('v_and_b32 v%d, v%d, v6' % (112 + jj, 116 + jj))
            a('v_and_b32 v%d, v%d, v7' % (120 + jj, 116 + jj))
    a('v_add_u32 v11, 4096, v%d' % O)
    a('buffer_store_dwordx4 v[112:115], v%d, %s, 0 offen offset:3072' % (O, sr(S_T0, 4)))
    a('buffer_store_dwordx4 v[120:123], v11, %s, 0 offen' % sr(S_T0, 4))
    a('v_bfe_u32 v5, v%d, 2, 1' % L)
    a('v_bfe_u32 v6, v%d, 3, 1' % L)
    a('v_lshl_or_b32 v5, v5, 1, v6')
    a('v_and_b32 v6, 3, v%d' % L)
    a('v_lshl_or_b32 v5, v5, 2, v6')
    a('v_lshlrev_b32 v5, 1, v5')
    a('v_bfe_u32 v7, v%d, 4, 1' % L)
    a('v_xor_b32 v4, v7, v8')
    a('v_subrev_u32 v4, 1, v4')
    for k in range(16):
        a('ds_read_u16 v%d, v5 offset:%d' % (76 + k, PB + 2048 + 32 * k))
        if k % 8 == 7:
            a('s_waitcnt lgkmcnt(0)')
    for k in range(8):
        a('ds_read_u16 v%d, v5 offset:%d' % (92 + k, PB + 3072 + 32 * k))
    a('s_waitcnt lgkmcnt(0)')
    for k in range(24):
        a('v_lshlrev_b32 v%d, 16, v%d' % (76 + k, 76 + k))
    a('v_mul_f32 v9, v92, v92')
    for k in range(1, 8):
        a('v_fmac_f32 v9, v%d, v%d' % (92 + k, 92 + k))
    a('v_log_f32 v9, v9')
    a('v_mul_f32 v9, 0.5, v9')
    a('v_floor_f32 v9, v9')
    a('v_med3_f32 v9, v9, -s14, s14')
    a('v_cvt_i32_f32 v9, v9')
    a('v_sub_u32 v10, 0, v9')
    for k in range(8):
        a('v_ldexp_f32 v%d, v%d, v10' % (92 + k, 92 + k))
    for k in range(16):
        a('v_subrev_u32 v6, s%d, v9' % (sS + k))
        a('v_ldexp_f32 v%d, v%d, v6' % (76 + k, 76 + k))
    for jj in range(8):
        a('v_cvt_pk_bf16_f32 v%d, v%d, v%d' % (76 + jj, 76 + 2 * jj, 77 + 2 * jj))
        a('v_and_b32 v%d, v%d, v4' % (76 + jj, 76 + jj))
    for jj in range(4):
        a('v_cvt_pk_f16_f32 v%d, v%d, v%d' % (84 + jj, 92 + 2 * jj, 93 + 2 * jj))
        a('v_and_b32 v%d, v%d, v4' % (84 + jj, 84 + jj))
    for i in range(3):
        a('buffer_store_dwordx4 %s, v11, %s, 0 offen offset:%d' % (vr(76 + 4 * i, 4), sr(S_T0, 4), 1024 * (i + 1)))
    a('s_nop 1')


from gen_k2p import k2
from gen_p8 import prod


def main():
    a = Asm()
    body = Asm()
    out = []
    kernels = []
    if P['fuse']:
        b = Asm()
        h = prod(b, P, globals())
        lds = max(h.lds, k2(b, P, globals(), h))
        kernels.append((NAME + '_kernel', b, lds, 512))
    else:
        b = Asm()
        if P['p8']:
            kernels.append(('bin_kernel', b, prod(b, P, globals()).lds, 512))
        else:
            kernels.append(('bin_kernel', b, k1(b), 1024))
        if not P['only1']:
            b = Asm()
            kernels.append(('acc_kernel', b, k2(b, P, globals(), None), 512))
    hdr = open('cdna_kernels/%s.s.ref' % NAME).read().split('\n')
    hdr = [l for l in hdr if l.startswith(';') and '@launch' not in l and 'Override launch' not in l and 'grid=ceil' not in l]
    out += hdr
    for nm, b, lds, nt in kernels:
        out.append('; @launch kernel=%s grid=(256,1,1) block=(%d,1,1) lds=%d' % (nm, nt, lds))
        if P['fuse'] == 2:
            out[-1] = '; @launch grid=(256,1,1) block=(512,1,1) lds=%d' % lds
    if P['k2x']:
        out.append(out[-1])
    out.append('.amdgcn_target "amdgcn-amd-amdhsa--gfx950"')
    out.append('.text')
    for nm, b, lds, nt in kernels:
        out.append('.globl %s\n.p2align 8\n.type %s,@function\n%s:' % (nm, nm, nm))
        out.append(b.text())
    out.append('.section .rodata,"a"')
    for nm, b, lds, nt in kernels:
        out.append('''.p2align 6
.amdhsa_kernel %s
  .amdhsa_next_free_vgpr %d
  .amdhsa_next_free_sgpr 102
  .amdhsa_accum_offset %d
  .amdhsa_group_segment_fixed_size 0
  .amdhsa_kernarg_size 112
  .amdhsa_user_sgpr_count 2
  .amdhsa_user_sgpr_kernarg_segment_ptr 1
  .amdhsa_system_sgpr_workgroup_id_x 1
.end_amdhsa_kernel''' % (nm, 131072 // nt, 131072 // nt))
    open(sys.argv[1], 'w').write('\n'.join(out) + '\n')


main()
```

```python
import math


def k2(a, P, G, hk):
    vr, sr, srd, f2u = G['vr'], G['sr'], G['srd'], G['f2u']
    E, BINE, TS, TSP = G['E'], G['BINE'], G['TS'], G['TSP']
    REC0, DESC0, PREP0, WS_BYTES = G['REC0'], G['DESC0'], G['PREP0'], G['WS_BYTES']
    ROWS = BINE + 3
    PL = ROWS * 4
    RBF0 = 5 * PL
    HI0 = RBF0 + ROWS * 16
    SCR = HI0 + 4 * PL
    LDS = SCR + 128
    KC0, TB0, BB0, SC0, RING0 = 0, 12800, 21504, 25600, 25856
    NSL = 15
    NBLK = 51
    NQ = 7
    S_M, S_MR, S_WS, S_DIST, S_MO, S_OUT, S_DBG = 16, 20, 24, 28, 32, 36, 92
    sCEN = 40
    sW, sBIN, sT, sT2 = 48, 49, 50, 51
    sM0, sM1, sIDM, sHI, sA16 = 52, 53, 54, 55, 56
    sPASS, sMODE, sIX = 57, 58, 59
    sV6 = 60
    sMK = 62
    sFL, sSK = 64, 78
    sPc = 64
    sR, sTB, sRB, sRE, sPS = 69, 70, 71, 72, 73
    sLO = 74
    sMA = 84
    sLM = 84
    sEND = 88
    sEW = 80
    sF, sE, sDL, sI, sP, sNT, sSUB = 4, 5, 6, 7, 8, 9, 10
    LANE, S0 = 1, 2
    AG, AM, GATE, MD = 164, 176, 184, 200
    GB = (156, 216)
    SBF, RBF = 224, 232
    IA, IB = 236, 238
    A16, ANG = (240, 241), (242, 243)
    A4, A4B, CV, AC = 244, 245, 246, 155
    RTN = (247, 248)
    STK, CK, TM = 249, 250, 251
    RAW = 156
    RT, RA = 216, 232
    NA = P['na']
    TAR = (240, 241, 242, 243, 236, 238)
    TF = (244, 245)
    TH, VM, ONE, EIGHT, L12, RBA, WD, WA = 246, 248, 249, 250, 251, 252, 253, 254
    lab = [0]
    HO = 'sc1' if hk else P['ldrec']
    VZ, VP, VT = 6, 7, 8
    NS0 = P['ns0']

    def spin(load, notready, m):
        n = lab[0]
        lab[0] += 1
        a('s_mov_b32 s%d, 0x40000' % sT2)
        a.wait_vm(m)
        a('Lpl%d:' % n)
        notready()
        a('s_cbranch_execz Lpd%d' % n)
        a('s_sleep %d' % P['slp'])
        a.nocount = True
        load()
        a.nocount = False
        a('s_sub_u32 s%d, s%d, 1' % (sT2, sT2))
        a('s_waitcnt vmcnt(0)')
        a('s_cbranch_scc0 Lpl%d' % n)
        a('Lpd%d:' % n)
        a('s_mov_b64 exec, -1')
        a('s_nop 3')

    def cleared_load():
        a('global_load_dword v%d, v%d, s[12:13] sc1' % (VP, VZ))
        return a.mark()

    def done_load():
        a('global_load_dword v%d, v%d, s[14:15] sc1' % (VP, VZ))
        return a.mark()

    def done_addr():
        a('s_and_b32 s%d, s2, 7' % sT)
        a('s_lshl3_add_u32 s%d, s%d, s%d' % (sT, sT, sW))
        a('s_lshl_b32 s%d, s%d, 7' % (sT, sT))
        a('s_add_u32 s%d, s%d, %d' % (sT, sT, G['FLG0']))
        a('v_and_b32 v%d, 31, v0' % VZ)
        a('v_lshl_add_u32 v%d, v%d, 2, s%d' % (VZ, VZ, sT))

    def done_wait(m):
        spin(done_load, lambda: a('v_cmpx_ne_u32 vcc, 1, v%d' % VP), m)

    def stamp(i, late=False):
        G['stamp'](a, i, S_DBG, 96, *((253, 254) if late else (235, 234)))

    CNT0 = 2 * PL

    def plane(j):
        return ((A4, 0), (A4, 3 * PL), (A4B, 0), (A4B, 2 * PL))[j]

    def desc_load(dst, tb):
        a('v_lshlrev_b32 v%d, 12, v0' % tb)
        a('s_lshl_b32 s%d, s%d, 4' % (sT, sBIN))
        a('s_add_u32 s%d, s%d, %d' % (sT, sT, DESC0))
        a('buffer_load_dwordx4 %s, v%d, %s, s%d offen %s' % (vr(dst, 4), tb, sr(S_WS, 4), sT, HO))
        return a.mark()

    def scan4(v):
        for c, rm in (('row_shr:1', 15), ('row_shr:2', 15), ('row_shr:4', 15), ('row_shr:8', 15), ('row_bcast:15', 10), ('row_bcast:31', 12)):
            for k in range(4):
                a('v_add_u32_dpp v%d, v%d, v%d %s row_mask:0x%x bank_mask:0xf' % (v + k, v + k, v + k, c, rm))

    def img_load(first, n, dst, t):
        a('v_lshlrev_b32 v%d, 4, v%d' % (t, LANE))
        for i in range(n):
            a('s_mov_b32 s%d, %d' % (sT, PREP0 + 1024 * (first + i)))
            a('buffer_load_dwordx4 %s, v%d, %s, s%d offen %s' % (vr(dst + 4 * i, 4), t, sr(S_WS, 4), sT, HO))

    def gathers(q):
        a('buffer_load_dwordx4 %s, %s, %s, 0 idxen offen' % (vr(GB[q], 4), vr(IA, 2), sr(S_M, 4)))
        a('buffer_load_dwordx4 %s, %s, %s, 0 idxen offen' % (vr(GB[q] + 4, 4), vr(IB, 2), sr(S_M, 4)))

    def cosines(p):
        c1, c3, c2 = TM, TM + 1, TM + 2
        a('v_mul_f32 v%d, 0x40400000, v%d' % (c3, ANG[p]))
        a('v_mul_f32 v%d, 0.15915494, v%d' % (c1, ANG[p]))
        a('v_cvt_pk_bf16_f32 v%d, 0, v%d' % (c3, c3))
        a('v_fract_f32 v%d, v%d' % (c1, c1))
        a('v_mul_f32 v%d, 0.15915494, v%d' % (c3, c3))
        a('v_cos_f32 v%d, v%d' % (c1, c1))
        a('v_fract_f32 v%d, v%d' % (c3, c3))
        a('v_cos_f32 v%d, v%d' % (c3, c3))
        a('v_fma_mixlo_f16 v%d, v%d, v%d, -0.5' % (c2, c1, c1))
        a('v_cvt_pk_f16_f32 v%d, v%d, v%d' % (c1, c1, c3))

    def sbf(l):
        src, sel = ((TM, 0), (TM + 2, 0), (TM, 1))[l]
        for j in range(4):
            a('v_pk_mul_f16 v%d, v%d, v%d op_sel:[0,%d] op_sel_hi:[1,%d]' % (SBF + 4 * (l & 1) + j, RBF + j, src, sel, sel))

    def gmf(l):
        a('v_mfma_f32_32x32x16_f16 %s, %s, %s, %s' % (vr(GATE, 16), vr(AG + 4 * l, 4), vr(SBF + 4 * (l & 1), 4), vr(GATE, 16) if l else '0'))

    def mdown(p):
        a('v_mfma_f32_32x32x16_bf16 %s, %s, %s, 0' % (vr(MD, 16), vr(AM, 4), vr(GB[p], 4)))
        a('v_mfma_f32_32x32x16_bf16 %s, %s, %s, %s' % (vr(MD, 16), vr(AM + 4, 4), vr(GB[p] + 4, 4), vr(MD, 16)))

    def addrs(p):
        a('v_lshrrev_b32 v%d, 1, v%d' % (A4, A16[p]))
        a('v_lshrrev_b32 v%d, 2, v%d' % (AC, A16[p]))
        a('v_add_u32 v%d, %d, v%d' % (A4B, HI0, A4))

    def decode_rel(p, base, part=3):
        if P['lf']:
            base = 0
        a('s_set_gpr_idx_on s%d, gpr_idx(SRC1)' % (sDX if P['lf'] else sIX))
        a('s_nop 0')
        if part & 1:
            a('v_and_b32 v%d, s%d, v%d' % (IA, sIDM, S0 + base + p))
            a('v_and_b32 v%d, s%d, v%d' % (IB, sIDM, S0 + base + p))
        if part & 2:
            a('v_and_b32_sdwa v%d, s%d, v%d dst_sel:DWORD dst_unused:UNUSED_PAD src0_sel:DWORD src1_sel:WORD_1' % (A16[p], sA16, S0 + base + p))
            if p:
                a('v_and_b32 v%d, s%d, v%d' % (ANG[p], sHI, S0 + base + 2))
            else:
                a('v_lshlrev_b32 v%d, 16, v%d' % (ANG[p], S0 + base + 2))
        a('s_set_gpr_idx_off')
        if part & 1:
            a('v_permlane32_swap_b32 v%d, v%d' % (IA, IB))

    sDX, sI1, sOF, sLB = 76, 77, 78, 79

    def next_block():
        a('s_add_u32 s%d, s%d, s%d' % (sDX, sI1, sOF))
        a('s_xor_b32 s%d, s%d, s%d' % (sDX, sDX, 75))
        a('s_sub_u32 s%d, s%d, s%d' % (sDX, sDX, sOF))
        a('s_max_u32 s%d, s%d, s%d' % (sT, sDX, sI1))
        a('s_cmp_ge_u32 s%d, s%d' % (sT, sLB))
        a('s_cselect_b32 s%d, s%d, s%d' % (sDX, sI1, sDX))
        a('s_mul_i32 s%d, s%d, 3' % (sDX, sDX))
        a('s_add_u32 s%d, s%d, 1' % (sI1, sI1))

    def halfbar(hi):
        n = lab[0]
        lab[0] += 1
        a('s_bitcmp%d_b32 s%d, %d' % (0 if hi else 1, sW, P['stb_']))
        a('s_cbranch_scc1 Lhb%d' % n)
        a('s_barrier')
        a.hist[-1].states = 0
        a('Lhb%d:' % n)

    def step(p):
        q = 1 - p
        ab = P['abl']
        vq = (lambda t: None) if ab & 4 else a
        vb = (lambda t: None) if ab & 68 else a
        va = (lambda t: None) if ab & 1 else a
        if P['early']:
            decode_rel(p, 3, 1)
        a('s_waitcnt vmcnt(2)')
        if not ab & 16:
            mdown(p)
        if P['early']:
            gathers(p)
        if not ab & 32:
            cosines(p)
        a('s_waitcnt lgkmcnt(%d)' % (0 if ab & 1 else 5))
        if not ab & 32:
            sbf(0)
        addrs(p)
        if not ab & 8:
            gmf(0)
        if not ab & 32:
            sbf(1)
        a('v_or_b32 v%d, v%d, v%d' % (STK, STK, RTN[p]))
        a('s_cmp_eq_u32 s%d, s%d' % (sIX, sEND))
        if not ab & 8:
            gmf(1)
        if not ab & 32:
            sbf(2)
        a('ds_read_b128 %s, v%d offset:%d' % (vr(RBF, 4), A16[q], RBF0))
        a('s_cselect_b64 %s, %s, -1' % (sr(sMK, 2), sr(sLM + 2 * p, 2)))
        if not ab & 8:
            gmf(2)
        if P['early']:
            decode_rel(p, 3, 2)
        else:
            decode_rel(p, 3)
            gathers(p)
        if P['stag'] and (p == 1 or P['stag'] == 2):
            halfbar(1)
        a('s_mov_b64 exec, %s' % sr(sMK, 2))
        pk = lambda j: MD + 4 * (j >> 1) + (j & 1)
        for j in range(8):
            vq('v_fma_f32 v%d, v%d, v%d, s%d' % (MD + 2 * j, MD + 2 * j, GATE + 2 * j, sM0))
            vq('v_fma_f32 v%d, v%d, v%d, s%d' % (MD + 2 * j + 1, MD + 2 * j + 1, GATE + 2 * j + 1, sM0))
            if j:
                jj = j - 1
                vb('v_sad_u16 v%d, v%d, s%d, v%d' % (TM + (jj >> 1), pk(jj), sM1, TM + (jj >> 1) if jj & 1 else CK))
            vq('v_cvt_pknorm_u16_f32 v%d, v%d, v%d' % (pk(j), MD + 2 * j, MD + 2 * j + 1))
            if j & 1:
                b, o = plane(j >> 1)
                va('ds_add_u64 v%d, %s offset:%d' % (b, vr(pk(j - 1), 2), o))
        vb('v_max3_u32 v%d, v%d, v%d, v%d' % (CV, TM, TM + 1, TM + 2))
        vb('v_sad_u16 v%d, v%d, s%d, v%d' % (TM + 3, pk(7), sM1, TM + 3))
        vb('v_max_u32 v%d, v%d, v%d' % (CV, CV, TM + 3))
        va('ds_add_rtn_u32 v%d, v%d, v%d offset:%d' % (RTN[p], AC, CV, CNT0))
        a('s_mov_b64 exec, -1')

    if not hk:
        a('s_cmp_ge_u32 s2, 256')
        a('s_cbranch_scc1 Lk2_end')
    a('s_load_dwordx2 s[4:5], s[0:1], 0')
    a('s_load_dwordx2 s[6:7], s[0:1], 24')
    a('s_load_dwordx2 s[8:9], s[0:1], 40')
    a('s_load_dwordx2 s[10:11], s[0:1], 88')
    if not hk:
        a('s_load_dwordx4 s[12:15], s[0:1], 96')
    if P['cpf'] & 2:
        G['code_prefetch'](a, 'b', 88, 4)
    a('v_lshrrev_b32 v3, 6, v0')
    a('v_and_b32 v%d, 63, v0' % LANE)
    a('v_readfirstlane_b32 s%d, v3' % sW)
    if hk:
        a('v_and_b32 v%d, 3, v0' % VZ)
        a('v_lshlrev_b32 v%d, 6, v%d' % (VZ, VZ))
        mP = cleared_load()
    a('s_and_b32 s%d, s2, 7' % sBIN)
    a('s_lshl_b32 s%d, s%d, 5' % (sBIN, sBIN))
    a('s_lshr_b32 s%d, s2, 3' % sT)
    a('s_add_u32 s%d, s%d, s%d' % (sBIN, sBIN, sT))
    a('s_mov_b32 s%d, 0x%x' % (sM0, f2u(32768.0 / 65535.0)))
    a('s_mov_b32 s%d, 0x80008000' % sM1)
    a('s_mov_b32 s%d, 0x%x' % (sIDM, P['idm']))
    a('s_mov_b32 s%d, 0xffff0000' % sHI)
    a('s_mov_b32 s%d, 0xfff0' % sA16)
    a('s_mov_b32 s%d, 0x07060302' % sPS)
    a('s_mov_b32 s%d, 0' % sMODE)
    a('s_mul_i32 s%d, s%d, %d' % (sPASS, sBIN, BINE))
    a('s_add_u32 s%d, s%d, %d' % (sIX, sPASS, BINE))
    a('s_andn2_b32 s%d, s%d, 3' % (sPASS, sPASS))
    a('s_andn2_b32 s%d, s%d, 3' % (sIX, sIX))
    a('s_sub_u32 s%d, s%d, s%d' % (sIX, sIX, sPASS))
    a('s_sub_u32 s%d, s%d, 3072' % (sT, sIX))
    a('v_cmp_gt_u32 %s, s%d, v0' % (sr(sV6, 2), sT))
    a('v_lshrrev_b32 v%d, 5, v%d' % (IA + 1, LANE))
    a('v_lshlrev_b32 v%d, 4, v%d' % (IA + 1, IA + 1))
    a('v_mov_b32 v%d, v%d' % (IB + 1, IA + 1))
    a('v_mov_b32 v%d, 0' % IA)
    a('v_mov_b32 v%d, 0' % IB)
    a('s_waitcnt lgkmcnt(0)')
    a('s_load_dwordx4 s[96:99], s[8:9], 0')
    srd(a, S_WS, 14, WS_BYTES)
    D, X, DL = RAW, RAW + 4, RAW + 8
    if hk:
        a('s_barrier')
        for j in range(NS0):
            mS = hk.store(j)
    else:
        mDs = desc_load(D, RAW + 12)
        if P['spf']:
            a('s_lshr_b32 s%d, s2, 3' % sT)
            a('s_and_b32 s%d, s%d, 1' % (sT2, sT))
            a('s_mul_i32 s%d, s%d, 160' % (sT2, sT2))
            a('s_add_u32 s%d, s%d, 4720' % (sT2, sT2))
            a('s_and_b32 s90, s2, 7')
            a('s_mul_i32 s%d, s%d, s90' % (sT2, sT2))
            a('s_lshl_b32 s90, s%d, 6' % sW)
            a('s_add_u32 s90, s90, s%d' % sT)
            a('s_mul_i32 s90, s90, %d' % TS)
            a('s_add_u32 s90, s90, s%d' % sT2)
            a('s_add_u32 s90, s90, %d' % REC0)
            a('s_cmp_lt_u32 s%d, %d' % (sT, P['spf']))
            a('s_cselect_b32 s90, s90, %d' % WS_BYTES)
            a('v_min_u32 v%d, 38, v%d' % (WD, LANE))
            a('v_lshlrev_b32 v%d, 7, v%d' % (WD, WD))
            if P['spf'] > 32:
                a('buffer_load_dword v%d, v%d, %s, s90 offen' % (TH, WD, sr(S_WS, 4)))
                a('s_add_u32 s90, s90, %d' % (32 * TS))
                a('s_cmp_lt_u32 s%d, %d' % (sT, P['spf'] - 32))
                a('s_cselect_b32 s90, s90, %d' % WS_BYTES)
            a('buffer_load_dword v%d, v%d, %s, s90 offen' % (WD, WD, sr(S_WS, 4)))
    a('s_lshl_b32 s%d, s%d, 1' % (sT, sPASS))
    a('s_lshl_b32 s%d, s%d, 5' % (sT2, sPASS))
    srd(a, S_DIST, 6, 0, 's%d' % sT)
    srd(a, S_M, 4, E, None, 32)
    srd(a, S_MR, 4, E * 32)
    srd(a, S_MO, 4, 0, 's%d' % sT2)
    srd(a, S_OUT, 10, 0, 's%d' % sT2)
    a('s_lshl_b32 s%d, s%d, 1' % (S_DIST + 2, sIX))
    a('s_lshl_b32 s%d, s%d, 5' % (S_MO + 2, sIX))
    a('s_lshl_b32 s%d, s%d, 5' % (S_OUT + 2, sIX))
    G['stamp_init'](a, S_DBG, 14, 1, sW)
    a('s_waitcnt lgkmcnt(0)')
    for r in range(4):
        a('s_lshl_b32 s%d, s%d, 16' % (sCEN + 2 * r, 96 + r))
        a('s_and_b32 s%d, s%d, 0xffff0000' % (sCEN + 2 * r + 1, 96 + r))
    a('s_mov_b32 s%d, 0x%x' % (sR, f2u(math.sqrt(10.0 * math.log2(math.e)))))
    a('v_mov_b32 v%d, s%d' % (RT + 8, sR))
    for r in range(8):
        a('v_mul_f32 v%d, s%d, v%d' % (RT + r, sCEN + r, RT + 8))
    for r in range(8):
        a('v_readfirstlane_b32 s%d, v%d' % (sCEN + r, RT + r))
    stamp(0)
    Z, T0 = 96, 104
    for i in range(4):
        a('v_mov_b32 v%d, 0' % (Z + i))
        a('v_bfrev_b32 v%d, 1' % (Z + 4 + i))
    a('v_lshlrev_b32 v%d, 4, v0' % T0)
    a('v_lshlrev_b32 v%d, 3, v0' % (T0 + 1))
    a('s_mul_i32 s%d, s%d, 1088' % (sTB, sW))
    a('v_lshl_add_u32 v%d, v%d, 4, s%d' % (T0 + 2, LANE, sTB))
    a('ds_write_b64 v%d, %s offset:%d' % (T0 + 1, vr(Z, 2), BB0))
    a('ds_write_b128 v%d, %s offset:%d' % (T0 + 2, vr(Z + 4, 4), TB0))
    a('ds_write_b128 v%d, %s offset:%d' % (T0 + 2, vr(Z + 4, 4), TB0 + 64))
    a('s_movk_i32 s%d, 400' % sT)
    a('v_cmpx_gt_u32 vcc, s%d, v0' % sT)
    a('ds_write_b128 v%d, %s offset:%d' % (T0, vr(Z, 4), KC0))
    a('ds_write_b128 v%d, %s offset:%d' % (T0, vr(Z, 4), KC0 + 6400))
    a('s_mov_b64 exec, -1')
    a('v_mov_b32 v%d, 1' % ONE)
    a('v_mov_b32 v%d, 4' % EIGHT)
    a('v_mul_u32_u24 v%d, 12, v%d' % (L12, LANE))
    a('s_lshl_b32 s%d, s%d, 10' % (sT, sW))
    a('v_lshl_add_u32 v%d, v%d, 3, s%d' % (RBA, LANE, sT))
    a('s_lshl_b32 s%d, s2, 3' % sT)
    a('s_add_u32 s%d, s%d, s%d' % (sT, sT, sW))
    a('s_mul_i32 s%d, s%d, 25' % (sT, sT))
    a('v_min_u32 v%d, 24, v%d' % (WA, LANE))
    a('v_add_lshl_u32 v%d, v%d, s%d, 7' % (WA, WA, sT))
    for j in range(4):
        if P['wpos'][j] == '0':
            a('s_mov_b32 s%d, %d' % (sT, j * 51200 * 128))
            a('buffer_load_dword v%d, v%d, %s, s%d offen' % (WD, WA, sr(S_MR, 4), sT))
    a('s_movk_i32 s%d, %d' % (sT, REC0 // 12))
    a('v_mov_b32 v%d, %d' % (T0 + 3, TSP))
    a('v_mad_u32_u24 v%d, v0, v%d, s%d' % (T0 + 3, T0 + 3, sT))
    if hk:
        rest = []
        for j in range(NS0, 20):
            if 20 - j <= len(hk.rest_a):
                rest.append(hk.rest_a[j - 20])
            rest.append(lambda j=j: hk.store(j))
        for j in range(P['nsx']):
            rest.pop(0)()
        a.wait_vm(mS)
        a('s_barrier')
        hk.publish()
        stamp(11)
        late = rest[len(rest) - P['nlate']:] if P['nlate'] else []
        for f in rest[:len(rest) - len(late)]:
            mS = f()
        spin(cleared_load, lambda: a('v_cmpx_gt_u32 vcc, 64, v%d' % VP), mP)
        mDs = desc_load(D, RAW + 12)
        done_addr()
        stamp(12)
        if not late:
            a.wait_vm(mS)
            hk.arrive2(0, VT, hk.arrive1(0, VT))

        def nr():
            a('v_and_b32 v%d, v%d, v%d' % (VT, D, D + 1))
            a('v_and_b32 v%d, v%d, v%d' % (VT + 1, D + 2, D + 3))
            a('v_and_b32 v%d, v%d, v%d' % (VT, VT, VT + 1))
            a('v_cmpx_le_i32 vcc, 0, v%d' % VT)
        spin(lambda: desc_load(D, RAW + 12), nr, mDs)
        stamp(13)
        for k in range(4):
            a('v_and_b32 v%d, 0x7fffffff, v%d' % (D + k, D + k))
    else:
        a.wait_vm(mDs)
    NP = RAW + 28
    for k in range(4):
        a('v_add_u32 v%d, 0x10000, v%d' % (NP + k, D + k))
        a('v_bfe_u32 v%d, v%d, 16, 1' % (X + k, D + k))
        a('v_lshrrev_b32 v%d, 17, v%d' % (NP + k, NP + k))
        a('v_and_b32 v%d, 0xffff, v%d' % (D + k, D + k))
        a('v_lshl_or_b32 v%d, v%d, 20, v%d' % (X + k, X + k, NP + k))
    scan4(X)
    TT = RAW + 32
    a('s_movk_i32 s%d, %d' % (sT2, NSL * 64))
    for k in range(4):
        a('v_lshrrev_b32 v%d, 20, v%d' % (TT + k, X + k))
        a('v_and_b32 v%d, 0xfffff, v%d' % (X + k, X + k))
        a('v_add_u32 v%d, v%d, v%d' % (DL + k, D + k, T0 + 3))
        a('v_sub_u32 v%d, v%d, v%d' % (TT + k, X + k, TT + k))
        a('v_sub_u32 v%d, v%d, v%d' % (DL + k, DL + k, X + k))
        a('v_add_u32 v%d, v%d, v%d' % (TT + k, TT + k, X + k))
        a('v_mul_u32_u24 v%d, 12, v%d' % (DL + k, DL + k))
        a('v_subrev_u32 v%d, %d, v%d' % (T0, 64 * P['nfull'], X + k))
        a('v_cmpx_lt_u32 vcc, %d, v%d' % (64 * (NSL - P['nfull']), T0))
        a('v_mov_b32 v%d, 0x1000000' % (TT + k))
        a('s_mov_b64 exec, -1')
    if hk:
        a('v_cmp_lt_u32 vcc, %d, v%d' % (NS0 * 8192 // 12, D + P['nrun'] - 1))
        a('s_cmp_lg_u64 vcc, 0')
        a('s_cselect_b64 exec, -1, 0')
        a('v_mov_b32 v%d, 0x1000000' % TT)
        a('s_mov_b64 exec, -1')
    for k in range(4):
        a('v_readlane_b32 s%d, v%d, 63' % (sEW + k, X + k))
    a('s_lshl_b32 s%d, s%d, 4' % (sT, sW))
    a('v_mov_b32 v%d, s%d' % (T0, sT))
    a('s_mov_b32 exec_lo, 0')
    a('s_mov_b32 exec_hi, 0x80000000')
    a('ds_write_b128 v%d, %s offset:%d' % (T0, vr(TT, 4), SC0))
    a('s_mov_b64 exec, -1')
    a('s_lshl_b32 s%d, s%d, 9' % (sT, sW))
    for k in range(4):
        a('v_subrev_u32 v%d, 1, v%d' % (T0, X + k))
        a('v_lshlrev_b32 v%d, v%d, v%d' % (T0 + 1, T0, ONE))
        a('v_lshrrev_b32 v%d, 5, v%d' % (T0, T0))
        a('v_lshl_add_u32 v%d, v%d, 2, s%d' % (T0, T0, sT))
        a('v_cmpx_ge_u32 vcc, s%d, v%d' % (sT2, X + k))
        a('v_cmpx_ne_u32 vcc, 0, v%d' % (NP + k))
        a('v_mbcnt_lo_u32_b32 v%d, vcc_lo, 0' % (T0 + 2))
        a('v_mbcnt_hi_u32_b32 v%d, vcc_hi, v%d' % (T0 + 2, T0 + 2))
        a('v_lshl_add_u32 v%d, v%d, 2, s%d' % (T0 + 2, T0 + 2, sTB))
        a('ds_or_b32 v%d, v%d offset:%d' % (T0, T0 + 1, BB0 + 128 * k))
        a('ds_write_b32 v%d, v%d offset:%d' % (T0 + 2, DL + k, TB0 + 272 * k))
        a('s_mov_b64 exec, -1')
    a('v_and_b32 v%d, 7, v0' % T0)
    a('v_lshlrev_b32 v%d, 4, v%d' % (T0, T0))
    a('s_waitcnt lgkmcnt(0)')
    a('s_barrier')
    a('ds_read_b128 %s, v%d offset:%d' % (vr(TT, 4), T0, SC0))
    a('s_mov_b32 s%d, 0' % sPc)
    a('s_waitcnt lgkmcnt(0)')
    for c in ('row_shr:1', 'row_shr:2', 'row_shr:4'):
        for k in range(4):
            a('v_add_u32_dpp v%d, v%d, v%d %s row_mask:0xf bank_mask:0xf' % (TT + k, TT + k, TT + k, c))
    for k in range(4):
        a('v_readlane_b32 s%d, v%d, 7' % (sPc + 1 + k, TT + k))
    for k in range(1, 4):
        a('s_add_u32 s%d, s%d, s%d' % (sPc + 1 + k, sPc + 1 + k, sPc + k))
    a('s_cmp_gt_u32 s%d, %d' % (sPc + 4, NBLK * 1024 if P['force_slow'] != 4 else 0))
    a('s_cbranch_scc1 Lk2_fb')
    a('s_cmp_ge_u32 s%d, %d' % (sPc + 2, 29 * 1024))
    a('s_cbranch_scc1 Lk2_fb')
    stamp(1)

    BUF = (96, 156)
    LEAD, HP = P['lead'], P['hp']
    RO, ZR = 184, 212
    DI = (TF[0], TF[1], VM, L12, TH, TH + 1, ONE)
    NFULL = P['nfull']
    mA, mC, mV, mM = {}, {}, {}, {}
    VMS = (255, VM)

    def raw(u):
        return BUF[(u // NSL) & 1] + 4 * (u % NSL)

    def Mrd(r):
        a('s_lshl_b32 s%d, s%d, 9' % (sT, sW))
        a('v_lshl_add_u32 v%d, v%d, 2, s%d' % (VMS[r >> 1], LANE, sT))
        a('ds_read_b32 v%d, v%d offset:%d' % (VMS[r >> 1], VMS[r >> 1], BB0 + 128 * r))
        mM[r] = a.mark()

    def keys(t0, t1, R):
        for e, t in enumerate((t0, t1)):
            a('v_lshrrev_b32 v%d, 6, v%d' % (t, R + 2 * e))
        for t in (t0, t1):
            a('v_and_b32 v%d, 0x3ffc, v%d' % (t, t))

    def A(u):
        R = raw(u)
        t0, t1 = TAR[2 * (u % NA)], TAR[2 * (u % NA) + 1]
        keys(t0, t1, R)
        for t in (t0, t1):
            a('ds_read_b32 v%d, v%d offset:%d' % (t, t, KC0))
        mA[u] = a.mark()

    def B(u):
        R = raw(u)
        tail = u % NSL >= NFULL
        if tail:
            a('v_cmpx_gt_i32 vcc, 0, v%d' % (R + 1))
        a.wait_ds(mA[u])
        for e in range(2):
            t = TAR[2 * (u % NA) + e]
            a('v_add_u32 v%d, v%d, v%d' % (t, t, R + 2 * e + 1))
        for e in range(2):
            t = TAR[2 * (u % NA) + e]
            a('v_lshlrev_b32_sdwa v%d, 1, v%d dst_sel:DWORD dst_unused:UNUSED_PAD src0_sel:DWORD src1_sel:WORD_0' % (t, t))
            a('ds_write_b64 v%d, %s offset:%d' % (t, vr(R + 2 * e, 2), RING0))
        if tail:
            a('s_mov_b64 exec, -1')

    def C(u):
        if u >= 4 * NSL:
            return
        r, k = divmod(u, NSL)
        t = TF[u & 1]
        if u == 0:
            a.wait_ds(mM[2])
        if k == 0:
            a('s_mul_i32 s%d, s%d, 1088' % (sTB, sW))
        a('v_readlane_b32 s%d, v%d, %d' % (sLO, VMS[r >> 1], 32 * (r & 1) + 2 * k))
        a('v_readlane_b32 s%d, v%d, %d' % (sLO + 1, VMS[r >> 1], 32 * (r & 1) + 2 * k + 1))
        a('s_bcnt1_i32_b64 s%d, %s' % (sT, sr(sLO, 2)))
        a('v_mbcnt_lo_u32_b32 v%d, s%d, 0' % (t, sLO))
        a('v_mbcnt_hi_u32_b32 v%d, s%d, v%d' % (t, sLO + 1, t))
        a('v_lshl_add_u32 v%d, v%d, 2, s%d' % (t, t, sTB))
        a('s_lshl2_add_u32 s%d, s%d, s%d' % (sTB, sT, sTB))
        a('ds_read_b32 v%d, v%d offset:%d' % (t, t, TB0 + 272 * r))
        mC[u] = a.mark()

    def Dd(u):
        if u >= 4 * NSL:
            return
        t = TF[u & 1]
        a('s_movk_i32 s%d, %d' % (sT2, 768 * (u % NSL)))
        a.wait_ds(mC[u])
        a('v_add_u32 v%d, v%d, v%d' % (t, t, L12))
        if P['abl'] & 2048:
            a('v_and_b32 v%d, 0x3ffff, v%d' % (t, t))
        a('buffer_load_dwordx3 %s, v%d, %s, s%d offen %s' % (vr(raw(u), 3), t, sr(S_WS, 4), sT2, HO))
        mV[u] = a.mark()

    hpend = []
    hcnt = [0]

    def H2():
        while hpend:
            R, t0, t1, m = hpend.pop()
            a.wait_ds(m)
            a('v_lshl_or_b32 v%d, v%d, 16, v%d' % (R + 3, R + 1, t1))
            a('v_and_or_b32 v%d, v%d, s%d, v%d' % (R + 1, R + 1, sHI, t0))

    def H(u):
        R = raw(u)
        tail = u % NSL >= NFULL
        t0, t1 = ((TH, TH + 1), (236, 238))[hcnt[0] & 1]
        hcnt[0] += 1
        a.wait_vm(mV[u])
        keys(t0, t1, R)
        if tail:
            a('v_cmpx_gt_i32 vcc, 0, v%d' % (R + 1))
        for t in (t0, t1):
            a('ds_add_rtn_u32 v%d, v%d, v%d offset:%d' % (t, t, EIGHT, KC0))
        m = a.mark()
        if tail:
            a('s_mov_b64 exec, -1')
        H2()
        hpend.append((R, t0, t1, m))

    def keyscan(r):
        K = RT
        nds = a.nds
        a('s_cmp_lg_u32 s%d, %d' % (sW, P['scw']))
        a('s_cbranch_scc1 Lks%d' % r)
        a('v_lshlrev_b32 v%d, 6, v%d' % (RA, LANE))
        for j in range(4):
            a('ds_read_b128 %s, v%d offset:%d' % (vr(K + 4 * j, 4), RA, KC0 + 3136 * r + 16 * j))
        a('s_waitcnt lgkmcnt(0)')
        for j in range(1, 16):
            a('v_add_u32 v%d, v%d, v%d' % (K + j, K + j, K + j - 1))
        a('v_mov_b32 v%d, v%d' % (RA + 1, K + 15))
        G['scan64'](a, RA + 1)
        a('v_sub_u32 v%d, v%d, v%d' % (RA + 1, RA + 1, K + 15))
        a('v_lshl_add_u32 v%d, s%d, 2, v%d' % (RA + 1, sPc + r, RA + 1))
        a('v_cmpx_gt_u32 vcc, 49, v%d' % LANE)
        for j in range(15, -1, -1):
            if j:
                a('v_add_u32 v%d, v%d, v%d' % (K + j, K + j - 1, RA + 1))
            else:
                a('v_mov_b32 v%d, v%d' % (K, RA + 1))
            if j % 4 == 0:
                a('ds_write_b128 v%d, %s offset:%d' % (RA, vr(K + j, 4), KC0 + 3136 * r + 4 * j))
        a('s_lshl_b32 s%d, s%d, 2' % (sT, sPc + r + 1))
        a('v_mov_b32 v%d, s%d' % (RA + 1, sT))
        a('v_lshlrev_b32 v%d, 2, v%d' % (RA, LANE))
        a('s_mov_b64 exec, 0xffff')
        a('ds_write_b32 v%d, v%d offset:%d' % (RA, RA + 1, KC0 + 4 * (3136 + 16 * r)))
        a('s_mov_b64 exec, -1')
        a('Lks%d:' % r)
        a('s_nop 1')
        a.nds = nds

    def rb_reads(RT=RT, j0=0):
        mk = {}
        for j in range(4):
            a('s_add_u32 s%d, s%d, %d' % (sT, sRB, j0 + j))
            a('s_and_b32 s%d, s%d, 15' % (sT, sT))
            a('s_lshl_b32 s%d, s%d, 13' % (sT, sT))
            a('v_add_u32 v%d, s%d, v%d' % (RA + j, sT, RBA))
            a('ds_read_b64 %s, v%d offset:%d' % (vr(RT + 4 * j, 2), RA + j, RING0))
            a('ds_read_b64 %s, v%d offset:%d' % (vr(RT + 4 * j + 2, 2), RA + j, RING0 + 512))
            mk[j] = a.mark()
        return mk

    def rb_moves(mk, RT=RT):
        a('s_mul_i32 s%d, s%d, 3' % (sIX, sRB))
        a('s_set_gpr_idx_on s%d, gpr_idx(DST)' % sIX)
        for j in range(4):
            a.wait_ds(mk[j])
            a('v_mov_b32 v%d, v%d' % (S0 + 3 * j, RT + 4 * j))
            a('v_mov_b32 v%d, v%d' % (S0 + 3 * j + 1, RT + 4 * j + 2))
            a('v_perm_b32 v%d, v%d, v%d, s%d' % (S0 + 3 * j + 2, RT + 4 * j + 3, RT + 4 * j + 1, sPS))
        a('s_set_gpr_idx_off')
        a('s_add_u32 s%d, s%d, 4' % (sRB, sRB))

    def readback(tag):
        nds = a.nds
        a('s_cmp_ge_u32 s%d, s%d' % (sRB, sRE))
        a('s_cbranch_scc1 Lrd%s' % tag)
        a('Lrl%s:' % tag)
        rb_moves(rb_reads())
        a('s_cmp_lt_u32 s%d, s%d' % (sRB, sRE))
        a('s_cbranch_scc1 Lrl%s' % tag)
        a('Lrd%s:' % tag)
        a('s_mov_b32 s%d, s%d' % (sRB, sRE))
        a.nds = nds

    def warm(j):
        if P['warm']:
            a('s_mov_b32 s%d, %d' % (sT, j * 51200 * 128))
            a('buffer_load_dword v%d, v%d, %s, s%d offen' % (WD, WA, sr(S_MR, 4), sT))

    def l2pf(j):
        if j * 16384 >= P['pfn']:
            return
        if j == 0:
            a('s_lshr_b32 s%d, s2, 3' % sT)
            a('s_lshl_b32 s%d, s%d, 9' % (sT, sT))
            a('v_add_lshl_u32 v%d, v0, s%d, 7' % (WA, sT))
            a('s_mov_b32 s%d, %d' % (S_MR + 2, P['pfn'] * 128))
        a('s_mov_b32 s%d, %d' % (sT, j * 16384 * 128))
        a('buffer_load_dword v%d, v%d, %s, s%d offen' % (WD, WA, sr(S_MR, 4), sT))

    def dist_loads():
        a('v_lshlrev_b32 v%d, 1, v0' % (RA + 2))
        for q in range(NQ):
            a('s_movk_i32 s%d, %d' % (sT, q * 1024))
            a('buffer_load_ushort v%d, v%d, %s, s%d offen' % (DI[q], RA + 2, sr(S_DIST, 4), sT))
        return a.mark()

    def rbf_batch(q):
        K = RT
        a('v_lshlrev_b32 v%d, 16, v%d' % (K + 8, DI[q]))
        a('v_mul_f32 v%d, s%d, v%d' % (K + 8, sR, K + 8))
        for r in range(8):
            a('v_subrev_f32 v%d, s%d, v%d' % (K + r, sCEN + r, K + 8))
        for r in range(8):
            a('v_mul_f32 v%d, v%d, v%d' % (K + r, K + r, K + r))
        for r in range(8):
            a('v_exp_f32 v%d, -v%d' % (K + r, K + r))
        for r in range(4):
            a('v_cvt_pk_f16_f32 v%d, v%d, v%d' % (RO + 4 * q + r, K + 2 * r, K + 2 * r + 1))

    NP_ = P['npipe']

    def guarded(r, body):
        n = lab[0]
        lab[0] += 1
        nds, nvm = a.nds, a.nvm
        for k in range(NP_, NSL):
            a('s_cmp_le_u32 s%d, %d' % (sEW + r, 64 * k))
            a('s_cbranch_scc1 Lg%d' % n)
            body(NSL * r + k)
        a('Lg%d:' % n)
        a('s_nop 3')
        a.nds, a.nvm = nds, nvm

    def U(x):
        return NSL * (x // NP_) + x % NP_

    def Cx(x):
        C(U(x))

    def Dx(x):
        if x >= 4 * NP_:
            return
        if hk and x == NP_ * P['nrun'] - 3:
            mM['p'] = done_load()
        if hk and x == NP_ * P['nrun']:
            stamp(14)
            done_wait(mM['p'])
            stamp(15)
        Dd(U(x))

    def loadstep(x):
        def first():
            if (x + 1) % NP_:
                Cx(x + 1)

        def second():
            Dx(x)
            if (x + 1) % NP_ == 0 and x < 4 * NP_:
                r = x // NP_

                def body(u):
                    C(u)
                    Dd(u)
                guarded(r, body)
                for k in range(NP_, NSL):
                    mV[NSL * r + k] = a.mark()
                if r < 3:
                    Cx(x + 1)
        return first, second

    def Hx(x):
        H(U(x))
        if (x + 1) % NP_ == 0:
            H2()
            guarded(x // NP_, lambda u: (H(u), H2()))

    Mrd(0)
    Mrd(2)
    a('s_mov_b32 s%d, 0' % sRB)
    lag = P['dv']
    C(0)
    for i in range(NP_ + lag):
        f1, f2 = loadstep(i)
        f1()
        f2()
        if hk and P['lt0'] <= i < P['lt0'] + len(late):
            mS = late[i - P['lt0']]()
        if i >= lag:
            Hx(i - lag)
    if hk and late:
        a.wait_vm(mS)
        hk.arrive2(0, VT, hk.arrive1(0, VT))
    a('s_waitcnt lgkmcnt(0)')
    a('s_barrier')
    keyscan(0)
    lead0 = P['lead0']
    for i in range(NP_ + lag, NP_ + lead0):
        f1, f2 = loadstep(i)
        f1()
        f2()
    a('s_waitcnt lgkmcnt(0)')
    a('s_barrier')
    nxt = NP_ + max(lag, lead0)
    for r in range(4):
        stamp(2 + r)
        u0 = NSL * r
        hq = list(range(NP_ * (r + 1), NP_ * (r + 2))) if r < 3 else []
        if r:
            a('s_lshr_b32 s%d, s%d, 10' % (sRE, sPc + r))
            for g in range(3):
                mk = rb_reads()
                if hq:
                    Hx(hq.pop(0))
                rb_moves(mk)
            readback(str(r))
        while r and len(hq) > NP_ - HP:
            Hx(hq.pop(0))
        for k in range(NA - 1):
            A(u0 + k)
        if r == P['fr']:
            stamp(11)
        if r:
            a('s_barrier')
        if r == P['fr']:
            stamp(12)
        pend = None
        for i in range(NP_):
            f1, f2 = loadstep(nxt)
            f1()
            if i + NA - 1 < NP_:
                A(u0 + i + NA - 1)
            B(u0 + i)
            assert nxt < NP_ * (r + 2) or nxt - NP_ * (r + 2) <= i
            f2()
            nxt += 1
            if nxt < NP_ * (r + 1) + LEAD + i + 1:
                f1, f2 = loadstep(nxt)
                f1()
                f2()
                nxt += 1
            nh = 2 if (len(hq) > max(1, NP_ - HP - i) and U(hq[1]) in mV and hq[1] + 4 <= nxt) else 1
            for _ in range(nh):
                if hq:
                    Hx(hq.pop(0))
                    if not hq:
                        pend = (i + P['bhd'], a.mark())
                        if r == 2:
                            mD = dist_loads()
            if pend and pend[0] == i:
                a.wait_ds(pend[1])
                if r == P['fr']:
                    stamp(13)
                a('s_barrier')
                keyscan(r + 1)
                if r == P['fr']:
                    stamp(14)
            for j in range(4):
                if P['wpos'][j] == 'abcdefghijklmnopqrstuvwxyzABCDEFGH'[(r - 2) * NP_ + i] and r >= 2:
                    warm(j)
            for j in range(2):
                if P['ppos'][j] == 'abcdefghijklmnopqrstuvwxyzABCDEFGH'[(r - 2) * NP_ + i] and r >= 2:
                    l2pf(j)
            if r == 3 and i == 6:
                if not P['imgl']:
                    img_load(0, 5, AG, RA)
                a.wait_vm(mD)
            if r == 3 and 7 <= i < 7 + NQ - 1:
                rbf_batch(i - 7)

        def body(u):
            A(u)
            B(u)
        guarded(r, body)
        if r == 3:
            a('s_cmp_lg_u32 s%d, 0' % sW)
            a('s_cbranch_scc1 Lk2_r6')
            rbf_batch(NQ - 1)
            a('Lk2_r6:')
        a('s_waitcnt lgkmcnt(0)')
        if r == P['fr']:
            stamp(15)
        a('s_barrier')
    stamp(6)
    a('s_add_u32 s%d, s%d, 1023' % (sRE, sPc + 4))
    a('s_lshr_b32 s%d, s%d, 10' % (sRE, sRE))
    if P['fpipe']:
        RT2 = 164
        a('s_cmp_gt_u32 s%d, 41' % sRB)
        a('s_cbranch_scc1 Lk2_f0')
        m0 = rb_reads(RT)
        m1 = rb_reads(RT2, 4)
        rb_moves(m0, RT)
        m0 = rb_reads(RT, 4)
        rb_moves(m1, RT2)
        rb_moves(m0, RT)
        a('Lk2_f0:')
    readback('L')
    a('s_max_u32 s%d, s%d, 1' % (sRB, sRB))
    a('s_sub_u32 s%d, s%d, 1' % (sRB, sRB))
    a('s_mul_i32 s%d, s%d, 3' % (sEND, sRB))
    a('s_lshl_b32 s%d, s%d, 10' % (sT, sRB))
    a('s_sub_u32 s%d, s%d, s%d' % (sT, sPc + 4, sT))
    a('v_lshrrev_b32 v%d, 3, v%d' % (TM, RBA))
    a('v_add_u32 v%d, 64, v%d' % (TM + 1, TM))
    a('v_cmp_gt_u32 %s, s%d, v%d' % (sr(sLM, 2), sT, TM))
    a('v_cmp_gt_u32 %s, s%d, v%d' % (sr(sLM + 2, 2), sT, TM + 1))
    a('s_set_gpr_idx_on s%d, gpr_idx(SRC1,DST)' % sEND)
    a('s_andn2_b64 exec, -1, %s' % sr(sLM + 2, 2))
    a('v_mov_b32 v%d, 0' % (S0 + 1))
    a('v_and_b32 v%d, 0xffff, v%d' % (S0 + 2, S0 + 2))
    a('s_andn2_b64 exec, -1, %s' % sr(sLM, 2))
    a('v_mov_b32 v%d, 0' % S0)
    a('v_mov_b32 v%d, 0' % (S0 + 2))
    a('s_mov_b64 exec, -1')
    a('s_set_gpr_idx_off')
    a('s_mov_b32 s%d, 0' % sIX)
    if P['lf']:
        a('s_mov_b32 s%d, 0' % sI1)
        a('s_mov_b32 s%d, s%d' % (sLB, sRB))
        a('s_bitcmp1_b32 s2, %d' % P['lfb'])
        if P['lfm'] == 0:
            a('s_cselect_b32 s%d, %d, 0' % (sOF, P['lf']))
            a('s_mov_b32 s75, %d' % P['lf'])
        else:
            a('s_cselect_b32 s75, %d, 0' % P['lf'])
            a('s_mov_b32 s%d, 0' % sOF)
        next_block()
    a('Lk2_init:')
    a('s_barrier')
    for i in range(4):
        a('v_mov_b32 v%d, 0' % (ZR + i))
    a('v_lshlrev_b32 v%d, 4, v0' % A4)
    a('v_add_u32 v%d, %d, v%d' % (A4B, HI0, A4))
    a('v_add_u32 v%d, %d, v%d' % (CV, RBF0, A4))
    for q in range(NQ - 1):
        a('ds_write_b128 v%d, %s offset:%d' % (CV, vr(RO + 4 * q, 4), 8192 * q))
    a('s_mov_b64 exec, %s' % sr(sV6, 2))
    a('ds_write_b128 v%d, %s offset:%d' % (CV, vr(RO + 4 * NQ - 4, 4), 8192 * (NQ - 1)))
    a('s_mov_b64 exec, -1')
    a('s_cmp_lg_u32 s%d, 0' % sMODE)
    a('s_cbranch_scc1 Lk2_ng')
    if P['imgl']:
        img_load(0, 5, AG, TM)
    decode_rel(0, 0)
    gathers(0)
    decode_rel(1, 0)
    gathers(1)
    a('Lk2_ng:')
    if P['ztid']:
        a('s_lshl_b32 m0, s%d, 8' % sW)
        a('s_nop 0')
        for o in list(range(0, RBF0 - 2048, 2048)) + [RBF0 - 2048]:
            a('ds_write_addtid_b32 v%d offset:%d' % (ZR, o))
    for o in (list(range(0, RBF0 - 8192, 8192)) + [RBF0 - 8192]) * (not P['ztid']):
        a('ds_write_b128 v%d, %s offset:%d' % (A4, vr(ZR, 4), o))
    for o in list(range(0, 4 * PL - 8192, 8192)) + [4 * PL - 8192]:
        a('ds_write_b128 v%d, %s offset:%d' % (A4B, vr(ZR, 4), o))
    a('v_mov_b32 v%d, 0' % STK)
    a('v_mov_b32 v%d, 0' % RTN[0])
    a('v_mov_b32 v%d, 0' % RTN[1])
    a('v_mov_b32 v%d, 0x1000000' % CK)
    a('v_and_b32 v255, 0x1df, v0')
    a('v_lshl_add_u32 v255, v255, 5, v%d' % (IA + 1))
    a('s_waitcnt lgkmcnt(0)')
    a('s_barrier')
    stamp(7, True)
    a('s_cmp_lg_u32 s%d, 0' % sMODE)
    a('s_cbranch_scc1 Lk2_all')
    a('ds_read_b128 %s, v%d offset:%d' % (vr(RBF, 4), A16[0], RBF0))
    a('s_waitcnt lgkmcnt(0)')
    MQ, AU, AR, OA = 4, 60, 68, 255
    WW, RBB, CNN = (132, 96), (140, 104), (144, 108)
    R16, T1, T2, T3, T4 = 92, 112, 113, 114, 115
    MF, AI, KB = 116, 72, 80
    sTRG = 89

    def epi_loads():
        img_load(5, 3, AU, 2)
        for q in range(NQ):
            a('s_mov_b32 s%d, %d' % (sT, q * 16384))
            a('buffer_load_dwordx4 %s, v%d, %s, s%d offen' % (vr(MQ + 8 * q, 4), OA, sr(S_MO, 4), sT))
            a('buffer_load_dwordx4 %s, v%d, %s, s%d offen offset:1024' % (vr(MQ + 8 * q + 4, 4), OA, sr(S_MO, 4), sT))
        T1, T2, T3, T4 = 2, 3, 82, 83
        a('v_mov_b32 v%d, 0' % KB)
        a('v_mov_b32 v%d, 0x%x' % (KB + 1, (-0x10001) & 0xffffffff))
        a('v_bfe_u32 v%d, v0, 2, 1' % T1)
        a('v_bfe_u32 v%d, v0, 5, 1' % T2)
        a('v_and_b32 v%d, 1, v0' % T3)
        a('v_lshlrev_b32 v%d, 4, v%d' % (T3, T3))
        a('v_mov_b32 v%d, 0x3f80' % T4)
        a('v_lshlrev_b32 v%d, v%d, v%d' % (T3, T3, T4))
        a('v_bfe_u32 v%d, v0, 3, 2' % T4)
        a('v_xor_b32 v%d, v%d, v%d' % (T1, T1, T2))
        a('v_bfe_u32 v%d, v0, 1, 1' % T2)
        a('v_lshl_or_b32 v%d, v%d, 1, v%d' % (T4, T4, T2))
        a('v_lshl_or_b32 v%d, v%d, 3, v%d' % (T4, T1, T4))
        for i in range(8):
            a('v_mov_b32 v%d, 0' % (AI + i))
            a('v_cmpx_eq_u32 vcc, %d, v%d' % (i, T4))
            a('v_mov_b32 v%d, v%d' % (AI + i, T3))
            a('s_mov_b64 exec, -1')
        if P['epf']:
            G['code_prefetch'](a, 'e%d' % lab[0], 98, 2, 256, 'Lk2_epi', 'Lk2_e6')
            lab[0] += 1

    a('s_mul_i32 s%d, s%d, 49' % (sTRG, sBIN))
    a('s_lshr_b32 s%d, s%d, 8' % (sTRG, sTRG))
    a('s_add_u32 s%d, s%d, %d' % (sTRG, sTRG, P['trg']))
    a('s_and_b32 s%d, s%d, 15' % (sT, sBIN))
    a('s_add_u32 s%d, s%d, %d' % (sT, sT, 28 + P['lf']))
    a('s_cmp_lt_u32 s%d, %d' % (sTRG, 28 + P['lf']))
    a('s_cselect_b32 s%d, s%d, s%d' % (sTRG, sT, sTRG))
    a('s_mul_i32 s%d, s%d, 3' % (sTRG, sTRG))
    a('s_min_u32 s%d, s%d, s%d' % (sTRG, sTRG, sEND))
    if '1' in P['wpos']:
        a('s_mov_b32 s90, %d' % (3 * P['mw1']))
        a('s_mov_b32 s91, %d' % (P['wpos'].index('1') * 51200 * 128))
        a('v_mov_b32 v155, v%d' % WA)
    if P['mpf']:
        per = P['mpp']
        a('s_lshr_b32 s%d, s2, 3' % sT)
        a('s_and_b32 s90, s%d, %d' % (sT, per - 1))
        a('s_add_u32 s90, s90, 1')
        a('s_lshr_b32 s%d, s%d, %d' % (sT, sT, per.bit_length() - 1))
        a('s_mul_i32 s%d, s%d, %d' % (sT, sT, 128 * per * 128))
        a('s_add_u32 s91, s90, %d' % P['mpf'])
        a('s_lshl_b32 s91, s91, 19')
        a('s_add_u32 s91, s91, s%d' % sT)
        a('s_mul_i32 s90, s90, 3')
    if P['prio']:
        a('s_cmp_lt_u32 s%d, 4' % sW)
        a('s_cbranch_scc1 Lk2_np')
        a('s_setprio 1')
        a('Lk2_np:')
    a.raw('.p2align 6')
    a('Lk2_loop:')
    a('s_cmp_eq_u32 s%d, s%d' % (sIX, sTRG))
    a('s_cbranch_scc1 Lk2_el')
    a('Lk2_lc:')
    if P['lf']:
        next_block()
    if P['mpf']:
        a('s_cmp_eq_u32 s%d, s90' % sIX)
        a('s_cbranch_scc1 Lk2_pl')
        a('Lk2_pc:')
    if '1' in P['wpos']:
        a('s_cmp_eq_u32 s%d, s90' % sIX)
        a('s_cbranch_scc1 Lk2_wl')
        a('Lk2_wc:')
    step(0)
    if P['stag'] == 2:
        halfbar(0)
    step(1)
    if P['stag']:
        halfbar(0)
    elif P['mbar'] == 1:
        a('s_barrier')
    elif P['mbar']:
        a('s_and_b32 s%d, s%d, %d' % (sT, sIX, P['mbar'] - 1))
        a('s_cbranch_scc1 Lk2_nb')
        a('s_barrier')
        a('Lk2_nb:')
    a('s_add_u32 s%d, s%d, 3' % (sIX, sIX))
    a('s_cmp_le_u32 s%d, s%d' % (sIX, sEND))
    a('s_cbranch_scc1 Lk2_loop')
    stamp(8, True)
    a('s_mov_b32 s%d, 0' % sPASS)
    for i in range(NQ):
        a('s_mov_b64 %s, 0' % sr(sFL + 2 * i, 2))
        a('s_mov_b64 %s, 0' % sr(sSK + 2 * i, 2))
    a('Lk2_epi:')
    a('v_lshlrev_b32 v%d, 3, v0' % A4)
    a('v_lshlrev_b32 v%d, 2, v0' % AC)
    a('v_add_u32 v%d, %d, v%d' % (A4B, HI0, A4))
    a('v_lshlrev_b32 v%d, 4, v0' % R16)
    a('s_waitcnt vmcnt(4) lgkmcnt(0)')
    a('v_or3_b32 v%d, v%d, v%d, v%d' % (STK, STK, RTN[0], RTN[1]))
    a('s_barrier')
    mk = {}

    def e_read(q):
        W, RB, CN = WW[q & 1], RBB[q & 1], CNN[q & 1]
        if q == NQ - 1:
            for i in range(4):
                a('v_mov_b32 v%d, 0' % (RB + i))
            for i in range(8):
                a('v_mov_b32 v%d, 0' % (W + i))
            a('v_mov_b32 v%d, 0' % CN)
            a('s_mov_b64 exec, %s' % sr(sV6, 2))
        a('ds_read_b32 v%d, v%d offset:%d' % (CN, AC, CNT0 + 2048 * q))
        mk[q, -1] = a.mark()
        for j in range(4):
            b, o = plane(j)
            a('ds_read_b64 %s, v%d offset:%d' % (vr(W + 2 * j, 2), b, o + 4096 * q))
            mk[q, j] = a.mark()
        a('ds_read_b128 %s, v%d offset:%d' % (vr(RB, 4), R16, RBF0))
        mk[q, 8] = a.mark()
        if q == NQ - 1:
            a('s_mov_b64 exec, -1')
        else:
            a('v_add_u32 v%d, 8192, v%d' % (R16, R16))

    def e_decode(q, mf=()):
        mf = list(mf)
        if mf:
            a(mf.pop(0))
        W, CN = WW[q & 1], CNN[q & 1]
        a.wait_ds(mk[q, -1 if q == 0 else 8])
        a('v_lshrrev_b32 v%d, 24, v%d' % (CN + 1, CN))
        a('v_and_b32 v%d, 0xffffff, v%d' % (CN, CN))
        a('v_sub_u32 v%d, 0x20001, v%d' % (T1, CN + 1))
        a('v_mad_u64_u32 %s, vcc, v%d, s%d, %s' % (vr(CN + 2, 2), T1, sM1, vr(KB, 2)))
        a('v_cmp_lt_u32 vcc, 127, v%d' % (CN + 1))
        a('v_mul_u32_u24 v%d, %d, v%d' % (CN + 1, P['theta'], CN + 1))
        a('s_or_b64 %s, %s, vcc' % (sr(sFL + 2 * q, 2), sr(sFL + 2 * q, 2)))
        a('v_cmp_lt_u32 vcc, 0x7ffe, v%d' % CN)
        a('v_add_u32 v%d, v%d, v%d' % (CN + 3, CN + 3, CN + 2))
        a('s_or_b64 %s, %s, vcc' % (sr(sFL + 2 * q, 2), sr(sFL + 2 * q, 2)))
        a('v_cmp_lt_u32 vcc, v%d, v%d' % (CN, CN + 1))
        a('s_or_b64 %s, %s, vcc' % (sr(sFL + 2 * q, 2), sr(sFL + 2 * q, 2)))
        for j in range(4):
            if mf:
                a(mf.pop(0))
            a('s_andn2_b64 exec, -1, %s' % sr(sSK + 2 * q, 2))
            if q == 0:
                a.wait_ds(mk[q, j])
            a('v_lshl_add_u64 %s, %s, 0, %s' % (vr(W + 2 * j, 2), vr(W + 2 * j, 2), vr(CN + 2, 2)))
            for e in range(2):
                a('v_xor_b32 v%d, s%d, v%d' % (W + 2 * j + e, sM1, W + 2 * j + e))
            for e in range(2):
                w = W + 2 * j + e
                a('v_cvt_f32_i32_sdwa v%d, sext(v%d) dst_sel:DWORD dst_unused:UNUSED_PAD src0_sel:WORD_1' % (CN + e, w))
                a('v_cvt_f32_i32_sdwa v%d, sext(v%d) dst_sel:DWORD dst_unused:UNUSED_PAD src0_sel:WORD_0' % (w, w))
            for e in range(2):
                a('v_cvt_pk_bf16_f32 v%d, v%d, v%d' % (W + 2 * j + e, W + 2 * j + e, CN + e))
            a('s_mov_b64 exec, -1')
        if q == 0:
            a.wait_ds(mk[q, 8])

    def e_mfma(q):
        W, RB = WW[q & 1], RBB[q & 1]
        r = []
        r.append('v_mfma_f32_32x32x16_bf16 %s, %s, %s, 0' % (vr(MF, 16), vr(AI, 4), vr(MQ + 8 * q, 4)))
        r.append('v_mfma_f32_32x32x16_bf16 %s, %s, %s, %s' % (vr(MF, 16), vr(AI + 4, 4), vr(MQ + 8 * q + 4, 4), vr(MF, 16)))
        r.append('v_mfma_f32_32x32x16_f16 %s, %s, %s, 0' % (vr(GATE, 16), vr(AR, 4), vr(RB, 4)))
        r.append('v_mfma_f32_32x32x16_bf16 %s, %s, %s, 0' % (vr(MD, 16), vr(AU, 4), vr(W, 4)))
        r.append('v_mfma_f32_32x32x16_bf16 %s, %s, %s, %s' % (vr(MD, 16), vr(AU + 4, 4), vr(W + 4, 4), vr(MD, 16)))
        return r

    def e_out(q):
        a('s_mov_b32 s%d, %d' % (sT, q * 16384))
        for j in range(8):
            m = MQ + 8 * q + j
            ta, tb = MF + 2 * j, MF + 2 * j + 1
            a('v_fmac_f32 v%d, v%d, v%d' % (ta, MD + 2 * j, GATE + 2 * j))
            a('v_fmac_f32 v%d, v%d, v%d' % (tb, MD + 2 * j + 1, GATE + 2 * j + 1))
            a('v_cvt_pk_bf16_f32 v%d, v%d, v%d' % (m, ta, tb))
            if j == 3:
                a('buffer_store_dwordx4 %s, v%d, %s, s%d offen %s' % (vr(MQ + 8 * q, 4), OA, sr(S_OUT, 4), sT, P['stout']))
        a('buffer_store_dwordx4 %s, v%d, %s, s%d offen offset:1024 %s' % (vr(MQ + 8 * q + 4, 4), OA, sr(S_OUT, 4), sT, P['stout']))

    e_read(0)
    e_read(1)
    e_decode(0)
    for q in range(NQ - 1):
        if q + 1 < NQ - 1:
            e_decode(q + 1, e_mfma(q))
        else:
            for t in e_mfma(q):
                a(t)
        if q + 2 < NQ:
            e_read(q + 2)
        e_out(q)
    a('s_cmp_lg_u32 s%d, 0' % sW)
    a('s_cbranch_scc1 Lk2_e6')
    e_decode(NQ - 1)
    for t in e_mfma(NQ - 1):
        a(t)
    e_out(NQ - 1)
    a('Lk2_e6:')
    stamp(9, True)
    if P['stamp']:
        a('s_waitcnt vmcnt(0)')
        stamp(10, True)
    if P['abl']:
        a('s_branch Lk2_end')
    a('s_cmp_lg_u32 s%d, 0' % sPASS)
    a('s_cbranch_scc1 Lk2_end')
    a('s_or_b64 %s, %s, %s' % (sr(sMK, 2), sr(sFL, 2), sr(sFL + 2, 2)))
    for q in range(2, NQ):
        a('s_or_b64 %s, %s, %s' % (sr(sMK, 2), sr(sMK, 2), sr(sFL + 2 * q, 2)))
    a('s_cselect_b32 s%d, 1, %d' % (sT, P['force_slow'] & 3))
    a('v_cmp_gt_i32 vcc, 0, v%d' % STK)
    a('s_cmp_lg_u64 vcc, 0')
    a('s_cselect_b32 s%d, 3, s%d' % (sT, sT))
    a('v_mov_b32 v2, s%d' % sT)
    a('s_lshl_b32 s%d, s%d, 2' % (sT, sW))
    a('s_add_u32 s%d, s%d, %d' % (sT, sT, SCR))
    a('v_mov_b32 v3, s%d' % sT)
    a('ds_write_b32 v3, v2')
    a('v_and_b32 v2, 7, v0')
    a('v_lshlrev_b32 v2, 2, v2')
    a('v_add_u32 v2, %d, v2' % SCR)
    a('s_waitcnt lgkmcnt(0)')
    a('s_barrier')
    a('ds_read_b32 v3, v2')
    a('s_waitcnt lgkmcnt(0)')
    a('v_cmp_ne_u32 vcc, 0, v3')
    a('s_cmp_eq_u64 vcc, 0')
    a('s_cbranch_scc1 Lk2_end')
    a('v_cmp_lt_u32 vcc, 1, v3')
    a('s_cmp_lg_u64 vcc, 0')
    a('Lk2_all:')
    for q in range(NQ):
        a('s_cselect_b64 %s, -1, %s' % (sr(sSK + 2 * q, 2), sr(sFL + 2 * q, 2)))
    a('s_and_b64 %s, %s, %s' % (sr(sSK + 2 * NQ - 2, 2), sr(sSK + 2 * NQ - 2, 2), sr(sV6, 2)))
    a('s_waitcnt vmcnt(0)')
    VD, VE, REC, ADDR, F12 = 4, 8, 12, 16, 17
    desc_load(VD, 18)
    a('v_lshlrev_b32 v%d, 3, v0' % A4)
    a('v_lshlrev_b32 v%d, 2, v0' % AC)
    a('v_add_u32 v%d, %d, v%d' % (A4B, HI0, A4))
    a('v_mov_b32 v2, 0')
    a('v_mov_b32 v3, 0')
    a('v_mov_b32 v19, -1')
    for q in range(NQ):
        a('s_mov_b64 exec, %s' % sr(sSK + 2 * q, 2))
        a('ds_write_b32 v%d, v19 offset:%d' % (AC, CNT0 + 2048 * q))
        for j in range(4):
            b, o = plane(j)
            a('ds_write_b64 v%d, v[2:3] offset:%d' % (b, o + 4096 * q))
        a('s_mov_b64 exec, -1')
        a('s_waitcnt lgkmcnt(0)')
    a('s_barrier')
    a('s_movk_i32 s%d, %d' % (sT, REC0 // 12))
    a('v_mov_b32 v%d, %d' % (F12, TSP))
    a('v_mad_u32_u24 v%d, v0, v%d, s%d' % (F12, F12, sT))
    a('s_waitcnt vmcnt(0)')
    for k in range(4):
        a('v_and_b32 v%d, 0x7fffffff, v%d' % (VD + k, VD + k))
        a('v_add_u32 v%d, 0x10000, v%d' % (VE + k, VD + k))
        a('v_and_b32 v%d, 0xffff, v%d' % (VD + k, VD + k))
        a('v_lshrrev_b32 v%d, 17, v%d' % (VE + k, VE + k))
    scan4(VE)
    for k in range(4):
        if k:
            a('v_add_u32 v%d, s%d, v%d' % (VE + k, sNT, VE + k))
        a('v_add_u32 v%d, v%d, v%d' % (VD + k, VD + k, F12))
        a('v_readlane_b32 s%d, v%d, 63' % (sNT, VE + k))
        a('v_sub_u32 v%d, v%d, v%d' % (VD + k, VD + k, VE + k))
        a('v_mul_lo_u32 v%d, v%d, 12' % (VD + k, VD + k))
    a('v_mul_u32_u24 v%d, 12, v%d' % (F12, LANE))
    a('s_mov_b32 s%d, 0' % sF)
    a('s_mov_b32 s%d, 0' % sE)
    a('s_mov_b32 s%d, 0' % sDL)
    a('s_movk_i32 s%d, -64' % sI)
    a('Lk2_sl:')
    a('s_cmp_ge_u32 s%d, s%d' % (sF, sNT))
    a('s_cbranch_scc1 Lk2_sd')
    a('v_add_u32 v%d, s%d, v%d' % (ADDR, sDL, F12))
    a('s_sub_u32 s%d, s%d, s%d' % (sP, sE, sF))
    a('s_cmp_ge_u32 s%d, 64' % sP)
    a('s_cbranch_scc1 Lfd')
    a('Lfl:')
    a('v_readlane_b32 s%d, v%d, s%d' % (sDL, VD, sI))
    a('v_readlane_b32 s%d, v%d, s%d' % (sE, VE, sI))
    a('s_add_u32 s%d, s%d, 1' % (sI, sI))
    a('s_cbranch_scc0 Lfc')
    a('s_mov_b64 exec, -1')
    for k in range(3):
        a('v_mov_b32 v%d, v%d' % (VE + k, VE + k + 1))
        a('v_mov_b32 v%d, v%d' % (VD + k, VD + k + 1))
    a('v_mov_b32 v%d, -1' % (VE + 3))
    a('v_bfrev_b32 v%d, 1' % (VD + 3))
    a('s_movk_i32 s%d, -64' % sI)
    a('Lfc:')
    a('s_lshl_b64 exec, -1, s%d' % sP)
    a('v_add_u32 v%d, s%d, v%d' % (ADDR, sDL, F12))
    a('s_sub_u32 s%d, s%d, s%d' % (sP, sE, sF))
    a('s_cmp_lt_u32 s%d, 64' % sP)
    a('s_cbranch_scc1 Lfl')
    a('s_mov_b64 exec, -1')
    a('Lfd:')
    a('s_add_u32 s%d, s%d, 64' % (sF, sF))
    a('v_add_u32 v%d, 768, v%d' % (F12, F12))
    a('buffer_load_dwordx3 %s, v%d, %s, 0 offen %s' % (vr(REC, 3), ADDR, sr(S_WS, 4), HO))
    a('s_mov_b32 s%d, 0' % sSUB)
    a('s_waitcnt vmcnt(0)')
    a('Lk2_s2:')
    a('v_cmp_gt_i32 %s, 0, v%d' % (sr(sMK, 2), REC + 1))
    a('v_ashrrev_i32 v%d, 31, v%d' % (TM, REC + 1))
    a('v_and_b32 v%d, v%d, v%d' % (REC, REC, TM))
    a('v_and_b32 v%d, s%d, v%d' % (IA, sIDM, REC))
    a('v_and_b32 v%d, s%d, v%d' % (IB, sIDM, REC))
    a('v_lshrrev_b32 v%d, 16, v%d' % (A16[0], REC))
    a('v_and_b32 v%d, s%d, v%d' % (A16[0], sA16, A16[0]))
    a('v_and_b32 v%d, s%d, v%d' % (ANG[0], sHI, REC + 1))
    a('v_permlane32_swap_b32 v%d, v%d' % (IA, IB))
    addrs(0)
    a('ds_read_b32 v%d, v%d offset:%d' % (CV, AC, CNT0))
    a('ds_read_b128 %s, v%d offset:%d' % (vr(RBF, 4), A16[0], RBF0))
    a('s_waitcnt lgkmcnt(0)')
    a('v_cmp_gt_i32 vcc, 0, v%d' % CV)
    a('s_and_b64 %s, %s, vcc' % (sr(sMK, 2), sr(sMK, 2)))
    a('s_cbranch_scc0 Lk2_s3')
    gathers(0)
    cosines(0)
    for l in range(3):
        sbf(l)
        gmf(l)
    a('s_waitcnt vmcnt(0)')
    mdown(0)
    for d in range(16):
        a('v_mul_f32 v%d, 0x47800000, v%d' % (GATE + d, GATE + d))
        a('v_mul_f32 v%d, v%d, v%d' % (MD + d, MD + d, GATE + d))
    a('s_mov_b64 exec, %s' % sr(sMK, 2))
    for j in range(8):
        a('v_cvt_pk_bf16_f32 v%d, v%d, v%d' % (MD + 2 * j, MD + 2 * j, MD + 2 * j + 1))
        b, o = plane(j >> 1)
        a('ds_pk_add_bf16 v%d, v%d offset:%d' % (b, MD + 2 * j, o + 4 * (j & 1)))
    a('s_mov_b64 exec, -1')
    a('Lk2_s3:')
    a('v_mov_b32 v%d, v%d' % (REC, REC + 2))
    a('v_lshlrev_b32 v%d, 16, v%d' % (REC + 1, REC + 1))
    a('s_xor_b32 s%d, s%d, 1' % (sSUB, sSUB))
    a('s_cbranch_scc1 Lk2_s2')
    a('s_branch Lk2_sl')
    a.fence()
    a('Lk2_sd:')
    a('s_mov_b32 s%d, 1' % sPASS)
    epi_loads()
    a('s_waitcnt vmcnt(0)')
    a('s_branch Lk2_epi')
    a.fence()
    a('Lk2_fb:')
    a('s_mov_b32 s%d, 1' % sMODE)
    if hk:
        if late:
            for f in late:
                f()
            a('s_waitcnt vmcnt(0)')
            hk.arrive2(0, VT, hk.arrive1(0, VT))
        done_wait(done_load())
    dist_loads()
    img_load(0, 5, AG, RA)
    a('s_waitcnt vmcnt(0)')
    for q in range(NQ):
        rbf_batch(q)
    a('s_branch Lk2_init')
    a.fence()
    if '1' in P['wpos']:
        a('Lk2_wl:')
        a('buffer_load_dword v2, v155, %s, s91 offen' % sr(S_MR, 4))
        a('s_add_u32 s90, s90, %d' % (3 * P['mw2']))
        a('s_add_u32 s91, s91, %d' % (51200 * 128))
        a('s_cmp_ge_u32 s91, %d' % (4 * 51200 * 128))
        a('s_cselect_b32 s90, -1, s90')
        a('s_branch Lk2_wc')
        a.fence()
    if P['mpf']:
        a('Lk2_pl:')
        per = P['mpp']
        if per == 2:
            a('v_and_b32 v3, 31, v0')
            a('v_lshl_add_u32 v3, s%d, 5, v3' % sW)
            a('v_lshlrev_b32 v3, 7, v3')
        else:
            a('v_lshlrev_b32 v3, 7, v0')
        if per == 8:
            a('s_add_u32 s%d, s91, 65536' % sT)
            a('buffer_load_dword v%d, v3, %s, s%d offen' % (72, sr(S_MR, 4), sT))
        a('buffer_load_dword v3, v3, %s, s91 offen' % sr(S_MR, 4))
        a('s_add_u32 s90, s90, %d' % (3 * per))
        a('s_add_u32 s91, s91, %d' % (per << 19))
        a('s_branch Lk2_pc')
        a.fence()
    a('Lk2_el:')
    epi_loads()
    a('s_branch Lk2_lc')
    a.fence()
    a('Lk2_end:')
    a('s_endpgm')
    a.fence()
    return LDS
```

```python
class Hooks:
    pass


def prod(a, P, G):
    vr, sr, srd, scan64 = G['vr'], G['sr'], G['srd'], G['scan64']
    E, BINE, TS, REC0, DESC0, FLG0 = G['E'], G['BINE'], G['TS'], G['REC0'], G['DESC0'], G['FLG0']
    fused = P['fuse']
    CNTB, SCR, CNTA = 0, 4096, 4224
    DATB, DATA = 4224, 8320
    ARR = DATB + TS
    S_IN, S_OUT, S_ANG, S_REC, S_DSC, S_T0, S_REC2, S_DBG = 24, 28, 32, 80, 64, 44, 76, 92
    sMB, sMC, sNEG, sHI, sW = 40, 41, 42, 43, 69
    sREM = 70
    sBASE, sPREP, sVB, sUM = 72, 73, 74, 75
    sT, sU = 90, 91
    LANE, O16, O8, SIX = 1, 2, 3, 12
    ONE, VZ, VARR, VSG = 92 + 140, 8, 9, 10
    TP = 4
    ANG, ANGR, TS_ = 14, 26, 28
    NANG = 6
    INB, OUTB, INR, OUTR, INA, OUTA = 36, 84, 132, 134, 136, 184
    IMGB = 12
    DSC = 248
    NR = 12
    ld, st = P['ld1'], 'sc1' if fused else P['st1']

    def stamp(i):
        G['stamp'](a, i, S_DBG, 96, 254)

    a('s_cmp_ge_u32 s2, 256')
    a('s_cbranch_scc1 %s' % ('Lk2_end' if fused else 'Lk1_end'))
    a('s_load_dwordx4 s[4:7], s[0:1], 8')
    a('s_load_dwordx2 s[8:9], s[0:1], 32')
    a('s_load_dwordx4 s[12:15], s[0:1], 96')
    a('s_load_dwordx2 s[10:11], s[0:1], 0')
    a('s_load_dwordx8 s[16:23], s[0:1], 56')
    if P['cpf'] & 1:
        G['code_prefetch'](a, 'a', 84, INR)
    a('v_lshlrev_b32 v%d, 4, v0' % O16)
    a('v_lshlrev_b32 v%d, 3, v0' % O8)
    a('v_mov_b32 v%d, 1' % ONE)
    a('v_mov_b32 v%d, 6' % SIX)
    a('v_lshrrev_b32 v4, 6, v0')
    a('v_readfirstlane_b32 s%d, v4' % sW)
    a('v_mov_b32 v4, 0')
    a('v_mov_b32 v5, 0')
    a('v_and_b32 v6, 8, v%d' % O8)
    a('v_add_u32 v6, %d, v6' % ARR)
    a('ds_write_b64 v%d, v[4:5] offset:%d' % (O8, CNTB))
    a('ds_write_b64 v%d, v[4:5] offset:%d' % (O8, CNTA))
    a('ds_write_b64 v6, v[4:5]')
    a('s_mov_b32 s%d, %d' % (sMB, -(-2**32 // BINE)))
    a('s_mov_b32 s%d, 21400' % sMC)
    a('s_mov_b32 s%d, %d' % (sNEG, -BINE))
    a('s_mov_b32 s%d, 0xffff0000' % sHI)
    a('s_mov_b32 s%d, 0x80008000' % sVB)
    a('s_mov_b32 s%d, 0xff000' % sUM)
    a('s_mul_i32 s%d, s2, 3125' % sT)
    a('s_add_u32 s%d, s%d, 3125' % (sU, sT))
    a('s_lshr_b32 s%d, s%d, 2' % (sT, sT))
    a('s_lshr_b32 s%d, s%d, 2' % (sU, sU))
    a('s_sub_u32 s3, s%d, s%d' % (sU, sT))
    a('s_lshl_b32 s%d, s%d, 7' % (sU, sT))
    a('s_lshl_b32 s%d, s%d, 8' % (sT, sT))
    a('s_sub_u32 s%d, s3, 768' % sBASE)
    a('s_lshl_b32 s%d, s%d, 5' % (sBASE, sBASE))
    a('v_cmp_gt_u32 %s, s%d, v0' % (sr(sREM, 2), sBASE))
    a('v_and_b32 v%d, 63, v0' % LANE)
    a('v_lshlrev_b32 v27, 4, v%d' % LANE)
    a('s_lshl_b32 s%d, s2, 4' % sPREP)
    a('s_or_b32 s%d, s%d, s%d' % (sPREP, sPREP, sW))
    a('s_waitcnt lgkmcnt(0)')
    srd(a, S_IN, 4, 0, 's%d' % sT)
    srd(a, S_OUT, 6, 0, 's%d' % sT)
    srd(a, S_ANG, 8, 0, 's%d' % sU)
    a('s_lshl_b32 s%d, s3, 8' % (S_IN + 2))
    a('s_lshl_b32 s%d, s3, 8' % (S_OUT + 2))
    a('s_lshl_b32 s%d, s3, 7' % (S_ANG + 2))
    G['stamp_init'](a, S_DBG, 14, 0, sW)
    stamp(0)
    a('s_cmp_lg_u32 s%d, 0' % sPREP)
    a('s_cbranch_scc1 Lk1_main')
    a.nocount = True
    srd(a, S_T0, 18, 768)
    srd(a, S_T0 + 4, 20, 512)
    srd(a, S_T0 + 8, 22, 512)
    srd(a, S_T0 + 12, 16, 256)
    srd(a, S_T0 + 16, 10, E * 32)
    for i in range(4):
        a('buffer_load_dwordx4 %s, v27, %s, 0 offen' % (vr(76 + 4 * i, 4), sr(S_T0 + 4 * i, 4)))
    a('v_mul_u32_u24 v4, 99984, v%d' % LANE)
    for i in range(4):
        a('s_mov_b32 s%d, %d' % (sT, i * 64 * 99984))
        a('buffer_load_dwordx4 %s, v4, %s, s%d offen' % (vr(92 + 4 * i, 4), sr(S_T0 + 16, 4), sT))
    a.nocount = False
    a('Lk1_main:')
    a('s_mul_i32 s%d, s2, %d' % (sU, 2 * TS))
    a('s_add_u32 s%d, s%d, %d' % (sU, sU, REC0))
    srd(a, S_REC, 14, 0, 's%d' % sU)
    a('s_add_u32 s%d, s%d, %d' % (sU, sU, TS))
    srd(a, S_REC2, 14, 0, 's%d' % sU)
    a('s_lshl_b32 s%d, s2, 13' % sU)
    a('s_add_u32 s%d, s%d, %d' % (sU, sU, DESC0))
    srd(a, S_DSC, 14, 8192, 's%d' % sU)

    marks = {}
    packed = [0]

    def regs(j):
        return ((INA, OUTA) if j < NR else (INB, OUTB)), 4 * (j % NR), ANG + 2 * (j % NANG)

    def loads(j):
        if j == 2 * NR:
            a('v_lshlrev_b32 v10, 2, v0')
            a('s_mov_b32 s%d, %d' % (sT, j * 8192))
            a('buffer_load_dwordx2 %s, v%d, %s, s%d offen %s' % (vr(OUTR, 2), O8, sr(S_OUT, 4), sT, ld))
            a('buffer_load_dwordx2 %s, v%d, %s, s%d offen %s' % (vr(INR, 2), O8, sr(S_IN, 4), sT, ld))
            a('s_mov_b32 s%d, %d' % (sT, j * 4096))
            a('buffer_load_dword v%d, v10, %s, s%d offen %s' % (ANGR, sr(S_ANG, 4), sT, ld))
        else:
            assert j - packed[0] < NANG
            (rin, rout), o, rang = regs(j)
            a('s_mov_b32 s%d, %d' % (sT, j * 8192))
            a('buffer_load_dwordx4 %s, v%d, %s, s%d offen %s' % (vr(rout + o, 4), O16, sr(S_OUT, 4), sT, ld))
            a('buffer_load_dwordx4 %s, v%d, %s, s%d offen %s' % (vr(rin + o, 4), O16, sr(S_IN, 4), sT, ld))
            a('s_mov_b32 s%d, %d' % (sT, j * 4096))
            a('buffer_load_dwordx2 %s, v%d, %s, s%d offen %s' % (vr(rang, 2), O8, sr(S_ANG, 4), sT, ld))
        marks[j] = a.mark()

    def pack2(items, rg, cnt):
        a('v_or_b32 v%d, s%d, v%d' % (rg, sVB, rg))
        for e, (ri, ro) in enumerate(items):
            a('v_or_b32 v%d, 3, v%d' % (TP + e, ro))
        for e, (ri, ro) in enumerate(items):
            a('v_mul_hi_u32_u24 v%d, s%d, v%d' % (TP + e, sMB, TP + e))
        for e, (ri, ro) in enumerate(items):
            a('v_and_b32 v%d, 3, v%d' % (TP + 2 + e, TP + e))
            a('v_mad_i32_i24 v%d, v%d, s%d, v%d' % (ro, TP + e, sNEG, ro))
        for e, (ri, ro) in enumerate(items):
            a('v_add_u32 v%d, v%d, v%d' % (ro, ro, TP + 2 + e))
            a('v_and_b32 v%d, s%d, v%d' % (TP + 2 + e, sUM, ri))
        for e, (ri, ro) in enumerate(items):
            a('v_mul_hi_u32_u24 v%d, s%d, v%d' % (TP + 2 + e, sMC, TP + 2 + e))
        for e, (ri, ro) in enumerate(items):
            a('v_lshl_add_u32 v%d, v%d, 2, v%d' % (TP + e, TP + e, TP + 2 + e))
            a('v_lshl_or_b32 v%d, v%d, 20, v%d' % (ri, ro, ri))
        for e, (ri, ro) in enumerate(items):
            a('v_lshlrev_b32 v%d, 2, v%d' % (TP + e, TP + e))
        for e, (ri, ro) in enumerate(items):
            a('ds_add_u32 v%d, v%d offset:%d' % (TP + e, ONE, cnt))
            if e:
                a('v_and_or_b32 v%d, v%d, s%d, v%d' % (ro, rg, sHI, TP + e))
            else:
                a('v_lshl_or_b32 v%d, v%d, 16, v%d' % (ro, rg, TP + e))

    def pack(j):
        a.wait_vm(marks[j])
        packed[0] = j + 1
        if j == 2 * NR:
            a('s_mov_b64 exec, %s' % sr(sREM, 2))
            pack2([(INR, OUTR), (INR + 1, OUTR + 1)], ANGR, CNTB)
            a('s_mov_b64 exec, -1')
            return
        (rin, rout), o, rang = regs(j)
        for h in range(2):
            pack2([(rin + o + 2 * h + e, rout + o + 2 * h + e) for e in range(2)], rang + h, CNTA if j < NR else CNTB)

    def scan(sub, cnt, data, srec, mid1=None, mid2=None):
        N, PA, EN, ST, X = 4, 28, 236, 240, 10
        AD = 244
        a('v_and_b32 v%d, 0xff0, v%d' % (AD, O16))
        a('s_waitcnt lgkmcnt(0)')
        a('s_barrier')
        a('ds_read_b128 %s, v%d offset:%d' % (vr(N, 4), AD, cnt))
        m = a.mark()
        if mid1:
            mid1()
        a('s_lshl_b32 s%d, s%d, 3' % (sT, sW))
        a('v_mov_b32 v8, s%d' % sT)
        a('v_and_b32 v9, 24, v%d' % O8)
        a.wait_ds(m)
        for k in range(4):
            a('v_add_u32 v%d, 1, v%d' % (PA + k, N + k))
        for k in range(4):
            a('v_lshrrev_b32 v%d, 1, v%d' % (PA + k, PA + k))
        for h in range(2):
            a('v_lshl_or_b32 v%d, v%d, 16, v%d' % (X + h, PA + 2 * h + 1, PA + 2 * h))
        for c, rm in (('row_shr:1', 15), ('row_shr:2', 15), ('row_shr:4', 15), ('row_shr:8', 15), ('row_bcast:15', 10), ('row_bcast:31', 12)):
            for h in range(2):
                a('v_add_u32_dpp v%d, v%d, v%d %s row_mask:0x%x bank_mask:0xf' % (X + h, X + h, X + h, c, rm))
        a('s_mov_b32 exec_lo, 0')
        a('s_mov_b32 exec_hi, 0x80000000')
        a('ds_write_b64 v8, %s offset:%d' % (vr(X, 2), SCR))
        a('s_mov_b64 exec, -1')
        a('s_waitcnt lgkmcnt(0)')
        a('s_barrier')
        a('ds_read_b64 v[32:33], v9 offset:%d' % SCR)
        m = a.mark()
        if mid2:
            mid2()
        a('s_and_b32 s%d, s%d, 3' % (sU, sW))
        a.wait_ds(m)
        a('v_mov_b32 v8, v32')
        a('v_mov_b32 v9, v33')
        for c in ('row_shr:1', 'row_shr:2'):
            for h in range(2):
                a('v_add_u32_dpp v%d, v%d, v%d %s row_mask:0xf bank_mask:0xf' % (32 + h, 32 + h, 32 + h, c))
        a('v_sub_u32 v8, v32, v8')
        a('v_sub_u32 v9, v33, v9')
        a('v_readlane_b32 s16, v32, 3')
        a('v_readlane_b32 s17, v33, 3')
        a('v_readlane_b32 s18, v8, s%d' % sU)
        a('v_readlane_b32 s19, v9, s%d' % sU)
        a('s_lshl_b32 s84, s16, 16')
        a('s_add_u32 s18, s18, s84')
        a('s_add_u32 s84, s84, s16')
        a('s_lshr_b32 s84, s84, 16')
        a('s_mul_i32 s85, s84, 0x10001')
        a('s_lshl_b32 s86, s17, 16')
        a('s_add_u32 s85, s85, s86')
        a('s_add_u32 s19, s19, s85')
        a('s_add_u32 s85, s85, s17')
        a('s_lshr_b32 s85, s85, 16')
        a('s_mul_i32 s%d, s85, 12' % (srec + 2))
        a('s_cmp_lt_u32 s%d, 4' % sW)
        a('s_cselect_b64 s[84:85], -1, 0')
        a('s_movk_i32 s%d, %d' % (sT, data))
        for h in range(2):
            a('v_add_u32 v%d, s%d, v%d' % (X + h, 18 + h, X + h))
        for h in range(2):
            a('v_and_b32 v%d, 0xffff, v%d' % (EN + 2 * h, X + h))
            a('v_lshrrev_b32 v%d, 16, v%d' % (EN + 2 * h + 1, X + h))
        for k in range(4):
            a('v_sub_u32 v%d, v%d, v%d' % (ST + k, EN + k, PA + k))
            a('v_lshl_or_b32 v%d, v%d, 16, v%d' % (PA + k, N + k, EN + k))
            a('v_mad_u32_u24 v%d, v%d, 12, s%d' % (ST + k, ST + k, sT))
        a('s_mov_b64 exec, s[84:85]')
        a('ds_write_b128 v%d, %s offset:%d' % (AD, vr(ST, 4), cnt))
        if fused:
            if sub:
                a('s_andn2_b64 exec, -1, s[84:85]')
            for k in range(4):
                a('v_or_b32 v%d, 0x80000000, v%d' % (DSC + k, PA + k))
        else:
            a('s_movk_i32 s%d, %d' % (sT, sub * 4096))
            a('buffer_store_dwordx4 %s, v%d, %s, s%d offen %s' % (vr(PA, 4), AD, sr(S_DSC, 4), sT, st))
        md = a.mark()
        a('s_mov_b64 exec, -1')
        a('s_andn2_b64 exec, -1, s[84:85]')
        for k in range(2):
            a('v_mov_b32 v%d, v%d' % (N + k, N + 2 + k))
            a('v_mov_b32 v%d, v%d' % (EN + k, EN + 2 + k))
        a('s_mov_b64 exec, -1')
        a('s_and_b32 s%d, s2, 7' % sT)
        a('s_lshl1_add_u32 s%d, s%d, %d' % (sT, sT, 3136 + sub))
        a('s_and_b32 s%d, s%d, 4' % (sU, sW))
        a('s_lshl3_add_u32 s%d, s%d, s%d' % (sT, sU, sT))
        a('s_lshl_b32 s%d, s%d, 8' % (sT, sT))
        a('v_mov_b32 v8, 0')
        a('v_mov_b32 v9, s%d' % sT)
        a('v_add_u32 v10, 4096, v9')
        for k in range(2):
            a('v_mul_u32_u24 v%d, 12, v%d' % (EN + k, EN + k))
            a('v_and_b32 v%d, 1, v%d' % (N + k, N + k))
            a('v_cmpx_eq_u32 vcc, 1, v%d' % (N + k))
            a('ds_write_b16 v%d, v8 offset:%d' % (EN + k, data - 8))
            a('ds_write_b32 v%d, v%d offset:%d' % (EN + k, 9 + k, data - 4))
            a('s_mov_b64 exec, -1')
        a('s_waitcnt lgkmcnt(0)')
        a('s_barrier')
        return md

    def rtn(t, ro, cnt):
        a('v_and_b32 v%d, 0xffff, v%d' % (t, ro))
        a('ds_add_rtn_u32 v%d, v%d, v%d offset:%d' % (t, t, SIX, cnt))

    def put(t, ri, ro, e):
        u = 8 + (e & 1)
        a('v_and_b32 v%d, 2, v%d' % (u, t))
        a('v_add_u32 v%d, v%d, v%d' % (t, t, u))
        a('v_mad_i32_i24 v%d, v%d, -5, v%d' % (u, u, t))
        a('ds_write_b32 v%d, v%d' % (t, ri))
        a('ds_write_b16_d16_hi v%d, v%d offset:6' % (u, ro))

    def scatter(rin, rout, cnt, rem, between):
        Gs = 4
        ng = 4 * NR // Gs
        mk = {}
        if rem:
            a('s_mov_b64 exec, %s' % sr(sREM, 2))
            rtn(10, OUTR, cnt)
            rtn(11, OUTR + 1, cnt)
            a('s_mov_b64 exec, -1')
        for e in range(Gs):
            rtn(TS_ + e, rout + e, cnt)
        mk[0] = a.mark()
        for g in range(ng):
            cur, nxt = TS_ + (g & 1) * Gs, TS_ + ((g + 1) & 1) * Gs
            if g + 1 < ng:
                for e in range(Gs):
                    rtn(nxt + e, rout + (g + 1) * Gs + e, cnt)
                mk[g + 1] = a.mark()
            a.wait_ds(mk[g])
            for e in range(Gs):
                put(cur + e, rin + g * Gs + e, rout + g * Gs + e, e)
            if rem and g == 0:
                a('s_mov_b64 exec, %s' % sr(sREM, 2))
                put(10, INR, OUTR, 0)
                put(11, INR + 1, OUTR + 1, 1)
                a('s_mov_b64 exec, -1')
            between(g)

    rd = {}

    def readout(base, data, t):
        a('v_add_u32 v%d, %d, v%d' % (t, 7 * 8192, O16))
        a('v_add_u32 v%d, %d, v%d' % (t + 1, 14 * 8192, O16))
        for j in range(20):
            b = (O16, t, t + 1)[j // 7]
            a('ds_read_b128 %s, v%d offset:%d' % (vr(base + 4 * j, 4), b, data + (j % 7) * 8192))
            rd[j] = a.mark()

    def store(base, srec, j, wait=False):
        a('s_mov_b32 s%d, %d' % (sT, j * 8192))
        if wait:
            a.wait_ds(rd[j])
        a('buffer_store_dwordx4 %s, v%d, %s, s%d offen %s' % (vr(base + 4 * j, 4), O16, sr(srec, 4), sT, 'sc1' if fused else (P['sta'] if base == INA else P['stb'])))
        return a.mark()

    def arrive1(k, t):
        a('v_mov_b32 v%d, %d' % (t, ARR + 4 * k))
        a('v_mov_b32 v%d, 1' % (t + 1))
        a('s_mov_b64 exec, 1')
        a('ds_add_rtn_u32 v%d, v%d, v%d' % (t, t, t + 1))
        a('s_mov_b64 exec, -1')
        return a.mark()

    def flag_addr(t):
        a('s_lshl2_add_u32 s%d, s2, %d' % (sT, FLG0))
        a('v_lshl_add_u32 v%d, v%d, 10, s%d' % (t, LANE, sT))

    def arrive2(k, t, m):
        flag_addr(t + 2)
        a.wait_ds(m)
        a('v_readfirstlane_b32 s%d, v%d' % (sT, t))
        a('s_cmp_eq_u32 s%d, 7' % sT)
        a('s_cselect_b64 exec, 0xff, 0')
        a('global_store_dword v%d, v%d, s[14:15] sc1' % (t + 2, t + 1))
        a('s_mov_b64 exec, -1')

    def publish():
        a('buffer_store_dwordx4 %s, v%d, %s, 0 offen sc1' % (vr(92, 4), O16, sr(S_DSC, 4)))

    LD = P['pld']
    if fused:
        a('s_cmp_lg_u32 s%d, 0' % sW)
        a('s_cbranch_scc1 Lk1_nc')
        a.nocount = True
        for i in range(4):
            a('v_mov_b32 v%d, 0' % (240 + i))
        for i in range(8):
            a('s_movk_i32 s%d, %d' % (sT, 1024 * i))
            a('buffer_store_dwordx4 v[240:243], v%d, %s, s%d offen sc1' % (O16, sr(S_DSC, 4), sT))
        flag_addr(244)
        a('s_mov_b64 exec, 0xff')
        a('global_store_dword v244, v240, s[14:15] sc1')
        a('s_mov_b64 exec, -1')
        a.nocount = False
        a('Lk1_nc:')
    for j in range(LD):
        loads(j)
    a('s_cmp_lg_u32 s%d, 0' % sPREP)
    a('s_barrier')
    a('s_cbranch_scc1 Lk1_noprep')
    a.nocount = True
    nds = a.nds
    G['prep'](a, DATA, S_T0, 3 * LD, LANE, 14, sU, st)
    a.nds = nds
    a.nocount = False
    a('Lk1_noprep:')
    for j in range(NR):
        if P['tw']:
            a.wait_vm(marks[j], P['tw'] - 1)
        loads(j + LD)
        pack(j)
        if fused and j == P['atj']:
            a('s_and_b32 s%d, s2, 3' % sT)
            a('s_lshl_b32 s%d, s%d, 6' % (sT, sT))
            a('v_mov_b32 v244, s%d' % sT)
            a('s_cmp_eq_u32 s%d, 0' % sW)
            a('s_cselect_b64 exec, 1, 0')
            a('global_atomic_add v244, v%d, s[12:13] sc1' % ONE)
            a('s_mov_b64 exec, -1')
    stamp(1)
    scan(0, CNTA, DATA, S_REC)
    stamp(2)
    nl, npk = [NR + LD], [NR]

    def do(ops):
        for c in ops:
            if c == 'L' and nl[0] <= 2 * NR:
                loads(nl[0])
                nl[0] += 1
            elif c == 'P' and npk[0] <= 2 * NR:
                pack(npk[0])
                npk[0] += 1

    sched = P['sch8'].split('.')
    do(sched[0])
    scatter(INA, OUTA, CNTA, False, lambda g: do(sched[g + 1]))
    stamp(3)
    while npk[0] <= 2 * NR:
        do('LP')
    stamp(4)
    npre = P['npre'] * 2
    md = scan(1, CNTB, DATB, S_REC2, lambda: readout(INA, DATA, 34), lambda: [store(INA, S_REC, j) for j in range(npre)])
    stamp(5)
    nae = P['nae'] if fused else 20
    todo = list(range(npre, nae))
    ar = {}

    def btw_b(g):
        k = -(-len(todo) // (NR - g)) if g >= P['sg0'] else 0
        for _ in range(k):
            store(INA, S_REC, todo.pop(0))

    scatter(INB, OUTB, CNTB, True, btw_b)
    stamp(6)
    a('s_waitcnt lgkmcnt(0)')
    a('s_barrier')
    readout(IMGB, DATB, 4)
    if fused:
        for k in range(4):
            a('v_mov_b32 v%d, v%d' % (92 + k, DSC + k))
    h = Hooks()
    h.store = lambda j, wait=False: store(IMGB, S_REC2, j, wait)
    h.rest_a = [(lambda j=j: store(INA, S_REC, j)) for j in range(nae, 20)]
    h.arrive1, h.arrive2, h.publish, h.lds = arrive1, arrive2, publish, ARR + 64
    if not fused:
        for j in range(20):
            h.store(j, True)
        stamp(7)
        if P['stamp']:
            a('s_waitcnt vmcnt(0)')
            stamp(8)
        a('Lk1_end:')
        a('s_endpgm')
        a.fence()
    return h
```

```python
import math


def k2(a, P, G, hk):
    vr, sr, srd, f2u = G['vr'], G['sr'], G['srd'], G['f2u']
    E, BINE, TS, TSP = G['E'], G['BINE'], G['TS'], G['TSP']
    REC0, DESC0, PREP0, WS_BYTES = G['REC0'], G['DESC0'], G['PREP0'], G['WS_BYTES']
    ROWS = BINE + 3
    PL = ROWS * 4
    RBF0 = 5 * PL
    HI0 = RBF0 + ROWS * 16
    SCR = HI0 + 4 * PL
    LDS = SCR + 128
    KC0, TB0, BB0, SC0, RING0 = 0, 12800, 21504, 25600, 25856
    NSL = 15
    NBLK = 51
    NQ = 7
    S_M, S_MR, S_WS, S_DIST, S_MO, S_OUT, S_DBG = 16, 20, 24, 28, 32, 36, 92
    sCEN = 40
    sW, sBIN, sT, sT2 = 48, 49, 50, 51
    sM0, sM1, sIDM, sHI, sA16 = 52, 53, 54, 55, 56
    sPASS, sMODE, sIX = 57, 58, 59
    sV6 = 60
    sMK = 62
    sFL, sSK = 64, 78
    sPc = 64
    sR, sTB, sRB, sRE, sPS = 69, 70, 71, 72, 73
    sLO = 74
    sMA = 84
    sLM = 84
    sEND = 88
    sEW = 80
    sF, sE, sDL, sI, sP, sNT, sSUB = 4, 5, 6, 7, 8, 9, 10
    LANE, S0 = 1, 2
    AG, AM, GATE, MD = 164, 176, 184, 200
    GB = (156, 216)
    SBF, RBF = 224, 232
    IA, IB = 236, 238
    A16, ANG = (240, 241), (242, 243)
    A4, A4B, CV, AC = 244, 245, 246, 155
    RTN = (247, 248)
    STK, CK, TM = 249, 250, 251
    RAW = 156
    RT, RA = 216, 232
    NA = P['na']
    TAR = (240, 241, 242, 243, 236, 238)
    TF = (244, 245)
    TH, VM, ONE, EIGHT, L12, RBA, WD, WA = 246, 248, 249, 250, 251, 252, 253, 254
    lab = [0]
    HO = 'sc1' if hk else P['ldrec']
    VZ, VP, VT = 6, 7, 8
    NS0 = P['ns0']

    def spin(load, notready, m):
        n = lab[0]
        lab[0] += 1
        a('s_mov_b32 s%d, 0x40000' % sT2)
        a.wait_vm(m)
        a('Lpl%d:' % n)
        notready()
        a('s_cbranch_execz Lpd%d' % n)
        a('s_sleep %d' % P['slp'])
        a.nocount = True
        load()
        a.nocount = False
        a('s_sub_u32 s%d, s%d, 1' % (sT2, sT2))
        a('s_waitcnt vmcnt(0)')
        a('s_cbranch_scc0 Lpl%d' % n)
        a('Lpd%d:' % n)
        a('s_mov_b64 exec, -1')
        a('s_nop 3')

    def cleared_load():
        a('global_load_dword v%d, v%d, s[12:13] sc1' % (VP, VZ))
        return a.mark()

    def done_load():
        a('global_load_dword v%d, v%d, s[14:15] sc1' % (VP, VZ))
        return a.mark()

    def done_addr():
        a('s_and_b32 s%d, s2, 7' % sT)
        a('s_lshl3_add_u32 s%d, s%d, s%d' % (sT, sT, sW))
        a('s_lshl_b32 s%d, s%d, 7' % (sT, sT))
        a('s_add_u32 s%d, s%d, %d' % (sT, sT, G['FLG0']))
        a('v_and_b32 v%d, 31, v0' % VZ)
        a('v_lshl_add_u32 v%d, v%d, 2, s%d' % (VZ, VZ, sT))

    def done_wait(m):
        spin(done_load, lambda: a('v_cmpx_ne_u32 vcc, 1, v%d' % VP), m)

    def stamp(i, late=False):
        G['stamp'](a, i, S_DBG, 96, *((253, 254) if late else (235, 234)))

    CNT0 = 2 * PL

    def plane(j):
        return ((A4, 0), (A4, 3 * PL), (A4B, 0), (A4B, 2 * PL))[j]

    def desc_load(dst, tb):
        a('v_lshlrev_b32 v%d, 12, v0' % tb)
        a('s_lshl_b32 s%d, s%d, 4' % (sT, sBIN))
        a('s_add_u32 s%d, s%d, %d' % (sT, sT, DESC0))
        a('buffer_load_dwordx4 %s, v%d, %s, s%d offen %s' % (vr(dst, 4), tb, sr(S_WS, 4), sT, HO))
        return a.mark()

    def scan4(v):
        for c, rm in (('row_shr:1', 15), ('row_shr:2', 15), ('row_shr:4', 15), ('row_shr:8', 15), ('row_bcast:15', 10), ('row_bcast:31', 12)):
            for k in range(4):
                a('v_add_u32_dpp v%d, v%d, v%d %s row_mask:0x%x bank_mask:0xf' % (v + k, v + k, v + k, c, rm))

    def img_load(first, n, dst, t):
        a('v_lshlrev_b32 v%d, 4, v%d' % (t, LANE))
        for i in range(n):
            a('s_mov_b32 s%d, %d' % (sT, PREP0 + 1024 * (first + i)))
            a('buffer_load_dwordx4 %s, v%d, %s, s%d offen %s' % (vr(dst + 4 * i, 4), t, sr(S_WS, 4), sT, HO))

    def gathers(q):
        a('buffer_load_dwordx4 %s, %s, %s, 0 idxen offen' % (vr(GB[q], 4), vr(IA, 2), sr(S_M, 4)))
        a('buffer_load_dwordx4 %s, %s, %s, 0 idxen offen' % (vr(GB[q] + 4, 4), vr(IB, 2), sr(S_M, 4)))

    def cosines(p):
        c1, c3, c2 = TM, TM + 1, TM + 2
        a('v_mul_f32 v%d, 0x40400000, v%d' % (c3, ANG[p]))
        a('v_mul_f32 v%d, 0.15915494, v%d' % (c1, ANG[p]))
        a('v_cvt_pk_bf16_f32 v%d, 0, v%d' % (c3, c3))
        a('v_fract_f32 v%d, v%d' % (c1, c1))
        a('v_mul_f32 v%d, 0.15915494, v%d' % (c3, c3))
        a('v_cos_f32 v%d, v%d' % (c1, c1))
        a('v_fract_f32 v%d, v%d' % (c3, c3))
        a('v_cos_f32 v%d, v%d' % (c3, c3))
        a('v_fma_mixlo_f16 v%d, v%d, v%d, -0.5' % (c2, c1, c1))
        a('v_cvt_pk_f16_f32 v%d, v%d, v%d' % (c1, c1, c3))

    def sbf(l):
        src, sel = ((TM, 0), (TM + 2, 0), (TM, 1))[l]
        for j in range(4):
            a('v_pk_mul_f16 v%d, v%d, v%d op_sel:[0,%d] op_sel_hi:[1,%d]' % (SBF + 4 * (l & 1) + j, RBF + j, src, sel, sel))

    def gmf(l):
        a('v_mfma_f32_32x32x16_f16 %s, %s, %s, %s' % (vr(GATE, 16), vr(AG + 4 * l, 4), vr(SBF + 4 * (l & 1), 4), vr(GATE, 16) if l else '0'))

    def mdown(p):
        a('v_mfma_f32_32x32x16_bf16 %s, %s, %s, 0' % (vr(MD, 16), vr(AM, 4), vr(GB[p], 4)))
        a('v_mfma_f32_32x32x16_bf16 %s, %s, %s, %s' % (vr(MD, 16), vr(AM + 4, 4), vr(GB[p] + 4, 4), vr(MD, 16)))

    def addrs(p):
        a('v_lshrrev_b32 v%d, 1, v%d' % (A4, A16[p]))
        a('v_lshrrev_b32 v%d, 2, v%d' % (AC, A16[p]))
        a('v_add_u32 v%d, %d, v%d' % (A4B, HI0, A4))

    def decode_rel(p, base, part=3):
        if P['lf']:
            base = 0
        a('s_set_gpr_idx_on s%d, gpr_idx(SRC1)' % (sDX if P['lf'] else sIX))
        a('s_nop 0')
        if part & 1:
            a('v_and_b32 v%d, s%d, v%d' % (IA, sIDM, S0 + base + p))
            a('v_and_b32 v%d, s%d, v%d' % (IB, sIDM, S0 + base + p))
        if part & 2:
            a('v_and_b32_sdwa v%d, s%d, v%d dst_sel:DWORD dst_unused:UNUSED_PAD src0_sel:DWORD src1_sel:WORD_1' % (A16[p], sA16, S0 + base + p))
            if p:
                a('v_and_b32 v%d, s%d, v%d' % (ANG[p], sHI, S0 + base + 2))
            else:
                a('v_lshlrev_b32 v%d, 16, v%d' % (ANG[p], S0 + base + 2))
        a('s_set_gpr_idx_off')
        if part & 1:
            a('v_permlane32_swap_b32 v%d, v%d' % (IA, IB))

    sDX, sI1, sOF, sLB = 76, 77, 78, 79

    def next_block():
        a('s_add_u32 s%d, s%d, s%d' % (sDX, sI1, sOF))
        a('s_xor_b32 s%d, s%d, s%d' % (sDX, sDX, 75))
        a('s_sub_u32 s%d, s%d, s%d' % (sDX, sDX, sOF))
        a('s_max_u32 s%d, s%d, s%d' % (sT, sDX, sI1))
        a('s_cmp_ge_u32 s%d, s%d' % (sT, sLB))
        a('s_cselect_b32 s%d, s%d, s%d' % (sDX, sI1, sDX))
        a('s_mul_i32 s%d, s%d, 3' % (sDX, sDX))
        a('s_add_u32 s%d, s%d, 1' % (sI1, sI1))

    def halfbar(hi):
        n = lab[0]
        lab[0] += 1
        a('s_bitcmp%d_b32 s%d, %d' % (0 if hi else 1, sW, P['stb_']))
        a('s_cbranch_scc1 Lhb%d' % n)
        a('s_barrier')
        a.hist[-1].states = 0
        a('Lhb%d:' % n)

    def step(p):
        q = 1 - p
        ab = P['abl']
        vq = (lambda t: None) if ab & 4 else a
        vb = (lambda t: None) if ab & 68 else a
        va = (lambda t: None) if ab & 1 else a
        if P['early']:
            decode_rel(p, 3, 1)
        a('s_waitcnt vmcnt(2)')
        if not ab & 16:
            mdown(p)
        if P['early']:
            gathers(p)
        if not ab & 32:
            cosines(p)
        a('s_waitcnt lgkmcnt(%d)' % (0 if ab & 1 else 5))
        if not ab & 32:
            sbf(0)
        addrs(p)
        if not ab & 8:
            gmf(0)
        if not ab & 32:
            sbf(1)
        a('v_or_b32 v%d, v%d, v%d' % (STK, STK, RTN[p]))
        a('s_cmp_eq_u32 s%d, s%d' % (sIX, sEND))
        if not ab & 8:
            gmf(1)
        if not ab & 32:
            sbf(2)
        a('ds_read_b128 %s, v%d offset:%d' % (vr(RBF, 4), A16[q], RBF0))
        a('s_cselect_b64 %s, %s, -1' % (sr(sMK, 2), sr(sLM + 2 * p, 2)))
        if not ab & 8:
            gmf(2)
        if P['early']:
            decode_rel(p, 3, 2)
        else:
            decode_rel(p, 3)
            gathers(p)
        if P['stag'] and (p == 1 or P['stag'] == 2):
            halfbar(1)
        a('s_mov_b64 exec, %s' % sr(sMK, 2))
        pk = lambda j: MD + 4 * (j >> 1) + (j & 1)
        for j in range(8):
            vq('v_fma_f32 v%d, v%d, v%d, s%d' % (MD + 2 * j, MD + 2 * j, GATE + 2 * j, sM0))
            vq('v_fma_f32 v%d, v%d, v%d, s%d' % (MD + 2 * j + 1, MD + 2 * j + 1, GATE + 2 * j + 1, sM0))
            if j:
                jj = j - 1
                vb('v_sad_u16 v%d, v%d, s%d, v%d' % (TM + (jj >> 1), pk(jj), sM1, TM + (jj >> 1) if jj & 1 else CK))
            vq('v_cvt_pknorm_u16_f32 v%d, v%d, v%d' % (pk(j), MD + 2 * j, MD + 2 * j + 1))
            if j & 1:
                b, o = plane(j >> 1)
                va('ds_add_u64 v%d, %s offset:%d' % (b, vr(pk(j - 1), 2), o))
        vb('v_max3_u32 v%d, v%d, v%d, v%d' % (CV, TM, TM + 1, TM + 2))
        vb('v_sad_u16 v%d, v%d, s%d, v%d' % (TM + 3, pk(7), sM1, TM + 3))
        vb('v_max_u32 v%d, v%d, v%d' % (CV, CV, TM + 3))
        va('ds_add_rtn_u32 v%d, v%d, v%d offset:%d' % (RTN[p], AC, CV, CNT0))
        a('s_mov_b64 exec, -1')

    CA, CB = ANG
    sCX = 74

    def cos2():
        c1 = TM
        return ['v_mul_f32 v%d, 0x40400000, v%d' % (CA, c1),
                'v_mul_f32 v%d, 0.15915494, v%d' % (c1, c1),
                'v_cvt_pk_bf16_f32 v%d, 0, v%d' % (CA, CA),
                'v_fract_f32 v%d, v%d' % (c1, c1),
                'v_mul_f32 v%d, 0.15915494, v%d' % (CA, CA),
                'v_cos_f32 v%d, v%d' % (c1, c1),
                'v_fract_f32 v%d, v%d' % (CA, CA),
                'v_cos_f32 v%d, v%d' % (CA, CA),
                'v_fma_mixlo_f16 v%d, v%d, v%d, -0.5' % (CB, c1, c1),
                'v_cvt_pk_f16_f32 v%d, v%d, v%d' % (CA, c1, CA)]

    def sbf2(l):
        src, sel = ((CA, 0), (CB, 0), (CA, 1))[l]
        for j in range(4):
            a('v_pk_mul_f16 v%d, v%d, v%d op_sel:[0,%d] op_sel_hi:[1,%d]' % (SBF + 4 * (l & 1) + j, RBF + j, src, sel, sel))

    def step2(p):
        q = 1 - p
        cs = cos2()
        a('s_waitcnt lgkmcnt(5)')
        sbf2(0)
        addrs(p)
        gmf(0)
        sbf2(1)
        a('v_or_b32 v%d, v%d, v%d' % (STK, STK, RTN[p]))
        a('s_cmp_eq_u32 s%d, s%d' % (sIX, sEND))
        a('s_cselect_b64 %s, %s, -1' % (sr(sMK, 2), sr(sLM + 2 * p, 2)))
        if p == 0:
            a('s_cselect_b32 s%d, %d, s%d' % (sRE, P['idm'] if P['nog'] else 0, sIDM))
        gmf(1)
        sbf2(2)
        a('ds_read_b128 %s, v%d offset:%d' % (vr(RBF, 4), A16[q], RBF0))
        if P['bpos'] == 1 and p == 1:
            halfbar(1)
        gmf(2)
        a('s_set_gpr_idx_on s%d, gpr_idx(SRC1)' % sDX)
        a('s_nop 0')
        a('v_and_b32 v%d, s%d, v%d' % (IA, sRE, S0 + p))
        a('v_and_b32 v%d, s%d, v%d' % (IB, sRE, S0 + p))
        a('v_and_b32_sdwa v%d, s%d, v%d dst_sel:DWORD dst_unused:UNUSED_PAD src0_sel:DWORD src1_sel:WORD_1' % (A16[p], sA16, S0 + p))
        if p:
            a('v_lshlrev_b32 v%d, 16, v%d' % (TM, S0 + 2))
        else:
            a('s_set_gpr_idx_idx s%d' % sCX)
            a('s_nop 0')
            a('v_and_b32 v%d, s%d, v%d' % (TM, sHI, S0 + 2))
        a('s_set_gpr_idx_off')
        a('v_permlane32_swap_b32 v%d, v%d' % (IA, IB))
        n1, n2 = P['cs1'], P['cs2']
        for t in cs[:n1]:
            a(t)
        a('s_waitcnt vmcnt(2)')
        a('v_mfma_f32_32x32x16_bf16 %s, %s, %s, 0' % (vr(MD, 16), vr(AM, 4), vr(GB[p], 4)))
        for t in cs[n1:n2]:
            a(t)
        a('v_mfma_f32_32x32x16_bf16 %s, %s, %s, %s' % (vr(MD, 16), vr(AM + 4, 4), vr(GB[p] + 4, 4), vr(MD, 16)))
        gathers(p)
        for t in cs[n2:]:
            a(t)
        if p:
            a('s_mov_b32 s%d, s%d' % (sCX, sDX))
            next_block()
        if P['bpos'] == 0 and p == 1:
            halfbar(1)
        if P['bpos'] == 2 and p == 0:
            halfbar(1)
        a('s_mov_b64 exec, %s' % sr(sMK, 2))
        pk = lambda j: MD + 4 * (j >> 1) + (j & 1)

        def F(j):
            for e in range(2):
                a('v_fma_f32 v%d, v%d, v%d, s%d' % (MD + 2 * j + e, MD + 2 * j + e, GATE + 2 * j + e, sM0))

        def SAD(j):
            a('v_sad_u16 v%d, v%d, s%d, v%d' % (TM + (j >> 1), pk(j), sM1, TM + (j >> 1) if j & 1 else CK))
        F(0)
        for j in range(8):
            if j < 7:
                F(j + 1)
            else:
                a('v_max3_u32 v%d, v%d, v%d, v%d' % (CV, TM, TM + 1, TM + 2))
            a('v_cvt_pknorm_u16_f32 v%d, v%d, v%d' % (pk(j), MD + 2 * j, MD + 2 * j + 1))
            if j:
                SAD(j - 1)
            if j & 1:
                b, o = plane(j >> 1)
                a('ds_add_u64 v%d, %s offset:%d' % (b, vr(pk(j - 1), 2), o))
        SAD(7)
        a('v_max_u32 v%d, v%d, v%d' % (CV, CV, TM + 3))
        a('ds_add_rtn_u32 v%d, v%d, v%d offset:%d' % (RTN[p], AC, CV, CNT0))
        a('s_mov_b64 exec, -1')

    if not hk:
        a('s_cmp_ge_u32 s2, 256')
        a('s_cbranch_scc1 Lk2_end')
    a('s_load_dwordx2 s[4:5], s[0:1], 0')
    a('s_load_dwordx2 s[6:7], s[0:1], 24')
    a('s_load_dwordx2 s[8:9], s[0:1], 40')
    a('s_load_dwordx2 s[10:11], s[0:1], 88')
    if not hk:
        a('s_load_dwordx4 s[12:15], s[0:1], 96')
    if P['cpf'] & 2:
        G['code_prefetch'](a, 'b', 88, 4)
    a('v_lshrrev_b32 v3, 6, v0')
    a('v_and_b32 v%d, 63, v0' % LANE)
    a('v_readfirstlane_b32 s%d, v3' % sW)
    if hk:
        a('v_and_b32 v%d, 3, v0' % VZ)
        a('v_lshlrev_b32 v%d, 6, v%d' % (VZ, VZ))
        mP = cleared_load()
    a('s_and_b32 s%d, s2, 7' % sBIN)
    a('s_lshl_b32 s%d, s%d, 5' % (sBIN, sBIN))
    a('s_lshr_b32 s%d, s2, 3' % sT)
    a('s_add_u32 s%d, s%d, s%d' % (sBIN, sBIN, sT))
    a('s_mov_b32 s%d, 0x%x' % (sM0, f2u(32768.0 / 65535.0)))
    a('s_mov_b32 s%d, 0x80008000' % sM1)
    a('s_mov_b32 s%d, 0x%x' % (sIDM, P['idm']))
    a('s_mov_b32 s%d, 0xffff0000' % sHI)
    a('s_mov_b32 s%d, 0xfff0' % sA16)
    a('s_mov_b32 s%d, 0x07060302' % sPS)
    a('s_mov_b32 s%d, 0' % sMODE)
    a('s_mul_i32 s%d, s%d, %d' % (sPASS, sBIN, BINE))
    a('s_add_u32 s%d, s%d, %d' % (sIX, sPASS, BINE))
    a('s_andn2_b32 s%d, s%d, 3' % (sPASS, sPASS))
    a('s_andn2_b32 s%d, s%d, 3' % (sIX, sIX))
    a('s_sub_u32 s%d, s%d, s%d' % (sIX, sIX, sPASS))
    a('s_sub_u32 s%d, s%d, 3072' % (sT, sIX))
    a('v_cmp_gt_u32 %s, s%d, v0' % (sr(sV6, 2), sT))
    a('v_lshrrev_b32 v%d, 5, v%d' % (IA + 1, LANE))
    a('v_lshlrev_b32 v%d, 4, v%d' % (IA + 1, IA + 1))
    a('v_mov_b32 v%d, v%d' % (IB + 1, IA + 1))
    a('v_mov_b32 v%d, 0' % IA)
    a('v_mov_b32 v%d, 0' % IB)
    a('s_waitcnt lgkmcnt(0)')
    a('s_load_dwordx4 s[96:99], s[8:9], 0')
    srd(a, S_WS, 14, WS_BYTES)
    D, X, DL = RAW, RAW + 4, RAW + 8
    if hk:
        a('s_barrier')
        for j in range(NS0):
            mS = hk.store(j)
    else:
        mDs = desc_load(D, RAW + 12)
        if P['spf']:
            a('s_lshr_b32 s%d, s2, 3' % sT)
            a('s_and_b32 s%d, s%d, 1' % (sT2, sT))
            a('s_mul_i32 s%d, s%d, 160' % (sT2, sT2))
            a('s_add_u32 s%d, s%d, 4720' % (sT2, sT2))
            a('s_and_b32 s90, s2, 7')
            a('s_mul_i32 s%d, s%d, s90' % (sT2, sT2))
            a('s_lshl_b32 s90, s%d, 6' % sW)
            a('s_add_u32 s90, s90, s%d' % sT)
            a('s_mul_i32 s90, s90, %d' % TS)
            a('s_add_u32 s90, s90, s%d' % sT2)
            a('s_add_u32 s90, s90, %d' % REC0)
            a('s_cmp_lt_u32 s%d, %d' % (sT, P['spf']))
            a('s_cselect_b32 s90, s90, %d' % WS_BYTES)
            a('v_min_u32 v%d, 38, v%d' % (WD, LANE))
            a('v_lshlrev_b32 v%d, 7, v%d' % (WD, WD))
            if P['spf'] > 32:
                a('buffer_load_dword v%d, v%d, %s, s90 offen' % (TH, WD, sr(S_WS, 4)))
                a('s_add_u32 s90, s90, %d' % (32 * TS))
                a('s_cmp_lt_u32 s%d, %d' % (sT, P['spf'] - 32))
                a('s_cselect_b32 s90, s90, %d' % WS_BYTES)
            a('buffer_load_dword v%d, v%d, %s, s90 offen' % (WD, WD, sr(S_WS, 4)))
    a('s_lshl_b32 s%d, s%d, 1' % (sT, sPASS))
    a('s_lshl_b32 s%d, s%d, 5' % (sT2, sPASS))
    srd(a, S_DIST, 6, 0, 's%d' % sT)
    srd(a, S_M, 4, E, None, 32)
    srd(a, S_MR, 4, E * 32)
    srd(a, S_MO, 4, 0, 's%d' % sT2)
    srd(a, S_OUT, 10, 0, 's%d' % sT2)
    a('s_lshl_b32 s%d, s%d, 1' % (S_DIST + 2, sIX))
    a('s_lshl_b32 s%d, s%d, 5' % (S_MO + 2, sIX))
    a('s_lshl_b32 s%d, s%d, 5' % (S_OUT + 2, sIX))
    G['stamp_init'](a, S_DBG, 14, 1, sW)
    a('s_waitcnt lgkmcnt(0)')
    for r in range(4):
        a('s_lshl_b32 s%d, s%d, 16' % (sCEN + 2 * r, 96 + r))
        a('s_and_b32 s%d, s%d, 0xffff0000' % (sCEN + 2 * r + 1, 96 + r))
    a('s_mov_b32 s%d, 0x%x' % (sR, f2u(math.sqrt(10.0 * math.log2(math.e)))))
    a('v_mov_b32 v%d, s%d' % (RT + 8, sR))
    for r in range(8):
        a('v_mul_f32 v%d, s%d, v%d' % (RT + r, sCEN + r, RT + 8))
    for r in range(8):
        a('v_readfirstlane_b32 s%d, v%d' % (sCEN + r, RT + r))
    stamp(0)
    Z, T0 = 96, 104
    for i in range(4):
        a('v_mov_b32 v%d, 0' % (Z + i))
        a('v_bfrev_b32 v%d, 1' % (Z + 4 + i))
    a('v_lshlrev_b32 v%d, 4, v0' % T0)
    a('v_lshlrev_b32 v%d, 3, v0' % (T0 + 1))
    a('s_mul_i32 s%d, s%d, 1088' % (sTB, sW))
    a('v_lshl_add_u32 v%d, v%d, 4, s%d' % (T0 + 2, LANE, sTB))
    a('ds_write_b64 v%d, %s offset:%d' % (T0 + 1, vr(Z, 2), BB0))
    a('ds_write_b128 v%d, %s offset:%d' % (T0 + 2, vr(Z + 4, 4), TB0))
    a('ds_write_b128 v%d, %s offset:%d' % (T0 + 2, vr(Z + 4, 4), TB0 + 64))
    a('s_movk_i32 s%d, 400' % sT)
    a('v_cmpx_gt_u32 vcc, s%d, v0' % sT)
    a('ds_write_b128 v%d, %s offset:%d' % (T0, vr(Z, 4), KC0))
    a('ds_write_b128 v%d, %s offset:%d' % (T0, vr(Z, 4), KC0 + 6400))
    a('s_mov_b64 exec, -1')
    a('v_mov_b32 v%d, 1' % ONE)
    a('v_mov_b32 v%d, 4' % EIGHT)
    a('v_mul_u32_u24 v%d, 12, v%d' % (L12, LANE))
    a('s_lshl_b32 s%d, s%d, 10' % (sT, sW))
    a('v_lshl_add_u32 v%d, v%d, 3, s%d' % (RBA, LANE, sT))
    a('s_lshl_b32 s%d, s2, 3' % sT)
    a('s_add_u32 s%d, s%d, s%d' % (sT, sT, sW))
    a('s_mul_i32 s%d, s%d, 25' % (sT, sT))
    a('v_min_u32 v%d, 24, v%d' % (WA, LANE))
    a('v_add_lshl_u32 v%d, v%d, s%d, 7' % (WA, WA, sT))
    for j in range(4):
        if P['wpos'][j] == '0':
            a('s_mov_b32 s%d, %d' % (sT, j * 51200 * 128))
            a('buffer_load_dword v%d, v%d, %s, s%d offen' % (WD, WA, sr(S_MR, 4), sT))
    a('s_movk_i32 s%d, %d' % (sT, REC0 // 12))
    a('v_mov_b32 v%d, %d' % (T0 + 3, TSP))
    a('v_mad_u32_u24 v%d, v0, v%d, s%d' % (T0 + 3, T0 + 3, sT))
    if hk:
        rest = []
        for j in range(NS0, 20):
            if 20 - j <= len(hk.rest_a):
                rest.append(hk.rest_a[j - 20])
            rest.append(lambda j=j: hk.store(j))
        for j in range(P['nsx']):
            rest.pop(0)()
        a.wait_vm(mS)
        a('s_barrier')
        hk.publish()
        stamp(11)
        late = rest[len(rest) - P['nlate']:] if P['nlate'] else []
        for f in rest[:len(rest) - len(late)]:
            mS = f()
        spin(cleared_load, lambda: a('v_cmpx_gt_u32 vcc, 64, v%d' % VP), mP)
        mDs = desc_load(D, RAW + 12)
        done_addr()
        stamp(12)
        if not late:
            a.wait_vm(mS)
            hk.arrive2(0, VT, hk.arrive1(0, VT))

        def nr():
            a('v_and_b32 v%d, v%d, v%d' % (VT, D, D + 1))
            a('v_and_b32 v%d, v%d, v%d' % (VT + 1, D + 2, D + 3))
            a('v_and_b32 v%d, v%d, v%d' % (VT, VT, VT + 1))
            a('v_cmpx_le_i32 vcc, 0, v%d' % VT)
        spin(lambda: desc_load(D, RAW + 12), nr, mDs)
        stamp(13)
        for k in range(4):
            a('v_and_b32 v%d, 0x7fffffff, v%d' % (D + k, D + k))
    else:
        a.wait_vm(mDs)
    NP = RAW + 28
    for k in range(4):
        a('v_add_u32 v%d, 0x10000, v%d' % (NP + k, D + k))
        a('v_bfe_u32 v%d, v%d, 16, 1' % (X + k, D + k))
        a('v_lshrrev_b32 v%d, 17, v%d' % (NP + k, NP + k))
        a('v_and_b32 v%d, 0xffff, v%d' % (D + k, D + k))
        a('v_lshl_or_b32 v%d, v%d, 20, v%d' % (X + k, X + k, NP + k))
    scan4(X)
    TT = RAW + 32
    a('s_movk_i32 s%d, %d' % (sT2, NSL * 64))
    for k in range(4):
        a('v_lshrrev_b32 v%d, 20, v%d' % (TT + k, X + k))
        a('v_and_b32 v%d, 0xfffff, v%d' % (X + k, X + k))
        a('v_add_u32 v%d, v%d, v%d' % (DL + k, D + k, T0 + 3))
        a('v_sub_u32 v%d, v%d, v%d' % (TT + k, X + k, TT + k))
        a('v_sub_u32 v%d, v%d, v%d' % (DL + k, DL + k, X + k))
        a('v_add_u32 v%d, v%d, v%d' % (TT + k, TT + k, X + k))
        a('v_mul_u32_u24 v%d, 12, v%d' % (DL + k, DL + k))
        a('v_subrev_u32 v%d, %d, v%d' % (T0, 64 * P['nfull'], X + k))
        a('v_cmpx_lt_u32 vcc, %d, v%d' % (64 * (NSL - P['nfull']), T0))
        a('v_mov_b32 v%d, 0x1000000' % (TT + k))
        a('s_mov_b64 exec, -1')
    if hk:
        a('v_cmp_lt_u32 vcc, %d, v%d' % (NS0 * 8192 // 12, D + P['nrun'] - 1))
        a('s_cmp_lg_u64 vcc, 0')
        a('s_cselect_b64 exec, -1, 0')
        a('v_mov_b32 v%d, 0x1000000' % TT)
        a('s_mov_b64 exec, -1')
    for k in range(4):
        a('v_readlane_b32 s%d, v%d, 63' % (sEW + k, X + k))
    a('s_lshl_b32 s%d, s%d, 4' % (sT, sW))
    a('v_mov_b32 v%d, s%d' % (T0, sT))
    a('s_mov_b32 exec_lo, 0')
    a('s_mov_b32 exec_hi, 0x80000000')
    a('ds_write_b128 v%d, %s offset:%d' % (T0, vr(TT, 4), SC0))
    a('s_mov_b64 exec, -1')
    a('s_lshl_b32 s%d, s%d, 9' % (sT, sW))
    for k in range(4):
        a('v_subrev_u32 v%d, 1, v%d' % (T0, X + k))
        a('v_lshlrev_b32 v%d, v%d, v%d' % (T0 + 1, T0, ONE))
        a('v_lshrrev_b32 v%d, 5, v%d' % (T0, T0))
        a('v_lshl_add_u32 v%d, v%d, 2, s%d' % (T0, T0, sT))
        a('v_cmpx_ge_u32 vcc, s%d, v%d' % (sT2, X + k))
        a('v_cmpx_ne_u32 vcc, 0, v%d' % (NP + k))
        a('v_mbcnt_lo_u32_b32 v%d, vcc_lo, 0' % (T0 + 2))
        a('v_mbcnt_hi_u32_b32 v%d, vcc_hi, v%d' % (T0 + 2, T0 + 2))
        a('v_lshl_add_u32 v%d, v%d, 2, s%d' % (T0 + 2, T0 + 2, sTB))
        a('ds_or_b32 v%d, v%d offset:%d' % (T0, T0 + 1, BB0 + 128 * k))
        a('ds_write_b32 v%d, v%d offset:%d' % (T0 + 2, DL + k, TB0 + 272 * k))
        a('s_mov_b64 exec, -1')
    a('v_and_b32 v%d, 7, v0' % T0)
    a('v_lshlrev_b32 v%d, 4, v%d' % (T0, T0))
    a('s_waitcnt lgkmcnt(0)')
    a('s_barrier')
    a('ds_read_b128 %s, v%d offset:%d' % (vr(TT, 4), T0, SC0))
    a('s_mov_b32 s%d, 0' % sPc)
    a('s_waitcnt lgkmcnt(0)')
    for c in ('row_shr:1', 'row_shr:2', 'row_shr:4'):
        for k in range(4):
            a('v_add_u32_dpp v%d, v%d, v%d %s row_mask:0xf bank_mask:0xf' % (TT + k, TT + k, TT + k, c))
    for k in range(4):
        a('v_readlane_b32 s%d, v%d, 7' % (sPc + 1 + k, TT + k))
    for k in range(1, 4):
        a('s_add_u32 s%d, s%d, s%d' % (sPc + 1 + k, sPc + 1 + k, sPc + k))
    a('s_cmp_gt_u32 s%d, %d' % (sPc + 4, NBLK * 1024 if P['force_slow'] != 4 else 0))
    a('s_cbranch_scc1 Lk2_fb')
    a('s_cmp_ge_u32 s%d, %d' % (sPc + 2, 29 * 1024))
    a('s_cbranch_scc1 Lk2_fb')
    stamp(1)

    BUF = (96, 156)
    LEAD, HP = P['lead'], P['hp']
    RO, ZR = 184, 212
    DI = (TF[0], TF[1], VM, L12, TH, TH + 1, ONE)
    NFULL = P['nfull']
    mA, mC, mV, mM = {}, {}, {}, {}
    VMS = (255, VM)

    def raw(u):
        return BUF[(u // NSL) & 1] + 4 * (u % NSL)

    def Mrd(r):
        a('s_lshl_b32 s%d, s%d, 9' % (sT, sW))
        a('v_lshl_add_u32 v%d, v%d, 2, s%d' % (VMS[r >> 1], LANE, sT))
        a('ds_read_b32 v%d, v%d offset:%d' % (VMS[r >> 1], VMS[r >> 1], BB0 + 128 * r))
        mM[r] = a.mark()

    def keys(t0, t1, R):
        for e, t in enumerate((t0, t1)):
            a('v_lshrrev_b32 v%d, 6, v%d' % (t, R + 2 * e))
        for t in (t0, t1):
            a('v_and_b32 v%d, 0x3ffc, v%d' % (t, t))

    def A(u):
        R = raw(u)
        t0, t1 = TAR[2 * (u % NA)], TAR[2 * (u % NA) + 1]
        keys(t0, t1, R)
        for t in (t0, t1):
            a('ds_read_b32 v%d, v%d offset:%d' % (t, t, KC0))
        mA[u] = a.mark()

    def B(u):
        R = raw(u)
        tail = u % NSL >= NFULL
        if tail:
            a('v_cmpx_gt_i32 vcc, 0, v%d' % (R + 1))
        a.wait_ds(mA[u])
        for e in range(2):
            t = TAR[2 * (u % NA) + e]
            a('v_add_u32 v%d, v%d, v%d' % (t, t, R + 2 * e + 1))
        for e in range(2):
            t = TAR[2 * (u % NA) + e]
            a('v_lshlrev_b32_sdwa v%d, 1, v%d dst_sel:DWORD dst_unused:UNUSED_PAD src0_sel:DWORD src1_sel:WORD_0' % (t, t))
            a('ds_write_b64 v%d, %s offset:%d' % (t, vr(R + 2 * e, 2), RING0))
        if tail:
            a('s_mov_b64 exec, -1')

    def C(u):
        if u >= 4 * NSL:
            return
        r, k = divmod(u, NSL)
        t = TF[u & 1]
        if u == 0:
            a.wait_ds(mM[2])
        if k == 0:
            a('s_mul_i32 s%d, s%d, 1088' % (sTB, sW))
        a('v_readlane_b32 s%d, v%d, %d' % (sLO, VMS[r >> 1], 32 * (r & 1) + 2 * k))
        a('v_readlane_b32 s%d, v%d, %d' % (sLO + 1, VMS[r >> 1], 32 * (r & 1) + 2 * k + 1))
        a('s_bcnt1_i32_b64 s%d, %s' % (sT, sr(sLO, 2)))
        a('v_mbcnt_lo_u32_b32 v%d, s%d, 0' % (t, sLO))
        a('v_mbcnt_hi_u32_b32 v%d, s%d, v%d' % (t, sLO + 1, t))
        a('v_lshl_add_u32 v%d, v%d, 2, s%d' % (t, t, sTB))
        a('s_lshl2_add_u32 s%d, s%d, s%d' % (sTB, sT, sTB))
        a('ds_read_b32 v%d, v%d offset:%d' % (t, t, TB0 + 272 * r))
        mC[u] = a.mark()

    def Dd(u):
        if u >= 4 * NSL:
            return
        t = TF[u & 1]
        a('s_movk_i32 s%d, %d' % (sT2, 768 * (u % NSL)))
        a.wait_ds(mC[u])
        a('v_add_u32 v%d, v%d, v%d' % (t, t, L12))
        if P['abl'] & 2048:
            a('v_and_b32 v%d, 0x3ffff, v%d' % (t, t))
        a('buffer_load_dwordx3 %s, v%d, %s, s%d offen %s' % (vr(raw(u), 3), t, sr(S_WS, 4), sT2, HO))
        mV[u] = a.mark()

    hpend = []
    hcnt = [0]

    def H2():
        while hpend:
            R, t0, t1, m = hpend.pop()
            a.wait_ds(m)
            a('v_lshl_or_b32 v%d, v%d, 16, v%d' % (R + 3, R + 1, t1))
            a('v_and_or_b32 v%d, v%d, s%d, v%d' % (R + 1, R + 1, sHI, t0))

    def H(u):
        R = raw(u)
        tail = u % NSL >= NFULL
        t0, t1 = ((TH, TH + 1), (236, 238))[hcnt[0] & 1]
        hcnt[0] += 1
        a.wait_vm(mV[u])
        keys(t0, t1, R)
        if tail:
            a('v_cmpx_gt_i32 vcc, 0, v%d' % (R + 1))
        for t in (t0, t1):
            a('ds_add_rtn_u32 v%d, v%d, v%d offset:%d' % (t, t, EIGHT, KC0))
        m = a.mark()
        if tail:
            a('s_mov_b64 exec, -1')
        H2()
        hpend.append((R, t0, t1, m))

    def keyscan(r):
        K = RT
        nds = a.nds
        a('s_cmp_lg_u32 s%d, %d' % (sW, P['scw']))
        a('s_cbranch_scc1 Lks%d' % r)
        a('v_lshlrev_b32 v%d, 6, v%d' % (RA, LANE))
        for j in range(4):
            a('ds_read_b128 %s, v%d offset:%d' % (vr(K + 4 * j, 4), RA, KC0 + 3136 * r + 16 * j))
        a('s_waitcnt lgkmcnt(0)')
        for j in range(1, 16):
            a('v_add_u32 v%d, v%d, v%d' % (K + j, K + j, K + j - 1))
        a('v_mov_b32 v%d, v%d' % (RA + 1, K + 15))
        G['scan64'](a, RA + 1)
        a('v_sub_u32 v%d, v%d, v%d' % (RA + 1, RA + 1, K + 15))
        a('v_lshl_add_u32 v%d, s%d, 2, v%d' % (RA + 1, sPc + r, RA + 1))
        a('v_cmpx_gt_u32 vcc, 49, v%d' % LANE)
        for j in range(15, -1, -1):
            if j:
                a('v_add_u32 v%d, v%d, v%d' % (K + j, K + j - 1, RA + 1))
            else:
                a('v_mov_b32 v%d, v%d' % (K, RA + 1))
            if j % 4 == 0:
                a('ds_write_b128 v%d, %s offset:%d' % (RA, vr(K + j, 4), KC0 + 3136 * r + 4 * j))
        a('s_lshl_b32 s%d, s%d, 2' % (sT, sPc + r + 1))
        a('v_mov_b32 v%d, s%d' % (RA + 1, sT))
        a('v_lshlrev_b32 v%d, 2, v%d' % (RA, LANE))
        a('s_mov_b64 exec, 0xffff')
        a('ds_write_b32 v%d, v%d offset:%d' % (RA, RA + 1, KC0 + 4 * (3136 + 16 * r)))
        a('s_mov_b64 exec, -1')
        a('Lks%d:' % r)
        a('s_nop 1')
        a.nds = nds

    def rb_reads(RT=RT, j0=0):
        mk = {}
        for j in range(4):
            a('s_add_u32 s%d, s%d, %d' % (sT, sRB, j0 + j))
            a('s_and_b32 s%d, s%d, 15' % (sT, sT))
            a('s_lshl_b32 s%d, s%d, 13' % (sT, sT))
            a('v_add_u32 v%d, s%d, v%d' % (RA + j, sT, RBA))
            a('ds_read_b64 %s, v%d offset:%d' % (vr(RT + 4 * j, 2), RA + j, RING0))
            a('ds_read_b64 %s, v%d offset:%d' % (vr(RT + 4 * j + 2, 2), RA + j, RING0 + 512))
            mk[j] = a.mark()
        return mk

    def rb_moves(mk, RT=RT):
        a('s_mul_i32 s%d, s%d, 3' % (sIX, sRB))
        a('s_set_gpr_idx_on s%d, gpr_idx(DST)' % sIX)
        for j in range(4):
            a.wait_ds(mk[j])
            a('v_mov_b32 v%d, v%d' % (S0 + 3 * j, RT + 4 * j))
            a('v_mov_b32 v%d, v%d' % (S0 + 3 * j + 1, RT + 4 * j + 2))
            a('v_perm_b32 v%d, v%d, v%d, s%d' % (S0 + 3 * j + 2, RT + 4 * j + 3, RT + 4 * j + 1, sPS))
        a('s_set_gpr_idx_off')
        a('s_add_u32 s%d, s%d, 4' % (sRB, sRB))

    def readback(tag):
        nds = a.nds
        a('s_cmp_ge_u32 s%d, s%d' % (sRB, sRE))
        a('s_cbranch_scc1 Lrd%s' % tag)
        a('Lrl%s:' % tag)
        rb_moves(rb_reads())
        a('s_cmp_lt_u32 s%d, s%d' % (sRB, sRE))
        a('s_cbranch_scc1 Lrl%s' % tag)
        a('Lrd%s:' % tag)
        a('s_mov_b32 s%d, s%d' % (sRB, sRE))
        a.nds = nds

    def warm(j):
        if P['warm']:
            a('s_mov_b32 s%d, %d' % (sT, j * 51200 * 128))
            a('buffer_load_dword v%d, v%d, %s, s%d offen' % (WD, WA, sr(S_MR, 4), sT))

    def l2pf(j):
        if j * 16384 >= P['pfn']:
            return
        if j == 0:
            a('s_lshr_b32 s%d, s2, 3' % sT)
            a('s_lshl_b32 s%d, s%d, 9' % (sT, sT))
            a('v_add_lshl_u32 v%d, v0, s%d, 7' % (WA, sT))
            a('s_mov_b32 s%d, %d' % (S_MR + 2, P['pfn'] * 128))
        a('s_mov_b32 s%d, %d' % (sT, j * 16384 * 128))
        a('buffer_load_dword v%d, v%d, %s, s%d offen' % (WD, WA, sr(S_MR, 4), sT))

    def dist_loads():
        a('v_lshlrev_b32 v%d, 1, v0' % (RA + 2))
        for q in range(NQ):
            a('s_movk_i32 s%d, %d' % (sT, q * 1024))
            a('buffer_load_ushort v%d, v%d, %s, s%d offen' % (DI[q], RA + 2, sr(S_DIST, 4), sT))
        return a.mark()

    def rbf_batch(q):
        K = RT
        a('v_lshlrev_b32 v%d, 16, v%d' % (K + 8, DI[q]))
        a('v_mul_f32 v%d, s%d, v%d' % (K + 8, sR, K + 8))
        for r in range(8):
            a('v_subrev_f32 v%d, s%d, v%d' % (K + r, sCEN + r, K + 8))
        for r in range(8):
            a('v_mul_f32 v%d, v%d, v%d' % (K + r, K + r, K + r))
        for r in range(8):
            a('v_exp_f32 v%d, -v%d' % (K + r, K + r))
        for r in range(4):
            a('v_cvt_pk_f16_f32 v%d, v%d, v%d' % (RO + 4 * q + r, K + 2 * r, K + 2 * r + 1))

    NP_ = P['npipe']

    def guarded(r, body):
        n = lab[0]
        lab[0] += 1
        nds, nvm = a.nds, a.nvm
        for k in range(NP_, NSL):
            a('s_cmp_le_u32 s%d, %d' % (sEW + r, 64 * k))
            a('s_cbranch_scc1 Lg%d' % n)
            body(NSL * r + k)
        a('Lg%d:' % n)
        a('s_nop 3')
        a.nds, a.nvm = nds, nvm

    def U(x):
        return NSL * (x // NP_) + x % NP_

    def Cx(x):
        C(U(x))

    def Dx(x):
        if x >= 4 * NP_:
            return
        if hk and x == NP_ * P['nrun'] - 3:
            mM['p'] = done_load()
        if hk and x == NP_ * P['nrun']:
            stamp(14)
            done_wait(mM['p'])
            stamp(15)
        Dd(U(x))

    def loadstep(x):
        def first():
            if (x + 1) % NP_:
                Cx(x + 1)

        def second():
            Dx(x)
            if (x + 1) % NP_ == 0 and x < 4 * NP_:
                r = x // NP_

                def body(u):
                    C(u)
                    Dd(u)
                guarded(r, body)
                for k in range(NP_, NSL):
                    mV[NSL * r + k] = a.mark()
                if r < 3:
                    Cx(x + 1)
        return first, second

    def Hx(x):
        H(U(x))
        if (x + 1) % NP_ == 0:
            H2()
            guarded(x // NP_, lambda u: (H(u), H2()))

    Mrd(0)
    Mrd(2)
    a('s_mov_b32 s%d, 0' % sRB)
    lag = P['dv']
    C(0)
    for i in range(NP_ + lag):
        f1, f2 = loadstep(i)
        f1()
        f2()
        if hk and P['lt0'] <= i < P['lt0'] + len(late):
            mS = late[i - P['lt0']]()
        if i >= lag:
            Hx(i - lag)
    if hk and late:
        a.wait_vm(mS)
        hk.arrive2(0, VT, hk.arrive1(0, VT))
    a('s_waitcnt lgkmcnt(0)')
    a('s_barrier')
    keyscan(0)
    lead0 = P['lead0']
    for i in range(NP_ + lag, NP_ + lead0):
        f1, f2 = loadstep(i)
        f1()
        f2()
    a('s_waitcnt lgkmcnt(0)')
    a('s_barrier')
    nxt = NP_ + max(lag, lead0)
    for r in range(4):
        stamp(2 + r)
        u0 = NSL * r
        hq = list(range(NP_ * (r + 1), NP_ * (r + 2))) if r < 3 else []
        if r:
            a('s_lshr_b32 s%d, s%d, 10' % (sRE, sPc + r))
            for g in range(3):
                mk = rb_reads()
                if hq:
                    Hx(hq.pop(0))
                rb_moves(mk)
            readback(str(r))
        while r and len(hq) > NP_ - HP:
            Hx(hq.pop(0))
        for k in range(NA - 1):
            A(u0 + k)
        if r == P['fr']:
            stamp(11)
        if r:
            a('s_barrier')
        if r == P['fr']:
            stamp(12)
        pend = None
        for i in range(NP_):
            f1, f2 = loadstep(nxt)
            f1()
            if i + NA - 1 < NP_:
                A(u0 + i + NA - 1)
            B(u0 + i)
            assert nxt < NP_ * (r + 2) or nxt - NP_ * (r + 2) <= i
            f2()
            nxt += 1
            if nxt < NP_ * (r + 1) + LEAD + i + 1:
                f1, f2 = loadstep(nxt)
                f1()
                f2()
                nxt += 1
            nh = 2 if (len(hq) > max(1, NP_ - HP - i) and U(hq[1]) in mV and hq[1] + 4 <= nxt) else 1
            for _ in range(nh):
                if hq:
                    Hx(hq.pop(0))
                    if not hq:
                        pend = (i + P['bhd'], a.mark())
                        if r == 2:
                            mD = dist_loads()
            if pend and pend[0] == i:
                a.wait_ds(pend[1])
                if r == P['fr']:
                    stamp(13)
                a('s_barrier')
                keyscan(r + 1)
                if r == P['fr']:
                    stamp(14)
            for j in range(4):
                if P['wpos'][j] == 'abcdefghijklmnopqrstuvwxyzABCDEFGH'[(r - 2) * NP_ + i] and r >= 2:
                    warm(j)
            for j in range(2):
                if P['ppos'][j] == 'abcdefghijklmnopqrstuvwxyzABCDEFGH'[(r - 2) * NP_ + i] and r >= 2:
                    l2pf(j)
            if r == 3 and i == 6:
                if not P['imgl']:
                    img_load(0, 5, AG, RA)
                a.wait_vm(mD)
            if r == 3 and 7 <= i < 7 + NQ - 1:
                rbf_batch(i - 7)

        def body(u):
            A(u)
            B(u)
        guarded(r, body)
        if r == 3:
            a('s_cmp_lg_u32 s%d, 0' % sW)
            a('s_cbranch_scc1 Lk2_r6')
            rbf_batch(NQ - 1)
            a('Lk2_r6:')
        a('s_waitcnt lgkmcnt(0)')
        if r == P['fr']:
            stamp(15)
        a('s_barrier')
    stamp(6)
    a('s_add_u32 s%d, s%d, 1023' % (sRE, sPc + 4))
    a('s_lshr_b32 s%d, s%d, 10' % (sRE, sRE))
    if P['fpipe']:
        RT2 = 164
        a('s_cmp_gt_u32 s%d, 41' % sRB)
        a('s_cbranch_scc1 Lk2_f0')
        m0 = rb_reads(RT)
        m1 = rb_reads(RT2, 4)
        rb_moves(m0, RT)
        m0 = rb_reads(RT, 4)
        rb_moves(m1, RT2)
        rb_moves(m0, RT)
        a('Lk2_f0:')
    readback('L')
    a('s_max_u32 s%d, s%d, 1' % (sRB, sRB))
    a('s_sub_u32 s%d, s%d, 1' % (sRB, sRB))
    a('s_mul_i32 s%d, s%d, 3' % (sEND, sRB))
    a('s_lshl_b32 s%d, s%d, 10' % (sT, sRB))
    a('s_sub_u32 s%d, s%d, s%d' % (sT, sPc + 4, sT))
    a('v_lshrrev_b32 v%d, 3, v%d' % (TM, RBA))
    a('v_add_u32 v%d, 64, v%d' % (TM + 1, TM))
    a('v_cmp_gt_u32 %s, s%d, v%d' % (sr(sLM, 2), sT, TM))
    a('v_cmp_gt_u32 %s, s%d, v%d' % (sr(sLM + 2, 2), sT, TM + 1))
    a('s_set_gpr_idx_on s%d, gpr_idx(SRC1,DST)' % sEND)
    a('s_andn2_b64 exec, -1, %s' % sr(sLM + 2, 2))
    a('v_mov_b32 v%d, 0' % (S0 + 1))
    a('v_and_b32 v%d, 0xffff, v%d' % (S0 + 2, S0 + 2))
    a('s_andn2_b64 exec, -1, %s' % sr(sLM, 2))
    a('v_mov_b32 v%d, 0' % S0)
    a('v_mov_b32 v%d, 0' % (S0 + 2))
    a('s_mov_b64 exec, -1')
    a('s_set_gpr_idx_off')
    a('s_mov_b32 s%d, 0' % sIX)
    if P['lf']:
        a('s_mov_b32 s%d, 0' % sI1)
        a('s_mov_b32 s%d, s%d' % (sLB, sRB))
        a('s_bitcmp1_b32 s2, %d' % P['lfb'])
        if P['lfm'] == 0:
            a('s_cselect_b32 s%d, %d, 0' % (sOF, P['lf']))
            a('s_mov_b32 s75, %d' % P['lf'])
        else:
            a('s_cselect_b32 s75, %d, 0' % P['lf'])
            a('s_mov_b32 s%d, 0' % sOF)
        next_block()
    a('Lk2_init:')
    a('s_barrier')
    for i in range(4):
        a('v_mov_b32 v%d, 0' % (ZR + i))
    a('v_lshlrev_b32 v%d, 4, v0' % A4)
    a('v_add_u32 v%d, %d, v%d' % (A4B, HI0, A4))
    a('v_add_u32 v%d, %d, v%d' % (CV, RBF0, A4))
    for q in range(NQ - 1):
        a('ds_write_b128 v%d, %s offset:%d' % (CV, vr(RO + 4 * q, 4), 8192 * q))
    a('s_mov_b64 exec, %s' % sr(sV6, 2))
    a('ds_write_b128 v%d, %s offset:%d' % (CV, vr(RO + 4 * NQ - 4, 4), 8192 * (NQ - 1)))
    a('s_mov_b64 exec, -1')
    a('s_cmp_lg_u32 s%d, 0' % sMODE)
    a('s_cbranch_scc1 Lk2_ng')
    if P['imgl']:
        img_load(0, 5, AG, TM)
    decode_rel(0, 0)
    gathers(0)
    decode_rel(1, 0)
    gathers(1)
    a('Lk2_ng:')
    if P['ztid']:
        a('s_lshl_b32 m0, s%d, 8' % sW)
        a('s_nop 0')
        for o in list(range(0, RBF0 - 2048, 2048)) + [RBF0 - 2048]:
            a('ds_write_addtid_b32 v%d offset:%d' % (ZR, o))
    for o in (list(range(0, RBF0 - 8192, 8192)) + [RBF0 - 8192]) * (not P['ztid']):
        a('ds_write_b128 v%d, %s offset:%d' % (A4, vr(ZR, 4), o))
    for o in list(range(0, 4 * PL - 8192, 8192)) + [4 * PL - 8192]:
        a('ds_write_b128 v%d, %s offset:%d' % (A4B, vr(ZR, 4), o))
    a('v_mov_b32 v%d, 0' % STK)
    a('v_mov_b32 v%d, 0' % RTN[0])
    a('v_mov_b32 v%d, 0' % RTN[1])
    a('v_mov_b32 v%d, 0x1000000' % CK)
    a('v_and_b32 v255, 0x1df, v0')
    a('v_lshl_add_u32 v255, v255, 5, v%d' % (IA + 1))
    a('s_waitcnt lgkmcnt(0)')
    a('s_barrier')
    stamp(7, True)
    a('s_cmp_lg_u32 s%d, 0' % sMODE)
    a('s_cbranch_scc1 Lk2_all')
    a('ds_read_b128 %s, v%d offset:%d' % (vr(RBF, 4), A16[0], RBF0))
    if P['s2']:
        a('v_mov_b32 v%d, v%d' % (TM, ANG[0]))
        for t in cos2():
            a(t)
        a('s_mov_b32 s%d, s%d' % (sCX, sDX))
        next_block()
        a('s_waitcnt vmcnt(4)')
    a('s_waitcnt lgkmcnt(0)')
    MQ, AU, AR, OA = 4, 60, 68, 255
    WW, RBB, CNN = (132, 96), (140, 104), (144, 108)
    R16, T1, T2, T3, T4 = 92, 112, 113, 114, 115
    MF, AI, KB = 116, 72, 80
    sTRG = 89

    def epi_loads():
        img_load(5, 3, AU, 2)
        for q in range(NQ):
            a('s_mov_b32 s%d, %d' % (sT, q * 16384))
            a('buffer_load_dwordx4 %s, v%d, %s, s%d offen' % (vr(MQ + 8 * q, 4), OA, sr(S_MO, 4), sT))
            a('buffer_load_dwordx4 %s, v%d, %s, s%d offen offset:1024' % (vr(MQ + 8 * q + 4, 4), OA, sr(S_MO, 4), sT))
        T1, T2, T3, T4 = 2, 3, 82, 83
        a('v_mov_b32 v%d, 0' % KB)
        a('v_mov_b32 v%d, 0x%x' % (KB + 1, (-0x10001) & 0xffffffff))
        a('v_bfe_u32 v%d, v0, 2, 1' % T1)
        a('v_bfe_u32 v%d, v0, 5, 1' % T2)
        a('v_and_b32 v%d, 1, v0' % T3)
        a('v_lshlrev_b32 v%d, 4, v%d' % (T3, T3))
        a('v_mov_b32 v%d, 0x3f80' % T4)
        a('v_lshlrev_b32 v%d, v%d, v%d' % (T3, T3, T4))
        a('v_bfe_u32 v%d, v0, 3, 2' % T4)
        a('v_xor_b32 v%d, v%d, v%d' % (T1, T1, T2))
        a('v_bfe_u32 v%d, v0, 1, 1' % T2)
        a('v_lshl_or_b32 v%d, v%d, 1, v%d' % (T4, T4, T2))
        a('v_lshl_or_b32 v%d, v%d, 3, v%d' % (T4, T1, T4))
        for i in range(8):
            a('v_mov_b32 v%d, 0' % (AI + i))
            a('v_cmpx_eq_u32 vcc, %d, v%d' % (i, T4))
            a('v_mov_b32 v%d, v%d' % (AI + i, T3))
            a('s_mov_b64 exec, -1')
        if P['epf']:
            G['code_prefetch'](a, 'e%d' % lab[0], 98, 2, 256, 'Lk2_epi', 'Lk2_e6')
            lab[0] += 1

    a('s_mul_i32 s%d, s%d, 49' % (sTRG, sBIN))
    a('s_lshr_b32 s%d, s%d, 8' % (sTRG, sTRG))
    a('s_add_u32 s%d, s%d, %d' % (sTRG, sTRG, P['trg']))
    a('s_and_b32 s%d, s%d, 15' % (sT, sBIN))
    a('s_add_u32 s%d, s%d, %d' % (sT, sT, 28 + P['lf'] + P['s2']))
    a('s_cmp_lt_u32 s%d, %d' % (sTRG, 28 + P['lf'] + P['s2']))
    a('s_cselect_b32 s%d, s%d, s%d' % (sTRG, sT, sTRG))
    a('s_mul_i32 s%d, s%d, 3' % (sTRG, sTRG))
    a('s_min_u32 s%d, s%d, s%d' % (sTRG, sTRG, sEND))
    assert 4 * 8 * (128 * P['nfull'] - 64) > 32 * 1024
    if '1' in P['wpos']:
        a('s_mov_b32 s90, %d' % (3 * P['mw1']))
        a('s_mov_b32 s91, %d' % (P['wpos'].index('1') * 51200 * 128))
        a('v_mov_b32 v155, v%d' % WA)
    if P['mpf']:
        per = P['mpp']
        a('s_lshr_b32 s%d, s2, 3' % sT)
        a('s_and_b32 s90, s%d, %d' % (sT, per - 1))
        a('s_add_u32 s90, s90, 1')
        a('s_lshr_b32 s%d, s%d, %d' % (sT, sT, per.bit_length() - 1))
        a('s_mul_i32 s%d, s%d, %d' % (sT, sT, 128 * per * 128))
        a('s_add_u32 s91, s90, %d' % P['mpf'])
        a('s_lshl_b32 s91, s91, 19')
        a('s_add_u32 s91, s91, s%d' % sT)
        a('s_mul_i32 s90, s90, 3')
    if P['prio']:
        a('s_cmp_lt_u32 s%d, 4' % sW)
        a('s_cbranch_scc1 Lk2_np')
        a('s_setprio 1')
        a('Lk2_np:')
    a.raw('.p2align 6')
    a('Lk2_loop:')
    a('s_cmp_eq_u32 s%d, s%d' % (sIX, sTRG))
    a('s_cbranch_scc1 Lk2_el')
    a('Lk2_lc:')
    if P['lf'] and not P['s2']:
        next_block()
    if P['mpf']:
        a('s_cmp_eq_u32 s%d, s90' % sIX)
        a('s_cbranch_scc1 Lk2_pl')
        a('Lk2_pc:')
    if '1' in P['wpos']:
        a('s_cmp_eq_u32 s%d, s90' % sIX)
        a('s_cbranch_scc1 Lk2_wl')
        a('Lk2_wc:')
    if P['s2']:
        step = step2
    step(0)
    if P['stag'] == 2:
        halfbar(0)
    step(1)
    if P['stag']:
        halfbar(0)
    elif P['mbar'] == 1:
        a('s_barrier')
    elif P['mbar']:
        a('s_and_b32 s%d, s%d, %d' % (sT, sIX, P['mbar'] - 1))
        a('s_cbranch_scc1 Lk2_nb')
        a('s_barrier')
        a('Lk2_nb:')
    a('s_add_u32 s%d, s%d, 3' % (sIX, sIX))
    a('s_cmp_le_u32 s%d, s%d' % (sIX, sEND))
    a('s_cbranch_scc1 Lk2_loop')
    stamp(8, True)
    a('s_mov_b32 s%d, 0' % sPASS)
    for i in range(NQ):
        a('s_mov_b64 %s, 0' % sr(sFL + 2 * i, 2))
        a('s_mov_b64 %s, 0' % sr(sSK + 2 * i, 2))
    a('Lk2_epi:')
    a('v_lshlrev_b32 v%d, 3, v0' % A4)
    a('v_lshlrev_b32 v%d, 2, v0' % AC)
    a('v_add_u32 v%d, %d, v%d' % (A4B, HI0, A4))
    a('v_lshlrev_b32 v%d, 4, v0' % R16)
    a('s_waitcnt vmcnt(4) lgkmcnt(0)')
    a('v_or3_b32 v%d, v%d, v%d, v%d' % (STK, STK, RTN[0], RTN[1]))
    a('s_barrier')
    mk = {}

    def e_read(q):
        W, RB, CN = WW[q & 1], RBB[q & 1], CNN[q & 1]
        if q == NQ - 1:
            for i in range(4):
                a('v_mov_b32 v%d, 0' % (RB + i))
            for i in range(8):
                a('v_mov_b32 v%d, 0' % (W + i))
            a('v_mov_b32 v%d, 0' % CN)
            a('s_mov_b64 exec, %s' % sr(sV6, 2))
        a('ds_read_b32 v%d, v%d offset:%d' % (CN, AC, CNT0 + 2048 * q))
        mk[q, -1] = a.mark()
        for j in range(4):
            b, o = plane(j)
            a('ds_read_b64 %s, v%d offset:%d' % (vr(W + 2 * j, 2), b, o + 4096 * q))
            mk[q, j] = a.mark()
        a('ds_read_b128 %s, v%d offset:%d' % (vr(RB, 4), R16, RBF0))
        mk[q, 8] = a.mark()
        if q == NQ - 1:
            a('s_mov_b64 exec, -1')
        else:
            a('v_add_u32 v%d, 8192, v%d' % (R16, R16))

    def e_decode(q, mf=()):
        mf = list(mf)
        if mf:
            a(mf.pop(0))
        W, CN = WW[q & 1], CNN[q & 1]
        a.wait_ds(mk[q, -1 if q == 0 else 8])
        a('v_lshrrev_b32 v%d, 24, v%d' % (CN + 1, CN))
        a('v_and_b32 v%d, 0xffffff, v%d' % (CN, CN))
        a('v_sub_u32 v%d, 0x20001, v%d' % (T1, CN + 1))
        a('v_mad_u64_u32 %s, vcc, v%d, s%d, %s' % (vr(CN + 2, 2), T1, sM1, vr(KB, 2)))
        a('v_cmp_lt_u32 vcc, 127, v%d' % (CN + 1))
        a('v_mul_u32_u24 v%d, %d, v%d' % (CN + 1, P['theta'], CN + 1))
        a('s_or_b64 %s, %s, vcc' % (sr(sFL + 2 * q, 2), sr(sFL + 2 * q, 2)))
        a('v_cmp_lt_u32 vcc, 0x7ffe, v%d' % CN)
        a('v_add_u32 v%d, v%d, v%d' % (CN + 3, CN + 3, CN + 2))
        a('s_or_b64 %s, %s, vcc' % (sr(sFL + 2 * q, 2), sr(sFL + 2 * q, 2)))
        a('v_cmp_lt_u32 vcc, v%d, v%d' % (CN, CN + 1))
        a('s_or_b64 %s, %s, vcc' % (sr(sFL + 2 * q, 2), sr(sFL + 2 * q, 2)))
        for j in range(4):
            if mf:
                a(mf.pop(0))
            a('s_andn2_b64 exec, -1, %s' % sr(sSK + 2 * q, 2))
            if q == 0:
                a.wait_ds(mk[q, j])
            a('v_lshl_add_u64 %s, %s, 0, %s' % (vr(W + 2 * j, 2), vr(W + 2 * j, 2), vr(CN + 2, 2)))
            for e in range(2):
                a('v_xor_b32 v%d, s%d, v%d' % (W + 2 * j + e, sM1, W + 2 * j + e))
            for e in range(2):
                w = W + 2 * j + e
                a('v_cvt_f32_i32_sdwa v%d, sext(v%d) dst_sel:DWORD dst_unused:UNUSED_PAD src0_sel:WORD_1' % (CN + e, w))
                a('v_cvt_f32_i32_sdwa v%d, sext(v%d) dst_sel:DWORD dst_unused:UNUSED_PAD src0_sel:WORD_0' % (w, w))
            for e in range(2):
                a('v_cvt_pk_bf16_f32 v%d, v%d, v%d' % (W + 2 * j + e, W + 2 * j + e, CN + e))
            a('s_mov_b64 exec, -1')
        if q == 0:
            a.wait_ds(mk[q, 8])

    def e_mfma(q):
        W, RB = WW[q & 1], RBB[q & 1]
        r = []
        r.append('v_mfma_f32_32x32x16_bf16 %s, %s, %s, 0' % (vr(MF, 16), vr(AI, 4), vr(MQ + 8 * q, 4)))
        r.append('v_mfma_f32_32x32x16_bf16 %s, %s, %s, %s' % (vr(MF, 16), vr(AI + 4, 4), vr(MQ + 8 * q + 4, 4), vr(MF, 16)))
        r.append('v_mfma_f32_32x32x16_f16 %s, %s, %s, 0' % (vr(GATE, 16), vr(AR, 4), vr(RB, 4)))
        r.append('v_mfma_f32_32x32x16_bf16 %s, %s, %s, 0' % (vr(MD, 16), vr(AU, 4), vr(W, 4)))
        r.append('v_mfma_f32_32x32x16_bf16 %s, %s, %s, %s' % (vr(MD, 16), vr(AU + 4, 4), vr(W + 4, 4), vr(MD, 16)))
        return r

    def e_out(q):
        a('s_mov_b32 s%d, %d' % (sT, q * 16384))
        for j in range(8):
            m = MQ + 8 * q + j
            ta, tb = MF + 2 * j, MF + 2 * j + 1
            a('v_fmac_f32 v%d, v%d, v%d' % (ta, MD + 2 * j, GATE + 2 * j))
            a('v_fmac_f32 v%d, v%d, v%d' % (tb, MD + 2 * j + 1, GATE + 2 * j + 1))
            a('v_cvt_pk_bf16_f32 v%d, v%d, v%d' % (m, ta, tb))
            if j == 3:
                a('buffer_store_dwordx4 %s, v%d, %s, s%d offen %s' % (vr(MQ + 8 * q, 4), OA, sr(S_OUT, 4), sT, P['stout']))
        a('buffer_store_dwordx4 %s, v%d, %s, s%d offen offset:1024 %s' % (vr(MQ + 8 * q + 4, 4), OA, sr(S_OUT, 4), sT, P['stout']))

    e_read(0)
    e_read(1)
    e_decode(0)
    for q in range(NQ - 1):
        if q + 1 < NQ - 1:
            e_decode(q + 1, e_mfma(q))
        else:
            for t in e_mfma(q):
                a(t)
        if q + 2 < NQ:
            e_read(q + 2)
        e_out(q)
    a('s_cmp_lg_u32 s%d, 0' % sW)
    a('s_cbranch_scc1 Lk2_e6')
    e_decode(NQ - 1)
    for t in e_mfma(NQ - 1):
        a(t)
    e_out(NQ - 1)
    a('Lk2_e6:')
    stamp(9, True)
    if P['stamp']:
        a('s_waitcnt vmcnt(0)')
        stamp(10, True)
    if P['abl']:
        a('s_branch Lk2_end')
    a('s_cmp_lg_u32 s%d, 0' % sPASS)
    a('s_cbranch_scc1 Lk2_end')
    a('s_or_b64 %s, %s, %s' % (sr(sMK, 2), sr(sFL, 2), sr(sFL + 2, 2)))
    for q in range(2, NQ):
        a('s_or_b64 %s, %s, %s' % (sr(sMK, 2), sr(sMK, 2), sr(sFL + 2 * q, 2)))
    a('s_cselect_b32 s%d, 1, %d' % (sT, P['force_slow'] & 3))
    a('v_cmp_gt_i32 vcc, 0, v%d' % STK)
    a('s_cmp_lg_u64 vcc, 0')
    a('s_cselect_b32 s%d, 3, s%d' % (sT, sT))
    a('v_mov_b32 v2, s%d' % sT)
    a('s_lshl_b32 s%d, s%d, 2' % (sT, sW))
    a('s_add_u32 s%d, s%d, %d' % (sT, sT, SCR))
    a('v_mov_b32 v3, s%d' % sT)
    a('ds_write_b32 v3, v2')
    a('v_and_b32 v2, 7, v0')
    a('v_lshlrev_b32 v2, 2, v2')
    a('v_add_u32 v2, %d, v2' % SCR)
    a('s_waitcnt lgkmcnt(0)')
    a('s_barrier')
    a('ds_read_b32 v3, v2')
    a('s_waitcnt lgkmcnt(0)')
    a('v_cmp_ne_u32 vcc, 0, v3')
    a('s_cmp_eq_u64 vcc, 0')
    a('s_cbranch_scc1 Lk2_end')
    a('v_cmp_lt_u32 vcc, 1, v3')
    a('s_cmp_lg_u64 vcc, 0')
    a('Lk2_all:')
    for q in range(NQ):
        a('s_cselect_b64 %s, -1, %s' % (sr(sSK + 2 * q, 2), sr(sFL + 2 * q, 2)))
    a('s_and_b64 %s, %s, %s' % (sr(sSK + 2 * NQ - 2, 2), sr(sSK + 2 * NQ - 2, 2), sr(sV6, 2)))
    a('s_waitcnt vmcnt(0)')
    VD, VE, REC, ADDR, F12 = 4, 8, 12, 16, 17
    desc_load(VD, 18)
    a('v_lshlrev_b32 v%d, 3, v0' % A4)
    a('v_lshlrev_b32 v%d, 2, v0' % AC)
    a('v_add_u32 v%d, %d, v%d' % (A4B, HI0, A4))
    a('v_mov_b32 v2, 0')
    a('v_mov_b32 v3, 0')
    a('v_mov_b32 v19, -1')
    for q in range(NQ):
        a('s_mov_b64 exec, %s' % sr(sSK + 2 * q, 2))
        a('ds_write_b32 v%d, v19 offset:%d' % (AC, CNT0 + 2048 * q))
        for j in range(4):
            b, o = plane(j)
            a('ds_write_b64 v%d, v[2:3] offset:%d' % (b, o + 4096 * q))
        a('s_mov_b64 exec, -1')
        a('s_waitcnt lgkmcnt(0)')
    a('s_barrier')
    a('s_movk_i32 s%d, %d' % (sT, REC0 // 12))
    a('v_mov_b32 v%d, %d' % (F12, TSP))
    a('v_mad_u32_u24 v%d, v0, v%d, s%d' % (F12, F12, sT))
    a('s_waitcnt vmcnt(0)')
    for k in range(4):
        a('v_and_b32 v%d, 0x7fffffff, v%d' % (VD + k, VD + k))
        a('v_add_u32 v%d, 0x10000, v%d' % (VE + k, VD + k))
        a('v_and_b32 v%d, 0xffff, v%d' % (VD + k, VD + k))
        a('v_lshrrev_b32 v%d, 17, v%d' % (VE + k, VE + k))
    scan4(VE)
    for k in range(4):
        if k:
            a('v_add_u32 v%d, s%d, v%d' % (VE + k, sNT, VE + k))
        a('v_add_u32 v%d, v%d, v%d' % (VD + k, VD + k, F12))
        a('v_readlane_b32 s%d, v%d, 63' % (sNT, VE + k))
        a('v_sub_u32 v%d, v%d, v%d' % (VD + k, VD + k, VE + k))
        a('v_mul_lo_u32 v%d, v%d, 12' % (VD + k, VD + k))
    a('v_mul_u32_u24 v%d, 12, v%d' % (F12, LANE))
    a('s_mov_b32 s%d, 0' % sF)
    a('s_mov_b32 s%d, 0' % sE)
    a('s_mov_b32 s%d, 0' % sDL)
    a('s_movk_i32 s%d, -64' % sI)
    a('Lk2_sl:')
    a('s_cmp_ge_u32 s%d, s%d' % (sF, sNT))
    a('s_cbranch_scc1 Lk2_sd')
    a('v_add_u32 v%d, s%d, v%d' % (ADDR, sDL, F12))
    a('s_sub_u32 s%d, s%d, s%d' % (sP, sE, sF))
    a('s_cmp_ge_u32 s%d, 64' % sP)
    a('s_cbranch_scc1 Lfd')
    a('Lfl:')
    a('v_readlane_b32 s%d, v%d, s%d' % (sDL, VD, sI))
    a('v_readlane_b32 s%d, v%d, s%d' % (sE, VE, sI))
    a('s_add_u32 s%d, s%d, 1' % (sI, sI))
    a('s_cbranch_scc0 Lfc')
    a('s_mov_b64 exec, -1')
    for k in range(3):
        a('v_mov_b32 v%d, v%d' % (VE + k, VE + k + 1))
        a('v_mov_b32 v%d, v%d' % (VD + k, VD + k + 1))
    a('v_mov_b32 v%d, -1' % (VE + 3))
    a('v_bfrev_b32 v%d, 1' % (VD + 3))
    a('s_movk_i32 s%d, -64' % sI)
    a('Lfc:')
    a('s_lshl_b64 exec, -1, s%d' % sP)
    a('v_add_u32 v%d, s%d, v%d' % (ADDR, sDL, F12))
    a('s_sub_u32 s%d, s%d, s%d' % (sP, sE, sF))
    a('s_cmp_lt_u32 s%d, 64' % sP)
    a('s_cbranch_scc1 Lfl')
    a('s_mov_b64 exec, -1')
    a('Lfd:')
    a('s_add_u32 s%d, s%d, 64' % (sF, sF))
    a('v_add_u32 v%d, 768, v%d' % (F12, F12))
    a('buffer_load_dwordx3 %s, v%d, %s, 0 offen %s' % (vr(REC, 3), ADDR, sr(S_WS, 4), HO))
    a('s_mov_b32 s%d, 0' % sSUB)
    a('s_waitcnt vmcnt(0)')
    a('Lk2_s2:')
    a('v_cmp_gt_i32 %s, 0, v%d' % (sr(sMK, 2), REC + 1))
    a('v_ashrrev_i32 v%d, 31, v%d' % (TM, REC + 1))
    a('v_and_b32 v%d, v%d, v%d' % (REC, REC, TM))
    a('v_and_b32 v%d, s%d, v%d' % (IA, sIDM, REC))
    a('v_and_b32 v%d, s%d, v%d' % (IB, sIDM, REC))
    a('v_lshrrev_b32 v%d, 16, v%d' % (A16[0], REC))
    a('v_and_b32 v%d, s%d, v%d' % (A16[0], sA16, A16[0]))
    a('v_and_b32 v%d, s%d, v%d' % (ANG[0], sHI, REC + 1))
    a('v_permlane32_swap_b32 v%d, v%d' % (IA, IB))
    addrs(0)
    a('ds_read_b32 v%d, v%d offset:%d' % (CV, AC, CNT0))
    a('ds_read_b128 %s, v%d offset:%d' % (vr(RBF, 4), A16[0], RBF0))
    a('s_waitcnt lgkmcnt(0)')
    a('v_cmp_gt_i32 vcc, 0, v%d' % CV)
    a('s_and_b64 %s, %s, vcc' % (sr(sMK, 2), sr(sMK, 2)))
    a('s_cbranch_scc0 Lk2_s3')
    gathers(0)
    cosines(0)
    for l in range(3):
        sbf(l)
        gmf(l)
    a('s_waitcnt vmcnt(0)')
    mdown(0)
    for d in range(16):
        a('v_mul_f32 v%d, 0x47800000, v%d' % (GATE + d, GATE + d))
        a('v_mul_f32 v%d, v%d, v%d' % (MD + d, MD + d, GATE + d))
    a('s_mov_b64 exec, %s' % sr(sMK, 2))
    for j in range(8):
        a('v_cvt_pk_bf16_f32 v%d, v%d, v%d' % (MD + 2 * j, MD + 2 * j, MD + 2 * j + 1))
        b, o = plane(j >> 1)
        a('ds_pk_add_bf16 v%d, v%d offset:%d' % (b, MD + 2 * j, o + 4 * (j & 1)))
    a('s_mov_b64 exec, -1')
    a('Lk2_s3:')
    a('v_mov_b32 v%d, v%d' % (REC, REC + 2))
    a('v_lshlrev_b32 v%d, 16, v%d' % (REC + 1, REC + 1))
    a('s_xor_b32 s%d, s%d, 1' % (sSUB, sSUB))
    a('s_cbranch_scc1 Lk2_s2')
    a('s_branch Lk2_sl')
    a.fence()
    a('Lk2_sd:')
    a('s_mov_b32 s%d, 1' % sPASS)
    epi_loads()
    a('s_waitcnt vmcnt(0)')
    a('s_branch Lk2_epi')
    a.fence()
    a('Lk2_fb:')
    a('s_mov_b32 s%d, 1' % sMODE)
    if hk:
        if late:
            for f in late:
                f()
            a('s_waitcnt vmcnt(0)')
            hk.arrive2(0, VT, hk.arrive1(0, VT))
        done_wait(done_load())
    dist_loads()
    img_load(0, 5, AG, RA)
    a('s_waitcnt vmcnt(0)')
    for q in range(NQ):
        rbf_batch(q)
    a('s_branch Lk2_init')
    a.fence()
    if '1' in P['wpos']:
        a('Lk2_wl:')
        a('buffer_load_dword v2, v155, %s, s91 offen' % sr(S_MR, 4))
        a('s_add_u32 s90, s90, %d' % (3 * P['mw2']))
        a('s_add_u32 s91, s91, %d' % (51200 * 128))
        a('s_cmp_ge_u32 s91, %d' % (4 * 51200 * 128))
        a('s_cselect_b32 s90, -1, s90')
        a('s_branch Lk2_wc')
        a.fence()
    if P['mpf']:
        a('Lk2_pl:')
        per = P['mpp']
        if per == 2:
            a('v_and_b32 v3, 31, v0')
            a('v_lshl_add_u32 v3, s%d, 5, v3' % sW)
            a('v_lshlrev_b32 v3, 7, v3')
        else:
            a('v_lshlrev_b32 v3, 7, v0')
        if per == 8:
            a('s_add_u32 s%d, s91, 65536' % sT)
            a('buffer_load_dword v%d, v3, %s, s%d offen' % (72, sr(S_MR, 4), sT))
        a('buffer_load_dword v3, v3, %s, s91 offen' % sr(S_MR, 4))
        a('s_add_u32 s90, s90, %d' % (3 * per))
        a('s_add_u32 s91, s91, %d' % (per << 19))
        a('s_branch Lk2_pc')
        a.fence()
    a('Lk2_el:')
    epi_loads()
    a('s_branch Lk2_lc')
    a.fence()
    a('Lk2_end:')
    a('s_endpgm')
    a.fence()
    return LDS
```

```python
import sys, math, struct
from asmlib import Asm

NAME = 'gather_scatter__molecular_angular_gemnet__graph'
E, T = 800000, 12800000
BINE = 3125
TS = 158976
TSP = TS // 12
REC0 = 12288
DESC0 = 0x4F00000
PREP0 = 0x5200000
FLG0 = 0x5300000
WS_BYTES = 268435456

P = dict(ld1='nt', st1='', ldrec='', stout='nt', target=165.0, theta=64, bar=16, stamp=0, force_slow=0, abl=0, idm=0xfffff, goff=0, lg=0, smaj=1, kl=0, kalt=0, rsp=1, k1m=0, k1x=0, k1pr=0, ilv=1, nog=0, s2=1, bpos=1, cs1=2, cs2=7, lf=1, lfb=3, lfm=0, tw=0, epf=0, fpipe=0, ztid=0, spf=44, ns0=6, nrun=1, nlate=0, lt0=0, mpf=0, mpp=4, atj=11, nae=20, nsx=2, slp=16, sg0=0, fuse=0, p8=0, pld=4, sch8='.L.LP.LP.LP.LP.LP.LP.LP.LP.P.P.P', fr=9, na=2, bhd=1, sch='.L.L.L.L.LP.P.P.P', early=1, stag=1, stb_=1, mw1=1, mw2=8, k1w=0, k1p=1, imgl=1, pfn=0, ppos='uz', sta='sc1', stb='sc1', nfull=10, wpos='kosw', lead=9, lead0=6, npipe=13, hp=4, scw=3, trg=2, prio=0, cpf=1, dv=4, warm=1, mbar=1, sdwa=1, npre=4, only1=0, stw=0, k2x=0, rd2=1, l2x=0, recm=0, ldg='')
for a in sys.argv[2:]:
    k, v = a.split('=')
    P[k] = type(P[k])(v.replace('+',' ')) if not isinstance(P[k], int) else int(v, 0)


def f2u(x):
    return struct.unpack('<I', struct.pack('<f', x))[0]


def vr(a, n):
    return 'v[%d:%d]' % (a, a + n - 1)


def sr(a, n):
    return 's[%d:%d]' % (a, a + n - 1)


def srd(a, d, ptr, nbytes, off=None, stride=0):
    if off is None:
        a('s_mov_b32 s%d, s%d' % (d, ptr))
        a('s_mov_b32 s%d, s%d' % (d + 1, ptr + 1))
    else:
        a('s_add_u32 s%d, s%d, %s' % (d, ptr, off))
        a('s_addc_u32 s%d, s%d, 0' % (d + 1, ptr + 1))
    if stride:
        a('s_or_b32 s%d, s%d, 0x%x' % (d + 1, d + 1, stride << 16))
    a('s_mov_b32 s%d, %d' % (d + 2, nbytes))
    a('s_mov_b32 s%d, 0x20000' % (d + 3))


def scan64(a, v, op='v_add_u32'):
    for c in ('row_shr:1', 'row_shr:2', 'row_shr:4', 'row_shr:8'):
        a('%s_dpp v%d, v%d, v%d %s row_mask:0xf bank_mask:0xf' % (op, v, v, v, c))
    a('%s_dpp v%d, v%d, v%d row_bcast:15 row_mask:0xa bank_mask:0xf' % (op, v, v, v))
    a('%s_dpp v%d, v%d, v%d row_bcast:31 row_mask:0xc bank_mask:0xf' % (op, v, v, v))


def code_prefetch(a, tag, st, vt, nwg=16, first=None, last='Lk2_end'):
    a('s_cmp_ge_u32 s2, %d' % nwg)
    a('s_cbranch_scc1 Lcpf%s' % tag)
    a('s_getpc_b64 %s' % sr(st, 2))
    a('Lcpb%s:' % tag)
    a('v_lshlrev_b32 v%d, 7, v0' % vt)
    a('v_mov_b32 v%d, 0' % (vt + 1))
    if first:
        a('s_sub_u32 s%d, s%d, Lcpb%s-%s' % (st, st, tag, first))
        a('s_subb_u32 s%d, s%d, 0' % (st + 1, st + 1))
    a('v_cmp_gt_u32 vcc, %s-%s, v%d' % (last, first or 'Lcpb' + tag, vt))
    a('v_lshl_add_u64 %s, %s, 0, %s' % (vr(vt, 2), vr(vt, 2), sr(st, 2)))
    a('s_and_b64 exec, exec, vcc')
    a('s_cbranch_execz Lcpe%s' % tag)
    a.nocount = True
    a('global_load_dword v%d, %s, off' % (vt, vr(vt, 2)))
    a.nocount = False
    a('Lcpe%s:' % tag)
    a('s_mov_b64 exec, -1')
    a('Lcpf%s:' % tag)


STAMP0 = 0x6000000


def stamp_init(a, sdbg, wsptr, kern, sw):
    if not P['stamp']:
        return
    a('s_lshl_b32 s100, s2, 7')
    a('s_add_u32 s100, s100, %d' % (STAMP0 + kern * 32768))
    srd(a, sdbg, wsptr, 128, 's100')
    stamp.sel = sw


def stamp(a, idx, sdbg, tmp_s, tmp_v, tmp_w=None):
    tmp_w = tmp_w or tmp_v + 1
    if not P['stamp']:
        return
    lab = 'Lst%d' % stamp.n
    stamp.n += 1
    a.nocount = True
    a('s_cmp_lg_u32 s%d, %d' % (stamp.sel, P['stw']))
    a('s_cbranch_scc1 %s' % lab)
    a('s_memrealtime %s' % sr(tmp_s, 2))
    a('s_waitcnt lgkmcnt(0)')
    a('v_mov_b32 v%d, s%d' % (tmp_v, tmp_s))
    a('v_mov_b32 v%d, %d' % (tmp_w, idx * 4))
    a('buffer_store_dword v%d, v%d, %s, 0 offen' % (tmp_v, tmp_w, sr(sdbg, 4)))
    a('s_memtime %s' % sr(tmp_s, 2))
    a('s_waitcnt lgkmcnt(0)')
    a('v_mov_b32 v%d, s%d' % (tmp_v, tmp_s))
    a('buffer_store_dword v%d, v%d, %s, 0 offen offset:64' % (tmp_v, tmp_w, sr(sdbg, 4)))
    a(lab + ':')
    a.nocount = False


stamp.n = 0
stamp.sel = 0


def k1(a):
    CNTB, SCR, CNTA = 0, 4096, 4224
    DATB, DATA = 4224, 8320
    S_IN, S_OUT, S_ANG, S_REC, S_DSC, S_T0, S_DBG = 24, 28, 32, 36, 40, 44, 92
    S_REC2 = 80
    sMB, sMC, sNEG, sHI, sT, sW = 64, 65, 66, 67, 68, 69
    sREM = 70
    sBASE, sPREP, sVB, sUM = 72, 73, 74, 75
    O16, O8, ONE, SIX = 1, 2, 3, 12
    TP = 4
    TS_ = 22
    ANG = 14
    ANGR = 13
    INA, OUTA, INB, OUTB, INR, OUTR = 28, 52, 76, 100, 124, 125
    ld = P['ld1']
    st = P['st1']

    a('s_cmp_ge_u32 s2, 256')
    a('s_cbranch_scc1 Lk1_end')
    a('s_load_dwordx4 s[4:7], s[0:1], 8')
    a('s_load_dwordx2 s[8:9], s[0:1], 32')
    a('s_load_dwordx4 s[76:79], s[0:1], 96')
    a('s_load_dwordx2 s[12:13], s[0:1], 0')
    a('s_load_dwordx8 s[16:23], s[0:1], 56')
    if P['cpf'] & 1:
        code_prefetch(a, 'a', 84, 124)
    a('v_lshlrev_b32 v%d, 4, v0' % O16)
    a('v_lshlrev_b32 v%d, 3, v0' % O8)
    a('v_mov_b32 v%d, 1' % ONE)
    a('v_mov_b32 v%d, 6' % SIX)
    a('v_lshrrev_b32 v4, 6, v0')
    a('v_readfirstlane_b32 s%d, v4' % sW)
    a('v_mov_b32 v4, 0')
    a('v_lshlrev_b32 v5, 2, v0')
    a('ds_write_b32 v5, v4 offset:%d' % CNTB)
    a('ds_write_b32 v5, v4 offset:%d' % CNTA)
    a('s_mov_b32 s%d, %d' % (sMB, -(-2**32 // BINE)))
    a('s_mov_b32 s%d, 21400' % sMC)
    a('s_mov_b32 s%d, %d' % (sNEG, -BINE))
    a('s_mov_b32 s%d, 0xffff0000' % sHI)
    a('s_mov_b32 s%d, 0x80008000' % sVB)
    a('s_mov_b32 s%d, 0xff000' % sUM)
    if P['ilv']:
        a('s_mul_i32 s14, s2, 53')
        a('s_add_u32 s15, s14, 53')
        a('s_lshr_b32 s14, s14, 2')
        a('s_lshr_b32 s15, s15, 2')
        a('s_sub_u32 s%d, s15, s14' % sT)
        a('s_lshl_b32 s%d, s%d, 6' % (sT, sT))
        a('s_lshl_b32 s15, s2, 6')
        a('s_sub_u32 s14, s14, s15')
        a('s_add_u32 s3, s14, 196608')
        a('s_lshl_b32 s14, s2, 14')
        a('s_lshl_b32 s15, s2, 13')
    else:
        a('s_mul_i32 s14, s2, 3125')
        a('s_add_u32 s15, s14, 3125')
        a('s_lshr_b32 s14, s14, 2')
        a('s_lshr_b32 s15, s15, 2')
        a('s_sub_u32 s3, s15, s14')
        a('s_lshl_b32 s15, s14, 7')
        a('s_lshl_b32 s14, s14, 8')
        a('s_sub_u32 s%d, s3, 768' % sT)
        a('s_lshl_b32 s%d, s%d, 6' % (sT, sT))
    a('v_cmp_gt_u32 %s, s%d, v0' % (sr(sREM, 2), sT))
    a('v_and_b32 v13, 63, v0')
    a('v_lshlrev_b32 v27, 4, v13')
    a('s_lshl_b32 s%d, s2, 4' % sPREP)
    a('s_or_b32 s%d, s%d, s%d' % (sPREP, sPREP, sW))
    a('s_waitcnt lgkmcnt(0)')
    srd(a, S_IN, 4, 0, 's14')
    srd(a, S_OUT, 6, 0, 's14')
    srd(a, S_ANG, 8, 0, 's15')
    if P['ilv']:
        a('s_sub_u32 s%d, %d, s14' % (S_IN + 2, T * 4))
        a('s_sub_u32 s%d, %d, s14' % (S_OUT + 2, T * 4))
        a('s_sub_u32 s%d, %d, s15' % (S_ANG + 2, T * 2))
    else:
        a('s_lshl_b32 s%d, s3, 8' % (S_IN + 2))
        a('s_lshl_b32 s%d, s3, 8' % (S_OUT + 2))
        a('s_lshl_b32 s%d, s3, 7' % (S_ANG + 2))
    RS = 256 if P['ilv'] else 1
    stamp_init(a, S_DBG, 78, 0, sW)
    stamp(a, 0, S_DBG, 96, 126)
    a('s_cmp_lg_u32 s%d, 0' % sPREP)
    a('s_cbranch_scc1 Lk1_main')
    a.nocount = True
    srd(a, S_T0, 18, 768)
    srd(a, S_T0 + 4, 20, 512)
    srd(a, S_T0 + 8, 22, 512)
    srd(a, S_T0 + 12, 16, 256)
    srd(a, S_T0 + 16, 12, E * 32)
    for i in range(4):
        a('buffer_load_dwordx4 %s, v27, %s, 0 offen' % (vr(76 + 4 * i, 4), sr(S_T0 + 4 * i, 4)))
    a('v_mul_u32_u24 v4, 99984, v13')
    for i in range(4):
        a('s_mov_b32 s%d, %d' % (sT, i * 64 * 99984))
        a('buffer_load_dwordx4 %s, v4, %s, s%d offen' % (vr(92 + 4 * i, 4), sr(S_T0 + 16, 4), sT))
    a.nocount = False
    a('Lk1_main:')
    a('s_lshl_b32 s14, s2, 1')
    a('s_mul_i32 s15, s14, %d' % TS)
    a('s_add_u32 s15, s15, %d' % REC0)
    srd(a, S_REC, 78, 0, 's15')
    a('s_add_u32 s15, s15, %d' % TS)
    srd(a, S_REC2, 78, 0, 's15')
    a('s_lshl_b32 s15, s14, 12')
    a('s_add_u32 s15, s15, %d' % DESC0)
    srd(a, S_DSC, 78, 8192, 's15')

    marks = {}

    def regs(j):
        return ((INA, OUTA) if j < 6 else (INB, OUTB)), 4 * (j % 6), (ANG + 2 * (j % 4) if j < 10 else (INA, OUTA)[j - 10])

    def loads(j):
        if j == 12:
            a('v_lshlrev_b32 v10, 2, v0')
            a('v_lshlrev_b32 v11, 1, v0')
            a('s_lshl_b32 s%d, s3, 8' % sT if P['ilv'] else 's_mov_b32 s%d, %d' % (sT, 12 * 16384))
            a('s_mov_b64 exec, %s' % sr(sREM, 2))
            a('buffer_load_dword v%d, v10, %s, s%d offen %s' % (OUTR, sr(S_OUT, 4), sT, ld))
            a('buffer_load_dword v%d, v10, %s, s%d offen %s' % (INR, sr(S_IN, 4), sT, ld))
            a('s_lshl_b32 s%d, s3, 7' % sT if P['ilv'] else 's_mov_b32 s%d, %d' % (sT, 12 * 8192))
            a('buffer_load_ushort v%d, v11, %s, s%d offen %s' % (ANGR, sr(S_ANG, 4), sT, ld))
            a('s_mov_b64 exec, -1')
        else:
            (rin, rout), o, rang = regs(j)
            a('s_mov_b32 s%d, %d' % (sT, j * 16384 * RS))
            a('buffer_load_dwordx4 %s, v%d, %s, s%d offen %s' % (vr(rout + o, 4), O16, sr(S_OUT, 4), sT, ld))
            a('buffer_load_dwordx4 %s, v%d, %s, s%d offen %s' % (vr(rin + o, 4), O16, sr(S_IN, 4), sT, ld))
            a('s_mov_b32 s%d, %d' % (sT, j * 8192 * RS))
            a('buffer_load_dwordx2 %s, v%d, %s, s%d offen %s' % (vr(rang, 2), O8, sr(S_ANG, 4), sT, ld))
        marks[j] = a.mark()

    def pack2(items, rg, cnt):
        a('v_or_b32 v%d, s%d, v%d' % (rg, sVB, rg))
        for e, (ri, ro) in enumerate(items):
            a('v_or_b32 v%d, 3, v%d' % (TP + e, ro))
        for e, (ri, ro) in enumerate(items):
            a('v_mul_hi_u32_u24 v%d, s%d, v%d' % (TP + e, sMB, TP + e))
        for e, (ri, ro) in enumerate(items):
            a('v_and_b32 v%d, 3, v%d' % (TP + 2 + e, TP + e))
            a('v_mad_i32_i24 v%d, v%d, s%d, v%d' % (ro, TP + e, sNEG, ro))
        for e, (ri, ro) in enumerate(items):
            a('v_add_u32 v%d, v%d, v%d' % (ro, ro, TP + 2 + e))
            a('v_and_b32 v%d, s%d, v%d' % (TP + 2 + e, sUM, ri))
        for e, (ri, ro) in enumerate(items):
            a('v_mul_hi_u32_u24 v%d, s%d, v%d' % (TP + 2 + e, sMC, TP + 2 + e))
        for e, (ri, ro) in enumerate(items):
            a('v_lshl_add_u32 v%d, v%d, 8, v%d' % (TP + e, TP + 2 + e, TP + e))
            a('v_lshl_or_b32 v%d, v%d, 20, v%d' % (ri, ro, ri))
        for e, (ri, ro) in enumerate(items):
            a('v_lshlrev_b32 v%d, 2, v%d' % (TP + e, TP + e))
        for e, (ri, ro) in enumerate(items):
            a('ds_add_u32 v%d, v%d offset:%d' % (TP + e, ONE, cnt))
            if e:
                a('v_and_or_b32 v%d, v%d, s%d, v%d' % (ro, rg, sHI, TP + e))
            else:
                a('v_lshl_or_b32 v%d, v%d, 16, v%d' % (ro, rg, TP + e))

    def pack(j):
        a.wait_vm(marks[j])
        if j == 12:
            a('s_mov_b64 exec, %s' % sr(sREM, 2))
            pack2([(INR, OUTR)], ANGR, CNTB)
            a('s_mov_b64 exec, -1')
            return
        (rin, rout), o, rang = regs(j)
        for h in range(2):
            pack2([(rin + o + 2 * h + e, rout + o + 2 * h + e) for e in range(2)], rang + h, CNTA if j < 6 else CNTB)

    def scan(sub, cnt, data, srec, mid1=None, mid2=None):
        a('v_lshlrev_b32 v10, 2, v0')
        a('s_waitcnt lgkmcnt(0)')
        a('s_barrier')
        a('ds_read_b32 v4, v10 offset:%d' % cnt)
        m = a.mark()
        if mid1:
            mid1()
        a('s_lshl_b32 s%d, s%d, 2' % (sT, sW))
        a('v_mov_b32 v8, s%d' % sT)
        a('v_and_b32 v9, 60, v10')
        a.wait_ds(m)
        a('v_add_u32 v6, 1, v4')
        a('v_lshrrev_b32 v6, 1, v6')
        a('v_mov_b32 v7, v6')
        scan64(a, 7)
        a('s_mov_b32 exec_lo, 0')
        a('s_mov_b32 exec_hi, 0x80000000')
        a('ds_write_b32 v8, v7 offset:%d' % SCR)
        a('s_mov_b64 exec, -1')
        a('s_waitcnt lgkmcnt(0)')
        a('s_barrier')
        a('ds_read_b32 v11, v9 offset:%d' % SCR)
        m = a.mark()
        if mid2:
            mid2()
        a('v_and_b32 v8, 255, v0')
        a('v_lshrrev_b32 v9, 8, v0')
        a('v_lshlrev_b32 v9, 2, v9')
        a('v_lshl_add_u32 v9, v8, 4, v9')
        a.wait_ds(m)
        a('v_mov_b32 v5, v11')
        for c in ('row_shr:1', 'row_shr:2', 'row_shr:4', 'row_shr:8'):
            a('v_add_u32_dpp v11, v11, v11 %s row_mask:0xf bank_mask:0xf' % c)
        a('v_sub_u32 v5, v11, v5')
        a('v_readlane_b32 s%d, v11, 15' % sT)
        a('v_readlane_b32 s%d, v5, s%d' % (sBASE, sW))
        a('s_mul_i32 s%d, s%d, 12' % (srec + 2, sT))
        a('v_add_u32 v7, s%d, v7' % sBASE)
        a('v_sub_u32 v6, v7, v6')
        a('s_movk_i32 s%d, %d' % (sT, data))
        a('v_mad_u32_u24 v6, v6, 12, s%d' % sT)
        a('ds_write_b32 v10, v6 offset:%d' % cnt)
        a('v_lshl_or_b32 v5, v4, 16, v7')
        a('v_mul_u32_u24 v7, 12, v7')
        a('v_mov_b32 v6, 0')
        a('v_and_b32 v4, 1, v4')
        a('s_and_b32 s%d, s2, 7' % sT)
        a('s_lshl1_add_u32 s%d, s%d, %d' % (sT, sT, 3136 + sub))
        a('v_lshrrev_b32 v8, 8, v0')
        a('v_lshl_add_u32 v8, v8, 4, s%d' % sT)
        a('v_lshlrev_b32 v8, 8, v8')
        a('v_cmpx_eq_u32 vcc, 1, v4')
        a('ds_write_b16 v7, v6 offset:%d' % (data - 8))
        a('ds_write_b32 v7, v8 offset:%d' % (data - 4))
        a('s_mov_b64 exec, -1')
        a('s_movk_i32 s%d, %d' % (sT, sub * 4096))
        a('buffer_store_dword v5, v9, %s, s%d offen %s' % (sr(S_DSC, 4), sT, st))
        a('s_waitcnt lgkmcnt(0)')
        a('s_barrier')

    def rtn(t, ro, cnt):
        a('v_and_b32 v%d, 0xffff, v%d' % (t, ro))
        a('ds_add_rtn_u32 v%d, v%d, v%d offset:%d' % (t, t, SIX, cnt))

    def put(t, ri, ro, e):
        u = 8 + (e & 1)
        a('v_and_b32 v%d, 2, v%d' % (u, t))
        a('v_add_u32 v%d, v%d, v%d' % (t, t, u))
        a('v_mad_i32_i24 v%d, v%d, -5, v%d' % (u, u, t))
        a('ds_write_b32 v%d, v%d' % (t, ri))
        a('ds_write_b16_d16_hi v%d, v%d offset:6' % (u, ro))

    def scatter(rin, rout, cnt, rem, between):
        G = 3
        ng = 24 // G
        mk = {}
        if rem:
            a('s_mov_b64 exec, %s' % sr(sREM, 2))
            rtn(10, OUTR, cnt)
            a('s_mov_b64 exec, -1')
        for e in range(G):
            rtn(TS_ + e, rout + e, cnt)
        mk[0] = a.mark()
        for g in range(ng):
            cur, nxt = TS_ + (g & 1) * G, TS_ + ((g + 1) & 1) * G
            if g + 1 < ng:
                for e in range(G):
                    rtn(nxt + e, rout + (g + 1) * G + e, cnt)
                mk[g + 1] = a.mark()
            a.wait_ds(mk[g])
            for e in range(G):
                put(cur + e, rin + g * G + e, rout + g * G + e, e)
            if rem and g == 0:
                a('s_mov_b64 exec, %s' % sr(sREM, 2))
                put(10, INR, OUTR, 1)
                a('s_mov_b64 exec, -1')
            between(g)

    rd = {}

    def readout(base, data):
        a('v_add_u32 v22, 0x10000, v%d' % O16)
        a('v_add_u32 v23, 0x20000, v%d' % O16)
        for j in range(10):
            b = (O16, 22, 23)[j >> 2]
            a('ds_read_b128 %s, v%d offset:%d' % (vr(base + 4 * j, 4), b, data + (j & 3) * 16384))
            rd[j] = a.mark()

    def store(base, srec, j, wait=False):
        a('s_mov_b32 s%d, %d' % (sT, j * 16384))
        if wait:
            a.wait_ds(rd[j])
        a('buffer_store_dwordx4 %s, v%d, %s, s%d offen %s' % (vr(base + 4 * j, 4), O16, sr(srec, 4), sT, P['sta'] if base == INA else P['stb']))

    loads(0)
    loads(1)
    a('s_cmp_lg_u32 s%d, 0' % sPREP)
    a('s_barrier')
    a('s_cbranch_scc1 Lk1_noprep')
    a.nocount = True
    nds = a.nds
    prep(a, DATA, S_T0)
    a.nds = nds
    a.nocount = False
    a('Lk1_noprep:')
    if P['k1pr']:
        for pr in range(1, 4):
            a('s_cmp_lt_u32 s%d, %d' % (sW, 4 * pr))
            a('s_cbranch_scc1 Lk1_pr')
            a('s_setprio %d' % pr)
        a('Lk1_pr:')
    for j in range(6):
        if j + 2 < 8 + P['k1x']:
            loads(j + 2)
        pack(j)
    for j in range(P['k1x']):
        loads(8 + j)
    stamp(a, 1, S_DBG, 96, 126)
    k1m = [8 + P['k1x'] + j for j in range(P['k1m'])]
    scan(0, CNTA, DATA, S_REC, None, lambda: [loads(j) for j in k1m])
    stamp(a, 2, S_DBG, 96, 126)

    sched = P['sch'].split('.')
    nl, npk = [8 + P['k1x'] + P['k1m']], [6]

    def do(ops):
        for c in ops:
            if c == 'L' and nl[0] < 13:
                assert nl[0] >= 10 or nl[0] - npk[0] < 4
                loads(nl[0])
                nl[0] += 1
            elif c == 'P':
                pack(npk[0])
                npk[0] += 1
            elif c == 'B':
                a('s_barrier')

    do(sched[0])
    scatter(INA, OUTA, CNTA, False, lambda g: do(sched[g + 1]))
    stamp(a, 3, S_DBG, 96, 126)
    do('L' * (13 - nl[0]))
    if P['cpf'] & 4:
        code_prefetch(a, 'c', 84, 126, 8)
    do('P' * (13 - npk[0]))
    stamp(a, 4, S_DBG, 96, 126)
    npre = P['npre']
    scan(1, CNTB, DATB, S_REC2, lambda: readout(INA, DATA), lambda: [store(INA, S_REC, j) for j in range(npre)])
    stamp(a, 5, S_DBG, 96, 126)
    todo = list(range(npre, 10))

    def btw_b(g):
        k = -(-len(todo) // (8 - g))
        for _ in range(k):
            store(INA, S_REC, todo.pop(0))

    scatter(INB, OUTB, CNTB, True, btw_b)
    stamp(a, 6, S_DBG, 96, 126)
    a('s_waitcnt lgkmcnt(0)')
    a('s_barrier')

    def k1warm():
        srd(a, S_T0, 12, P['k1w'] * 51200 * 128 if P['k1w'] < 4 else E * 32)
        a('s_lshl_b32 s%d, s2, 4' % sT)
        a('s_add_u32 s%d, s%d, s%d' % (sT, sT, sW))
        a('s_mul_i32 s%d, s%d, %d' % (sT, sT, 13 * P['k1w']))
        a('v_and_b32 v4, 63, v0')
        a('v_min_u32 v4, %d, v4' % (13 * P['k1w'] - 1))
        a('v_add_lshl_u32 v4, v4, s%d, 7' % sT)
        a('buffer_load_dword v4, v4, %s, 0 offen' % sr(S_T0, 4))

    readout(INB, DATB)
    if P['k1w'] and P['k1p'] == 0:
        k1warm()
    for j in range(10):
        store(INB, S_REC2, j, True)
    if P['k1w'] and P['k1p'] == 1:
        k1warm()
    stamp(a, 7, S_DBG, 96, 126)
    if P['stamp']:
        a('s_waitcnt vmcnt(0)')
        stamp(a, 8, S_DBG, 96, 126)
    a('Lk1_end:')
    a('s_endpgm')
    a.fence()
    return DATB + (25472 + 1024) * 6


def prep(a_, PB, S_T0, nvm=6, L=13, wsp=78, st=14, fl=''):
    a0 = a_

    def a(t):
        t = t.replace('s14', 's%d' % st) if not t.startswith('s_add') else t
        a0(t + ' ' + fl if t.startswith('buffer_store') else t)
    O = 27
    sS = 80
    sS = 48
    a('s_waitcnt vmcnt(%d)' % nvm)
    for i in range(4):
        a('ds_write_b128 v%d, %s offset:%d' % (O, vr(76 + 4 * i, 4), PB + 1024 * i))
    a('v_mov_b32 v4, 0')
    for i in range(16):
        a('v_dot2_f32_bf16 v4, v%d, v%d, v4' % (92 + i, 92 + i))
    scan64(a, 4, 'v_add_f32')
    a('v_readlane_b32 s14, v4, 63')
    a('v_bfe_u32 v5, v%d, 3, 2' % L)
    a('v_and_b32 v6, 3, v%d' % L)
    a('v_lshl_or_b32 v5, v5, 2, v6')
    a('v_lshlrev_b32 v5, 1, v5')
    a('v_bfe_u32 v7, v%d, 2, 1' % L)
    a('v_lshrrev_b32 v8, 5, v%d' % L)
    a('s_waitcnt lgkmcnt(0)')
    for k in range(24):
        a('ds_read_u16 v%d, v5 offset:%d' % (76 + k, PB + 32 * k))
        if k % 8 == 7:
            a('s_waitcnt lgkmcnt(0)')
    for k in range(16):
        a('ds_read_u16 v%d, v5 offset:%d' % (100 + k, PB + 1024 + 32 * k))
        if k % 8 == 7:
            a('s_waitcnt lgkmcnt(0)')
    a('v_lshl_add_u32 v9, v8, 8, v5')
    for k in range(8):
        a('ds_read_u16 v%d, v9 offset:%d' % (116 + k, PB + 1024 + 32 * k))
    a('s_waitcnt lgkmcnt(0)')
    for k in range(48):
        a('v_lshlrev_b32 v%d, 16, v%d' % (76 + k, 76 + k))
    a('v_mul_f32 v9, v76, v76')
    for k in range(1, 24):
        a('v_fmac_f32 v9, v%d, v%d' % (76 + k, 76 + k))
    a('v_mul_f32 v10, v100, v100')
    for k in range(1, 16):
        a('v_fmac_f32 v10, v%d, v%d' % (100 + k, 100 + k))
    a('v_log_f32 v9, v9')
    a('v_log_f32 v10, v10')
    a('v_log_f32 v11, s14')
    a('v_add_f32 v10, v10, v9')
    a('v_add_f32 v10, v10, v11')
    c0 = math.log2(P['target']) - 0.5 * math.log2(0.1625 / 2048)
    a('v_mov_b32 v11, 0x%x' % f2u(c0))
    a('v_fmac_f32 v11, -0.5, v10')
    a('v_floor_f32 v11, v11')
    a('v_mul_f32 v9, 0.5, v9')
    a('v_floor_f32 v9, v9')
    a('s_mov_b32 s14, 0x%x' % f2u(40.0))
    a('v_med3_f32 v11, v11, -s14, s14')
    a('v_med3_f32 v9, -v9, -s14, s14')
    a('v_cvt_i32_f32 v11, v11')
    a('v_cvt_i32_f32 v9, v9')
    a('v_sub_u32 v10, v11, v9')
    a('v_subrev_u32 v10, 16, v10')
    for j in range(16):
        a('v_readlane_b32 s%d, v11, %d' % (sS + j, ((j >> 2) << 3) | (j & 3)))
    srd(a, S_T0, wsp, 8192, str(PREP0))
    a('v_xor_b32 v4, v7, v8')
    a('v_subrev_u32 v4, 1, v4')
    a('v_subrev_u32 v6, 1, v7')
    a('v_sub_u32 v7, 0, v7')
    for k in range(24):
        a('v_ldexp_f32 v%d, v%d, v9' % (76 + k, 76 + k))
        if k % 3 == 1:
            a('v_add_f32 v%d, v%d, v%d' % (76 + k, 76 + k, 76 + k))
    if P['l2x']:
        for k in range(16):
            a('v_ldexp_f32 v%d, v%d, v10' % (100 + k, 100 + k))
        for jj in range(8):
            a('v_cvt_pk_bf16_f32 v%d, v%d, v%d' % (116 + jj, 100 + 2 * jj, 101 + 2 * jj))
    else:
        for k in range(8):
            a('v_ldexp_f32 v%d, v%d, v10' % (116 + k, 116 + k))
    for l in range(3):
        for jj in range(4):
            a('v_cvt_pk_f16_f32 v%d, v%d, v%d' % (100 + 4 * l + jj, 76 + 6 * jj + l, 76 + 6 * jj + 3 + l))
            a('v_and_b32 v%d, v%d, v4' % (100 + 4 * l + jj, 100 + 4 * l + jj))
        a('buffer_store_dwordx4 %s, v%d, %s, 0 offen offset:%d' % (vr(100 + 4 * l, 4), O, sr(S_T0, 4), 1024 * l))
    if P['l2x']:
        for jj in range(4):
            a('v_and_b32 v%d, v%d, v4' % (112 + jj, 116 + jj))
            a('v_and_b32 v%d, v%d, v4' % (120 + jj, 120 + jj))
    else:
        for jj in range(4):
            a('v_cvt_pk_bf16_f32 v%d, v%d, v%d' % (116 + jj, 116 + 2 * jj, 117 + 2 * jj))
        for jj in range(4):
            a('v_and_b32 v%d, v%d, v6' % (112 + jj, 116 + jj))
            a('v_and_b32 v%d, v%d, v7' % (120 + jj, 116 + jj))
    a('v_add_u32 v11, 4096, v%d' % O)
    a('buffer_store_dwordx4 v[112:115], v%d, %s, 0 offen offset:3072' % (O, sr(S_T0, 4)))
    a('buffer_store_dwordx4 v[120:123], v11, %s, 0 offen' % sr(S_T0, 4))
    a('v_bfe_u32 v5, v%d, 2, 1' % L)
    a('v_bfe_u32 v6, v%d, 3, 1' % L)
    a('v_lshl_or_b32 v5, v5, 1, v6')
    a('v_and_b32 v6, 3, v%d' % L)
    a('v_lshl_or_b32 v5, v5, 2, v6')
    a('v_lshlrev_b32 v5, 1, v5')
    a('v_bfe_u32 v7, v%d, 4, 1' % L)
    a('v_xor_b32 v4, v7, v8')
    a('v_subrev_u32 v4, 1, v4')
    for k in range(16):
        a('ds_read_u16 v%d, v5 offset:%d' % (76 + k, PB + 2048 + 32 * k))
        if k % 8 == 7:
            a('s_waitcnt lgkmcnt(0)')
    for k in range(8):
        a('ds_read_u16 v%d, v5 offset:%d' % (92 + k, PB + 3072 + 32 * k))
    a('s_waitcnt lgkmcnt(0)')
    for k in range(24):
        a('v_lshlrev_b32 v%d, 16, v%d' % (76 + k, 76 + k))
    a('v_mul_f32 v9, v92, v92')
    for k in range(1, 8):
        a('v_fmac_f32 v9, v%d, v%d' % (92 + k, 92 + k))
    a('v_log_f32 v9, v9')
    a('v_mul_f32 v9, 0.5, v9')
    a('v_floor_f32 v9, v9')
    a('v_med3_f32 v9, v9, -s14, s14')
    a('v_cvt_i32_f32 v9, v9')
    a('v_sub_u32 v10, 0, v9')
    for k in range(8):
        a('v_ldexp_f32 v%d, v%d, v10' % (92 + k, 92 + k))
    for k in range(16):
        a('v_subrev_u32 v6, s%d, v9' % (sS + k))
        a('v_ldexp_f32 v%d, v%d, v6' % (76 + k, 76 + k))
    for jj in range(8):
        a('v_cvt_pk_bf16_f32 v%d, v%d, v%d' % (76 + jj, 76 + 2 * jj, 77 + 2 * jj))
        a('v_and_b32 v%d, v%d, v4' % (76 + jj, 76 + jj))
    for jj in range(4):
        a('v_cvt_pk_f16_f32 v%d, v%d, v%d' % (84 + jj, 92 + 2 * jj, 93 + 2 * jj))
        a('v_and_b32 v%d, v%d, v4' % (84 + jj, 84 + jj))
    for i in range(3):
        a('buffer_store_dwordx4 %s, v11, %s, 0 offen offset:%d' % (vr(76 + 4 * i, 4), sr(S_T0, 4), 1024 * (i + 1)))
    a('s_nop 1')


from gen_k2p import k2
from gen_p8 import prod


def main():
    a = Asm()
    body = Asm()
    out = []
    kernels = []
    if P['fuse']:
        b = Asm()
        h = prod(b, P, globals())
        lds = max(h.lds, k2(b, P, globals(), h))
        kernels.append((NAME + '_kernel', b, lds, 512))
    else:
        b = Asm()
        if P['p8']:
            kernels.append(('bin_kernel', b, prod(b, P, globals()).lds, 512))
        else:
            kernels.append(('bin_kernel', b, k1(b), 1024))
        if not P['only1']:
            b = Asm()
            kernels.append(('acc_kernel', b, k2(b, P, globals(), None), 512))
    hdr = open('cdna_kernels/%s.s.ref' % NAME).read().split('\n')
    hdr = [l for l in hdr if l.startswith(';') and '@launch' not in l and 'Override launch' not in l and 'grid=ceil' not in l]
    out += hdr
    for nm, b, lds, nt in kernels:
        out.append('; @launch kernel=%s grid=(256,1,1) block=(%d,1,1) lds=%d' % (nm, nt, lds))
        if P['fuse'] == 2:
            out[-1] = '; @launch grid=(256,1,1) block=(512,1,1) lds=%d' % lds
    if P['k2x']:
        out.append(out[-1])
    out.append('.amdgcn_target "amdgcn-amd-amdhsa--gfx950"')
    out.append('.text')
    for nm, b, lds, nt in kernels:
        out.append('.globl %s\n.p2align 8\n.type %s,@function\n%s:' % (nm, nm, nm))
        out.append(b.text())
    out.append('.section .rodata,"a"')
    for nm, b, lds, nt in kernels:
        out.append('''.p2align 6
.amdhsa_kernel %s
  .amdhsa_next_free_vgpr %d
  .amdhsa_next_free_sgpr 102
  .amdhsa_accum_offset %d
  .amdhsa_group_segment_fixed_size 0
  .amdhsa_kernarg_size 112
  .amdhsa_user_sgpr_count 2
  .amdhsa_user_sgpr_kernarg_segment_ptr 1
  .amdhsa_system_sgpr_workgroup_id_x 1
.end_amdhsa_kernel''' % (nm, 131072 // nt, 131072 // nt))
    open(sys.argv[1], 'w').write('\n'.join(out) + '\n')


main()
```

```python
import math


def k2(a, P, G, hk):
    vr, sr, srd, f2u = G['vr'], G['sr'], G['srd'], G['f2u']
    E, BINE, TS, TSP = G['E'], G['BINE'], G['TS'], G['TSP']
    REC0, DESC0, PREP0, WS_BYTES = G['REC0'], G['DESC0'], G['PREP0'], G['WS_BYTES']
    ROWS = BINE + 3
    PL = ROWS * 4
    RBF0 = 5 * PL
    HI0 = RBF0 + ROWS * 16
    SCR = HI0 + 4 * PL
    LDS = SCR + 128
    KC0, TB0, BB0, SC0, RING0 = 0, 12800, 21504, 25600, 25856
    NSL = 15
    NBLK = 51
    NQ = 7
    S_M, S_MR, S_WS, S_DIST, S_MO, S_OUT, S_DBG = 16, 20, 24, 28, 32, 36, 92
    sCEN = 40
    sW, sBIN, sT, sT2 = 48, 49, 50, 51
    sM0, sM1, sIDM, sHI, sA16 = 52, 53, 54, 55, 56
    sPASS, sMODE, sIX = 57, 58, 59
    sV6 = 60
    sMK = 62
    sFL, sSK = 64, 78
    sPc = 64
    sR, sTB, sRB, sRE, sPS = 69, 70, 71, 72, 73
    sLO = 74
    sMA = 84
    sLM = 84
    sEND = 88
    sEW = 80
    sF, sE, sDL, sI, sP, sNT, sSUB = 4, 5, 6, 7, 8, 9, 10
    LANE, S0 = 1, 2
    AG, AM, GATE, MD = 164, 176, 184, 200
    GB = (156, 216)
    SBF, RBF = 224, 232
    IA, IB = 236, 238
    A16, ANG = (240, 241), (242, 243)
    A4, A4B, CV, AC = 244, 245, 246, 155
    RTN = (247, 248)
    STK, CK, TM = 249, 250, 251
    RAW = 156
    RT, RA = 216, 232
    NA = P['na']
    TAR = (240, 241, 242, 243, 236, 238)
    TF = (244, 245)
    TH, VM, ONE, EIGHT, L12, RBA, WD, WA = 246, 248, 249, 250, 251, 252, 253, 254
    lab = [0]
    HO = 'sc1' if hk else P['ldrec']
    VZ, VP, VT = 6, 7, 8
    NS0 = P['ns0']

    def spin(load, notready, m):
        n = lab[0]
        lab[0] += 1
        a('s_mov_b32 s%d, 0x40000' % sT2)
        a.wait_vm(m)
        a('Lpl%d:' % n)
        notready()
        a('s_cbranch_execz Lpd%d' % n)
        a('s_sleep %d' % P['slp'])
        a.nocount = True
        load()
        a.nocount = False
        a('s_sub_u32 s%d, s%d, 1' % (sT2, sT2))
        a('s_waitcnt vmcnt(0)')
        a('s_cbranch_scc0 Lpl%d' % n)
        a('Lpd%d:' % n)
        a('s_mov_b64 exec, -1')
        a('s_nop 3')

    def cleared_load():
        a('global_load_dword v%d, v%d, s[12:13] sc1' % (VP, VZ))
        return a.mark()

    def done_load():
        a('global_load_dword v%d, v%d, s[14:15] sc1' % (VP, VZ))
        return a.mark()

    def done_addr():
        a('s_and_b32 s%d, s2, 7' % sT)
        a('s_lshl3_add_u32 s%d, s%d, s%d' % (sT, sT, sW))
        a('s_lshl_b32 s%d, s%d, 7' % (sT, sT))
        a('s_add_u32 s%d, s%d, %d' % (sT, sT, G['FLG0']))
        a('v_and_b32 v%d, 31, v0' % VZ)
        a('v_lshl_add_u32 v%d, v%d, 2, s%d' % (VZ, VZ, sT))

    def done_wait(m):
        spin(done_load, lambda: a('v_cmpx_ne_u32 vcc, 1, v%d' % VP), m)

    def stamp(i, late=False):
        G['stamp'](a, i, S_DBG, 96, *((253, 254) if late else (235, 234)))

    CNT0 = 2 * PL

    def plane(j):
        return ((A4, 0), (A4, 3 * PL), (A4B, 0), (A4B, 2 * PL))[j]

    def desc_load(dst, tb):
        a('v_lshlrev_b32 v%d, 12, v0' % tb)
        a('s_lshl_b32 s%d, s%d, 4' % (sT, sBIN))
        a('s_add_u32 s%d, s%d, %d' % (sT, sT, DESC0))
        a('buffer_load_dwordx4 %s, v%d, %s, s%d offen %s' % (vr(dst, 4), tb, sr(S_WS, 4), sT, HO))
        return a.mark()

    def scan4(v):
        for c, rm in (('row_shr:1', 15), ('row_shr:2', 15), ('row_shr:4', 15), ('row_shr:8', 15), ('row_bcast:15', 10), ('row_bcast:31', 12)):
            for k in range(4):
                a('v_add_u32_dpp v%d, v%d, v%d %s row_mask:0x%x bank_mask:0xf' % (v + k, v + k, v + k, c, rm))

    def img_load(first, n, dst, t):
        a('v_lshlrev_b32 v%d, 4, v%d' % (t, LANE))
        for i in range(n):
            a('s_mov_b32 s%d, %d' % (sT, PREP0 + 1024 * (first + i)))
            a('buffer_load_dwordx4 %s, v%d, %s, s%d offen %s' % (vr(dst + 4 * i, 4), t, sr(S_WS, 4), sT, HO))

    def gathers(q):
        a('buffer_load_dwordx4 %s, %s, %s, 0 idxen offen' % (vr(GB[q], 4), vr(IA, 2), sr(S_M, 4)))
        a('buffer_load_dwordx4 %s, %s, %s, 0 idxen offen' % (vr(GB[q] + 4, 4), vr(IB, 2), sr(S_M, 4)))

    def cosines(p):
        c1, c3, c2 = TM, TM + 1, TM + 2
        a('v_mul_f32 v%d, 0x40400000, v%d' % (c3, ANG[p]))
        a('v_mul_f32 v%d, 0.15915494, v%d' % (c1, ANG[p]))
        a('v_cvt_pk_bf16_f32 v%d, 0, v%d' % (c3, c3))
        a('v_fract_f32 v%d, v%d' % (c1, c1))
        a('v_mul_f32 v%d, 0.15915494, v%d' % (c3, c3))
        a('v_cos_f32 v%d, v%d' % (c1, c1))
        a('v_fract_f32 v%d, v%d' % (c3, c3))
        a('v_cos_f32 v%d, v%d' % (c3, c3))
        a('v_fma_mixlo_f16 v%d, v%d, v%d, -0.5' % (c2, c1, c1))
        a('v_cvt_pk_f16_f32 v%d, v%d, v%d' % (c1, c1, c3))

    def sbf(l):
        src, sel = ((TM, 0), (TM + 2, 0), (TM, 1))[l]
        for j in range(4):
            a('v_pk_mul_f16 v%d, v%d, v%d op_sel:[0,%d] op_sel_hi:[1,%d]' % (SBF + 4 * (l & 1) + j, RBF + j, src, sel, sel))

    def gmf(l):
        a('v_mfma_f32_32x32x16_f16 %s, %s, %s, %s' % (vr(GATE, 16), vr(AG + 4 * l, 4), vr(SBF + 4 * (l & 1), 4), vr(GATE, 16) if l else '0'))

    def mdown(p):
        a('v_mfma_f32_32x32x16_bf16 %s, %s, %s, 0' % (vr(MD, 16), vr(AM, 4), vr(GB[p], 4)))
        a('v_mfma_f32_32x32x16_bf16 %s, %s, %s, %s' % (vr(MD, 16), vr(AM + 4, 4), vr(GB[p] + 4, 4), vr(MD, 16)))

    def addrs(p):
        a('v_lshrrev_b32 v%d, 1, v%d' % (A4, A16[p]))
        a('v_lshrrev_b32 v%d, 2, v%d' % (AC, A16[p]))
        a('v_add_u32 v%d, %d, v%d' % (A4B, HI0, A4))

    def decode_rel(p, base, part=3):
        if P['lf']:
            base = 0
        a('s_set_gpr_idx_on s%d, gpr_idx(SRC1)' % (sDX if P['lf'] else sIX))
        a('s_nop 0')
        if part & 1:
            a('v_and_b32 v%d, s%d, v%d' % (IA, sIDM, S0 + base + p))
            a('v_and_b32 v%d, s%d, v%d' % (IB, sIDM, S0 + base + p))
        if part & 2:
            a('v_and_b32_sdwa v%d, s%d, v%d dst_sel:DWORD dst_unused:UNUSED_PAD src0_sel:DWORD src1_sel:WORD_1' % (A16[p], sA16, S0 + base + p))
            if p:
                a('v_and_b32 v%d, s%d, v%d' % (ANG[p], sHI, S0 + base + 2))
            else:
                a('v_lshlrev_b32 v%d, 16, v%d' % (ANG[p], S0 + base + 2))
        a('s_set_gpr_idx_off')
        if part & 1:
            a('v_permlane32_swap_b32 v%d, v%d' % (IA, IB))

    sDX, sI1, sOF, sLB = 76, 77, 78, 79

    def next_block():
        if P['lg']:
            Gn = P['lg']
            a('s_cmp_eq_u32 s%d, 0' % sOF)
            a('s_cselect_b32 s%d, %d, -1' % (sDX, Gn - 1))
            a('s_sub_u32 s%d, s%d, s%d' % (sT, sI1, sOF))
            a('s_cmp_lt_u32 s%d, s%d' % (sT, sLB))
            a('s_cselect_b32 s%d, s%d, 0' % (sDX, sDX))
            a('s_add_u32 s%d, s%d, s%d' % (sDX, sDX, sI1))
            a('s_mul_i32 s%d, s%d, 3' % (sDX, sDX))
            a('s_add_u32 s%d, s%d, 1' % (sI1, sI1))
            a('s_add_u32 s%d, s%d, 1' % (sOF, sOF))
            a('s_cmp_eq_u32 s%d, %d' % (sOF, Gn))
            a('s_cselect_b32 s%d, 0, s%d' % (sOF, sOF))
            return
        a('s_add_u32 s%d, s%d, s%d' % (sDX, sI1, sOF))
        a('s_xor_b32 s%d, s%d, s%d' % (sDX, sDX, 75))
        a('s_sub_u32 s%d, s%d, s%d' % (sDX, sDX, sOF))
        a('s_max_u32 s%d, s%d, s%d' % (sT, sDX, sI1))
        a('s_cmp_ge_u32 s%d, s%d' % (sT, sLB))
        a('s_cselect_b32 s%d, s%d, s%d' % (sDX, sI1, sDX))
        a('s_mul_i32 s%d, s%d, 3' % (sDX, sDX))
        a('s_add_u32 s%d, s%d, 1' % (sI1, sI1))

    def halfbar(hi):
        n = lab[0]
        lab[0] += 1
        a('s_bitcmp%d_b32 s%d, %d' % (0 if hi else 1, sW, P['stb_']))
        a('s_cbranch_scc1 Lhb%d' % n)
        a('s_barrier')
        a.hist[-1].states = 0
        a('Lhb%d:' % n)

    def step(p):
        q = 1 - p
        ab = P['abl']
        vq = (lambda t: None) if ab & 4 else a
        vb = (lambda t: None) if ab & 68 else a
        va = (lambda t: None) if ab & 1 else a
        if P['early']:
            decode_rel(p, 3, 1)
        a('s_waitcnt vmcnt(2)')
        if not ab & 16:
            mdown(p)
        if P['early']:
            gathers(p)
        if not ab & 32:
            cosines(p)
        a('s_waitcnt lgkmcnt(%d)' % (0 if ab & 1 else 5))
        if not ab & 32:
            sbf(0)
        addrs(p)
        if not ab & 8:
            gmf(0)
        if not ab & 32:
            sbf(1)
        a('v_or_b32 v%d, v%d, v%d' % (STK, STK, RTN[p]))
        a('s_cmp_eq_u32 s%d, s%d' % (sIX, sEND))
        if not ab & 8:
            gmf(1)
        if not ab & 32:
            sbf(2)
        a('ds_read_b128 %s, v%d offset:%d' % (vr(RBF, 4), A16[q], RBF0))
        a('s_cselect_b64 %s, %s, -1' % (sr(sMK, 2), sr(sLM + 2 * p, 2)))
        if not ab & 8:
            gmf(2)
        if P['early']:
            decode_rel(p, 3, 2)
        else:
            decode_rel(p, 3)
            gathers(p)
        if P['stag'] and (p == 1 or P['stag'] == 2):
            halfbar(1)
        a('s_mov_b64 exec, %s' % sr(sMK, 2))
        pk = lambda j: MD + 4 * (j >> 1) + (j & 1)
        for j in range(8):
            vq('v_fma_f32 v%d, v%d, v%d, s%d' % (MD + 2 * j, MD + 2 * j, GATE + 2 * j, sM0))
            vq('v_fma_f32 v%d, v%d, v%d, s%d' % (MD + 2 * j + 1, MD + 2 * j + 1, GATE + 2 * j + 1, sM0))
            if j:
                jj = j - 1
                vb('v_sad_u16 v%d, v%d, s%d, v%d' % (TM + (jj >> 1), pk(jj), sM1, TM + (jj >> 1) if jj & 1 else CK))
            vq('v_cvt_pknorm_u16_f32 v%d, v%d, v%d' % (pk(j), MD + 2 * j, MD + 2 * j + 1))
            if j & 1:
                b, o = plane(j >> 1)
                va('ds_add_u64 v%d, %s offset:%d' % (b, vr(pk(j - 1), 2), o))
        vb('v_max3_u32 v%d, v%d, v%d, v%d' % (CV, TM, TM + 1, TM + 2))
        vb('v_sad_u16 v%d, v%d, s%d, v%d' % (TM + 3, pk(7), sM1, TM + 3))
        vb('v_max_u32 v%d, v%d, v%d' % (CV, CV, TM + 3))
        va('ds_add_rtn_u32 v%d, v%d, v%d offset:%d' % (RTN[p], AC, CV, CNT0))
        a('s_mov_b64 exec, -1')

    CA, CB = ANG
    sCX = 74

    def cos2():
        c1 = TM
        return ['v_mul_f32 v%d, 0x40400000, v%d' % (CA, c1),
                'v_mul_f32 v%d, 0.15915494, v%d' % (c1, c1),
                'v_cvt_pk_bf16_f32 v%d, 0, v%d' % (CA, CA),
                'v_fract_f32 v%d, v%d' % (c1, c1),
                'v_mul_f32 v%d, 0.15915494, v%d' % (CA, CA),
                'v_cos_f32 v%d, v%d' % (c1, c1),
                'v_fract_f32 v%d, v%d' % (CA, CA),
                'v_cos_f32 v%d, v%d' % (CA, CA),
                'v_fma_mixlo_f16 v%d, v%d, v%d, -0.5' % (CB, c1, c1),
                'v_cvt_pk_f16_f32 v%d, v%d, v%d' % (CA, c1, CA)]

    def sbf2(l):
        src, sel = ((CA, 0), (CB, 0), (CA, 1))[l]
        for j in range(4):
            a('v_pk_mul_f16 v%d, v%d, v%d op_sel:[0,%d] op_sel_hi:[1,%d]' % (SBF + 4 * (l & 1) + j, RBF + j, src, sel, sel))

    def step2(p):
        q = 1 - p
        cs = cos2()
        a('s_waitcnt lgkmcnt(5)')
        sbf2(0)
        addrs(p)
        gmf(0)
        sbf2(1)
        a('v_or_b32 v%d, v%d, v%d' % (STK, STK, RTN[p]))
        a('s_cmp_eq_u32 s%d, s%d' % (sIX, sEND))
        a('s_cselect_b64 %s, %s, -1' % (sr(sMK, 2), sr(sLM + 2 * p, 2)))
        if p == 0:
            a('s_cselect_b32 s%d, %d, s%d' % (sRE, P['idm'] if P['nog'] else 0, sIDM))
        gmf(1)
        sbf2(2)
        a('ds_read_b128 %s, v%d offset:%d' % (vr(RBF, 4), A16[q], RBF0))
        if P['bpos'] == 1 and p == 1:
            halfbar(1)
        gmf(2)
        a('s_set_gpr_idx_on s%d, gpr_idx(SRC1)' % sDX)
        a('s_nop 0')
        a('v_and_b32 v%d, s%d, v%d' % (IA, sRE, S0 + p))
        a('v_and_b32 v%d, s%d, v%d' % (IB, sRE, S0 + p))
        a('v_and_b32_sdwa v%d, s%d, v%d dst_sel:DWORD dst_unused:UNUSED_PAD src0_sel:DWORD src1_sel:WORD_1' % (A16[p], sA16, S0 + p))
        if p:
            a('v_lshlrev_b32 v%d, 16, v%d' % (TM, S0 + 2))
        else:
            a('s_set_gpr_idx_idx s%d' % sCX)
            a('s_nop 0')
            a('v_and_b32 v%d, s%d, v%d' % (TM, sHI, S0 + 2))
        a('s_set_gpr_idx_off')
        a('v_permlane32_swap_b32 v%d, v%d' % (IA, IB))
        n1, n2 = P['cs1'], P['cs2']
        for t in cs[:n1]:
            a(t)
        a('s_waitcnt vmcnt(2)')
        a('v_mfma_f32_32x32x16_bf16 %s, %s, %s, 0' % (vr(MD, 16), vr(AM, 4), vr(GB[p], 4)))
        for t in cs[n1:n2]:
            a(t)
        a('v_mfma_f32_32x32x16_bf16 %s, %s, %s, %s' % (vr(MD, 16), vr(AM + 4, 4), vr(GB[p] + 4, 4), vr(MD, 16)))
        gathers(p)
        for t in cs[n2:]:
            a(t)
        if p:
            a('s_mov_b32 s%d, s%d' % (sCX, sDX))
            next_block()
        if P['bpos'] == 0 and p == 1:
            halfbar(1)
        if P['bpos'] == 2 and p == 0:
            halfbar(1)
        a('s_mov_b64 exec, %s' % sr(sMK, 2))
        pk = lambda j: MD + 4 * (j >> 1) + (j & 1)

        def F(j):
            for e in range(2):
                a('v_fma_f32 v%d, v%d, v%d, s%d' % (MD + 2 * j + e, MD + 2 * j + e, GATE + 2 * j + e, sM0))

        def SAD(j):
            a('v_sad_u16 v%d, v%d, s%d, v%d' % (TM + (j >> 1), pk(j), sM1, TM + (j >> 1) if j & 1 else CK))
        F(0)
        for j in range(8):
            if j < 7:
                F(j + 1)
            else:
                a('v_max3_u32 v%d, v%d, v%d, v%d' % (CV, TM, TM + 1, TM + 2))
            a('v_cvt_pknorm_u16_f32 v%d, v%d, v%d' % (pk(j), MD + 2 * j, MD + 2 * j + 1))
            if j:
                SAD(j - 1)
            if j & 1:
                b, o = plane(j >> 1)
                a('ds_add_u64 v%d, %s offset:%d' % (b, vr(pk(j - 1), 2), o))
        SAD(7)
        a('v_max_u32 v%d, v%d, v%d' % (CV, CV, TM + 3))
        a('ds_add_rtn_u32 v%d, v%d, v%d offset:%d' % (RTN[p], AC, CV, CNT0))
        a('s_mov_b64 exec, -1')

    if not hk:
        a('s_cmp_ge_u32 s2, 256')
        a('s_cbranch_scc1 Lk2_end')
    a('s_load_dwordx2 s[4:5], s[0:1], 0')
    a('s_load_dwordx2 s[6:7], s[0:1], 24')
    a('s_load_dwordx2 s[8:9], s[0:1], 40')
    a('s_load_dwordx2 s[10:11], s[0:1], 88')
    if not hk:
        a('s_load_dwordx4 s[12:15], s[0:1], 96')
    if P['cpf'] & 2:
        G['code_prefetch'](a, 'b', 88, 4)
    a('v_lshrrev_b32 v3, 6, v0')
    a('v_and_b32 v%d, 63, v0' % LANE)
    a('v_readfirstlane_b32 s%d, v3' % sW)
    if hk:
        a('v_and_b32 v%d, 3, v0' % VZ)
        a('v_lshlrev_b32 v%d, 6, v%d' % (VZ, VZ))
        mP = cleared_load()
    a('s_and_b32 s%d, s2, 7' % sBIN)
    a('s_lshl_b32 s%d, s%d, 5' % (sBIN, sBIN))
    a('s_lshr_b32 s%d, s2, 3' % sT)
    a('s_add_u32 s%d, s%d, s%d' % (sBIN, sBIN, sT))
    a('s_mov_b32 s%d, 0x%x' % (sM0, f2u(32768.0 / 65535.0)))
    a('s_mov_b32 s%d, 0x80008000' % sM1)
    a('s_mov_b32 s%d, 0x%x' % (sIDM, P['idm']))
    a('s_mov_b32 s%d, 0xffff0000' % sHI)
    a('s_mov_b32 s%d, 0xfff0' % sA16)
    a('s_mov_b32 s%d, 0x07060302' % sPS)
    a('s_mov_b32 s%d, 0' % sMODE)
    a('s_mul_i32 s%d, s%d, %d' % (sPASS, sBIN, BINE))
    a('s_add_u32 s%d, s%d, %d' % (sIX, sPASS, BINE))
    a('s_andn2_b32 s%d, s%d, 3' % (sPASS, sPASS))
    a('s_andn2_b32 s%d, s%d, 3' % (sIX, sIX))
    a('s_sub_u32 s%d, s%d, s%d' % (sIX, sIX, sPASS))
    a('s_sub_u32 s%d, s%d, 3072' % (sT, sIX))
    a('v_cmp_gt_u32 %s, s%d, v0' % (sr(sV6, 2), sT))
    a('v_lshrrev_b32 v%d, 5, v%d' % (IA + 1, LANE))
    a('v_lshlrev_b32 v%d, 4, v%d' % (IA + 1, IA + 1))
    a('v_mov_b32 v%d, v%d' % (IB + 1, IA + 1))
    a('v_mov_b32 v%d, 0' % IA)
    a('v_mov_b32 v%d, 0' % IB)
    a('s_waitcnt lgkmcnt(0)')
    a('s_load_dwordx4 s[96:99], s[8:9], 0')
    srd(a, S_WS, 14, WS_BYTES)
    D, X, DL = RAW, RAW + 4, RAW + 8
    if hk:
        a('s_barrier')
        for j in range(NS0):
            mS = hk.store(j)
    else:
        mDs = desc_load(D, RAW + 12)
        if P['spf']:
            a('s_lshr_b32 s%d, s2, 3' % sT)
            a('s_and_b32 s%d, s%d, 1' % (sT2, sT))
            a('s_mul_i32 s%d, s%d, 160' % (sT2, sT2))
            a('s_add_u32 s%d, s%d, 4720' % (sT2, sT2))
            a('s_and_b32 s90, s2, 7')
            a('s_mul_i32 s%d, s%d, s90' % (sT2, sT2))
            a('s_lshl_b32 s90, s%d, 6' % sW)
            a('s_add_u32 s90, s90, s%d' % sT)
            a('s_mul_i32 s90, s90, %d' % TS)
            a('s_add_u32 s90, s90, s%d' % sT2)
            a('s_add_u32 s90, s90, %d' % REC0)
            a('s_cmp_lt_u32 s%d, %d' % (sT, P['spf']))
            a('s_cselect_b32 s90, s90, %d' % WS_BYTES)
            a('v_min_u32 v%d, 38, v%d' % (WD, LANE))
            a('v_lshlrev_b32 v%d, 7, v%d' % (WD, WD))
            if P['spf'] > 32:
                a('buffer_load_dword v%d, v%d, %s, s90 offen' % (TH, WD, sr(S_WS, 4)))
                a('s_add_u32 s90, s90, %d' % (32 * TS))
                a('s_cmp_lt_u32 s%d, %d' % (sT, P['spf'] - 32))
                a('s_cselect_b32 s90, s90, %d' % WS_BYTES)
            a('buffer_load_dword v%d, v%d, %s, s90 offen' % (WD, WD, sr(S_WS, 4)))
    a('s_lshl_b32 s%d, s%d, 1' % (sT, sPASS))
    a('s_lshl_b32 s%d, s%d, 5' % (sT2, sPASS))
    srd(a, S_DIST, 6, 0, 's%d' % sT)
    srd(a, S_M, 4, E, None, 32)
    srd(a, S_MR, 4, E * 32)
    srd(a, S_MO, 4, 0, 's%d' % sT2)
    srd(a, S_OUT, 10, 0, 's%d' % sT2)
    a('s_lshl_b32 s%d, s%d, 1' % (S_DIST + 2, sIX))
    a('s_lshl_b32 s%d, s%d, 5' % (S_MO + 2, sIX))
    a('s_lshl_b32 s%d, s%d, 5' % (S_OUT + 2, sIX))
    G['stamp_init'](a, S_DBG, 14, 1, sW)
    a('s_waitcnt lgkmcnt(0)')
    for r in range(4):
        a('s_lshl_b32 s%d, s%d, 16' % (sCEN + 2 * r, 96 + r))
        a('s_and_b32 s%d, s%d, 0xffff0000' % (sCEN + 2 * r + 1, 96 + r))
    a('s_mov_b32 s%d, 0x%x' % (sR, f2u(math.sqrt(10.0 * math.log2(math.e)))))
    a('v_mov_b32 v%d, s%d' % (RT + 8, sR))
    for r in range(8):
        a('v_mul_f32 v%d, s%d, v%d' % (RT + r, sCEN + r, RT + 8))
    for r in range(8):
        a('v_readfirstlane_b32 s%d, v%d' % (sCEN + r, RT + r))
    stamp(0)
    Z, T0 = 96, 104
    for i in range(4):
        a('v_mov_b32 v%d, 0' % (Z + i))
        a('v_bfrev_b32 v%d, 1' % (Z + 4 + i))
    a('v_lshlrev_b32 v%d, 4, v0' % T0)
    a('v_lshlrev_b32 v%d, 3, v0' % (T0 + 1))
    a('s_mul_i32 s%d, s%d, 1088' % (sTB, sW))
    a('v_lshl_add_u32 v%d, v%d, 4, s%d' % (T0 + 2, LANE, sTB))
    a('ds_write_b64 v%d, %s offset:%d' % (T0 + 1, vr(Z, 2), BB0))
    a('ds_write_b128 v%d, %s offset:%d' % (T0 + 2, vr(Z + 4, 4), TB0))
    a('ds_write_b128 v%d, %s offset:%d' % (T0 + 2, vr(Z + 4, 4), TB0 + 64))
    a('s_movk_i32 s%d, 400' % sT)
    a('v_cmpx_gt_u32 vcc, s%d, v0' % sT)
    a('ds_write_b128 v%d, %s offset:%d' % (T0, vr(Z, 4), KC0))
    a('ds_write_b128 v%d, %s offset:%d' % (T0, vr(Z, 4), KC0 + 6400))
    a('s_mov_b64 exec, -1')
    a('v_mov_b32 v%d, 1' % ONE)
    a('v_mov_b32 v%d, 4' % EIGHT)
    a('v_mul_u32_u24 v%d, 12, v%d' % (L12, LANE))
    a('s_lshl_b32 s%d, s%d, %d' % (sT, sW, 9 if P['smaj'] else 10))
    a('v_lshl_add_u32 v%d, v%d, 3, s%d' % (RBA, LANE, sT))
    a('s_lshl_b32 s%d, s2, 3' % sT)
    a('s_add_u32 s%d, s%d, s%d' % (sT, sT, sW))
    a('s_mul_i32 s%d, s%d, 25' % (sT, sT))
    a('v_min_u32 v%d, 24, v%d' % (WA, LANE))
    a('v_add_lshl_u32 v%d, v%d, s%d, 7' % (WA, WA, sT))
    for j in range(4):
        if P['wpos'][j] == '0':
            a('s_mov_b32 s%d, %d' % (sT, j * 51200 * 128))
            a('buffer_load_dword v%d, v%d, %s, s%d offen' % (WD, WA, sr(S_MR, 4), sT))
    a('s_movk_i32 s%d, %d' % (sT, REC0 // 12))
    a('v_mov_b32 v%d, %d' % (T0 + 3, TSP))
    a('v_mad_u32_u24 v%d, v0, v%d, s%d' % (T0 + 3, T0 + 3, sT))
    if hk:
        rest = []
        for j in range(NS0, 20):
            if 20 - j <= len(hk.rest_a):
                rest.append(hk.rest_a[j - 20])
            rest.append(lambda j=j: hk.store(j))
        for j in range(P['nsx']):
            rest.pop(0)()
        a.wait_vm(mS)
        a('s_barrier')
        hk.publish()
        stamp(11)
        late = rest[len(rest) - P['nlate']:] if P['nlate'] else []
        for f in rest[:len(rest) - len(late)]:
            mS = f()
        spin(cleared_load, lambda: a('v_cmpx_gt_u32 vcc, 64, v%d' % VP), mP)
        mDs = desc_load(D, RAW + 12)
        done_addr()
        stamp(12)
        if not late:
            a.wait_vm(mS)
            hk.arrive2(0, VT, hk.arrive1(0, VT))

        def nr():
            a('v_and_b32 v%d, v%d, v%d' % (VT, D, D + 1))
            a('v_and_b32 v%d, v%d, v%d' % (VT + 1, D + 2, D + 3))
            a('v_and_b32 v%d, v%d, v%d' % (VT, VT, VT + 1))
            a('v_cmpx_le_i32 vcc, 0, v%d' % VT)
        spin(lambda: desc_load(D, RAW + 12), nr, mDs)
        stamp(13)
        for k in range(4):
            a('v_and_b32 v%d, 0x7fffffff, v%d' % (D + k, D + k))
    else:
        a.wait_vm(mDs)
    NP = RAW + 28
    for k in range(4):
        a('v_add_u32 v%d, 0x10000, v%d' % (NP + k, D + k))
        a('v_bfe_u32 v%d, v%d, 16, 1' % (X + k, D + k))
        a('v_lshrrev_b32 v%d, 17, v%d' % (NP + k, NP + k))
        a('v_and_b32 v%d, 0xffff, v%d' % (D + k, D + k))
        a('v_lshl_or_b32 v%d, v%d, 20, v%d' % (X + k, X + k, NP + k))
    scan4(X)
    TT = RAW + 32
    a('s_movk_i32 s%d, %d' % (sT2, NSL * 64))
    for k in range(4):
        a('v_lshrrev_b32 v%d, 20, v%d' % (TT + k, X + k))
        a('v_and_b32 v%d, 0xfffff, v%d' % (X + k, X + k))
        a('v_add_u32 v%d, v%d, v%d' % (DL + k, D + k, T0 + 3))
        a('v_sub_u32 v%d, v%d, v%d' % (TT + k, X + k, TT + k))
        a('v_sub_u32 v%d, v%d, v%d' % (DL + k, DL + k, X + k))
        a('v_add_u32 v%d, v%d, v%d' % (TT + k, TT + k, X + k))
        a('v_mul_u32_u24 v%d, 12, v%d' % (DL + k, DL + k))
        a('v_subrev_u32 v%d, %d, v%d' % (T0, 64 * P['nfull'], X + k))
        a('v_cmpx_lt_u32 vcc, %d, v%d' % (64 * (NSL - P['nfull']), T0))
        a('v_mov_b32 v%d, 0x1000000' % (TT + k))
        a('s_mov_b64 exec, -1')
    if hk:
        a('v_cmp_lt_u32 vcc, %d, v%d' % (NS0 * 8192 // 12, D + P['nrun'] - 1))
        a('s_cmp_lg_u64 vcc, 0')
        a('s_cselect_b64 exec, -1, 0')
        a('v_mov_b32 v%d, 0x1000000' % TT)
        a('s_mov_b64 exec, -1')
    for k in range(4):
        a('v_readlane_b32 s%d, v%d, 63' % (sEW + k, X + k))
    a('s_lshl_b32 s%d, s%d, 4' % (sT, sW))
    a('v_mov_b32 v%d, s%d' % (T0, sT))
    a('s_mov_b32 exec_lo, 0')
    a('s_mov_b32 exec_hi, 0x80000000')
    a('ds_write_b128 v%d, %s offset:%d' % (T0, vr(TT, 4), SC0))
    a('s_mov_b64 exec, -1')
    a('s_lshl_b32 s%d, s%d, 9' % (sT, sW))
    for k in range(4):
        a('v_subrev_u32 v%d, 1, v%d' % (T0, X + k))
        a('v_lshlrev_b32 v%d, v%d, v%d' % (T0 + 1, T0, ONE))
        a('v_lshrrev_b32 v%d, 5, v%d' % (T0, T0))
        a('v_lshl_add_u32 v%d, v%d, 2, s%d' % (T0, T0, sT))
        a('v_cmpx_ge_u32 vcc, s%d, v%d' % (sT2, X + k))
        a('v_cmpx_ne_u32 vcc, 0, v%d' % (NP + k))
        a('v_mbcnt_lo_u32_b32 v%d, vcc_lo, 0' % (T0 + 2))
        a('v_mbcnt_hi_u32_b32 v%d, vcc_hi, v%d' % (T0 + 2, T0 + 2))
        a('v_lshl_add_u32 v%d, v%d, 2, s%d' % (T0 + 2, T0 + 2, sTB))
        a('ds_or_b32 v%d, v%d offset:%d' % (T0, T0 + 1, BB0 + 128 * k))
        a('ds_write_b32 v%d, v%d offset:%d' % (T0 + 2, DL + k, TB0 + 272 * k))
        a('s_mov_b64 exec, -1')
    a('v_and_b32 v%d, 7, v0' % T0)
    a('v_lshlrev_b32 v%d, 4, v%d' % (T0, T0))
    a('s_waitcnt lgkmcnt(0)')
    a('s_barrier')
    a('ds_read_b128 %s, v%d offset:%d' % (vr(TT, 4), T0, SC0))
    a('s_mov_b32 s%d, 0' % sPc)
    a('s_waitcnt lgkmcnt(0)')
    for c in ('row_shr:1', 'row_shr:2', 'row_shr:4'):
        for k in range(4):
            a('v_add_u32_dpp v%d, v%d, v%d %s row_mask:0xf bank_mask:0xf' % (TT + k, TT + k, TT + k, c))
    for k in range(4):
        a('v_readlane_b32 s%d, v%d, 7' % (sPc + 1 + k, TT + k))
    for k in range(1, 4):
        a('s_add_u32 s%d, s%d, s%d' % (sPc + 1 + k, sPc + 1 + k, sPc + k))
    a('s_cmp_gt_u32 s%d, %d' % (sPc + 4, NBLK * 1024 if P['force_slow'] != 4 else 0))
    a('s_cbranch_scc1 Lk2_fb')
    a('s_cmp_ge_u32 s%d, %d' % (sPc + 2, 29 * 1024))
    a('s_cbranch_scc1 Lk2_fb')
    stamp(1)

    BUF = (96, 156)
    LEAD, HP = P['lead'], P['hp']
    RO, ZR = (164 if P['rsp'] else 184), 212
    DI = (TF[0], TF[1], VM, L12, TH, TH + 1, ONE)
    NFULL = P['nfull']
    mA, mC, mV, mM = {}, {}, {}, {}
    VMS = (255, VM)

    def raw(u):
        return BUF[(u // NSL) & 1] + 4 * (u % NSL)

    def Mrd(r):
        a('s_lshl_b32 s%d, s%d, 9' % (sT, sW))
        a('v_lshl_add_u32 v%d, v%d, 2, s%d' % (VMS[r >> 1], LANE, sT))
        a('ds_read_b32 v%d, v%d offset:%d' % (VMS[r >> 1], VMS[r >> 1], BB0 + 128 * r))
        mM[r] = a.mark()

    def keys(t0, t1, R):
        for e, t in enumerate((t0, t1)):
            a('v_lshrrev_b32 v%d, 6, v%d' % (t, R + 2 * e))
        for t in (t0, t1):
            a('v_and_b32 v%d, 0x3ffc, v%d' % (t, t))

    def A(u):
        R = raw(u)
        t0, t1 = TAR[2 * (u % NA)], TAR[2 * (u % NA) + 1]
        keys(t0, t1, R)
        for t in (t0, t1):
            a('ds_read_b32 v%d, v%d offset:%d' % (t, t, KC0))
        mA[u] = a.mark()

    def B(u):
        R = raw(u)
        tail = u % NSL >= NFULL
        if tail:
            a('v_cmpx_gt_i32 vcc, 0, v%d' % (R + 1))
        a.wait_ds(mA[u])
        for e in range(2):
            t = TAR[2 * (u % NA) + e]
            a('v_add_u32 v%d, v%d, v%d' % (t, t, R + 2 * e + 1))
        for e in range(2):
            t = TAR[2 * (u % NA) + e]
            a('v_lshlrev_b32_sdwa v%d, 1, v%d dst_sel:DWORD dst_unused:UNUSED_PAD src0_sel:DWORD src1_sel:WORD_0' % (t, t))
            a('ds_write_b64 v%d, %s offset:%d' % (t, vr(R + 2 * e, 2), RING0))
        if tail:
            a('s_mov_b64 exec, -1')

    def C(u):
        if u >= 4 * NSL:
            return
        r, k = divmod(u, NSL)
        t = TF[u & 1]
        if u == 0:
            a.wait_ds(mM[2])
        if k == 0:
            a('s_mul_i32 s%d, s%d, 1088' % (sTB, sW))
        a('v_readlane_b32 s%d, v%d, %d' % (sLO, VMS[r >> 1], 32 * (r & 1) + 2 * k))
        a('v_readlane_b32 s%d, v%d, %d' % (sLO + 1, VMS[r >> 1], 32 * (r & 1) + 2 * k + 1))
        a('s_bcnt1_i32_b64 s%d, %s' % (sT, sr(sLO, 2)))
        a('v_mbcnt_lo_u32_b32 v%d, s%d, 0' % (t, sLO))
        a('v_mbcnt_hi_u32_b32 v%d, s%d, v%d' % (t, sLO + 1, t))
        a('v_lshl_add_u32 v%d, v%d, 2, s%d' % (t, t, sTB))
        a('s_lshl2_add_u32 s%d, s%d, s%d' % (sTB, sT, sTB))
        a('ds_read_b32 v%d, v%d offset:%d' % (t, t, TB0 + 272 * r))
        mC[u] = a.mark()

    def Dd(u):
        if u >= 4 * NSL:
            return
        t = TF[u & 1]
        a('s_movk_i32 s%d, %d' % (sT2, 768 * (u % NSL)))
        a.wait_ds(mC[u])
        a('v_add_u32 v%d, v%d, v%d' % (t, t, L12))
        if P['abl'] & 2048:
            a('v_and_b32 v%d, 0x3ffff, v%d' % (t, t))
        a('buffer_load_dwordx3 %s, v%d, %s, s%d offen %s' % (vr(raw(u), 3), t, sr(S_WS, 4), sT2, HO))
        mV[u] = a.mark()

    hpend = []
    hcnt = [0]

    def H2():
        while hpend:
            R, t0, t1, m = hpend.pop()
            a.wait_ds(m)
            a('v_lshl_or_b32 v%d, v%d, 16, v%d' % (R + 3, R + 1, t1))
            a('v_and_or_b32 v%d, v%d, s%d, v%d' % (R + 1, R + 1, sHI, t0))

    def H(u):
        R = raw(u)
        tail = u % NSL >= NFULL
        t0, t1 = ((TH, TH + 1), (236, 238))[hcnt[0] & 1]
        hcnt[0] += 1
        a.wait_vm(mV[u])
        keys(t0, t1, R)
        if tail:
            a('v_cmpx_gt_i32 vcc, 0, v%d' % (R + 1))
        for t in (t0, t1):
            a('ds_add_rtn_u32 v%d, v%d, v%d offset:%d' % (t, t, EIGHT, KC0))
        m = a.mark()
        if tail:
            a('s_mov_b64 exec, -1')
        H2()
        hpend.append((R, t0, t1, m))

    def keyscan(r):
        K = RT
        nds = a.nds
        a('s_cmp_lg_u32 s%d, %d' % (sW, P['scw']))
        a('s_cbranch_scc1 Lks%d' % r)
        if P['kl']:
            L_ = P['kl']
            a('s_bitcmp1_b32 s2, %d' % P['lfb'])
            a('s_cselect_b32 s%d, %d, %d' % (sT, *((L_, 0) if not (P['kalt'] and r & 1) else (0, L_))))
            a('v_add_u32 v%d, s%d, v%d' % (RA, sT, LANE))
            if L_ & (L_ - 1) == 0:
                a('v_xor_b32 v%d, %d, v%d' % (RA, L_, RA))
            else:
                a('v_mul_u32_u24 v%d, %d, v%d' % (RA + 1, -(-1024 // L_), RA))
                a('v_bfe_u32 v%d, v%d, 10, 1' % (RA + 1, RA + 1))
                a('v_mad_i32_i24 v%d, v%d, %d, v%d' % (RA, RA + 1, -2 * L_, RA))
                a('v_add_u32 v%d, %d, v%d' % (RA, L_, RA))
            a('v_subrev_u32 v%d, s%d, v%d' % (RA, sT, RA))
            a('v_cmpx_le_u32 vcc, 49, v%d' % RA)
            a('v_mov_b32 v%d, v%d' % (RA, LANE))
            a('s_mov_b64 exec, -1')
            a('v_lshlrev_b32 v%d, 6, v%d' % (RA, RA))
        else:
            a('v_lshlrev_b32 v%d, 6, v%d' % (RA, LANE))
        for j in range(4):
            a('ds_read_b128 %s, v%d offset:%d' % (vr(K + 4 * j, 4), RA, KC0 + 3136 * r + 16 * j))
        a('s_waitcnt lgkmcnt(0)')
        for j in range(1, 16):
            a('v_add_u32 v%d, v%d, v%d' % (K + j, K + j, K + j - 1))
        a('v_mov_b32 v%d, v%d' % (RA + 1, K + 15))
        G['scan64'](a, RA + 1)
        a('v_sub_u32 v%d, v%d, v%d' % (RA + 1, RA + 1, K + 15))
        a('v_lshl_add_u32 v%d, s%d, 2, v%d' % (RA + 1, sPc + r, RA + 1))
        a('v_cmpx_gt_u32 vcc, 49, v%d' % LANE)
        for j in range(15, -1, -1):
            if j:
                a('v_add_u32 v%d, v%d, v%d' % (K + j, K + j - 1, RA + 1))
            else:
                a('v_mov_b32 v%d, v%d' % (K, RA + 1))
            if j % 4 == 0:
                a('ds_write_b128 v%d, %s offset:%d' % (RA, vr(K + j, 4), KC0 + 3136 * r + 4 * j))
        a('s_lshl_b32 s%d, s%d, 2' % (sT, sPc + r + 1))
        a('v_mov_b32 v%d, s%d' % (RA + 1, sT))
        a('v_lshlrev_b32 v%d, 2, v%d' % (RA, LANE))
        a('s_mov_b64 exec, 0xffff')
        a('ds_write_b32 v%d, v%d offset:%d' % (RA, RA + 1, KC0 + 4 * (3136 + 16 * r)))
        a('s_mov_b64 exec, -1')
        a('Lks%d:' % r)
        a('s_nop 1')
        a.nds = nds

    def rb_reads(RT=RT, j0=0):
        mk = {}
        for j in range(4):
            a('s_add_u32 s%d, s%d, %d' % (sT, sRB, j0 + j))
            a('s_and_b32 s%d, s%d, 15' % (sT, sT))
            a('s_lshl_b32 s%d, s%d, 13' % (sT, sT))
            a('v_add_u32 v%d, s%d, v%d' % (RA + j, sT, RBA))
            a('ds_read_b64 %s, v%d offset:%d' % (vr(RT + 4 * j, 2), RA + j, RING0))
            a('ds_read_b64 %s, v%d offset:%d' % (vr(RT + 4 * j + 2, 2), RA + j, RING0 + (4096 if P['smaj'] else 512)))
            mk[j] = a.mark()
        return mk

    def rb_moves(mk, RT=RT):
        a('s_mul_i32 s%d, s%d, 3' % (sIX, sRB))
        a('s_set_gpr_idx_on s%d, gpr_idx(DST)' % sIX)
        for j in range(4):
            a.wait_ds(mk[j])
            a('v_mov_b32 v%d, v%d' % (S0 + 3 * j, RT + 4 * j))
            a('v_mov_b32 v%d, v%d' % (S0 + 3 * j + 1, RT + 4 * j + 2))
            a('v_perm_b32 v%d, v%d, v%d, s%d' % (S0 + 3 * j + 2, RT + 4 * j + 3, RT + 4 * j + 1, sPS))
        a('s_set_gpr_idx_off')
        a('s_add_u32 s%d, s%d, 4' % (sRB, sRB))

    def readback(tag):
        nds = a.nds
        a('s_cmp_ge_u32 s%d, s%d' % (sRB, sRE))
        a('s_cbranch_scc1 Lrd%s' % tag)
        a('Lrl%s:' % tag)
        rb_moves(rb_reads())
        a('s_cmp_lt_u32 s%d, s%d' % (sRB, sRE))
        a('s_cbranch_scc1 Lrl%s' % tag)
        a('Lrd%s:' % tag)
        a('s_mov_b32 s%d, s%d' % (sRB, sRE))
        a.nds = nds

    def warm(j):
        if P['warm']:
            a('s_mov_b32 s%d, %d' % (sT, j * 51200 * 128))
            a('buffer_load_dword v%d, v%d, %s, s%d offen' % (WD, WA, sr(S_MR, 4), sT))

    def l2pf(j):
        if j * 16384 >= P['pfn']:
            return
        if j == 0:
            a('s_lshr_b32 s%d, s2, 3' % sT)
            a('s_lshl_b32 s%d, s%d, 9' % (sT, sT))
            a('v_add_lshl_u32 v%d, v0, s%d, 7' % (WA, sT))
            a('s_mov_b32 s%d, %d' % (S_MR + 2, P['pfn'] * 128))
        a('s_mov_b32 s%d, %d' % (sT, j * 16384 * 128))
        a('buffer_load_dword v%d, v%d, %s, s%d offen' % (WD, WA, sr(S_MR, 4), sT))

    def dist_loads():
        a('v_lshlrev_b32 v%d, 1, v0' % (RA + 2))
        for q in range(NQ):
            a('s_movk_i32 s%d, %d' % (sT, q * 1024))
            a('buffer_load_ushort v%d, v%d, %s, s%d offen' % (DI[q], RA + 2, sr(S_DIST, 4), sT))
        return a.mark()

    def rbf_batch(q, halves=(0, 1)):
        K = RT
        if 0 in halves:
            a('v_lshlrev_b32 v%d, 16, v%d' % (K + 8, DI[q]))
            a('v_mul_f32 v%d, s%d, v%d' % (K + 8, sR, K + 8))
        rs = [r for h in halves for r in range(4 * h, 4 * h + 4)]
        for r in rs:
            a('v_subrev_f32 v%d, s%d, v%d' % (K + r, sCEN + r, K + 8))
        for r in rs:
            a('v_mul_f32 v%d, v%d, v%d' % (K + r, K + r, K + r))
        for r in rs:
            a('v_exp_f32 v%d, -v%d' % (K + r, K + r))
        if 1 in halves:
            for r in range(4):
                a('v_cvt_pk_f16_f32 v%d, v%d, v%d' % (RO + 4 * q + r, K + 2 * r, K + 2 * r + 1))

    NP_ = P['npipe']

    def guarded(r, body):
        n = lab[0]
        lab[0] += 1
        nds, nvm = a.nds, a.nvm
        for k in range(NP_, NSL):
            a('s_cmp_le_u32 s%d, %d' % (sEW + r, 64 * k))
            a('s_cbranch_scc1 Lg%d' % n)
            body(NSL * r + k)
        a('Lg%d:' % n)
        a('s_nop 3')
        a.nds, a.nvm = nds, nvm

    def U(x):
        return NSL * (x // NP_) + x % NP_

    def Cx(x):
        C(U(x))

    def Dx(x):
        if x >= 4 * NP_:
            return
        if hk and x == NP_ * P['nrun'] - 3:
            mM['p'] = done_load()
        if hk and x == NP_ * P['nrun']:
            stamp(14)
            done_wait(mM['p'])
            stamp(15)
        Dd(U(x))

    def loadstep(x):
        def first():
            if (x + 1) % NP_:
                Cx(x + 1)

        def second():
            Dx(x)
            if (x + 1) % NP_ == 0 and x < 4 * NP_:
                r = x // NP_

                def body(u):
                    C(u)
                    Dd(u)
                guarded(r, body)
                for k in range(NP_, NSL):
                    mV[NSL * r + k] = a.mark()
                if r < 3:
                    Cx(x + 1)
        return first, second

    def Hx(x):
        H(U(x))
        if (x + 1) % NP_ == 0:
            H2()
            guarded(x // NP_, lambda u: (H(u), H2()))

    Mrd(0)
    Mrd(2)
    a('s_mov_b32 s%d, 0' % sRB)
    lag = P['dv']
    C(0)
    for i in range(NP_ + lag):
        f1, f2 = loadstep(i)
        f1()
        f2()
        if hk and P['lt0'] <= i < P['lt0'] + len(late):
            mS = late[i - P['lt0']]()
        if i >= lag:
            Hx(i - lag)
    if hk and late:
        a.wait_vm(mS)
        hk.arrive2(0, VT, hk.arrive1(0, VT))
    a('s_waitcnt lgkmcnt(0)')
    a('s_barrier')
    keyscan(0)
    lead0 = P['lead0']
    for i in range(NP_ + lag, NP_ + lead0):
        f1, f2 = loadstep(i)
        f1()
        f2()
    a('s_waitcnt lgkmcnt(0)')
    a('s_barrier')
    nxt = NP_ + max(lag, lead0)
    for r in range(4):
        stamp(2 + r)
        u0 = NSL * r
        hq = list(range(NP_ * (r + 1), NP_ * (r + 2))) if r < 3 else []
        if r:
            a('s_lshr_b32 s%d, s%d, 10' % (sRE, sPc + r))
            for g in range(3):
                mk = rb_reads()
                if hq:
                    Hx(hq.pop(0))
                rb_moves(mk)
            readback(str(r))
        while r and len(hq) > NP_ - HP:
            Hx(hq.pop(0))
        for k in range(NA - 1):
            A(u0 + k)
        if r == P['fr']:
            stamp(11)
        if r:
            a('s_barrier')
        if r == P['fr']:
            stamp(12)
        pend = None
        for i in range(NP_):
            f1, f2 = loadstep(nxt)
            f1()
            if i + NA - 1 < NP_:
                A(u0 + i + NA - 1)
            B(u0 + i)
            assert nxt < NP_ * (r + 2) or nxt - NP_ * (r + 2) <= i
            f2()
            nxt += 1
            if nxt < NP_ * (r + 1) + LEAD + i + 1:
                f1, f2 = loadstep(nxt)
                f1()
                f2()
                nxt += 1
            nh = 2 if (len(hq) > max(1, NP_ - HP - i) and U(hq[1]) in mV and hq[1] + 4 <= nxt) else 1
            for _ in range(nh):
                if hq:
                    Hx(hq.pop(0))
                    if not hq:
                        pend = (i + P['bhd'], a.mark())
                        if r == 2:
                            mD = dist_loads()
            if pend and pend[0] == i:
                a.wait_ds(pend[1])
                if r == P['fr']:
                    stamp(13)
                a('s_barrier')
                keyscan(r + 1)
                if r == P['fr']:
                    stamp(14)
            for j in range(4):
                if P['wpos'][j] == 'abcdefghijklmnopqrstuvwxyzABCDEFGH'[(r - 2) * NP_ + i] and r >= 2:
                    warm(j)
            for j in range(2):
                if P['ppos'][j] == 'abcdefghijklmnopqrstuvwxyzABCDEFGH'[(r - 2) * NP_ + i] and r >= 2:
                    l2pf(j)
            if r == 3 and P['rsp']:
                if i == 1:
                    a.wait_vm(mD)
                if i >= 1:
                    rbf_batch((i - 1) >> 1, ((i - 1) & 1,))
                continue
            if r == 3 and i == 6:
                if not P['imgl']:
                    img_load(0, 5, AG, RA)
                a.wait_vm(mD)
            if r == 3 and 7 <= i < 7 + NQ - 1:
                rbf_batch(i - 7)

        def body(u):
            A(u)
            B(u)
        guarded(r, body)
        if r == 3:
            a('s_cmp_lg_u32 s%d, 0' % sW)
            a('s_cbranch_scc1 Lk2_r6')
            rbf_batch(NQ - 1)
            a('Lk2_r6:')
        a('s_waitcnt lgkmcnt(0)')
        if r == P['fr']:
            stamp(15)
        a('s_barrier')
    stamp(6)
    a('s_add_u32 s%d, s%d, 1023' % (sRE, sPc + 4))
    a('s_lshr_b32 s%d, s%d, 10' % (sRE, sRE))
    if P['fpipe']:
        RT2 = 164
        a('s_cmp_gt_u32 s%d, 41' % sRB)
        a('s_cbranch_scc1 Lk2_f0')
        m0 = rb_reads(RT)
        m1 = rb_reads(RT2, 4)
        rb_moves(m0, RT)
        m0 = rb_reads(RT, 4)
        rb_moves(m1, RT2)
        rb_moves(m0, RT)
        a('Lk2_f0:')
    readback('L')
    a('s_max_u32 s%d, s%d, 1' % (sRB, sRB))
    a('s_sub_u32 s%d, s%d, 1' % (sRB, sRB))
    a('s_mul_i32 s%d, s%d, 3' % (sEND, sRB))
    a('s_lshl_b32 s%d, s%d, 10' % (sT, sRB))
    a('s_sub_u32 s%d, s%d, s%d' % (sT, sPc + 4, sT))
    a('v_lshrrev_b32 v%d, 3, v%d' % (TM, RBA))
    a('v_add_u32 v%d, %d, v%d' % (TM + 1, 512 if P['smaj'] else 64, TM))
    a('v_cmp_gt_u32 %s, s%d, v%d' % (sr(sLM, 2), sT, TM))
    a('v_cmp_gt_u32 %s, s%d, v%d' % (sr(sLM + 2, 2), sT, TM + 1))
    a('s_set_gpr_idx_on s%d, gpr_idx(SRC1,DST)' % sEND)
    a('s_andn2_b64 exec, -1, %s' % sr(sLM + 2, 2))
    a('v_mov_b32 v%d, 0' % (S0 + 1))
    a('v_and_b32 v%d, 0xffff, v%d' % (S0 + 2, S0 + 2))
    a('s_andn2_b64 exec, -1, %s' % sr(sLM, 2))
    a('v_mov_b32 v%d, 0' % S0)
    a('v_mov_b32 v%d, 0' % (S0 + 2))
    a('s_mov_b64 exec, -1')
    a('s_set_gpr_idx_off')
    a('s_mov_b32 s%d, 0' % sIX)
    if P['lf']:
        a('s_mov_b32 s%d, 0' % sI1)
        a('s_mov_b32 s%d, s%d' % (sLB, sRB))
        a('s_bitcmp1_b32 s2, %d' % P['lfb'])
        if P['lfm'] == 0:
            a('s_cselect_b32 s%d, %d, 0' % (sOF, P['lf']))
            a('s_mov_b32 s75, %d' % (0 if P['kl'] else P['lf']))
        else:
            a('s_cselect_b32 s75, %d, 0' % P['lf'])
            a('s_mov_b32 s%d, 0' % sOF)
        if P['lg']:
            a('s_sub_u32 s%d, s%d, %d' % (sLB, sRB, P['lg'] - 1))
            a('s_lshr_b32 s%d, s2, 3' % sT)
            a('s_mul_i32 s%d, s%d, %d' % (sT, sT, P['lg']))
            a('s_lshr_b32 s%d, s%d, 5' % (sOF, sT))
        next_block()
    a('Lk2_init:')
    a('s_barrier')
    for i in range(4):
        a('v_mov_b32 v%d, 0' % (ZR + i))
    a('v_lshlrev_b32 v%d, 4, v0' % A4)
    a('v_add_u32 v%d, %d, v%d' % (A4B, HI0, A4))
    a('v_add_u32 v%d, %d, v%d' % (CV, RBF0, A4))
    for q in range(NQ - 1):
        a('ds_write_b128 v%d, %s offset:%d' % (CV, vr(RO + 4 * q, 4), 8192 * q))
    a('s_mov_b64 exec, %s' % sr(sV6, 2))
    a('ds_write_b128 v%d, %s offset:%d' % (CV, vr(RO + 4 * NQ - 4, 4), 8192 * (NQ - 1)))
    a('s_mov_b64 exec, -1')
    img_load(0, 5, AG, TM)
    a('s_cmp_lg_u32 s%d, 0' % sMODE)
    a('s_cbranch_scc1 Lk2_ng')
    decode_rel(0, 0)
    gathers(0)
    decode_rel(1, 0)
    gathers(1)
    a('Lk2_ng:')
    if P['ztid']:
        a('s_lshl_b32 m0, s%d, 8' % sW)
        a('s_nop 0')
        for o in list(range(0, RBF0 - 2048, 2048)) + [RBF0 - 2048]:
            a('ds_write_addtid_b32 v%d offset:%d' % (ZR, o))
    for o in (list(range(0, RBF0 - 8192, 8192)) + [RBF0 - 8192]) * (not P['ztid']):
        a('ds_write_b128 v%d, %s offset:%d' % (A4, vr(ZR, 4), o))
    for o in list(range(0, 4 * PL - 8192, 8192)) + [4 * PL - 8192]:
        a('ds_write_b128 v%d, %s offset:%d' % (A4B, vr(ZR, 4), o))
    a('v_mov_b32 v%d, 0' % STK)
    a('v_mov_b32 v%d, 0' % RTN[0])
    a('v_mov_b32 v%d, 0' % RTN[1])
    a('v_mov_b32 v%d, 0x1000000' % CK)
    a('v_and_b32 v255, 0x1df, v0')
    a('v_lshl_add_u32 v255, v255, 5, v%d' % (IA + 1))
    a('s_waitcnt lgkmcnt(0)')
    a('s_barrier')
    stamp(7, True)
    a('s_cmp_lg_u32 s%d, 0' % sMODE)
    a('s_cbranch_scc1 Lk2_all')
    a('ds_read_b128 %s, v%d offset:%d' % (vr(RBF, 4), A16[0], RBF0))
    if P['s2']:
        a('v_mov_b32 v%d, v%d' % (TM, ANG[0]))
        for t in cos2():
            a(t)
        a('s_mov_b32 s%d, s%d' % (sCX, sDX))
        next_block()
        a('s_waitcnt vmcnt(4)')
    a('s_waitcnt lgkmcnt(0)')
    MQ, AU, AR, OA = 4, 60, 68, 255
    WW, RBB, CNN = (132, 96), (140, 104), (144, 108)
    R16, T1, T2, T3, T4 = 92, 112, 113, 114, 115
    MF, AI, KB = 116, 72, 80
    sTRG = 89

    def epi_loads():
        img_load(5, 3, AU, 2)
        for q in range(NQ):
            a('s_mov_b32 s%d, %d' % (sT, q * 16384))
            a('buffer_load_dwordx4 %s, v%d, %s, s%d offen' % (vr(MQ + 8 * q, 4), OA, sr(S_MO, 4), sT))
            a('buffer_load_dwordx4 %s, v%d, %s, s%d offen offset:1024' % (vr(MQ + 8 * q + 4, 4), OA, sr(S_MO, 4), sT))
        T1, T2, T3, T4 = 2, 3, 82, 83
        a('v_mov_b32 v%d, 0' % KB)
        a('v_mov_b32 v%d, 0x%x' % (KB + 1, (-0x10001) & 0xffffffff))
        a('v_bfe_u32 v%d, v0, 2, 1' % T1)
        a('v_bfe_u32 v%d, v0, 5, 1' % T2)
        a('v_and_b32 v%d, 1, v0' % T3)
        a('v_lshlrev_b32 v%d, 4, v%d' % (T3, T3))
        a('v_mov_b32 v%d, 0x3f80' % T4)
        a('v_lshlrev_b32 v%d, v%d, v%d' % (T3, T3, T4))
        a('v_bfe_u32 v%d, v0, 3, 2' % T4)
        a('v_xor_b32 v%d, v%d, v%d' % (T1, T1, T2))
        a('v_bfe_u32 v%d, v0, 1, 1' % T2)
        a('v_lshl_or_b32 v%d, v%d, 1, v%d' % (T4, T4, T2))
        a('v_lshl_or_b32 v%d, v%d, 3, v%d' % (T4, T1, T4))
        for i in range(8):
            a('v_mov_b32 v%d, 0' % (AI + i))
            a('v_cmpx_eq_u32 vcc, %d, v%d' % (i, T4))
            a('v_mov_b32 v%d, v%d' % (AI + i, T3))
            a('s_mov_b64 exec, -1')
        if P['epf']:
            G['code_prefetch'](a, 'e%d' % lab[0], 98, 2, 256, 'Lk2_epi', 'Lk2_e6')
            lab[0] += 1

    a('s_mul_i32 s%d, s%d, 49' % (sTRG, sBIN))
    a('s_lshr_b32 s%d, s%d, 8' % (sTRG, sTRG))
    a('s_add_u32 s%d, s%d, %d' % (sTRG, sTRG, P['trg']))
    a('s_and_b32 s%d, s%d, 15' % (sT, sBIN))
    a('s_add_u32 s%d, s%d, %d' % (sT, sT, 28 + P['lf'] + P['s2']))
    a('s_cmp_lt_u32 s%d, %d' % (sTRG, 28 + P['lf'] + P['s2']))
    a('s_cselect_b32 s%d, s%d, s%d' % (sTRG, sT, sTRG))
    a('s_mul_i32 s%d, s%d, 3' % (sTRG, sTRG))
    a('s_min_u32 s%d, s%d, s%d' % (sTRG, sTRG, sEND))
    assert 4 * 8 * (128 * P['nfull'] - 64) > 32 * 1024
    if '1' in P['wpos']:
        a('s_mov_b32 s90, %d' % (3 * P['mw1']))
        a('s_mov_b32 s91, %d' % (P['wpos'].index('1') * 51200 * 128))
        a('v_mov_b32 v155, v%d' % WA)
    if P['mpf']:
        per = P['mpp']
        a('s_lshr_b32 s%d, s2, 3' % sT)
        a('s_and_b32 s90, s%d, %d' % (sT, per - 1))
        a('s_add_u32 s90, s90, 1')
        a('s_lshr_b32 s%d, s%d, %d' % (sT, sT, per.bit_length() - 1))
        a('s_mul_i32 s%d, s%d, %d' % (sT, sT, 128 * per * 128))
        a('s_add_u32 s91, s90, %d' % P['mpf'])
        a('s_lshl_b32 s91, s91, 19')
        a('s_add_u32 s91, s91, s%d' % sT)
        a('s_mul_i32 s90, s90, 3')
    if P['prio']:
        a('s_cmp_lt_u32 s%d, 4' % sW)
        a('s_cbranch_scc1 Lk2_np')
        a('s_setprio 1')
        a('Lk2_np:')
    a.raw('.p2align 6')
    a('Lk2_loop:')
    a('s_cmp_eq_u32 s%d, s%d' % (sIX, sTRG))
    a('s_cbranch_scc1 Lk2_el')
    a('Lk2_lc:')
    if P['lf'] and not P['s2']:
        next_block()
    if P['mpf']:
        a('s_cmp_eq_u32 s%d, s90' % sIX)
        a('s_cbranch_scc1 Lk2_pl')
        a('Lk2_pc:')
    if '1' in P['wpos']:
        a('s_cmp_eq_u32 s%d, s90' % sIX)
        a('s_cbranch_scc1 Lk2_wl')
        a('Lk2_wc:')
    if P['s2']:
        step = step2
    step(0)
    if P['stag'] == 2:
        halfbar(0)
    step(1)
    if P['stag']:
        halfbar(0)
    elif P['mbar'] == 1:
        a('s_barrier')
    elif P['mbar']:
        a('s_and_b32 s%d, s%d, %d' % (sT, sIX, P['mbar'] - 1))
        a('s_cbranch_scc1 Lk2_nb')
        a('s_barrier')
        a('Lk2_nb:')
    a('s_add_u32 s%d, s%d, 3' % (sIX, sIX))
    a('s_cmp_le_u32 s%d, s%d' % (sIX, sEND))
    a('s_cbranch_scc1 Lk2_loop')
    stamp(8, True)
    a('s_mov_b32 s%d, 0' % sPASS)
    for i in range(NQ):
        a('s_mov_b64 %s, 0' % sr(sFL + 2 * i, 2))
        a('s_mov_b64 %s, 0' % sr(sSK + 2 * i, 2))
    a('Lk2_epi:')
    a('v_lshlrev_b32 v%d, 3, v0' % A4)
    a('v_lshlrev_b32 v%d, 2, v0' % AC)
    a('v_add_u32 v%d, %d, v%d' % (A4B, HI0, A4))
    a('v_lshlrev_b32 v%d, 4, v0' % R16)
    a('s_waitcnt vmcnt(4) lgkmcnt(0)')
    a('v_or3_b32 v%d, v%d, v%d, v%d' % (STK, STK, RTN[0], RTN[1]))
    a('s_barrier')
    mk = {}

    def e_read(q):
        W, RB, CN = WW[q & 1], RBB[q & 1], CNN[q & 1]
        if q == NQ - 1:
            for i in range(4):
                a('v_mov_b32 v%d, 0' % (RB + i))
            for i in range(8):
                a('v_mov_b32 v%d, 0' % (W + i))
            a('v_mov_b32 v%d, 0' % CN)
            a('s_mov_b64 exec, %s' % sr(sV6, 2))
        a('ds_read_b32 v%d, v%d offset:%d' % (CN, AC, CNT0 + 2048 * q))
        mk[q, -1] = a.mark()
        for j in range(4):
            b, o = plane(j)
            a('ds_read_b64 %s, v%d offset:%d' % (vr(W + 2 * j, 2), b, o + 4096 * q))
            mk[q, j] = a.mark()
        a('ds_read_b128 %s, v%d offset:%d' % (vr(RB, 4), R16, RBF0))
        mk[q, 8] = a.mark()
        if q == NQ - 1:
            a('s_mov_b64 exec, -1')
        else:
            a('v_add_u32 v%d, 8192, v%d' % (R16, R16))

    def e_decode(q, mf=()):
        mf = list(mf)
        if mf:
            a(mf.pop(0))
        W, CN = WW[q & 1], CNN[q & 1]
        a.wait_ds(mk[q, -1 if q == 0 else 8])
        a('v_lshrrev_b32 v%d, 24, v%d' % (CN + 1, CN))
        a('v_and_b32 v%d, 0xffffff, v%d' % (CN, CN))
        a('v_sub_u32 v%d, 0x20001, v%d' % (T1, CN + 1))
        a('v_mad_u64_u32 %s, vcc, v%d, s%d, %s' % (vr(CN + 2, 2), T1, sM1, vr(KB, 2)))
        a('v_cmp_lt_u32 vcc, 127, v%d' % (CN + 1))
        a('v_mul_u32_u24 v%d, %d, v%d' % (CN + 1, P['theta'], CN + 1))
        a('s_or_b64 %s, %s, vcc' % (sr(sFL + 2 * q, 2), sr(sFL + 2 * q, 2)))
        a('v_cmp_lt_u32 vcc, 0x7ffe, v%d' % CN)
        a('v_add_u32 v%d, v%d, v%d' % (CN + 3, CN + 3, CN + 2))
        a('s_or_b64 %s, %s, vcc' % (sr(sFL + 2 * q, 2), sr(sFL + 2 * q, 2)))
        a('v_cmp_lt_u32 vcc, v%d, v%d' % (CN, CN + 1))
        a('s_or_b64 %s, %s, vcc' % (sr(sFL + 2 * q, 2), sr(sFL + 2 * q, 2)))
        for j in range(4):
            if mf:
                a(mf.pop(0))
            a('s_andn2_b64 exec, -1, %s' % sr(sSK + 2 * q, 2))
            if q == 0:
                a.wait_ds(mk[q, j])
            a('v_lshl_add_u64 %s, %s, 0, %s' % (vr(W + 2 * j, 2), vr(W + 2 * j, 2), vr(CN + 2, 2)))
            for e in range(2):
                a('v_xor_b32 v%d, s%d, v%d' % (W + 2 * j + e, sM1, W + 2 * j + e))
            for e in range(2):
                w = W + 2 * j + e
                a('v_cvt_f32_i32_sdwa v%d, sext(v%d) dst_sel:DWORD dst_unused:UNUSED_PAD src0_sel:WORD_1' % (CN + e, w))
                a('v_cvt_f32_i32_sdwa v%d, sext(v%d) dst_sel:DWORD dst_unused:UNUSED_PAD src0_sel:WORD_0' % (w, w))
            for e in range(2):
                a('v_cvt_pk_bf16_f32 v%d, v%d, v%d' % (W + 2 * j + e, W + 2 * j + e, CN + e))
            a('s_mov_b64 exec, -1')
        if q == 0:
            a.wait_ds(mk[q, 8])

    def e_mfma(q):
        W, RB = WW[q & 1], RBB[q & 1]
        r = []
        r.append('v_mfma_f32_32x32x16_bf16 %s, %s, %s, 0' % (vr(MF, 16), vr(AI, 4), vr(MQ + 8 * q, 4)))
        r.append('v_mfma_f32_32x32x16_bf16 %s, %s, %s, %s' % (vr(MF, 16), vr(AI + 4, 4), vr(MQ + 8 * q + 4, 4), vr(MF, 16)))
        r.append('v_mfma_f32_32x32x16_f16 %s, %s, %s, 0' % (vr(GATE, 16), vr(AR, 4), vr(RB, 4)))
        r.append('v_mfma_f32_32x32x16_bf16 %s, %s, %s, 0' % (vr(MD, 16), vr(AU, 4), vr(W, 4)))
        r.append('v_mfma_f32_32x32x16_bf16 %s, %s, %s, %s' % (vr(MD, 16), vr(AU + 4, 4), vr(W + 4, 4), vr(MD, 16)))
        return r

    def e_out(q):
        a('s_mov_b32 s%d, %d' % (sT, q * 16384))
        for j in range(8):
            m = MQ + 8 * q + j
            ta, tb = MF + 2 * j, MF + 2 * j + 1
            a('v_fmac_f32 v%d, v%d, v%d' % (ta, MD + 2 * j, GATE + 2 * j))
            a('v_fmac_f32 v%d, v%d, v%d' % (tb, MD + 2 * j + 1, GATE + 2 * j + 1))
            a('v_cvt_pk_bf16_f32 v%d, v%d, v%d' % (m, ta, tb))
            if j == 3:
                a('buffer_store_dwordx4 %s, v%d, %s, s%d offen %s' % (vr(MQ + 8 * q, 4), OA, sr(S_OUT, 4), sT, P['stout']))
        a('buffer_store_dwordx4 %s, v%d, %s, s%d offen offset:1024 %s' % (vr(MQ + 8 * q + 4, 4), OA, sr(S_OUT, 4), sT, P['stout']))

    e_read(0)
    e_read(1)
    e_decode(0)
    for q in range(NQ - 1):
        if q + 1 < NQ - 1:
            e_decode(q + 1, e_mfma(q))
        else:
            for t in e_mfma(q):
                a(t)
        if q + 2 < NQ:
            e_read(q + 2)
        e_out(q)
    a('s_cmp_lg_u32 s%d, 0' % sW)
    a('s_cbranch_scc1 Lk2_e6')
    e_decode(NQ - 1)
    for t in e_mfma(NQ - 1):
        a(t)
    e_out(NQ - 1)
    a('Lk2_e6:')
    stamp(9, True)
    if P['stamp']:
        a('s_waitcnt vmcnt(0)')
        stamp(10, True)
    if P['abl']:
        a('s_branch Lk2_end')
    a('s_cmp_lg_u32 s%d, 0' % sPASS)
    a('s_cbranch_scc1 Lk2_end')
    a('s_or_b64 %s, %s, %s' % (sr(sMK, 2), sr(sFL, 2), sr(sFL + 2, 2)))
    for q in range(2, NQ):
        a('s_or_b64 %s, %s, %s' % (sr(sMK, 2), sr(sMK, 2), sr(sFL + 2 * q, 2)))
    a('s_cselect_b32 s%d, 1, %d' % (sT, P['force_slow'] & 3))
    a('v_cmp_gt_i32 vcc, 0, v%d' % STK)
    a('s_cmp_lg_u64 vcc, 0')
    a('s_cselect_b32 s%d, 3, s%d' % (sT, sT))
    a('v_mov_b32 v2, s%d' % sT)
    a('s_lshl_b32 s%d, s%d, 2' % (sT, sW))
    a('s_add_u32 s%d, s%d, %d' % (sT, sT, SCR))
    a('v_mov_b32 v3, s%d' % sT)
    a('ds_write_b32 v3, v2')
    a('v_and_b32 v2, 7, v0')
    a('v_lshlrev_b32 v2, 2, v2')
    a('v_add_u32 v2, %d, v2' % SCR)
    a('s_waitcnt lgkmcnt(0)')
    a('s_barrier')
    a('ds_read_b32 v3, v2')
    a('s_waitcnt lgkmcnt(0)')
    a('v_cmp_ne_u32 vcc, 0, v3')
    a('s_cmp_eq_u64 vcc, 0')
    a('s_cbranch_scc1 Lk2_end')
    a('v_cmp_lt_u32 vcc, 1, v3')
    a('s_cmp_lg_u64 vcc, 0')
    a('Lk2_all:')
    for q in range(NQ):
        a('s_cselect_b64 %s, -1, %s' % (sr(sSK + 2 * q, 2), sr(sFL + 2 * q, 2)))
    a('s_and_b64 %s, %s, %s' % (sr(sSK + 2 * NQ - 2, 2), sr(sSK + 2 * NQ - 2, 2), sr(sV6, 2)))
    a('s_waitcnt vmcnt(0)')
    VD, VE, REC, ADDR, F12 = 4, 8, 12, 16, 17
    desc_load(VD, 18)
    a('v_lshlrev_b32 v%d, 3, v0' % A4)
    a('v_lshlrev_b32 v%d, 2, v0' % AC)
    a('v_add_u32 v%d, %d, v%d' % (A4B, HI0, A4))
    a('v_mov_b32 v2, 0')
    a('v_mov_b32 v3, 0')
    a('v_mov_b32 v19, -1')
    for q in range(NQ):
        a('s_mov_b64 exec, %s' % sr(sSK + 2 * q, 2))
        a('ds_write_b32 v%d, v19 offset:%d' % (AC, CNT0 + 2048 * q))
        for j in range(4):
            b, o = plane(j)
            a('ds_write_b64 v%d, v[2:3] offset:%d' % (b, o + 4096 * q))
        a('s_mov_b64 exec, -1')
        a('s_waitcnt lgkmcnt(0)')
    a('s_barrier')
    a('s_movk_i32 s%d, %d' % (sT, REC0 // 12))
    a('v_mov_b32 v%d, %d' % (F12, TSP))
    a('v_mad_u32_u24 v%d, v0, v%d, s%d' % (F12, F12, sT))
    a('s_waitcnt vmcnt(0)')
    for k in range(4):
        a('v_and_b32 v%d, 0x7fffffff, v%d' % (VD + k, VD + k))
        a('v_add_u32 v%d, 0x10000, v%d' % (VE + k, VD + k))
        a('v_and_b32 v%d, 0xffff, v%d' % (VD + k, VD + k))
        a('v_lshrrev_b32 v%d, 17, v%d' % (VE + k, VE + k))
    scan4(VE)
    for k in range(4):
        if k:
            a('v_add_u32 v%d, s%d, v%d' % (VE + k, sNT, VE + k))
        a('v_add_u32 v%d, v%d, v%d' % (VD + k, VD + k, F12))
        a('v_readlane_b32 s%d, v%d, 63' % (sNT, VE + k))
        a('v_sub_u32 v%d, v%d, v%d' % (VD + k, VD + k, VE + k))
        a('v_mul_lo_u32 v%d, v%d, 12' % (VD + k, VD + k))
    a('v_mul_u32_u24 v%d, 12, v%d' % (F12, LANE))
    a('s_mov_b32 s%d, 0' % sF)
    a('s_mov_b32 s%d, 0' % sE)
    a('s_mov_b32 s%d, 0' % sDL)
    a('s_movk_i32 s%d, -64' % sI)
    a('Lk2_sl:')
    a('s_cmp_ge_u32 s%d, s%d' % (sF, sNT))
    a('s_cbranch_scc1 Lk2_sd')
    a('v_add_u32 v%d, s%d, v%d' % (ADDR, sDL, F12))
    a('s_sub_u32 s%d, s%d, s%d' % (sP, sE, sF))
    a('s_cmp_ge_u32 s%d, 64' % sP)
    a('s_cbranch_scc1 Lfd')
    a('Lfl:')
    a('v_readlane_b32 s%d, v%d, s%d' % (sDL, VD, sI))
    a('v_readlane_b32 s%d, v%d, s%d' % (sE, VE, sI))
    a('s_add_u32 s%d, s%d, 1' % (sI, sI))
    a('s_cbranch_scc0 Lfc')
    a('s_mov_b64 exec, -1')
    for k in range(3):
        a('v_mov_b32 v%d, v%d' % (VE + k, VE + k + 1))
        a('v_mov_b32 v%d, v%d' % (VD + k, VD + k + 1))
    a('v_mov_b32 v%d, -1' % (VE + 3))
    a('v_bfrev_b32 v%d, 1' % (VD + 3))
    a('s_movk_i32 s%d, -64' % sI)
    a('Lfc:')
    a('s_lshl_b64 exec, -1, s%d' % sP)
    a('v_add_u32 v%d, s%d, v%d' % (ADDR, sDL, F12))
    a('s_sub_u32 s%d, s%d, s%d' % (sP, sE, sF))
    a('s_cmp_lt_u32 s%d, 64' % sP)
    a('s_cbranch_scc1 Lfl')
    a('s_mov_b64 exec, -1')
    a('Lfd:')
    a('s_add_u32 s%d, s%d, 64' % (sF, sF))
    a('v_add_u32 v%d, 768, v%d' % (F12, F12))
    a('buffer_load_dwordx3 %s, v%d, %s, 0 offen %s' % (vr(REC, 3), ADDR, sr(S_WS, 4), HO))
    a('s_mov_b32 s%d, 0' % sSUB)
    a('s_waitcnt vmcnt(0)')
    a('Lk2_s2:')
    a('v_cmp_gt_i32 %s, 0, v%d' % (sr(sMK, 2), REC + 1))
    a('v_ashrrev_i32 v%d, 31, v%d' % (TM, REC + 1))
    a('v_and_b32 v%d, v%d, v%d' % (REC, REC, TM))
    a('v_and_b32 v%d, s%d, v%d' % (IA, sIDM, REC))
    a('v_and_b32 v%d, s%d, v%d' % (IB, sIDM, REC))
    a('v_lshrrev_b32 v%d, 16, v%d' % (A16[0], REC))
    a('v_and_b32 v%d, s%d, v%d' % (A16[0], sA16, A16[0]))
    a('v_and_b32 v%d, s%d, v%d' % (ANG[0], sHI, REC + 1))
    a('v_permlane32_swap_b32 v%d, v%d' % (IA, IB))
    addrs(0)
    a('ds_read_b32 v%d, v%d offset:%d' % (CV, AC, CNT0))
    a('ds_read_b128 %s, v%d offset:%d' % (vr(RBF, 4), A16[0], RBF0))
    a('s_waitcnt lgkmcnt(0)')
    a('v_cmp_gt_i32 vcc, 0, v%d' % CV)
    a('s_and_b64 %s, %s, vcc' % (sr(sMK, 2), sr(sMK, 2)))
    a('s_cbranch_scc0 Lk2_s3')
    gathers(0)
    cosines(0)
    for l in range(3):
        sbf(l)
        gmf(l)
    a('s_waitcnt vmcnt(0)')
    mdown(0)
    for d in range(16):
        a('v_mul_f32 v%d, 0x47800000, v%d' % (GATE + d, GATE + d))
        a('v_mul_f32 v%d, v%d, v%d' % (MD + d, MD + d, GATE + d))
    a('s_mov_b64 exec, %s' % sr(sMK, 2))
    for j in range(8):
        a('v_cvt_pk_bf16_f32 v%d, v%d, v%d' % (MD + 2 * j, MD + 2 * j, MD + 2 * j + 1))
        b, o = plane(j >> 1)
        a('ds_pk_add_bf16 v%d, v%d offset:%d' % (b, MD + 2 * j, o + 4 * (j & 1)))
    a('s_mov_b64 exec, -1')
    a('Lk2_s3:')
    a('v_mov_b32 v%d, v%d' % (REC, REC + 2))
    a('v_lshlrev_b32 v%d, 16, v%d' % (REC + 1, REC + 1))
    a('s_xor_b32 s%d, s%d, 1' % (sSUB, sSUB))
    a('s_cbranch_scc1 Lk2_s2')
    a('s_branch Lk2_sl')
    a.fence()
    a('Lk2_sd:')
    a('s_mov_b32 s%d, 1' % sPASS)
    epi_loads()
    a('s_waitcnt vmcnt(0)')
    a('s_branch Lk2_epi')
    a.fence()
    a('Lk2_fb:')
    a('s_mov_b32 s%d, 1' % sMODE)
    if hk:
        if late:
            for f in late:
                f()
            a('s_waitcnt vmcnt(0)')
            hk.arrive2(0, VT, hk.arrive1(0, VT))
        done_wait(done_load())
    dist_loads()
    a('s_waitcnt vmcnt(0)')
    for q in range(NQ):
        rbf_batch(q)
    a('s_branch Lk2_init')
    a.fence()
    if '1' in P['wpos']:
        a('Lk2_wl:')
        a('buffer_load_dword v2, v155, %s, s91 offen' % sr(S_MR, 4))
        a('s_add_u32 s90, s90, %d' % (3 * P['mw2']))
        a('s_add_u32 s91, s91, %d' % (51200 * 128))
        a('s_cmp_ge_u32 s91, %d' % (4 * 51200 * 128))
        a('s_cselect_b32 s90, -1, s90')
        a('s_branch Lk2_wc')
        a.fence()
    if P['mpf']:
        a('Lk2_pl:')
        per = P['mpp']
        if per == 2:
            a('v_and_b32 v3, 31, v0')
            a('v_lshl_add_u32 v3, s%d, 5, v3' % sW)
            a('v_lshlrev_b32 v3, 7, v3')
        else:
            a('v_lshlrev_b32 v3, 7, v0')
        if per == 8:
            a('s_add_u32 s%d, s91, 65536' % sT)
            a('buffer_load_dword v%d, v3, %s, s%d offen' % (72, sr(S_MR, 4), sT))
        a('buffer_load_dword v3, v3, %s, s91 offen' % sr(S_MR, 4))
        a('s_add_u32 s90, s90, %d' % (3 * per))
        a('s_add_u32 s91, s91, %d' % (per << 19))
        a('s_branch Lk2_pc')
        a.fence()
    a('Lk2_el:')
    epi_loads()
    a('s_branch Lk2_lc')
    a.fence()
    a('Lk2_end:')
    a('s_endpgm')
    a.fence()
    return LDS
```

```python
import math


def k2(a, P, G, hk):
    vr, sr, srd, f2u = G['vr'], G['sr'], G['srd'], G['f2u']
    E, BINE, TS, TSP = G['E'], G['BINE'], G['TS'], G['TSP']
    REC0, DESC0, PREP0, WS_BYTES = G['REC0'], G['DESC0'], G['PREP0'], G['WS_BYTES']
    ROWS = BINE + 3
    PL = ROWS * 4
    RBF0 = 5 * PL
    HI0 = RBF0 + ROWS * 16
    SCR = HI0 + 4 * PL
    LDS = SCR + 128
    KC0, TB0, BB0, SC0, RING0 = 0, 12800, 21504, 25600, 25856
    NSL = 15
    NBLK = 51
    NQ = 7
    S_M, S_MR, S_WS, S_DIST, S_MO, S_OUT, S_DBG = 16, 20, 24, 28, 32, 36, 92
    sCEN = 40
    sW, sBIN, sT, sT2 = 48, 49, 50, 51
    sM0, sM1, sIDM, sHI, sA16 = 52, 53, 54, 55, 56
    sPASS, sMODE, sIX = 57, 58, 59
    sV6 = 60
    sMK = 62
    sFL, sSK = 64, 78
    sPc = 64
    sR, sTB, sRB, sRE, sPS = 69, 70, 71, 72, 73
    sLO = 74
    sMA = 84
    sLM = 84
    sEND = 88
    sEW = 80
    sF, sE, sDL, sI, sP, sNT, sSUB = 4, 5, 6, 7, 8, 9, 10
    LANE, S0 = 1, 2
    AG, AM, GATE, MD = 164, 176, 184, 200
    GB = (156, 216)
    SBF, RBF = 224, 232
    IA, IB = 236, 238
    A16, ANG = (240, 241), (242, 243)
    A4, A4B, CV, AC = 244, 245, 246, 155
    RTN = (247, 248)
    STK, CK, TM = 249, 250, 251
    RAW = 156
    RT, RA = 216, 232
    NA = P['na']
    TAR = (240, 241, 242, 243, 236, 238)
    TF = (244, 245)
    TH, VM, ONE, EIGHT, L12, RBA, WD, WA = 246, 248, 249, 250, 251, 252, 253, 254
    lab = [0]
    HO = 'sc1' if hk else P['ldrec']
    VZ, VP, VT = 6, 7, 8
    NS0 = P['ns0']

    def spin(load, notready, m):
        n = lab[0]
        lab[0] += 1
        a('s_mov_b32 s%d, 0x40000' % sT2)
        a.wait_vm(m)
        a('Lpl%d:' % n)
        notready()
        a('s_cbranch_execz Lpd%d' % n)
        a('s_sleep %d' % P['slp'])
        a.nocount = True
        load()
        a.nocount = False
        a('s_sub_u32 s%d, s%d, 1' % (sT2, sT2))
        a('s_waitcnt vmcnt(0)')
        a('s_cbranch_scc0 Lpl%d' % n)
        a('Lpd%d:' % n)
        a('s_mov_b64 exec, -1')
        a('s_nop 3')

    def cleared_load():
        a('global_load_dword v%d, v%d, s[12:13] sc1' % (VP, VZ))
        return a.mark()

    def done_load():
        a('global_load_dword v%d, v%d, s[14:15] sc1' % (VP, VZ))
        return a.mark()

    def done_addr():
        a('s_and_b32 s%d, s2, 7' % sT)
        a('s_lshl3_add_u32 s%d, s%d, s%d' % (sT, sT, sW))
        a('s_lshl_b32 s%d, s%d, 7' % (sT, sT))
        a('s_add_u32 s%d, s%d, %d' % (sT, sT, G['FLG0']))
        a('v_and_b32 v%d, 31, v0' % VZ)
        a('v_lshl_add_u32 v%d, v%d, 2, s%d' % (VZ, VZ, sT))

    def done_wait(m):
        spin(done_load, lambda: a('v_cmpx_ne_u32 vcc, 1, v%d' % VP), m)

    def stamp(i, late=False):
        G['stamp'](a, i, S_DBG, 96, *((253, 254) if late else (235, 234)))

    CNT0 = 2 * PL

    def plane(j):
        return ((A4, 0), (A4, 3 * PL), (A4B, 0), (A4B, 2 * PL))[j]

    def desc_load(dst, tb):
        a('v_lshlrev_b32 v%d, 12, v0' % tb)
        a('s_lshl_b32 s%d, s%d, 4' % (sT, sBIN))
        a('s_add_u32 s%d, s%d, %d' % (sT, sT, DESC0))
        a('buffer_load_dwordx4 %s, v%d, %s, s%d offen %s' % (vr(dst, 4), tb, sr(S_WS, 4), sT, HO))
        return a.mark()

    def scan4(v):
        for c, rm in (('row_shr:1', 15), ('row_shr:2', 15), ('row_shr:4', 15), ('row_shr:8', 15), ('row_bcast:15', 10), ('row_bcast:31', 12)):
            for k in range(4):
                a('v_add_u32_dpp v%d, v%d, v%d %s row_mask:0x%x bank_mask:0xf' % (v + k, v + k, v + k, c, rm))

    def img_load(first, n, dst, t):
        a('v_lshlrev_b32 v%d, 4, v%d' % (t, LANE))
        for i in range(n):
            a('s_mov_b32 s%d, %d' % (sT, PREP0 + 1024 * (first + i)))
            a('buffer_load_dwordx4 %s, v%d, %s, s%d offen %s' % (vr(dst + 4 * i, 4), t, sr(S_WS, 4), sT, HO))

    def gathers(q):
        a('buffer_load_dwordx4 %s, %s, %s, 0 idxen offen' % (vr(GB[q], 4), vr(IA, 2), sr(S_M, 4)))
        a('buffer_load_dwordx4 %s, %s, %s, 0 idxen offen' % (vr(GB[q] + 4, 4), vr(IB, 2), sr(S_M, 4)))

    def cosines(p):
        c1, c3, c2 = TM, TM + 1, TM + 2
        a('v_mul_f32 v%d, 0x40400000, v%d' % (c3, ANG[p]))
        a('v_mul_f32 v%d, 0.15915494, v%d' % (c1, ANG[p]))
        a('v_cvt_pk_bf16_f32 v%d, 0, v%d' % (c3, c3))
        a('v_fract_f32 v%d, v%d' % (c1, c1))
        a('v_mul_f32 v%d, 0.15915494, v%d' % (c3, c3))
        a('v_cos_f32 v%d, v%d' % (c1, c1))
        a('v_fract_f32 v%d, v%d' % (c3, c3))
        a('v_cos_f32 v%d, v%d' % (c3, c3))
        a('v_fma_mixlo_f16 v%d, v%d, v%d, -0.5' % (c2, c1, c1))
        a('v_cvt_pk_f16_f32 v%d, v%d, v%d' % (c1, c1, c3))

    def sbf(l):
        src, sel = ((TM, 0), (TM + 2, 0), (TM, 1))[l]
        for j in range(4):
            a('v_pk_mul_f16 v%d, v%d, v%d op_sel:[0,%d] op_sel_hi:[1,%d]' % (SBF + 4 * (l & 1) + j, RBF + j, src, sel, sel))

    def gmf(l):
        a('v_mfma_f32_32x32x16_f16 %s, %s, %s, %s' % (vr(GATE, 16), vr(AG + 4 * l, 4), vr(SBF + 4 * (l & 1), 4), vr(GATE, 16) if l else '0'))

    def mdown(p):
        a('v_mfma_f32_32x32x16_bf16 %s, %s, %s, 0' % (vr(MD, 16), vr(AM, 4), vr(GB[p], 4)))
        a('v_mfma_f32_32x32x16_bf16 %s, %s, %s, %s' % (vr(MD, 16), vr(AM + 4, 4), vr(GB[p] + 4, 4), vr(MD, 16)))

    def addrs(p):
        a('v_lshrrev_b32 v%d, 1, v%d' % (A4, A16[p]))
        a('v_lshrrev_b32 v%d, 2, v%d' % (AC, A16[p]))
        a('v_add_u32 v%d, %d, v%d' % (A4B, HI0, A4))

    def decode_rel(p, base, part=3):
        if P['lf']:
            base = 0
        a('s_set_gpr_idx_on s%d, gpr_idx(SRC1)' % (sDX if P['lf'] else sIX))
        a('s_nop 0')
        if part & 1:
            a('v_and_b32 v%d, s%d, v%d' % (IA, sIDM, S0 + base + p))
            a('v_and_b32 v%d, s%d, v%d' % (IB, sIDM, S0 + base + p))
        if part & 2:
            a('v_and_b32_sdwa v%d, s%d, v%d dst_sel:DWORD dst_unused:UNUSED_PAD src0_sel:DWORD src1_sel:WORD_1' % (A16[p], sA16, S0 + base + p))
            if p:
                a('v_and_b32 v%d, s%d, v%d' % (ANG[p], sHI, S0 + base + 2))
            else:
                a('v_lshlrev_b32 v%d, 16, v%d' % (ANG[p], S0 + base + 2))
        a('s_set_gpr_idx_off')
        if part & 1:
            a('v_permlane32_swap_b32 v%d, v%d' % (IA, IB))

    sDX, sI1, sOF, sLB = 76, 77, 78, 79

    def next_block():
        if P['lg']:
            Gn = P['lg']
            a('s_cmp_eq_u32 s%d, 0' % sOF)
            a('s_cselect_b32 s%d, %d, -1' % (sDX, Gn - 1))
            a('s_sub_u32 s%d, s%d, s%d' % (sT, sI1, sOF))
            a('s_cmp_lt_u32 s%d, s%d' % (sT, sLB))
            a('s_cselect_b32 s%d, s%d, 0' % (sDX, sDX))
            a('s_add_u32 s%d, s%d, s%d' % (sDX, sDX, sI1))
            a('s_mul_i32 s%d, s%d, 3' % (sDX, sDX))
            a('s_add_u32 s%d, s%d, 1' % (sI1, sI1))
            a('s_add_u32 s%d, s%d, 1' % (sOF, sOF))
            a('s_cmp_eq_u32 s%d, %d' % (sOF, Gn))
            a('s_cselect_b32 s%d, 0, s%d' % (sOF, sOF))
            return
        a('s_add_u32 s%d, s%d, s%d' % (sDX, sI1, sOF))
        a('s_xor_b32 s%d, s%d, s%d' % (sDX, sDX, 75))
        a('s_sub_u32 s%d, s%d, s%d' % (sDX, sDX, sOF))
        a('s_max_u32 s%d, s%d, s%d' % (sT, sDX, sI1))
        a('s_cmp_ge_u32 s%d, s%d' % (sT, sLB))
        a('s_cselect_b32 s%d, s%d, s%d' % (sDX, sI1, sDX))
        a('s_mul_i32 s%d, s%d, 3' % (sDX, sDX))
        a('s_add_u32 s%d, s%d, 1' % (sI1, sI1))

    def site(k):
        mask = sum(1 << w for w in range(8) if P['bmap'] and int(P['bmap'][w]) == k)
        if not mask:
            return
        n = lab[0]
        lab[0] += 1
        a('s_bitcmp0_b32 %d, s%d' % (mask, sW))
        a('s_cbranch_scc1 Lhb%d' % n)
        a('s_barrier')
        a.hist[-1].states = 0
        a('Lhb%d:' % n)

    def halfbar(hi):
        if P['bmap']:
            return
        n = lab[0]
        lab[0] += 1
        a('s_bitcmp%d_b32 s%d, %d' % (0 if hi else 1, sW, P['stb_']))
        a('s_cbranch_scc1 Lhb%d' % n)
        a('s_barrier')
        a.hist[-1].states = 0
        a('Lhb%d:' % n)

    def step(p):
        q = 1 - p
        ab = P['abl']
        vq = (lambda t: None) if ab & 4 else a
        vb = (lambda t: None) if ab & 68 else a
        va = (lambda t: None) if ab & 1 else a
        if P['early']:
            decode_rel(p, 3, 1)
        a('s_waitcnt vmcnt(2)')
        if not ab & 16:
            mdown(p)
        if P['early']:
            gathers(p)
        if not ab & 32:
            cosines(p)
        a('s_waitcnt lgkmcnt(%d)' % (0 if ab & 1 else 5))
        if not ab & 32:
            sbf(0)
        addrs(p)
        if not ab & 8:
            gmf(0)
        if not ab & 32:
            sbf(1)
        a('v_or_b32 v%d, v%d, v%d' % (STK, STK, RTN[p]))
        a('s_cmp_eq_u32 s%d, s%d' % (sIX, sEND))
        if not ab & 8:
            gmf(1)
        if not ab & 32:
            sbf(2)
        a('ds_read_b128 %s, v%d offset:%d' % (vr(RBF, 4), A16[q], RBF0))
        a('s_cselect_b64 %s, %s, -1' % (sr(sMK, 2), sr(sLM + 2 * p, 2)))
        if not ab & 8:
            gmf(2)
        if P['early']:
            decode_rel(p, 3, 2)
        else:
            decode_rel(p, 3)
            gathers(p)
        if P['stag'] and (p == 1 or P['stag'] == 2):
            halfbar(1)
        a('s_mov_b64 exec, %s' % sr(sMK, 2))
        pk = lambda j: MD + 4 * (j >> 1) + (j & 1)
        for j in range(8):
            vq('v_fma_f32 v%d, v%d, v%d, s%d' % (MD + 2 * j, MD + 2 * j, GATE + 2 * j, sM0))
            vq('v_fma_f32 v%d, v%d, v%d, s%d' % (MD + 2 * j + 1, MD + 2 * j + 1, GATE + 2 * j + 1, sM0))
            if j:
                jj = j - 1
                vb('v_sad_u16 v%d, v%d, s%d, v%d' % (TM + (jj >> 1), pk(jj), sM1, TM + (jj >> 1) if jj & 1 else CK))
            vq('v_cvt_pknorm_u16_f32 v%d, v%d, v%d' % (pk(j), MD + 2 * j, MD + 2 * j + 1))
            if j & 1:
                b, o = plane(j >> 1)
                va('ds_add_u64 v%d, %s offset:%d' % (b, vr(pk(j - 1), 2), o))
        vb('v_max3_u32 v%d, v%d, v%d, v%d' % (CV, TM, TM + 1, TM + 2))
        vb('v_sad_u16 v%d, v%d, s%d, v%d' % (TM + 3, pk(7), sM1, TM + 3))
        vb('v_max_u32 v%d, v%d, v%d' % (CV, CV, TM + 3))
        va('ds_add_rtn_u32 v%d, v%d, v%d offset:%d' % (RTN[p], AC, CV, CNT0))
        a('s_mov_b64 exec, -1')

    CA, CB = ANG
    sCX = 74

    def cos2():
        c1 = TM
        return ['v_mul_f32 v%d, 0x40400000, v%d' % (CA, c1),
                'v_mul_f32 v%d, 0.15915494, v%d' % (c1, c1),
                'v_cvt_pk_bf16_f32 v%d, 0, v%d' % (CA, CA),
                'v_fract_f32 v%d, v%d' % (c1, c1),
                'v_mul_f32 v%d, 0.15915494, v%d' % (CA, CA),
                'v_cos_f32 v%d, v%d' % (c1, c1),
                'v_fract_f32 v%d, v%d' % (CA, CA),
                'v_cos_f32 v%d, v%d' % (CA, CA),
                'v_fma_mixlo_f16 v%d, v%d, v%d, -0.5' % (CB, c1, c1),
                'v_cvt_pk_f16_f32 v%d, v%d, v%d' % (CA, c1, CA)]

    def sbf2(l):
        src, sel = ((CA, 0), (CB, 0), (CA, 1))[l]
        for j in range(4):
            a('v_pk_mul_f16 v%d, v%d, v%d op_sel:[0,%d] op_sel_hi:[1,%d]' % (SBF + 4 * (l & 1) + j, RBF + j, src, sel, sel))

    def step2(p):
        q = 1 - p
        cs = cos2()
        a('s_waitcnt lgkmcnt(5)')
        sbf2(0)
        addrs(p)
        site(5 * p)
        gmf(0)
        sbf2(1)
        a('v_or_b32 v%d, v%d, v%d' % (STK, STK, RTN[p]))
        a('s_cmp_eq_u32 s%d, s%d' % (sIX, sEND))
        a('s_cselect_b64 %s, %s, -1' % (sr(sMK, 2), sr(sLM + 2 * p, 2)))
        if p == 0:
            a('s_cselect_b32 s%d, %d, s%d' % (sRE, P['idm'] if P['nog'] else 0, sIDM))
        gmf(1)
        sbf2(2)
        a('ds_read_b128 %s, v%d offset:%d' % (vr(RBF, 4), A16[q], RBF0))
        if P['bpos'] == 1 and p == 1:
            halfbar(1)
        site(5 * p + 1)
        gmf(2)
        a('s_set_gpr_idx_on s%d, gpr_idx(SRC1)' % sDX)
        a('s_nop 0')
        a('v_and_b32 v%d, s%d, v%d' % (IA, sRE, S0 + p))
        a('v_and_b32 v%d, s%d, v%d' % (IB, sRE, S0 + p))
        a('v_and_b32_sdwa v%d, s%d, v%d dst_sel:DWORD dst_unused:UNUSED_PAD src0_sel:DWORD src1_sel:WORD_1' % (A16[p], sA16, S0 + p))
        if p:
            a('v_lshlrev_b32 v%d, 16, v%d' % (TM, S0 + 2))
        else:
            a('s_set_gpr_idx_idx s%d' % sCX)
            a('s_nop 0')
            a('v_and_b32 v%d, s%d, v%d' % (TM, sHI, S0 + 2))
        a('s_set_gpr_idx_off')
        a('v_permlane32_swap_b32 v%d, v%d' % (IA, IB))
        n1, n2 = P['cs1'], P['cs2']
        for t in cs[:n1]:
            a(t)
        a('s_waitcnt vmcnt(2)')
        a('v_mfma_f32_32x32x16_bf16 %s, %s, %s, 0' % (vr(MD, 16), vr(AM, 4), vr(GB[p], 4)))
        for t in cs[n1:n2]:
            a(t)
        a('v_mfma_f32_32x32x16_bf16 %s, %s, %s, %s' % (vr(MD, 16), vr(AM + 4, 4), vr(GB[p] + 4, 4), vr(MD, 16)))
        gathers(p)
        for t in cs[n2:]:
            a(t)
        if p:
            a('s_mov_b32 s%d, s%d' % (sCX, sDX))
            next_block()
        if P['bpos'] == 0 and p == 1:
            halfbar(1)
        if P['bpos'] == 2 and p == 0:
            halfbar(1)
        site(5 * p + 2)
        a('s_mov_b64 exec, %s' % sr(sMK, 2))
        pk = lambda j: MD + 4 * (j >> 1) + (j & 1)

        def F(j):
            for e in range(2):
                a('v_fma_f32 v%d, v%d, v%d, s%d' % (MD + 2 * j + e, MD + 2 * j + e, GATE + 2 * j + e, sM0))

        def SAD(j):
            a('v_sad_u16 v%d, v%d, s%d, v%d' % (TM + (j >> 1), pk(j), sM1, TM + (j >> 1) if j & 1 else CK))
        F(0)
        for j in range(8):
            if j < 7:
                F(j + 1)
            else:
                a('v_max3_u32 v%d, v%d, v%d, v%d' % (CV, TM, TM + 1, TM + 2))
            a('v_cvt_pknorm_u16_f32 v%d, v%d, v%d' % (pk(j), MD + 2 * j, MD + 2 * j + 1))
            if j:
                SAD(j - 1)
            if j & 1:
                b, o = plane(j >> 1)
                a('ds_add_u64 v%d, %s offset:%d' % (b, vr(pk(j - 1), 2), o))
            if j == 3:
                site(5 * p + 3)
        SAD(7)
        a('v_max_u32 v%d, v%d, v%d' % (CV, CV, TM + 3))
        a('ds_add_rtn_u32 v%d, v%d, v%d offset:%d' % (RTN[p], AC, CV, CNT0))
        a('s_mov_b64 exec, -1')
        site(5 * p + 4)

    if not hk:
        a('s_cmp_ge_u32 s2, 256')
        a('s_cbranch_scc1 Lk2_end')
    a('s_load_dwordx2 s[4:5], s[0:1], 0')
    a('s_load_dwordx2 s[6:7], s[0:1], 24')
    a('s_load_dwordx2 s[8:9], s[0:1], 40')
    a('s_load_dwordx2 s[10:11], s[0:1], 88')
    if not hk:
        a('s_load_dwordx4 s[12:15], s[0:1], 96')
    if P['cpf'] & 2:
        G['code_prefetch'](a, 'b', 88, 4)
    a('v_lshrrev_b32 v3, 6, v0')
    a('v_and_b32 v%d, 63, v0' % LANE)
    a('v_readfirstlane_b32 s%d, v3' % sW)
    if hk:
        a('v_and_b32 v%d, 3, v0' % VZ)
        a('v_lshlrev_b32 v%d, 6, v%d' % (VZ, VZ))
        mP = cleared_load()
    a('s_and_b32 s%d, s2, 7' % sBIN)
    a('s_lshl_b32 s%d, s%d, 5' % (sBIN, sBIN))
    a('s_lshr_b32 s%d, s2, 3' % sT)
    a('s_add_u32 s%d, s%d, s%d' % (sBIN, sBIN, sT))
    a('s_mov_b32 s%d, 0x%x' % (sM0, f2u(32768.0 / 65535.0)))
    a('s_mov_b32 s%d, 0x80008000' % sM1)
    a('s_mov_b32 s%d, 0x%x' % (sIDM, P['idm']))
    a('s_mov_b32 s%d, 0xffff0000' % sHI)
    a('s_mov_b32 s%d, 0xfff0' % sA16)
    a('s_mov_b32 s%d, 0x07060302' % sPS)
    a('s_mov_b32 s%d, 0' % sMODE)
    a('s_mul_i32 s%d, s%d, %d' % (sPASS, sBIN, BINE))
    a('s_add_u32 s%d, s%d, %d' % (sIX, sPASS, BINE))
    a('s_andn2_b32 s%d, s%d, 3' % (sPASS, sPASS))
    a('s_andn2_b32 s%d, s%d, 3' % (sIX, sIX))
    a('s_sub_u32 s%d, s%d, s%d' % (sIX, sIX, sPASS))
    a('s_sub_u32 s%d, s%d, 3072' % (sT, sIX))
    a('v_cmp_gt_u32 %s, s%d, v0' % (sr(sV6, 2), sT))
    a('v_lshrrev_b32 v%d, 5, v%d' % (IA + 1, LANE))
    a('v_lshlrev_b32 v%d, 4, v%d' % (IA + 1, IA + 1))
    a('v_mov_b32 v%d, v%d' % (IB + 1, IA + 1))
    a('v_mov_b32 v%d, 0' % IA)
    a('v_mov_b32 v%d, 0' % IB)
    a('s_waitcnt lgkmcnt(0)')
    a('s_load_dwordx4 s[96:99], s[8:9], 0')
    srd(a, S_WS, 14, WS_BYTES)
    D, X, DL = RAW, RAW + 4, RAW + 8
    if hk:
        a('s_barrier')
        for j in range(NS0):
            mS = hk.store(j)
    else:
        mDs = desc_load(D, RAW + 12)
        if P['spf']:
            a('s_lshr_b32 s%d, s2, 3' % sT)
            a('s_and_b32 s%d, s%d, 1' % (sT2, sT))
            a('s_mul_i32 s%d, s%d, 160' % (sT2, sT2))
            a('s_add_u32 s%d, s%d, 4720' % (sT2, sT2))
            a('s_and_b32 s90, s2, 7')
            a('s_mul_i32 s%d, s%d, s90' % (sT2, sT2))
            a('s_lshl_b32 s90, s%d, 6' % sW)
            a('s_add_u32 s90, s90, s%d' % sT)
            a('s_mul_i32 s90, s90, %d' % TS)
            a('s_add_u32 s90, s90, s%d' % sT2)
            a('s_add_u32 s90, s90, %d' % REC0)
            a('s_cmp_lt_u32 s%d, %d' % (sT, P['spf']))
            a('s_cselect_b32 s90, s90, %d' % WS_BYTES)
            a('v_min_u32 v%d, 38, v%d' % (WD, LANE))
            a('v_lshlrev_b32 v%d, 7, v%d' % (WD, WD))
            if P['spf'] > 32:
                a('buffer_load_dword v%d, v%d, %s, s90 offen' % (TH, WD, sr(S_WS, 4)))
                a('s_add_u32 s90, s90, %d' % (32 * TS))
                a('s_cmp_lt_u32 s%d, %d' % (sT, P['spf'] - 32))
                a('s_cselect_b32 s90, s90, %d' % WS_BYTES)
            a('buffer_load_dword v%d, v%d, %s, s90 offen' % (WD, WD, sr(S_WS, 4)))
    a('s_lshl_b32 s%d, s%d, 1' % (sT, sPASS))
    a('s_lshl_b32 s%d, s%d, 5' % (sT2, sPASS))
    srd(a, S_DIST, 6, 0, 's%d' % sT)
    srd(a, S_M, 4, E, None, 32)
    srd(a, S_MR, 4, E * 32)
    srd(a, S_MO, 4, 0, 's%d' % sT2)
    srd(a, S_OUT, 10, 0, 's%d' % sT2)
    a('s_lshl_b32 s%d, s%d, 1' % (S_DIST + 2, sIX))
    a('s_lshl_b32 s%d, s%d, 5' % (S_MO + 2, sIX))
    a('s_lshl_b32 s%d, s%d, 5' % (S_OUT + 2, sIX))
    G['stamp_init'](a, S_DBG, 14, 1, sW)
    a('s_waitcnt lgkmcnt(0)')
    for r in range(4):
        a('s_lshl_b32 s%d, s%d, 16' % (sCEN + 2 * r, 96 + r))
        a('s_and_b32 s%d, s%d, 0xffff0000' % (sCEN + 2 * r + 1, 96 + r))
    a('s_mov_b32 s%d, 0x%x' % (sR, f2u(math.sqrt(10.0 * math.log2(math.e)))))
    a('v_mov_b32 v%d, s%d' % (RT + 8, sR))
    for r in range(8):
        a('v_mul_f32 v%d, s%d, v%d' % (RT + r, sCEN + r, RT + 8))
    for r in range(8):
        a('v_readfirstlane_b32 s%d, v%d' % (sCEN + r, RT + r))
    stamp(0)
    Z, T0 = 96, 104
    for i in range(4):
        a('v_mov_b32 v%d, 0' % (Z + i))
        a('v_bfrev_b32 v%d, 1' % (Z + 4 + i))
    a('v_lshlrev_b32 v%d, 4, v0' % T0)
    a('v_lshlrev_b32 v%d, 3, v0' % (T0 + 1))
    a('s_mul_i32 s%d, s%d, 1088' % (sTB, sW))
    a('v_lshl_add_u32 v%d, v%d, 4, s%d' % (T0 + 2, LANE, sTB))
    a('ds_write_b64 v%d, %s offset:%d' % (T0 + 1, vr(Z, 2), BB0))
    a('ds_write_b128 v%d, %s offset:%d' % (T0 + 2, vr(Z + 4, 4), TB0))
    a('ds_write_b128 v%d, %s offset:%d' % (T0 + 2, vr(Z + 4, 4), TB0 + 64))
    a('s_movk_i32 s%d, 400' % sT)
    a('v_cmpx_gt_u32 vcc, s%d, v0' % sT)
    a('ds_write_b128 v%d, %s offset:%d' % (T0, vr(Z, 4), KC0))
    a('ds_write_b128 v%d, %s offset:%d' % (T0, vr(Z, 4), KC0 + 6400))
    a('s_mov_b64 exec, -1')
    a('v_mov_b32 v%d, 1' % ONE)
    a('v_mov_b32 v%d, 4' % EIGHT)
    a('v_mul_u32_u24 v%d, 12, v%d' % (L12, LANE))
    a('s_lshl_b32 s%d, s%d, %d' % (sT, sW, 9 if P['smaj'] else 10))
    a('v_lshl_add_u32 v%d, v%d, 3, s%d' % (RBA, LANE, sT))
    a('s_lshl_b32 s%d, s2, 3' % sT)
    a('s_add_u32 s%d, s%d, s%d' % (sT, sT, sW))
    a('s_mul_i32 s%d, s%d, 25' % (sT, sT))
    a('v_min_u32 v%d, 24, v%d' % (WA, LANE))
    a('v_add_lshl_u32 v%d, v%d, s%d, 7' % (WA, WA, sT))
    for j in range(4):
        if P['wpos'][j] == '0':
            a('s_mov_b32 s%d, %d' % (sT, j * 51200 * 128))
            a('buffer_load_dword v%d, v%d, %s, s%d offen' % (WD, WA, sr(S_MR, 4), sT))
    a('s_movk_i32 s%d, %d' % (sT, REC0 // 12))
    a('v_mov_b32 v%d, %d' % (T0 + 3, TSP))
    a('v_mad_u32_u24 v%d, v0, v%d, s%d' % (T0 + 3, T0 + 3, sT))
    if hk:
        rest = []
        for j in range(NS0, 20):
            if 20 - j <= len(hk.rest_a):
                rest.append(hk.rest_a[j - 20])
            rest.append(lambda j=j: hk.store(j))
        for j in range(P['nsx']):
            rest.pop(0)()
        a.wait_vm(mS)
        a('s_barrier')
        hk.publish()
        stamp(11)
        late = rest[len(rest) - P['nlate']:] if P['nlate'] else []
        for f in rest[:len(rest) - len(late)]:
            mS = f()
        spin(cleared_load, lambda: a('v_cmpx_gt_u32 vcc, 64, v%d' % VP), mP)
        mDs = desc_load(D, RAW + 12)
        done_addr()
        stamp(12)
        if not late:
            a.wait_vm(mS)
            hk.arrive2(0, VT, hk.arrive1(0, VT))

        def nr():
            a('v_and_b32 v%d, v%d, v%d' % (VT, D, D + 1))
            a('v_and_b32 v%d, v%d, v%d' % (VT + 1, D + 2, D + 3))
            a('v_and_b32 v%d, v%d, v%d' % (VT, VT, VT + 1))
            a('v_cmpx_le_i32 vcc, 0, v%d' % VT)
        spin(lambda: desc_load(D, RAW + 12), nr, mDs)
        stamp(13)
        for k in range(4):
            a('v_and_b32 v%d, 0x7fffffff, v%d' % (D + k, D + k))
    else:
        a.wait_vm(mDs)
    NP = RAW + 28
    for k in range(4):
        a('v_add_u32 v%d, 0x10000, v%d' % (NP + k, D + k))
        a('v_bfe_u32 v%d, v%d, 16, 1' % (X + k, D + k))
        a('v_lshrrev_b32 v%d, 17, v%d' % (NP + k, NP + k))
        a('v_and_b32 v%d, 0xffff, v%d' % (D + k, D + k))
        a('v_lshl_or_b32 v%d, v%d, 20, v%d' % (X + k, X + k, NP + k))
    scan4(X)
    TT = RAW + 32
    a('s_movk_i32 s%d, %d' % (sT2, NSL * 64))
    for k in range(4):
        a('v_lshrrev_b32 v%d, 20, v%d' % (TT + k, X + k))
        a('v_and_b32 v%d, 0xfffff, v%d' % (X + k, X + k))
        a('v_add_u32 v%d, v%d, v%d' % (DL + k, D + k, T0 + 3))
        a('v_sub_u32 v%d, v%d, v%d' % (TT + k, X + k, TT + k))
        a('v_sub_u32 v%d, v%d, v%d' % (DL + k, DL + k, X + k))
        a('v_add_u32 v%d, v%d, v%d' % (TT + k, TT + k, X + k))
        a('v_mul_u32_u24 v%d, 12, v%d' % (DL + k, DL + k))
        a('v_subrev_u32 v%d, %d, v%d' % (T0, 64 * P['nfull'], X + k))
        a('v_cmpx_lt_u32 vcc, %d, v%d' % (64 * (NSL - P['nfull']), T0))
        a('v_mov_b32 v%d, 0x1000000' % (TT + k))
        a('s_mov_b64 exec, -1')
    if hk:
        a('v_cmp_lt_u32 vcc, %d, v%d' % (NS0 * 8192 // 12, D + P['nrun'] - 1))
        a('s_cmp_lg_u64 vcc, 0')
        a('s_cselect_b64 exec, -1, 0')
        a('v_mov_b32 v%d, 0x1000000' % TT)
        a('s_mov_b64 exec, -1')
    for k in range(4):
        a('v_readlane_b32 s%d, v%d, 63' % (sEW + k, X + k))
    a('s_lshl_b32 s%d, s%d, 4' % (sT, sW))
    a('v_mov_b32 v%d, s%d' % (T0, sT))
    a('s_mov_b32 exec_lo, 0')
    a('s_mov_b32 exec_hi, 0x80000000')
    a('ds_write_b128 v%d, %s offset:%d' % (T0, vr(TT, 4), SC0))
    a('s_mov_b64 exec, -1')
    a('s_lshl_b32 s%d, s%d, 9' % (sT, sW))
    for k in range(4):
        a('v_subrev_u32 v%d, 1, v%d' % (T0, X + k))
        a('v_lshlrev_b32 v%d, v%d, v%d' % (T0 + 1, T0, ONE))
        a('v_lshrrev_b32 v%d, 5, v%d' % (T0, T0))
        a('v_lshl_add_u32 v%d, v%d, 2, s%d' % (T0, T0, sT))
        a('v_cmpx_ge_u32 vcc, s%d, v%d' % (sT2, X + k))
        a('v_cmpx_ne_u32 vcc, 0, v%d' % (NP + k))
        a('v_mbcnt_lo_u32_b32 v%d, vcc_lo, 0' % (T0 + 2))
        a('v_mbcnt_hi_u32_b32 v%d, vcc_hi, v%d' % (T0 + 2, T0 + 2))
        a('v_lshl_add_u32 v%d, v%d, 2, s%d' % (T0 + 2, T0 + 2, sTB))
        a('ds_or_b32 v%d, v%d offset:%d' % (T0, T0 + 1, BB0 + 128 * k))
        a('ds_write_b32 v%d, v%d offset:%d' % (T0 + 2, DL + k, TB0 + 272 * k))
        a('s_mov_b64 exec, -1')
    a('v_and_b32 v%d, 7, v0' % T0)
    a('v_lshlrev_b32 v%d, 4, v%d' % (T0, T0))
    a('s_waitcnt lgkmcnt(0)')
    a('s_barrier')
    a('ds_read_b128 %s, v%d offset:%d' % (vr(TT, 4), T0, SC0))
    a('s_mov_b32 s%d, 0' % sPc)
    a('s_waitcnt lgkmcnt(0)')
    for c in ('row_shr:1', 'row_shr:2', 'row_shr:4'):
        for k in range(4):
            a('v_add_u32_dpp v%d, v%d, v%d %s row_mask:0xf bank_mask:0xf' % (TT + k, TT + k, TT + k, c))
    for k in range(4):
        a('v_readlane_b32 s%d, v%d, 7' % (sPc + 1 + k, TT + k))
    for k in range(1, 4):
        a('s_add_u32 s%d, s%d, s%d' % (sPc + 1 + k, sPc + 1 + k, sPc + k))
    a('s_cmp_gt_u32 s%d, %d' % (sPc + 4, NBLK * 1024 if P['force_slow'] != 4 else 0))
    a('s_cbranch_scc1 Lk2_fb')
    a('s_cmp_ge_u32 s%d, %d' % (sPc + 2, 29 * 1024))
    a('s_cbranch_scc1 Lk2_fb')
    stamp(1)

    BUF = (96, 156)
    LEAD, HP = P['lead'], P['hp']
    RO, ZR = (164 if P['rsp'] else 184), 212
    DI = (TF[0], TF[1], VM, L12, TH, TH + 1, ONE)
    NFULL = P['nfull']
    mA, mC, mV, mM = {}, {}, {}, {}
    VMS = (255, VM)

    def raw(u):
        return BUF[(u // NSL) & 1] + 4 * (u % NSL)

    def Mrd(r):
        a('s_lshl_b32 s%d, s%d, 9' % (sT, sW))
        a('v_lshl_add_u32 v%d, v%d, 2, s%d' % (VMS[r >> 1], LANE, sT))
        a('ds_read_b32 v%d, v%d offset:%d' % (VMS[r >> 1], VMS[r >> 1], BB0 + 128 * r))
        mM[r] = a.mark()

    def keys(t0, t1, R):
        for e, t in enumerate((t0, t1)):
            a('v_lshrrev_b32 v%d, 6, v%d' % (t, R + 2 * e))
        for t in (t0, t1):
            a('v_and_b32 v%d, 0x3ffc, v%d' % (t, t))

    def A(u):
        R = raw(u)
        t0, t1 = TAR[2 * (u % NA)], TAR[2 * (u % NA) + 1]
        keys(t0, t1, R)
        for t in (t0, t1):
            a('ds_read_b32 v%d, v%d offset:%d' % (t, t, KC0))
        mA[u] = a.mark()

    def B(u):
        R = raw(u)
        tail = u % NSL >= NFULL
        if tail:
            a('v_cmpx_gt_i32 vcc, 0, v%d' % (R + 1))
        a.wait_ds(mA[u])
        for e in range(2):
            t = TAR[2 * (u % NA) + e]
            a('v_add_u32 v%d, v%d, v%d' % (t, t, R + 2 * e + 1))
        for e in range(2):
            t = TAR[2 * (u % NA) + e]
            a('v_lshlrev_b32_sdwa v%d, 1, v%d dst_sel:DWORD dst_unused:UNUSED_PAD src0_sel:DWORD src1_sel:WORD_0' % (t, t))
            a('ds_write_b64 v%d, %s offset:%d' % (t, vr(R + 2 * e, 2), RING0))
        if tail:
            a('s_mov_b64 exec, -1')

    def C(u):
        if u >= 4 * NSL:
            return
        r, k = divmod(u, NSL)
        t = TF[u & 1]
        if u == 0:
            a.wait_ds(mM[2])
        if k == 0:
            a('s_mul_i32 s%d, s%d, 1088' % (sTB, sW))
        a('v_readlane_b32 s%d, v%d, %d' % (sLO, VMS[r >> 1], 32 * (r & 1) + 2 * k))
        a('v_readlane_b32 s%d, v%d, %d' % (sLO + 1, VMS[r >> 1], 32 * (r & 1) + 2 * k + 1))
        a('s_bcnt1_i32_b64 s%d, %s' % (sT, sr(sLO, 2)))
        a('v_mbcnt_lo_u32_b32 v%d, s%d, 0' % (t, sLO))
        a('v_mbcnt_hi_u32_b32 v%d, s%d, v%d' % (t, sLO + 1, t))
        a('v_lshl_add_u32 v%d, v%d, 2, s%d' % (t, t, sTB))
        a('s_lshl2_add_u32 s%d, s%d, s%d' % (sTB, sT, sTB))
        a('ds_read_b32 v%d, v%d offset:%d' % (t, t, TB0 + 272 * r))
        mC[u] = a.mark()

    def Dd(u):
        if u >= 4 * NSL:
            return
        t = TF[u & 1]
        a('s_movk_i32 s%d, %d' % (sT2, 768 * (u % NSL)))
        a.wait_ds(mC[u])
        a('v_add_u32 v%d, v%d, v%d' % (t, t, L12))
        if P['abl'] & 2048:
            a('v_and_b32 v%d, 0x3ffff, v%d' % (t, t))
        a('buffer_load_dwordx3 %s, v%d, %s, s%d offen %s' % (vr(raw(u), 3), t, sr(S_WS, 4), sT2, HO))
        mV[u] = a.mark()

    hpend = []
    hcnt = [0]

    def H2():
        while hpend:
            R, t0, t1, m = hpend.pop()
            a.wait_ds(m)
            a('v_lshl_or_b32 v%d, v%d, 16, v%d' % (R + 3, R + 1, t1))
            a('v_and_or_b32 v%d, v%d, s%d, v%d' % (R + 1, R + 1, sHI, t0))

    def H(u):
        R = raw(u)
        tail = u % NSL >= NFULL
        t0, t1 = ((TH, TH + 1), (236, 238))[hcnt[0] & 1]
        hcnt[0] += 1
        a.wait_vm(mV[u])
        keys(t0, t1, R)
        if tail:
            a('v_cmpx_gt_i32 vcc, 0, v%d' % (R + 1))
        for t in (t0, t1):
            a('ds_add_rtn_u32 v%d, v%d, v%d offset:%d' % (t, t, EIGHT, KC0))
        m = a.mark()
        if tail:
            a('s_mov_b64 exec, -1')
        H2()
        hpend.append((R, t0, t1, m))

    def keyscan(r):
        K = RT
        nds = a.nds
        a('s_cmp_lg_u32 s%d, %d' % (sW, P['scw']))
        a('s_cbranch_scc1 Lks%d' % r)
        if P['kl']:
            L_ = P['kl']
            a('s_bitcmp1_b32 s2, %d' % P['lfb'])
            a('s_cselect_b32 s%d, %d, %d' % (sT, *((L_, 0) if not (P['kalt'] and r & 1) else (0, L_))))
            a('v_add_u32 v%d, s%d, v%d' % (RA, sT, LANE))
            if L_ & (L_ - 1) == 0:
                a('v_xor_b32 v%d, %d, v%d' % (RA, L_, RA))
            else:
                a('v_mul_u32_u24 v%d, %d, v%d' % (RA + 1, -(-1024 // L_), RA))
                a('v_bfe_u32 v%d, v%d, 10, 1' % (RA + 1, RA + 1))
                a('v_mad_i32_i24 v%d, v%d, %d, v%d' % (RA, RA + 1, -2 * L_, RA))
                a('v_add_u32 v%d, %d, v%d' % (RA, L_, RA))
            a('v_subrev_u32 v%d, s%d, v%d' % (RA, sT, RA))
            a('v_cmpx_le_u32 vcc, 49, v%d' % RA)
            a('v_mov_b32 v%d, v%d' % (RA, LANE))
            a('s_mov_b64 exec, -1')
            a('v_lshlrev_b32 v%d, 6, v%d' % (RA, RA))
        else:
            a('v_lshlrev_b32 v%d, 6, v%d' % (RA, LANE))
        for j in range(4):
            a('ds_read_b128 %s, v%d offset:%d' % (vr(K + 4 * j, 4), RA, KC0 + 3136 * r + 16 * j))
        a('s_waitcnt lgkmcnt(0)')
        for j in range(1, 16):
            a('v_add_u32 v%d, v%d, v%d' % (K + j, K + j, K + j - 1))
        a('v_mov_b32 v%d, v%d' % (RA + 1, K + 15))
        G['scan64'](a, RA + 1)
        a('v_sub_u32 v%d, v%d, v%d' % (RA + 1, RA + 1, K + 15))
        a('v_lshl_add_u32 v%d, s%d, 2, v%d' % (RA + 1, sPc + r, RA + 1))
        a('v_cmpx_gt_u32 vcc, 49, v%d' % LANE)
        for j in range(15, -1, -1):
            if j:
                a('v_add_u32 v%d, v%d, v%d' % (K + j, K + j - 1, RA + 1))
            else:
                a('v_mov_b32 v%d, v%d' % (K, RA + 1))
            if j % 4 == 0:
                a('ds_write_b128 v%d, %s offset:%d' % (RA, vr(K + j, 4), KC0 + 3136 * r + 4 * j))
        a('s_lshl_b32 s%d, s%d, 2' % (sT, sPc + r + 1))
        a('v_mov_b32 v%d, s%d' % (RA + 1, sT))
        a('v_lshlrev_b32 v%d, 2, v%d' % (RA, LANE))
        a('s_mov_b64 exec, 0xffff')
        a('ds_write_b32 v%d, v%d offset:%d' % (RA, RA + 1, KC0 + 4 * (3136 + 16 * r)))
        a('s_mov_b64 exec, -1')
        a('Lks%d:' % r)
        a('s_nop 1')
        a.nds = nds

    def rb_reads(RT=RT, j0=0):
        mk = {}
        for j in range(4):
            a('s_add_u32 s%d, s%d, %d' % (sT, sRB, j0 + j))
            a('s_and_b32 s%d, s%d, 15' % (sT, sT))
            a('s_lshl_b32 s%d, s%d, 13' % (sT, sT))
            a('v_add_u32 v%d, s%d, v%d' % (RA + j, sT, RBA))
            a('ds_read_b64 %s, v%d offset:%d' % (vr(RT + 4 * j, 2), RA + j, RING0))
            a('ds_read_b64 %s, v%d offset:%d' % (vr(RT + 4 * j + 2, 2), RA + j, RING0 + (4096 if P['smaj'] else 512)))
            mk[j] = a.mark()
        return mk

    def rb_moves(mk, RT=RT):
        a('s_mul_i32 s%d, s%d, 3' % (sIX, sRB))
        a('s_set_gpr_idx_on s%d, gpr_idx(DST)' % sIX)
        for j in range(4):
            a.wait_ds(mk[j])
            a('v_mov_b32 v%d, v%d' % (S0 + 3 * j, RT + 4 * j))
            a('v_mov_b32 v%d, v%d' % (S0 + 3 * j + 1, RT + 4 * j + 2))
            a('v_perm_b32 v%d, v%d, v%d, s%d' % (S0 + 3 * j + 2, RT + 4 * j + 3, RT + 4 * j + 1, sPS))
        a('s_set_gpr_idx_off')
        a('s_add_u32 s%d, s%d, 4' % (sRB, sRB))

    def readback(tag):
        nds = a.nds
        a('s_cmp_ge_u32 s%d, s%d' % (sRB, sRE))
        a('s_cbranch_scc1 Lrd%s' % tag)
        a('Lrl%s:' % tag)
        rb_moves(rb_reads())
        a('s_cmp_lt_u32 s%d, s%d' % (sRB, sRE))
        a('s_cbranch_scc1 Lrl%s' % tag)
        a('Lrd%s:' % tag)
        a('s_mov_b32 s%d, s%d' % (sRB, sRE))
        a.nds = nds

    def warm(j):
        if P['warm']:
            a('s_mov_b32 s%d, %d' % (sT, j * 51200 * 128))
            a('buffer_load_dword v%d, v%d, %s, s%d offen' % (WD, WA, sr(S_MR, 4), sT))

    def l2pf(j):
        if j * 16384 >= P['pfn']:
            return
        if j == 0:
            a('s_lshr_b32 s%d, s2, 3' % sT)
            a('s_lshl_b32 s%d, s%d, 9' % (sT, sT))
            a('v_add_lshl_u32 v%d, v0, s%d, 7' % (WA, sT))
            a('s_mov_b32 s%d, %d' % (S_MR + 2, P['pfn'] * 128))
        a('s_mov_b32 s%d, %d' % (sT, j * 16384 * 128))
        a('buffer_load_dword v%d, v%d, %s, s%d offen' % (WD, WA, sr(S_MR, 4), sT))

    def dist_loads():
        a('v_lshlrev_b32 v%d, 1, v0' % (RA + 2))
        for q in range(NQ):
            a('s_movk_i32 s%d, %d' % (sT, q * 1024))
            a('buffer_load_ushort v%d, v%d, %s, s%d offen' % (DI[q], RA + 2, sr(S_DIST, 4), sT))
        return a.mark()

    def rbf_batch(q, halves=(0, 1)):
        K = RT
        if 0 in halves:
            a('v_lshlrev_b32 v%d, 16, v%d' % (K + 8, DI[q]))
            a('v_mul_f32 v%d, s%d, v%d' % (K + 8, sR, K + 8))
        rs = [r for h in halves for r in range(4 * h, 4 * h + 4)]
        for r in rs:
            a('v_subrev_f32 v%d, s%d, v%d' % (K + r, sCEN + r, K + 8))
        for r in rs:
            a('v_mul_f32 v%d, v%d, v%d' % (K + r, K + r, K + r))
        for r in rs:
            a('v_exp_f32 v%d, -v%d' % (K + r, K + r))
        if 1 in halves:
            for r in range(4):
                a('v_cvt_pk_f16_f32 v%d, v%d, v%d' % (RO + 4 * q + r, K + 2 * r, K + 2 * r + 1))

    NP_ = P['npipe']

    def guarded(r, body):
        n = lab[0]
        lab[0] += 1
        nds, nvm = a.nds, a.nvm
        for k in range(NP_, NSL):
            a('s_cmp_le_u32 s%d, %d' % (sEW + r, 64 * k))
            a('s_cbranch_scc1 Lg%d' % n)
            body(NSL * r + k)
        a('Lg%d:' % n)
        a('s_nop 3')
        a.nds, a.nvm = nds, nvm

    def U(x):
        return NSL * (x // NP_) + x % NP_

    def Cx(x):
        C(U(x))

    def Dx(x):
        if x >= 4 * NP_:
            return
        if hk and x == NP_ * P['nrun'] - 3:
            mM['p'] = done_load()
        if hk and x == NP_ * P['nrun']:
            stamp(14)
            done_wait(mM['p'])
            stamp(15)
        Dd(U(x))

    def loadstep(x):
        def first():
            if (x + 1) % NP_:
                Cx(x + 1)

        def second():
            Dx(x)
            if (x + 1) % NP_ == 0 and x < 4 * NP_:
                r = x // NP_

                def body(u):
                    C(u)
                    Dd(u)
                guarded(r, body)
                for k in range(NP_, NSL):
                    mV[NSL * r + k] = a.mark()
                if r < 3:
                    Cx(x + 1)
        return first, second

    def Hx(x):
        H(U(x))
        if (x + 1) % NP_ == 0:
            H2()
            guarded(x // NP_, lambda u: (H(u), H2()))

    Mrd(0)
    Mrd(2)
    a('s_mov_b32 s%d, 0' % sRB)
    lag = P['dv']
    C(0)
    for i in range(NP_ + lag):
        f1, f2 = loadstep(i)
        f1()
        f2()
        if hk and P['lt0'] <= i < P['lt0'] + len(late):
            mS = late[i - P['lt0']]()
        if i >= lag:
            Hx(i - lag)
    if hk and late:
        a.wait_vm(mS)
        hk.arrive2(0, VT, hk.arrive1(0, VT))
    a('s_waitcnt lgkmcnt(0)')
    a('s_barrier')
    keyscan(0)
    lead0 = P['lead0']
    for i in range(NP_ + lag, NP_ + lead0):
        f1, f2 = loadstep(i)
        f1()
        f2()
    a('s_waitcnt lgkmcnt(0)')
    a('s_barrier')
    nxt = NP_ + max(lag, lead0)
    for r in range(4):
        stamp(2 + r)
        u0 = NSL * r
        hq = list(range(NP_ * (r + 1), NP_ * (r + 2))) if r < 3 else []
        if r:
            a('s_lshr_b32 s%d, s%d, 10' % (sRE, sPc + r))
            for g in range(3):
                mk = rb_reads()
                if hq:
                    Hx(hq.pop(0))
                rb_moves(mk)
            readback(str(r))
        while r and len(hq) > NP_ - HP:
            Hx(hq.pop(0))
        for k in range(NA - 1):
            A(u0 + k)
        if r == P['fr']:
            stamp(11)
        if r:
            a('s_barrier')
        if r == P['fr']:
            stamp(12)
        pend = None
        for i in range(NP_):
            f1, f2 = loadstep(nxt)
            f1()
            if i + NA - 1 < NP_:
                A(u0 + i + NA - 1)
            B(u0 + i)
            assert nxt < NP_ * (r + 2) or nxt - NP_ * (r + 2) <= i
            f2()
            nxt += 1
            if nxt < NP_ * (r + 1) + LEAD + i + 1:
                f1, f2 = loadstep(nxt)
                f1()
                f2()
                nxt += 1
            nh = 2 if (len(hq) > max(1, NP_ - HP - i) and U(hq[1]) in mV and hq[1] + 4 <= nxt) else 1
            for _ in range(nh):
                if hq:
                    Hx(hq.pop(0))
                    if not hq:
                        pend = (i + P['bhd'], a.mark())
                        if r == 2:
                            mD = dist_loads()
            if pend and pend[0] == i:
                a.wait_ds(pend[1])
                if r == P['fr']:
                    stamp(13)
                a('s_barrier')
                keyscan(r + 1)
                if r == P['fr']:
                    stamp(14)
            for j in range(4):
                if P['wpos'][j] == 'abcdefghijklmnopqrstuvwxyzABCDEFGH'[(r - 2) * NP_ + i] and r >= 2:
                    warm(j)
            for j in range(2):
                if P['ppos'][j] == 'abcdefghijklmnopqrstuvwxyzABCDEFGH'[(r - 2) * NP_ + i] and r >= 2:
                    l2pf(j)
            if r == 3 and P['rsp']:
                if i == 1:
                    a.wait_vm(mD)
                if i >= 1:
                    rbf_batch((i - 1) >> 1, ((i - 1) & 1,))
                continue
            if r == 3 and i == 6:
                if not P['imgl']:
                    img_load(0, 5, AG, RA)
                a.wait_vm(mD)
            if r == 3 and 7 <= i < 7 + NQ - 1:
                rbf_batch(i - 7)

        def body(u):
            A(u)
            B(u)
        guarded(r, body)
        if r == 3:
            a('s_cmp_lg_u32 s%d, 0' % sW)
            a('s_cbranch_scc1 Lk2_r6')
            rbf_batch(NQ - 1)
            a('Lk2_r6:')
        a('s_waitcnt lgkmcnt(0)')
        if r == P['fr']:
            stamp(15)
        a('s_barrier')
    stamp(6)
    a('s_add_u32 s%d, s%d, 1023' % (sRE, sPc + 4))
    a('s_lshr_b32 s%d, s%d, 10' % (sRE, sRE))
    if P['fpipe']:
        RT2 = 164
        a('s_cmp_gt_u32 s%d, 41' % sRB)
        a('s_cbranch_scc1 Lk2_f0')
        m0 = rb_reads(RT)
        m1 = rb_reads(RT2, 4)
        rb_moves(m0, RT)
        m0 = rb_reads(RT, 4)
        rb_moves(m1, RT2)
        rb_moves(m0, RT)
        a('Lk2_f0:')
    readback('L')
    a('s_max_u32 s%d, s%d, 1' % (sRB, sRB))
    a('s_sub_u32 s%d, s%d, 1' % (sRB, sRB))
    a('s_mul_i32 s%d, s%d, 3' % (sEND, sRB))
    a('s_lshl_b32 s%d, s%d, 10' % (sT, sRB))
    a('s_sub_u32 s%d, s%d, s%d' % (sT, sPc + 4, sT))
    a('v_lshrrev_b32 v%d, 3, v%d' % (TM, RBA))
    a('v_add_u32 v%d, %d, v%d' % (TM + 1, 512 if P['smaj'] else 64, TM))
    a('v_cmp_gt_u32 %s, s%d, v%d' % (sr(sLM, 2), sT, TM))
    a('v_cmp_gt_u32 %s, s%d, v%d' % (sr(sLM + 2, 2), sT, TM + 1))
    a('s_set_gpr_idx_on s%d, gpr_idx(SRC1,DST)' % sEND)
    a('s_andn2_b64 exec, -1, %s' % sr(sLM + 2, 2))
    a('v_mov_b32 v%d, 0' % (S0 + 1))
    a('v_and_b32 v%d, 0xffff, v%d' % (S0 + 2, S0 + 2))
    a('s_andn2_b64 exec, -1, %s' % sr(sLM, 2))
    a('v_mov_b32 v%d, 0' % S0)
    a('v_mov_b32 v%d, 0' % (S0 + 2))
    a('s_mov_b64 exec, -1')
    a('s_set_gpr_idx_off')
    a('s_mov_b32 s%d, 0' % sIX)
    if P['lf']:
        a('s_mov_b32 s%d, 0' % sI1)
        a('s_mov_b32 s%d, s%d' % (sLB, sRB))
        a('s_bitcmp1_b32 s2, %d' % P['lfb'])
        if P['lfm'] == 0:
            a('s_cselect_b32 s%d, %d, 0' % (sOF, P['lf']))
            a('s_mov_b32 s75, %d' % (0 if P['kl'] else P['lf']))
        else:
            a('s_cselect_b32 s75, %d, 0' % P['lf'])
            a('s_mov_b32 s%d, 0' % sOF)
        if P['lg']:
            a('s_sub_u32 s%d, s%d, %d' % (sLB, sRB, P['lg'] - 1))
            a('s_lshr_b32 s%d, s2, 3' % sT)
            a('s_mul_i32 s%d, s%d, %d' % (sOF, sT, -(-256 // P['lg'])))
            a('s_lshr_b32 s%d, s%d, 8' % (sOF, sOF))
            a('s_mul_i32 s%d, s%d, %d' % (sOF, sOF, P['lg']))
            a('s_sub_u32 s%d, s%d, s%d' % (sOF, sT, sOF))
        next_block()
    a('Lk2_init:')
    a('s_barrier')
    for i in range(4):
        a('v_mov_b32 v%d, 0' % (ZR + i))
    a('v_lshlrev_b32 v%d, 4, v0' % A4)
    a('v_add_u32 v%d, %d, v%d' % (A4B, HI0, A4))
    a('v_add_u32 v%d, %d, v%d' % (CV, RBF0, A4))
    for q in range(NQ - 1):
        a('ds_write_b128 v%d, %s offset:%d' % (CV, vr(RO + 4 * q, 4), 8192 * q))
    a('s_mov_b64 exec, %s' % sr(sV6, 2))
    a('ds_write_b128 v%d, %s offset:%d' % (CV, vr(RO + 4 * NQ - 4, 4), 8192 * (NQ - 1)))
    a('s_mov_b64 exec, -1')
    img_load(0, 5, AG, TM)
    a('s_cmp_lg_u32 s%d, 0' % sMODE)
    a('s_cbranch_scc1 Lk2_ng')
    decode_rel(0, 0)
    gathers(0)
    decode_rel(1, 0)
    gathers(1)
    a('Lk2_ng:')
    if P['ztid']:
        a('s_lshl_b32 m0, s%d, 8' % sW)
        a('s_nop 0')
        for o in list(range(0, RBF0 - 2048, 2048)) + [RBF0 - 2048]:
            a('ds_write_addtid_b32 v%d offset:%d' % (ZR, o))
    for o in (list(range(0, RBF0 - 8192, 8192)) + [RBF0 - 8192]) * (not P['ztid']):
        a('ds_write_b128 v%d, %s offset:%d' % (A4, vr(ZR, 4), o))
    for o in list(range(0, 4 * PL - 8192, 8192)) + [4 * PL - 8192]:
        a('ds_write_b128 v%d, %s offset:%d' % (A4B, vr(ZR, 4), o))
    a('v_mov_b32 v%d, 0' % STK)
    a('v_mov_b32 v%d, 0' % RTN[0])
    a('v_mov_b32 v%d, 0' % RTN[1])
    a('v_mov_b32 v%d, 0x1000000' % CK)
    a('v_and_b32 v255, 0x1df, v0')
    a('v_lshl_add_u32 v255, v255, 5, v%d' % (IA + 1))
    a('s_waitcnt lgkmcnt(0)')
    a('s_barrier')
    stamp(7, True)
    a('s_cmp_lg_u32 s%d, 0' % sMODE)
    a('s_cbranch_scc1 Lk2_all')
    a('ds_read_b128 %s, v%d offset:%d' % (vr(RBF, 4), A16[0], RBF0))
    if P['s2']:
        a('v_mov_b32 v%d, v%d' % (TM, ANG[0]))
        for t in cos2():
            a(t)
        a('s_mov_b32 s%d, s%d' % (sCX, sDX))
        next_block()
        a('s_waitcnt vmcnt(4)')
    a('s_waitcnt lgkmcnt(0)')
    MQ, AU, AR, OA = 4, 60, 68, 255
    WW, RBB, CNN = (132, 96), (140, 104), (144, 108)
    R16, T1, T2, T3, T4 = 92, 112, 113, 114, 115
    MF, AI, KB = 116, 72, 80
    sTRG = 89

    def epi_loads():
        img_load(5, 3, AU, 2)
        for q in range(NQ):
            a('s_mov_b32 s%d, %d' % (sT, q * 16384))
            a('buffer_load_dwordx4 %s, v%d, %s, s%d offen' % (vr(MQ + 8 * q, 4), OA, sr(S_MO, 4), sT))
            a('buffer_load_dwordx4 %s, v%d, %s, s%d offen offset:1024' % (vr(MQ + 8 * q + 4, 4), OA, sr(S_MO, 4), sT))
        T1, T2, T3, T4 = 2, 3, 82, 83
        a('v_mov_b32 v%d, 0' % KB)
        a('v_mov_b32 v%d, 0x%x' % (KB + 1, (-0x10001) & 0xffffffff))
        a('v_bfe_u32 v%d, v0, 2, 1' % T1)
        a('v_bfe_u32 v%d, v0, 5, 1' % T2)
        a('v_and_b32 v%d, 1, v0' % T3)
        a('v_lshlrev_b32 v%d, 4, v%d' % (T3, T3))
        a('v_mov_b32 v%d, 0x3f80' % T4)
        a('v_lshlrev_b32 v%d, v%d, v%d' % (T3, T3, T4))
        a('v_bfe_u32 v%d, v0, 3, 2' % T4)
        a('v_xor_b32 v%d, v%d, v%d' % (T1, T1, T2))
        a('v_bfe_u32 v%d, v0, 1, 1' % T2)
        a('v_lshl_or_b32 v%d, v%d, 1, v%d' % (T4, T4, T2))
        a('v_lshl_or_b32 v%d, v%d, 3, v%d' % (T4, T1, T4))
        for i in range(8):
            a('v_mov_b32 v%d, 0' % (AI + i))
            a('v_cmpx_eq_u32 vcc, %d, v%d' % (i, T4))
            a('v_mov_b32 v%d, v%d' % (AI + i, T3))
            a('s_mov_b64 exec, -1')
        if P['epf']:
            G['code_prefetch'](a, 'e%d' % lab[0], 98, 2, 256, 'Lk2_epi', 'Lk2_e6')
            lab[0] += 1

    a('s_mul_i32 s%d, s%d, 49' % (sTRG, sBIN))
    a('s_lshr_b32 s%d, s%d, 8' % (sTRG, sTRG))
    a('s_add_u32 s%d, s%d, %d' % (sTRG, sTRG, P['trg']))
    a('s_and_b32 s%d, s%d, 15' % (sT, sBIN))
    a('s_add_u32 s%d, s%d, %d' % (sT, sT, 28 + P['lf'] + P['s2']))
    a('s_cmp_lt_u32 s%d, %d' % (sTRG, 28 + P['lf'] + P['s2']))
    a('s_cselect_b32 s%d, s%d, s%d' % (sTRG, sT, sTRG))
    a('s_mul_i32 s%d, s%d, 3' % (sTRG, sTRG))
    a('s_min_u32 s%d, s%d, s%d' % (sTRG, sTRG, sEND))
    assert 4 * 8 * (128 * P['nfull'] - 64) > 32 * 1024
    if '1' in P['wpos']:
        a('s_mov_b32 s90, %d' % (3 * P['mw1']))
        a('s_mov_b32 s91, %d' % (P['wpos'].index('1') * 51200 * 128))
        a('v_mov_b32 v155, v%d' % WA)
    if P['xit']:
        assert P['smaj']
        a('s_sub_u32 s%d, s%d, 1' % (sT, sPc + 4))
        a('s_bitcmp0_b32 s%d, 9' % sT)
        a('s_cselect_b32 s71, s%d, -1' % sEND)
    if P['mpf']:
        per = P['mpp']
        a('s_lshr_b32 s%d, s2, 3' % sT)
        a('s_and_b32 s90, s%d, %d' % (sT, per - 1))
        a('s_add_u32 s90, s90, 1')
        a('s_lshr_b32 s%d, s%d, %d' % (sT, sT, per.bit_length() - 1))
        a('s_mul_i32 s%d, s%d, %d' % (sT, sT, 128 * per * 128))
        a('s_add_u32 s91, s90, %d' % P['mpf'])
        a('s_lshl_b32 s91, s91, 19')
        a('s_add_u32 s91, s91, s%d' % sT)
        a('s_mul_i32 s90, s90, 3')
    if P['prio']:
        a('s_cmp_lt_u32 s%d, 4' % sW)
        a('s_cbranch_scc1 Lk2_np')
        a('s_setprio 1')
        a('Lk2_np:')
    a.raw('.p2align 6')
    a('Lk2_loop:')
    a('s_cmp_eq_u32 s%d, s%d' % (sIX, sTRG))
    a('s_cbranch_scc1 Lk2_el')
    a('Lk2_lc:')
    if P['lf'] and not P['s2']:
        next_block()
    if P['mpf']:
        a('s_cmp_eq_u32 s%d, s90' % sIX)
        a('s_cbranch_scc1 Lk2_pl')
        a('Lk2_pc:')
    if '1' in P['wpos']:
        a('s_cmp_eq_u32 s%d, s90' % sIX)
        a('s_cbranch_scc1 Lk2_wl')
        a('Lk2_wc:')
    if P['s2']:
        step = step2
    step(0)
    if P['xit']:
        a('s_cmp_eq_u32 s%d, s71' % sIX)
        a('s_cbranch_scc1 Lk2_x')
    if P['stag'] == 2:
        halfbar(0)
    step(1)
    if P['stag']:
        halfbar(0)
    elif P['mbar'] == 1:
        a('s_barrier')
    elif P['mbar']:
        a('s_and_b32 s%d, s%d, %d' % (sT, sIX, P['mbar'] - 1))
        a('s_cbranch_scc1 Lk2_nb')
        a('s_barrier')
        a('Lk2_nb:')
    a('s_add_u32 s%d, s%d, 3' % (sIX, sIX))
    a('s_cmp_le_u32 s%d, s%d' % (sIX, sEND))
    a('s_cbranch_scc1 Lk2_loop')
    a('Lk2_x:')
    stamp(8, True)
    a('s_mov_b32 s%d, 0' % sPASS)
    for i in range(NQ):
        a('s_mov_b64 %s, 0' % sr(sFL + 2 * i, 2))
        a('s_mov_b64 %s, 0' % sr(sSK + 2 * i, 2))
    a('Lk2_epi:')
    a('v_lshlrev_b32 v%d, 3, v0' % A4)
    a('v_lshlrev_b32 v%d, 2, v0' % AC)
    a('v_add_u32 v%d, %d, v%d' % (A4B, HI0, A4))
    a('v_lshlrev_b32 v%d, 4, v0' % R16)
    a('s_waitcnt vmcnt(2) lgkmcnt(0)')
    a('v_or3_b32 v%d, v%d, v%d, v%d' % (STK, STK, RTN[0], RTN[1]))
    a('s_barrier')
    mk = {}

    def e_read(q):
        W, RB, CN = WW[q & 1], RBB[q & 1], CNN[q & 1]
        if q == NQ - 1:
            for i in range(4):
                a('v_mov_b32 v%d, 0' % (RB + i))
            for i in range(8):
                a('v_mov_b32 v%d, 0' % (W + i))
            a('v_mov_b32 v%d, 0' % CN)
            a('s_mov_b64 exec, %s' % sr(sV6, 2))
        a('ds_read_b32 v%d, v%d offset:%d' % (CN, AC, CNT0 + 2048 * q))
        mk[q, -1] = a.mark()
        for j in range(4):
            b, o = plane(j)
            a('ds_read_b64 %s, v%d offset:%d' % (vr(W + 2 * j, 2), b, o + 4096 * q))
            mk[q, j] = a.mark()
        a('ds_read_b128 %s, v%d offset:%d' % (vr(RB, 4), R16, RBF0))
        mk[q, 8] = a.mark()
        if q == NQ - 1:
            a('s_mov_b64 exec, -1')
        else:
            a('v_add_u32 v%d, 8192, v%d' % (R16, R16))

    def e_decode(q, mf=()):
        mf = list(mf)
        if mf:
            a(mf.pop(0))
        W, CN = WW[q & 1], CNN[q & 1]
        a.wait_ds(mk[q, -1 if q == 0 else 8])
        a('v_lshrrev_b32 v%d, 24, v%d' % (CN + 1, CN))
        a('v_and_b32 v%d, 0xffffff, v%d' % (CN, CN))
        a('v_sub_u32 v%d, 0x20001, v%d' % (T1, CN + 1))
        a('v_mad_u64_u32 %s, vcc, v%d, s%d, %s' % (vr(CN + 2, 2), T1, sM1, vr(KB, 2)))
        a('v_cmp_lt_u32 vcc, 127, v%d' % (CN + 1))
        a('v_mul_u32_u24 v%d, %d, v%d' % (CN + 1, P['theta'], CN + 1))
        a('s_or_b64 %s, %s, vcc' % (sr(sFL + 2 * q, 2), sr(sFL + 2 * q, 2)))
        a('v_cmp_lt_u32 vcc, 0x7ffe, v%d' % CN)
        a('v_add_u32 v%d, v%d, v%d' % (CN + 3, CN + 3, CN + 2))
        a('s_or_b64 %s, %s, vcc' % (sr(sFL + 2 * q, 2), sr(sFL + 2 * q, 2)))
        a('v_cmp_lt_u32 vcc, v%d, v%d' % (CN, CN + 1))
        a('s_or_b64 %s, %s, vcc' % (sr(sFL + 2 * q, 2), sr(sFL + 2 * q, 2)))
        for j in range(4):
            if mf:
                a(mf.pop(0))
            a('s_andn2_b64 exec, -1, %s' % sr(sSK + 2 * q, 2))
            if q == 0:
                a.wait_ds(mk[q, j])
            a('v_lshl_add_u64 %s, %s, 0, %s' % (vr(W + 2 * j, 2), vr(W + 2 * j, 2), vr(CN + 2, 2)))
            for e in range(2):
                a('v_xor_b32 v%d, s%d, v%d' % (W + 2 * j + e, sM1, W + 2 * j + e))
            for e in range(2):
                w = W + 2 * j + e
                a('v_cvt_f32_i32_sdwa v%d, sext(v%d) dst_sel:DWORD dst_unused:UNUSED_PAD src0_sel:WORD_1' % (CN + e, w))
                a('v_cvt_f32_i32_sdwa v%d, sext(v%d) dst_sel:DWORD dst_unused:UNUSED_PAD src0_sel:WORD_0' % (w, w))
            for e in range(2):
                a('v_cvt_pk_bf16_f32 v%d, v%d, v%d' % (W + 2 * j + e, W + 2 * j + e, CN + e))
            a('s_mov_b64 exec, -1')
        if q == 0:
            a.wait_ds(mk[q, 8])

    def e_mfma(q):
        W, RB = WW[q & 1], RBB[q & 1]
        r = []
        r.append('v_mfma_f32_32x32x16_bf16 %s, %s, %s, 0' % (vr(MF, 16), vr(AI, 4), vr(MQ + 8 * q, 4)))
        r.append('v_mfma_f32_32x32x16_bf16 %s, %s, %s, %s' % (vr(MF, 16), vr(AI + 4, 4), vr(MQ + 8 * q + 4, 4), vr(MF, 16)))
        r.append('v_mfma_f32_32x32x16_f16 %s, %s, %s, 0' % (vr(GATE, 16), vr(AR, 4), vr(RB, 4)))
        r.append('v_mfma_f32_32x32x16_bf16 %s, %s, %s, 0' % (vr(MD, 16), vr(AU, 4), vr(W, 4)))
        r.append('v_mfma_f32_32x32x16_bf16 %s, %s, %s, %s' % (vr(MD, 16), vr(AU + 4, 4), vr(W + 4, 4), vr(MD, 16)))
        return r

    def e_out(q):
        a('s_mov_b32 s%d, %d' % (sT, q * 16384))
        for j in range(8):
            m = MQ + 8 * q + j
            ta, tb = MF + 2 * j, MF + 2 * j + 1
            a('v_fmac_f32 v%d, v%d, v%d' % (ta, MD + 2 * j, GATE + 2 * j))
            a('v_fmac_f32 v%d, v%d, v%d' % (tb, MD + 2 * j + 1, GATE + 2 * j + 1))
            a('v_cvt_pk_bf16_f32 v%d, v%d, v%d' % (m, ta, tb))
            if j == 3:
                a('buffer_store_dwordx4 %s, v%d, %s, s%d offen %s' % (vr(MQ + 8 * q, 4), OA, sr(S_OUT, 4), sT, P['stout']))
        a('buffer_store_dwordx4 %s, v%d, %s, s%d offen offset:1024 %s' % (vr(MQ + 8 * q + 4, 4), OA, sr(S_OUT, 4), sT, P['stout']))

    e_read(0)
    e_read(1)
    e_decode(0)
    for q in range(NQ - 1):
        if q + 1 < NQ - 1:
            e_decode(q + 1, e_mfma(q))
        else:
            for t in e_mfma(q):
                a(t)
        if q + 2 < NQ:
            e_read(q + 2)
        e_out(q)
    a('s_cmp_lg_u32 s%d, 0' % sW)
    a('s_cbranch_scc1 Lk2_e6')
    e_decode(NQ - 1)
    for t in e_mfma(NQ - 1):
        a(t)
    e_out(NQ - 1)
    a('Lk2_e6:')
    stamp(9, True)
    if P['stamp']:
        a('s_waitcnt vmcnt(0)')
        stamp(10, True)
    if P['abl']:
        a('s_branch Lk2_end')
    a('s_cmp_lg_u32 s%d, 0' % sPASS)
    a('s_cbranch_scc1 Lk2_end')
    a('s_or_b64 %s, %s, %s' % (sr(sMK, 2), sr(sFL, 2), sr(sFL + 2, 2)))
    for q in range(2, NQ):
        a('s_or_b64 %s, %s, %s' % (sr(sMK, 2), sr(sMK, 2), sr(sFL + 2 * q, 2)))
    a('s_cselect_b32 s%d, 1, %d' % (sT, P['force_slow'] & 3))
    a('v_cmp_gt_i32 vcc, 0, v%d' % STK)
    a('s_cmp_lg_u64 vcc, 0')
    a('s_cselect_b32 s%d, 3, s%d' % (sT, sT))
    a('v_mov_b32 v2, s%d' % sT)
    a('s_lshl_b32 s%d, s%d, 2' % (sT, sW))
    a('s_add_u32 s%d, s%d, %d' % (sT, sT, SCR))
    a('v_mov_b32 v3, s%d' % sT)
    a('ds_write_b32 v3, v2')
    a('v_and_b32 v2, 7, v0')
    a('v_lshlrev_b32 v2, 2, v2')
    a('v_add_u32 v2, %d, v2' % SCR)
    a('s_waitcnt lgkmcnt(0)')
    a('s_barrier')
    a('ds_read_b32 v3, v2')
    a('s_waitcnt lgkmcnt(0)')
    a('v_cmp_ne_u32 vcc, 0, v3')
    a('s_cmp_eq_u64 vcc, 0')
    a('s_cbranch_scc1 Lk2_end')
    a('v_cmp_lt_u32 vcc, 1, v3')
    a('s_cmp_lg_u64 vcc, 0')
    a('Lk2_all:')
    for q in range(NQ):
        a('s_cselect_b64 %s, -1, %s' % (sr(sSK + 2 * q, 2), sr(sFL + 2 * q, 2)))
    a('s_and_b64 %s, %s, %s' % (sr(sSK + 2 * NQ - 2, 2), sr(sSK + 2 * NQ - 2, 2), sr(sV6, 2)))
    a('s_waitcnt vmcnt(0)')
    VD, VE, REC, ADDR, F12 = 4, 8, 12, 16, 17
    desc_load(VD, 18)
    a('v_lshlrev_b32 v%d, 3, v0' % A4)
    a('v_lshlrev_b32 v%d, 2, v0' % AC)
    a('v_add_u32 v%d, %d, v%d' % (A4B, HI0, A4))
    a('v_mov_b32 v2, 0')
    a('v_mov_b32 v3, 0')
    a('v_mov_b32 v19, -1')
    for q in range(NQ):
        a('s_mov_b64 exec, %s' % sr(sSK + 2 * q, 2))
        a('ds_write_b32 v%d, v19 offset:%d' % (AC, CNT0 + 2048 * q))
        for j in range(4):
            b, o = plane(j)
            a('ds_write_b64 v%d, v[2:3] offset:%d' % (b, o + 4096 * q))
        a('s_mov_b64 exec, -1')
        a('s_waitcnt lgkmcnt(0)')
    a('s_barrier')
    a('s_movk_i32 s%d, %d' % (sT, REC0 // 12))
    a('v_mov_b32 v%d, %d' % (F12, TSP))
    a('v_mad_u32_u24 v%d, v0, v%d, s%d' % (F12, F12, sT))
    a('s_waitcnt vmcnt(0)')
    for k in range(4):
        a('v_and_b32 v%d, 0x7fffffff, v%d' % (VD + k, VD + k))
        a('v_add_u32 v%d, 0x10000, v%d' % (VE + k, VD + k))
        a('v_and_b32 v%d, 0xffff, v%d' % (VD + k, VD + k))
        a('v_lshrrev_b32 v%d, 17, v%d' % (VE + k, VE + k))
    scan4(VE)
    for k in range(4):
        if k:
            a('v_add_u32 v%d, s%d, v%d' % (VE + k, sNT, VE + k))
        a('v_add_u32 v%d, v%d, v%d' % (VD + k, VD + k, F12))
        a('v_readlane_b32 s%d, v%d, 63' % (sNT, VE + k))
        a('v_sub_u32 v%d, v%d, v%d' % (VD + k, VD + k, VE + k))
        a('v_mul_lo_u32 v%d, v%d, 12' % (VD + k, VD + k))
    a('v_mul_u32_u24 v%d, 12, v%d' % (F12, LANE))
    a('s_mov_b32 s%d, 0' % sF)
    a('s_mov_b32 s%d, 0' % sE)
    a('s_mov_b32 s%d, 0' % sDL)
    a('s_movk_i32 s%d, -64' % sI)
    a('Lk2_sl:')
    a('s_cmp_ge_u32 s%d, s%d' % (sF, sNT))
    a('s_cbranch_scc1 Lk2_sd')
    a('v_add_u32 v%d, s%d, v%d' % (ADDR, sDL, F12))
    a('s_sub_u32 s%d, s%d, s%d' % (sP, sE, sF))
    a('s_cmp_ge_u32 s%d, 64' % sP)
    a('s_cbranch_scc1 Lfd')
    a('Lfl:')
    a('v_readlane_b32 s%d, v%d, s%d' % (sDL, VD, sI))
    a('v_readlane_b32 s%d, v%d, s%d' % (sE, VE, sI))
    a('s_add_u32 s%d, s%d, 1' % (sI, sI))
    a('s_cbranch_scc0 Lfc')
    a('s_mov_b64 exec, -1')
    for k in range(3):
        a('v_mov_b32 v%d, v%d' % (VE + k, VE + k + 1))
        a('v_mov_b32 v%d, v%d' % (VD + k, VD + k + 1))
    a('v_mov_b32 v%d, -1' % (VE + 3))
    a('v_bfrev_b32 v%d, 1' % (VD + 3))
    a('s_movk_i32 s%d, -64' % sI)
    a('Lfc:')
    a('s_lshl_b64 exec, -1, s%d' % sP)
    a('v_add_u32 v%d, s%d, v%d' % (ADDR, sDL, F12))
    a('s_sub_u32 s%d, s%d, s%d' % (sP, sE, sF))
    a('s_cmp_lt_u32 s%d, 64' % sP)
    a('s_cbranch_scc1 Lfl')
    a('s_mov_b64 exec, -1')
    a('Lfd:')
    a('s_add_u32 s%d, s%d, 64' % (sF, sF))
    a('v_add_u32 v%d, 768, v%d' % (F12, F12))
    a('buffer_load_dwordx3 %s, v%d, %s, 0 offen %s' % (vr(REC, 3), ADDR, sr(S_WS, 4), HO))
    a('s_mov_b32 s%d, 0' % sSUB)
    a('s_waitcnt vmcnt(0)')
    a('Lk2_s2:')
    a('v_cmp_gt_i32 %s, 0, v%d' % (sr(sMK, 2), REC + 1))
    a('v_ashrrev_i32 v%d, 31, v%d' % (TM, REC + 1))
    a('v_and_b32 v%d, v%d, v%d' % (REC, REC, TM))
    a('v_and_b32 v%d, s%d, v%d' % (IA, sIDM, REC))
    a('v_and_b32 v%d, s%d, v%d' % (IB, sIDM, REC))
    a('v_lshrrev_b32 v%d, 16, v%d' % (A16[0], REC))
    a('v_and_b32 v%d, s%d, v%d' % (A16[0], sA16, A16[0]))
    a('v_and_b32 v%d, s%d, v%d' % (ANG[0], sHI, REC + 1))
    a('v_permlane32_swap_b32 v%d, v%d' % (IA, IB))
    addrs(0)
    a('ds_read_b32 v%d, v%d offset:%d' % (CV, AC, CNT0))
    a('ds_read_b128 %s, v%d offset:%d' % (vr(RBF, 4), A16[0], RBF0))
    a('s_waitcnt lgkmcnt(0)')
    a('v_cmp_gt_i32 vcc, 0, v%d' % CV)
    a('s_and_b64 %s, %s, vcc' % (sr(sMK, 2), sr(sMK, 2)))
    a('s_cbranch_scc0 Lk2_s3')
    gathers(0)
    cosines(0)
    for l in range(3):
        sbf(l)
        gmf(l)
    a('s_waitcnt vmcnt(0)')
    mdown(0)
    for d in range(16):
        a('v_mul_f32 v%d, 0x47800000, v%d' % (GATE + d, GATE + d))
        a('v_mul_f32 v%d, v%d, v%d' % (MD + d, MD + d, GATE + d))
    a('s_mov_b64 exec, %s' % sr(sMK, 2))
    for j in range(8):
        a('v_cvt_pk_bf16_f32 v%d, v%d, v%d' % (MD + 2 * j, MD + 2 * j, MD + 2 * j + 1))
        b, o = plane(j >> 1)
        a('ds_pk_add_bf16 v%d, v%d offset:%d' % (b, MD + 2 * j, o + 4 * (j & 1)))
    a('s_mov_b64 exec, -1')
    a('Lk2_s3:')
    a('v_mov_b32 v%d, v%d' % (REC, REC + 2))
    a('v_lshlrev_b32 v%d, 16, v%d' % (REC + 1, REC + 1))
    a('s_xor_b32 s%d, s%d, 1' % (sSUB, sSUB))
    a('s_cbranch_scc1 Lk2_s2')
    a('s_branch Lk2_sl')
    a.fence()
    a('Lk2_sd:')
    a('s_mov_b32 s%d, 1' % sPASS)
    epi_loads()
    a('s_waitcnt vmcnt(0)')
    a('s_branch Lk2_epi')
    a.fence()
    a('Lk2_fb:')
    a('s_mov_b32 s%d, 1' % sMODE)
    if hk:
        if late:
            for f in late:
                f()
            a('s_waitcnt vmcnt(0)')
            hk.arrive2(0, VT, hk.arrive1(0, VT))
        done_wait(done_load())
    dist_loads()
    a('s_waitcnt vmcnt(0)')
    for q in range(NQ):
        rbf_batch(q)
    a('s_branch Lk2_init')
    a.fence()
    if '1' in P['wpos']:
        a('Lk2_wl:')
        a('buffer_load_dword v2, v155, %s, s91 offen' % sr(S_MR, 4))
        a('s_add_u32 s90, s90, %d' % (3 * P['mw2']))
        a('s_add_u32 s91, s91, %d' % (51200 * 128))
        a('s_cmp_ge_u32 s91, %d' % (4 * 51200 * 128))
        a('s_cselect_b32 s90, -1, s90')
        a('s_branch Lk2_wc')
        a.fence()
    if P['mpf']:
        a('Lk2_pl:')
        per = P['mpp']
        if per == 2:
            a('v_and_b32 v3, 31, v0')
            a('v_lshl_add_u32 v3, s%d, 5, v3' % sW)
            a('v_lshlrev_b32 v3, 7, v3')
        else:
            a('v_lshlrev_b32 v3, 7, v0')
        if per == 8:
            a('s_add_u32 s%d, s91, 65536' % sT)
            a('buffer_load_dword v%d, v3, %s, s%d offen' % (72, sr(S_MR, 4), sT))
        a('buffer_load_dword v3, v3, %s, s91 offen' % sr(S_MR, 4))
        a('s_add_u32 s90, s90, %d' % (3 * per))
        a('s_add_u32 s91, s91, %d' % (per << 19))
        a('s_branch Lk2_pc')
        a.fence()
    a('Lk2_el:')
    epi_loads()
    a('s_branch Lk2_lc')
    a.fence()
    a('Lk2_end:')
    a('s_endpgm')
    a.fence()
    return LDS
```

```python
import sys, math, struct
from asmlib import Asm

NAME = 'gather_scatter__molecular_angular_gemnet__graph'
E, T = 800000, 12800000
BINE = 3125
TS = 158976
TSP = TS // 12
REC0 = 12288
DESC0 = 0x4F00000
PREP0 = 0x5200000
FLG0 = 0x5300000
WS_BYTES = 268435456

P = dict(ld1='nt', st1='', ldrec='', stout='nt', target=165.0, theta=64, bar=16, stamp=0, force_slow=0, abl=0, idm=0xfffff, goff=0, qk=5, wp2='', prime=0, fst=0, cls=0, bmap='', xit=1, lg=0, smaj=1, kl=0, kalt=0, rsp=1, k1m=0, k1x=0, k1pr=0, ilv=1, nog=0, s2=1, bpos=1, cs1=2, cs2=7, lf=1, lfb=3, lfm=0, tw=0, epf=0, fpipe=0, ztid=0, spf=44, ns0=6, nrun=1, nlate=0, lt0=0, mpf=0, mpp=4, atj=11, nae=20, nsx=2, slp=16, sg0=0, fuse=0, p8=0, pld=4, sch8='.L.LP.LP.LP.LP.LP.LP.LP.LP.P.P.P', fr=9, na=2, bhd=1, sch='.L.L.L.L.LP.P.P.P', early=1, stag=1, stb_=1, mw1=1, mw2=8, k1w=0, k1p=1, imgl=1, pfn=0, ppos='uz', sta='sc1', stb='sc1', nfull=10, wpos='kosw', lead=9, lead0=6, npipe=13, hp=4, scw=3, trg=2, prio=0, cpf=1, dv=4, warm=1, mbar=1, sdwa=1, npre=4, only1=0, stw=0, k2x=0, rd2=1, l2x=0, recm=0, ldg='')
for a in sys.argv[2:]:
    k, v = a.split('=')
    P[k] = type(P[k])(v.replace('+',' ')) if not isinstance(P[k], int) else int(v, 0)


def f2u(x):
    return struct.unpack('<I', struct.pack('<f', x))[0]


def vr(a, n):
    return 'v[%d:%d]' % (a, a + n - 1)


def sr(a, n):
    return 's[%d:%d]' % (a, a + n - 1)


def srd(a, d, ptr, nbytes, off=None, stride=0):
    if off is None:
        a('s_mov_b32 s%d, s%d' % (d, ptr))
        a('s_mov_b32 s%d, s%d' % (d + 1, ptr + 1))
    else:
        a('s_add_u32 s%d, s%d, %s' % (d, ptr, off))
        a('s_addc_u32 s%d, s%d, 0' % (d + 1, ptr + 1))
    if stride:
        a('s_or_b32 s%d, s%d, 0x%x' % (d + 1, d + 1, stride << 16))
    a('s_mov_b32 s%d, %d' % (d + 2, nbytes))
    a('s_mov_b32 s%d, 0x20000' % (d + 3))


def scan64(a, v, op='v_add_u32'):
    for c in ('row_shr:1', 'row_shr:2', 'row_shr:4', 'row_shr:8'):
        a('%s_dpp v%d, v%d, v%d %s row_mask:0xf bank_mask:0xf' % (op, v, v, v, c))
    a('%s_dpp v%d, v%d, v%d row_bcast:15 row_mask:0xa bank_mask:0xf' % (op, v, v, v))
    a('%s_dpp v%d, v%d, v%d row_bcast:31 row_mask:0xc bank_mask:0xf' % (op, v, v, v))


def code_prefetch(a, tag, st, vt, nwg=16, first=None, last='Lk2_end'):
    a('s_cmp_ge_u32 s2, %d' % nwg)
    a('s_cbranch_scc1 Lcpf%s' % tag)
    a('s_getpc_b64 %s' % sr(st, 2))
    a('Lcpb%s:' % tag)
    a('v_lshlrev_b32 v%d, 7, v0' % vt)
    a('v_mov_b32 v%d, 0' % (vt + 1))
    if first:
        a('s_sub_u32 s%d, s%d, Lcpb%s-%s' % (st, st, tag, first))
        a('s_subb_u32 s%d, s%d, 0' % (st + 1, st + 1))
    a('v_cmp_gt_u32 vcc, %s-%s, v%d' % (last, first or 'Lcpb' + tag, vt))
    a('v_lshl_add_u64 %s, %s, 0, %s' % (vr(vt, 2), vr(vt, 2), sr(st, 2)))
    a('s_and_b64 exec, exec, vcc')
    a('s_cbranch_execz Lcpe%s' % tag)
    a.nocount = True
    a('global_load_dword v%d, %s, off' % (vt, vr(vt, 2)))
    a.nocount = False
    a('Lcpe%s:' % tag)
    a('s_mov_b64 exec, -1')
    a('Lcpf%s:' % tag)


STAMP0 = 0x6000000


def stamp_init(a, sdbg, wsptr, kern, sw):
    if not P['stamp']:
        return
    a('s_lshl_b32 s100, s2, 7')
    a('s_add_u32 s100, s100, %d' % (STAMP0 + kern * 32768))
    srd(a, sdbg, wsptr, 128, 's100')
    stamp.sel = sw


def stamp(a, idx, sdbg, tmp_s, tmp_v, tmp_w=None):
    tmp_w = tmp_w or tmp_v + 1
    if not P['stamp']:
        return
    lab = 'Lst%d' % stamp.n
    stamp.n += 1
    a.nocount = True
    a('s_cmp_lg_u32 s%d, %d' % (stamp.sel, P['stw']))
    a('s_cbranch_scc1 %s' % lab)
    a('s_memrealtime %s' % sr(tmp_s, 2))
    a('s_waitcnt lgkmcnt(0)')
    a('v_mov_b32 v%d, s%d' % (tmp_v, tmp_s))
    a('v_mov_b32 v%d, %d' % (tmp_w, idx * 4))
    a('buffer_store_dword v%d, v%d, %s, 0 offen' % (tmp_v, tmp_w, sr(sdbg, 4)))
    a('s_memtime %s' % sr(tmp_s, 2))
    a('s_waitcnt lgkmcnt(0)')
    a('v_mov_b32 v%d, s%d' % (tmp_v, tmp_s))
    a('buffer_store_dword v%d, v%d, %s, 0 offen offset:64' % (tmp_v, tmp_w, sr(sdbg, 4)))
    a(lab + ':')
    a.nocount = False


stamp.n = 0
stamp.sel = 0


def k1(a):
    CNTB, SCR, CNTA = 0, 4096, 4224
    DATB, DATA = 4224, 8320
    S_IN, S_OUT, S_ANG, S_REC, S_DSC, S_T0, S_DBG = 24, 28, 32, 36, 40, 44, 92
    S_REC2 = 80
    sMB, sMC, sNEG, sHI, sT, sW = 64, 65, 66, 67, 68, 69
    sREM = 70
    sBASE, sPREP, sVB, sUM = 72, 73, 74, 75
    O16, O8, ONE, SIX = 1, 2, 3, 12
    TP = 4
    TS_ = 22
    ANG = 14
    ANGR = 13
    INA, OUTA, INB, OUTB, INR, OUTR = 28, 52, 76, 100, 124, 125
    ld = P['ld1']
    st = P['st1']

    a('s_cmp_ge_u32 s2, 256')
    a('s_cbranch_scc1 Lk1_end')
    a('s_load_dwordx4 s[4:7], s[0:1], 8')
    a('s_load_dwordx2 s[8:9], s[0:1], 32')
    a('s_load_dwordx4 s[76:79], s[0:1], 96')
    a('s_load_dwordx2 s[12:13], s[0:1], 0')
    a('s_load_dwordx8 s[16:23], s[0:1], 56')
    if P['cpf'] & 1:
        code_prefetch(a, 'a', 84, 124)
    a('v_lshlrev_b32 v%d, 4, v0' % O16)
    a('v_lshlrev_b32 v%d, 3, v0' % O8)
    a('v_mov_b32 v%d, 1' % ONE)
    a('v_mov_b32 v%d, 6' % SIX)
    a('v_lshrrev_b32 v4, 6, v0')
    a('v_readfirstlane_b32 s%d, v4' % sW)
    a('v_mov_b32 v4, 0')
    a('v_lshlrev_b32 v5, 2, v0')
    a('ds_write_b32 v5, v4 offset:%d' % CNTB)
    a('ds_write_b32 v5, v4 offset:%d' % CNTA)
    a('s_mov_b32 s%d, %d' % (sMB, -(-2**32 // BINE)))
    a('s_mov_b32 s%d, 21400' % sMC)
    a('s_mov_b32 s%d, %d' % (sNEG, -BINE))
    a('s_mov_b32 s%d, 0xffff0000' % sHI)
    a('s_mov_b32 s%d, 0x80008000' % sVB)
    a('s_mov_b32 s%d, 0xff000' % sUM)
    if P['ilv']:
        a('s_mul_i32 s14, s2, 53')
        a('s_add_u32 s15, s14, 53')
        a('s_lshr_b32 s14, s14, 2')
        a('s_lshr_b32 s15, s15, 2')
        a('s_sub_u32 s%d, s15, s14' % sT)
        a('s_lshl_b32 s%d, s%d, 6' % (sT, sT))
        a('s_lshl_b32 s15, s2, 6')
        a('s_sub_u32 s14, s14, s15')
        a('s_add_u32 s3, s14, 196608')
        a('s_lshl_b32 s14, s2, 14')
        a('s_lshl_b32 s15, s2, 13')
    else:
        a('s_mul_i32 s14, s2, 3125')
        a('s_add_u32 s15, s14, 3125')
        a('s_lshr_b32 s14, s14, 2')
        a('s_lshr_b32 s15, s15, 2')
        a('s_sub_u32 s3, s15, s14')
        a('s_lshl_b32 s15, s14, 7')
        a('s_lshl_b32 s14, s14, 8')
        a('s_sub_u32 s%d, s3, 768' % sT)
        a('s_lshl_b32 s%d, s%d, 6' % (sT, sT))
    a('v_cmp_gt_u32 %s, s%d, v0' % (sr(sREM, 2), sT))
    a('v_and_b32 v13, 63, v0')
    a('v_lshlrev_b32 v27, 4, v13')
    a('s_lshl_b32 s%d, s2, 4' % sPREP)
    a('s_or_b32 s%d, s%d, s%d' % (sPREP, sPREP, sW))
    a('s_waitcnt lgkmcnt(0)')
    srd(a, S_IN, 4, 0, 's14')
    srd(a, S_OUT, 6, 0, 's14')
    srd(a, S_ANG, 8, 0, 's15')
    if P['ilv']:
        a('s_sub_u32 s%d, %d, s14' % (S_IN + 2, T * 4))
        a('s_sub_u32 s%d, %d, s14' % (S_OUT + 2, T * 4))
        a('s_sub_u32 s%d, %d, s15' % (S_ANG + 2, T * 2))
    else:
        a('s_lshl_b32 s%d, s3, 8' % (S_IN + 2))
        a('s_lshl_b32 s%d, s3, 8' % (S_OUT + 2))
        a('s_lshl_b32 s%d, s3, 7' % (S_ANG + 2))
    RS = 256 if P['ilv'] else 1
    stamp_init(a, S_DBG, 78, 0, sW)
    stamp(a, 0, S_DBG, 96, 126)
    a('s_cmp_lg_u32 s%d, 0' % sPREP)
    a('s_cbranch_scc1 Lk1_main')
    a.nocount = True
    srd(a, S_T0, 18, 768)
    srd(a, S_T0 + 4, 20, 512)
    srd(a, S_T0 + 8, 22, 512)
    srd(a, S_T0 + 12, 16, 256)
    srd(a, S_T0 + 16, 12, E * 32)
    for i in range(4):
        a('buffer_load_dwordx4 %s, v27, %s, 0 offen' % (vr(76 + 4 * i, 4), sr(S_T0 + 4 * i, 4)))
    a('v_mul_u32_u24 v4, 99984, v13')
    for i in range(4):
        a('s_mov_b32 s%d, %d' % (sT, i * 64 * 99984))
        a('buffer_load_dwordx4 %s, v4, %s, s%d offen' % (vr(92 + 4 * i, 4), sr(S_T0 + 16, 4), sT))
    a.nocount = False
    a('Lk1_main:')

    marks = {}

    def regs(j):
        return ((INA, OUTA) if j < 6 else (INB, OUTB)), 4 * (j % 6), (ANG + 2 * (j % 4) if j < 10 else (INA, OUTA)[j - 10])

    def loads(j):
        if j == 12:
            a('v_lshlrev_b32 v10, 2, v0')
            a('v_lshlrev_b32 v11, 1, v0')
            a('s_lshl_b32 s%d, s3, 8' % sT if P['ilv'] else 's_mov_b32 s%d, %d' % (sT, 12 * 16384))
            a('s_mov_b64 exec, %s' % sr(sREM, 2))
            a('buffer_load_dword v%d, v10, %s, s%d offen %s' % (OUTR, sr(S_OUT, 4), sT, ld))
            a('buffer_load_dword v%d, v10, %s, s%d offen %s' % (INR, sr(S_IN, 4), sT, ld))
            a('s_lshl_b32 s%d, s3, 7' % sT if P['ilv'] else 's_mov_b32 s%d, %d' % (sT, 12 * 8192))
            a('buffer_load_ushort v%d, v11, %s, s%d offen %s' % (ANGR, sr(S_ANG, 4), sT, ld))
            a('s_mov_b64 exec, -1')
        else:
            (rin, rout), o, rang = regs(j)
            a('s_mov_b32 s%d, %d' % (sT, j * 16384 * RS))
            a('buffer_load_dwordx4 %s, v%d, %s, s%d offen %s' % (vr(rout + o, 4), O16, sr(S_OUT, 4), sT, ld))
            a('buffer_load_dwordx4 %s, v%d, %s, s%d offen %s' % (vr(rin + o, 4), O16, sr(S_IN, 4), sT, ld))
            a('s_mov_b32 s%d, %d' % (sT, j * 8192 * RS))
            a('buffer_load_dwordx2 %s, v%d, %s, s%d offen %s' % (vr(rang, 2), O8, sr(S_ANG, 4), sT, ld))
        marks[j] = a.mark()

    def pack2(items, rg, cnt):
        a('v_or_b32 v%d, s%d, v%d' % (rg, sVB, rg))
        for e, (ri, ro) in enumerate(items):
            a('v_or_b32 v%d, 3, v%d' % (TP + e, ro))
        for e, (ri, ro) in enumerate(items):
            a('v_mul_hi_u32_u24 v%d, s%d, v%d' % (TP + e, sMB, TP + e))
        for e, (ri, ro) in enumerate(items):
            a('v_and_b32 v%d, 3, v%d' % (TP + 2 + e, TP + e))
            a('v_mad_i32_i24 v%d, v%d, s%d, v%d' % (ro, TP + e, sNEG, ro))
        for e, (ri, ro) in enumerate(items):
            a('v_add_u32 v%d, v%d, v%d' % (ro, ro, TP + 2 + e))
            a('v_and_b32 v%d, s%d, v%d' % (TP + 2 + e, sUM, ri))
        for e, (ri, ro) in enumerate(items):
            a('v_mul_hi_u32_u24 v%d, s%d, v%d' % (TP + 2 + e, sMC, TP + 2 + e))
        for e, (ri, ro) in enumerate(items):
            a('v_lshl_add_u32 v%d, v%d, 8, v%d' % (TP + e, TP + 2 + e, TP + e))
            a('v_lshl_or_b32 v%d, v%d, 20, v%d' % (ri, ro, ri))
        for e, (ri, ro) in enumerate(items):
            a('v_lshlrev_b32 v%d, 2, v%d' % (TP + e, TP + e))
        for e, (ri, ro) in enumerate(items):
            a('ds_add_u32 v%d, v%d offset:%d' % (TP + e, ONE, cnt))
            if e:
                a('v_and_or_b32 v%d, v%d, s%d, v%d' % (ro, rg, sHI, TP + e))
            else:
                a('v_lshl_or_b32 v%d, v%d, 16, v%d' % (ro, rg, TP + e))

    def pack(j):
        a.wait_vm(marks[j])
        if j == 12:
            a('s_mov_b64 exec, %s' % sr(sREM, 2))
            pack2([(INR, OUTR)], ANGR, CNTB)
            a('s_mov_b64 exec, -1')
            return
        (rin, rout), o, rang = regs(j)
        for h in range(2):
            pack2([(rin + o + 2 * h + e, rout + o + 2 * h + e) for e in range(2)], rang + h, CNTA if j < 6 else CNTB)

    def scan(sub, cnt, data, srec, mid1=None, mid2=None):
        a('v_lshlrev_b32 v10, 2, v0')
        a('s_waitcnt lgkmcnt(0)')
        a('s_barrier')
        a('ds_read_b32 v4, v10 offset:%d' % cnt)
        m = a.mark()
        if mid1:
            mid1()
        a('s_lshl_b32 s%d, s%d, 2' % (sT, sW))
        a('v_mov_b32 v8, s%d' % sT)
        a('v_and_b32 v9, 60, v10')
        a.wait_ds(m)
        a('v_add_u32 v6, 1, v4')
        a('v_lshrrev_b32 v6, 1, v6')
        a('v_mov_b32 v7, v6')
        scan64(a, 7)
        a('s_mov_b32 exec_lo, 0')
        a('s_mov_b32 exec_hi, 0x80000000')
        a('ds_write_b32 v8, v7 offset:%d' % SCR)
        a('s_mov_b64 exec, -1')
        a('s_waitcnt lgkmcnt(0)')
        a('s_barrier')
        a('ds_read_b32 v11, v9 offset:%d' % SCR)
        m = a.mark()
        if mid2:
            mid2()
        a('v_and_b32 v8, 255, v0')
        a('v_lshrrev_b32 v9, 8, v0')
        a('v_lshlrev_b32 v9, 2, v9')
        a('v_lshl_add_u32 v9, v8, 4, v9')
        a.wait_ds(m)
        a('v_mov_b32 v5, v11')
        for c in ('row_shr:1', 'row_shr:2', 'row_shr:4', 'row_shr:8'):
            a('v_add_u32_dpp v11, v11, v11 %s row_mask:0xf bank_mask:0xf' % c)
        a('v_sub_u32 v5, v11, v5')
        a('v_readlane_b32 s%d, v11, 15' % sT)
        a('v_readlane_b32 s%d, v5, s%d' % (sBASE, sW))
        a('s_mul_i32 s%d, s%d, 12' % (srec + 2, sT))
        a('v_add_u32 v7, s%d, v7' % sBASE)
        a('v_sub_u32 v6, v7, v6')
        a('s_movk_i32 s%d, %d' % (sT, data))
        a('v_mad_u32_u24 v6, v6, 12, s%d' % sT)
        a('ds_write_b32 v10, v6 offset:%d' % cnt)
        a('v_lshl_or_b32 v5, v4, 16, v7')
        a('v_mul_u32_u24 v7, 12, v7')
        a('v_mov_b32 v6, 0')
        a('v_and_b32 v4, 1, v4')
        a('s_and_b32 s%d, s2, 7' % sT)
        a('s_lshl1_add_u32 s%d, s%d, %d' % (sT, sT, 3136 + sub))
        a('v_lshrrev_b32 v8, 8, v0')
        a('v_lshl_add_u32 v8, v8, 4, s%d' % sT)
        a('v_lshlrev_b32 v8, 8, v8')
        a('v_cmpx_eq_u32 vcc, 1, v4')
        a('ds_write_b16 v7, v6 offset:%d' % (data - 8))
        a('ds_write_b32 v7, v8 offset:%d' % (data - 4))
        a('s_mov_b64 exec, -1')
        a('s_movk_i32 s%d, %d' % (sT, sub * 4096))
        a('buffer_store_dword v5, v9, %s, s%d offen %s' % (sr(S_DSC, 4), sT, st))
        a('s_waitcnt lgkmcnt(0)')
        a('s_barrier')

    def rtn(t, ro, cnt):
        a('v_and_b32 v%d, 0xffff, v%d' % (t, ro))
        a('ds_add_rtn_u32 v%d, v%d, v%d offset:%d' % (t, t, SIX, cnt))

    def put(t, ri, ro, e):
        u = 8 + (e & 1)
        a('v_and_b32 v%d, 2, v%d' % (u, t))
        a('v_add_u32 v%d, v%d, v%d' % (t, t, u))
        a('v_mad_i32_i24 v%d, v%d, -5, v%d' % (u, u, t))
        a('ds_write_b32 v%d, v%d' % (t, ri))
        a('ds_write_b16_d16_hi v%d, v%d offset:6' % (u, ro))

    def scatter(rin, rout, cnt, rem, between):
        G = 3
        ng = 24 // G
        mk = {}
        if rem:
            a('s_mov_b64 exec, %s' % sr(sREM, 2))
            rtn(10, OUTR, cnt)
            a('s_mov_b64 exec, -1')
        for e in range(G):
            rtn(TS_ + e, rout + e, cnt)
        mk[0] = a.mark()
        for g in range(ng):
            cur, nxt = TS_ + (g & 1) * G, TS_ + ((g + 1) & 1) * G
            if g + 1 < ng:
                for e in range(G):
                    rtn(nxt + e, rout + (g + 1) * G + e, cnt)
                mk[g + 1] = a.mark()
            a.wait_ds(mk[g])
            for e in range(G):
                put(cur + e, rin + g * G + e, rout + g * G + e, e)
            if rem and g == 0:
                a('s_mov_b64 exec, %s' % sr(sREM, 2))
                put(10, INR, OUTR, 1)
                a('s_mov_b64 exec, -1')
            between(g)

    rd = {}

    def readout(base, data):
        a('v_add_u32 v22, 0x10000, v%d' % O16)
        a('v_add_u32 v23, 0x20000, v%d' % O16)
        for j in range(10):
            b = (O16, 22, 23)[j >> 2]
            a('ds_read_b128 %s, v%d offset:%d' % (vr(base + 4 * j, 4), b, data + (j & 3) * 16384))
            rd[j] = a.mark()

    def store(base, srec, j, wait=False):
        a('s_mov_b32 s%d, %d' % (sT, j * 16384))
        if wait:
            a.wait_ds(rd[j])
        a('buffer_store_dwordx4 %s, v%d, %s, s%d offen %s' % (vr(base + 4 * j, 4), O16, sr(srec, 4), sT, P['sta'] if base == INA else P['stb']))

    loads(0)
    loads(1)
    a('s_lshl_b32 s14, s2, 1')
    a('s_mul_i32 s15, s14, %d' % TS)
    a('s_add_u32 s15, s15, %d' % REC0)
    srd(a, S_REC, 78, 0, 's15')
    a('s_add_u32 s15, s15, %d' % TS)
    srd(a, S_REC2, 78, 0, 's15')
    a('s_lshl_b32 s15, s14, 12')
    a('s_add_u32 s15, s15, %d' % DESC0)
    srd(a, S_DSC, 78, 8192, 's15')
    a('s_cmp_lg_u32 s%d, 0' % sPREP)
    a('s_barrier')
    a('s_cbranch_scc1 Lk1_noprep')
    a.nocount = True
    nds = a.nds
    prep(a, DATA, S_T0)
    a.nds = nds
    a.nocount = False
    a('Lk1_noprep:')
    if P['k1pr']:
        for pr in range(1, 4):
            a('s_cmp_lt_u32 s%d, %d' % (sW, 4 * pr))
            a('s_cbranch_scc1 Lk1_pr')
            a('s_setprio %d' % pr)
        a('Lk1_pr:')
    for j in range(6):
        if j + 2 < 8 + P['k1x']:
            loads(j + 2)
        pack(j)
    for j in range(P['k1x']):
        loads(8 + j)
    stamp(a, 1, S_DBG, 96, 126)
    k1m = [8 + P['k1x'] + j for j in range(P['k1m'])]
    scan(0, CNTA, DATA, S_REC, None, lambda: [loads(j) for j in k1m])
    stamp(a, 2, S_DBG, 96, 126)

    sched = P['sch'].split('.')
    nl, npk = [8 + P['k1x'] + P['k1m']], [6]

    def do(ops):
        for c in ops:
            if c == 'L' and nl[0] < 13:
                assert nl[0] >= 10 or nl[0] - npk[0] < 4
                loads(nl[0])
                nl[0] += 1
            elif c == 'P':
                pack(npk[0])
                npk[0] += 1
            elif c == 'B':
                a('s_barrier')

    do(sched[0])
    scatter(INA, OUTA, CNTA, False, lambda g: do(sched[g + 1]))
    stamp(a, 3, S_DBG, 96, 126)
    do('L' * (13 - nl[0]))
    if P['cpf'] & 4:
        code_prefetch(a, 'c', 84, 126, 8)
    do('P' * (13 - npk[0]))
    stamp(a, 4, S_DBG, 96, 126)
    npre = P['npre']
    scan(1, CNTB, DATB, S_REC2, lambda: readout(INA, DATA), lambda: [store(INA, S_REC, j) for j in range(npre)])
    stamp(a, 5, S_DBG, 96, 126)
    todo = list(range(npre, 10))

    def btw_b(g):
        k = -(-len(todo) // (8 - g))
        for _ in range(k):
            store(INA, S_REC, todo.pop(0))

    scatter(INB, OUTB, CNTB, True, btw_b)
    stamp(a, 6, S_DBG, 96, 126)
    a('s_waitcnt lgkmcnt(0)')
    a('s_barrier')

    def k1warm():
        srd(a, S_T0, 12, P['k1w'] * 51200 * 128 if P['k1w'] < 4 else E * 32)
        a('s_lshl_b32 s%d, s2, 4' % sT)
        a('s_add_u32 s%d, s%d, s%d' % (sT, sT, sW))
        a('s_mul_i32 s%d, s%d, %d' % (sT, sT, 13 * P['k1w']))
        a('v_and_b32 v4, 63, v0')
        a('v_min_u32 v4, %d, v4' % (13 * P['k1w'] - 1))
        a('v_add_lshl_u32 v4, v4, s%d, 7' % sT)
        a('buffer_load_dword v4, v4, %s, 0 offen' % sr(S_T0, 4))

    readout(INB, DATB)
    if P['k1w'] and P['k1p'] == 0:
        k1warm()
    for j in range(10):
        store(INB, S_REC2, j, True)
    if P['k1w'] and P['k1p'] == 1:
        k1warm()
    stamp(a, 7, S_DBG, 96, 126)
    if P['stamp']:
        a('s_waitcnt vmcnt(0)')
        stamp(a, 8, S_DBG, 96, 126)
    a('Lk1_end:')
    a('s_endpgm')
    a.fence()
    return DATB + (25472 + 1024) * 6


def prep(a_, PB, S_T0, nvm=6, L=13, wsp=78, st=14, fl=''):
    a0 = a_

    def a(t):
        t = t.replace('s14', 's%d' % st) if not t.startswith('s_add') else t
        a0(t + ' ' + fl if t.startswith('buffer_store') else t)
    O = 27
    sS = 80
    sS = 48
    a('s_waitcnt vmcnt(%d)' % nvm)
    for i in range(4):
        a('ds_write_b128 v%d, %s offset:%d' % (O, vr(76 + 4 * i, 4), PB + 1024 * i))
    a('v_mov_b32 v4, 0')
    for i in range(16):
        a('v_dot2_f32_bf16 v4, v%d, v%d, v4' % (92 + i, 92 + i))
    scan64(a, 4, 'v_add_f32')
    a('v_readlane_b32 s14, v4, 63')
    a('v_bfe_u32 v5, v%d, 3, 2' % L)
    a('v_and_b32 v6, 3, v%d' % L)
    a('v_lshl_or_b32 v5, v5, 2, v6')
    a('v_lshlrev_b32 v5, 1, v5')
    a('v_bfe_u32 v7, v%d, 2, 1' % L)
    a('v_lshrrev_b32 v8, 5, v%d' % L)
    a('s_waitcnt lgkmcnt(0)')
    for k in range(24):
        a('ds_read_u16 v%d, v5 offset:%d' % (76 + k, PB + 32 * k))
        if k % 8 == 7:
            a('s_waitcnt lgkmcnt(0)')
    for k in range(16):
        a('ds_read_u16 v%d, v5 offset:%d' % (100 + k, PB + 1024 + 32 * k))
        if k % 8 == 7:
            a('s_waitcnt lgkmcnt(0)')
    a('v_lshl_add_u32 v9, v8, 8, v5')
    for k in range(8):
        a('ds_read_u16 v%d, v9 offset:%d' % (116 + k, PB + 1024 + 32 * k))
    a('s_waitcnt lgkmcnt(0)')
    for k in range(48):
        a('v_lshlrev_b32 v%d, 16, v%d' % (76 + k, 76 + k))
    a('v_mul_f32 v9, v76, v76')
    for k in range(1, 24):
        a('v_fmac_f32 v9, v%d, v%d' % (76 + k, 76 + k))
    a('v_mul_f32 v10, v100, v100')
    for k in range(1, 16):
        a('v_fmac_f32 v10, v%d, v%d' % (100 + k, 100 + k))
    a('v_log_f32 v9, v9')
    a('v_log_f32 v10, v10')
    a('v_log_f32 v11, s14')
    a('v_add_f32 v10, v10, v9')
    a('v_add_f32 v10, v10, v11')
    c0 = math.log2(P['target']) - 0.5 * math.log2(0.1625 / 2048)
    a('v_mov_b32 v11, 0x%x' % f2u(c0))
    a('v_fmac_f32 v11, -0.5, v10')
    a('v_floor_f32 v11, v11')
    a('v_mul_f32 v9, 0.5, v9')
    a('v_floor_f32 v9, v9')
    a('s_mov_b32 s14, 0x%x' % f2u(40.0))
    a('v_med3_f32 v11, v11, -s14, s14')
    a('v_med3_f32 v9, -v9, -s14, s14')
    a('v_cvt_i32_f32 v11, v11')
    a('v_cvt_i32_f32 v9, v9')
    a('v_sub_u32 v10, v11, v9')
    a('v_subrev_u32 v10, 16, v10')
    for j in range(16):
        a('v_readlane_b32 s%d, v11, %d' % (sS + j, ((j >> 2) << 3) | (j & 3)))
    srd(a, S_T0, wsp, 8192, str(PREP0))
    a('v_xor_b32 v4, v7, v8')
    a('v_subrev_u32 v4, 1, v4')
    a('v_subrev_u32 v6, 1, v7')
    a('v_sub_u32 v7, 0, v7')
    for k in range(24):
        a('v_ldexp_f32 v%d, v%d, v9' % (76 + k, 76 + k))
        if k % 3 == 1:
            a('v_add_f32 v%d, v%d, v%d' % (76 + k, 76 + k, 76 + k))
    if P['l2x']:
        for k in range(16):
            a('v_ldexp_f32 v%d, v%d, v10' % (100 + k, 100 + k))
        for jj in range(8):
            a('v_cvt_pk_bf16_f32 v%d, v%d, v%d' % (116 + jj, 100 + 2 * jj, 101 + 2 * jj))
    else:
        for k in range(8):
            a('v_ldexp_f32 v%d, v%d, v10' % (116 + k, 116 + k))
    for l in range(3):
        for jj in range(4):
            a('v_cvt_pk_f16_f32 v%d, v%d, v%d' % (100 + 4 * l + jj, 76 + 6 * jj + l, 76 + 6 * jj + 3 + l))
            a('v_and_b32 v%d, v%d, v4' % (100 + 4 * l + jj, 100 + 4 * l + jj))
        a('buffer_store_dwordx4 %s, v%d, %s, 0 offen offset:%d' % (vr(100 + 4 * l, 4), O, sr(S_T0, 4), 1024 * l))
    if P['l2x']:
        for jj in range(4):
            a('v_and_b32 v%d, v%d, v4' % (112 + jj, 116 + jj))
            a('v_and_b32 v%d, v%d, v4' % (120 + jj, 120 + jj))
    else:
        for jj in range(4):
            a('v_cvt_pk_bf16_f32 v%d, v%d, v%d' % (116 + jj, 116 + 2 * jj, 117 + 2 * jj))
        for jj in range(4):
            a('v_and_b32 v%d, v%d, v6' % (112 + jj, 116 + jj))
            a('v_and_b32 v%d, v%d, v7' % (120 + jj, 116 + jj))
    a('v_add_u32 v11, 4096, v%d' % O)
    a('buffer_store_dwordx4 v[112:115], v%d, %s, 0 offen offset:3072' % (O, sr(S_T0, 4)))
    a('buffer_store_dwordx4 v[120:123], v11, %s, 0 offen' % sr(S_T0, 4))
    a('v_bfe_u32 v5, v%d, 2, 1' % L)
    a('v_bfe_u32 v6, v%d, 3, 1' % L)
    a('v_lshl_or_b32 v5, v5, 1, v6')
    a('v_and_b32 v6, 3, v%d' % L)
    a('v_lshl_or_b32 v5, v5, 2, v6')
    a('v_lshlrev_b32 v5, 1, v5')
    a('v_bfe_u32 v7, v%d, 4, 1' % L)
    a('v_xor_b32 v4, v7, v8')
    a('v_subrev_u32 v4, 1, v4')
    for k in range(16):
        a('ds_read_u16 v%d, v5 offset:%d' % (76 + k, PB + 2048 + 32 * k))
        if k % 8 == 7:
            a('s_waitcnt lgkmcnt(0)')
    for k in range(8):
        a('ds_read_u16 v%d, v5 offset:%d' % (92 + k, PB + 3072 + 32 * k))
    a('s_waitcnt lgkmcnt(0)')
    for k in range(24):
        a('v_lshlrev_b32 v%d, 16, v%d' % (76 + k, 76 + k))
    a('v_mul_f32 v9, v92, v92')
    for k in range(1, 8):
        a('v_fmac_f32 v9, v%d, v%d' % (92 + k, 92 + k))
    a('v_log_f32 v9, v9')
    a('v_mul_f32 v9, 0.5, v9')
    a('v_floor_f32 v9, v9')
    a('v_med3_f32 v9, v9, -s14, s14')
    a('v_cvt_i32_f32 v9, v9')
    a('v_sub_u32 v10, 0, v9')
    for k in range(8):
        a('v_ldexp_f32 v%d, v%d, v10' % (92 + k, 92 + k))
    for k in range(16):
        a('v_subrev_u32 v6, s%d, v9' % (sS + k))
        a('v_ldexp_f32 v%d, v%d, v6' % (76 + k, 76 + k))
    for jj in range(8):
        a('v_cvt_pk_bf16_f32 v%d, v%d, v%d' % (76 + jj, 76 + 2 * jj, 77 + 2 * jj))
        a('v_and_b32 v%d, v%d, v4' % (76 + jj, 76 + jj))
    for jj in range(4):
        a('v_cvt_pk_f16_f32 v%d, v%d, v%d' % (84 + jj, 92 + 2 * jj, 93 + 2 * jj))
        a('v_and_b32 v%d, v%d, v4' % (84 + jj, 84 + jj))
    for i in range(3):
        a('buffer_store_dwordx4 %s, v11, %s, 0 offen offset:%d' % (vr(76 + 4 * i, 4), sr(S_T0, 4), 1024 * (i + 1)))
    a('s_nop 1')


from gen_k2p import k2
from gen_p8 import prod


DOC = '''
;
;
'''


def main():
    a = Asm()
    body = Asm()
    out = []
    kernels = []
    if P['fuse']:
        b = Asm()
        h = prod(b, P, globals())
        lds = max(h.lds, k2(b, P, globals(), h))
        kernels.append((NAME + '_kernel', b, lds, 512))
    else:
        b = Asm()
        if P['p8']:
            kernels.append(('bin_kernel', b, prod(b, P, globals()).lds, 512))
        else:
            kernels.append(('bin_kernel', b, k1(b), 1024))
        if not P['only1']:
            b = Asm()
            kernels.append(('acc_kernel', b, k2(b, P, globals(), None), 512))
    hdr = open('cdna_kernels/%s.s.ref' % NAME).read().split('\n')
    hdr = [l for l in hdr if l.startswith(';') and '@launch' not in l and 'Override launch' not in l and 'grid=ceil' not in l]
    out += hdr
    for nm, b, lds, nt in kernels:
        out.append('; @launch kernel=%s grid=(256,1,1) block=(%d,1,1) lds=%d' % (nm, nt, lds))
        if P['fuse'] == 2:
            out[-1] = '; @launch grid=(256,1,1) block=(512,1,1) lds=%d' % lds
    if P['k2x']:
        out.append(out[-1])
    out += DOC.strip('\n').split('\n')
    out.append('.amdgcn_target "amdgcn-amd-amdhsa--gfx950"')
    out.append('.text')
    for nm, b, lds, nt in kernels:
        out.append('.globl %s\n.p2align 8\n.type %s,@function\n%s:' % (nm, nm, nm))
        out.append(b.text())
    out.append('.section .rodata,"a"')
    for nm, b, lds, nt in kernels:
        out.append('''.p2align 6
.amdhsa_kernel %s
  .amdhsa_next_free_vgpr %d
  .amdhsa_next_free_sgpr 102
  .amdhsa_accum_offset %d
  .amdhsa_group_segment_fixed_size 0
  .amdhsa_kernarg_size 112
  .amdhsa_user_sgpr_count 2
  .amdhsa_user_sgpr_kernarg_segment_ptr 1
  .amdhsa_system_sgpr_workgroup_id_x 1
.end_amdhsa_kernel''' % (nm, 131072 // nt, 131072 // nt))
    open(sys.argv[1], 'w').write('\n'.join(out) + '\n')


main()
```

```python
import math


def k2(a, P, G, hk):
    vr, sr, srd, f2u = G['vr'], G['sr'], G['srd'], G['f2u']
    E, BINE, TS, TSP = G['E'], G['BINE'], G['TS'], G['TSP']
    REC0, DESC0, PREP0, WS_BYTES = G['REC0'], G['DESC0'], G['PREP0'], G['WS_BYTES']
    ROWS = BINE + 3
    PL = ROWS * 4
    RBF0 = 5 * PL
    HI0 = RBF0 + ROWS * 16
    SCR = HI0 + 4 * PL
    LDS = SCR + 128
    KC0, TB0, BB0, SC0, RING0 = 0, 12800, 21504, 25600, 25856
    NSL = 15
    NBLK = 51
    NQ = 7
    S_M, S_MR, S_WS, S_DIST, S_MO, S_OUT, S_DBG = 16, 20, 24, 28, 32, 36, 92
    sCEN = 40
    sW, sBIN, sT, sT2 = 48, 49, 50, 51
    sM0, sM1, sIDM, sHI, sA16 = 52, 53, 54, 55, 56
    sPASS, sMODE, sIX = 57, 58, 59
    sV6 = 60
    sMK = 62
    sFL, sSK = 64, 78
    sPc = 64
    sR, sTB, sRB, sRE, sPS = 69, 70, 71, 72, 73
    sLO = 74
    sMA = 84
    sLM = 84
    sEND = 88
    sEW = 80
    sF, sE, sDL, sI, sP, sNT, sSUB = 4, 5, 6, 7, 8, 9, 10
    LANE, S0 = 1, 2
    AG, AM, GATE, MD = 164, 176, 184, 200
    GB = (156, 216)
    SBF, RBF = 224, 232
    IA, IB = 236, 238
    A16, ANG = (240, 241), (242, 243)
    A4, A4B, CV, AC = 244, 245, 246, 155
    RTN = (247, 248)
    STK, CK, TM = 249, 250, 251
    RAW = 156
    RT, RA = 216, 232
    NA = P['na']
    TAR = (240, 241, 242, 243, 236, 238)
    TF = (244, 245)
    TH, VM, ONE, EIGHT, L12, RBA, WD, WA = 246, 248, 249, 250, 251, 252, 253, 254
    lab = [0]
    HO = 'sc1' if hk else P['ldrec']
    VZ, VP, VT = 6, 7, 8
    NS0 = P['ns0']

    def spin(load, notready, m):
        n = lab[0]
        lab[0] += 1
        a('s_mov_b32 s%d, 0x40000' % sT2)
        a.wait_vm(m)
        a('Lpl%d:' % n)
        notready()
        a('s_cbranch_execz Lpd%d' % n)
        a('s_sleep %d' % P['slp'])
        a.nocount = True
        load()
        a.nocount = False
        a('s_sub_u32 s%d, s%d, 1' % (sT2, sT2))
        a('s_waitcnt vmcnt(0)')
        a('s_cbranch_scc0 Lpl%d' % n)
        a('Lpd%d:' % n)
        a('s_mov_b64 exec, -1')
        a('s_nop 3')

    def cleared_load():
        a('global_load_dword v%d, v%d, s[12:13] sc1' % (VP, VZ))
        return a.mark()

    def done_load():
        a('global_load_dword v%d, v%d, s[14:15] sc1' % (VP, VZ))
        return a.mark()

    def done_addr():
        a('s_and_b32 s%d, s2, 7' % sT)
        a('s_lshl3_add_u32 s%d, s%d, s%d' % (sT, sT, sW))
        a('s_lshl_b32 s%d, s%d, 7' % (sT, sT))
        a('s_add_u32 s%d, s%d, %d' % (sT, sT, G['FLG0']))
        a('v_and_b32 v%d, 31, v0' % VZ)
        a('v_lshl_add_u32 v%d, v%d, 2, s%d' % (VZ, VZ, sT))

    def done_wait(m):
        spin(done_load, lambda: a('v_cmpx_ne_u32 vcc, 1, v%d' % VP), m)

    def stamp(i, late=False):
        G['stamp'](a, i, S_DBG, 96, *((253, 254) if late else (235, 234)))

    CNT0 = 2 * PL

    def plane(j):
        return ((A4, 0), (A4, 3 * PL), (A4B, 0), (A4B, 2 * PL))[j]

    def desc_load(dst, tb):
        a('v_lshlrev_b32 v%d, 12, v0' % tb)
        a('s_lshl_b32 s%d, s%d, 4' % (sT, sBIN))
        a('s_add_u32 s%d, s%d, %d' % (sT, sT, DESC0))
        a('buffer_load_dwordx4 %s, v%d, %s, s%d offen %s' % (vr(dst, 4), tb, sr(S_WS, 4), sT, HO))
        return a.mark()

    def scan4(v):
        for c, rm in (('row_shr:1', 15), ('row_shr:2', 15), ('row_shr:4', 15), ('row_shr:8', 15), ('row_bcast:15', 10), ('row_bcast:31', 12)):
            for k in range(4):
                a('v_add_u32_dpp v%d, v%d, v%d %s row_mask:0x%x bank_mask:0xf' % (v + k, v + k, v + k, c, rm))

    def img_load(first, n, dst, t):
        a('v_lshlrev_b32 v%d, 4, v%d' % (t, LANE))
        for i in range(n):
            a('s_mov_b32 s%d, %d' % (sT, PREP0 + 1024 * (first + i)))
            a('buffer_load_dwordx4 %s, v%d, %s, s%d offen %s' % (vr(dst + 4 * i, 4), t, sr(S_WS, 4), sT, HO))

    def gathers(q, part=3):
        if part & 1:
            a('buffer_load_dwordx4 %s, %s, %s, 0 idxen offen' % (vr(GB[q], 4), vr(IA, 2), sr(S_M, 4)))
        if part & 2:
            a('buffer_load_dwordx4 %s, %s, %s, 0 idxen offen' % (vr(GB[q] + 4, 4), vr(IB, 2), sr(S_M, 4)))

    def cosines(p):
        c1, c3, c2 = TM, TM + 1, TM + 2
        a('v_mul_f32 v%d, 0x40400000, v%d' % (c3, ANG[p]))
        a('v_mul_f32 v%d, 0.15915494, v%d' % (c1, ANG[p]))
        a('v_cvt_pk_bf16_f32 v%d, 0, v%d' % (c3, c3))
        a('v_fract_f32 v%d, v%d' % (c1, c1))
        a('v_mul_f32 v%d, 0.15915494, v%d' % (c3, c3))
        a('v_cos_f32 v%d, v%d' % (c1, c1))
        a('v_fract_f32 v%d, v%d' % (c3, c3))
        a('v_cos_f32 v%d, v%d' % (c3, c3))
        a('v_fma_mixlo_f16 v%d, v%d, v%d, -0.5' % (c2, c1, c1))
        a('v_cvt_pk_f16_f32 v%d, v%d, v%d' % (c1, c1, c3))

    def sbf(l):
        src, sel = ((TM, 0), (TM + 2, 0), (TM, 1))[l]
        for j in range(4):
            a('v_pk_mul_f16 v%d, v%d, v%d op_sel:[0,%d] op_sel_hi:[1,%d]' % (SBF + 4 * (l & 1) + j, RBF + j, src, sel, sel))

    def gmf(l):
        a('v_mfma_f32_32x32x16_f16 %s, %s, %s, %s' % (vr(GATE, 16), vr(AG + 4 * l, 4), vr(SBF + 4 * (l & 1), 4), vr(GATE, 16) if l else '0'))

    def mdown(p):
        a('v_mfma_f32_32x32x16_bf16 %s, %s, %s, 0' % (vr(MD, 16), vr(AM, 4), vr(GB[p], 4)))
        a('v_mfma_f32_32x32x16_bf16 %s, %s, %s, %s' % (vr(MD, 16), vr(AM + 4, 4), vr(GB[p] + 4, 4), vr(MD, 16)))

    def addrs(p):
        a('v_lshrrev_b32 v%d, 1, v%d' % (A4, A16[p]))
        a('v_lshrrev_b32 v%d, 2, v%d' % (AC, A16[p]))
        a('v_add_u32 v%d, %d, v%d' % (A4B, HI0, A4))

    def decode_rel(p, base, part=3):
        if P['lf']:
            base = 0
        a('s_set_gpr_idx_on s%d, gpr_idx(SRC1)' % (sDX if P['lf'] else sIX))
        a('s_nop 0')
        if part & 1:
            a('v_and_b32 v%d, s%d, v%d' % (IA, sIDM, S0 + base + p))
            a('v_and_b32 v%d, s%d, v%d' % (IB, sIDM, S0 + base + p))
        if part & 2:
            a('v_and_b32_sdwa v%d, s%d, v%d dst_sel:DWORD dst_unused:UNUSED_PAD src0_sel:DWORD src1_sel:WORD_1' % (A16[p], sA16, S0 + base + p))
            if p:
                a('v_and_b32 v%d, s%d, v%d' % (ANG[p], sHI, S0 + base + 2))
            else:
                a('v_lshlrev_b32 v%d, 16, v%d' % (ANG[p], S0 + base + 2))
        a('s_set_gpr_idx_off')
        if part & 1:
            a('v_permlane32_swap_b32 v%d, v%d' % (IA, IB))

    sDX, sI1, sOF, sLB = 76, 77, 78, 79

    def next_block():
        if P['lg']:
            Gn = P['lg']
            a('s_cmp_eq_u32 s%d, 0' % sOF)
            a('s_cselect_b32 s%d, %d, -1' % (sDX, Gn - 1))
            a('s_sub_u32 s%d, s%d, s%d' % (sT, sI1, sOF))
            a('s_cmp_lt_u32 s%d, s%d' % (sT, sLB))
            a('s_cselect_b32 s%d, s%d, 0' % (sDX, sDX))
            a('s_add_u32 s%d, s%d, s%d' % (sDX, sDX, sI1))
            a('s_mul_i32 s%d, s%d, 3' % (sDX, sDX))
            a('s_add_u32 s%d, s%d, 1' % (sI1, sI1))
            a('s_add_u32 s%d, s%d, 1' % (sOF, sOF))
            a('s_cmp_eq_u32 s%d, %d' % (sOF, Gn))
            a('s_cselect_b32 s%d, 0, s%d' % (sOF, sOF))
            return
        a('s_add_u32 s%d, s%d, s%d' % (sDX, sI1, sOF))
        a('s_xor_b32 s%d, s%d, s%d' % (sDX, sDX, 75))
        a('s_sub_u32 s%d, s%d, s%d' % (sDX, sDX, sOF))
        a('s_max_u32 s%d, s%d, s%d' % (sT, sDX, sI1))
        a('s_cmp_ge_u32 s%d, s%d' % (sT, sLB))
        a('s_cselect_b32 s%d, s%d, s%d' % (sDX, sI1, sDX))
        a('s_mul_i32 s%d, s%d, 3' % (sDX, sDX))
        a('s_add_u32 s%d, s%d, 1' % (sI1, sI1))

    def site(k):
        mask = sum(1 << w for w in range(8) if P['bmap'] and int(P['bmap'][w]) == k)
        if not mask:
            return
        n = lab[0]
        lab[0] += 1
        a('s_bitcmp0_b32 %d, s%d' % (mask, sW))
        a('s_cbranch_scc1 Lhb%d' % n)
        a('s_barrier')
        a.hist[-1].states = 0
        a('Lhb%d:' % n)

    def halfbar(hi):
        if P['bmap']:
            return
        n = lab[0]
        lab[0] += 1
        a('s_bitcmp%d_b32 s%d, %d' % (0 if hi else 1, sW, P['stb_']))
        a('s_cbranch_scc1 Lhb%d' % n)
        a('s_barrier')
        a.hist[-1].states = 0
        a('Lhb%d:' % n)

    def step(p):
        q = 1 - p
        ab = P['abl']
        vq = (lambda t: None) if ab & 4 else a
        vb = (lambda t: None) if ab & 68 else a
        va = (lambda t: None) if ab & 1 else a
        if P['early']:
            decode_rel(p, 3, 1)
        a('s_waitcnt vmcnt(2)')
        if not ab & 16:
            mdown(p)
        if P['early']:
            gathers(p)
        if not ab & 32:
            cosines(p)
        a('s_waitcnt lgkmcnt(%d)' % (0 if ab & 1 else 5))
        if not ab & 32:
            sbf(0)
        addrs(p)
        if not ab & 8:
            gmf(0)
        if not ab & 32:
            sbf(1)
        a('v_or_b32 v%d, v%d, v%d' % (STK, STK, RTN[p]))
        a('s_cmp_eq_u32 s%d, s%d' % (sIX, sEND))
        if not ab & 8:
            gmf(1)
        if not ab & 32:
            sbf(2)
        a('ds_read_b128 %s, v%d offset:%d' % (vr(RBF, 4), A16[q], RBF0))
        a('s_cselect_b64 %s, %s, -1' % (sr(sMK, 2), sr(sLM + 2 * p, 2)))
        if not ab & 8:
            gmf(2)
        if P['early']:
            decode_rel(p, 3, 2)
        else:
            decode_rel(p, 3)
            gathers(p)
        if P['stag'] and (p == 1 or P['stag'] == 2):
            halfbar(1)
        a('s_mov_b64 exec, %s' % sr(sMK, 2))
        pk = lambda j: MD + 4 * (j >> 1) + (j & 1)
        for j in range(8):
            vq('v_fma_f32 v%d, v%d, v%d, s%d' % (MD + 2 * j, MD + 2 * j, GATE + 2 * j, sM0))
            vq('v_fma_f32 v%d, v%d, v%d, s%d' % (MD + 2 * j + 1, MD + 2 * j + 1, GATE + 2 * j + 1, sM0))
            if j:
                jj = j - 1
                vb('v_sad_u16 v%d, v%d, s%d, v%d' % (TM + (jj >> 1), pk(jj), sM1, TM + (jj >> 1) if jj & 1 else CK))
            vq('v_cvt_pknorm_u16_f32 v%d, v%d, v%d' % (pk(j), MD + 2 * j, MD + 2 * j + 1))
            if j & 1:
                b, o = plane(j >> 1)
                va('ds_add_u64 v%d, %s offset:%d' % (b, vr(pk(j - 1), 2), o))
        vb('v_max3_u32 v%d, v%d, v%d, v%d' % (CV, TM, TM + 1, TM + 2))
        vb('v_sad_u16 v%d, v%d, s%d, v%d' % (TM + 3, pk(7), sM1, TM + 3))
        vb('v_max_u32 v%d, v%d, v%d' % (CV, CV, TM + 3))
        va('ds_add_rtn_u32 v%d, v%d, v%d offset:%d' % (RTN[p], AC, CV, CNT0))
        a('s_mov_b64 exec, -1')

    CA, CB = ANG
    sCX = 74

    def cos2():
        c1 = TM
        return ['v_mul_f32 v%d, 0x40400000, v%d' % (CA, c1),
                'v_mul_f32 v%d, 0.15915494, v%d' % (c1, c1),
                'v_cvt_pk_bf16_f32 v%d, 0, v%d' % (CA, CA),
                'v_fract_f32 v%d, v%d' % (c1, c1),
                'v_mul_f32 v%d, 0.15915494, v%d' % (CA, CA),
                'v_cos_f32 v%d, v%d' % (c1, c1),
                'v_fract_f32 v%d, v%d' % (CA, CA),
                'v_cos_f32 v%d, v%d' % (CA, CA),
                'v_fma_mixlo_f16 v%d, v%d, v%d, -0.5' % (CB, c1, c1),
                'v_cvt_pk_f16_f32 v%d, v%d, v%d' % (CA, c1, CA)]

    def sbf2(l):
        src, sel = ((CA, 0), (CB, 0), (CA, 1))[l]
        for j in range(4):
            a('v_pk_mul_f16 v%d, v%d, v%d op_sel:[0,%d] op_sel_hi:[1,%d]' % (SBF + 4 * (l & 1) + j, RBF + j, src, sel, sel))

    def step2(p):
        q = 1 - p
        cs = cos2()
        a('s_waitcnt lgkmcnt(5)')
        sbf2(0)
        addrs(p)
        site(5 * p)
        gmf(0)
        sbf2(1)
        a('v_or_b32 v%d, v%d, v%d' % (STK, STK, RTN[p]))
        a('s_cmp_eq_u32 s%d, s%d' % (sIX, sEND))
        a('s_cselect_b64 %s, %s, -1' % (sr(sMK, 2), sr(sLM + 2 * p, 2)))
        if p == 0:
            a('s_cselect_b32 s%d, %d, s%d' % (sRE, P['idm'] if P['nog'] else 0, sIDM))
        gmf(1)
        sbf2(2)
        a('ds_read_b128 %s, v%d offset:%d' % (vr(RBF, 4), A16[q], RBF0))
        if P['bpos'] == 1 and p == 1:
            halfbar(1)
        site(5 * p + 1)
        gmf(2)
        a('s_set_gpr_idx_on s%d, gpr_idx(SRC1)' % sDX)
        a('s_nop 0')
        a('v_and_b32 v%d, s%d, v%d' % (IA, sRE, S0 + p))
        a('v_and_b32 v%d, s%d, v%d' % (IB, sRE, S0 + p))
        a('v_and_b32_sdwa v%d, s%d, v%d dst_sel:DWORD dst_unused:UNUSED_PAD src0_sel:DWORD src1_sel:WORD_1' % (A16[p], sA16, S0 + p))
        if p:
            a('v_lshlrev_b32 v%d, 16, v%d' % (TM, S0 + 2))
        else:
            a('s_set_gpr_idx_idx s%d' % sCX)
            a('s_nop 0')
            a('v_and_b32 v%d, s%d, v%d' % (TM, sHI, S0 + 2))
        a('s_set_gpr_idx_off')
        a('v_permlane32_swap_b32 v%d, v%d' % (IA, IB))
        n1, n2 = P['cs1'], P['cs2']
        for t in cs[:n1]:
            a(t)
        a('s_waitcnt vmcnt(2)')
        a('v_mfma_f32_32x32x16_bf16 %s, %s, %s, 0' % (vr(MD, 16), vr(AM, 4), vr(GB[p], 4)))
        for t in cs[n1:n2]:
            a(t)
        a('v_mfma_f32_32x32x16_bf16 %s, %s, %s, %s' % (vr(MD, 16), vr(AM + 4, 4), vr(GB[p] + 4, 4), vr(MD, 16)))
        gathers(p)
        for t in cs[n2:]:
            a(t)
        if p:
            a('s_mov_b32 s%d, s%d' % (sCX, sDX))
            next_block()
        if P['bpos'] == 0 and p == 1:
            halfbar(1)
        if P['bpos'] == 2 and p == 0:
            halfbar(1)
        site(5 * p + 2)
        a('s_mov_b64 exec, %s' % sr(sMK, 2))
        pk = lambda j: MD + 4 * (j >> 1) + (j & 1)

        def F(j):
            for e in range(2):
                a('v_fma_f32 v%d, v%d, v%d, s%d' % (MD + 2 * j + e, MD + 2 * j + e, GATE + 2 * j + e, sM0))

        def SAD(j):
            a('v_sad_u16 v%d, v%d, s%d, v%d' % (TM + (j >> 1), pk(j), sM1, TM + (j >> 1) if j & 1 else CK))
        F(0)
        for j in range(8):
            if j < 7:
                F(j + 1)
            else:
                a('v_max3_u32 v%d, v%d, v%d, v%d' % (CV, TM, TM + 1, TM + 2))
            a('v_cvt_pknorm_u16_f32 v%d, v%d, v%d' % (pk(j), MD + 2 * j, MD + 2 * j + 1))
            if j:
                SAD(j - 1)
            if j & 1:
                b, o = plane(j >> 1)
                a('ds_add_u64 v%d, %s offset:%d' % (b, vr(pk(j - 1), 2), o))
            if j == 3:
                site(5 * p + 3)
        SAD(7)
        a('v_max_u32 v%d, v%d, v%d' % (CV, CV, TM + 3))
        a('ds_add_rtn_u32 v%d, v%d, v%d offset:%d' % (RTN[p], AC, CV, CNT0))
        a('s_mov_b64 exec, -1')
        site(5 * p + 4)

    if not hk:
        a('s_cmp_ge_u32 s2, 256')
        a('s_cbranch_scc1 Lk2_end')
    a('s_load_dwordx2 s[4:5], s[0:1], 0')
    a('s_load_dwordx2 s[6:7], s[0:1], 24')
    a('s_load_dwordx2 s[8:9], s[0:1], 40')
    a('s_load_dwordx2 s[10:11], s[0:1], 88')
    if not hk:
        a('s_load_dwordx4 s[12:15], s[0:1], 96')
    if P['cpf'] & 2:
        G['code_prefetch'](a, 'b', 88, 4)
    a('v_lshrrev_b32 v3, 6, v0')
    a('v_and_b32 v%d, 63, v0' % LANE)
    a('v_readfirstlane_b32 s%d, v3' % sW)
    if hk:
        a('v_and_b32 v%d, 3, v0' % VZ)
        a('v_lshlrev_b32 v%d, 6, v%d' % (VZ, VZ))
        mP = cleared_load()
    a('s_and_b32 s%d, s2, 7' % sBIN)
    a('s_lshl_b32 s%d, s%d, 5' % (sBIN, sBIN))
    a('s_lshr_b32 s%d, s2, 3' % sT)
    a('s_add_u32 s%d, s%d, s%d' % (sBIN, sBIN, sT))
    a('s_mov_b32 s%d, 0x%x' % (sM0, f2u(32768.0 / 65535.0)))
    a('s_mov_b32 s%d, 0x80008000' % sM1)
    a('s_mov_b32 s%d, 0x%x' % (sIDM, P['idm']))
    a('s_mov_b32 s%d, 0xffff0000' % sHI)
    a('s_mov_b32 s%d, 0xfff0' % sA16)
    a('s_mov_b32 s%d, 0x07060302' % sPS)
    a('s_mov_b32 s%d, 0' % sMODE)
    a('s_mul_i32 s%d, s%d, %d' % (sPASS, sBIN, BINE))
    a('s_add_u32 s%d, s%d, %d' % (sIX, sPASS, BINE))
    a('s_andn2_b32 s%d, s%d, 3' % (sPASS, sPASS))
    a('s_andn2_b32 s%d, s%d, 3' % (sIX, sIX))
    a('s_sub_u32 s%d, s%d, s%d' % (sIX, sIX, sPASS))
    a('s_sub_u32 s%d, s%d, 3072' % (sT, sIX))
    a('v_cmp_gt_u32 %s, s%d, v0' % (sr(sV6, 2), sT))
    a('v_lshrrev_b32 v%d, 5, v%d' % (IA + 1, LANE))
    a('v_lshlrev_b32 v%d, 4, v%d' % (IA + 1, IA + 1))
    a('v_mov_b32 v%d, v%d' % (IB + 1, IA + 1))
    a('v_mov_b32 v%d, 0' % IA)
    a('v_mov_b32 v%d, 0' % IB)
    a('s_waitcnt lgkmcnt(0)')
    a('s_load_dwordx4 s[96:99], s[8:9], 0')
    srd(a, S_WS, 14, WS_BYTES)
    D, X, DL = RAW, RAW + 4, RAW + 8
    if hk:
        a('s_barrier')
        for j in range(NS0):
            mS = hk.store(j)
    else:
        mDs = desc_load(D, RAW + 12)
        if P['spf']:
            a('s_lshr_b32 s%d, s2, 3' % sT)
            a('s_and_b32 s%d, s%d, 1' % (sT2, sT))
            a('s_mul_i32 s%d, s%d, 160' % (sT2, sT2))
            a('s_add_u32 s%d, s%d, 4720' % (sT2, sT2))
            a('s_and_b32 s90, s2, 7')
            a('s_mul_i32 s%d, s%d, s90' % (sT2, sT2))
            a('s_lshl_b32 s90, s%d, 6' % sW)
            a('s_add_u32 s90, s90, s%d' % sT)
            a('s_mul_i32 s90, s90, %d' % TS)
            a('s_add_u32 s90, s90, s%d' % sT2)
            a('s_add_u32 s90, s90, %d' % REC0)
            a('s_cmp_lt_u32 s%d, %d' % (sT, P['spf']))
            a('s_cselect_b32 s90, s90, %d' % WS_BYTES)
            a('v_min_u32 v%d, 38, v%d' % (WD, LANE))
            a('v_lshlrev_b32 v%d, 7, v%d' % (WD, WD))
            if P['spf'] > 32:
                a('buffer_load_dword v%d, v%d, %s, s90 offen' % (TH, WD, sr(S_WS, 4)))
                a('s_add_u32 s90, s90, %d' % (32 * TS))
                a('s_cmp_lt_u32 s%d, %d' % (sT, P['spf'] - 32))
                a('s_cselect_b32 s90, s90, %d' % WS_BYTES)
            a('buffer_load_dword v%d, v%d, %s, s90 offen' % (WD, WD, sr(S_WS, 4)))
    a('s_lshl_b32 s%d, s%d, 1' % (sT, sPASS))
    a('s_lshl_b32 s%d, s%d, 5' % (sT2, sPASS))
    srd(a, S_DIST, 6, 0, 's%d' % sT)
    srd(a, S_M, 4, E, None, 32)
    srd(a, S_MR, 4, E * 32)
    srd(a, S_MO, 4, 0, 's%d' % sT2)
    srd(a, S_OUT, 10, 0, 's%d' % sT2)
    a('s_lshl_b32 s%d, s%d, 1' % (S_DIST + 2, sIX))
    a('s_lshl_b32 s%d, s%d, 5' % (S_MO + 2, sIX))
    a('s_lshl_b32 s%d, s%d, 5' % (S_OUT + 2, sIX))
    G['stamp_init'](a, S_DBG, 14, 1, sW)
    a('s_waitcnt lgkmcnt(0)')
    for r in range(4):
        a('s_lshl_b32 s%d, s%d, 16' % (sCEN + 2 * r, 96 + r))
        a('s_and_b32 s%d, s%d, 0xffff0000' % (sCEN + 2 * r + 1, 96 + r))
    a('s_mov_b32 s%d, 0x%x' % (sR, f2u(math.sqrt(10.0 * math.log2(math.e)))))
    a('v_mov_b32 v%d, s%d' % (RT + 8, sR))
    for r in range(8):
        a('v_mul_f32 v%d, s%d, v%d' % (RT + r, sCEN + r, RT + 8))
    for r in range(8):
        a('v_readfirstlane_b32 s%d, v%d' % (sCEN + r, RT + r))
    stamp(0)
    Z, T0 = 96, 104
    for i in range(4):
        a('v_mov_b32 v%d, 0' % (Z + i))
        a('v_bfrev_b32 v%d, 1' % (Z + 4 + i))
    a('v_lshlrev_b32 v%d, 4, v0' % T0)
    a('v_lshlrev_b32 v%d, 3, v0' % (T0 + 1))
    a('s_mul_i32 s%d, s%d, 1088' % (sTB, sW))
    a('v_lshl_add_u32 v%d, v%d, 4, s%d' % (T0 + 2, LANE, sTB))
    a('ds_write_b64 v%d, %s offset:%d' % (T0 + 1, vr(Z, 2), BB0))
    a('ds_write_b128 v%d, %s offset:%d' % (T0 + 2, vr(Z + 4, 4), TB0))
    a('ds_write_b128 v%d, %s offset:%d' % (T0 + 2, vr(Z + 4, 4), TB0 + 64))
    a('s_movk_i32 s%d, 400' % sT)
    a('v_cmpx_gt_u32 vcc, s%d, v0' % sT)
    a('ds_write_b128 v%d, %s offset:%d' % (T0, vr(Z, 4), KC0))
    a('ds_write_b128 v%d, %s offset:%d' % (T0, vr(Z, 4), KC0 + 6400))
    a('s_mov_b64 exec, -1')
    a('v_mov_b32 v%d, 1' % ONE)
    a('v_mov_b32 v%d, 4' % EIGHT)
    a('v_mul_u32_u24 v%d, 12, v%d' % (L12, LANE))
    a('s_lshl_b32 s%d, s%d, %d' % (sT, sW, 9 if P['smaj'] else 10))
    a('v_lshl_add_u32 v%d, v%d, 3, s%d' % (RBA, LANE, sT))
    a('s_lshl_b32 s%d, s2, 3' % sT)
    a('s_add_u32 s%d, s%d, s%d' % (sT, sT, sW))
    WP2 = [int(x) for x in P['wp2'].split('.')] if P['wp2'] else []
    WN = -(-98 // len(WP2)) if WP2 else 25
    a('s_mul_i32 s%d, s%d, %d' % (sT, sT, WN))
    a('v_min_u32 v%d, %d, v%d' % (WA, WN - 1, LANE))
    a('v_add_lshl_u32 v%d, v%d, s%d, 7' % (WA, WA, sT))
    for j in range(4):
        if P['wpos'][j] == '0':
            a('s_mov_b32 s%d, %d' % (sT, j * 51200 * 128))
            a('buffer_load_dword v%d, v%d, %s, s%d offen' % (WD, WA, sr(S_MR, 4), sT))
    a('s_movk_i32 s%d, %d' % (sT, REC0 // 12))
    a('v_mov_b32 v%d, %d' % (T0 + 3, TSP))
    a('v_mad_u32_u24 v%d, v0, v%d, s%d' % (T0 + 3, T0 + 3, sT))
    if hk:
        rest = []
        for j in range(NS0, 20):
            if 20 - j <= len(hk.rest_a):
                rest.append(hk.rest_a[j - 20])
            rest.append(lambda j=j: hk.store(j))
        for j in range(P['nsx']):
            rest.pop(0)()
        a.wait_vm(mS)
        a('s_barrier')
        hk.publish()
        stamp(11)
        late = rest[len(rest) - P['nlate']:] if P['nlate'] else []
        for f in rest[:len(rest) - len(late)]:
            mS = f()
        spin(cleared_load, lambda: a('v_cmpx_gt_u32 vcc, 64, v%d' % VP), mP)
        mDs = desc_load(D, RAW + 12)
        done_addr()
        stamp(12)
        if not late:
            a.wait_vm(mS)
            hk.arrive2(0, VT, hk.arrive1(0, VT))

        def nr():
            a('v_and_b32 v%d, v%d, v%d' % (VT, D, D + 1))
            a('v_and_b32 v%d, v%d, v%d' % (VT + 1, D + 2, D + 3))
            a('v_and_b32 v%d, v%d, v%d' % (VT, VT, VT + 1))
            a('v_cmpx_le_i32 vcc, 0, v%d' % VT)
        spin(lambda: desc_load(D, RAW + 12), nr, mDs)
        stamp(13)
        for k in range(4):
            a('v_and_b32 v%d, 0x7fffffff, v%d' % (D + k, D + k))
    else:
        a.wait_vm(mDs)
    NP = RAW + 28
    for k in range(4):
        a('v_add_u32 v%d, 0x10000, v%d' % (NP + k, D + k))
        a('v_bfe_u32 v%d, v%d, 16, 1' % (X + k, D + k))
        a('v_lshrrev_b32 v%d, 17, v%d' % (NP + k, NP + k))
        a('v_and_b32 v%d, 0xffff, v%d' % (D + k, D + k))
        a('v_lshl_or_b32 v%d, v%d, 20, v%d' % (X + k, X + k, NP + k))
    scan4(X)
    TT = RAW + 32
    a('s_movk_i32 s%d, %d' % (sT2, NSL * 64))
    for k in range(4):
        a('v_lshrrev_b32 v%d, 20, v%d' % (TT + k, X + k))
        a('v_and_b32 v%d, 0xfffff, v%d' % (X + k, X + k))
        a('v_add_u32 v%d, v%d, v%d' % (DL + k, D + k, T0 + 3))
        a('v_sub_u32 v%d, v%d, v%d' % (TT + k, X + k, TT + k))
        a('v_sub_u32 v%d, v%d, v%d' % (DL + k, DL + k, X + k))
        a('v_add_u32 v%d, v%d, v%d' % (TT + k, TT + k, X + k))
        a('v_mul_u32_u24 v%d, 12, v%d' % (DL + k, DL + k))
        a('v_subrev_u32 v%d, %d, v%d' % (T0, 64 * P['nfull'], X + k))
        a('v_cmpx_lt_u32 vcc, %d, v%d' % (64 * (NSL - P['nfull']), T0))
        a('v_mov_b32 v%d, 0x1000000' % (TT + k))
        a('s_mov_b64 exec, -1')
    if hk:
        a('v_cmp_lt_u32 vcc, %d, v%d' % (NS0 * 8192 // 12, D + P['nrun'] - 1))
        a('s_cmp_lg_u64 vcc, 0')
        a('s_cselect_b64 exec, -1, 0')
        a('v_mov_b32 v%d, 0x1000000' % TT)
        a('s_mov_b64 exec, -1')
    for k in range(4):
        a('v_readlane_b32 s%d, v%d, 63' % (sEW + k, X + k))
    a('s_lshl_b32 s%d, s%d, 4' % (sT, sW))
    a('v_mov_b32 v%d, s%d' % (T0, sT))
    a('s_mov_b32 exec_lo, 0')
    a('s_mov_b32 exec_hi, 0x80000000')
    a('ds_write_b128 v%d, %s offset:%d' % (T0, vr(TT, 4), SC0))
    a('s_mov_b64 exec, -1')
    a('s_lshl_b32 s%d, s%d, 9' % (sT, sW))
    for k in range(4):
        a('v_subrev_u32 v%d, 1, v%d' % (T0, X + k))
        a('v_lshlrev_b32 v%d, v%d, v%d' % (T0 + 1, T0, ONE))
        a('v_lshrrev_b32 v%d, 5, v%d' % (T0, T0))
        a('v_lshl_add_u32 v%d, v%d, 2, s%d' % (T0, T0, sT))
        a('v_cmpx_ge_u32 vcc, s%d, v%d' % (sT2, X + k))
        a('v_cmpx_ne_u32 vcc, 0, v%d' % (NP + k))
        a('v_mbcnt_lo_u32_b32 v%d, vcc_lo, 0' % (T0 + 2))
        a('v_mbcnt_hi_u32_b32 v%d, vcc_hi, v%d' % (T0 + 2, T0 + 2))
        a('v_lshl_add_u32 v%d, v%d, 2, s%d' % (T0 + 2, T0 + 2, sTB))
        a('ds_or_b32 v%d, v%d offset:%d' % (T0, T0 + 1, BB0 + 128 * k))
        a('ds_write_b32 v%d, v%d offset:%d' % (T0 + 2, DL + k, TB0 + 272 * k))
        a('s_mov_b64 exec, -1')
    a('v_and_b32 v%d, 7, v0' % T0)
    a('v_lshlrev_b32 v%d, 4, v%d' % (T0, T0))
    a('s_waitcnt lgkmcnt(0)')
    a('s_barrier')
    a('ds_read_b128 %s, v%d offset:%d' % (vr(TT, 4), T0, SC0))
    a('s_mov_b32 s%d, 0' % sPc)
    a('s_waitcnt lgkmcnt(0)')
    for c in ('row_shr:1', 'row_shr:2', 'row_shr:4'):
        for k in range(4):
            a('v_add_u32_dpp v%d, v%d, v%d %s row_mask:0xf bank_mask:0xf' % (TT + k, TT + k, TT + k, c))
    for k in range(4):
        a('v_readlane_b32 s%d, v%d, 7' % (sPc + 1 + k, TT + k))
    for k in range(1, 4):
        a('s_add_u32 s%d, s%d, s%d' % (sPc + 1 + k, sPc + 1 + k, sPc + k))
    a('s_cmp_gt_u32 s%d, %d' % (sPc + 4, NBLK * 1024 if P['force_slow'] != 4 else 0))
    a('s_cbranch_scc1 Lk2_fb')
    a('s_cmp_ge_u32 s%d, %d' % (sPc + 2, 29 * 1024))
    a('s_cbranch_scc1 Lk2_fb')
    stamp(1)

    BUF = (96, 156)
    LEAD, HP = P['lead'], P['hp']
    RO, ZR = (164 if P['rsp'] else 184), 212
    DI = (TF[0], TF[1], VM, L12, TH, TH + 1, EIGHT)
    CLS = ONE
    NFULL = P['nfull']
    mA, mC, mV, mM = {}, {}, {}, {}
    VMS = (255, VM)

    def raw(u):
        return BUF[(u // NSL) & 1] + 4 * (u % NSL)

    def Mrd(r):
        a('s_lshl_b32 s%d, s%d, 9' % (sT, sW))
        a('v_lshl_add_u32 v%d, v%d, 2, s%d' % (VMS[r >> 1], LANE, sT))
        a('ds_read_b32 v%d, v%d offset:%d' % (VMS[r >> 1], VMS[r >> 1], BB0 + 128 * r))
        mM[r] = a.mark()

    def keys(t0, t1, R):
        for e, t in enumerate((t0, t1)):
            a('v_lshrrev_b32 v%d, 6, v%d' % (t, R + 2 * e))
        for t in (t0, t1):
            if P['cls']:
                a('v_and_or_b32 v%d, v%d, s91, v%d' % (t, t, CLS))
            else:
                a('v_and_b32 v%d, 0x3ffc, v%d' % (t, t))

    def A(u):
        R = raw(u)
        t0, t1 = TAR[2 * (u % NA)], TAR[2 * (u % NA) + 1]
        keys(t0, t1, R)
        for t in (t0, t1):
            a('ds_read_b32 v%d, v%d offset:%d' % (t, t, KC0))
        mA[u] = a.mark()

    def B(u):
        R = raw(u)
        tail = u % NSL >= NFULL
        if tail:
            a('v_cmpx_gt_i32 vcc, 0, v%d' % (R + 1))
        a.wait_ds(mA[u])
        for e in range(2):
            t = TAR[2 * (u % NA) + e]
            a('v_add_u32 v%d, v%d, v%d' % (t, t, R + 2 * e + 1))
        for e in range(2):
            t = TAR[2 * (u % NA) + e]
            a('v_lshlrev_b32_sdwa v%d, 1, v%d dst_sel:DWORD dst_unused:UNUSED_PAD src0_sel:DWORD src1_sel:WORD_0' % (t, t))
            a('ds_write_b64 v%d, %s offset:%d' % (t, vr(R + 2 * e, 2), RING0))
        if tail:
            a('s_mov_b64 exec, -1')

    def C(u):
        if u >= 4 * NSL:
            return
        r, k = divmod(u, NSL)
        t = TF[u & 1]
        if u == 0:
            a.wait_ds(mM[2])
        if k == 0:
            a('s_mul_i32 s%d, s%d, 1088' % (sTB, sW))
        a('v_readlane_b32 s%d, v%d, %d' % (sLO, VMS[r >> 1], 32 * (r & 1) + 2 * k))
        a('v_readlane_b32 s%d, v%d, %d' % (sLO + 1, VMS[r >> 1], 32 * (r & 1) + 2 * k + 1))
        a('s_bcnt1_i32_b64 s%d, %s' % (sT, sr(sLO, 2)))
        a('v_mbcnt_lo_u32_b32 v%d, s%d, 0' % (t, sLO))
        a('v_mbcnt_hi_u32_b32 v%d, s%d, v%d' % (t, sLO + 1, t))
        a('v_lshl_add_u32 v%d, v%d, 2, s%d' % (t, t, sTB))
        a('s_lshl2_add_u32 s%d, s%d, s%d' % (sTB, sT, sTB))
        a('ds_read_b32 v%d, v%d offset:%d' % (t, t, TB0 + 272 * r))
        mC[u] = a.mark()

    def Dd(u):
        if u >= 4 * NSL:
            return
        t = TF[u & 1]
        a('s_movk_i32 s%d, %d' % (sT2, 768 * (u % NSL)))
        a.wait_ds(mC[u])
        a('v_add_u32 v%d, v%d, v%d' % (t, t, L12))
        if P['abl'] & 2048:
            a('v_and_b32 v%d, 0x3ffff, v%d' % (t, t))
        a('buffer_load_dwordx3 %s, v%d, %s, s%d offen %s' % (vr(raw(u), 3), t, sr(S_WS, 4), sT2, HO))
        mV[u] = a.mark()

    hpend = []
    hcnt = [0]

    def H2():
        while hpend:
            R, t0, t1, m = hpend.pop()
            a.wait_ds(m)
            a('v_lshl_or_b32 v%d, v%d, 16, v%d' % (R + 3, R + 1, t1))
            a('v_and_or_b32 v%d, v%d, s%d, v%d' % (R + 1, R + 1, sHI, t0))

    def H(u):
        R = raw(u)
        tail = u % NSL >= NFULL
        t0, t1 = ((TH, TH + 1), (236, 238))[hcnt[0] & 1]
        hcnt[0] += 1
        a.wait_vm(mV[u])
        keys(t0, t1, R)
        if tail:
            a('v_cmpx_gt_i32 vcc, 0, v%d' % (R + 1))
        for t in (t0, t1):
            a('ds_add_rtn_u32 v%d, v%d, v%d offset:%d' % (t, t, EIGHT, KC0))
        m = a.mark()
        if tail:
            a('s_mov_b64 exec, -1')
        H2()
        hpend.append((R, t0, t1, m))

    def keyscan(r):
        K = RT
        nds = a.nds
        a('s_cmp_lg_u32 s%d, %d' % (sW, P['scw']))
        a('s_cbranch_scc1 Lks%d' % r)
        if P['kl']:
            L_ = P['kl']
            a('s_bitcmp1_b32 s2, %d' % P['lfb'])
            a('s_cselect_b32 s%d, %d, %d' % (sT, *((L_, 0) if not (P['kalt'] and r & 1) else (0, L_))))
            a('v_add_u32 v%d, s%d, v%d' % (RA, sT, LANE))
            if L_ & (L_ - 1) == 0:
                a('v_xor_b32 v%d, %d, v%d' % (RA, L_, RA))
            else:
                a('v_mul_u32_u24 v%d, %d, v%d' % (RA + 1, -(-1024 // L_), RA))
                a('v_bfe_u32 v%d, v%d, 10, 1' % (RA + 1, RA + 1))
                a('v_mad_i32_i24 v%d, v%d, %d, v%d' % (RA, RA + 1, -2 * L_, RA))
                a('v_add_u32 v%d, %d, v%d' % (RA, L_, RA))
            a('v_subrev_u32 v%d, s%d, v%d' % (RA, sT, RA))
            a('v_cmpx_le_u32 vcc, 49, v%d' % RA)
            a('v_mov_b32 v%d, v%d' % (RA, LANE))
            a('s_mov_b64 exec, -1')
            a('v_lshlrev_b32 v%d, 6, v%d' % (RA, RA))
        else:
            a('v_lshlrev_b32 v%d, 6, v%d' % (RA, LANE))
        for j in range(4):
            a('ds_read_b128 %s, v%d offset:%d' % (vr(K + 4 * j, 4), RA, KC0 + 3136 * r + 16 * j))
        a('s_waitcnt lgkmcnt(0)')
        for j in range(1, 16):
            a('v_add_u32 v%d, v%d, v%d' % (K + j, K + j, K + j - 1))
        a('v_mov_b32 v%d, v%d' % (RA + 1, K + 15))
        G['scan64'](a, RA + 1)
        a('v_sub_u32 v%d, v%d, v%d' % (RA + 1, RA + 1, K + 15))
        a('v_lshl_add_u32 v%d, s%d, 2, v%d' % (RA + 1, sPc + r, RA + 1))
        a('v_cmpx_gt_u32 vcc, 49, v%d' % LANE)
        for j in range(15, -1, -1):
            if j:
                a('v_add_u32 v%d, v%d, v%d' % (K + j, K + j - 1, RA + 1))
            else:
                a('v_mov_b32 v%d, v%d' % (K, RA + 1))
            if j % 4 == 0:
                a('ds_write_b128 v%d, %s offset:%d' % (RA, vr(K + j, 4), KC0 + 3136 * r + 4 * j))
        a('s_lshl_b32 s%d, s%d, 2' % (sT, sPc + r + 1))
        a('v_mov_b32 v%d, s%d' % (RA + 1, sT))
        a('v_lshlrev_b32 v%d, 2, v%d' % (RA, LANE))
        a('s_mov_b64 exec, 0xffff')
        a('ds_write_b32 v%d, v%d offset:%d' % (RA, RA + 1, KC0 + 4 * (3136 + 16 * r)))
        a('s_mov_b64 exec, -1')
        a('Lks%d:' % r)
        a('s_nop 1')
        a.nds = nds

    def rb_reads(RT=RT, j0=0):
        mk = {}
        for j in range(4):
            a('s_add_u32 s%d, s%d, %d' % (sT, sRB, j0 + j))
            a('s_and_b32 s%d, s%d, 15' % (sT, sT))
            a('s_lshl_b32 s%d, s%d, 13' % (sT, sT))
            a('v_add_u32 v%d, s%d, v%d' % (RA + j, sT, RBA))
            a('ds_read_b64 %s, v%d offset:%d' % (vr(RT + 4 * j, 2), RA + j, RING0))
            a('ds_read_b64 %s, v%d offset:%d' % (vr(RT + 4 * j + 2, 2), RA + j, RING0 + (4096 if P['smaj'] else 512)))
            mk[j] = a.mark()
        return mk

    def rb_moves(mk, RT=RT):
        a('s_mul_i32 s%d, s%d, 3' % (sIX, sRB))
        a('s_set_gpr_idx_on s%d, gpr_idx(DST)' % sIX)
        for j in range(4):
            a.wait_ds(mk[j])
            a('v_mov_b32 v%d, v%d' % (S0 + 3 * j, RT + 4 * j))
            a('v_mov_b32 v%d, v%d' % (S0 + 3 * j + 1, RT + 4 * j + 2))
            a('v_perm_b32 v%d, v%d, v%d, s%d' % (S0 + 3 * j + 2, RT + 4 * j + 3, RT + 4 * j + 1, sPS))
        a('s_set_gpr_idx_off')
        a('s_add_u32 s%d, s%d, 4' % (sRB, sRB))

    def readback(tag):
        nds = a.nds
        if tag == 'L' and P['prime']:
            a('s_sub_u32 s%d, s%d, 4' % (sT2, sRE))
            a('LrlL:')
            a('s_min_u32 s%d, s%d, s%d' % (sRB, sRB, sT2))
            rb_moves(rb_reads(192), 192)
            a('s_cmp_lt_u32 s%d, s%d' % (sRB, sRE))
            a('s_cbranch_scc1 LrlL')
            a.nds = nds
            return
        a('s_cmp_ge_u32 s%d, s%d' % (sRB, sRE))
        a('s_cbranch_scc1 Lrd%s' % tag)
        a('Lrl%s:' % tag)
        rb_moves(rb_reads())
        a('s_cmp_lt_u32 s%d, s%d' % (sRB, sRE))
        a('s_cbranch_scc1 Lrl%s' % tag)
        a('Lrd%s:' % tag)
        a('s_mov_b32 s%d, s%d' % (sRB, sRE))
        a.nds = nds

    def warm(j):
        if P['warm']:
            a('s_mov_b32 s%d, %d' % (sT, j * 2048 * WN * 128))
            a('buffer_load_dword v%d, v%d, %s, s%d offen' % (WD, WA, sr(S_MR, 4), sT))

    def l2pf(j):
        if j * 16384 >= P['pfn']:
            return
        if j == 0:
            a('s_lshr_b32 s%d, s2, 3' % sT)
            a('s_lshl_b32 s%d, s%d, 9' % (sT, sT))
            a('v_add_lshl_u32 v%d, v0, s%d, 7' % (WA, sT))
            a('s_mov_b32 s%d, %d' % (S_MR + 2, P['pfn'] * 128))
        a('s_mov_b32 s%d, %d' % (sT, j * 16384 * 128))
        a('buffer_load_dword v%d, v%d, %s, s%d offen' % (WD, WA, sr(S_MR, 4), sT))

    def dist_loads():
        a('v_lshlrev_b32 v%d, 1, v0' % (RA + 2))
        for q in range(NQ):
            a('s_movk_i32 s%d, %d' % (sT, q * 1024))
            a('buffer_load_ushort v%d, v%d, %s, s%d offen' % (DI[q], RA + 2, sr(S_DIST, 4), sT))
        return a.mark()

    def rbf_batch(q, halves=(0, 1)):
        K = RT
        if 0 in halves:
            a('v_lshlrev_b32 v%d, 16, v%d' % (K + 8, DI[q]))
            a('v_mul_f32 v%d, s%d, v%d' % (K + 8, sR, K + 8))
        rs = [r for h in halves for r in range(4 * h, 4 * h + 4)]
        for r in rs:
            a('v_subrev_f32 v%d, s%d, v%d' % (K + r, sCEN + r, K + 8))
        for r in rs:
            a('v_mul_f32 v%d, v%d, v%d' % (K + r, K + r, K + r))
        for r in rs:
            a('v_exp_f32 v%d, -v%d' % (K + r, K + r))
        if 1 in halves:
            for r in range(4):
                a('v_cvt_pk_f16_f32 v%d, v%d, v%d' % (RO + 4 * q + r, K + 2 * r, K + 2 * r + 1))

    NP_ = P['npipe']

    def guarded(r, body):
        n = lab[0]
        lab[0] += 1
        nds, nvm = a.nds, a.nvm
        for k in range(NP_, NSL):
            a('s_cmp_le_u32 s%d, %d' % (sEW + r, 64 * k))
            a('s_cbranch_scc1 Lg%d' % n)
            body(NSL * r + k)
        a('Lg%d:' % n)
        a('s_nop 3')
        a.nds, a.nvm = nds, nvm

    def U(x):
        return NSL * (x // NP_) + x % NP_

    def Cx(x):
        C(U(x))

    def Dx(x):
        if x >= 4 * NP_:
            return
        if hk and x == NP_ * P['nrun'] - 3:
            mM['p'] = done_load()
        if hk and x == NP_ * P['nrun']:
            stamp(14)
            done_wait(mM['p'])
            stamp(15)
        Dd(U(x))

    def loadstep(x):
        def first():
            if (x + 1) % NP_:
                Cx(x + 1)

        def second():
            Dx(x)
            if (x + 1) % NP_ == 0 and x < 4 * NP_:
                r = x // NP_

                def body(u):
                    C(u)
                    Dd(u)
                guarded(r, body)
                for k in range(NP_, NSL):
                    mV[NSL * r + k] = a.mark()
                if r < 3:
                    Cx(x + 1)
        return first, second

    def Hx(x):
        H(U(x))
        if (x + 1) % NP_ == 0:
            H2()
            guarded(x // NP_, lambda u: (H(u), H2()))

    def lf_init(last):
        if P['lf']:
            a('s_mov_b32 s%d, 0' % sI1)
            a('s_mov_b32 s%d, s%d' % (sLB, last))
            a('s_bitcmp1_b32 s2, %d' % P['lfb'])
            if P['lfm'] == 0:
                a('s_cselect_b32 s%d, %d, 0' % (sOF, P['lf']))
                a('s_mov_b32 s75, %d' % (0 if P['kl'] else P['lf']))
            else:
                a('s_cselect_b32 s75, %d, 0' % P['lf'])
                a('s_mov_b32 s%d, 0' % sOF)
            if P['lg']:
                a('s_sub_u32 s%d, s%d, %d' % (sLB, last, P['lg'] - 1))
                a('s_lshr_b32 s%d, s2, 3' % sT)
                a('s_mul_i32 s%d, s%d, %d' % (sOF, sT, -(-256 // P['lg'])))
                a('s_lshr_b32 s%d, s%d, 8' % (sOF, sOF))
                a('s_mul_i32 s%d, s%d, %d' % (sOF, sOF, P['lg']))
                a('s_sub_u32 s%d, s%d, s%d' % (sOF, sT, sOF))
            next_block()

    if P['cls']:
        a('s_movk_i32 s91, 0x%x' % (0x3ffc & ~(4 * P['cls'] - 1)))
        a('v_and_b32 v%d, %d, v0' % (CLS, P['cls'] - 1))
        a('v_lshlrev_b32 v%d, 2, v%d' % (CLS, CLS))
    Mrd(0)
    Mrd(2)
    a('s_mov_b32 s%d, 0' % sRB)
    lag = P['dv']
    C(0)
    for i in range(NP_ + lag):
        f1, f2 = loadstep(i)
        f1()
        f2()
        if hk and P['lt0'] <= i < P['lt0'] + len(late):
            mS = late[i - P['lt0']]()
        if i >= lag:
            Hx(i - lag)
    if hk and late:
        a.wait_vm(mS)
        hk.arrive2(0, VT, hk.arrive1(0, VT))
    a('s_waitcnt lgkmcnt(0)')
    a('s_barrier')
    keyscan(0)
    lead0 = P['lead0']
    for i in range(NP_ + lag, NP_ + lead0):
        f1, f2 = loadstep(i)
        f1()
        f2()
    a('s_waitcnt lgkmcnt(0)')
    a('s_barrier')
    nxt = NP_ + max(lag, lead0)
    for r in range(4):
        stamp(2 + r)
        u0 = NSL * r
        hq = list(range(NP_ * (r + 1), NP_ * (r + 2))) if r < 3 else []
        if r:
            a('s_lshr_b32 s%d, s%d, 10' % (sRE, sPc + r))
            for g in range(3):
                mk = rb_reads()
                if hq:
                    Hx(hq.pop(0))
                rb_moves(mk)
            readback(str(r))
        while r and len(hq) > NP_ - HP:
            Hx(hq.pop(0))
        for k in range(NA - 1):
            A(u0 + k)
        if r == P['fr']:
            stamp(11)
        if r:
            a('s_barrier')
        if r == P['fr']:
            stamp(12)
        pend = None
        for i in range(NP_):
            f1, f2 = loadstep(nxt)
            f1()
            if i + NA - 1 < NP_:
                A(u0 + i + NA - 1)
            B(u0 + i)
            assert nxt < NP_ * (r + 2) or nxt - NP_ * (r + 2) <= i
            f2()
            nxt += 1
            if nxt < NP_ * (r + 1) + LEAD + i + 1:
                f1, f2 = loadstep(nxt)
                f1()
                f2()
                nxt += 1
            nh = 2 if (len(hq) > max(1, NP_ - HP - i) and U(hq[1]) in mV and hq[1] + 4 <= nxt) else 1
            for _ in range(nh):
                if hq:
                    Hx(hq.pop(0))
                    if not hq:
                        pend = (i + P['bhd'], a.mark())
                        if r == 2:
                            mD = dist_loads()
            if pend and pend[0] == i:
                a.wait_ds(pend[1])
                if r == P['fr']:
                    stamp(13)
                a('s_barrier')
                keyscan(r + 1)
                if r == P['fr']:
                    stamp(14)
            for j in range(4):
                if not P['wp2'] and P['wpos'][j] == 'abcdefghijklmnopqrstuvwxyzABCDEFGH'[(r - 2) * NP_ + i] and r >= 2:
                    warm(j)
            for j, x in enumerate(WP2):
                if x == r * NP_ + i:
                    warm(j)
            for j in range(2):
                if P['ppos'][j] == 'abcdefghijklmnopqrstuvwxyzABCDEFGH'[(r - 2) * NP_ + i] and r >= 2:
                    l2pf(j)
            if r == 3 and P['rsp']:
                if i == 1:
                    a.wait_vm(mD)
                if i >= 1:
                    rbf_batch((i - 1) >> 1, ((i - 1) & 1,))
                continue
            if r == 3 and i == 6:
                if not P['imgl']:
                    img_load(0, 5, AG, RA)
                a.wait_vm(mD)
            if r == 3 and 7 <= i < 7 + NQ - 1:
                rbf_batch(i - 7)

        def body(u):
            A(u)
            B(u)
        guarded(r, body)
        if r == 3:
            a('s_cmp_lg_u32 s%d, 0' % sW)
            a('s_cbranch_scc1 Lk2_r6')
            rbf_batch(NQ - 1)
            a('Lk2_r6:')
            if P['prime']:
                a('s_sub_u32 s%d, s%d, 1' % (sT2, sPc + 4))
                a('s_lshr_b32 s%d, s%d, 10' % (sT2, sT2))
                lf_init(sT2)
                decode_rel(0, 0)
                if P['prime'] < 3:
                    gathers(0)
                    decode_rel(1, 0)
                    gathers(1)
                elif P['prime'] == 3:
                    gathers(0, 1)
        a('s_waitcnt lgkmcnt(0)')
        if r == P['fr']:
            stamp(15)
        a('s_barrier')
    stamp(6)
    if P['prime'] == 4:
        gathers(0, 1)
    a('s_add_u32 s%d, s%d, 1023' % (sRE, sPc + 4))
    a('s_lshr_b32 s%d, s%d, 10' % (sRE, sRE))
    if P['fpipe']:
        RT2 = 164
        a('s_cmp_gt_u32 s%d, 41' % sRB)
        a('s_cbranch_scc1 Lk2_f0')
        m0 = rb_reads(RT)
        m1 = rb_reads(RT2, 4)
        rb_moves(m0, RT)
        m0 = rb_reads(RT, 4)
        rb_moves(m1, RT2)
        rb_moves(m0, RT)
        a('Lk2_f0:')
    readback('L')
    a('s_max_u32 s%d, s%d, 1' % (sRB, sRB))
    a('s_sub_u32 s%d, s%d, 1' % (sRB, sRB))
    a('s_mul_i32 s%d, s%d, 3' % (sEND, sRB))
    a('s_lshl_b32 s%d, s%d, 10' % (sT, sRB))
    a('s_sub_u32 s%d, s%d, s%d' % (sT, sPc + 4, sT))
    a('v_lshrrev_b32 v%d, 3, v%d' % (TM, RBA))
    a('v_add_u32 v%d, %d, v%d' % (TM + 1, 512 if P['smaj'] else 64, TM))
    a('v_cmp_gt_u32 %s, s%d, v%d' % (sr(sLM, 2), sT, TM))
    a('v_cmp_gt_u32 %s, s%d, v%d' % (sr(sLM + 2, 2), sT, TM + 1))
    a('s_set_gpr_idx_on s%d, gpr_idx(SRC1,DST)' % sEND)
    a('s_andn2_b64 exec, -1, %s' % sr(sLM + 2, 2))
    a('v_mov_b32 v%d, 0' % (S0 + 1))
    a('v_and_b32 v%d, 0xffff, v%d' % (S0 + 2, S0 + 2))
    a('s_andn2_b64 exec, -1, %s' % sr(sLM, 2))
    a('v_mov_b32 v%d, 0' % S0)
    a('v_mov_b32 v%d, 0' % (S0 + 2))
    a('s_mov_b64 exec, -1')
    a('s_set_gpr_idx_off')
    a('s_mov_b32 s%d, 0' % sIX)
    if not P['prime']:
        lf_init(sRB)
    if P['prime'] >= 3:
        gathers(0, 2)
        decode_rel(1, 0)
    a('Lk2_init:')
    if P['fst']:
        stamp(11)
    a('s_barrier')
    if P['fst']:
        stamp(12)
    for i in range(4):
        a('v_mov_b32 v%d, 0' % (ZR + i))
    a('v_lshlrev_b32 v%d, 4, v0' % A4)
    a('v_add_u32 v%d, %d, v%d' % (A4B, HI0, A4))
    a('v_add_u32 v%d, %d, v%d' % (CV, RBF0, A4))
    for q in range(NQ - 1):
        a('ds_write_b128 v%d, %s offset:%d' % (CV, vr(RO + 4 * q, 4), 8192 * q))
    a('s_mov_b64 exec, %s' % sr(sV6, 2))
    a('ds_write_b128 v%d, %s offset:%d' % (CV, vr(RO + 4 * NQ - 4, 4), 8192 * (NQ - 1)))
    a('s_mov_b64 exec, -1')
    if P['prime'] != 2:
        img_load(0, 5, AG, TM)
    if P['prime'] >= 3:
        gathers(1, 1)
    if not P['prime']:
        a('s_cmp_lg_u32 s%d, 0' % sMODE)
        a('s_cbranch_scc1 Lk2_ng')
        decode_rel(0, 0)
        gathers(0)
        decode_rel(1, 0)
        gathers(1)
        a('Lk2_ng:')
    if P['fst'] == 2:
        stamp(13)
    if P['ztid']:
        a('s_lshl_b32 m0, s%d, 8' % sW)
        a('s_nop 0')
        for o in list(range(0, RBF0 - 2048, 2048)) + [RBF0 - 2048]:
            a('ds_write_addtid_b32 v%d offset:%d' % (ZR, o))
    for o in (list(range(0, RBF0 - 8192, 8192)) + [RBF0 - 8192]) * (not P['ztid']):
        a('ds_write_b128 v%d, %s offset:%d' % (A4, vr(ZR, 4), o))
    if P['prime'] >= 3:
        gathers(1, 2)
    for o in list(range(0, 4 * PL - 8192, 8192)) + [4 * PL - 8192]:
        a('ds_write_b128 v%d, %s offset:%d' % (A4B, vr(ZR, 4), o))
    if P['prime'] == 2:
        img_load(0, 5, AG, TM)
    a('v_mov_b32 v%d, 0' % STK)
    a('v_mov_b32 v%d, 0' % RTN[0])
    a('v_mov_b32 v%d, 0' % RTN[1])
    a('v_mov_b32 v%d, 0x1000000' % CK)
    a('v_and_b32 v255, 0x1df, v0')
    a('v_lshl_add_u32 v255, v255, 5, v%d' % (IA + 1))
    a('s_waitcnt lgkmcnt(0)')
    if P['fst']:
        stamp(14)
    a('s_barrier')
    stamp(7, True)
    a('s_cmp_lg_u32 s%d, 0' % sMODE)
    a('s_cbranch_scc1 Lk2_all')
    a('ds_read_b128 %s, v%d offset:%d' % (vr(RBF, 4), A16[0], RBF0))
    if P['s2']:
        a('v_mov_b32 v%d, v%d' % (TM, ANG[0]))
        for t in cos2():
            a(t)
        a('s_mov_b32 s%d, s%d' % (sCX, sDX))
        next_block()
        a('s_waitcnt vmcnt(%d)' % (2 if P['prime'] >= 3 else 0 if P['prime'] else 4))
    a('s_waitcnt lgkmcnt(0)')
    MQ, AU, AR, OA = 4, 60, 68, 255
    WW, RBB, CNN = (132, 96), (140, 104), (144, 108)
    R16, T1, T2, T3, T4 = 92, 112, 113, 114, 115
    MF, AI, KB = 116, 72, 80
    sTRG = 89

    def epi_loads():
        img_load(5, 3, AU, 2)
        if P['tlb'] & 2:
            a('v_mul_u32_u24 v84, 99840, v0')
            a('buffer_load_dword v84, v84, %s, 0 offen nt' % sr(S_OUT, 4))
        for q in range(P['qk']):
            a('s_mov_b32 s%d, %d' % (sT, q * 16384))
            a('buffer_load_dwordx4 %s, v%d, %s, s%d offen' % (vr(MQ + 8 * q, 4), OA, sr(S_MO, 4), sT))
            a('buffer_load_dwordx4 %s, v%d, %s, s%d offen offset:1024' % (vr(MQ + 8 * q + 4, 4), OA, sr(S_MO, 4), sT))
        T1, T2, T3, T4 = 2, 3, 82, 83
        a('v_mov_b32 v%d, 0' % KB)
        a('v_mov_b32 v%d, 0x%x' % (KB + 1, (-0x10001) & 0xffffffff))
        a('v_bfe_u32 v%d, v0, 2, 1' % T1)
        a('v_bfe_u32 v%d, v0, 5, 1' % T2)
        a('v_and_b32 v%d, 1, v0' % T3)
        a('v_lshlrev_b32 v%d, 4, v%d' % (T3, T3))
        a('v_mov_b32 v%d, 0x3f80' % T4)
        a('v_lshlrev_b32 v%d, v%d, v%d' % (T3, T3, T4))
        a('v_bfe_u32 v%d, v0, 3, 2' % T4)
        a('v_xor_b32 v%d, v%d, v%d' % (T1, T1, T2))
        a('v_bfe_u32 v%d, v0, 1, 1' % T2)
        a('v_lshl_or_b32 v%d, v%d, 1, v%d' % (T4, T4, T2))
        a('v_lshl_or_b32 v%d, v%d, 3, v%d' % (T4, T1, T4))
        for i in range(8):
            a('v_mov_b32 v%d, 0' % (AI + i))
            a('v_cmpx_eq_u32 vcc, %d, v%d' % (i, T4))
            a('v_mov_b32 v%d, v%d' % (AI + i, T3))
            a('s_mov_b64 exec, -1')
        if P['epf']:
            G['code_prefetch'](a, 'e%d' % lab[0], 98, 2, 256, 'Lk2_epi', 'Lk2_e6')
            lab[0] += 1

    a('s_mul_i32 s%d, s%d, 49' % (sTRG, sBIN))
    a('s_lshr_b32 s%d, s%d, 8' % (sTRG, sTRG))
    a('s_add_u32 s%d, s%d, %d' % (sTRG, sTRG, P['trg']))
    a('s_and_b32 s%d, s%d, 15' % (sT, sBIN))
    a('s_add_u32 s%d, s%d, %d' % (sT, sT, 28 + P['lf'] + P['s2']))
    a('s_cmp_lt_u32 s%d, %d' % (sTRG, 28 + P['lf'] + P['s2']))
    a('s_cselect_b32 s%d, s%d, s%d' % (sTRG, sT, sTRG))
    a('s_mul_i32 s%d, s%d, 3' % (sTRG, sTRG))
    a('s_min_u32 s%d, s%d, s%d' % (sTRG, sTRG, sEND))
    assert 4 * 8 * (128 * P['nfull'] - 64) > 32 * 1024
    if '1' in P['wpos']:
        a('s_mov_b32 s90, %d' % (3 * P['mw1']))
        a('s_mov_b32 s91, %d' % (P['wpos'].index('1') * 51200 * 128))
        a('v_mov_b32 v155, v%d' % WA)
    if P['xit']:
        assert P['smaj']
        a('s_sub_u32 s%d, s%d, 1' % (sT, sPc + 4))
        a('s_bitcmp0_b32 s%d, 9' % sT)
        a('s_cselect_b32 s71, s%d, -1' % sEND)
    if P['mpf']:
        per = P['mpp']
        a('s_lshr_b32 s%d, s2, 3' % sT)
        a('s_and_b32 s90, s%d, %d' % (sT, per - 1))
        a('s_add_u32 s90, s90, 1')
        a('s_lshr_b32 s%d, s%d, %d' % (sT, sT, per.bit_length() - 1))
        a('s_mul_i32 s%d, s%d, %d' % (sT, sT, 128 * per * 128))
        a('s_add_u32 s91, s90, %d' % P['mpf'])
        a('s_lshl_b32 s91, s91, 19')
        a('s_add_u32 s91, s91, s%d' % sT)
        a('s_mul_i32 s90, s90, 3')
    if P['prio']:
        a('s_cmp_lt_u32 s%d, 4' % sW)
        a('s_cbranch_scc1 Lk2_np')
        a('s_setprio 1')
        a('Lk2_np:')
    if P['fst']:
        stamp(15, True)
    a.raw('.p2align 6')
    a('Lk2_loop:')
    a('s_cmp_eq_u32 s%d, s%d' % (sIX, sTRG))
    a('s_cbranch_scc1 Lk2_el')
    a('Lk2_lc:')
    if P['lf'] and not P['s2']:
        next_block()
    if P['mpf']:
        a('s_cmp_eq_u32 s%d, s90' % sIX)
        a('s_cbranch_scc1 Lk2_pl')
        a('Lk2_pc:')
    if '1' in P['wpos']:
        a('s_cmp_eq_u32 s%d, s90' % sIX)
        a('s_cbranch_scc1 Lk2_wl')
        a('Lk2_wc:')
    if P['s2']:
        step = step2
    step(0)
    if P['xit']:
        a('s_cmp_eq_u32 s%d, s71' % sIX)
        a('s_cbranch_scc1 Lk2_x')
    if P['stag'] == 2:
        halfbar(0)
    step(1)
    if P['stag']:
        halfbar(0)
    elif P['mbar'] == 1:
        a('s_barrier')
    elif P['mbar']:
        a('s_and_b32 s%d, s%d, %d' % (sT, sIX, P['mbar'] - 1))
        a('s_cbranch_scc1 Lk2_nb')
        a('s_barrier')
        a('Lk2_nb:')
    a('s_add_u32 s%d, s%d, 3' % (sIX, sIX))
    a('s_cmp_le_u32 s%d, s%d' % (sIX, sEND))
    a('s_cbranch_scc1 Lk2_loop')
    a('Lk2_x:')
    stamp(8, True)
    a('s_mov_b32 s%d, 0' % sPASS)
    for i in range(NQ):
        a('s_mov_b64 %s, 0' % sr(sFL + 2 * i, 2))
        a('s_mov_b64 %s, 0' % sr(sSK + 2 * i, 2))
    a('Lk2_epi:')
    a('v_lshlrev_b32 v%d, 3, v0' % A4)
    a('v_lshlrev_b32 v%d, 2, v0' % AC)
    a('v_add_u32 v%d, %d, v%d' % (A4B, HI0, A4))
    a('v_lshlrev_b32 v%d, 4, v0' % R16)
    mq = {}
    for q in range(P['qk'], NQ):
        a('s_mov_b32 s%d, %d' % (sT, q * 16384))
        a('buffer_load_dwordx4 %s, v%d, %s, s%d offen' % (vr(MQ + 8 * q, 4), OA, sr(S_MO, 4), sT))
        a('buffer_load_dwordx4 %s, v%d, %s, s%d offen offset:1024' % (vr(MQ + 8 * q + 4, 4), OA, sr(S_MO, 4), sT))
        mq[q] = a.mark()
    a('s_waitcnt vmcnt(%d) lgkmcnt(0)' % (2 + 2 * (NQ - P['qk'])))
    a('v_or3_b32 v%d, v%d, v%d, v%d' % (STK, STK, RTN[0], RTN[1]))
    a('s_barrier')
    mk = {}

    def e_read(q):
        W, RB, CN = WW[q & 1], RBB[q & 1], CNN[q & 1]
        if q == NQ - 1:
            for i in range(4):
                a('v_mov_b32 v%d, 0' % (RB + i))
            for i in range(8):
                a('v_mov_b32 v%d, 0' % (W + i))
            a('v_mov_b32 v%d, 0' % CN)
            a('s_mov_b64 exec, %s' % sr(sV6, 2))
        a('ds_read_b32 v%d, v%d offset:%d' % (CN, AC, CNT0 + 2048 * q))
        mk[q, -1] = a.mark()
        for j in range(4):
            b, o = plane(j)
            a('ds_read_b64 %s, v%d offset:%d' % (vr(W + 2 * j, 2), b, o + 4096 * q))
            mk[q, j] = a.mark()
        a('ds_read_b128 %s, v%d offset:%d' % (vr(RB, 4), R16, RBF0))
        mk[q, 8] = a.mark()
        if q == NQ - 1:
            a('s_mov_b64 exec, -1')
        else:
            a('v_add_u32 v%d, 8192, v%d' % (R16, R16))

    def e_decode(q, mf=()):
        mf = list(mf)
        if mf:
            a(mf.pop(0))
        W, CN = WW[q & 1], CNN[q & 1]
        a.wait_ds(mk[q, -1 if q == 0 else 8])
        a('v_lshrrev_b32 v%d, 24, v%d' % (CN + 1, CN))
        a('v_and_b32 v%d, 0xffffff, v%d' % (CN, CN))
        a('v_sub_u32 v%d, 0x20001, v%d' % (T1, CN + 1))
        a('v_mad_u64_u32 %s, vcc, v%d, s%d, %s' % (vr(CN + 2, 2), T1, sM1, vr(KB, 2)))
        a('v_cmp_lt_u32 vcc, 127, v%d' % (CN + 1))
        a('v_mul_u32_u24 v%d, %d, v%d' % (CN + 1, P['theta'], CN + 1))
        a('s_or_b64 %s, %s, vcc' % (sr(sFL + 2 * q, 2), sr(sFL + 2 * q, 2)))
        a('v_cmp_lt_u32 vcc, 0x7ffe, v%d' % CN)
        a('v_add_u32 v%d, v%d, v%d' % (CN + 3, CN + 3, CN + 2))
        a('s_or_b64 %s, %s, vcc' % (sr(sFL + 2 * q, 2), sr(sFL + 2 * q, 2)))
        a('v_cmp_lt_u32 vcc, v%d, v%d' % (CN, CN + 1))
        a('s_or_b64 %s, %s, vcc' % (sr(sFL + 2 * q, 2), sr(sFL + 2 * q, 2)))
        for j in range(4):
            if mf:
                a(mf.pop(0))
            a('s_andn2_b64 exec, -1, %s' % sr(sSK + 2 * q, 2))
            if q == 0:
                a.wait_ds(mk[q, j])
            a('v_lshl_add_u64 %s, %s, 0, %s' % (vr(W + 2 * j, 2), vr(W + 2 * j, 2), vr(CN + 2, 2)))
            for e in range(2):
                a('v_xor_b32 v%d, s%d, v%d' % (W + 2 * j + e, sM1, W + 2 * j + e))
            for e in range(2):
                w = W + 2 * j + e
                a('v_cvt_f32_i32_sdwa v%d, sext(v%d) dst_sel:DWORD dst_unused:UNUSED_PAD src0_sel:WORD_1' % (CN + e, w))
                a('v_cvt_f32_i32_sdwa v%d, sext(v%d) dst_sel:DWORD dst_unused:UNUSED_PAD src0_sel:WORD_0' % (w, w))
            for e in range(2):
                a('v_cvt_pk_bf16_f32 v%d, v%d, v%d' % (W + 2 * j + e, W + 2 * j + e, CN + e))
            a('s_mov_b64 exec, -1')
        if q == 0:
            a.wait_ds(mk[q, 8])

    def e_mfma(q):
        W, RB = WW[q & 1], RBB[q & 1]
        r = []
        if q in mq:
            a.wait_vm(mq[q])
        r.append('v_mfma_f32_32x32x16_bf16 %s, %s, %s, 0' % (vr(MF, 16), vr(AI, 4), vr(MQ + 8 * q, 4)))
        r.append('v_mfma_f32_32x32x16_bf16 %s, %s, %s, %s' % (vr(MF, 16), vr(AI + 4, 4), vr(MQ + 8 * q + 4, 4), vr(MF, 16)))
        r.append('v_mfma_f32_32x32x16_f16 %s, %s, %s, 0' % (vr(GATE, 16), vr(AR, 4), vr(RB, 4)))
        r.append('v_mfma_f32_32x32x16_bf16 %s, %s, %s, 0' % (vr(MD, 16), vr(AU, 4), vr(W, 4)))
        r.append('v_mfma_f32_32x32x16_bf16 %s, %s, %s, %s' % (vr(MD, 16), vr(AU + 4, 4), vr(W + 4, 4), vr(MD, 16)))
        return r

    def e_out(q):
        a('s_mov_b32 s%d, %d' % (sT, q * 16384))
        for j in range(8):
            m = MQ + 8 * q + j
            ta, tb = MF + 2 * j, MF + 2 * j + 1
            a('v_fmac_f32 v%d, v%d, v%d' % (ta, MD + 2 * j, GATE + 2 * j))
            a('v_fmac_f32 v%d, v%d, v%d' % (tb, MD + 2 * j + 1, GATE + 2 * j + 1))
            a('v_cvt_pk_bf16_f32 v%d, v%d, v%d' % (m, ta, tb))
            if j == 3:
                a('buffer_store_dwordx4 %s, v%d, %s, s%d offen %s' % (vr(MQ + 8 * q, 4), OA, sr(S_OUT, 4), sT, P['stout']))
        a('buffer_store_dwordx4 %s, v%d, %s, s%d offen offset:1024 %s' % (vr(MQ + 8 * q + 4, 4), OA, sr(S_OUT, 4), sT, P['stout']))

    e_read(0)
    e_read(1)
    e_decode(0)
    for q in range(NQ - 1):
        if q + 1 < NQ - 1:
            e_decode(q + 1, e_mfma(q))
        else:
            for t in e_mfma(q):
                a(t)
        if q + 2 < NQ:
            e_read(q + 2)
        e_out(q)
    a('s_cmp_lg_u32 s%d, 0' % sW)
    a('s_cbranch_scc1 Lk2_e6')
    e_decode(NQ - 1)
    for t in e_mfma(NQ - 1):
        a(t)
    e_out(NQ - 1)
    a('Lk2_e6:')
    stamp(9, True)
    if P['stamp']:
        a('s_waitcnt vmcnt(0)')
        stamp(10, True)
    if P['abl']:
        a('s_branch Lk2_end')
    a('s_cmp_lg_u32 s%d, 0' % sPASS)
    a('s_cbranch_scc1 Lk2_end')
    a('s_or_b64 %s, %s, %s' % (sr(sMK, 2), sr(sFL, 2), sr(sFL + 2, 2)))
    for q in range(2, NQ):
        a('s_or_b64 %s, %s, %s' % (sr(sMK, 2), sr(sMK, 2), sr(sFL + 2 * q, 2)))
    a('s_cselect_b32 s%d, 1, %d' % (sT, P['force_slow'] & 3))
    a('v_cmp_gt_i32 vcc, 0, v%d' % STK)
    a('s_cmp_lg_u64 vcc, 0')
    a('s_cselect_b32 s%d, 3, s%d' % (sT, sT))
    a('v_mov_b32 v2, s%d' % sT)
    a('s_lshl_b32 s%d, s%d, 2' % (sT, sW))
    a('s_add_u32 s%d, s%d, %d' % (sT, sT, SCR))
    a('v_mov_b32 v3, s%d' % sT)
    a('ds_write_b32 v3, v2')
    a('v_and_b32 v2, 7, v0')
    a('v_lshlrev_b32 v2, 2, v2')
    a('v_add_u32 v2, %d, v2' % SCR)
    a('s_waitcnt lgkmcnt(0)')
    a('s_barrier')
    a('ds_read_b32 v3, v2')
    a('s_waitcnt lgkmcnt(0)')
    a('v_cmp_ne_u32 vcc, 0, v3')
    a('s_cmp_eq_u64 vcc, 0')
    a('s_cbranch_scc1 Lk2_end')
    a('v_cmp_lt_u32 vcc, 1, v3')
    a('s_cmp_lg_u64 vcc, 0')
    a('Lk2_all:')
    for q in range(NQ):
        a('s_cselect_b64 %s, -1, %s' % (sr(sSK + 2 * q, 2), sr(sFL + 2 * q, 2)))
    a('s_and_b64 %s, %s, %s' % (sr(sSK + 2 * NQ - 2, 2), sr(sSK + 2 * NQ - 2, 2), sr(sV6, 2)))
    a('s_waitcnt vmcnt(0)')
    VD, VE, REC, ADDR, F12 = 4, 8, 12, 16, 17
    desc_load(VD, 18)
    a('v_lshlrev_b32 v%d, 3, v0' % A4)
    a('v_lshlrev_b32 v%d, 2, v0' % AC)
    a('v_add_u32 v%d, %d, v%d' % (A4B, HI0, A4))
    a('v_mov_b32 v2, 0')
    a('v_mov_b32 v3, 0')
    a('v_mov_b32 v19, -1')
    for q in range(NQ):
        a('s_mov_b64 exec, %s' % sr(sSK + 2 * q, 2))
        a('ds_write_b32 v%d, v19 offset:%d' % (AC, CNT0 + 2048 * q))
        for j in range(4):
            b, o = plane(j)
            a('ds_write_b64 v%d, v[2:3] offset:%d' % (b, o + 4096 * q))
        a('s_mov_b64 exec, -1')
        a('s_waitcnt lgkmcnt(0)')
    a('s_barrier')
    a('s_movk_i32 s%d, %d' % (sT, REC0 // 12))
    a('v_mov_b32 v%d, %d' % (F12, TSP))
    a('v_mad_u32_u24 v%d, v0, v%d, s%d' % (F12, F12, sT))
    a('s_waitcnt vmcnt(0)')
    for k in range(4):
        a('v_and_b32 v%d, 0x7fffffff, v%d' % (VD + k, VD + k))
        a('v_add_u32 v%d, 0x10000, v%d' % (VE + k, VD + k))
        a('v_and_b32 v%d, 0xffff, v%d' % (VD + k, VD + k))
        a('v_lshrrev_b32 v%d, 17, v%d' % (VE + k, VE + k))
    scan4(VE)
    for k in range(4):
        if k:
            a('v_add_u32 v%d, s%d, v%d' % (VE + k, sNT, VE + k))
        a('v_add_u32 v%d, v%d, v%d' % (VD + k, VD + k, F12))
        a('v_readlane_b32 s%d, v%d, 63' % (sNT, VE + k))
        a('v_sub_u32 v%d, v%d, v%d' % (VD + k, VD + k, VE + k))
        a('v_mul_lo_u32 v%d, v%d, 12' % (VD + k, VD + k))
    a('v_mul_u32_u24 v%d, 12, v%d' % (F12, LANE))
    a('s_mov_b32 s%d, 0' % sF)
    a('s_mov_b32 s%d, 0' % sE)
    a('s_mov_b32 s%d, 0' % sDL)
    a('s_movk_i32 s%d, -64' % sI)
    a('Lk2_sl:')
    a('s_cmp_ge_u32 s%d, s%d' % (sF, sNT))
    a('s_cbranch_scc1 Lk2_sd')
    a('v_add_u32 v%d, s%d, v%d' % (ADDR, sDL, F12))
    a('s_sub_u32 s%d, s%d, s%d' % (sP, sE, sF))
    a('s_cmp_ge_u32 s%d, 64' % sP)
    a('s_cbranch_scc1 Lfd')
    a('Lfl:')
    a('v_readlane_b32 s%d, v%d, s%d' % (sDL, VD, sI))
    a('v_readlane_b32 s%d, v%d, s%d' % (sE, VE, sI))
    a('s_add_u32 s%d, s%d, 1' % (sI, sI))
    a('s_cbranch_scc0 Lfc')
    a('s_mov_b64 exec, -1')
    for k in range(3):
        a('v_mov_b32 v%d, v%d' % (VE + k, VE + k + 1))
        a('v_mov_b32 v%d, v%d' % (VD + k, VD + k + 1))
    a('v_mov_b32 v%d, -1' % (VE + 3))
    a('v_bfrev_b32 v%d, 1' % (VD + 3))
    a('s_movk_i32 s%d, -64' % sI)
    a('Lfc:')
    a('s_lshl_b64 exec, -1, s%d' % sP)
    a('v_add_u32 v%d, s%d, v%d' % (ADDR, sDL, F12))
    a('s_sub_u32 s%d, s%d, s%d' % (sP, sE, sF))
    a('s_cmp_lt_u32 s%d, 64' % sP)
    a('s_cbranch_scc1 Lfl')
    a('s_mov_b64 exec, -1')
    a('Lfd:')
    a('s_add_u32 s%d, s%d, 64' % (sF, sF))
    a('v_add_u32 v%d, 768, v%d' % (F12, F12))
    a('buffer_load_dwordx3 %s, v%d, %s, 0 offen %s' % (vr(REC, 3), ADDR, sr(S_WS, 4), HO))
    a('s_mov_b32 s%d, 0' % sSUB)
    a('s_waitcnt vmcnt(0)')
    a('Lk2_s2:')
    a('v_cmp_gt_i32 %s, 0, v%d' % (sr(sMK, 2), REC + 1))
    a('v_ashrrev_i32 v%d, 31, v%d' % (TM, REC + 1))
    a('v_and_b32 v%d, v%d, v%d' % (REC, REC, TM))
    a('v_and_b32 v%d, s%d, v%d' % (IA, sIDM, REC))
    a('v_and_b32 v%d, s%d, v%d' % (IB, sIDM, REC))
    a('v_lshrrev_b32 v%d, 16, v%d' % (A16[0], REC))
    a('v_and_b32 v%d, s%d, v%d' % (A16[0], sA16, A16[0]))
    a('v_and_b32 v%d, s%d, v%d' % (ANG[0], sHI, REC + 1))
    a('v_permlane32_swap_b32 v%d, v%d' % (IA, IB))
    addrs(0)
    a('ds_read_b32 v%d, v%d offset:%d' % (CV, AC, CNT0))
    a('ds_read_b128 %s, v%d offset:%d' % (vr(RBF, 4), A16[0], RBF0))
    a('s_waitcnt lgkmcnt(0)')
    a('v_cmp_gt_i32 vcc, 0, v%d' % CV)
    a('s_and_b64 %s, %s, vcc' % (sr(sMK, 2), sr(sMK, 2)))
    a('s_cbranch_scc0 Lk2_s3')
    gathers(0)
    cosines(0)
    for l in range(3):
        sbf(l)
        gmf(l)
    a('s_waitcnt vmcnt(0)')
    mdown(0)
    for d in range(16):
        a('v_mul_f32 v%d, 0x47800000, v%d' % (GATE + d, GATE + d))
        a('v_mul_f32 v%d, v%d, v%d' % (MD + d, MD + d, GATE + d))
    a('s_mov_b64 exec, %s' % sr(sMK, 2))
    for j in range(8):
        a('v_cvt_pk_bf16_f32 v%d, v%d, v%d' % (MD + 2 * j, MD + 2 * j, MD + 2 * j + 1))
        b, o = plane(j >> 1)
        a('ds_pk_add_bf16 v%d, v%d offset:%d' % (b, MD + 2 * j, o + 4 * (j & 1)))
    a('s_mov_b64 exec, -1')
    a('Lk2_s3:')
    a('v_mov_b32 v%d, v%d' % (REC, REC + 2))
    a('v_lshlrev_b32 v%d, 16, v%d' % (REC + 1, REC + 1))
    a('s_xor_b32 s%d, s%d, 1' % (sSUB, sSUB))
    a('s_cbranch_scc1 Lk2_s2')
    a('s_branch Lk2_sl')
    a.fence()
    a('Lk2_sd:')
    a('s_mov_b32 s%d, 1' % sPASS)
    epi_loads()
    a('s_waitcnt vmcnt(0)')
    a('s_branch Lk2_epi')
    a.fence()
    a('Lk2_fb:')
    a('s_mov_b32 s%d, 1' % sMODE)
    if hk:
        if late:
            for f in late:
                f()
            a('s_waitcnt vmcnt(0)')
            hk.arrive2(0, VT, hk.arrive1(0, VT))
        done_wait(done_load())
    dist_loads()
    a('s_waitcnt vmcnt(0)')
    for q in range(NQ):
        rbf_batch(q)
    a('s_branch Lk2_init')
    a.fence()
    if '1' in P['wpos']:
        a('Lk2_wl:')
        a('buffer_load_dword v2, v155, %s, s91 offen' % sr(S_MR, 4))
        a('s_add_u32 s90, s90, %d' % (3 * P['mw2']))
        a('s_add_u32 s91, s91, %d' % (51200 * 128))
        a('s_cmp_ge_u32 s91, %d' % (4 * 51200 * 128))
        a('s_cselect_b32 s90, -1, s90')
        a('s_branch Lk2_wc')
        a.fence()
    if P['mpf']:
        a('Lk2_pl:')
        per = P['mpp']
        if per == 2:
            a('v_and_b32 v3, 31, v0')
            a('v_lshl_add_u32 v3, s%d, 5, v3' % sW)
            a('v_lshlrev_b32 v3, 7, v3')
        else:
            a('v_lshlrev_b32 v3, 7, v0')
        if per == 8:
            a('s_add_u32 s%d, s91, 65536' % sT)
            a('buffer_load_dword v%d, v3, %s, s%d offen' % (72, sr(S_MR, 4), sT))
        a('buffer_load_dword v3, v3, %s, s91 offen' % sr(S_MR, 4))
        a('s_add_u32 s90, s90, %d' % (3 * per))
        a('s_add_u32 s91, s91, %d' % (per << 19))
        a('s_branch Lk2_pc')
        a.fence()
    a('Lk2_el:')
    epi_loads()
    a('s_branch Lk2_lc')
    a.fence()
    a('Lk2_end:')
    a('s_endpgm')
    a.fence()
    return LDS
```

```python
import sys, math, struct
from asmlib import Asm

NAME = 'gather_scatter__molecular_angular_gemnet__graph'
E, T = 800000, 12800000
BINE = 3125
TS = 158976
TSP = TS // 12
REC0 = 12288
DESC0 = 0x4F00000
PREP0 = 0x5200000
FLG0 = 0x5300000
WS_BYTES = 268435456

P = dict(ld1='nt', st1='', ldrec='', stout='nt', target=165.0, theta=64, bar=16, stamp=0, force_slow=0, abl=0, idm=0xfffff, goff=0, tlp=35, tls=21, tlb=0, qk=5, wp2='', prime=0, fst=0, cls=0, bmap='', xit=1, lg=0, smaj=1, kl=0, kalt=0, rsp=1, k1m=0, k1x=0, k1pr=0, ilv=1, nog=0, s2=1, bpos=1, cs1=2, cs2=7, lf=1, lfb=3, lfm=0, tw=0, epf=0, fpipe=0, ztid=0, spf=44, ns0=6, nrun=1, nlate=0, lt0=0, mpf=0, mpp=4, atj=11, nae=20, nsx=2, slp=16, sg0=0, fuse=0, p8=0, pld=4, sch8='.L.LP.LP.LP.LP.LP.LP.LP.LP.P.P.P', fr=9, na=2, bhd=1, sch='.L.L.L.L.LP.P.P.P', early=1, stag=1, stb_=1, mw1=1, mw2=8, k1w=0, k1p=1, imgl=1, pfn=0, ppos='uz', sta='sc1', stb='sc1', nfull=10, wpos='kosw', lead=9, lead0=6, npipe=13, hp=4, scw=3, trg=2, prio=0, cpf=1, dv=4, warm=1, mbar=1, sdwa=1, npre=4, only1=0, stw=0, k2x=0, rd2=1, l2x=0, recm=0, ldg='')
for a in sys.argv[2:]:
    k, v = a.split('=')
    P[k] = type(P[k])(v.replace('+',' ')) if not isinstance(P[k], int) else int(v, 0)


def f2u(x):
    return struct.unpack('<I', struct.pack('<f', x))[0]


def vr(a, n):
    return 'v[%d:%d]' % (a, a + n - 1)


def sr(a, n):
    return 's[%d:%d]' % (a, a + n - 1)


def srd(a, d, ptr, nbytes, off=None, stride=0):
    if off is None:
        a('s_mov_b32 s%d, s%d' % (d, ptr))
        a('s_mov_b32 s%d, s%d' % (d + 1, ptr + 1))
    else:
        a('s_add_u32 s%d, s%d, %s' % (d, ptr, off))
        a('s_addc_u32 s%d, s%d, 0' % (d + 1, ptr + 1))
    if stride:
        a('s_or_b32 s%d, s%d, 0x%x' % (d + 1, d + 1, stride << 16))
    a('s_mov_b32 s%d, %d' % (d + 2, nbytes))
    a('s_mov_b32 s%d, 0x20000' % (d + 3))


def scan64(a, v, op='v_add_u32'):
    for c in ('row_shr:1', 'row_shr:2', 'row_shr:4', 'row_shr:8'):
        a('%s_dpp v%d, v%d, v%d %s row_mask:0xf bank_mask:0xf' % (op, v, v, v, c))
    a('%s_dpp v%d, v%d, v%d row_bcast:15 row_mask:0xa bank_mask:0xf' % (op, v, v, v))
    a('%s_dpp v%d, v%d, v%d row_bcast:31 row_mask:0xc bank_mask:0xf' % (op, v, v, v))


def code_prefetch(a, tag, st, vt, nwg=16, first=None, last='Lk2_end'):
    a('s_cmp_ge_u32 s2, %d' % nwg)
    a('s_cbranch_scc1 Lcpf%s' % tag)
    a('s_getpc_b64 %s' % sr(st, 2))
    a('Lcpb%s:' % tag)
    a('v_lshlrev_b32 v%d, 7, v0' % vt)
    a('v_mov_b32 v%d, 0' % (vt + 1))
    if first:
        a('s_sub_u32 s%d, s%d, Lcpb%s-%s' % (st, st, tag, first))
        a('s_subb_u32 s%d, s%d, 0' % (st + 1, st + 1))
    a('v_cmp_gt_u32 vcc, %s-%s, v%d' % (last, first or 'Lcpb' + tag, vt))
    a('v_lshl_add_u64 %s, %s, 0, %s' % (vr(vt, 2), vr(vt, 2), sr(st, 2)))
    a('s_and_b64 exec, exec, vcc')
    a('s_cbranch_execz Lcpe%s' % tag)
    a.nocount = True
    a('global_load_dword v%d, %s, off' % (vt, vr(vt, 2)))
    a.nocount = False
    a('Lcpe%s:' % tag)
    a('s_mov_b64 exec, -1')
    a('Lcpf%s:' % tag)


STAMP0 = 0x6000000


def stamp_init(a, sdbg, wsptr, kern, sw):
    if not P['stamp']:
        return
    a('s_lshl_b32 s100, s2, 7')
    a('s_add_u32 s100, s100, %d' % (STAMP0 + kern * 32768))
    srd(a, sdbg, wsptr, 128, 's100')
    stamp.sel = sw


def stamp(a, idx, sdbg, tmp_s, tmp_v, tmp_w=None):
    tmp_w = tmp_w or tmp_v + 1
    if not P['stamp']:
        return
    lab = 'Lst%d' % stamp.n
    stamp.n += 1
    a.nocount = True
    a('s_cmp_lg_u32 s%d, %d' % (stamp.sel, P['stw']))
    a('s_cbranch_scc1 %s' % lab)
    a('s_memrealtime %s' % sr(tmp_s, 2))
    a('s_waitcnt lgkmcnt(0)')
    a('v_mov_b32 v%d, s%d' % (tmp_v, tmp_s))
    a('v_mov_b32 v%d, %d' % (tmp_w, idx * 4))
    a('buffer_store_dword v%d, v%d, %s, 0 offen' % (tmp_v, tmp_w, sr(sdbg, 4)))
    a('s_memtime %s' % sr(tmp_s, 2))
    a('s_waitcnt lgkmcnt(0)')
    a('v_mov_b32 v%d, s%d' % (tmp_v, tmp_s))
    a('buffer_store_dword v%d, v%d, %s, 0 offen offset:64' % (tmp_v, tmp_w, sr(sdbg, 4)))
    a(lab + ':')
    a.nocount = False


stamp.n = 0
stamp.sel = 0


def k1(a):
    CNTB, SCR, CNTA = 0, 4096, 4224
    DATB, DATA = 4224, 8320
    S_IN, S_OUT, S_ANG, S_REC, S_DSC, S_T0, S_DBG = 24, 28, 32, 36, 40, 44, 92
    S_REC2 = 80
    sMB, sMC, sNEG, sHI, sT, sW = 64, 65, 66, 67, 68, 69
    sREM = 70
    sBASE, sPREP, sVB, sUM = 72, 73, 74, 75
    O16, O8, ONE, SIX = 1, 2, 3, 12
    TP = 4
    TS_ = 22
    ANG = 14
    ANGR = 13
    INA, OUTA, INB, OUTB, INR, OUTR = 28, 52, 76, 100, 124, 125
    ld = P['ld1']
    st = P['st1']

    a('s_cmp_ge_u32 s2, 256')
    a('s_cbranch_scc1 Lk1_end')
    a('s_load_dwordx4 s[4:7], s[0:1], 8')
    a('s_load_dwordx2 s[8:9], s[0:1], 32')
    a('s_load_dwordx4 s[76:79], s[0:1], 96')
    a('s_load_dwordx2 s[12:13], s[0:1], 0')
    a('s_load_dwordx8 s[16:23], s[0:1], 56')
    if P['cpf'] & 1:
        code_prefetch(a, 'a', 84, 124)
    a('v_lshlrev_b32 v%d, 4, v0' % O16)
    a('v_lshlrev_b32 v%d, 3, v0' % O8)
    a('v_mov_b32 v%d, 1' % ONE)
    a('v_mov_b32 v%d, 6' % SIX)
    a('v_lshrrev_b32 v4, 6, v0')
    a('v_readfirstlane_b32 s%d, v4' % sW)
    a('v_mov_b32 v4, 0')
    a('v_lshlrev_b32 v5, 2, v0')
    a('ds_write_b32 v5, v4 offset:%d' % CNTB)
    a('ds_write_b32 v5, v4 offset:%d' % CNTA)
    a('s_mov_b32 s%d, %d' % (sMB, -(-2**32 // BINE)))
    a('s_mov_b32 s%d, 21400' % sMC)
    a('s_mov_b32 s%d, %d' % (sNEG, -BINE))
    a('s_mov_b32 s%d, 0xffff0000' % sHI)
    a('s_mov_b32 s%d, 0x80008000' % sVB)
    a('s_mov_b32 s%d, 0xff000' % sUM)
    if P['ilv']:
        a('s_mul_i32 s14, s2, 53')
        a('s_add_u32 s15, s14, 53')
        a('s_lshr_b32 s14, s14, 2')
        a('s_lshr_b32 s15, s15, 2')
        a('s_sub_u32 s%d, s15, s14' % sT)
        a('s_lshl_b32 s%d, s%d, 6' % (sT, sT))
        a('s_lshl_b32 s15, s2, 6')
        a('s_sub_u32 s14, s14, s15')
        a('s_add_u32 s3, s14, 196608')
        a('s_lshl_b32 s14, s2, 14')
        a('s_lshl_b32 s15, s2, 13')
    else:
        a('s_mul_i32 s14, s2, 3125')
        a('s_add_u32 s15, s14, 3125')
        a('s_lshr_b32 s14, s14, 2')
        a('s_lshr_b32 s15, s15, 2')
        a('s_sub_u32 s3, s15, s14')
        a('s_lshl_b32 s15, s14, 7')
        a('s_lshl_b32 s14, s14, 8')
        a('s_sub_u32 s%d, s3, 768' % sT)
        a('s_lshl_b32 s%d, s%d, 6' % (sT, sT))
    a('v_cmp_gt_u32 %s, s%d, v0' % (sr(sREM, 2), sT))
    a('v_and_b32 v13, 63, v0')
    a('v_lshlrev_b32 v27, 4, v13')
    a('s_lshl_b32 s%d, s2, 4' % sPREP)
    a('s_or_b32 s%d, s%d, s%d' % (sPREP, sPREP, sW))
    a('s_waitcnt lgkmcnt(0)')
    srd(a, S_IN, 4, 0, 's14')
    srd(a, S_OUT, 6, 0, 's14')
    srd(a, S_ANG, 8, 0, 's15')
    if P['ilv']:
        a('s_sub_u32 s%d, %d, s14' % (S_IN + 2, T * 4))
        a('s_sub_u32 s%d, %d, s14' % (S_OUT + 2, T * 4))
        a('s_sub_u32 s%d, %d, s15' % (S_ANG + 2, T * 2))
    else:
        a('s_lshl_b32 s%d, s3, 8' % (S_IN + 2))
        a('s_lshl_b32 s%d, s3, 8' % (S_OUT + 2))
        a('s_lshl_b32 s%d, s3, 7' % (S_ANG + 2))
    RS = 256 if P['ilv'] else 1
    stamp_init(a, S_DBG, 78, 0, sW)
    stamp(a, 0, S_DBG, 96, 126)
    a('s_cmp_lg_u32 s%d, 0' % sPREP)
    a('s_cbranch_scc1 Lk1_main')
    a.nocount = True
    srd(a, S_T0, 18, 768)
    srd(a, S_T0 + 4, 20, 512)
    srd(a, S_T0 + 8, 22, 512)
    srd(a, S_T0 + 12, 16, 256)
    srd(a, S_T0 + 16, 12, E * 32)
    for i in range(4):
        a('buffer_load_dwordx4 %s, v27, %s, 0 offen' % (vr(76 + 4 * i, 4), sr(S_T0 + 4 * i, 4)))
    a('v_mul_u32_u24 v4, 99984, v13')
    for i in range(4):
        a('s_mov_b32 s%d, %d' % (sT, i * 64 * 99984))
        a('buffer_load_dwordx4 %s, v4, %s, s%d offen' % (vr(92 + 4 * i, 4), sr(S_T0 + 16, 4), sT))
    a.nocount = False
    a('Lk1_main:')

    marks = {}

    def regs(j):
        return ((INA, OUTA) if j < 6 else (INB, OUTB)), 4 * (j % 6), (ANG + 2 * (j % 4) if j < 10 else (INA, OUTA)[j - 10])

    def loads(j):
        if j == 12:
            a('v_lshlrev_b32 v10, 2, v0')
            a('v_lshlrev_b32 v11, 1, v0')
            a('s_lshl_b32 s%d, s3, 8' % sT if P['ilv'] else 's_mov_b32 s%d, %d' % (sT, 12 * 16384))
            a('s_mov_b64 exec, %s' % sr(sREM, 2))
            a('buffer_load_dword v%d, v10, %s, s%d offen %s' % (OUTR, sr(S_OUT, 4), sT, ld))
            a('buffer_load_dword v%d, v10, %s, s%d offen %s' % (INR, sr(S_IN, 4), sT, ld))
            a('s_lshl_b32 s%d, s3, 7' % sT if P['ilv'] else 's_mov_b32 s%d, %d' % (sT, 12 * 8192))
            a('buffer_load_ushort v%d, v11, %s, s%d offen %s' % (ANGR, sr(S_ANG, 4), sT, ld))
            a('s_mov_b64 exec, -1')
        else:
            (rin, rout), o, rang = regs(j)
            a('s_mov_b32 s%d, %d' % (sT, j * 16384 * RS))
            a('buffer_load_dwordx4 %s, v%d, %s, s%d offen %s' % (vr(rout + o, 4), O16, sr(S_OUT, 4), sT, ld))
            a('buffer_load_dwordx4 %s, v%d, %s, s%d offen %s' % (vr(rin + o, 4), O16, sr(S_IN, 4), sT, ld))
            a('s_mov_b32 s%d, %d' % (sT, j * 8192 * RS))
            a('buffer_load_dwordx2 %s, v%d, %s, s%d offen %s' % (vr(rang, 2), O8, sr(S_ANG, 4), sT, ld))
        marks[j] = a.mark()

    def pack2(items, rg, cnt):
        a('v_or_b32 v%d, s%d, v%d' % (rg, sVB, rg))
        for e, (ri, ro) in enumerate(items):
            a('v_or_b32 v%d, 3, v%d' % (TP + e, ro))
        for e, (ri, ro) in enumerate(items):
            a('v_mul_hi_u32_u24 v%d, s%d, v%d' % (TP + e, sMB, TP + e))
        for e, (ri, ro) in enumerate(items):
            a('v_and_b32 v%d, 3, v%d' % (TP + 2 + e, TP + e))
            a('v_mad_i32_i24 v%d, v%d, s%d, v%d' % (ro, TP + e, sNEG, ro))
        for e, (ri, ro) in enumerate(items):
            a('v_add_u32 v%d, v%d, v%d' % (ro, ro, TP + 2 + e))
            a('v_and_b32 v%d, s%d, v%d' % (TP + 2 + e, sUM, ri))
        for e, (ri, ro) in enumerate(items):
            a('v_mul_hi_u32_u24 v%d, s%d, v%d' % (TP + 2 + e, sMC, TP + 2 + e))
        for e, (ri, ro) in enumerate(items):
            a('v_lshl_add_u32 v%d, v%d, 8, v%d' % (TP + e, TP + 2 + e, TP + e))
            a('v_lshl_or_b32 v%d, v%d, 20, v%d' % (ri, ro, ri))
        for e, (ri, ro) in enumerate(items):
            a('v_lshlrev_b32 v%d, 2, v%d' % (TP + e, TP + e))
        for e, (ri, ro) in enumerate(items):
            a('ds_add_u32 v%d, v%d offset:%d' % (TP + e, ONE, cnt))
            if e:
                a('v_and_or_b32 v%d, v%d, s%d, v%d' % (ro, rg, sHI, TP + e))
            else:
                a('v_lshl_or_b32 v%d, v%d, 16, v%d' % (ro, rg, TP + e))

    def pack(j):
        a.wait_vm(marks[j])
        if j == 12:
            a('s_mov_b64 exec, %s' % sr(sREM, 2))
            pack2([(INR, OUTR)], ANGR, CNTB)
            a('s_mov_b64 exec, -1')
            return
        (rin, rout), o, rang = regs(j)
        for h in range(2):
            pack2([(rin + o + 2 * h + e, rout + o + 2 * h + e) for e in range(2)], rang + h, CNTA if j < 6 else CNTB)

    def scan(sub, cnt, data, srec, mid1=None, mid2=None):
        a('v_lshlrev_b32 v10, 2, v0')
        a('s_waitcnt lgkmcnt(0)')
        a('s_barrier')
        a('ds_read_b32 v4, v10 offset:%d' % cnt)
        m = a.mark()
        if mid1:
            mid1()
        a('s_lshl_b32 s%d, s%d, 2' % (sT, sW))
        a('v_mov_b32 v8, s%d' % sT)
        a('v_and_b32 v9, 60, v10')
        a.wait_ds(m)
        a('v_add_u32 v6, 1, v4')
        a('v_lshrrev_b32 v6, 1, v6')
        a('v_mov_b32 v7, v6')
        scan64(a, 7)
        a('s_mov_b32 exec_lo, 0')
        a('s_mov_b32 exec_hi, 0x80000000')
        a('ds_write_b32 v8, v7 offset:%d' % SCR)
        a('s_mov_b64 exec, -1')
        a('s_waitcnt lgkmcnt(0)')
        a('s_barrier')
        a('ds_read_b32 v11, v9 offset:%d' % SCR)
        m = a.mark()
        if mid2:
            mid2()
        a('v_and_b32 v8, 255, v0')
        a('v_lshrrev_b32 v9, 8, v0')
        a('v_lshlrev_b32 v9, 2, v9')
        a('v_lshl_add_u32 v9, v8, 4, v9')
        a.wait_ds(m)
        a('v_mov_b32 v5, v11')
        for c in ('row_shr:1', 'row_shr:2', 'row_shr:4', 'row_shr:8'):
            a('v_add_u32_dpp v11, v11, v11 %s row_mask:0xf bank_mask:0xf' % c)
        a('v_sub_u32 v5, v11, v5')
        a('v_readlane_b32 s%d, v11, 15' % sT)
        a('v_readlane_b32 s%d, v5, s%d' % (sBASE, sW))
        a('s_mul_i32 s%d, s%d, 12' % (srec + 2, sT))
        a('v_add_u32 v7, s%d, v7' % sBASE)
        a('v_sub_u32 v6, v7, v6')
        a('s_movk_i32 s%d, %d' % (sT, data))
        a('v_mad_u32_u24 v6, v6, 12, s%d' % sT)
        a('ds_write_b32 v10, v6 offset:%d' % cnt)
        a('v_lshl_or_b32 v5, v4, 16, v7')
        a('v_mul_u32_u24 v7, 12, v7')
        a('v_mov_b32 v6, 0')
        a('v_and_b32 v4, 1, v4')
        a('s_and_b32 s%d, s2, 7' % sT)
        a('s_lshl1_add_u32 s%d, s%d, %d' % (sT, sT, 3136 + sub))
        a('v_lshrrev_b32 v8, 8, v0')
        a('v_lshl_add_u32 v8, v8, 4, s%d' % sT)
        a('v_lshlrev_b32 v8, 8, v8')
        a('v_cmpx_eq_u32 vcc, 1, v4')
        a('ds_write_b16 v7, v6 offset:%d' % (data - 8))
        a('ds_write_b32 v7, v8 offset:%d' % (data - 4))
        a('s_mov_b64 exec, -1')
        a('s_movk_i32 s%d, %d' % (sT, sub * 4096))
        a('buffer_store_dword v5, v9, %s, s%d offen %s' % (sr(S_DSC, 4), sT, st))
        a('s_waitcnt lgkmcnt(0)')
        a('s_barrier')

    def rtn(t, ro, cnt):
        a('v_and_b32 v%d, 0xffff, v%d' % (t, ro))
        a('ds_add_rtn_u32 v%d, v%d, v%d offset:%d' % (t, t, SIX, cnt))

    def put(t, ri, ro, e):
        u = 8 + (e & 1)
        a('v_and_b32 v%d, 2, v%d' % (u, t))
        a('v_add_u32 v%d, v%d, v%d' % (t, t, u))
        a('v_mad_i32_i24 v%d, v%d, -5, v%d' % (u, u, t))
        a('ds_write_b32 v%d, v%d' % (t, ri))
        a('ds_write_b16_d16_hi v%d, v%d offset:6' % (u, ro))

    def scatter(rin, rout, cnt, rem, between):
        G = 3
        ng = 24 // G
        mk = {}
        if rem:
            a('s_mov_b64 exec, %s' % sr(sREM, 2))
            rtn(10, OUTR, cnt)
            a('s_mov_b64 exec, -1')
        for e in range(G):
            rtn(TS_ + e, rout + e, cnt)
        mk[0] = a.mark()
        for g in range(ng):
            cur, nxt = TS_ + (g & 1) * G, TS_ + ((g + 1) & 1) * G
            if g + 1 < ng:
                for e in range(G):
                    rtn(nxt + e, rout + (g + 1) * G + e, cnt)
                mk[g + 1] = a.mark()
            a.wait_ds(mk[g])
            for e in range(G):
                put(cur + e, rin + g * G + e, rout + g * G + e, e)
            if rem and g == 0:
                a('s_mov_b64 exec, %s' % sr(sREM, 2))
                put(10, INR, OUTR, 1)
                a('s_mov_b64 exec, -1')
            between(g)

    rd = {}

    def readout(base, data):
        a('v_add_u32 v22, 0x10000, v%d' % O16)
        a('v_add_u32 v23, 0x20000, v%d' % O16)
        for j in range(10):
            b = (O16, 22, 23)[j >> 2]
            a('ds_read_b128 %s, v%d offset:%d' % (vr(base + 4 * j, 4), b, data + (j & 3) * 16384))
            rd[j] = a.mark()

    def store(base, srec, j, wait=False):
        a('s_mov_b32 s%d, %d' % (sT, j * 16384))
        if wait:
            a.wait_ds(rd[j])
        a('buffer_store_dwordx4 %s, v%d, %s, s%d offen %s' % (vr(base + 4 * j, 4), O16, sr(srec, 4), sT, P['sta'] if base == INA else P['stb']))

    loads(0)
    loads(1)
    a('s_lshl_b32 s14, s2, 1')
    a('s_mul_i32 s15, s14, %d' % TS)
    a('s_add_u32 s15, s15, %d' % REC0)
    srd(a, S_REC, 78, 0, 's15')
    a('s_add_u32 s15, s15, %d' % TS)
    srd(a, S_REC2, 78, 0, 's15')
    a('s_lshl_b32 s15, s14, 12')
    a('s_add_u32 s15, s15, %d' % DESC0)
    srd(a, S_DSC, 78, 8192, 's15')
    if P['tlb'] & 1:
        a('s_mov_b32 s%d, %d' % (S_REC + 2, 2 * TS))
        a('v_mul_u32_u24 v126, %d, v0' % (TS - 128))
        a('buffer_load_dword v126, v126, %s, 0 offen nt' % sr(S_REC, 4))
        a('v_lshlrev_b32 v127, 13, v0')
        a('buffer_load_dword v127, v127, %s, 0 offen nt' % sr(S_DSC, 4))
    a('s_cmp_lg_u32 s%d, 0' % sPREP)
    a('s_barrier')
    a('s_cbranch_scc1 Lk1_noprep')
    a.nocount = True
    nds = a.nds
    prep(a, DATA, S_T0, 6 + 2 * (P['tlb'] & 1))
    a.nds = nds
    a.nocount = False
    a('Lk1_noprep:')
    if P['k1pr']:
        for pr in range(1, 4):
            a('s_cmp_lt_u32 s%d, %d' % (sW, 4 * pr))
            a('s_cbranch_scc1 Lk1_pr')
            a('s_setprio %d' % pr)
        a('Lk1_pr:')
    for j in range(6):
        if j + 2 < 8 + P['k1x']:
            loads(j + 2)
        pack(j)
    for j in range(P['k1x']):
        loads(8 + j)
    stamp(a, 1, S_DBG, 96, 126)
    k1m = [8 + P['k1x'] + j for j in range(P['k1m'])]
    scan(0, CNTA, DATA, S_REC, None, lambda: [loads(j) for j in k1m])
    stamp(a, 2, S_DBG, 96, 126)

    sched = P['sch'].split('.')
    nl, npk = [8 + P['k1x'] + P['k1m']], [6]

    def do(ops):
        for c in ops:
            if c == 'L' and nl[0] < 13:
                assert nl[0] >= 10 or nl[0] - npk[0] < 4
                loads(nl[0])
                nl[0] += 1
            elif c == 'P':
                pack(npk[0])
                npk[0] += 1
            elif c == 'B':
                a('s_barrier')

    do(sched[0])
    scatter(INA, OUTA, CNTA, False, lambda g: do(sched[g + 1]))
    stamp(a, 3, S_DBG, 96, 126)
    do('L' * (13 - nl[0]))
    if P['cpf'] & 4:
        code_prefetch(a, 'c', 84, 126, 8)
    do('P' * (13 - npk[0]))
    stamp(a, 4, S_DBG, 96, 126)
    npre = P['npre']
    scan(1, CNTB, DATB, S_REC2, lambda: readout(INA, DATA), lambda: [store(INA, S_REC, j) for j in range(npre)])
    stamp(a, 5, S_DBG, 96, 126)
    todo = list(range(npre, 10))

    def btw_b(g):
        k = -(-len(todo) // (8 - g))
        for _ in range(k):
            store(INA, S_REC, todo.pop(0))

    scatter(INB, OUTB, CNTB, True, btw_b)
    stamp(a, 6, S_DBG, 96, 126)
    a('s_waitcnt lgkmcnt(0)')
    a('s_barrier')

    def k1warm():
        srd(a, S_T0, 12, P['k1w'] * 51200 * 128 if P['k1w'] < 4 else E * 32)
        a('s_lshl_b32 s%d, s2, 4' % sT)
        a('s_add_u32 s%d, s%d, s%d' % (sT, sT, sW))
        a('s_mul_i32 s%d, s%d, %d' % (sT, sT, 13 * P['k1w']))
        a('v_and_b32 v4, 63, v0')
        a('v_min_u32 v4, %d, v4' % (13 * P['k1w'] - 1))
        a('v_add_lshl_u32 v4, v4, s%d, 7' % sT)
        a('buffer_load_dword v4, v4, %s, 0 offen' % sr(S_T0, 4))

    readout(INB, DATB)
    if P['k1w'] and P['k1p'] == 0:
        k1warm()
    for j in range(10):
        store(INB, S_REC2, j, True)
    if P['k1w'] and P['k1p'] == 1:
        k1warm()
    stamp(a, 7, S_DBG, 96, 126)
    if P['stamp']:
        a('s_waitcnt vmcnt(0)')
        stamp(a, 8, S_DBG, 96, 126)
    a('Lk1_end:')
    a('s_endpgm')
    a.fence()
    return DATB + (25472 + 1024) * 6


def prep(a_, PB, S_T0, nvm=6, L=13, wsp=78, st=14, fl=''):
    a0 = a_

    def a(t):
        t = t.replace('s14', 's%d' % st) if not t.startswith('s_add') else t
        a0(t + ' ' + fl if t.startswith('buffer_store') else t)
    O = 27
    sS = 80
    sS = 48
    a('s_waitcnt vmcnt(%d)' % nvm)
    for i in range(4):
        a('ds_write_b128 v%d, %s offset:%d' % (O, vr(76 + 4 * i, 4), PB + 1024 * i))
    a('v_mov_b32 v4, 0')
    for i in range(16):
        a('v_dot2_f32_bf16 v4, v%d, v%d, v4' % (92 + i, 92 + i))
    scan64(a, 4, 'v_add_f32')
    a('v_readlane_b32 s14, v4, 63')
    a('v_bfe_u32 v5, v%d, 3, 2' % L)
    a('v_and_b32 v6, 3, v%d' % L)
    a('v_lshl_or_b32 v5, v5, 2, v6')
    a('v_lshlrev_b32 v5, 1, v5')
    a('v_bfe_u32 v7, v%d, 2, 1' % L)
    a('v_lshrrev_b32 v8, 5, v%d' % L)
    a('s_waitcnt lgkmcnt(0)')
    for k in range(24):
        a('ds_read_u16 v%d, v5 offset:%d' % (76 + k, PB + 32 * k))
        if k % 8 == 7:
            a('s_waitcnt lgkmcnt(0)')
    for k in range(16):
        a('ds_read_u16 v%d, v5 offset:%d' % (100 + k, PB + 1024 + 32 * k))
        if k % 8 == 7:
            a('s_waitcnt lgkmcnt(0)')
    a('v_lshl_add_u32 v9, v8, 8, v5')
    for k in range(8):
        a('ds_read_u16 v%d, v9 offset:%d' % (116 + k, PB + 1024 + 32 * k))
    a('s_waitcnt lgkmcnt(0)')
    for k in range(48):
        a('v_lshlrev_b32 v%d, 16, v%d' % (76 + k, 76 + k))
    a('v_mul_f32 v9, v76, v76')
    for k in range(1, 24):
        a('v_fmac_f32 v9, v%d, v%d' % (76 + k, 76 + k))
    a('v_mul_f32 v10, v100, v100')
    for k in range(1, 16):
        a('v_fmac_f32 v10, v%d, v%d' % (100 + k, 100 + k))
    a('v_log_f32 v9, v9')
    a('v_log_f32 v10, v10')
    a('v_log_f32 v11, s14')
    a('v_add_f32 v10, v10, v9')
    a('v_add_f32 v10, v10, v11')
    c0 = math.log2(P['target']) - 0.5 * math.log2(0.1625 / 2048)
    a('v_mov_b32 v11, 0x%x' % f2u(c0))
    a('v_fmac_f32 v11, -0.5, v10')
    a('v_floor_f32 v11, v11')
    a('v_mul_f32 v9, 0.5, v9')
    a('v_floor_f32 v9, v9')
    a('s_mov_b32 s14, 0x%x' % f2u(40.0))
    a('v_med3_f32 v11, v11, -s14, s14')
    a('v_med3_f32 v9, -v9, -s14, s14')
    a('v_cvt_i32_f32 v11, v11')
    a('v_cvt_i32_f32 v9, v9')
    a('v_sub_u32 v10, v11, v9')
    a('v_subrev_u32 v10, 16, v10')
    for j in range(16):
        a('v_readlane_b32 s%d, v11, %d' % (sS + j, ((j >> 2) << 3) | (j & 3)))
    srd(a, S_T0, wsp, 8192, str(PREP0))
    a('v_xor_b32 v4, v7, v8')
    a('v_subrev_u32 v4, 1, v4')
    a('v_subrev_u32 v6, 1, v7')
    a('v_sub_u32 v7, 0, v7')
    for k in range(24):
        a('v_ldexp_f32 v%d, v%d, v9' % (76 + k, 76 + k))
        if k % 3 == 1:
            a('v_add_f32 v%d, v%d, v%d' % (76 + k, 76 + k, 76 + k))
    if P['l2x']:
        for k in range(16):
            a('v_ldexp_f32 v%d, v%d, v10' % (100 + k, 100 + k))
        for jj in range(8):
            a('v_cvt_pk_bf16_f32 v%d, v%d, v%d' % (116 + jj, 100 + 2 * jj, 101 + 2 * jj))
    else:
        for k in range(8):
            a('v_ldexp_f32 v%d, v%d, v10' % (116 + k, 116 + k))
    for l in range(3):
        for jj in range(4):
            a('v_cvt_pk_f16_f32 v%d, v%d, v%d' % (100 + 4 * l + jj, 76 + 6 * jj + l, 76 + 6 * jj + 3 + l))
            a('v_and_b32 v%d, v%d, v4' % (100 + 4 * l + jj, 100 + 4 * l + jj))
        a('buffer_store_dwordx4 %s, v%d, %s, 0 offen offset:%d' % (vr(100 + 4 * l, 4), O, sr(S_T0, 4), 1024 * l))
    if P['l2x']:
        for jj in range(4):
            a('v_and_b32 v%d, v%d, v4' % (112 + jj, 116 + jj))
            a('v_and_b32 v%d, v%d, v4' % (120 + jj, 120 + jj))
    else:
        for jj in range(4):
            a('v_cvt_pk_bf16_f32 v%d, v%d, v%d' % (116 + jj, 116 + 2 * jj, 117 + 2 * jj))
        for jj in range(4):
            a('v_and_b32 v%d, v%d, v6' % (112 + jj, 116 + jj))
            a('v_and_b32 v%d, v%d, v7' % (120 + jj, 116 + jj))
    a('v_add_u32 v11, 4096, v%d' % O)
    a('buffer_store_dwordx4 v[112:115], v%d, %s, 0 offen offset:3072' % (O, sr(S_T0, 4)))
    a('buffer_store_dwordx4 v[120:123], v11, %s, 0 offen' % sr(S_T0, 4))
    a('v_bfe_u32 v5, v%d, 2, 1' % L)
    a('v_bfe_u32 v6, v%d, 3, 1' % L)
    a('v_lshl_or_b32 v5, v5, 1, v6')
    a('v_and_b32 v6, 3, v%d' % L)
    a('v_lshl_or_b32 v5, v5, 2, v6')
    a('v_lshlrev_b32 v5, 1, v5')
    a('v_bfe_u32 v7, v%d, 4, 1' % L)
    a('v_xor_b32 v4, v7, v8')
    a('v_subrev_u32 v4, 1, v4')
    for k in range(16):
        a('ds_read_u16 v%d, v5 offset:%d' % (76 + k, PB + 2048 + 32 * k))
        if k % 8 == 7:
            a('s_waitcnt lgkmcnt(0)')
    for k in range(8):
        a('ds_read_u16 v%d, v5 offset:%d' % (92 + k, PB + 3072 + 32 * k))
    a('s_waitcnt lgkmcnt(0)')
    for k in range(24):
        a('v_lshlrev_b32 v%d, 16, v%d' % (76 + k, 76 + k))
    a('v_mul_f32 v9, v92, v92')
    for k in range(1, 8):
        a('v_fmac_f32 v9, v%d, v%d' % (92 + k, 92 + k))
    a('v_log_f32 v9, v9')
    a('v_mul_f32 v9, 0.5, v9')
    a('v_floor_f32 v9, v9')
    a('v_med3_f32 v9, v9, -s14, s14')
    a('v_cvt_i32_f32 v9, v9')
    a('v_sub_u32 v10, 0, v9')
    for k in range(8):
        a('v_ldexp_f32 v%d, v%d, v10' % (92 + k, 92 + k))
    for k in range(16):
        a('v_subrev_u32 v6, s%d, v9' % (sS + k))
        a('v_ldexp_f32 v%d, v%d, v6' % (76 + k, 76 + k))
    for jj in range(8):
        a('v_cvt_pk_bf16_f32 v%d, v%d, v%d' % (76 + jj, 76 + 2 * jj, 77 + 2 * jj))
        a('v_and_b32 v%d, v%d, v4' % (76 + jj, 76 + jj))
    for jj in range(4):
        a('v_cvt_pk_f16_f32 v%d, v%d, v%d' % (84 + jj, 92 + 2 * jj, 93 + 2 * jj))
        a('v_and_b32 v%d, v%d, v4' % (84 + jj, 84 + jj))
    for i in range(3):
        a('buffer_store_dwordx4 %s, v11, %s, 0 offen offset:%d' % (vr(76 + 4 * i, 4), sr(S_T0, 4), 1024 * (i + 1)))
    a('s_nop 1')


from gen_k2p import k2
from gen_p8 import prod


DOC = '''
;
;
'''


def main():
    a = Asm()
    body = Asm()
    out = []
    kernels = []
    if P['fuse']:
        b = Asm()
        h = prod(b, P, globals())
        lds = max(h.lds, k2(b, P, globals(), h))
        kernels.append((NAME + '_kernel', b, lds, 512))
    else:
        b = Asm()
        if P['p8']:
            kernels.append(('bin_kernel', b, prod(b, P, globals()).lds, 512))
        else:
            kernels.append(('bin_kernel', b, k1(b), 1024))
        if not P['only1']:
            b = Asm()
            kernels.append(('acc_kernel', b, k2(b, P, globals(), None), 512))
    hdr = open('cdna_kernels/%s.s.ref' % NAME).read().split('\n')
    hdr = [l for l in hdr if l.startswith(';') and '@launch' not in l and 'Override launch' not in l and 'grid=ceil' not in l]
    out += hdr
    for nm, b, lds, nt in kernels:
        out.append('; @launch kernel=%s grid=(256,1,1) block=(%d,1,1) lds=%d' % (nm, nt, lds))
        if P['fuse'] == 2:
            out[-1] = '; @launch grid=(256,1,1) block=(512,1,1) lds=%d' % lds
    if P['k2x']:
        out.append(out[-1])
    out += DOC.strip('\n').split('\n')
    out.append('.amdgcn_target "amdgcn-amd-amdhsa--gfx950"')
    out.append('.text')
    for nm, b, lds, nt in kernels:
        out.append('.globl %s\n.p2align 8\n.type %s,@function\n%s:' % (nm, nm, nm))
        out.append(b.text())
    out.append('.section .rodata,"a"')
    for nm, b, lds, nt in kernels:
        out.append('''.p2align 6
.amdhsa_kernel %s
  .amdhsa_next_free_vgpr %d
  .amdhsa_next_free_sgpr 102
  .amdhsa_accum_offset %d
  .amdhsa_group_segment_fixed_size 0
  .amdhsa_kernarg_size 112
  .amdhsa_user_sgpr_count 2
  .amdhsa_user_sgpr_kernarg_segment_ptr 1
  .amdhsa_system_sgpr_workgroup_id_x 1
.end_amdhsa_kernel''' % (nm, 131072 // nt, 131072 // nt))
    open(sys.argv[1], 'w').write('\n'.join(out) + '\n')


main()
```

```python
import math


def k2(a, P, G, hk):
    vr, sr, srd, f2u = G['vr'], G['sr'], G['srd'], G['f2u']
    E, BINE, TS, TSP = G['E'], G['BINE'], G['TS'], G['TSP']
    REC0, DESC0, PREP0, WS_BYTES = G['REC0'], G['DESC0'], G['PREP0'], G['WS_BYTES']
    ROWS = BINE + 3
    PL = ROWS * 4
    RBF0 = 5 * PL
    HI0 = RBF0 + ROWS * 16
    SCR = HI0 + 4 * PL
    LDS = SCR + 128
    KC0, TB0, BB0, SC0, RING0 = 0, 12800, 21504, 25600, 25856
    NSL = 15
    NBLK = 51
    NQ = 7
    S_M, S_MR, S_WS, S_DIST, S_MO, S_OUT, S_DBG = 16, 20, 24, 28, 32, 36, 92
    sCEN = 40
    sW, sBIN, sT, sT2 = 48, 49, 50, 51
    sM0, sM1, sIDM, sHI, sA16 = 52, 53, 54, 55, 56
    sPASS, sMODE, sIX = 57, 58, 59
    sV6 = 60
    sMK = 62
    sFL, sSK = 64, 78
    sPc = 64
    sR, sTB, sRB, sRE, sPS = 69, 70, 71, 72, 73
    sLO = 74
    sMA = 84
    sLM = 84
    sEND = 88
    sEW = 80
    sF, sE, sDL, sI, sP, sNT, sSUB = 4, 5, 6, 7, 8, 9, 10
    LANE, S0 = 1, 2
    AG, AM, GATE, MD = 164, 176, 184, 200
    GB = (156, 216)
    SBF, RBF = 224, 232
    IA, IB = 236, 238
    A16, ANG = (240, 241), (242, 243)
    A4, A4B, CV, AC = 244, 245, 246, 155
    RTN = (247, 248)
    STK, CK, TM = 249, 250, 251
    RAW = 156
    RT, RA = 216, 232
    NA = P['na']
    TAR = (240, 241, 242, 243, 236, 238)
    TF = (244, 245)
    TH, VM, ONE, EIGHT, L12, RBA, WD, WA = 246, 248, 249, 250, 251, 252, 253, 254
    lab = [0]
    HO = 'sc1' if hk else P['ldrec']
    VZ, VP, VT = 6, 7, 8
    NS0 = P['ns0']

    def spin(load, notready, m):
        n = lab[0]
        lab[0] += 1
        a('s_mov_b32 s%d, 0x40000' % sT2)
        a.wait_vm(m)
        a('Lpl%d:' % n)
        notready()
        a('s_cbranch_execz Lpd%d' % n)
        a('s_sleep %d' % P['slp'])
        a.nocount = True
        load()
        a.nocount = False
        a('s_sub_u32 s%d, s%d, 1' % (sT2, sT2))
        a('s_waitcnt vmcnt(0)')
        a('s_cbranch_scc0 Lpl%d' % n)
        a('Lpd%d:' % n)
        a('s_mov_b64 exec, -1')
        a('s_nop 3')

    def cleared_load():
        a('global_load_dword v%d, v%d, s[12:13] sc1' % (VP, VZ))
        return a.mark()

    def done_load():
        a('global_load_dword v%d, v%d, s[14:15] sc1' % (VP, VZ))
        return a.mark()

    def done_addr():
        a('s_and_b32 s%d, s2, 7' % sT)
        a('s_lshl3_add_u32 s%d, s%d, s%d' % (sT, sT, sW))
        a('s_lshl_b32 s%d, s%d, 7' % (sT, sT))
        a('s_add_u32 s%d, s%d, %d' % (sT, sT, G['FLG0']))
        a('v_and_b32 v%d, 31, v0' % VZ)
        a('v_lshl_add_u32 v%d, v%d, 2, s%d' % (VZ, VZ, sT))

    def done_wait(m):
        spin(done_load, lambda: a('v_cmpx_ne_u32 vcc, 1, v%d' % VP), m)

    def stamp(i, late=False):
        G['stamp'](a, i, S_DBG, 96, *((253, 254) if late else (235, 234)))

    CNT0 = 2 * PL

    def plane(j):
        return ((A4, 0), (A4, 3 * PL), (A4B, 0), (A4B, 2 * PL))[j]

    def desc_load(dst, tb):
        a('v_lshlrev_b32 v%d, 12, v0' % tb)
        a('s_lshl_b32 s%d, s%d, 4' % (sT, sBIN))
        a('s_add_u32 s%d, s%d, %d' % (sT, sT, DESC0))
        a('buffer_load_dwordx4 %s, v%d, %s, s%d offen %s' % (vr(dst, 4), tb, sr(S_WS, 4), sT, HO))
        return a.mark()

    def scan4(v):
        for c, rm in (('row_shr:1', 15), ('row_shr:2', 15), ('row_shr:4', 15), ('row_shr:8', 15), ('row_bcast:15', 10), ('row_bcast:31', 12)):
            for k in range(4):
                a('v_add_u32_dpp v%d, v%d, v%d %s row_mask:0x%x bank_mask:0xf' % (v + k, v + k, v + k, c, rm))

    def img_load(first, n, dst, t):
        a('v_lshlrev_b32 v%d, 4, v%d' % (t, LANE))
        for i in range(n):
            a('s_mov_b32 s%d, %d' % (sT, PREP0 + 1024 * (first + i)))
            a('buffer_load_dwordx4 %s, v%d, %s, s%d offen %s' % (vr(dst + 4 * i, 4), t, sr(S_WS, 4), sT, HO))

    def gathers(q, part=3):
        if part & 1:
            a('buffer_load_dwordx4 %s, %s, %s, 0 idxen offen' % (vr(GB[q], 4), vr(IA, 2), sr(S_M, 4)))
        if part & 2:
            a('buffer_load_dwordx4 %s, %s, %s, 0 idxen offen' % (vr(GB[q] + 4, 4), vr(IB, 2), sr(S_M, 4)))

    def cosines(p):
        c1, c3, c2 = TM, TM + 1, TM + 2
        a('v_mul_f32 v%d, 0x40400000, v%d' % (c3, ANG[p]))
        a('v_mul_f32 v%d, 0.15915494, v%d' % (c1, ANG[p]))
        a('v_cvt_pk_bf16_f32 v%d, 0, v%d' % (c3, c3))
        a('v_fract_f32 v%d, v%d' % (c1, c1))
        a('v_mul_f32 v%d, 0.15915494, v%d' % (c3, c3))
        a('v_cos_f32 v%d, v%d' % (c1, c1))
        a('v_fract_f32 v%d, v%d' % (c3, c3))
        a('v_cos_f32 v%d, v%d' % (c3, c3))
        a('v_fma_mixlo_f16 v%d, v%d, v%d, -0.5' % (c2, c1, c1))
        a('v_cvt_pk_f16_f32 v%d, v%d, v%d' % (c1, c1, c3))

    def sbf(l):
        src, sel = ((TM, 0), (TM + 2, 0), (TM, 1))[l]
        for j in range(4):
            a('v_pk_mul_f16 v%d, v%d, v%d op_sel:[0,%d] op_sel_hi:[1,%d]' % (SBF + 4 * (l & 1) + j, RBF + j, src, sel, sel))

    def gmf(l):
        a('v_mfma_f32_32x32x16_f16 %s, %s, %s, %s' % (vr(GATE, 16), vr(AG + 4 * l, 4), vr(SBF + 4 * (l & 1), 4), vr(GATE, 16) if l else '0'))

    def mdown(p):
        a('v_mfma_f32_32x32x16_bf16 %s, %s, %s, 0' % (vr(MD, 16), vr(AM, 4), vr(GB[p], 4)))
        a('v_mfma_f32_32x32x16_bf16 %s, %s, %s, %s' % (vr(MD, 16), vr(AM + 4, 4), vr(GB[p] + 4, 4), vr(MD, 16)))

    def addrs(p):
        a('v_lshrrev_b32 v%d, 1, v%d' % (A4, A16[p]))
        a('v_lshrrev_b32 v%d, 2, v%d' % (AC, A16[p]))
        a('v_add_u32 v%d, %d, v%d' % (A4B, HI0, A4))

    def decode_rel(p, base, part=3):
        if P['lf']:
            base = 0
        a('s_set_gpr_idx_on s%d, gpr_idx(SRC1)' % (sDX if P['lf'] else sIX))
        a('s_nop 0')
        if part & 1:
            a('v_and_b32 v%d, s%d, v%d' % (IA, sIDM, S0 + base + p))
            a('v_and_b32 v%d, s%d, v%d' % (IB, sIDM, S0 + base + p))
        if part & 2:
            a('v_and_b32_sdwa v%d, s%d, v%d dst_sel:DWORD dst_unused:UNUSED_PAD src0_sel:DWORD src1_sel:WORD_1' % (A16[p], sA16, S0 + base + p))
            if p:
                a('v_and_b32 v%d, s%d, v%d' % (ANG[p], sHI, S0 + base + 2))
            else:
                a('v_lshlrev_b32 v%d, 16, v%d' % (ANG[p], S0 + base + 2))
        a('s_set_gpr_idx_off')
        if part & 1:
            a('v_permlane32_swap_b32 v%d, v%d' % (IA, IB))

    sDX, sI1, sOF, sLB = 76, 77, 78, 79

    def next_block():
        if P['lg']:
            Gn = P['lg']
            a('s_cmp_eq_u32 s%d, 0' % sOF)
            a('s_cselect_b32 s%d, %d, -1' % (sDX, Gn - 1))
            a('s_sub_u32 s%d, s%d, s%d' % (sT, sI1, sOF))
            a('s_cmp_lt_u32 s%d, s%d' % (sT, sLB))
            a('s_cselect_b32 s%d, s%d, 0' % (sDX, sDX))
            a('s_add_u32 s%d, s%d, s%d' % (sDX, sDX, sI1))
            a('s_mul_i32 s%d, s%d, 3' % (sDX, sDX))
            a('s_add_u32 s%d, s%d, 1' % (sI1, sI1))
            a('s_add_u32 s%d, s%d, 1' % (sOF, sOF))
            a('s_cmp_eq_u32 s%d, %d' % (sOF, Gn))
            a('s_cselect_b32 s%d, 0, s%d' % (sOF, sOF))
            return
        a('s_add_u32 s%d, s%d, s%d' % (sDX, sI1, sOF))
        a('s_xor_b32 s%d, s%d, s%d' % (sDX, sDX, 75))
        a('s_sub_u32 s%d, s%d, s%d' % (sDX, sDX, sOF))
        a('s_max_u32 s%d, s%d, s%d' % (sT, sDX, sI1))
        a('s_cmp_ge_u32 s%d, s%d' % (sT, sLB))
        a('s_cselect_b32 s%d, s%d, s%d' % (sDX, sI1, sDX))
        a('s_mul_i32 s%d, s%d, 3' % (sDX, sDX))
        a('s_add_u32 s%d, s%d, 1' % (sI1, sI1))

    def site(k):
        mask = sum(1 << w for w in range(8) if P['bmap'] and int(P['bmap'][w]) == k)
        if not mask:
            return
        n = lab[0]
        lab[0] += 1
        a('s_bitcmp0_b32 %d, s%d' % (mask, sW))
        a('s_cbranch_scc1 Lhb%d' % n)
        a('s_barrier')
        a.hist[-1].states = 0
        a('Lhb%d:' % n)

    def halfbar(hi):
        if P['bmap']:
            return
        n = lab[0]
        lab[0] += 1
        a('s_bitcmp%d_b32 s%d, %d' % (0 if hi else 1, sW, P['stb_']))
        a('s_cbranch_scc1 Lhb%d' % n)
        a('s_barrier')
        a.hist[-1].states = 0
        a('Lhb%d:' % n)

    def step(p):
        q = 1 - p
        ab = P['abl']
        vq = (lambda t: None) if ab & 4 else a
        vb = (lambda t: None) if ab & 68 else a
        va = (lambda t: None) if ab & 1 else a
        if P['early']:
            decode_rel(p, 3, 1)
        a('s_waitcnt vmcnt(2)')
        if not ab & 16:
            mdown(p)
        if P['early']:
            gathers(p)
        if not ab & 32:
            cosines(p)
        a('s_waitcnt lgkmcnt(%d)' % (0 if ab & 1 else 5))
        if not ab & 32:
            sbf(0)
        addrs(p)
        if not ab & 8:
            gmf(0)
        if not ab & 32:
            sbf(1)
        a('v_or_b32 v%d, v%d, v%d' % (STK, STK, RTN[p]))
        a('s_cmp_eq_u32 s%d, s%d' % (sIX, sEND))
        if not ab & 8:
            gmf(1)
        if not ab & 32:
            sbf(2)
        a('ds_read_b128 %s, v%d offset:%d' % (vr(RBF, 4), A16[q], RBF0))
        a('s_cselect_b64 %s, %s, -1' % (sr(sMK, 2), sr(sLM + 2 * p, 2)))
        if not ab & 8:
            gmf(2)
        if P['early']:
            decode_rel(p, 3, 2)
        else:
            decode_rel(p, 3)
            gathers(p)
        if P['stag'] and (p == 1 or P['stag'] == 2):
            halfbar(1)
        a('s_mov_b64 exec, %s' % sr(sMK, 2))
        pk = lambda j: MD + 4 * (j >> 1) + (j & 1)
        for j in range(8):
            vq('v_fma_f32 v%d, v%d, v%d, s%d' % (MD + 2 * j, MD + 2 * j, GATE + 2 * j, sM0))
            vq('v_fma_f32 v%d, v%d, v%d, s%d' % (MD + 2 * j + 1, MD + 2 * j + 1, GATE + 2 * j + 1, sM0))
            if j:
                jj = j - 1
                vb('v_sad_u16 v%d, v%d, s%d, v%d' % (TM + (jj >> 1), pk(jj), sM1, TM + (jj >> 1) if jj & 1 else CK))
            vq('v_cvt_pknorm_u16_f32 v%d, v%d, v%d' % (pk(j), MD + 2 * j, MD + 2 * j + 1))
            if j & 1:
                b, o = plane(j >> 1)
                va('ds_add_u64 v%d, %s offset:%d' % (b, vr(pk(j - 1), 2), o))
        vb('v_max3_u32 v%d, v%d, v%d, v%d' % (CV, TM, TM + 1, TM + 2))
        vb('v_sad_u16 v%d, v%d, s%d, v%d' % (TM + 3, pk(7), sM1, TM + 3))
        vb('v_max_u32 v%d, v%d, v%d' % (CV, CV, TM + 3))
        va('ds_add_rtn_u32 v%d, v%d, v%d offset:%d' % (RTN[p], AC, CV, CNT0))
        a('s_mov_b64 exec, -1')

    CA, CB = ANG
    sCX = 74

    def cos2():
        c1 = TM
        return ['v_mul_f32 v%d, 0x40400000, v%d' % (CA, c1),
                'v_mul_f32 v%d, 0.15915494, v%d' % (c1, c1),
                'v_cvt_pk_bf16_f32 v%d, 0, v%d' % (CA, CA),
                'v_fract_f32 v%d, v%d' % (c1, c1),
                'v_mul_f32 v%d, 0.15915494, v%d' % (CA, CA),
                'v_cos_f32 v%d, v%d' % (c1, c1),
                'v_fract_f32 v%d, v%d' % (CA, CA),
                'v_cos_f32 v%d, v%d' % (CA, CA),
                'v_fma_mixlo_f16 v%d, v%d, v%d, -0.5' % (CB, c1, c1),
                'v_cvt_pk_f16_f32 v%d, v%d, v%d' % (CA, c1, CA)]

    def sbf2(l):
        src, sel = ((CA, 0), (CB, 0), (CA, 1))[l]
        for j in range(4):
            a('v_pk_mul_f16 v%d, v%d, v%d op_sel:[0,%d] op_sel_hi:[1,%d]' % (SBF + 4 * (l & 1) + j, RBF + j, src, sel, sel))

    def step2(p):
        q = 1 - p
        cs = cos2()
        a('s_waitcnt lgkmcnt(5)')
        sbf2(0)
        addrs(p)
        site(5 * p)
        gmf(0)
        sbf2(1)
        a('v_or_b32 v%d, v%d, v%d' % (STK, STK, RTN[p]))
        a('s_cmp_eq_u32 s%d, s%d' % (sIX, sEND))
        a('s_cselect_b64 %s, %s, -1' % (sr(sMK, 2), sr(sLM + 2 * p, 2)))
        if p == 0:
            a('s_cselect_b32 s%d, %d, s%d' % (sRE, P['idm'] if P['nog'] else 0, sIDM))
        gmf(1)
        sbf2(2)
        a('ds_read_b128 %s, v%d offset:%d' % (vr(RBF, 4), A16[q], RBF0))
        if P['bpos'] == 1 and p == 1:
            halfbar(1)
        site(5 * p + 1)
        gmf(2)
        a('s_set_gpr_idx_on s%d, gpr_idx(SRC1)' % sDX)
        a('s_nop 0')
        a('v_and_b32 v%d, s%d, v%d' % (IA, sRE, S0 + p))
        a('v_and_b32 v%d, s%d, v%d' % (IB, sRE, S0 + p))
        a('v_and_b32_sdwa v%d, s%d, v%d dst_sel:DWORD dst_unused:UNUSED_PAD src0_sel:DWORD src1_sel:WORD_1' % (A16[p], sA16, S0 + p))
        if p:
            a('v_lshlrev_b32 v%d, 16, v%d' % (TM, S0 + 2))
        else:
            a('s_set_gpr_idx_idx s%d' % sCX)
            a('s_nop 0')
            a('v_and_b32 v%d, s%d, v%d' % (TM, sHI, S0 + 2))
        a('s_set_gpr_idx_off')
        a('v_permlane32_swap_b32 v%d, v%d' % (IA, IB))
        n1, n2 = P['cs1'], P['cs2']
        for t in cs[:n1]:
            a(t)
        a('s_waitcnt vmcnt(2)')
        a('v_mfma_f32_32x32x16_bf16 %s, %s, %s, 0' % (vr(MD, 16), vr(AM, 4), vr(GB[p], 4)))
        for t in cs[n1:n2]:
            a(t)
        a('v_mfma_f32_32x32x16_bf16 %s, %s, %s, %s' % (vr(MD, 16), vr(AM + 4, 4), vr(GB[p] + 4, 4), vr(MD, 16)))
        gathers(p)
        for t in cs[n2:]:
            a(t)
        if p:
            a('s_mov_b32 s%d, s%d' % (sCX, sDX))
            next_block()
        if P['bpos'] == 0 and p == 1:
            halfbar(1)
        if P['bpos'] == 2 and p == 0:
            halfbar(1)
        site(5 * p + 2)
        a('s_mov_b64 exec, %s' % sr(sMK, 2))
        pk = lambda j: MD + 4 * (j >> 1) + (j & 1)

        def F(j):
            for e in range(2):
                a('v_fma_f32 v%d, v%d, v%d, s%d' % (MD + 2 * j + e, MD + 2 * j + e, GATE + 2 * j + e, sM0))

        def SAD(j):
            a('v_sad_u16 v%d, v%d, s%d, v%d' % (TM + (j >> 1), pk(j), sM1, TM + (j >> 1) if j & 1 else CK))
        F(0)
        for j in range(8):
            if j < 7:
                F(j + 1)
            else:
                a('v_max3_u32 v%d, v%d, v%d, v%d' % (CV, TM, TM + 1, TM + 2))
            a('v_cvt_pknorm_u16_f32 v%d, v%d, v%d' % (pk(j), MD + 2 * j, MD + 2 * j + 1))
            if j:
                SAD(j - 1)
            if j & 1:
                b, o = plane(j >> 1)
                a('ds_add_u64 v%d, %s offset:%d' % (b, vr(pk(j - 1), 2), o))
            if j == 3:
                site(5 * p + 3)
        SAD(7)
        a('v_max_u32 v%d, v%d, v%d' % (CV, CV, TM + 3))
        a('ds_add_rtn_u32 v%d, v%d, v%d offset:%d' % (RTN[p], AC, CV, CNT0))
        a('s_mov_b64 exec, -1')
        site(5 * p + 4)

    if not hk:
        a('s_cmp_ge_u32 s2, 256')
        a('s_cbranch_scc1 Lk2_end')
    a('s_load_dwordx2 s[4:5], s[0:1], 0')
    a('s_load_dwordx2 s[6:7], s[0:1], 24')
    a('s_load_dwordx2 s[8:9], s[0:1], 40')
    a('s_load_dwordx2 s[10:11], s[0:1], 88')
    if not hk:
        a('s_load_dwordx4 s[12:15], s[0:1], 96')
    if P['cpf'] & 2:
        G['code_prefetch'](a, 'b', 88, 4)
    a('v_lshrrev_b32 v3, 6, v0')
    a('v_and_b32 v%d, 63, v0' % LANE)
    a('v_readfirstlane_b32 s%d, v3' % sW)
    if hk:
        a('v_and_b32 v%d, 3, v0' % VZ)
        a('v_lshlrev_b32 v%d, 6, v%d' % (VZ, VZ))
        mP = cleared_load()
    a('s_and_b32 s%d, s2, 7' % sBIN)
    a('s_lshl_b32 s%d, s%d, 5' % (sBIN, sBIN))
    a('s_lshr_b32 s%d, s2, 3' % sT)
    a('s_add_u32 s%d, s%d, s%d' % (sBIN, sBIN, sT))
    a('s_mov_b32 s%d, 0x%x' % (sM0, f2u(32768.0 / 65535.0)))
    a('s_mov_b32 s%d, 0x80008000' % sM1)
    a('s_mov_b32 s%d, 0x%x' % (sIDM, P['idm']))
    a('s_mov_b32 s%d, 0xffff0000' % sHI)
    a('s_mov_b32 s%d, 0xfff0' % sA16)
    a('s_mov_b32 s%d, 0x07060302' % sPS)
    a('s_mov_b32 s%d, 0' % sMODE)
    a('s_mul_i32 s%d, s%d, %d' % (sPASS, sBIN, BINE))
    a('s_add_u32 s%d, s%d, %d' % (sIX, sPASS, BINE))
    a('s_andn2_b32 s%d, s%d, 3' % (sPASS, sPASS))
    a('s_andn2_b32 s%d, s%d, 3' % (sIX, sIX))
    a('s_sub_u32 s%d, s%d, s%d' % (sIX, sIX, sPASS))
    a('s_sub_u32 s%d, s%d, 3072' % (sT, sIX))
    a('v_cmp_gt_u32 %s, s%d, v0' % (sr(sV6, 2), sT))
    a('v_lshrrev_b32 v%d, 5, v%d' % (IA + 1, LANE))
    a('v_lshlrev_b32 v%d, 4, v%d' % (IA + 1, IA + 1))
    a('v_mov_b32 v%d, v%d' % (IB + 1, IA + 1))
    a('v_mov_b32 v%d, 0' % IA)
    a('v_mov_b32 v%d, 0' % IB)
    a('s_waitcnt lgkmcnt(0)')
    a('s_load_dwordx4 s[96:99], s[8:9], 0')
    srd(a, S_WS, 14, WS_BYTES)
    D, X, DL = RAW, RAW + 4, RAW + 8
    if hk:
        a('s_barrier')
        for j in range(NS0):
            mS = hk.store(j)
    else:
        mDs = desc_load(D, RAW + 12)
        if P['spf']:
            a('s_lshr_b32 s%d, s2, 3' % sT)
            a('s_and_b32 s%d, s%d, 1' % (sT2, sT))
            a('s_mul_i32 s%d, s%d, 160' % (sT2, sT2))
            a('s_add_u32 s%d, s%d, 4720' % (sT2, sT2))
            a('s_and_b32 s90, s2, 7')
            a('s_mul_i32 s%d, s%d, s90' % (sT2, sT2))
            a('s_lshl_b32 s90, s%d, 6' % sW)
            a('s_add_u32 s90, s90, s%d' % sT)
            a('s_mul_i32 s90, s90, %d' % TS)
            a('s_add_u32 s90, s90, s%d' % sT2)
            a('s_add_u32 s90, s90, %d' % REC0)
            a('s_cmp_lt_u32 s%d, %d' % (sT, P['spf']))
            a('s_cselect_b32 s90, s90, %d' % WS_BYTES)
            a('v_min_u32 v%d, 38, v%d' % (WD, LANE))
            a('v_lshlrev_b32 v%d, 7, v%d' % (WD, WD))
            if P['spf'] > 32:
                a('buffer_load_dword v%d, v%d, %s, s90 offen' % (TH, WD, sr(S_WS, 4)))
                a('s_add_u32 s90, s90, %d' % (32 * TS))
                a('s_cmp_lt_u32 s%d, %d' % (sT, P['spf'] - 32))
                a('s_cselect_b32 s90, s90, %d' % WS_BYTES)
            a('buffer_load_dword v%d, v%d, %s, s90 offen' % (WD, WD, sr(S_WS, 4)))
    a('s_lshl_b32 s%d, s%d, 1' % (sT, sPASS))
    a('s_lshl_b32 s%d, s%d, 5' % (sT2, sPASS))
    srd(a, S_DIST, 6, 0, 's%d' % sT)
    srd(a, S_M, 4, E, None, 32)
    srd(a, S_MR, 4, E * 32)
    srd(a, S_MO, 4, 0, 's%d' % sT2)
    srd(a, S_OUT, 10, 0, 's%d' % sT2)
    a('s_lshl_b32 s%d, s%d, 1' % (S_DIST + 2, sIX))
    a('s_lshl_b32 s%d, s%d, 5' % (S_MO + 2, sIX))
    a('s_lshl_b32 s%d, s%d, 5' % (S_OUT + 2, sIX))
    G['stamp_init'](a, S_DBG, 14, 1, sW)
    a('s_waitcnt lgkmcnt(0)')
    for r in range(4):
        a('s_lshl_b32 s%d, s%d, 16' % (sCEN + 2 * r, 96 + r))
        a('s_and_b32 s%d, s%d, 0xffff0000' % (sCEN + 2 * r + 1, 96 + r))
    a('s_mov_b32 s%d, 0x%x' % (sR, f2u(math.sqrt(10.0 * math.log2(math.e)))))
    a('v_mov_b32 v%d, s%d' % (RT + 8, sR))
    for r in range(8):
        a('v_mul_f32 v%d, s%d, v%d' % (RT + r, sCEN + r, RT + 8))
    for r in range(8):
        a('v_readfirstlane_b32 s%d, v%d' % (sCEN + r, RT + r))
    stamp(0)
    Z, T0 = 96, 104
    for i in range(4):
        a('v_mov_b32 v%d, 0' % (Z + i))
        a('v_bfrev_b32 v%d, 1' % (Z + 4 + i))
    a('v_lshlrev_b32 v%d, 4, v0' % T0)
    a('v_lshlrev_b32 v%d, 3, v0' % (T0 + 1))
    a('s_mul_i32 s%d, s%d, 1088' % (sTB, sW))
    a('v_lshl_add_u32 v%d, v%d, 4, s%d' % (T0 + 2, LANE, sTB))
    a('ds_write_b64 v%d, %s offset:%d' % (T0 + 1, vr(Z, 2), BB0))
    a('ds_write_b128 v%d, %s offset:%d' % (T0 + 2, vr(Z + 4, 4), TB0))
    a('ds_write_b128 v%d, %s offset:%d' % (T0 + 2, vr(Z + 4, 4), TB0 + 64))
    a('s_movk_i32 s%d, 400' % sT)
    a('v_cmpx_gt_u32 vcc, s%d, v0' % sT)
    a('ds_write_b128 v%d, %s offset:%d' % (T0, vr(Z, 4), KC0))
    a('ds_write_b128 v%d, %s offset:%d' % (T0, vr(Z, 4), KC0 + 6400))
    a('s_mov_b64 exec, -1')
    a('v_mov_b32 v%d, 1' % ONE)
    a('v_mov_b32 v%d, 4' % EIGHT)
    a('v_mul_u32_u24 v%d, 12, v%d' % (L12, LANE))
    a('s_lshl_b32 s%d, s%d, %d' % (sT, sW, 9 if P['smaj'] else 10))
    a('v_lshl_add_u32 v%d, v%d, 3, s%d' % (RBA, LANE, sT))
    a('s_lshl_b32 s%d, s2, 3' % sT)
    a('s_add_u32 s%d, s%d, s%d' % (sT, sT, sW))
    WP2 = [int(x) for x in P['wp2'].split('.')] if P['wp2'] else []
    WN = -(-98 // len(WP2)) if WP2 else 25
    a('s_mul_i32 s%d, s%d, %d' % (sT, sT, WN))
    a('v_min_u32 v%d, %d, v%d' % (WA, WN - 1, LANE))
    a('v_add_lshl_u32 v%d, v%d, s%d, 7' % (WA, WA, sT))
    for j in range(4):
        if P['wpos'][j] == '0':
            a('s_mov_b32 s%d, %d' % (sT, j * 51200 * 128))
            a('buffer_load_dword v%d, v%d, %s, s%d offen' % (WD, WA, sr(S_MR, 4), sT))
    a('s_movk_i32 s%d, %d' % (sT, REC0 // 12))
    a('v_mov_b32 v%d, %d' % (T0 + 3, TSP))
    a('v_mad_u32_u24 v%d, v0, v%d, s%d' % (T0 + 3, T0 + 3, sT))
    if hk:
        rest = []
        for j in range(NS0, 20):
            if 20 - j <= len(hk.rest_a):
                rest.append(hk.rest_a[j - 20])
            rest.append(lambda j=j: hk.store(j))
        for j in range(P['nsx']):
            rest.pop(0)()
        a.wait_vm(mS)
        a('s_barrier')
        hk.publish()
        stamp(11)
        late = rest[len(rest) - P['nlate']:] if P['nlate'] else []
        for f in rest[:len(rest) - len(late)]:
            mS = f()
        spin(cleared_load, lambda: a('v_cmpx_gt_u32 vcc, 64, v%d' % VP), mP)
        mDs = desc_load(D, RAW + 12)
        done_addr()
        stamp(12)
        if not late:
            a.wait_vm(mS)
            hk.arrive2(0, VT, hk.arrive1(0, VT))

        def nr():
            a('v_and_b32 v%d, v%d, v%d' % (VT, D, D + 1))
            a('v_and_b32 v%d, v%d, v%d' % (VT + 1, D + 2, D + 3))
            a('v_and_b32 v%d, v%d, v%d' % (VT, VT, VT + 1))
            a('v_cmpx_le_i32 vcc, 0, v%d' % VT)
        spin(lambda: desc_load(D, RAW + 12), nr, mDs)
        stamp(13)
        for k in range(4):
            a('v_and_b32 v%d, 0x7fffffff, v%d' % (D + k, D + k))
    else:
        a.wait_vm(mDs)
    NP = RAW + 28
    for k in range(4):
        a('v_add_u32 v%d, 0x10000, v%d' % (NP + k, D + k))
        a('v_bfe_u32 v%d, v%d, 16, 1' % (X + k, D + k))
        a('v_lshrrev_b32 v%d, 17, v%d' % (NP + k, NP + k))
        a('v_and_b32 v%d, 0xffff, v%d' % (D + k, D + k))
        a('v_lshl_or_b32 v%d, v%d, 20, v%d' % (X + k, X + k, NP + k))
    scan4(X)
    TT = RAW + 32
    a('s_movk_i32 s%d, %d' % (sT2, NSL * 64))
    for k in range(4):
        a('v_lshrrev_b32 v%d, 20, v%d' % (TT + k, X + k))
        a('v_and_b32 v%d, 0xfffff, v%d' % (X + k, X + k))
        a('v_add_u32 v%d, v%d, v%d' % (DL + k, D + k, T0 + 3))
        a('v_sub_u32 v%d, v%d, v%d' % (TT + k, X + k, TT + k))
        a('v_sub_u32 v%d, v%d, v%d' % (DL + k, DL + k, X + k))
        a('v_add_u32 v%d, v%d, v%d' % (TT + k, TT + k, X + k))
        a('v_mul_u32_u24 v%d, 12, v%d' % (DL + k, DL + k))
        a('v_subrev_u32 v%d, %d, v%d' % (T0, 64 * P['nfull'], X + k))
        a('v_cmpx_lt_u32 vcc, %d, v%d' % (64 * (NSL - P['nfull']), T0))
        a('v_mov_b32 v%d, 0x1000000' % (TT + k))
        a('s_mov_b64 exec, -1')
    if hk:
        a('v_cmp_lt_u32 vcc, %d, v%d' % (NS0 * 8192 // 12, D + P['nrun'] - 1))
        a('s_cmp_lg_u64 vcc, 0')
        a('s_cselect_b64 exec, -1, 0')
        a('v_mov_b32 v%d, 0x1000000' % TT)
        a('s_mov_b64 exec, -1')
    for k in range(4):
        a('v_readlane_b32 s%d, v%d, 63' % (sEW + k, X + k))
    a('s_lshl_b32 s%d, s%d, 4' % (sT, sW))
    a('v_mov_b32 v%d, s%d' % (T0, sT))
    a('s_mov_b32 exec_lo, 0')
    a('s_mov_b32 exec_hi, 0x80000000')
    a('ds_write_b128 v%d, %s offset:%d' % (T0, vr(TT, 4), SC0))
    a('s_mov_b64 exec, -1')
    a('s_lshl_b32 s%d, s%d, 9' % (sT, sW))
    for k in range(4):
        a('v_subrev_u32 v%d, 1, v%d' % (T0, X + k))
        a('v_lshlrev_b32 v%d, v%d, v%d' % (T0 + 1, T0, ONE))
        a('v_lshrrev_b32 v%d, 5, v%d' % (T0, T0))
        a('v_lshl_add_u32 v%d, v%d, 2, s%d' % (T0, T0, sT))
        a('v_cmpx_ge_u32 vcc, s%d, v%d' % (sT2, X + k))
        a('v_cmpx_ne_u32 vcc, 0, v%d' % (NP + k))
        a('v_mbcnt_lo_u32_b32 v%d, vcc_lo, 0' % (T0 + 2))
        a('v_mbcnt_hi_u32_b32 v%d, vcc_hi, v%d' % (T0 + 2, T0 + 2))
        a('v_lshl_add_u32 v%d, v%d, 2, s%d' % (T0 + 2, T0 + 2, sTB))
        a('ds_or_b32 v%d, v%d offset:%d' % (T0, T0 + 1, BB0 + 128 * k))
        a('ds_write_b32 v%d, v%d offset:%d' % (T0 + 2, DL + k, TB0 + 272 * k))
        a('s_mov_b64 exec, -1')
    a('v_and_b32 v%d, 7, v0' % T0)
    a('v_lshlrev_b32 v%d, 4, v%d' % (T0, T0))
    a('s_waitcnt lgkmcnt(0)')
    a('s_barrier')
    a('ds_read_b128 %s, v%d offset:%d' % (vr(TT, 4), T0, SC0))
    a('s_mov_b32 s%d, 0' % sPc)
    a('s_waitcnt lgkmcnt(0)')
    for c in ('row_shr:1', 'row_shr:2', 'row_shr:4'):
        for k in range(4):
            a('v_add_u32_dpp v%d, v%d, v%d %s row_mask:0xf bank_mask:0xf' % (TT + k, TT + k, TT + k, c))
    for k in range(4):
        a('v_readlane_b32 s%d, v%d, 7' % (sPc + 1 + k, TT + k))
    for k in range(1, 4):
        a('s_add_u32 s%d, s%d, s%d' % (sPc + 1 + k, sPc + 1 + k, sPc + k))
    a('s_cmp_gt_u32 s%d, %d' % (sPc + 4, NBLK * 1024 if P['force_slow'] != 4 else 0))
    a('s_cbranch_scc1 Lk2_fb')
    a('s_cmp_ge_u32 s%d, %d' % (sPc + 2, 29 * 1024))
    a('s_cbranch_scc1 Lk2_fb')
    stamp(1)

    BUF = (96, 156)
    LEAD, HP = P['lead'], P['hp']
    RO, ZR = (164 if P['rsp'] else 184), 212
    DI = (TF[0], TF[1], VM, L12, TH, TH + 1, EIGHT)
    CLS = ONE
    NFULL = P['nfull']
    mA, mC, mV, mM = {}, {}, {}, {}
    VMS = (255, VM)

    def raw(u):
        return BUF[(u // NSL) & 1] + 4 * (u % NSL)

    def Mrd(r):
        a('s_lshl_b32 s%d, s%d, 9' % (sT, sW))
        a('v_lshl_add_u32 v%d, v%d, 2, s%d' % (VMS[r >> 1], LANE, sT))
        a('ds_read_b32 v%d, v%d offset:%d' % (VMS[r >> 1], VMS[r >> 1], BB0 + 128 * r))
        mM[r] = a.mark()

    def keys(t0, t1, R):
        for e, t in enumerate((t0, t1)):
            a('v_lshrrev_b32 v%d, 6, v%d' % (t, R + 2 * e))
        for t in (t0, t1):
            if P['cls']:
                a('v_and_or_b32 v%d, v%d, s91, v%d' % (t, t, CLS))
            else:
                a('v_and_b32 v%d, 0x3ffc, v%d' % (t, t))

    def A(u):
        R = raw(u)
        t0, t1 = TAR[2 * (u % NA)], TAR[2 * (u % NA) + 1]
        keys(t0, t1, R)
        for t in (t0, t1):
            a('ds_read_b32 v%d, v%d offset:%d' % (t, t, KC0))
        mA[u] = a.mark()

    def B(u):
        R = raw(u)
        tail = u % NSL >= NFULL
        if tail:
            a('v_cmpx_gt_i32 vcc, 0, v%d' % (R + 1))
        a.wait_ds(mA[u])
        for e in range(2):
            t = TAR[2 * (u % NA) + e]
            a('v_add_u32 v%d, v%d, v%d' % (t, t, R + 2 * e + 1))
        for e in range(2):
            t = TAR[2 * (u % NA) + e]
            a('v_lshlrev_b32_sdwa v%d, 1, v%d dst_sel:DWORD dst_unused:UNUSED_PAD src0_sel:DWORD src1_sel:WORD_0' % (t, t))
            a('ds_write_b64 v%d, %s offset:%d' % (t, vr(R + 2 * e, 2), RING0))
        if tail:
            a('s_mov_b64 exec, -1')

    def C(u):
        if u >= 4 * NSL:
            return
        r, k = divmod(u, NSL)
        t = TF[u & 1]
        if u == 0:
            a.wait_ds(mM[2])
        if k == 0:
            a('s_mul_i32 s%d, s%d, 1088' % (sTB, sW))
        a('v_readlane_b32 s%d, v%d, %d' % (sLO, VMS[r >> 1], 32 * (r & 1) + 2 * k))
        a('v_readlane_b32 s%d, v%d, %d' % (sLO + 1, VMS[r >> 1], 32 * (r & 1) + 2 * k + 1))
        a('s_bcnt1_i32_b64 s%d, %s' % (sT, sr(sLO, 2)))
        a('v_mbcnt_lo_u32_b32 v%d, s%d, 0' % (t, sLO))
        a('v_mbcnt_hi_u32_b32 v%d, s%d, v%d' % (t, sLO + 1, t))
        a('v_lshl_add_u32 v%d, v%d, 2, s%d' % (t, t, sTB))
        a('s_lshl2_add_u32 s%d, s%d, s%d' % (sTB, sT, sTB))
        a('ds_read_b32 v%d, v%d offset:%d' % (t, t, TB0 + 272 * r))
        mC[u] = a.mark()

    def Dd(u):
        if u >= 4 * NSL:
            return
        t = TF[u & 1]
        a('s_movk_i32 s%d, %d' % (sT2, 768 * (u % NSL)))
        a.wait_ds(mC[u])
        a('v_add_u32 v%d, v%d, v%d' % (t, t, L12))
        if P['abl'] & 2048:
            a('v_and_b32 v%d, 0x3ffff, v%d' % (t, t))
        a('buffer_load_dwordx3 %s, v%d, %s, s%d offen %s' % (vr(raw(u), 3), t, sr(S_WS, 4), sT2, HO))
        mV[u] = a.mark()

    hpend = []
    hcnt = [0]

    def H2():
        while hpend:
            R, t0, t1, m = hpend.pop()
            a.wait_ds(m)
            a('v_lshl_or_b32 v%d, v%d, 16, v%d' % (R + 3, R + 1, t1))
            a('v_and_or_b32 v%d, v%d, s%d, v%d' % (R + 1, R + 1, sHI, t0))

    def H(u):
        R = raw(u)
        tail = u % NSL >= NFULL
        t0, t1 = ((TH, TH + 1), (236, 238))[hcnt[0] & 1]
        hcnt[0] += 1
        a.wait_vm(mV[u])
        keys(t0, t1, R)
        if tail:
            a('v_cmpx_gt_i32 vcc, 0, v%d' % (R + 1))
        for t in (t0, t1):
            a('ds_add_rtn_u32 v%d, v%d, v%d offset:%d' % (t, t, EIGHT, KC0))
        m = a.mark()
        if tail:
            a('s_mov_b64 exec, -1')
        H2()
        hpend.append((R, t0, t1, m))

    def keyscan(r):
        K = RT
        nds = a.nds
        a('s_cmp_lg_u32 s%d, %d' % (sW, P['scw']))
        a('s_cbranch_scc1 Lks%d' % r)
        if P['kl']:
            L_ = P['kl']
            a('s_bitcmp1_b32 s2, %d' % P['lfb'])
            a('s_cselect_b32 s%d, %d, %d' % (sT, *((L_, 0) if not (P['kalt'] and r & 1) else (0, L_))))
            a('v_add_u32 v%d, s%d, v%d' % (RA, sT, LANE))
            if L_ & (L_ - 1) == 0:
                a('v_xor_b32 v%d, %d, v%d' % (RA, L_, RA))
            else:
                a('v_mul_u32_u24 v%d, %d, v%d' % (RA + 1, -(-1024 // L_), RA))
                a('v_bfe_u32 v%d, v%d, 10, 1' % (RA + 1, RA + 1))
                a('v_mad_i32_i24 v%d, v%d, %d, v%d' % (RA, RA + 1, -2 * L_, RA))
                a('v_add_u32 v%d, %d, v%d' % (RA, L_, RA))
            a('v_subrev_u32 v%d, s%d, v%d' % (RA, sT, RA))
            a('v_cmpx_le_u32 vcc, 49, v%d' % RA)
            a('v_mov_b32 v%d, v%d' % (RA, LANE))
            a('s_mov_b64 exec, -1')
            a('v_lshlrev_b32 v%d, 6, v%d' % (RA, RA))
        else:
            a('v_lshlrev_b32 v%d, 6, v%d' % (RA, LANE))
        for j in range(4):
            a('ds_read_b128 %s, v%d offset:%d' % (vr(K + 4 * j, 4), RA, KC0 + 3136 * r + 16 * j))
        a('s_waitcnt lgkmcnt(0)')
        for j in range(1, 16):
            a('v_add_u32 v%d, v%d, v%d' % (K + j, K + j, K + j - 1))
        a('v_mov_b32 v%d, v%d' % (RA + 1, K + 15))
        G['scan64'](a, RA + 1)
        a('v_sub_u32 v%d, v%d, v%d' % (RA + 1, RA + 1, K + 15))
        a('v_lshl_add_u32 v%d, s%d, 2, v%d' % (RA + 1, sPc + r, RA + 1))
        a('v_cmpx_gt_u32 vcc, 49, v%d' % LANE)
        for j in range(15, -1, -1):
            if j:
                a('v_add_u32 v%d, v%d, v%d' % (K + j, K + j - 1, RA + 1))
            else:
                a('v_mov_b32 v%d, v%d' % (K, RA + 1))
            if j % 4 == 0:
                a('ds_write_b128 v%d, %s offset:%d' % (RA, vr(K + j, 4), KC0 + 3136 * r + 4 * j))
        a('s_lshl_b32 s%d, s%d, 2' % (sT, sPc + r + 1))
        a('v_mov_b32 v%d, s%d' % (RA + 1, sT))
        a('v_lshlrev_b32 v%d, 2, v%d' % (RA, LANE))
        a('s_mov_b64 exec, 0xffff')
        a('ds_write_b32 v%d, v%d offset:%d' % (RA, RA + 1, KC0 + 4 * (3136 + 16 * r)))
        a('s_mov_b64 exec, -1')
        a('Lks%d:' % r)
        a('s_nop 1')
        a.nds = nds

    def rb_reads(RT=RT, j0=0):
        mk = {}
        for j in range(4):
            a('s_add_u32 s%d, s%d, %d' % (sT, sRB, j0 + j))
            a('s_and_b32 s%d, s%d, 15' % (sT, sT))
            a('s_lshl_b32 s%d, s%d, 13' % (sT, sT))
            a('v_add_u32 v%d, s%d, v%d' % (RA + j, sT, RBA))
            a('ds_read_b64 %s, v%d offset:%d' % (vr(RT + 4 * j, 2), RA + j, RING0))
            a('ds_read_b64 %s, v%d offset:%d' % (vr(RT + 4 * j + 2, 2), RA + j, RING0 + (4096 if P['smaj'] else 512)))
            mk[j] = a.mark()
        return mk

    def rb_moves(mk, RT=RT):
        a('s_mul_i32 s%d, s%d, 3' % (sIX, sRB))
        a('s_set_gpr_idx_on s%d, gpr_idx(DST)' % sIX)
        for j in range(4):
            a.wait_ds(mk[j])
            a('v_mov_b32 v%d, v%d' % (S0 + 3 * j, RT + 4 * j))
            a('v_mov_b32 v%d, v%d' % (S0 + 3 * j + 1, RT + 4 * j + 2))
            a('v_perm_b32 v%d, v%d, v%d, s%d' % (S0 + 3 * j + 2, RT + 4 * j + 3, RT + 4 * j + 1, sPS))
        a('s_set_gpr_idx_off')
        a('s_add_u32 s%d, s%d, 4' % (sRB, sRB))

    def readback(tag):
        nds = a.nds
        if tag == 'L' and P['prime']:
            a('s_sub_u32 s%d, s%d, 4' % (sT2, sRE))
            a('LrlL:')
            a('s_min_u32 s%d, s%d, s%d' % (sRB, sRB, sT2))
            rb_moves(rb_reads(192), 192)
            a('s_cmp_lt_u32 s%d, s%d' % (sRB, sRE))
            a('s_cbranch_scc1 LrlL')
            a.nds = nds
            return
        a('s_cmp_ge_u32 s%d, s%d' % (sRB, sRE))
        a('s_cbranch_scc1 Lrd%s' % tag)
        a('Lrl%s:' % tag)
        rb_moves(rb_reads())
        a('s_cmp_lt_u32 s%d, s%d' % (sRB, sRE))
        a('s_cbranch_scc1 Lrl%s' % tag)
        a('Lrd%s:' % tag)
        a('s_mov_b32 s%d, s%d' % (sRB, sRE))
        a.nds = nds

    def warm(j):
        if P['warm']:
            a('s_mov_b32 s%d, %d' % (sT, j * 2048 * WN * 128))
            a('buffer_load_dword v%d, v%d, %s, s%d offen' % (WD, WA, sr(S_MR, 4), sT))

    def l2pf(j):
        if j * 16384 >= P['pfn']:
            return
        if j == 0:
            a('s_lshr_b32 s%d, s2, 3' % sT)
            a('s_lshl_b32 s%d, s%d, 9' % (sT, sT))
            a('v_add_lshl_u32 v%d, v0, s%d, 7' % (WA, sT))
            a('s_mov_b32 s%d, %d' % (S_MR + 2, P['pfn'] * 128))
        a('s_mov_b32 s%d, %d' % (sT, j * 16384 * 128))
        a('buffer_load_dword v%d, v%d, %s, s%d offen' % (WD, WA, sr(S_MR, 4), sT))

    def dist_loads():
        a('v_lshlrev_b32 v%d, 1, v0' % (RA + 2))
        for q in range(NQ):
            a('s_movk_i32 s%d, %d' % (sT, q * 1024))
            a('buffer_load_ushort v%d, v%d, %s, s%d offen' % (DI[q], RA + 2, sr(S_DIST, 4), sT))
        return a.mark()

    def rbf_batch(q, halves=(0, 1)):
        K = RT
        if 0 in halves:
            a('v_lshlrev_b32 v%d, 16, v%d' % (K + 8, DI[q]))
            a('v_mul_f32 v%d, s%d, v%d' % (K + 8, sR, K + 8))
        rs = [r for h in halves for r in range(4 * h, 4 * h + 4)]
        for r in rs:
            a('v_subrev_f32 v%d, s%d, v%d' % (K + r, sCEN + r, K + 8))
        for r in rs:
            a('v_mul_f32 v%d, v%d, v%d' % (K + r, K + r, K + r))
        for r in rs:
            a('v_exp_f32 v%d, -v%d' % (K + r, K + r))
        if 1 in halves:
            for r in range(4):
                a('v_cvt_pk_f16_f32 v%d, v%d, v%d' % (RO + 4 * q + r, K + 2 * r, K + 2 * r + 1))

    NP_ = P['npipe']

    def guarded(r, body):
        n = lab[0]
        lab[0] += 1
        nds, nvm = a.nds, a.nvm
        for k in range(NP_, NSL):
            a('s_cmp_le_u32 s%d, %d' % (sEW + r, 64 * k))
            a('s_cbranch_scc1 Lg%d' % n)
            body(NSL * r + k)
        a('Lg%d:' % n)
        a('s_nop 3')
        a.nds, a.nvm = nds, nvm

    def U(x):
        return NSL * (x // NP_) + x % NP_

    def Cx(x):
        C(U(x))

    def Dx(x):
        if x >= 4 * NP_:
            return
        if hk and x == NP_ * P['nrun'] - 3:
            mM['p'] = done_load()
        if hk and x == NP_ * P['nrun']:
            stamp(14)
            done_wait(mM['p'])
            stamp(15)
        Dd(U(x))

    def loadstep(x):
        def first():
            if (x + 1) % NP_:
                Cx(x + 1)

        def second():
            Dx(x)
            if (x + 1) % NP_ == 0 and x < 4 * NP_:
                r = x // NP_

                def body(u):
                    C(u)
                    Dd(u)
                guarded(r, body)
                for k in range(NP_, NSL):
                    mV[NSL * r + k] = a.mark()
                if r < 3:
                    Cx(x + 1)
        return first, second

    def Hx(x):
        H(U(x))
        if (x + 1) % NP_ == 0:
            H2()
            guarded(x // NP_, lambda u: (H(u), H2()))

    def lf_init(last):
        if P['lf']:
            a('s_mov_b32 s%d, 0' % sI1)
            a('s_mov_b32 s%d, s%d' % (sLB, last))
            a('s_bitcmp1_b32 s2, %d' % P['lfb'])
            if P['lfm'] == 0:
                a('s_cselect_b32 s%d, %d, 0' % (sOF, P['lf']))
                a('s_mov_b32 s75, %d' % (0 if P['kl'] else P['lf']))
            else:
                a('s_cselect_b32 s75, %d, 0' % P['lf'])
                a('s_mov_b32 s%d, 0' % sOF)
            if P['lg']:
                a('s_sub_u32 s%d, s%d, %d' % (sLB, last, P['lg'] - 1))
                a('s_lshr_b32 s%d, s2, 3' % sT)
                a('s_mul_i32 s%d, s%d, %d' % (sOF, sT, -(-256 // P['lg'])))
                a('s_lshr_b32 s%d, s%d, 8' % (sOF, sOF))
                a('s_mul_i32 s%d, s%d, %d' % (sOF, sOF, P['lg']))
                a('s_sub_u32 s%d, s%d, s%d' % (sOF, sT, sOF))
            next_block()

    if P['cls']:
        a('s_movk_i32 s91, 0x%x' % (0x3ffc & ~(4 * P['cls'] - 1)))
        a('v_and_b32 v%d, %d, v0' % (CLS, P['cls'] - 1))
        a('v_lshlrev_b32 v%d, 2, v%d' % (CLS, CLS))
    Mrd(0)
    Mrd(2)
    a('s_mov_b32 s%d, 0' % sRB)
    lag = P['dv']
    C(0)
    for i in range(NP_ + lag):
        f1, f2 = loadstep(i)
        f1()
        f2()
        if hk and P['lt0'] <= i < P['lt0'] + len(late):
            mS = late[i - P['lt0']]()
        if i >= lag:
            Hx(i - lag)
    if hk and late:
        a.wait_vm(mS)
        hk.arrive2(0, VT, hk.arrive1(0, VT))
    a('s_waitcnt lgkmcnt(0)')
    a('s_barrier')
    keyscan(0)
    lead0 = P['lead0']
    for i in range(NP_ + lag, NP_ + lead0):
        f1, f2 = loadstep(i)
        f1()
        f2()
    a('s_waitcnt lgkmcnt(0)')
    a('s_barrier')
    nxt = NP_ + max(lag, lead0)
    for r in range(4):
        a('; run %d: scatter into the LDS ring; earlier blocks go to the record registers, the next run is loaded and ranked' % r)
        stamp(2 + r)
        u0 = NSL * r
        hq = list(range(NP_ * (r + 1), NP_ * (r + 2))) if r < 3 else []
        if r:
            a('s_lshr_b32 s%d, s%d, 10' % (sRE, sPc + r))
            for g in range(3):
                mk = rb_reads()
                if hq:
                    Hx(hq.pop(0))
                rb_moves(mk)
            readback(str(r))
        while r and len(hq) > NP_ - HP:
            Hx(hq.pop(0))
        for k in range(NA - 1):
            A(u0 + k)
        if r == P['fr']:
            stamp(11)
        if r:
            a('s_barrier')
        if r == P['fr']:
            stamp(12)
        pend = None
        for i in range(NP_):
            f1, f2 = loadstep(nxt)
            f1()
            if i + NA - 1 < NP_:
                A(u0 + i + NA - 1)
            B(u0 + i)
            assert nxt < NP_ * (r + 2) or nxt - NP_ * (r + 2) <= i
            f2()
            nxt += 1
            if nxt < NP_ * (r + 1) + LEAD + i + 1:
                f1, f2 = loadstep(nxt)
                f1()
                f2()
                nxt += 1
            nh = 2 if (len(hq) > max(1, NP_ - HP - i) and U(hq[1]) in mV and hq[1] + 4 <= nxt) else 1
            for _ in range(nh):
                if hq:
                    Hx(hq.pop(0))
                    if not hq:
                        pend = (i + P['bhd'], a.mark())
                        if r == 2:
                            mD = dist_loads()
            if pend and pend[0] == i:
                a.wait_ds(pend[1])
                if r == P['fr']:
                    stamp(13)
                a('s_barrier')
                keyscan(r + 1)
                if r == P['fr']:
                    stamp(14)
            for j in range(4):
                if not P['wp2'] and P['wpos'][j] == 'abcdefghijklmnopqrstuvwxyzABCDEFGH'[(r - 2) * NP_ + i] and r >= 2:
                    warm(j)
            if P['tlb'] & 4 and r * NP_ + i == P['tlp']:
                a('v_lshlrev_b32 v%d, %d, v0' % (RA + 3, P['tls']))
                a('s_lshl_b32 s%d, s2, 7' % sT)
                a('buffer_load_dword v%d, v%d, %s, s%d offen' % (WD, RA + 3, sr(S_MR, 4), sT))
            for j, x in enumerate(WP2):
                if x == r * NP_ + i:
                    warm(j)
            for j in range(2):
                if P['ppos'][j] == 'abcdefghijklmnopqrstuvwxyzABCDEFGH'[(r - 2) * NP_ + i] and r >= 2:
                    l2pf(j)
            if r == 3 and P['rsp']:
                if i == 1:
                    a.wait_vm(mD)
                if i >= 1:
                    rbf_batch((i - 1) >> 1, ((i - 1) & 1,))
                continue
            if r == 3 and i == 6:
                if not P['imgl']:
                    img_load(0, 5, AG, RA)
                a.wait_vm(mD)
            if r == 3 and 7 <= i < 7 + NQ - 1:
                rbf_batch(i - 7)

        def body(u):
            A(u)
            B(u)
        guarded(r, body)
        if r == 3:
            a('s_cmp_lg_u32 s%d, 0' % sW)
            a('s_cbranch_scc1 Lk2_r6')
            rbf_batch(NQ - 1)
            a('Lk2_r6:')
            if P['prime']:
                a('s_sub_u32 s%d, s%d, 1' % (sT2, sPc + 4))
                a('s_lshr_b32 s%d, s%d, 10' % (sT2, sT2))
                lf_init(sT2)
                decode_rel(0, 0)
                if P['prime'] < 3:
                    gathers(0)
                    decode_rel(1, 0)
                    gathers(1)
                elif P['prime'] == 3:
                    gathers(0, 1)
        a('s_waitcnt lgkmcnt(0)')
        if r == P['fr']:
            stamp(15)
        a('s_barrier')
    stamp(6)
    if P['prime'] == 4:
        gathers(0, 1)
    a('s_add_u32 s%d, s%d, 1023' % (sRE, sPc + 4))
    a('s_lshr_b32 s%d, s%d, 10' % (sRE, sRE))
    if P['fpipe']:
        RT2 = 164
        a('s_cmp_gt_u32 s%d, 41' % sRB)
        a('s_cbranch_scc1 Lk2_f0')
        m0 = rb_reads(RT)
        m1 = rb_reads(RT2, 4)
        rb_moves(m0, RT)
        m0 = rb_reads(RT, 4)
        rb_moves(m1, RT2)
        rb_moves(m0, RT)
        a('Lk2_f0:')
    readback('L')
    a('s_max_u32 s%d, s%d, 1' % (sRB, sRB))
    a('s_sub_u32 s%d, s%d, 1' % (sRB, sRB))
    a('s_mul_i32 s%d, s%d, 3' % (sEND, sRB))
    a('s_lshl_b32 s%d, s%d, 10' % (sT, sRB))
    a('s_sub_u32 s%d, s%d, s%d' % (sT, sPc + 4, sT))
    a('v_lshrrev_b32 v%d, 3, v%d' % (TM, RBA))
    a('v_add_u32 v%d, %d, v%d' % (TM + 1, 512 if P['smaj'] else 64, TM))
    a('v_cmp_gt_u32 %s, s%d, v%d' % (sr(sLM, 2), sT, TM))
    a('v_cmp_gt_u32 %s, s%d, v%d' % (sr(sLM + 2, 2), sT, TM + 1))
    a('s_set_gpr_idx_on s%d, gpr_idx(SRC1,DST)' % sEND)
    a('s_andn2_b64 exec, -1, %s' % sr(sLM + 2, 2))
    a('v_mov_b32 v%d, 0' % (S0 + 1))
    a('v_and_b32 v%d, 0xffff, v%d' % (S0 + 2, S0 + 2))
    a('s_andn2_b64 exec, -1, %s' % sr(sLM, 2))
    a('v_mov_b32 v%d, 0' % S0)
    a('v_mov_b32 v%d, 0' % (S0 + 2))
    a('s_mov_b64 exec, -1')
    a('s_set_gpr_idx_off')
    a('s_mov_b32 s%d, 0' % sIX)
    if not P['prime']:
        lf_init(sRB)
    if P['prime'] >= 3:
        gathers(0, 2)
        decode_rel(1, 0)
    a('Lk2_init:')
    if P['fst']:
        stamp(11)
    a('s_barrier')
    if P['fst']:
        stamp(12)
    for i in range(4):
        a('v_mov_b32 v%d, 0' % (ZR + i))
    a('v_lshlrev_b32 v%d, 4, v0' % A4)
    a('v_add_u32 v%d, %d, v%d' % (A4B, HI0, A4))
    a('v_add_u32 v%d, %d, v%d' % (CV, RBF0, A4))
    for q in range(NQ - 1):
        a('ds_write_b128 v%d, %s offset:%d' % (CV, vr(RO + 4 * q, 4), 8192 * q))
    a('s_mov_b64 exec, %s' % sr(sV6, 2))
    a('ds_write_b128 v%d, %s offset:%d' % (CV, vr(RO + 4 * NQ - 4, 4), 8192 * (NQ - 1)))
    a('s_mov_b64 exec, -1')
    if P['prime'] != 2:
        img_load(0, 5, AG, TM)
    if P['prime'] >= 3:
        gathers(1, 1)
    if not P['prime']:
        a('s_cmp_lg_u32 s%d, 0' % sMODE)
        a('s_cbranch_scc1 Lk2_ng')
        decode_rel(0, 0)
        gathers(0)
        decode_rel(1, 0)
        gathers(1)
        a('Lk2_ng:')
    if P['fst'] == 2:
        stamp(13)
    if P['ztid']:
        a('s_lshl_b32 m0, s%d, 8' % sW)
        a('s_nop 0')
        for o in list(range(0, RBF0 - 2048, 2048)) + [RBF0 - 2048]:
            a('ds_write_addtid_b32 v%d offset:%d' % (ZR, o))
    for o in (list(range(0, RBF0 - 8192, 8192)) + [RBF0 - 8192]) * (not P['ztid']):
        a('ds_write_b128 v%d, %s offset:%d' % (A4, vr(ZR, 4), o))
    if P['prime'] >= 3:
        gathers(1, 2)
    for o in list(range(0, 4 * PL - 8192, 8192)) + [4 * PL - 8192]:
        a('ds_write_b128 v%d, %s offset:%d' % (A4B, vr(ZR, 4), o))
    if P['prime'] == 2:
        img_load(0, 5, AG, TM)
    a('v_mov_b32 v%d, 0' % STK)
    a('v_mov_b32 v%d, 0' % RTN[0])
    a('v_mov_b32 v%d, 0' % RTN[1])
    a('v_mov_b32 v%d, 0x1000000' % CK)
    a('v_and_b32 v255, 0x1df, v0')
    a('v_lshl_add_u32 v255, v255, 5, v%d' % (IA + 1))
    a('s_waitcnt lgkmcnt(0)')
    if P['fst']:
        stamp(14)
    a('s_barrier')
    stamp(7, True)
    a('s_cmp_lg_u32 s%d, 0' % sMODE)
    a('s_cbranch_scc1 Lk2_all')
    a('ds_read_b128 %s, v%d offset:%d' % (vr(RBF, 4), A16[0], RBF0))
    if P['s2']:
        a('v_mov_b32 v%d, v%d' % (TM, ANG[0]))
        for t in cos2():
            a(t)
        a('s_mov_b32 s%d, s%d' % (sCX, sDX))
        next_block()
        a('s_waitcnt vmcnt(%d)' % (2 if P['prime'] >= 3 else 0 if P['prime'] else 4))
    a('s_waitcnt lgkmcnt(0)')
    MQ, AU, AR, OA = 4, 60, 68, 255
    WW, RBB, CNN = (132, 96), (140, 104), (144, 108)
    R16, T1, T2, T3, T4 = 92, 112, 113, 114, 115
    MF, AI, KB = 116, 72, 80
    sTRG = 89

    def epi_loads():
        img_load(5, 3, AU, 2)
        if P['tlb'] & 2:
            a('v_mul_u32_u24 v84, 99840, v0')
            a('buffer_load_dword v84, v84, %s, 0 offen nt' % sr(S_OUT, 4))
        for q in range(P['qk']):
            a('s_mov_b32 s%d, %d' % (sT, q * 16384))
            a('buffer_load_dwordx4 %s, v%d, %s, s%d offen' % (vr(MQ + 8 * q, 4), OA, sr(S_MO, 4), sT))
            a('buffer_load_dwordx4 %s, v%d, %s, s%d offen offset:1024' % (vr(MQ + 8 * q + 4, 4), OA, sr(S_MO, 4), sT))
        T1, T2, T3, T4 = 2, 3, 82, 83
        a('v_mov_b32 v%d, 0' % KB)
        a('v_mov_b32 v%d, 0x%x' % (KB + 1, (-0x10001) & 0xffffffff))
        a('v_bfe_u32 v%d, v0, 2, 1' % T1)
        a('v_bfe_u32 v%d, v0, 5, 1' % T2)
        a('v_and_b32 v%d, 1, v0' % T3)
        a('v_lshlrev_b32 v%d, 4, v%d' % (T3, T3))
        a('v_mov_b32 v%d, 0x3f80' % T4)
        a('v_lshlrev_b32 v%d, v%d, v%d' % (T3, T3, T4))
        a('v_bfe_u32 v%d, v0, 3, 2' % T4)
        a('v_xor_b32 v%d, v%d, v%d' % (T1, T1, T2))
        a('v_bfe_u32 v%d, v0, 1, 1' % T2)
        a('v_lshl_or_b32 v%d, v%d, 1, v%d' % (T4, T4, T2))
        a('v_lshl_or_b32 v%d, v%d, 3, v%d' % (T4, T1, T4))
        for i in range(8):
            a('v_mov_b32 v%d, 0' % (AI + i))
            a('v_cmpx_eq_u32 vcc, %d, v%d' % (i, T4))
            a('v_mov_b32 v%d, v%d' % (AI + i, T3))
            a('s_mov_b64 exec, -1')
        if P['epf']:
            G['code_prefetch'](a, 'e%d' % lab[0], 98, 2, 256, 'Lk2_epi', 'Lk2_e6')
            lab[0] += 1

    a('s_mul_i32 s%d, s%d, 49' % (sTRG, sBIN))
    a('s_lshr_b32 s%d, s%d, 8' % (sTRG, sTRG))
    a('s_add_u32 s%d, s%d, %d' % (sTRG, sTRG, P['trg']))
    a('s_and_b32 s%d, s%d, 15' % (sT, sBIN))
    a('s_add_u32 s%d, s%d, %d' % (sT, sT, 28 + P['lf'] + P['s2']))
    a('s_cmp_lt_u32 s%d, %d' % (sTRG, 28 + P['lf'] + P['s2']))
    a('s_cselect_b32 s%d, s%d, s%d' % (sTRG, sT, sTRG))
    a('s_mul_i32 s%d, s%d, 3' % (sTRG, sTRG))
    a('s_min_u32 s%d, s%d, s%d' % (sTRG, sTRG, sEND))
    assert 4 * 8 * (128 * P['nfull'] - 64) > 32 * 1024
    if '1' in P['wpos']:
        a('s_mov_b32 s90, %d' % (3 * P['mw1']))
        a('s_mov_b32 s91, %d' % (P['wpos'].index('1') * 51200 * 128))
        a('v_mov_b32 v155, v%d' % WA)
    if P['xit']:
        assert P['smaj']
        a('s_sub_u32 s%d, s%d, 1' % (sT, sPc + 4))
        a('s_bitcmp0_b32 s%d, 9' % sT)
        a('s_cselect_b32 s71, s%d, -1' % sEND)
    if P['mpf']:
        per = P['mpp']
        a('s_lshr_b32 s%d, s2, 3' % sT)
        a('s_and_b32 s90, s%d, %d' % (sT, per - 1))
        a('s_add_u32 s90, s90, 1')
        a('s_lshr_b32 s%d, s%d, %d' % (sT, sT, per.bit_length() - 1))
        a('s_mul_i32 s%d, s%d, %d' % (sT, sT, 128 * per * 128))
        a('s_add_u32 s91, s90, %d' % P['mpf'])
        a('s_lshl_b32 s91, s91, 19')
        a('s_add_u32 s91, s91, s%d' % sT)
        a('s_mul_i32 s90, s90, 3')
    if P['prio']:
        a('s_cmp_lt_u32 s%d, 4' % sW)
        a('s_cbranch_scc1 Lk2_np')
        a('s_setprio 1')
        a('Lk2_np:')
    if P['fst']:
        stamp(15, True)
    a.raw('.p2align 6')
    a('Lk2_loop:')
    a('s_cmp_eq_u32 s%d, s%d' % (sIX, sTRG))
    a('s_cbranch_scc1 Lk2_el')
    a('Lk2_lc:')
    if P['lf'] and not P['s2']:
        next_block()
    if P['mpf']:
        a('s_cmp_eq_u32 s%d, s90' % sIX)
        a('s_cbranch_scc1 Lk2_pl')
        a('Lk2_pc:')
    if '1' in P['wpos']:
        a('s_cmp_eq_u32 s%d, s90' % sIX)
        a('s_cbranch_scc1 Lk2_wl')
        a('Lk2_wc:')
    if P['s2']:
        step = step2
    step(0)
    if P['xit']:
        a('s_cmp_eq_u32 s%d, s71' % sIX)
        a('s_cbranch_scc1 Lk2_x')
    if P['stag'] == 2:
        halfbar(0)
    step(1)
    if P['stag']:
        halfbar(0)
    elif P['mbar'] == 1:
        a('s_barrier')
    elif P['mbar']:
        a('s_and_b32 s%d, s%d, %d' % (sT, sIX, P['mbar'] - 1))
        a('s_cbranch_scc1 Lk2_nb')
        a('s_barrier')
        a('Lk2_nb:')
    a('s_add_u32 s%d, s%d, 3' % (sIX, sIX))
    a('s_cmp_le_u32 s%d, s%d' % (sIX, sEND))
    a('s_cbranch_scc1 Lk2_loop')
    a('Lk2_x:')
    stamp(8, True)
    a('s_mov_b32 s%d, 0' % sPASS)
    for i in range(NQ):
        a('s_mov_b64 %s, 0' % sr(sFL + 2 * i, 2))
        a('s_mov_b64 %s, 0' % sr(sSK + 2 * i, 2))
    a('Lk2_epi:')
    a('v_lshlrev_b32 v%d, 3, v0' % A4)
    a('v_lshlrev_b32 v%d, 2, v0' % AC)
    a('v_add_u32 v%d, %d, v%d' % (A4B, HI0, A4))
    a('v_lshlrev_b32 v%d, 4, v0' % R16)
    mq = {}
    for q in range(P['qk'], NQ):
        a('s_mov_b32 s%d, %d' % (sT, q * 16384))
        a('buffer_load_dwordx4 %s, v%d, %s, s%d offen' % (vr(MQ + 8 * q, 4), OA, sr(S_MO, 4), sT))
        a('buffer_load_dwordx4 %s, v%d, %s, s%d offen offset:1024' % (vr(MQ + 8 * q + 4, 4), OA, sr(S_MO, 4), sT))
        mq[q] = a.mark()
    a('s_waitcnt vmcnt(%d) lgkmcnt(0)' % (2 + 2 * (NQ - P['qk'])))
    a('v_or3_b32 v%d, v%d, v%d, v%d' % (STK, STK, RTN[0], RTN[1]))
    a('s_barrier')
    mk = {}

    def e_read(q):
        W, RB, CN = WW[q & 1], RBB[q & 1], CNN[q & 1]
        if q == NQ - 1:
            for i in range(4):
                a('v_mov_b32 v%d, 0' % (RB + i))
            for i in range(8):
                a('v_mov_b32 v%d, 0' % (W + i))
            a('v_mov_b32 v%d, 0' % CN)
            a('s_mov_b64 exec, %s' % sr(sV6, 2))
        a('ds_read_b32 v%d, v%d offset:%d' % (CN, AC, CNT0 + 2048 * q))
        mk[q, -1] = a.mark()
        for j in range(4):
            b, o = plane(j)
            a('ds_read_b64 %s, v%d offset:%d' % (vr(W + 2 * j, 2), b, o + 4096 * q))
            mk[q, j] = a.mark()
        a('ds_read_b128 %s, v%d offset:%d' % (vr(RB, 4), R16, RBF0))
        mk[q, 8] = a.mark()
        if q == NQ - 1:
            a('s_mov_b64 exec, -1')
        else:
            a('v_add_u32 v%d, 8192, v%d' % (R16, R16))

    def e_decode(q, mf=()):
        mf = list(mf)
        if mf:
            a(mf.pop(0))
        W, CN = WW[q & 1], CNN[q & 1]
        a.wait_ds(mk[q, -1 if q == 0 else 8])
        a('v_lshrrev_b32 v%d, 24, v%d' % (CN + 1, CN))
        a('v_and_b32 v%d, 0xffffff, v%d' % (CN, CN))
        a('v_sub_u32 v%d, 0x20001, v%d' % (T1, CN + 1))
        a('v_mad_u64_u32 %s, vcc, v%d, s%d, %s' % (vr(CN + 2, 2), T1, sM1, vr(KB, 2)))
        a('v_cmp_lt_u32 vcc, 127, v%d' % (CN + 1))
        a('v_mul_u32_u24 v%d, %d, v%d' % (CN + 1, P['theta'], CN + 1))
        a('s_or_b64 %s, %s, vcc' % (sr(sFL + 2 * q, 2), sr(sFL + 2 * q, 2)))
        a('v_cmp_lt_u32 vcc, 0x7ffe, v%d' % CN)
        a('v_add_u32 v%d, v%d, v%d' % (CN + 3, CN + 3, CN + 2))
        a('s_or_b64 %s, %s, vcc' % (sr(sFL + 2 * q, 2), sr(sFL + 2 * q, 2)))
        a('v_cmp_lt_u32 vcc, v%d, v%d' % (CN, CN + 1))
        a('s_or_b64 %s, %s, vcc' % (sr(sFL + 2 * q, 2), sr(sFL + 2 * q, 2)))
        for j in range(4):
            if mf:
                a(mf.pop(0))
            a('s_andn2_b64 exec, -1, %s' % sr(sSK + 2 * q, 2))
            if q == 0:
                a.wait_ds(mk[q, j])
            a('v_lshl_add_u64 %s, %s, 0, %s' % (vr(W + 2 * j, 2), vr(W + 2 * j, 2), vr(CN + 2, 2)))
            for e in range(2):
                a('v_xor_b32 v%d, s%d, v%d' % (W + 2 * j + e, sM1, W + 2 * j + e))
            for e in range(2):
                w = W + 2 * j + e
                a('v_cvt_f32_i32_sdwa v%d, sext(v%d) dst_sel:DWORD dst_unused:UNUSED_PAD src0_sel:WORD_1' % (CN + e, w))
                a('v_cvt_f32_i32_sdwa v%d, sext(v%d) dst_sel:DWORD dst_unused:UNUSED_PAD src0_sel:WORD_0' % (w, w))
            for e in range(2):
                a('v_cvt_pk_bf16_f32 v%d, v%d, v%d' % (W + 2 * j + e, W + 2 * j + e, CN + e))
            a('s_mov_b64 exec, -1')
        if q == 0:
            a.wait_ds(mk[q, 8])

    def e_mfma(q):
        W, RB = WW[q & 1], RBB[q & 1]
        r = []
        if q in mq:
            a.wait_vm(mq[q])
        r.append('v_mfma_f32_32x32x16_bf16 %s, %s, %s, 0' % (vr(MF, 16), vr(AI, 4), vr(MQ + 8 * q, 4)))
        r.append('v_mfma_f32_32x32x16_bf16 %s, %s, %s, %s' % (vr(MF, 16), vr(AI + 4, 4), vr(MQ + 8 * q + 4, 4), vr(MF, 16)))
        r.append('v_mfma_f32_32x32x16_f16 %s, %s, %s, 0' % (vr(GATE, 16), vr(AR, 4), vr(RB, 4)))
        r.append('v_mfma_f32_32x32x16_bf16 %s, %s, %s, 0' % (vr(MD, 16), vr(AU, 4), vr(W, 4)))
        r.append('v_mfma_f32_32x32x16_bf16 %s, %s, %s, %s' % (vr(MD, 16), vr(AU + 4, 4), vr(W + 4, 4), vr(MD, 16)))
        return r

    def e_out(q):
        a('s_mov_b32 s%d, %d' % (sT, q * 16384))
        for j in range(8):
            m = MQ + 8 * q + j
            ta, tb = MF + 2 * j, MF + 2 * j + 1
            a('v_fmac_f32 v%d, v%d, v%d' % (ta, MD + 2 * j, GATE + 2 * j))
            a('v_fmac_f32 v%d, v%d, v%d' % (tb, MD + 2 * j + 1, GATE + 2 * j + 1))
            a('v_cvt_pk_bf16_f32 v%d, v%d, v%d' % (m, ta, tb))
            if j == 3:
                a('buffer_store_dwordx4 %s, v%d, %s, s%d offen %s' % (vr(MQ + 8 * q, 4), OA, sr(S_OUT, 4), sT, P['stout']))
        a('buffer_store_dwordx4 %s, v%d, %s, s%d offen offset:1024 %s' % (vr(MQ + 8 * q + 4, 4), OA, sr(S_OUT, 4), sT, P['stout']))

    e_read(0)
    e_read(1)
    e_decode(0)
    for q in range(NQ - 1):
        if q + 1 < NQ - 1:
            e_decode(q + 1, e_mfma(q))
        else:
            for t in e_mfma(q):
                a(t)
        if q + 2 < NQ:
            e_read(q + 2)
        e_out(q)
    a('s_cmp_lg_u32 s%d, 0' % sW)
    a('s_cbranch_scc1 Lk2_e6')
    e_decode(NQ - 1)
    for t in e_mfma(NQ - 1):
        a(t)
    e_out(NQ - 1)
    a('Lk2_e6:')
    stamp(9, True)
    if P['stamp']:
        a('s_waitcnt vmcnt(0)')
        stamp(10, True)
    if P['abl']:
        a('s_branch Lk2_end')
    a('s_cmp_lg_u32 s%d, 0' % sPASS)
    a('s_cbranch_scc1 Lk2_end')
    a('s_or_b64 %s, %s, %s' % (sr(sMK, 2), sr(sFL, 2), sr(sFL + 2, 2)))
    for q in range(2, NQ):
        a('s_or_b64 %s, %s, %s' % (sr(sMK, 2), sr(sMK, 2), sr(sFL + 2 * q, 2)))
    a('s_cselect_b32 s%d, 1, %d' % (sT, P['force_slow'] & 3))
    a('v_cmp_gt_i32 vcc, 0, v%d' % STK)
    a('s_cmp_lg_u64 vcc, 0')
    a('s_cselect_b32 s%d, 3, s%d' % (sT, sT))
    a('v_mov_b32 v2, s%d' % sT)
    a('s_lshl_b32 s%d, s%d, 2' % (sT, sW))
    a('s_add_u32 s%d, s%d, %d' % (sT, sT, SCR))
    a('v_mov_b32 v3, s%d' % sT)
    a('ds_write_b32 v3, v2')
    a('v_and_b32 v2, 7, v0')
    a('v_lshlrev_b32 v2, 2, v2')
    a('v_add_u32 v2, %d, v2' % SCR)
    a('s_waitcnt lgkmcnt(0)')
    a('s_barrier')
    a('ds_read_b32 v3, v2')
    a('s_waitcnt lgkmcnt(0)')
    a('v_cmp_ne_u32 vcc, 0, v3')
    a('s_cmp_eq_u64 vcc, 0')
    a('s_cbranch_scc1 Lk2_end')
    a('v_cmp_lt_u32 vcc, 1, v3')
    a('s_cmp_lg_u64 vcc, 0')
    a('Lk2_all:')
    for q in range(NQ):
        a('s_cselect_b64 %s, -1, %s' % (sr(sSK + 2 * q, 2), sr(sFL + 2 * q, 2)))
    a('s_and_b64 %s, %s, %s' % (sr(sSK + 2 * NQ - 2, 2), sr(sSK + 2 * NQ - 2, 2), sr(sV6, 2)))
    a('s_waitcnt vmcnt(0)')
    VD, VE, REC, ADDR, F12 = 4, 8, 12, 16, 17
    desc_load(VD, 18)
    a('v_lshlrev_b32 v%d, 3, v0' % A4)
    a('v_lshlrev_b32 v%d, 2, v0' % AC)
    a('v_add_u32 v%d, %d, v%d' % (A4B, HI0, A4))
    a('v_mov_b32 v2, 0')
    a('v_mov_b32 v3, 0')
    a('v_mov_b32 v19, -1')
    for q in range(NQ):
        a('s_mov_b64 exec, %s' % sr(sSK + 2 * q, 2))
        a('ds_write_b32 v%d, v19 offset:%d' % (AC, CNT0 + 2048 * q))
        for j in range(4):
            b, o = plane(j)
            a('ds_write_b64 v%d, v[2:3] offset:%d' % (b, o + 4096 * q))
        a('s_mov_b64 exec, -1')
        a('s_waitcnt lgkmcnt(0)')
    a('s_barrier')
    a('s_movk_i32 s%d, %d' % (sT, REC0 // 12))
    a('v_mov_b32 v%d, %d' % (F12, TSP))
    a('v_mad_u32_u24 v%d, v0, v%d, s%d' % (F12, F12, sT))
    a('s_waitcnt vmcnt(0)')
    for k in range(4):
        a('v_and_b32 v%d, 0x7fffffff, v%d' % (VD + k, VD + k))
        a('v_add_u32 v%d, 0x10000, v%d' % (VE + k, VD + k))
        a('v_and_b32 v%d, 0xffff, v%d' % (VD + k, VD + k))
        a('v_lshrrev_b32 v%d, 17, v%d' % (VE + k, VE + k))
    scan4(VE)
    for k in range(4):
        if k:
            a('v_add_u32 v%d, s%d, v%d' % (VE + k, sNT, VE + k))
        a('v_add_u32 v%d, v%d, v%d' % (VD + k, VD + k, F12))
        a('v_readlane_b32 s%d, v%d, 63' % (sNT, VE + k))
        a('v_sub_u32 v%d, v%d, v%d' % (VD + k, VD + k, VE + k))
        a('v_mul_lo_u32 v%d, v%d, 12' % (VD + k, VD + k))
    a('v_mul_u32_u24 v%d, 12, v%d' % (F12, LANE))
    a('s_mov_b32 s%d, 0' % sF)
    a('s_mov_b32 s%d, 0' % sE)
    a('s_mov_b32 s%d, 0' % sDL)
    a('s_movk_i32 s%d, -64' % sI)
    a('Lk2_sl:')
    a('s_cmp_ge_u32 s%d, s%d' % (sF, sNT))
    a('s_cbranch_scc1 Lk2_sd')
    a('v_add_u32 v%d, s%d, v%d' % (ADDR, sDL, F12))
    a('s_sub_u32 s%d, s%d, s%d' % (sP, sE, sF))
    a('s_cmp_ge_u32 s%d, 64' % sP)
    a('s_cbranch_scc1 Lfd')
    a('Lfl:')
    a('v_readlane_b32 s%d, v%d, s%d' % (sDL, VD, sI))
    a('v_readlane_b32 s%d, v%d, s%d' % (sE, VE, sI))
    a('s_add_u32 s%d, s%d, 1' % (sI, sI))
    a('s_cbranch_scc0 Lfc')
    a('s_mov_b64 exec, -1')
    for k in range(3):
        a('v_mov_b32 v%d, v%d' % (VE + k, VE + k + 1))
        a('v_mov_b32 v%d, v%d' % (VD + k, VD + k + 1))
    a('v_mov_b32 v%d, -1' % (VE + 3))
    a('v_bfrev_b32 v%d, 1' % (VD + 3))
    a('s_movk_i32 s%d, -64' % sI)
    a('Lfc:')
    a('s_lshl_b64 exec, -1, s%d' % sP)
    a('v_add_u32 v%d, s%d, v%d' % (ADDR, sDL, F12))
    a('s_sub_u32 s%d, s%d, s%d' % (sP, sE, sF))
    a('s_cmp_lt_u32 s%d, 64' % sP)
    a('s_cbranch_scc1 Lfl')
    a('s_mov_b64 exec, -1')
    a('Lfd:')
    a('s_add_u32 s%d, s%d, 64' % (sF, sF))
    a('v_add_u32 v%d, 768, v%d' % (F12, F12))
    a('buffer_load_dwordx3 %s, v%d, %s, 0 offen %s' % (vr(REC, 3), ADDR, sr(S_WS, 4), HO))
    a('s_mov_b32 s%d, 0' % sSUB)
    a('s_waitcnt vmcnt(0)')
    a('Lk2_s2:')
    a('v_cmp_gt_i32 %s, 0, v%d' % (sr(sMK, 2), REC + 1))
    a('v_ashrrev_i32 v%d, 31, v%d' % (TM, REC + 1))
    a('v_and_b32 v%d, v%d, v%d' % (REC, REC, TM))
    a('v_and_b32 v%d, s%d, v%d' % (IA, sIDM, REC))
    a('v_and_b32 v%d, s%d, v%d' % (IB, sIDM, REC))
    a('v_lshrrev_b32 v%d, 16, v%d' % (A16[0], REC))
    a('v_and_b32 v%d, s%d, v%d' % (A16[0], sA16, A16[0]))
    a('v_and_b32 v%d, s%d, v%d' % (ANG[0], sHI, REC + 1))
    a('v_permlane32_swap_b32 v%d, v%d' % (IA, IB))
    addrs(0)
    a('ds_read_b32 v%d, v%d offset:%d' % (CV, AC, CNT0))
    a('ds_read_b128 %s, v%d offset:%d' % (vr(RBF, 4), A16[0], RBF0))
    a('s_waitcnt lgkmcnt(0)')
    a('v_cmp_gt_i32 vcc, 0, v%d' % CV)
    a('s_and_b64 %s, %s, vcc' % (sr(sMK, 2), sr(sMK, 2)))
    a('s_cbranch_scc0 Lk2_s3')
    gathers(0)
    cosines(0)
    for l in range(3):
        sbf(l)
        gmf(l)
    a('s_waitcnt vmcnt(0)')
    mdown(0)
    for d in range(16):
        a('v_mul_f32 v%d, 0x47800000, v%d' % (GATE + d, GATE + d))
        a('v_mul_f32 v%d, v%d, v%d' % (MD + d, MD + d, GATE + d))
    a('s_mov_b64 exec, %s' % sr(sMK, 2))
    for j in range(8):
        a('v_cvt_pk_bf16_f32 v%d, v%d, v%d' % (MD + 2 * j, MD + 2 * j, MD + 2 * j + 1))
        b, o = plane(j >> 1)
        a('ds_pk_add_bf16 v%d, v%d offset:%d' % (b, MD + 2 * j, o + 4 * (j & 1)))
    a('s_mov_b64 exec, -1')
    a('Lk2_s3:')
    a('v_mov_b32 v%d, v%d' % (REC, REC + 2))
    a('v_lshlrev_b32 v%d, 16, v%d' % (REC + 1, REC + 1))
    a('s_xor_b32 s%d, s%d, 1' % (sSUB, sSUB))
    a('s_cbranch_scc1 Lk2_s2')
    a('s_branch Lk2_sl')
    a.fence()
    a('Lk2_sd:')
    a('s_mov_b32 s%d, 1' % sPASS)
    epi_loads()
    a('s_waitcnt vmcnt(0)')
    a('s_branch Lk2_epi')
    a.fence()
    a('Lk2_fb:')
    a('s_mov_b32 s%d, 1' % sMODE)
    if hk:
        if late:
            for f in late:
                f()
            a('s_waitcnt vmcnt(0)')
            hk.arrive2(0, VT, hk.arrive1(0, VT))
        done_wait(done_load())
    dist_loads()
    a('s_waitcnt vmcnt(0)')
    for q in range(NQ):
        rbf_batch(q)
    a('s_branch Lk2_init')
    a.fence()
    if '1' in P['wpos']:
        a('Lk2_wl:')
        a('buffer_load_dword v2, v155, %s, s91 offen' % sr(S_MR, 4))
        a('s_add_u32 s90, s90, %d' % (3 * P['mw2']))
        a('s_add_u32 s91, s91, %d' % (51200 * 128))
        a('s_cmp_ge_u32 s91, %d' % (4 * 51200 * 128))
        a('s_cselect_b32 s90, -1, s90')
        a('s_branch Lk2_wc')
        a.fence()
    if P['mpf']:
        a('Lk2_pl:')
        per = P['mpp']
        if per == 2:
            a('v_and_b32 v3, 31, v0')
            a('v_lshl_add_u32 v3, s%d, 5, v3' % sW)
            a('v_lshlrev_b32 v3, 7, v3')
        else:
            a('v_lshlrev_b32 v3, 7, v0')
        if per == 8:
            a('s_add_u32 s%d, s91, 65536' % sT)
            a('buffer_load_dword v%d, v3, %s, s%d offen' % (72, sr(S_MR, 4), sT))
        a('buffer_load_dword v3, v3, %s, s91 offen' % sr(S_MR, 4))
        a('s_add_u32 s90, s90, %d' % (3 * per))
        a('s_add_u32 s91, s91, %d' % (per << 19))
        a('s_branch Lk2_pc')
        a.fence()
    a('Lk2_el:')
    epi_loads()
    a('s_branch Lk2_lc')
    a.fence()
    a('Lk2_end:')
    a('s_endpgm')
    a.fence()
    return LDS
```

```python
import sys, math, struct
from asmlib import Asm

NAME = 'gather_scatter__molecular_angular_gemnet__graph'
E, T = 800000, 12800000
BINE = 3125
TS = 158976
TSP = TS // 12
REC0 = 12288
DESC0 = 0x4F00000
PREP0 = 0x5200000
FLG0 = 0x5300000
WS_BYTES = 268435456

P = dict(ld1='nt', st1='', ldrec='', stout='nt', target=165.0, theta=64, bar=16, stamp=0, force_slow=0, abl=0, idm=0xfffff, goff=0, tlp=35, tls=21, tlb=0, qk=5, wp2='', prime=0, fst=0, cls=0, bmap='', xit=1, lg=0, smaj=1, kl=0, kalt=0, rsp=1, k1m=0, k1x=0, k1pr=0, ilv=1, nog=0, s2=1, bpos=1, cs1=2, cs2=7, lf=1, lfb=3, lfm=0, tw=0, epf=0, fpipe=0, ztid=0, spf=44, ns0=6, nrun=1, nlate=0, lt0=0, mpf=0, mpp=4, atj=11, nae=20, nsx=2, slp=16, sg0=0, fuse=0, p8=0, pld=4, sch8='.L.LP.LP.LP.LP.LP.LP.LP.LP.P.P.P', fr=9, na=2, bhd=1, sch='.L.L.L.L.LP.P.P.P', early=1, stag=1, stb_=1, mw1=1, mw2=8, k1w=0, k1p=1, imgl=1, pfn=0, ppos='uz', sta='sc1', stb='sc1', nfull=10, wpos='kosw', lead=9, lead0=6, npipe=13, hp=4, scw=3, trg=2, prio=0, cpf=1, dv=4, warm=1, mbar=1, sdwa=1, npre=4, only1=0, stw=0, k2x=0, rd2=1, l2x=0, recm=0, ldg='')
for a in sys.argv[2:]:
    k, v = a.split('=')
    P[k] = type(P[k])(v.replace('+',' ')) if not isinstance(P[k], int) else int(v, 0)


def f2u(x):
    return struct.unpack('<I', struct.pack('<f', x))[0]


def vr(a, n):
    return 'v[%d:%d]' % (a, a + n - 1)


def sr(a, n):
    return 's[%d:%d]' % (a, a + n - 1)


def srd(a, d, ptr, nbytes, off=None, stride=0):
    if off is None:
        a('s_mov_b32 s%d, s%d' % (d, ptr))
        a('s_mov_b32 s%d, s%d' % (d + 1, ptr + 1))
    else:
        a('s_add_u32 s%d, s%d, %s' % (d, ptr, off))
        a('s_addc_u32 s%d, s%d, 0' % (d + 1, ptr + 1))
    if stride:
        a('s_or_b32 s%d, s%d, 0x%x' % (d + 1, d + 1, stride << 16))
    a('s_mov_b32 s%d, %d' % (d + 2, nbytes))
    a('s_mov_b32 s%d, 0x20000' % (d + 3))


def scan64(a, v, op='v_add_u32'):
    for c in ('row_shr:1', 'row_shr:2', 'row_shr:4', 'row_shr:8'):
        a('%s_dpp v%d, v%d, v%d %s row_mask:0xf bank_mask:0xf' % (op, v, v, v, c))
    a('%s_dpp v%d, v%d, v%d row_bcast:15 row_mask:0xa bank_mask:0xf' % (op, v, v, v))
    a('%s_dpp v%d, v%d, v%d row_bcast:31 row_mask:0xc bank_mask:0xf' % (op, v, v, v))


def code_prefetch(a, tag, st, vt, nwg=16, first=None, last='Lk2_end'):
    a('; touch every 128-byte line of the instruction bytes once (a few workgroups only)')
    a('s_cmp_ge_u32 s2, %d' % nwg)
    a('s_cbranch_scc1 Lcpf%s' % tag)
    a('s_getpc_b64 %s' % sr(st, 2))
    a('Lcpb%s:' % tag)
    a('v_lshlrev_b32 v%d, 7, v0' % vt)
    a('v_mov_b32 v%d, 0' % (vt + 1))
    if first:
        a('s_sub_u32 s%d, s%d, Lcpb%s-%s' % (st, st, tag, first))
        a('s_subb_u32 s%d, s%d, 0' % (st + 1, st + 1))
    a('v_cmp_gt_u32 vcc, %s-%s, v%d' % (last, first or 'Lcpb' + tag, vt))
    a('v_lshl_add_u64 %s, %s, 0, %s' % (vr(vt, 2), vr(vt, 2), sr(st, 2)))
    a('s_and_b64 exec, exec, vcc')
    a('s_cbranch_execz Lcpe%s' % tag)
    a.nocount = True
    a('global_load_dword v%d, %s, off' % (vt, vr(vt, 2)))
    a.nocount = False
    a('Lcpe%s:' % tag)
    a('s_mov_b64 exec, -1')
    a('Lcpf%s:' % tag)


STAMP0 = 0x6000000


def stamp_init(a, sdbg, wsptr, kern, sw):
    if not P['stamp']:
        return
    a('s_lshl_b32 s100, s2, 7')
    a('s_add_u32 s100, s100, %d' % (STAMP0 + kern * 32768))
    srd(a, sdbg, wsptr, 128, 's100')
    stamp.sel = sw


def stamp(a, idx, sdbg, tmp_s, tmp_v, tmp_w=None):
    tmp_w = tmp_w or tmp_v + 1
    if not P['stamp']:
        return
    lab = 'Lst%d' % stamp.n
    stamp.n += 1
    a.nocount = True
    a('s_cmp_lg_u32 s%d, %d' % (stamp.sel, P['stw']))
    a('s_cbranch_scc1 %s' % lab)
    a('s_memrealtime %s' % sr(tmp_s, 2))
    a('s_waitcnt lgkmcnt(0)')
    a('v_mov_b32 v%d, s%d' % (tmp_v, tmp_s))
    a('v_mov_b32 v%d, %d' % (tmp_w, idx * 4))
    a('buffer_store_dword v%d, v%d, %s, 0 offen' % (tmp_v, tmp_w, sr(sdbg, 4)))
    a('s_memtime %s' % sr(tmp_s, 2))
    a('s_waitcnt lgkmcnt(0)')
    a('v_mov_b32 v%d, s%d' % (tmp_v, tmp_s))
    a('buffer_store_dword v%d, v%d, %s, 0 offen offset:64' % (tmp_v, tmp_w, sr(sdbg, 4)))
    a(lab + ':')
    a.nocount = False


stamp.n = 0
stamp.sel = 0


def k1(a):
    CNTB, SCR, CNTA = 0, 4096, 4224
    DATB, DATA = 4224, 8320
    S_IN, S_OUT, S_ANG, S_REC, S_DSC, S_T0, S_DBG = 24, 28, 32, 36, 40, 44, 92
    S_REC2 = 80
    sMB, sMC, sNEG, sHI, sT, sW = 64, 65, 66, 67, 68, 69
    sREM = 70
    sBASE, sPREP, sVB, sUM = 72, 73, 74, 75
    O16, O8, ONE, SIX = 1, 2, 3, 12
    TP = 4
    TS_ = 22
    ANG = 14
    ANGR = 13
    INA, OUTA, INB, OUTB, INR, OUTR = 28, 52, 76, 100, 124, 125
    ld = P['ld1']
    st = P['st1']

    a('s_cmp_ge_u32 s2, 256')
    a('s_cbranch_scc1 Lk1_end')
    a('s_load_dwordx4 s[4:7], s[0:1], 8')
    a('s_load_dwordx2 s[8:9], s[0:1], 32')
    a('s_load_dwordx4 s[76:79], s[0:1], 96')
    a('s_load_dwordx2 s[12:13], s[0:1], 0')
    a('s_load_dwordx8 s[16:23], s[0:1], 56')
    if P['cpf'] & 1:
        code_prefetch(a, 'a', 84, 124)
    a('v_lshlrev_b32 v%d, 4, v0' % O16)
    a('v_lshlrev_b32 v%d, 3, v0' % O8)
    a('v_mov_b32 v%d, 1' % ONE)
    a('v_mov_b32 v%d, 6' % SIX)
    a('v_lshrrev_b32 v4, 6, v0')
    a('v_readfirstlane_b32 s%d, v4' % sW)
    a('v_mov_b32 v4, 0')
    a('v_lshlrev_b32 v5, 2, v0')
    a('ds_write_b32 v5, v4 offset:%d' % CNTB)
    a('ds_write_b32 v5, v4 offset:%d' % CNTA)
    a('s_mov_b32 s%d, %d' % (sMB, -(-2**32 // BINE)))
    a('s_mov_b32 s%d, 21400' % sMC)
    a('s_mov_b32 s%d, %d' % (sNEG, -BINE))
    a('s_mov_b32 s%d, 0xffff0000' % sHI)
    a('s_mov_b32 s%d, 0x80008000' % sVB)
    a('s_mov_b32 s%d, 0xff000' % sUM)
    if P['ilv']:
        a('s_mul_i32 s14, s2, 53')
        a('s_add_u32 s15, s14, 53')
        a('s_lshr_b32 s14, s14, 2')
        a('s_lshr_b32 s15, s15, 2')
        a('s_sub_u32 s%d, s15, s14' % sT)
        a('s_lshl_b32 s%d, s%d, 6' % (sT, sT))
        a('s_lshl_b32 s15, s2, 6')
        a('s_sub_u32 s14, s14, s15')
        a('s_add_u32 s3, s14, 196608')
        a('s_lshl_b32 s14, s2, 14')
        a('s_lshl_b32 s15, s2, 13')
    else:
        a('s_mul_i32 s14, s2, 3125')
        a('s_add_u32 s15, s14, 3125')
        a('s_lshr_b32 s14, s14, 2')
        a('s_lshr_b32 s15, s15, 2')
        a('s_sub_u32 s3, s15, s14')
        a('s_lshl_b32 s15, s14, 7')
        a('s_lshl_b32 s14, s14, 8')
        a('s_sub_u32 s%d, s3, 768' % sT)
        a('s_lshl_b32 s%d, s%d, 6' % (sT, sT))
    a('v_cmp_gt_u32 %s, s%d, v0' % (sr(sREM, 2), sT))
    a('v_and_b32 v13, 63, v0')
    a('v_lshlrev_b32 v27, 4, v13')
    a('s_lshl_b32 s%d, s2, 4' % sPREP)
    a('s_or_b32 s%d, s%d, s%d' % (sPREP, sPREP, sW))
    a('s_waitcnt lgkmcnt(0)')
    srd(a, S_IN, 4, 0, 's14')
    srd(a, S_OUT, 6, 0, 's14')
    srd(a, S_ANG, 8, 0, 's15')
    if P['ilv']:
        a('s_sub_u32 s%d, %d, s14' % (S_IN + 2, T * 4))
        a('s_sub_u32 s%d, %d, s14' % (S_OUT + 2, T * 4))
        a('s_sub_u32 s%d, %d, s15' % (S_ANG + 2, T * 2))
    else:
        a('s_lshl_b32 s%d, s3, 8' % (S_IN + 2))
        a('s_lshl_b32 s%d, s3, 8' % (S_OUT + 2))
        a('s_lshl_b32 s%d, s3, 7' % (S_ANG + 2))
    RS = 256 if P['ilv'] else 1
    stamp_init(a, S_DBG, 78, 0, sW)
    stamp(a, 0, S_DBG, 96, 126)
    a('s_cmp_lg_u32 s%d, 0' % sPREP)
    a('s_cbranch_scc1 Lk1_main')
    a.nocount = True
    srd(a, S_T0, 18, 768)
    srd(a, S_T0 + 4, 20, 512)
    srd(a, S_T0 + 8, 22, 512)
    srd(a, S_T0 + 12, 16, 256)
    srd(a, S_T0 + 16, 12, E * 32)
    for i in range(4):
        a('buffer_load_dwordx4 %s, v27, %s, 0 offen' % (vr(76 + 4 * i, 4), sr(S_T0 + 4 * i, 4)))
    a('v_mul_u32_u24 v4, 99984, v13')
    for i in range(4):
        a('s_mov_b32 s%d, %d' % (sT, i * 64 * 99984))
        a('buffer_load_dwordx4 %s, v4, %s, s%d offen' % (vr(92 + 4 * i, 4), sr(S_T0 + 16, 4), sT))
    a.nocount = False
    a('Lk1_main:')

    marks = {}

    def regs(j):
        return ((INA, OUTA) if j < 6 else (INB, OUTB)), 4 * (j % 6), (ANG + 2 * (j % 4) if j < 10 else (INA, OUTA)[j - 10])

    def loads(j):
        if j == 12:
            a('v_lshlrev_b32 v10, 2, v0')
            a('v_lshlrev_b32 v11, 1, v0')
            a('s_lshl_b32 s%d, s3, 8' % sT if P['ilv'] else 's_mov_b32 s%d, %d' % (sT, 12 * 16384))
            a('s_mov_b64 exec, %s' % sr(sREM, 2))
            a('buffer_load_dword v%d, v10, %s, s%d offen %s' % (OUTR, sr(S_OUT, 4), sT, ld))
            a('buffer_load_dword v%d, v10, %s, s%d offen %s' % (INR, sr(S_IN, 4), sT, ld))
            a('s_lshl_b32 s%d, s3, 7' % sT if P['ilv'] else 's_mov_b32 s%d, %d' % (sT, 12 * 8192))
            a('buffer_load_ushort v%d, v11, %s, s%d offen %s' % (ANGR, sr(S_ANG, 4), sT, ld))
            a('s_mov_b64 exec, -1')
        else:
            (rin, rout), o, rang = regs(j)
            a('s_mov_b32 s%d, %d' % (sT, j * 16384 * RS))
            a('buffer_load_dwordx4 %s, v%d, %s, s%d offen %s' % (vr(rout + o, 4), O16, sr(S_OUT, 4), sT, ld))
            a('buffer_load_dwordx4 %s, v%d, %s, s%d offen %s' % (vr(rin + o, 4), O16, sr(S_IN, 4), sT, ld))
            a('s_mov_b32 s%d, %d' % (sT, j * 8192 * RS))
            a('buffer_load_dwordx2 %s, v%d, %s, s%d offen %s' % (vr(rang, 2), O8, sr(S_ANG, 4), sT, ld))
        marks[j] = a.mark()

    def pack2(items, rg, cnt):
        a('v_or_b32 v%d, s%d, v%d' % (rg, sVB, rg))
        for e, (ri, ro) in enumerate(items):
            a('v_or_b32 v%d, 3, v%d' % (TP + e, ro))
        for e, (ri, ro) in enumerate(items):
            a('v_mul_hi_u32_u24 v%d, s%d, v%d' % (TP + e, sMB, TP + e))
        for e, (ri, ro) in enumerate(items):
            a('v_and_b32 v%d, 3, v%d' % (TP + 2 + e, TP + e))
            a('v_mad_i32_i24 v%d, v%d, s%d, v%d' % (ro, TP + e, sNEG, ro))
        for e, (ri, ro) in enumerate(items):
            a('v_add_u32 v%d, v%d, v%d' % (ro, ro, TP + 2 + e))
            a('v_and_b32 v%d, s%d, v%d' % (TP + 2 + e, sUM, ri))
        for e, (ri, ro) in enumerate(items):
            a('v_mul_hi_u32_u24 v%d, s%d, v%d' % (TP + 2 + e, sMC, TP + 2 + e))
        for e, (ri, ro) in enumerate(items):
            a('v_lshl_add_u32 v%d, v%d, 8, v%d' % (TP + e, TP + 2 + e, TP + e))
            a('v_lshl_or_b32 v%d, v%d, 20, v%d' % (ri, ro, ri))
        for e, (ri, ro) in enumerate(items):
            a('v_lshlrev_b32 v%d, 2, v%d' % (TP + e, TP + e))
        for e, (ri, ro) in enumerate(items):
            a('ds_add_u32 v%d, v%d offset:%d' % (TP + e, ONE, cnt))
            if e:
                a('v_and_or_b32 v%d, v%d, s%d, v%d' % (ro, rg, sHI, TP + e))
            else:
                a('v_lshl_or_b32 v%d, v%d, 16, v%d' % (ro, rg, TP + e))

    def pack(j):
        a.wait_vm(marks[j])
        if j == 12:
            a('s_mov_b64 exec, %s' % sr(sREM, 2))
            pack2([(INR, OUTR)], ANGR, CNTB)
            a('s_mov_b64 exec, -1')
            return
        (rin, rout), o, rang = regs(j)
        for h in range(2):
            pack2([(rin + o + 2 * h + e, rout + o + 2 * h + e) for e in range(2)], rang + h, CNTA if j < 6 else CNTB)

    def scan(sub, cnt, data, srec, mid1=None, mid2=None):
        a('; prefix sum over the 1024 buckets (padded to pairs), descriptors, pad records')
        a('v_lshlrev_b32 v10, 2, v0')
        a('s_waitcnt lgkmcnt(0)')
        a('s_barrier')
        a('ds_read_b32 v4, v10 offset:%d' % cnt)
        m = a.mark()
        if mid1:
            mid1()
        a('s_lshl_b32 s%d, s%d, 2' % (sT, sW))
        a('v_mov_b32 v8, s%d' % sT)
        a('v_and_b32 v9, 60, v10')
        a.wait_ds(m)
        a('v_add_u32 v6, 1, v4')
        a('v_lshrrev_b32 v6, 1, v6')
        a('v_mov_b32 v7, v6')
        scan64(a, 7)
        a('s_mov_b32 exec_lo, 0')
        a('s_mov_b32 exec_hi, 0x80000000')
        a('ds_write_b32 v8, v7 offset:%d' % SCR)
        a('s_mov_b64 exec, -1')
        a('s_waitcnt lgkmcnt(0)')
        a('s_barrier')
        a('ds_read_b32 v11, v9 offset:%d' % SCR)
        m = a.mark()
        if mid2:
            mid2()
        a('v_and_b32 v8, 255, v0')
        a('v_lshrrev_b32 v9, 8, v0')
        a('v_lshlrev_b32 v9, 2, v9')
        a('v_lshl_add_u32 v9, v8, 4, v9')
        a.wait_ds(m)
        a('v_mov_b32 v5, v11')
        for c in ('row_shr:1', 'row_shr:2', 'row_shr:4', 'row_shr:8'):
            a('v_add_u32_dpp v11, v11, v11 %s row_mask:0xf bank_mask:0xf' % c)
        a('v_sub_u32 v5, v11, v5')
        a('v_readlane_b32 s%d, v11, 15' % sT)
        a('v_readlane_b32 s%d, v5, s%d' % (sBASE, sW))
        a('s_mul_i32 s%d, s%d, 12' % (srec + 2, sT))
        a('v_add_u32 v7, s%d, v7' % sBASE)
        a('v_sub_u32 v6, v7, v6')
        a('s_movk_i32 s%d, %d' % (sT, data))
        a('v_mad_u32_u24 v6, v6, 12, s%d' % sT)
        a('ds_write_b32 v10, v6 offset:%d' % cnt)
        a('v_lshl_or_b32 v5, v4, 16, v7')
        a('v_mul_u32_u24 v7, 12, v7')
        a('v_mov_b32 v6, 0')
        a('v_and_b32 v4, 1, v4')
        a('s_and_b32 s%d, s2, 7' % sT)
        a('s_lshl1_add_u32 s%d, s%d, %d' % (sT, sT, 3136 + sub))
        a('v_lshrrev_b32 v8, 8, v0')
        a('v_lshl_add_u32 v8, v8, 4, s%d' % sT)
        a('v_lshlrev_b32 v8, 8, v8')
        a('v_cmpx_eq_u32 vcc, 1, v4')
        a('ds_write_b16 v7, v6 offset:%d' % (data - 8))
        a('ds_write_b32 v7, v8 offset:%d' % (data - 4))
        a('s_mov_b64 exec, -1')
        a('s_movk_i32 s%d, %d' % (sT, sub * 4096))
        a('buffer_store_dword v5, v9, %s, s%d offen %s' % (sr(S_DSC, 4), sT, st))
        a('s_waitcnt lgkmcnt(0)')
        a('s_barrier')

    def rtn(t, ro, cnt):
        a('v_and_b32 v%d, 0xffff, v%d' % (t, ro))
        a('ds_add_rtn_u32 v%d, v%d, v%d offset:%d' % (t, t, SIX, cnt))

    def put(t, ri, ro, e):
        u = 8 + (e & 1)
        a('v_and_b32 v%d, 2, v%d' % (u, t))
        a('v_add_u32 v%d, v%d, v%d' % (t, t, u))
        a('v_mad_i32_i24 v%d, v%d, -5, v%d' % (u, u, t))
        a('ds_write_b32 v%d, v%d' % (t, ri))
        a('ds_write_b16_d16_hi v%d, v%d offset:6' % (u, ro))

    def scatter(rin, rout, cnt, rem, between):
        a('; scatter into the LDS image: pair = [w0 a][angle b][angle a][w0 b]')
        G = 3
        ng = 24 // G
        mk = {}
        if rem:
            a('s_mov_b64 exec, %s' % sr(sREM, 2))
            rtn(10, OUTR, cnt)
            a('s_mov_b64 exec, -1')
        for e in range(G):
            rtn(TS_ + e, rout + e, cnt)
        mk[0] = a.mark()
        for g in range(ng):
            cur, nxt = TS_ + (g & 1) * G, TS_ + ((g + 1) & 1) * G
            if g + 1 < ng:
                for e in range(G):
                    rtn(nxt + e, rout + (g + 1) * G + e, cnt)
                mk[g + 1] = a.mark()
            a.wait_ds(mk[g])
            for e in range(G):
                put(cur + e, rin + g * G + e, rout + g * G + e, e)
            if rem and g == 0:
                a('s_mov_b64 exec, %s' % sr(sREM, 2))
                put(10, INR, OUTR, 1)
                a('s_mov_b64 exec, -1')
            between(g)

    rd = {}

    def readout(base, data):
        a('; read the sorted image back for the linear stores')
        a('v_add_u32 v22, 0x10000, v%d' % O16)
        a('v_add_u32 v23, 0x20000, v%d' % O16)
        for j in range(10):
            b = (O16, 22, 23)[j >> 2]
            a('ds_read_b128 %s, v%d offset:%d' % (vr(base + 4 * j, 4), b, data + (j & 3) * 16384))
            rd[j] = a.mark()

    def store(base, srec, j, wait=False):
        a('s_mov_b32 s%d, %d' % (sT, j * 16384))
        if wait:
            a.wait_ds(rd[j])
        a('buffer_store_dwordx4 %s, v%d, %s, s%d offen %s' % (vr(base + 4 * j, 4), O16, sr(srec, 4), sT, P['sta'] if base == INA else P['stb']))

    loads(0)
    loads(1)
    a('s_lshl_b32 s14, s2, 1')
    a('s_mul_i32 s15, s14, %d' % TS)
    a('s_add_u32 s15, s15, %d' % REC0)
    srd(a, S_REC, 78, 0, 's15')
    a('s_add_u32 s15, s15, %d' % TS)
    srd(a, S_REC2, 78, 0, 's15')
    a('s_lshl_b32 s15, s14, 12')
    a('s_add_u32 s15, s15, %d' % DESC0)
    srd(a, S_DSC, 78, 8192, 's15')
    if P['tlb'] & 1:
        a('s_mov_b32 s%d, %d' % (S_REC + 2, 2 * TS))
        a('v_mul_u32_u24 v126, %d, v0' % (TS - 128))
        a('buffer_load_dword v126, v126, %s, 0 offen nt' % sr(S_REC, 4))
        a('v_lshlrev_b32 v127, 13, v0')
        a('buffer_load_dword v127, v127, %s, 0 offen nt' % sr(S_DSC, 4))
    a('s_cmp_lg_u32 s%d, 0' % sPREP)
    a('s_barrier')
    a('s_cbranch_scc1 Lk1_noprep')
    a.nocount = True
    nds = a.nds
    prep(a, DATA, S_T0, 6 + 2 * (P['tlb'] & 1))
    a.nds = nds
    a.nocount = False
    a('Lk1_noprep:')
    if P['k1pr']:
        for pr in range(1, 4):
            a('s_cmp_lt_u32 s%d, %d' % (sW, 4 * pr))
            a('s_cbranch_scc1 Lk1_pr')
            a('s_setprio %d' % pr)
        a('Lk1_pr:')
    for j in range(6):
        if j + 2 < 8 + P['k1x']:
            loads(j + 2)
        pack(j)
    for j in range(P['k1x']):
        loads(8 + j)
    stamp(a, 1, S_DBG, 96, 126)
    k1m = [8 + P['k1x'] + j for j in range(P['k1m'])]
    scan(0, CNTA, DATA, S_REC, None, lambda: [loads(j) for j in k1m])
    stamp(a, 2, S_DBG, 96, 126)

    sched = P['sch'].split('.')
    nl, npk = [8 + P['k1x'] + P['k1m']], [6]

    def do(ops):
        for c in ops:
            if c == 'L' and nl[0] < 13:
                assert nl[0] >= 10 or nl[0] - npk[0] < 4
                loads(nl[0])
                nl[0] += 1
            elif c == 'P':
                pack(npk[0])
                npk[0] += 1
            elif c == 'B':
                a('s_barrier')

    do(sched[0])
    scatter(INA, OUTA, CNTA, False, lambda g: do(sched[g + 1]))
    stamp(a, 3, S_DBG, 96, 126)
    do('L' * (13 - nl[0]))
    if P['cpf'] & 4:
        code_prefetch(a, 'c', 84, 126, 8)
    do('P' * (13 - npk[0]))
    stamp(a, 4, S_DBG, 96, 126)
    npre = P['npre']
    scan(1, CNTB, DATB, S_REC2, lambda: readout(INA, DATA), lambda: [store(INA, S_REC, j) for j in range(npre)])
    stamp(a, 5, S_DBG, 96, 126)
    todo = list(range(npre, 10))

    def btw_b(g):
        k = -(-len(todo) // (8 - g))
        for _ in range(k):
            store(INA, S_REC, todo.pop(0))

    scatter(INB, OUTB, CNTB, True, btw_b)
    stamp(a, 6, S_DBG, 96, 126)
    a('s_waitcnt lgkmcnt(0)')
    a('s_barrier')

    def k1warm():
        srd(a, S_T0, 12, P['k1w'] * 51200 * 128 if P['k1w'] < 4 else E * 32)
        a('s_lshl_b32 s%d, s2, 4' % sT)
        a('s_add_u32 s%d, s%d, s%d' % (sT, sT, sW))
        a('s_mul_i32 s%d, s%d, %d' % (sT, sT, 13 * P['k1w']))
        a('v_and_b32 v4, 63, v0')
        a('v_min_u32 v4, %d, v4' % (13 * P['k1w'] - 1))
        a('v_add_lshl_u32 v4, v4, s%d, 7' % sT)
        a('buffer_load_dword v4, v4, %s, 0 offen' % sr(S_T0, 4))

    readout(INB, DATB)
    if P['k1w'] and P['k1p'] == 0:
        k1warm()
    for j in range(10):
        store(INB, S_REC2, j, True)
    if P['k1w'] and P['k1p'] == 1:
        k1warm()
    stamp(a, 7, S_DBG, 96, 126)
    if P['stamp']:
        a('s_waitcnt vmcnt(0)')
        stamp(a, 8, S_DBG, 96, 126)
    a('Lk1_end:')
    a('s_endpgm')
    a.fence()
    return DATB + (25472 + 1024) * 6


def prep(a_, PB, S_T0, nvm=6, L=13, wsp=78, st=14, fl=''):
    a0 = a_

    def a(t):
        t = t.replace('s14', 's%d' % st) if not t.startswith('s_add') else t
        a0(t + ' ' + fl if t.startswith('buffer_store') else t)
    O = 27
    sS = 80
    sS = 48
    a('s_waitcnt vmcnt(%d)' % nvm)
    for i in range(4):
        a('ds_write_b128 v%d, %s offset:%d' % (O, vr(76 + 4 * i, 4), PB + 1024 * i))
    a('v_mov_b32 v4, 0')
    for i in range(16):
        a('v_dot2_f32_bf16 v4, v%d, v%d, v4' % (92 + i, 92 + i))
    scan64(a, 4, 'v_add_f32')
    a('v_readlane_b32 s14, v4, 63')
    a('v_bfe_u32 v5, v%d, 3, 2' % L)
    a('v_and_b32 v6, 3, v%d' % L)
    a('v_lshl_or_b32 v5, v5, 2, v6')
    a('v_lshlrev_b32 v5, 1, v5')
    a('v_bfe_u32 v7, v%d, 2, 1' % L)
    a('v_lshrrev_b32 v8, 5, v%d' % L)
    a('s_waitcnt lgkmcnt(0)')
    for k in range(24):
        a('ds_read_u16 v%d, v5 offset:%d' % (76 + k, PB + 32 * k))
        if k % 8 == 7:
            a('s_waitcnt lgkmcnt(0)')
    for k in range(16):
        a('ds_read_u16 v%d, v5 offset:%d' % (100 + k, PB + 1024 + 32 * k))
        if k % 8 == 7:
            a('s_waitcnt lgkmcnt(0)')
    a('v_lshl_add_u32 v9, v8, 8, v5')
    for k in range(8):
        a('ds_read_u16 v%d, v9 offset:%d' % (116 + k, PB + 1024 + 32 * k))
    a('s_waitcnt lgkmcnt(0)')
    for k in range(48):
        a('v_lshlrev_b32 v%d, 16, v%d' % (76 + k, 76 + k))
    a('v_mul_f32 v9, v76, v76')
    for k in range(1, 24):
        a('v_fmac_f32 v9, v%d, v%d' % (76 + k, 76 + k))
    a('v_mul_f32 v10, v100, v100')
    for k in range(1, 16):
        a('v_fmac_f32 v10, v%d, v%d' % (100 + k, 100 + k))
    a('v_log_f32 v9, v9')
    a('v_log_f32 v10, v10')
    a('v_log_f32 v11, s14')
    a('v_add_f32 v10, v10, v9')
    a('v_add_f32 v10, v10, v11')
    c0 = math.log2(P['target']) - 0.5 * math.log2(0.1625 / 2048)
    a('v_mov_b32 v11, 0x%x' % f2u(c0))
    a('v_fmac_f32 v11, -0.5, v10')
    a('v_floor_f32 v11, v11')
    a('v_mul_f32 v9, 0.5, v9')
    a('v_floor_f32 v9, v9')
    a('s_mov_b32 s14, 0x%x' % f2u(40.0))
    a('v_med3_f32 v11, v11, -s14, s14')
    a('v_med3_f32 v9, -v9, -s14, s14')
    a('v_cvt_i32_f32 v11, v11')
    a('v_cvt_i32_f32 v9, v9')
    a('v_sub_u32 v10, v11, v9')
    a('v_subrev_u32 v10, 16, v10')
    for j in range(16):
        a('v_readlane_b32 s%d, v11, %d' % (sS + j, ((j >> 2) << 3) | (j & 3)))
    srd(a, S_T0, wsp, 8192, str(PREP0))
    a('v_xor_b32 v4, v7, v8')
    a('v_subrev_u32 v4, 1, v4')
    a('v_subrev_u32 v6, 1, v7')
    a('v_sub_u32 v7, 0, v7')
    for k in range(24):
        a('v_ldexp_f32 v%d, v%d, v9' % (76 + k, 76 + k))
        if k % 3 == 1:
            a('v_add_f32 v%d, v%d, v%d' % (76 + k, 76 + k, 76 + k))
    if P['l2x']:
        for k in range(16):
            a('v_ldexp_f32 v%d, v%d, v10' % (100 + k, 100 + k))
        for jj in range(8):
            a('v_cvt_pk_bf16_f32 v%d, v%d, v%d' % (116 + jj, 100 + 2 * jj, 101 + 2 * jj))
    else:
        for k in range(8):
            a('v_ldexp_f32 v%d, v%d, v10' % (116 + k, 116 + k))
    for l in range(3):
        for jj in range(4):
            a('v_cvt_pk_f16_f32 v%d, v%d, v%d' % (100 + 4 * l + jj, 76 + 6 * jj + l, 76 + 6 * jj + 3 + l))
            a('v_and_b32 v%d, v%d, v4' % (100 + 4 * l + jj, 100 + 4 * l + jj))
        a('buffer_store_dwordx4 %s, v%d, %s, 0 offen offset:%d' % (vr(100 + 4 * l, 4), O, sr(S_T0, 4), 1024 * l))
    if P['l2x']:
        for jj in range(4):
            a('v_and_b32 v%d, v%d, v4' % (112 + jj, 116 + jj))
            a('v_and_b32 v%d, v%d, v4' % (120 + jj, 120 + jj))
    else:
        for jj in range(4):
            a('v_cvt_pk_bf16_f32 v%d, v%d, v%d' % (116 + jj, 116 + 2 * jj, 117 + 2 * jj))
        for jj in range(4):
            a('v_and_b32 v%d, v%d, v6' % (112 + jj, 116 + jj))
            a('v_and_b32 v%d, v%d, v7' % (120 + jj, 116 + jj))
    a('v_add_u32 v11, 4096, v%d' % O)
    a('buffer_store_dwordx4 v[112:115], v%d, %s, 0 offen offset:3072' % (O, sr(S_T0, 4)))
    a('buffer_store_dwordx4 v[120:123], v11, %s, 0 offen' % sr(S_T0, 4))
    a('v_bfe_u32 v5, v%d, 2, 1' % L)
    a('v_bfe_u32 v6, v%d, 3, 1' % L)
    a('v_lshl_or_b32 v5, v5, 1, v6')
    a('v_and_b32 v6, 3, v%d' % L)
    a('v_lshl_or_b32 v5, v5, 2, v6')
    a('v_lshlrev_b32 v5, 1, v5')
    a('v_bfe_u32 v7, v%d, 4, 1' % L)
    a('v_xor_b32 v4, v7, v8')
    a('v_subrev_u32 v4, 1, v4')
    for k in range(16):
        a('ds_read_u16 v%d, v5 offset:%d' % (76 + k, PB + 2048 + 32 * k))
        if k % 8 == 7:
            a('s_waitcnt lgkmcnt(0)')
    for k in range(8):
        a('ds_read_u16 v%d, v5 offset:%d' % (92 + k, PB + 3072 + 32 * k))
    a('s_waitcnt lgkmcnt(0)')
    for k in range(24):
        a('v_lshlrev_b32 v%d, 16, v%d' % (76 + k, 76 + k))
    a('v_mul_f32 v9, v92, v92')
    for k in range(1, 8):
        a('v_fmac_f32 v9, v%d, v%d' % (92 + k, 92 + k))
    a('v_log_f32 v9, v9')
    a('v_mul_f32 v9, 0.5, v9')
    a('v_floor_f32 v9, v9')
    a('v_med3_f32 v9, v9, -s14, s14')
    a('v_cvt_i32_f32 v9, v9')
    a('v_sub_u32 v10, 0, v9')
    for k in range(8):
        a('v_ldexp_f32 v%d, v%d, v10' % (92 + k, 92 + k))
    for k in range(16):
        a('v_subrev_u32 v6, s%d, v9' % (sS + k))
        a('v_ldexp_f32 v%d, v%d, v6' % (76 + k, 76 + k))
    for jj in range(8):
        a('v_cvt_pk_bf16_f32 v%d, v%d, v%d' % (76 + jj, 76 + 2 * jj, 77 + 2 * jj))
        a('v_and_b32 v%d, v%d, v4' % (76 + jj, 76 + jj))
    for jj in range(4):
        a('v_cvt_pk_f16_f32 v%d, v%d, v%d' % (84 + jj, 92 + 2 * jj, 93 + 2 * jj))
        a('v_and_b32 v%d, v%d, v4' % (84 + jj, 84 + jj))
    for i in range(3):
        a('buffer_store_dwordx4 %s, v11, %s, 0 offen offset:%d' % (vr(76 + 4 * i, 4), sr(S_T0, 4), 1024 * (i + 1)))
    a('s_nop 1')


from gen_k2p import k2
from gen_p8 import prod


DOC = '''
;
;
'''


def main():
    a = Asm()
    body = Asm()
    out = []
    kernels = []
    if P['fuse']:
        b = Asm()
        h = prod(b, P, globals())
        lds = max(h.lds, k2(b, P, globals(), h))
        kernels.append((NAME + '_kernel', b, lds, 512))
    else:
        b = Asm()
        if P['p8']:
            kernels.append(('bin_kernel', b, prod(b, P, globals()).lds, 512))
        else:
            kernels.append(('bin_kernel', b, k1(b), 1024))
        if not P['only1']:
            b = Asm()
            kernels.append(('acc_kernel', b, k2(b, P, globals(), None), 512))
    hdr = open('cdna_kernels/%s.s.ref' % NAME).read().split('\n')
    hdr = [l for l in hdr if l.startswith(';') and '@launch' not in l and 'Override launch' not in l and 'grid=ceil' not in l]
    out += hdr
    for nm, b, lds, nt in kernels:
        out.append('; @launch kernel=%s grid=(256,1,1) block=(%d,1,1) lds=%d' % (nm, nt, lds))
        if P['fuse'] == 2:
            out[-1] = '; @launch grid=(256,1,1) block=(512,1,1) lds=%d' % lds
    if P['k2x']:
        out.append(out[-1])
    out += DOC.strip('\n').split('\n')
    out.append('.amdgcn_target "amdgcn-amd-amdhsa--gfx950"')
    out.append('.text')
    for nm, b, lds, nt in kernels:
        out.append('.globl %s\n.p2align 8\n.type %s,@function\n%s:' % (nm, nm, nm))
        out.append(b.text())
    out.append('.section .rodata,"a"')
    for nm, b, lds, nt in kernels:
        out.append('''.p2align 6
.amdhsa_kernel %s
  .amdhsa_next_free_vgpr %d
  .amdhsa_next_free_sgpr 102
  .amdhsa_accum_offset %d
  .amdhsa_group_segment_fixed_size 0
  .amdhsa_kernarg_size 112
  .amdhsa_user_sgpr_count 2
  .amdhsa_user_sgpr_kernarg_segment_ptr 1
  .amdhsa_system_sgpr_workgroup_id_x 1
.end_amdhsa_kernel''' % (nm, 131072 // nt, 131072 // nt))
    open(sys.argv[1], 'w').write('\n'.join(out) + '\n')


main()
```
